```python
import torch

def _softmax(x, axis=-1):
    return torch.softmax(x, dim=axis)

def _gelu(x):
    return torch.nn.functional.gelu(x, approximate='tanh')

def _silu(x):
    return torch.nn.functional.silu(x)

def _sigmoid(x):
    return torch.sigmoid(x)

def _layernorm(x, axis=-1, eps=1e-05):
    m = x.mean(dim=axis, keepdim=True)
    v = x.var(dim=axis, keepdim=True, unbiased=False)
    return (x - m) / torch.sqrt(v + eps)

def _scatter_add(tgt, idx, src, axis=0):
    return tgt.clone().index_add_(axis, idx, src)

def _segment_sum(src, seg, n):
    out = torch.zeros((n,) + src.shape[1:], dtype=src.dtype)
    return out.index_add_(0, seg, src)

def _pad(x, pw):
    flat = tuple((v for pair in reversed(pw) for v in pair))
    return torch.nn.functional.pad(x, flat)
kernel_name = 'adaLN_cond__gqa_block_cached__glu_gated_swiglu__decode'

def setup_inputs():

    _w = lambda a: (lambda t: t.to(torch.bfloat16) if t.is_floating_point() else t)(torch.as_tensor(a))

    def _A_setup():
        B, Sq, D = (2, 1, 576)
        Hq, Hkv, Sk, Dh = (32, 16, 8192, 128)
        assert Hq % Hkv == 0, (Hq, Hkv)
        return {'x': _w((lambda *s: torch.randn(*s, dtype=torch.bfloat16) * 0.1)(B, Sq, D)), 'k_cache': _w((lambda *s: torch.randn(*s, dtype=torch.bfloat16) * 0.8)(B, Hkv, Sk, Dh)), 'v_cache': _w((lambda *s: torch.randn(*s, dtype=torch.bfloat16) * 3.2)(B, Hkv, Sk, Dh)), 'wq': _w((lambda *s: torch.randn(*s, dtype=torch.bfloat16) * 0.8)(D, Hq * Dh) * D ** (-0.5)), 'wo': _w((lambda *s: torch.randn(*s, dtype=torch.bfloat16) * 3.2)(Hq * Dh, D) * (Hq * Dh) ** (-0.5))}
    _A_in = _A_setup()

    def _B_setup():
        B, S, D, F = (2, 1, 576, 4608)
        return {'x': _w((lambda *s: torch.randn(*s, dtype=torch.bfloat16) * 0.1)(B, S, D)), 'w1': _w((lambda *s: torch.randn(*s, dtype=torch.bfloat16) * 3.2)(D, F) * (2.0 / D) ** 0.5), 'w3': _w((lambda *s: torch.randn(*s, dtype=torch.bfloat16) * 3.2)(D, F) * (2.0 / D) ** 0.5), 'w2': _w((lambda *s: torch.randn(*s, dtype=torch.bfloat16) * 3.2)(F, D) * (2.0 / F) ** 0.5)}
    _B_in = _B_setup()
    return {'A_x': _A_in['x'], 'A_k_cache': _A_in['k_cache'], 'A_v_cache': _A_in['v_cache'], 'A_wq': _A_in['wq'], 'A_wo': _A_in['wo'], 'B_x': _B_in['x'], 'B_w1': _B_in['w1'], 'B_w3': _B_in['w3'], 'B_w2': _B_in['w2'], 'c': _w((lambda *s: torch.randn(*s, dtype=torch.bfloat16) * 0.4)(2, 576) * 8.0), 'w_mod': _w((lambda *s: torch.randn(*s, dtype=torch.bfloat16) * 0.4)(576, 6 * 576) * 576 ** (-0.5) * 8.0)}

def reference(A_x, A_k_cache, A_v_cache, A_wq, A_wo, B_x, B_w1, B_w3, B_w2, c, w_mod):

    def _A_ref(x, k_cache, v_cache, wq, wo):
        B, Sq, D = x.shape
        Hq, Dh = (32, 128)
        Hkv = k_cache.shape[1]
        rep = Hq // Hkv
        q = (lambda x, *d: x.permute(*d))((x @ wq).reshape(B, Sq, Hq, Dh), 0, 2, 1, 3)
        k = (lambda x, n, axis: torch.repeat_interleave(x, n, dim=axis))(k_cache, rep, axis=1)
        v = (lambda x, n, axis: torch.repeat_interleave(x, n, dim=axis))(v_cache, rep, axis=1)
        scores = torch.einsum('bhqd,bhkd->bhqk', q, k) * Dh ** (-0.5)
        p = _softmax(scores, axis=-1)
        o = torch.einsum('bhqk,bhkd->bhqd', p, v)
        return (lambda x, *d: x.permute(*d))(o, 0, 2, 1, 3).reshape(B, Sq, Hq * Dh) @ wo

    def _B_ref(x, w1, w3, w2):
        gate = torch.einsum('bsd,df->bsf', x, w1)
        up = torch.einsum('bsd,df->bsf', x, w3)
        h = _silu(gate) * up
        out = torch.einsum('bsf,fd->bsd', h, w2)
        return out
    x = A_x
    mod = (_silu(c) @ w_mod).reshape(c.shape[0], 6, 1, -1)
    sa, ca, ga, sb, cb, gb = (mod[:, 0].clone(), mod[:, 1].clone(), mod[:, 2].clone(), mod[:, 3].clone(), mod[:, 4].clone(), mod[:, 5].clone())
    h = _layernorm(x, axis=-1) * (1 + ca) + sa
    x = x + ga * _A_ref(h, A_k_cache, A_v_cache, A_wq, A_wo)
    h = _layernorm(x, axis=-1) * (1 + cb) + sb
    x = x + gb * _B_ref(h, B_w1, B_w3, B_w2)
    return x
```

```python
import re

TRANS = ('v_exp_f32','v_log_f32','v_rcp_f32','v_rsq_f32','v_sqrt_f32','v_sin_f32','v_cos_f32')
def _regs(tok):
    tok = tok.strip()
    tok = tok.lstrip('-')
    if tok.startswith('abs(') or tok.startswith('|'):
        tok = tok.replace('abs(', '').replace(')', '').replace('|', '')
    m = re.fullmatch(r'([vs])(\d+)', tok)
    if m: return [(m.group(1), int(m.group(2)))]
    m = re.fullmatch(r'([vs])\[(\d+):(\d+)\]', tok)
    if m: return [(m.group(1), i) for i in range(int(m.group(2)), int(m.group(3)) + 1)]
    if tok == 'vcc': return [('s', 'vcc')]
    if tok == 'exec': return [('s', 'exec')]
    if tok == 'm0': return [('s', 'm0')]
    return []

class Ins:
    def __init__(self, text):
        self.text = text
        t = text.split(';')[0].strip()
        self.label = t[:-1] if t.endswith(':') else None
        if self.label or not t or t.startswith('.'):
            self.op = None; self.ops = []; return
        parts = t.split(None, 1)
        self.op = parts[0]
        rest = parts[1] if len(parts) > 1 else ''
        ops = [o.strip() for o in re.split(r',(?![^\[]*\])', rest)] if rest else []
        self.mods = ''
        if ops:
            sp = ops[-1].split(None, 1)
            ops[-1] = sp[0]
            self.mods = sp[1] if len(sp) > 1 else ''
        self.ops = ops
        op = self.op
        self.is_mfma = op.startswith('v_mfma')
        self.is_valu = op.startswith('v_') and not self.is_mfma
        self.is_dpp = '_dpp' in op or 'quad_perm' in self.mods or 'row_' in self.mods
        self.is_perml = op.startswith('v_permlane')
        self.is_rdlane = op.startswith('v_readlane') or op.startswith('v_readfirstlane')
        self.is_trans = op.replace('_e32', '').replace('_e64', '') in TRANS
        self.is_vmem = op.startswith('buffer_') or op.startswith('global_')
        self.is_ds = op.startswith('ds_')
        self.is_salu = op.startswith('s_')
        self.is_branch = op.startswith('s_cbranch') or op == 's_branch'
        self.is_lds_dma = self.is_vmem and re.search(r'\blds\b', self.mods) is not None
        R = [_regs(o) for o in ops]
        w, r = [], []
        if self.is_mfma:
            w = R[0]; r = R[1] + R[2] + R[3]; self.srcc = R[3]; self.srcab = R[1] + R[2]
        elif self.is_valu:
            if self.is_perml: w = R[0] + R[1]; r = R[0] + R[1]
            elif op.startswith('v_cmp'):
                w = R[0]; r = sum(R[1:], [])
            elif op.startswith(('v_add_co', 'v_sub_co', 'v_addc_co', 'v_subb_co', 'v_div_scale', 'v_mad_u64')):
                w = R[0] + R[1]; r = sum(R[2:], [])
            else:
                w = R[0]; r = sum(R[1:], [])
                if op.startswith(('v_fmac', 'v_writelane', 'v_dot2c')) or self.is_dpp: r = r + R[0]
        elif self.is_vmem:
            if 'store' in op or ('atomic' in op):
                r = sum(R, []);
                if 'atomic' in op and 'sc0' in self.mods: w = R[0]
            elif self.is_lds_dma: r = sum(R, []) + [('s', 'm0')]
            else: w = R[0]; r = sum(R[1:], [])
        elif self.is_ds:
            if op.startswith(('ds_write', 'ds_add_u32', 'ds_add_f32', 'ds_or_b32')): r = sum(R, [])
            else: w = R[0]; r = sum(R[1:], [])
        elif self.is_salu:
            if op.startswith(('s_cmp', 's_bitcmp', 's_cbranch', 's_branch', 's_waitcnt', 's_nop', 's_barrier', 's_sleep', 's_endpgm', 's_setprio')): r = sum(R, [])
            else:
                w = R[0] if R else []; r = sum(R[1:], [])
                if 'saveexec' in op: w = w + [('s', 'exec')]
        self.w = set(w); self.r = set(r)
        self.wide_store = self.is_vmem and 'store' in op and ('x3' in op or 'x4' in op)
        self.states = 1
        if op == 's_nop': self.states = int(ops[0]) + 1

def need(p, c):
    n = 0
    vw = {x for x in p.w if x[0] == 'v'}; sw = {x for x in p.w if x[0] == 's'}
    if p.is_valu:
        if vw & c.r:
            if c.is_valu and c.is_dpp: n = max(n, 2)
            if c.is_valu and c.is_perml: n = max(n, 2)
            if c.is_valu and c.is_rdlane: n = max(n, 1)
            if c.is_mfma: n = max(n, 2)
            if p.is_trans and c.is_valu and not c.is_trans: n = max(n, 1)
            if p.is_trans and (c.is_ds or c.is_vmem or c.is_trans): n = max(n, 1)
        if sw & c.r:
            if c.is_valu: n = max(n, 4 if (c.op.startswith('v_readlane') or c.op.startswith('v_writelane')) else 2)
            if c.is_vmem: n = max(n, 5)
            if c.is_salu: n = max(n, 1)
        if ('s', 'vcc') in sw and c.op and c.op.startswith('v_cndmask') and len(c.ops) == 4 and c.ops[3] == 'vcc': n = max(n, 2)
        if ('s', 'vcc') in sw and c.op and c.op.startswith('s_cbranch_vcc'): n = max(n, 1)
    if p.is_mfma:
        if c.is_mfma:
            if p.w & set(c.srcab): n = max(n, 8)
            if p.w & set(c.srcc) and set(c.srcc) != p.w: n = max(n, 6)
            if (p.w & c.w) and set(c.srcc) != p.w: n = max(n, 8)
        elif c.is_valu or c.is_vmem or c.is_ds:
            if p.w & (c.r | c.w): n = max(n, 8)
            if c.is_valu and (set(p.srcc) & c.w): n = max(n, 3)
    if p.is_salu and ('s', 'm0') in p.w and c.is_lds_dma: n = max(n, 1)
    if p.wide_store and (c.is_valu or c.is_mfma or c.is_ds or c.is_vmem):
        data = set(_regs(p.ops[0]))
        if data & c.w: n = max(n, 2)
    return n

class Emit:
    def __init__(self):
        self.lines = []
    def __call__(self, s):
        for l in s.split('\n'):
            l = l.strip()
            if l: self.lines.append(l)
    def label(self, n): self.lines.append(n + ':')
    def finish(self):
        ins = [Ins(l) for l in self.lines]
        out = []
        W = 12
        def pad_needed(hist, c):
            d = 0; worst = 0
            for p in reversed(hist):
                if p.op is None: continue
                worst = max(worst, need(p, c) - d)
                d += p.states
                if d >= W: break
            return worst
        for c in ins:
            if c.op is not None:
                hist = []
                for p in reversed(out):
                    if p.op in ('s_branch', 's_endpgm'): break
                    hist.append(p)
                    if len(hist) > 40: break
                hist.reverse()
                n = pad_needed(hist, c)
                if n > 0: out.append(Ins(f's_nop {n-1}'))
            out.append(c)
        changed = True
        while changed:
            changed = False
            pos = {c.label: i for i, c in enumerate(out) if c.label}
            for i, c in enumerate(out):
                if c.op and c.is_branch:
                    tgt = pos[c.ops[0]]
                    hist = []
                    for p in reversed(out[:i+1]):
                        if p is not c and p.op in ('s_branch', 's_endpgm'): break
                        hist.append(p)
                        if len(hist) > 40: break
                    hist.reverse()
                    k = tgt; cnt = 0
                    while k < len(out) and cnt < W:
                        q = out[k]
                        if q.op is not None:
                            n = pad_needed(hist, q)
                            if n > 0:
                                out.insert(k, Ins(f's_nop {n-1}')); changed = True; break
                            hist.append(q); cnt += q.states
                            if q.op == 's_branch':
                                k = pos[q.ops[0]]; continue
                            if q.op == 's_endpgm': break
                        k += 1
                    if changed: break
        return '\n'.join((c.text if c.label else '    ' + c.text) for c in out)
```

```python
import sys
from emit import Emit
NAME = 'adaLN_cond__gqa_block_cached__glu_gated_swiglu__decode'

O_OFF, UV_OFF, G_OFF, X_OFF, Y_OFF = 0x0, 0x40000, 0x64000, 0x76000, 0x7F000
Z_OFF, ST_OFF, ML_OFF = 0x88000, 0x8D000, 0x8F000
Q_OFF, MOD_OFF = 0xC8000, 0xD0000
EP_OFF = 0xC0000
STAMP_OFF = 0x100000
WS_SIZE = 0x200000
C_BAR, C_Q, C_CNT, C_DMAA, C_DMAB, C_UV, C_GO = 0, 4, 8, 12, 16, 20, 24
FAC, MLB, QBUF, ABUF0, ABUF1, OBUF = 64, 128, 256, 1024, 3328, 8192
SLOT_A, SLOT_B = 16384, 90112
UVBUF = SLOT_B + 16384
LOG2E = 0x3fb8aa3b
SCALE = 0x3db504f3

def gen(D=4, DW=8, DJ=32, stamps=False, force_slow=False, wstart=0, sl_long=8, sl_bar=16, gate=1):
    E = Emit()
    uid = [0]
    def L(p):
        uid[0] += 1
        return f"L_{p}_{uid[0]}"
    def stamp(k):
        if stamps:
            E("s_memrealtime s[92:93]"); E("s_waitcnt lgkmcnt(0)"); E(f"s_mov_b32 s{70+k}, s92")
    def stamp_flush():
        if stamps:
            E("s_mov_b64 exec, -1")
            E("v_mov_b32 v4, 0")
            for k in range(16): E(f"v_writelane_b32 v4, s{70+k}, {k}")
            E("s_lshl_b32 s28, s4, 5"); E("s_add_u32 s28, s28, s5"); E("s_mul_i32 s28, s28, 12"); E("s_add_u32 s28, s28, s3")
            E("s_lshl_b32 s28, s28, 6"); E(f"s_add_u32 s28, s28, {STAMP_OFF}")
            E("v_mbcnt_lo_u32_b32 v5, -1, 0"); E("v_mbcnt_hi_u32_b32 v5, -1, v5"); E("v_lshlrev_b32 v5, 2, v5")
            E("s_mov_b64 exec, 0xffff")
            E("buffer_store_dword v4, v5, s[24:27], s28 offen")
    def end_wave():
        stamp_flush(); E("s_endpgm")
    def srd(r, p, size):
        E(f"s_mov_b32 s{r}, s{p}"); E(f"s_mov_b32 s{r+1}, s{p+1}"); E(f"s_mov_b32 s{r+2}, {size}"); E(f"s_mov_b32 s{r+3}, 0x20000")
    def lds_wait(off, val, vz, vt, sleep=2):
        a, b = L("lw"), L("lwd")
        E("s_mov_b32 s7, 0"); E.label(a)
        E(f"ds_read_b32 v{vt}, v{vz} offset:{off}"); E("s_waitcnt lgkmcnt(0)")
        E(f"v_readfirstlane_b32 s28, v{vt}"); E(f"s_cmp_ge_u32 s28, {val}"); E(f"s_cbranch_scc1 {b}")
        E(f"s_sleep {sleep}"); E("s_add_u32 s7, s7, 1"); E("s_cmp_lt_u32 s7, 0x40000"); E(f"s_cbranch_scc1 {a}")
        E.label(b)
    def lds_set(off, vz, vt, val):
        E(f"v_mov_b32 v{vt}, {val}"); E(f"ds_write_b32 v{vz}, v{vt} offset:{off}")
    def poll(body, sleep=0):
        a, b = L("pl"), L("pld")
        E("s_mov_b32 s7, 0"); E.label(a)
        body()
        E(f"s_cbranch_vccz {b}")
        if sleep: E(f"s_sleep {sleep}")
        E("s_add_u32 s7, s7, 1"); E("s_cmp_lt_u32 s7, 0x10000"); E(f"s_cbranch_scc1 {a}")
        E.label(b)
    def intra_store(ins):
        a, b = L("is"), L("isd")
        E("s_cmp_eq_u32 s6, 3"); E(f"s_cbranch_scc1 {a}")
        for i in ins: E(i + " sc1")
        E(f"s_branch {b}"); E.label(a)
        for i in ins: E(i)
        E.label(b)
    def rnd(dst, src, tmp=None):
        E(f"v_cvt_pk_bf16_f32 v{dst}, v{src}, v{src}"); E(f"v_and_b32 v{dst}, 0xffff0000, v{dst}")
    def row_reduce(op, r, t, rors):
        for k in rors:
            E(f"{op}_dpp v{r}, v{r}, v{r} row_ror:{k} row_mask:0xf bank_mask:0xf")
    def swap_reduce(op, r, t, which):
        E(f"v_mov_b32 v{t}, v{r}"); E(f"v_permlane{which}_swap_b32 v{r}, v{t}"); E(f"{op} v{r}, v{r}, v{t}")

    def mktag():
        E("s_waitcnt lgkmcnt(0)")
        E("s_mul_i32 s35, s34, 0x9E3779B1"); E("s_add_u32 s35, s35, 0x7F4A7C15")
    def tagcheck(acc, regs):
        E(f"v_xor_b32 v{acc}, s35, v{regs[0]}")
        for r in regs[1:]: E(f"v_bitop3_b32 v{acc}, v{acc}, v{r}, s35 bitop3:0xf6")
        E(f"v_cmp_ne_u32 vcc, 0, v{acc}")

    E("s_load_dwordx16 s[36:51], s[0:1], 0")
    E("s_load_dwordx8 s[52:59], s[0:1], 64")
    E("s_load_dwordx4 s[60:63], s[0:1], 96")
    E("s_cmp_ge_u32 s2, 256"); E("s_cbranch_scc1 L_exit")
    if stamps:
        for k in range(16): E(f"s_mov_b32 s{70+k}, 0")
    E("v_lshrrev_b32 v1, 6, v0"); E("v_and_b32 v0, 63, v0"); E("v_readfirstlane_b32 s3, v1")
    E("s_and_b32 s4, s2, 7"); E("s_lshr_b32 s5, s2, 3")
    E("s_cmp_ge_u32 s3, 8"); E("s_cbranch_scc1 L_service")

    SL = lambda i: 40 + 4 * i
    E("v_lshlrev_b32 v1, 4, v0")
    E("v_and_b32 v3, 3, v0"); E("v_lshrrev_b32 v4, 4, v0"); E("v_lshl_add_u32 v3, v4, 2, v3")
    E("v_bfe_u32 v4, v0, 2, 2"); E("v_lshlrev_b32 v4, 8, v4"); E("v_lshl_add_u32 v2, v3, 4, v4")
    E("v_bfe_u32 v4, v0, 3, 1"); E("v_lshlrev_b32 v4, 8, v4"); E("v_lshl_add_u32 v36, v3, 4, v4")
    E("s_lshr_b32 s28, s5, 4"); E("s_lshl_b32 s28, s28, 4")
    E("s_lshl_b32 s29, s4, 1"); E("s_add_u32 s28, s28, s29")
    E("s_bfe_u32 s29, s5, 0x10003"); E("s_add_u32 s28, s28, s29")
    E("s_lshl_b32 s28, s28, 21")
    E("s_and_b32 s29, s5, 7"); E("s_lshl_b32 s29, s29, 18"); E("s_add_u32 s28, s28, s29")
    E("s_lshl_b32 s29, s3, 12"); E("s_add_u32 s28, s28, s29")
    E("s_add_u32 s29, s5, s3")
    for u in range(8):
        E(f"s_add_u32 s30, s29, {u}"); E("s_and_b32 s30, s30, 7"); E("s_lshl_b32 s30, s30, 15"); E(f"s_add_u32 s{16+u}, s28, s30")
    E("s_waitcnt lgkmcnt(0)")
    stamp(0)
    srd(8, 38, 0x4000000); srd(12, 40, 0x4000000); srd(24, 62, WS_SIZE)
    def kload(i): E(f"buffer_load_dwordx4 v[{SL(i)}:{SL(i)+3}], v2, s[8:11], s{16+i//4} offen offset:{(i%4)*1024} nt")
    def vload(i): E(f"buffer_load_dwordx4 v[{SL(i)}:{SL(i)+3}], v1, s[12:15], s{16+i//4} offen offset:{(i%4)*1024} nt")
    if gate:
        E("s_mov_b32 s31, 0")
        E("s_cmp_ge_u32 s5, 9"); E("s_cselect_b32 s31, 1, 0")
        E("s_cmp_ge_u32 s5, 14"); E("s_cselect_b32 s31, 0, s31")
        E("s_cmp_ge_u32 s5, 27"); E("s_cselect_b32 s31, 2, s31")
        E("s_cmp_eq_u32 s31, 0"); E("s_cbranch_scc1 L_nogate")
        E("s_barrier")
        E("v_mov_b32 v3, 0")
        lds_wait(C_GO, "s31", 3, 4, sleep=4)
        for i in range(D): kload(i)
        E("s_branch L_gated")
        E.label("L_nogate")
    for i in range(D): kload(i)
    E("s_barrier")
    if gate: E.label("L_gated")
    for i in range(D, 32):
        E(f"s_waitcnt vmcnt({D-1})"); kload(i)
    stamp(1)
    E("v_mov_b32 v2, 0")
    lds_wait(C_Q, 1, 2, 3)
    E(f"ds_read_b128 v[20:23], v36 offset:{QBUF}")
    E(f"s_mov_b32 s30, {SCALE}"); E(f"s_mov_b32 s31, {LOG2E}")
    E("v_mov_b32 v36, 0xff800000")
    E("s_waitcnt lgkmcnt(0)")
    stamp(2)
    st = dict(issued=0)
    def qk_mfma(u):
        n = (28 - 4*u) + st['issued']
        if n < D + st['issued'] and n < 63: E(f"s_waitcnt vmcnt({n})")
        for i in range(4*u, 4*u+4):
            E(f"v_mfma_f32_16x16x32_bf16 v[{SL(i)}:{SL(i)+3}], v[{SL(i)}:{SL(i)+3}], v[20:23], 0")
    def qk_post(u):
        T = [24, 25, 26, 27]
        for k in range(4):
            for a in range(4):
                r = SL(4*u + a) + k
                if k == 0: E(f"v_mov_b32_dpp v{T[a]}, v{r} quad_perm:[0,0,0,0] row_mask:0xf bank_mask:0xf")
                else: E(f"v_add_f32_dpp v{T[a]}, v{r}, v{T[a]} quad_perm:[{k},{k},{k},{k}] row_mask:0xf bank_mask:0xf")
        E("v_cvt_pk_bf16_f32 v28, v24, v25"); E("v_cvt_pk_bf16_f32 v29, v26, v27")
        E("v_lshlrev_b32 v24, 16, v28"); E("v_and_b32 v25, 0xffff0000, v28")
        E("v_lshlrev_b32 v26, 16, v29"); E("v_and_b32 v27, 0xffff0000, v29")
        for a in range(4): E(f"v_mul_f32 v{T[a]}, s30, v{T[a]}")
        E(f"v_cvt_pk_bf16_f32 v{4+2*u}, v24, v25"); E(f"v_cvt_pk_bf16_f32 v{5+2*u}, v26, v27")
        E("v_max3_f32 v36, v24, v25, v36"); E("v_max3_f32 v36, v26, v27, v36")
    def vissue():
        i = st['issued']
        E(f"s_waitcnt vmcnt({D-1})"); vload(i); st['issued'] += 1
    def expo(k):
        E(f"v_lshlrev_b32 v24, 16, v{4+k}"); E(f"v_and_b32 v25, 0xffff0000, v{4+k}")
        E("v_fma_f32 v24, v24, s31, -v37"); E("v_fma_f32 v25, v25, s31, -v37")
        E("v_exp_f32 v24, v24"); E("v_exp_f32 v25, v25")
        E("v_add_f32 v38, v38, v24"); E("v_add_f32 v39, v39, v25")
        E(f"v_cvt_pk_bf16_f32 v{4+k}, v24, v25")
    qk_mfma(0); qk_mfma(1); qk_post(0)
    for _ in range(4): vissue()
    qk_mfma(2); qk_post(1); qk_mfma(3); qk_post(2); vissue()
    qk_mfma(4); qk_post(3); qk_mfma(5); qk_post(4); vissue()
    qk_mfma(6); qk_post(5); qk_mfma(7); qk_post(6); vissue()
    qk_post(7)
    swap_reduce("v_max_f32", 36, 24, 16); swap_reduce("v_max_f32", 36, 24, 32)
    rnd(36, 36)
    E("v_mul_f32 v37, s31, v36"); E("v_mov_b32 v38, 0"); E("v_mov_b32 v39, 0")
    vissue()
    for k in range(0, 6): expo(k)
    vissue()
    for k in range(6, 12): expo(k)
    vissue()
    for k in range(12, 16): expo(k)
    E("v_add_f32 v37, v38, v39")
    swap_reduce("v_add_f32", 37, 24, 16); swap_reduce("v_add_f32", 37, 24, 32)
    E("s_lshl_b32 s28, s3, 4"); E("v_add_u32 v3, s28, v0"); E("v_mov_b32 v24, 1")
    E("s_mov_b64 exec, 0x101"); E(f"ds_write_b64 v3, v[36:37] offset:{MLB}")
    E("s_mov_b64 exec, 1"); E(f"ds_add_u32 v2, v24 offset:{C_CNT}")
    E("s_mov_b64 exec, -1")
    stamp(3)
    E("v_and_b32 v3, 1, v0"); E("v_cmp_eq_u32 vcc, 1, v3")
    E("v_mov_b32 v32, 0x0c0c0100"); E("v_mov_b32 v33, 0x01000c0c"); E("v_cndmask_b32 v32, v32, v33, vcc")
    E("v_mov_b32 v34, 0x0c0c0302"); E("v_mov_b32 v33, 0x03020c0c"); E("v_cndmask_b32 v33, v34, v33, vcc")
    E("v_bfe_u32 v3, v0, 1, 2"); E("v_mov_b32 v34, 0x0c0c0c0c")
    for r in range(4):
        E(f"v_cmp_eq_u32 vcc, {r}, v3"); E(f"v_cndmask_b32 v{24+r}, v34, v32, vcc"); E(f"v_cndmask_b32 v{28+r}, v34, v33, vcc")
    E("v_and_b32 v3, 15, v0"); E("v_lshlrev_b32 v3, 5, v3"); E("v_bfe_u32 v2, v0, 4, 1"); E("v_lshl_add_u32 v3, v2, 4, v3")
    E("v_lshrrev_b32 v2, 5, v0"); E("v_lshl_add_u32 v3, v2, 9, v3"); E("s_lshl_b32 s28, s3, 10"); E("v_add_u32 v3, s28, v3")
    pv = dict(done=0)
    def pv_prep(i):
        A0 = 32 + 4 * (i & 1)
        for r in range(4): E(f"v_perm_b32 v{A0+r}, v{4+i//2}, v{4+i//2}, v{24+4*(i&1)+r}")
    def pv_mfma(i):
        A0 = 32 + 4 * (i & 1)
        c = "0" if i == 0 else "v[20:23]"
        E(f"v_mfma_f32_16x16x32_bf16 v[20:23], v[{A0}:{A0+3}], v[{SL(i)}:{SL(i)+3}], {c}")
    while st['issued'] < 32:
        vissue()
        n = 0
        while pv['done'] <= st['issued'] - 1 - D and n < 3:
            pv_prep(pv['done']); pv_mfma(pv['done']); pv['done'] += 1; n += 1
    while pv['done'] < 32:
        i = pv['done']
        pv_prep(i)
        if 31 - i < D: E(f"s_waitcnt vmcnt({31-i})")
        pv_mfma(i); pv['done'] += 1
    E(f"ds_write_b128 v3, v[20:23] offset:{OBUF}")
    stamp(4)
    E("s_waitcnt lgkmcnt(0)")
    E("s_barrier")
    E("s_cmp_lg_u32 s3, 0"); E("s_cbranch_scc1 L_noreduce")
    for w in range(8): E(f"ds_read_b128 v[{40+4*w}:{43+4*w}], v1 offset:{OBUF + w*1024}")
    E("v_lshrrev_b32 v2, 5, v0"); E("v_lshlrev_b32 v2, 5, v2")
    E(f"ds_read_b128 v[4:7], v2 offset:{FAC}"); E(f"ds_read_b128 v[8:11], v2 offset:{FAC+16}")
    E("v_mov_b32 v3, 0"); E(f"ds_read_b32 v3, v3 offset:{C_BAR}")
    E("s_lshl_b32 s28, s4, 5"); E("s_add_u32 s28, s28, s5"); E("s_lshl_b32 s28, s28, 10")
    E("s_waitcnt lgkmcnt(0)")
    E("v_readfirstlane_b32 s6, v3")
    for k in range(4): E(f"v_mul_f32 v{12+k}, v4, v{40+k}")
    for w in range(1, 8):
        for k in range(4): E(f"v_fmac_f32 v{12+k}, v{4+w}, v{40+4*w+k}")
    intra_store(["buffer_store_dwordx4 v[12:15], v1, s[24:27], s28 offen"])
    stamp(5)
    E.label("L_noreduce")
    E("s_cmp_ge_u32 s5, 9"); E("s_cbranch_scc1 L_sdone")
    E("s_cmp_ge_u32 s3, 5"); E("s_cbranch_scc1 L_sdone")
    E("s_lshl_b32 s28, s3, 6"); E("v_add_u32 v2, s28, v0"); E("v_min_u32 v2, 287, v2")
    E("v_lshlrev_b32 v3, 5, v2")
    E("v_lshlrev_b32 v1, 4, v2")
    E("v_lshlrev_b32 v2, 2, v2")
    E("s_mul_i32 s16, s4, 18432"); E(f"s_add_u32 s16, s16, {UV_OFF}"); E("s_add_u32 s17, s16, 9216")
    E("s_mul_i32 s18, s4, 9216"); E(f"s_add_u32 s18, s18, {G_OFF}"); E("s_add_u32 s19, s18, 4608")
    E("s_mul_i32 s20, s4, 640"); E(f"s_add_u32 s20, s20, {ST_OFF}")
    def uvbody():
        E("buffer_load_dwordx4 v[40:43], v3, s[24:27], s16 offen sc1"); E("buffer_load_dwordx4 v[44:47], v3, s[24:27], s16 offen offset:16 sc1")
        E("buffer_load_dwordx4 v[48:51], v3, s[24:27], s17 offen sc1"); E("buffer_load_dwordx4 v[52:55], v3, s[24:27], s17 offen offset:16 sc1")
        E("s_waitcnt vmcnt(0)")
        E("v_add_f32 v4, v40, v41")
        for r in range(42, 56): E(f"v_add_f32 v4, v4, v{r}")
        E("v_cmp_u_f32 vcc, v4, v4")
    E("s_barrier")
    poll(uvbody, 2)
    E("v_min_u32 v4, 35, v0"); E("v_lshlrev_b32 v4, 4, v4")
    def stbody():
        E("buffer_load_dwordx4 v[8:11], v4, s[24:27], s20 offen sc1"); E("s_waitcnt vmcnt(0)")
        E("v_add_f32 v5, v8, v9"); E("v_add_f32 v6, v10, v11"); E("v_cmp_u_f32 vcc, v5, v6")
    poll(stbody, 1)
    E("v_cmp_gt_u32 vcc, 36, v0")
    for r in range(8, 12): E(f"v_cndmask_b32 v{r}, 0, v{r}, vcc")
    for k in (1, 2, 4, 8):
        for r in range(8, 12): E(f"v_add_f32_dpp v{r}, v{r}, v{r} row_ror:{k} row_mask:0xf bank_mask:0xf")
    for wh in (16, 32):
        for r in range(8, 12): E(f"v_mov_b32 v{r+4}, v{r}")
        for r in range(8, 12): E(f"v_permlane{wh}_swap_b32 v{r}, v{r+4}")
        for r in range(8, 12): E(f"v_add_f32 v{r}, v{r}, v{r+4}")
    E("s_mov_b32 s28, 0x3ae38e39")
    E("s_mov_b32 s29, 0x3727c5ac")
    for b in range(2):
        s1, s2 = 8 + 2*b, 9 + 2*b
        E(f"v_mul_f32 v{s1}, s28, v{s1}"); E(f"v_mul_f32 v{s2}, s28, v{s2}")
        E(f"v_fma_f32 v{s2}, -v{s1}, v{s1}, v{s2}"); E(f"v_max_f32 v{s2}, 0, v{s2}")
        rnd(s2, s2); E(f"v_add_f32 v{s2}, s29, v{s2}"); rnd(s2, s2)
        E(f"v_sqrt_f32 v{s2}, v{s2}"); rnd(s2, s2); E(f"v_rcp_f32 v{s2}, v{s2}")
        rnd(s1, s1); E(f"v_mul_f32 v{s1}, v{s1}, v{s2}")
    for base in (40, 44, 48, 52):
        for b in range(2): E(f"v_fma_f32 v{base+2+b}, -v{8+2*b}, v{base+b}, v{base+2+b}")
    E(f"s_mov_b32 s28, {LOG2E ^ 0x80000000}")
    stamp(6)
    def gbody():
        E("buffer_load_dwordx4 v[12:15], v1, s[24:27], s18 offen sc1"); E("buffer_load_dwordx4 v[16:19], v1, s[24:27], s19 offen sc1")
        E("s_waitcnt vmcnt(0)")
        for e in range(4):
            c, b = e >> 1, e & 1
            E(f"v_fma_f32 v{12+e}, v{12+e}, v{9+2*b}, v{40+4*c+2+b}")
            E(f"v_fma_f32 v{16+e}, v{16+e}, v{9+2*b}, v{48+4*c+2+b}")
        for e in range(4): E(f"v_mul_f32 v{16+e}, v{16+e}, v{12+e}")
        E("v_add_f32 v20, v16, v17"); E("v_add_f32 v21, v18, v19"); E("v_cmp_u_f32 vcc, v20, v21")
    poll(gbody, 0)
    for e in range(4): E(f"v_mul_f32 v{12+e}, s28, v{12+e}")
    for e in range(4): E(f"v_exp_f32 v{12+e}, v{12+e}")
    for e in range(4): E(f"v_add_f32 v{12+e}, 1.0, v{12+e}")
    for e in range(4): E(f"v_rcp_f32 v{12+e}, v{12+e}")
    for e in range(4): E(f"v_mul_f32 v{16+e}, v{16+e}, v{12+e}")
    E("v_cvt_pk_bf16_f32 v12, v16, v18"); E("v_cvt_pk_bf16_f32 v13, v17, v19")
    E(f"ds_write_b32 v2, v12 offset:{ABUF1}"); E(f"ds_write_b32 v2, v13 offset:{ABUF1+1152}")
    E("s_waitcnt lgkmcnt(0)")
    E("s_barrier")
    stamp(7)
    E.label("L_sdone")
    end_wave()

    E.label("L_service")
    E("v_mov_b32 v1, 0")
    E("s_sub_u32 s3, s3, 8")
    E("s_cmp_lg_u32 s3, 0"); E("s_cbranch_scc1 L_sv1")
    E("v_lshlrev_b32 v2, 2, v0"); E("s_mov_b64 exec, 0xffff"); E("ds_write_b32 v2, v1"); E("s_mov_b64 exec, -1")
    E.label("L_sv1")
    E("s_waitcnt lgkmcnt(0)")
    stamp(0)
    E(f"s_load_dword s34, s[62:63], {EP_OFF}")
    srd(24, 62, WS_SIZE)
    E("s_barrier")
    E("s_cmp_eq_u32 s3, 3"); E("s_cbranch_scc1 L_s3")
    E("s_cmp_lg_u32 s3, 0"); E("s_cbranch_scc1 L_s12")
    mktag()
    E("v_lshlrev_b32 v2, 5, v0")
    E("s_lshl_b32 s28, s4, 12"); E("s_bfe_u32 s29, s5, 0x10003"); E("s_lshl_b32 s29, s29, 11"); E("s_add_u32 s28, s28, s29"); E(f"s_add_u32 s28, s28, {Q_OFF}")
    def qbody():
        E("buffer_load_dwordx4 v[8:11], v2, s[24:27], s28 offen sc1"); E("buffer_load_dwordx4 v[12:15], v2, s[24:27], s28 offen offset:16 sc1")
        E("s_waitcnt vmcnt(0)")
        tagcheck(16, [9, 11, 13, 15])
    poll(qbody, sl_long)
    E("s_mov_b32 s29, 0x05040100"); E("s_cmp_ge_u32 s5, 16"); E("s_cselect_b32 s29, 0x07060302, s29")
    E("v_perm_b32 v8, v10, v8, s29"); E("v_perm_b32 v9, v14, v12, s29"); E("v_lshlrev_b32 v3, 3, v0")
    E(f"ds_write_b64 v3, v[8:9] offset:{QBUF}")
    lds_set(C_Q, 1, 10, 1)
    stamp(3)
    lds_wait(C_BAR, 1, 1, 8, sleep=4)
    E("s_mov_b32 s6, s28")
    lds_wait(C_CNT, 8, 1, 8, sleep=4)
    E("v_and_b32 v3, 15, v0"); E("v_lshlrev_b32 v4, 3, v3"); E(f"ds_read_b64 v[8:9], v4 offset:{MLB}")
    E(f"s_mov_b32 s31, {LOG2E}")
    E("s_waitcnt lgkmcnt(0)")
    E("v_mov_b32 v10, v8"); row_reduce("v_max_f32", 10, None, (2, 4, 8))
    E("v_sub_f32 v12, v8, v10"); E("v_mul_f32 v12, s31, v12"); E("v_exp_f32 v12, v12"); E("v_mul_f32 v11, v12, v9")
    row_reduce("v_add_f32", 11, None, (2, 4, 8))
    E("v_and_b32 v5, 1, v0"); E("v_lshlrev_b32 v5, 5, v5"); E("v_lshrrev_b32 v6, 1, v3"); E("v_lshl_add_u32 v5, v6, 2, v5")
    E(f"ds_write_b32 v5, v12 offset:{FAC}")
    E("s_lshl_b32 s28, s4, 5"); E("s_add_u32 s28, s28, s5"); E("s_lshl_b32 s28, s28, 4"); E(f"s_add_u32 s28, s28, {ML_OFF}")
    E("s_mov_b64 exec, 3")
    intra_store(["buffer_store_dwordx2 v[10:11], v4, s[24:27], s28 offen"])
    E("s_mov_b64 exec, -1")
    E("s_waitcnt lgkmcnt(0)")
    stamp(4)
    E("s_branch L_tailprep")

    E.label("L_s3")
    srd(8, 60, 256)
    E("v_lshlrev_b32 v2, 4, v0")
    for k in range(4): E(f"v_mov_b32 v{4+k}, -1")
    E("s_mul_i32 s28, s2, 3072")
    for k in range(3): E(f"buffer_store_dwordx4 v[4:7], v2, s[24:27], s28 offen offset:{k*1024} sc1")
    E("s_getreg_b32 s29, hwreg(HW_REG_XCC_ID)"); E("s_and_b32 s29, s29, 15")
    E("s_mul_i32 s30, s29, s29"); E("s_lshl_b32 s30, s30, 18"); E("s_lshl_b32 s29, s29, 8"); E("s_add_u32 s29, s29, s30"); E("s_add_u32 s29, s29, 1")
    E("v_mov_b32 v8, s29"); E("s_lshl_b32 s28, s4, 5")
    E("s_waitcnt vmcnt(0)")
    stamp(1)
    E("s_mov_b64 exec, 1"); E("buffer_atomic_add v8, v1, s[8:11], s28 offen sc1"); E("s_mov_b64 exec, -1")
    E("v_and_b32 v3, 7, v0"); E("v_lshlrev_b32 v3, 5, v3")
    mktag()
    lds_wait(C_Q, 1, 1, 8, sleep=8)
    def barbody():
        E("buffer_load_dword v8, v3, s[8:11], 0 offen sc1"); E("s_waitcnt vmcnt(0)")
        E("v_and_b32 v9, 0xff, v8"); E("v_cmp_ne_u32 vcc, 32, v9")
    poll(barbody, sl_bar)
    E("v_readlane_b32 s29, v8, s4")
    E("s_bfe_u32 s30, s29, 0xa0008"); E("s_mul_i32 s30, s30, s30"); E("s_lshr_b32 s29, s29, 18"); E("s_lshl_b32 s29, s29, 5")
    E("s_cmp_eq_u32 s29, s30"); E(f"s_cselect_b32 s6, {1 if force_slow else 3}, 1")
    E("v_mov_b32 v8, s6"); E(f"ds_write_b32 v1, v8 offset:{C_BAR}")
    stamp(2)
    E("s_branch L_tailprep")

    E.label("L_s12")
    E("s_mov_b32 s11, 0x20000"); E("s_mov_b32 s19, 36"); E("s_mov_b32 s21, 0"); E("s_mov_b32 s22, 0")
    E("s_mov_b32 s8, s56"); E("s_mov_b32 s9, s57"); E("s_mov_b32 s10, 0"); E("s_mov_b32 s16, 0"); E("s_mov_b32 s20, 0")
    E("s_cmp_eq_u32 s3, 2"); E("s_cbranch_scc1 L_selB")
    E(f"s_mov_b32 s18, {SLOT_A}"); E(f"s_mov_b32 s23, {ABUF0}")
    E("s_cmp_lt_u32 s5, 9"); E("s_cbranch_scc1 L_sel_wo")
    E("s_cmp_lt_u32 s5, 18"); E("s_cbranch_scc1 L_sel_w1")
    E("s_cmp_lt_u32 s5, 27"); E("s_cbranch_scc1 L_sel_w3")
    E("s_sub_u32 s22, s5, 27"); E("s_branch L_sel_m")
    E.label("L_selB")
    E(f"s_mov_b32 s18, {SLOT_B}"); E(f"s_mov_b32 s23, {ABUF1}")
    E("s_cmp_lt_u32 s5, 9"); E("s_cbranch_scc1 L_sel_w2")
    E("s_sub_u32 s22, s5, 4")
    E("s_cmp_lt_u32 s5, 11"); E("s_cbranch_scc1 L_sel_m")
    E("s_sub_u32 s22, s5, 6")
    E("s_cmp_lt_u32 s5, 14"); E("s_cbranch_scc1 L_sel_q")
    E("s_sub_u32 s22, s5, 27")
    E("s_cmp_ge_u32 s5, 27"); E("s_cbranch_scc1 L_sel_q")
    E("s_branch L_jobdone")
    E.label("L_sel_wo")
    E("s_mov_b32 s8, s44"); E("s_mov_b32 s9, s45"); E(f"s_mov_b32 s10, {4096*1152}"); E("s_mov_b32 s20, 1152"); E("s_mov_b32 s19, 32")
    E(f"s_mul_i32 s16, s4, {512*1152}"); E("s_lshl_b32 s28, s5, 7"); E("s_add_u32 s16, s16, s28"); E("s_mov_b32 s21, 1"); E("s_branch L_dma")
    E.label("L_sel_w2")
    E("s_mov_b32 s8, s52"); E("s_mov_b32 s9, s53"); E(f"s_mov_b32 s10, {4608*1152}"); E("s_mov_b32 s20, 1152")
    E(f"s_mul_i32 s16, s4, {576*1152}"); E("s_lshl_b32 s28, s5, 7"); E("s_add_u32 s16, s16, s28"); E("s_mov_b32 s21, 1"); E("s_branch L_dma")
    E.label("L_sel_w1")
    E("s_mov_b32 s8, s48"); E("s_mov_b32 s9, s49"); E("s_sub_u32 s28, s5, 9"); E("s_branch L_sel_w13")
    E.label("L_sel_w3")
    E("s_mov_b32 s8, s50"); E("s_mov_b32 s9, s51"); E("s_sub_u32 s28, s5, 18")
    E.label("L_sel_w13")
    E(f"s_mov_b32 s10, {576*9216}"); E("s_mov_b32 s20, 9216")
    E("s_mul_i32 s16, s4, 1152"); E("s_lshl_b32 s28, s28, 7"); E("s_add_u32 s16, s16, s28"); E("s_mov_b32 s21, 1"); E("s_branch L_dma")
    E.label("L_sel_m")
    E("s_lshl_b32 s22, s22, 3"); E("s_add_u32 s22, s22, s4")
    E("s_cmp_ge_u32 s22, 54"); E("s_cbranch_scc1 L_nojob")
    E(f"s_mov_b32 s10, {576*6912}"); E("s_mov_b32 s20, 6912"); E("s_lshl_b32 s16, s22, 7"); E("s_mov_b32 s21, 2"); E("s_branch L_dma")
    E.label("L_sel_q")
    E("s_mov_b32 s8, s42"); E("s_mov_b32 s9, s43"); E(f"s_mov_b32 s10, {576*8192}"); E("s_mov_b32 s20, 8192")
    E("s_lshl_b32 s16, s4, 10"); E("s_lshl_b32 s28, s22, 7"); E("s_add_u32 s16, s16, s28"); E("s_mov_b32 s21, 3")
    E.label("L_dma")
    E("v_lshrrev_b32 v2, 3, v0"); E("v_mul_lo_u32 v2, v2, s20")
    E("v_and_b32 v3, 7, v0"); E("v_bfe_u32 v4, v0, 4, 1"); E("v_lshlrev_b32 v4, 1, v4"); E("v_xor_b32 v3, v3, v4")
    E("v_xor_b32 v4, 4, v3"); E("v_lshl_add_u32 v3, v3, 4, v2"); E("v_lshl_add_u32 v4, v4, 4, v2")
    E("s_lshl_b32 s17, s20, 3"); E("s_mov_b32 s29, s18")
    E("v_lshrrev_b32 v5, 5, v0"); E("v_mul_u32_u24 v5, 1152, v5"); E("v_and_b32 v6, 31, v0"); E("v_lshl_add_u32 v5, v6, 2, v5")
    E("s_cmp_eq_u32 s21, 1"); E("s_cbranch_scc1 L_dma_plain")
    E("s_cmp_eq_u32 s21, 2"); E("s_cselect_b32 s12, s54, s36"); E("s_cselect_b32 s13, s55, s37"); E("s_mov_b32 s14, 2304"); E("s_mov_b32 s15, 0x20000")
    for i in range(9): E(f"buffer_load_dword v{8+i}, v5, s[12:15], 0 offen offset:{i*128}")
    def dma_loop(lab, depth):
        E.label(lab)
        E("s_mov_b32 m0, s29"); E("s_add_u32 s29, s29, 1024")
        E("buffer_load_dwordx4 v3, s[8:11], s16 offen nt lds"); E("s_add_u32 s16, s16, s17")
        E("s_mov_b32 m0, s29"); E("s_add_u32 s29, s29, 1024")
        E("buffer_load_dwordx4 v4, s[8:11], s16 offen nt lds"); E("s_add_u32 s16, s16, s17")
        E(f"s_waitcnt vmcnt({depth-2})")
        E("s_sub_u32 s19, s19, 1"); E("s_cmp_lg_u32 s19, 0"); E(f"s_cbranch_scc1 {lab}")
    if gate:
        E("s_cmp_lt_u32 s5, 27"); E("s_cbranch_scc1 L_dma_job")
        E("s_cmp_lg_u32 s21, 3"); E("s_cbranch_scc1 L_dma_job")
        lds_wait(C_GO, 1, 1, 2, sleep=2)
    dma_loop("L_dma_job", DJ)
    E("v_mov_b32 v2, 1"); E("s_mov_b64 exec, 1"); E(f"ds_add_u32 v1, v2 offset:{C_GO}"); E("s_mov_b64 exec, -1")
    mktag()
    stamp(1)
    E("v_add_u32 v7, s23, v5")
    E("s_cmp_eq_u32 s21, 3"); E("s_cbranch_scc1 L_prep_q")
    E(f"s_mov_b32 s28, {LOG2E ^ 0x80000000}")
    for i in range(9):
        E(f"v_lshlrev_b32 v20, 16, v{8+i}"); E(f"v_and_b32 v21, 0xffff0000, v{8+i}")
        E("v_mul_f32 v22, s28, v20"); E("v_mul_f32 v23, s28, v21"); E("v_exp_f32 v22, v22"); E("v_exp_f32 v23, v23")
        E("v_add_f32 v22, 1.0, v22"); E("v_add_f32 v23, 1.0, v23"); E("v_rcp_f32 v22, v22"); E("v_rcp_f32 v23, v23")
        E("v_mul_f32 v20, v20, v22"); E("v_mul_f32 v21, v21, v23"); E(f"v_cvt_pk_bf16_f32 v{8+i}, v20, v21")
        E(f"ds_write_b32 v7, v{8+i} offset:{i*128}")
    E("s_branch L_gemv")
    E.label("L_prep_q")
    for i in range(9):
        E(f"v_lshlrev_b32 v{20+2*i}, 16, v{8+i}"); E(f"v_and_b32 v{21+2*i}, 0xffff0000, v{8+i}")
    E("v_add_f32 v8, v20, v21")
    for r in range(22, 38): E(f"v_add_f32 v8, v8, v{r}")
    row_reduce("v_add_f32", 8, None, (1, 2, 4, 8)); swap_reduce("v_add_f32", 8, 9, 16)
    E("s_mov_b32 s28, 0x3ae38e39"); E("s_mov_b32 s29, 0x3727c5ac")
    E("v_mul_f32 v8, s28, v8")
    E("v_mov_b32 v10, 0")
    for r in range(20, 38): E(f"v_sub_f32 v9, v{r}, v8"); E("v_fmac_f32 v10, v9, v9")
    row_reduce("v_add_f32", 10, None, (1, 2, 4, 8)); swap_reduce("v_add_f32", 10, 9, 16)
    E("v_mul_f32 v10, s28, v10"); rnd(10, 10); E("v_add_f32 v10, s29, v10"); rnd(10, 10)
    E("v_sqrt_f32 v10, v10"); rnd(10, 10); E("v_rcp_f32 v10, v10"); rnd(8, 8)
    for r in range(20, 38):
        E(f"v_sub_f32 v{r}, v{r}, v8"); rnd(r, r); E(f"v_mul_f32 v{r}, v{r}, v10"); rnd(r, r)
    E(f"s_mov_b32 s30, {MOD_OFF}"); E(f"s_mov_b32 s31, {MOD_OFF + 576*8}")
    def modgather():
        E("v_and_b32 v8, 31, v0"); E("v_lshlrev_b32 v8, 4, v8"); E("v_add_u32 v10, 2048, v8")
        def body():
            for i in range(9):
                a_, o_ = (8, i*512) if i < 8 else (10, i*512 - 2048)
                E(f"buffer_load_dwordx4 v[{76+4*i}:{79+4*i}], v{a_}, s[24:27], s30 offen offset:{o_} sc1")
                E(f"buffer_load_dwordx4 v[{112+4*i}:{115+4*i}], v{a_}, s[24:27], s31 offen offset:{o_} sc1")
            E("s_waitcnt vmcnt(0)")
            tagcheck(9, list(range(77, 148, 2)))
        poll(body, sl_long)
        E("v_cmp_gt_u32 vcc, 32, v0"); E("v_mov_b32 v8, 0x03020c0c"); E("v_mov_b32 v9, 0x01000c0c"); E("v_cndmask_b32 v8, v8, v9, vcc")
        for e in range(36): E(f"v_perm_b32 v{40+e}, v{76+2*e}, v{76+2*e}, v8")
    modgather()
    stamp(2)
    for e in range(18):
        E(f"v_add_f32 v{58+e}, 1.0, v{58+e}"); rnd(58+e, 58+e); E(f"v_mul_f32 v{20+e}, v{20+e}, v{58+e}"); rnd(20+e, 20+e)
        E(f"v_add_f32 v{20+e}, v{20+e}, v{40+e}")
    for i in range(9):
        E(f"v_cvt_pk_bf16_f32 v9, v{20+2*i}, v{21+2*i}"); E(f"ds_write_b32 v7, v9 offset:{i*128}")
    E.label("L_gemv")
    def tr_addr(dst, cb_v=None, cb=None):
        pass
    E("v_and_b32 v2, 1, v0"); E("v_mul_u32_u24 v2, 1152, v2"); E("v_lshrrev_b32 v3, 4, v0"); E("v_lshl_add_u32 v2, v3, 4, v2"); E("v_add_u32 v2, s23, v2")
    E("v_lshrrev_b32 v3, 2, v0"); E("v_and_b32 v4, 3, v3"); E("v_lshrrev_b32 v5, 4, v0"); E("v_lshl_add_u32 v4, v5, 3, v4"); E("v_lshlrev_b32 v4, 7, v4")
    E("v_and_b32 v5, 3, v0"); E("v_lshl_add_u32 v4, v5, 3, v4"); E("v_add_u32 v4, s18, v4")
    E("v_bfe_u32 v5, v0, 3, 2")
    for cb in range(4):
        E(f"v_xor_b32 v6, {cb}, v5"); E(f"v_lshl_add_u32 v{8+cb}, v6, 5, v4"); E(f"v_add_u32 v{12+cb}, 36864, v{8+cb}")
    E("s_waitcnt lgkmcnt(0)")
    stamp(3)
    AR = lambda k: 64 + 4 * k
    for k in range(18):
        E(f"ds_read_b128 v[{AR(k)}:{AR(k)+3}], v2 offset:{k*64}")
    def bread(k):
        B0 = 32 + 16 * (k & 1)
        if 68 - 4*k < DJ: E(f"s_waitcnt vmcnt({68 - 4*k})")
        for cb in range(4):
            a = 8 + cb if k < 9 else 12 + cb
            o = (k % 9) * 4096
            E(f"ds_read_b64_tr_b16 v[{B0+4*cb}:{B0+4*cb+1}], v{a} offset:{o}"); E(f"ds_read_b64_tr_b16 v[{B0+4*cb+2}:{B0+4*cb+3}], v{a} offset:{o+512}")
    bread(0)
    for k in range(18):
        if k + 1 < 18: bread(k + 1); E("s_waitcnt lgkmcnt(8)")
        else: E("s_waitcnt lgkmcnt(0)")
        B0 = 32 + 16 * (k & 1)
        for cb in range(4):
            c = "0" if k == 0 else f"v[{16+4*cb}:{19+4*cb}]"
            E(f"v_mfma_f32_16x16x32_bf16 v[{16+4*cb}:{19+4*cb}], v[{AR(k)}:{AR(k)+3}], v[{B0+4*cb}:{B0+4*cb+3}], {c}")
    for cb in range(4):
        E(f"v_cvt_pk_bf16_f32 v{16+4*cb}, v{16+4*cb}, v{17+4*cb}"); E(f"v_mov_b32 v{17+4*cb}, s35")
    E("v_lshlrev_b32 v2, 3, v0")
    E("s_lshl_b32 s28, s22, 9"); E("s_lshl_b32 s29, s4, 12"); E(f"s_add_u32 s29, s29, {Q_OFF}")
    E("s_cmp_eq_u32 s21, 3"); E(f"s_cselect_b32 s29, s29, {MOD_OFF}"); E("s_add_u32 s28, s28, s29")
    E("s_mov_b64 exec, 0xffff")
    for cb in range(4): E(f"buffer_store_dwordx2 v[{16+4*cb}:{17+4*cb}], v2, s[24:27], s28 offen offset:{cb*128} sc1")
    E("s_mov_b64 exec, -1")
    stamp(4)
    E("s_branch L_jobdone")
    E.label("L_dma_plain")
    if wstart == 1: lds_wait(C_Q, 1, 1, 8, sleep=8)
    if wstart == 2: lds_wait(C_CNT, 8, 1, 8, sleep=8)
    dma_loop("L_dma_pl", DW)
    E("s_waitcnt vmcnt(0)")
    E("s_lshl_b32 s28, s3, 2"); E("v_mov_b32 v2, s28"); E("v_mov_b32 v3, 1"); E(f"ds_write_b32 v2, v3 offset:{C_DMAA-4}")
    stamp(1)
    E("s_branch L_jobdone")
    E.label("L_nojob")
    E("v_mov_b32 v2, 1"); E("s_mov_b64 exec, 1"); E(f"ds_add_u32 v1, v2 offset:{C_GO}"); E("s_mov_b64 exec, -1")
    E.label("L_jobdone")
    mktag()
    E("s_cmp_lg_u32 s3, 2"); E("s_cbranch_scc1 L_tailprep")
    E("s_cmp_lt_u32 s5, 9"); E("s_cbranch_scc1 L_tailprep")
    E("s_cmp_ge_u32 s5, 27"); E("s_cbranch_scc1 L_tailprep")
    E("v_and_b32 v6, 31, v0"); E("v_lshrrev_b32 v8, 5, v0"); E("v_mul_u32_u24 v7, 1152, v8"); E("v_lshl_add_u32 v7, v6, 2, v7"); E(f"v_add_u32 v7, {UVBUF}, v7")
    E(f"s_mov_b32 s30, {MOD_OFF + 1728*8}"); E(f"s_mov_b32 s31, {MOD_OFF + 2304*8}")
    lds_wait(C_Q, 1, 1, 8, sleep=8)
    modgather()
    for i in range(9):
        E(f"v_add_f32 v{58+2*i}, 1.0, v{58+2*i}"); E(f"v_add_f32 v{59+2*i}, 1.0, v{59+2*i}")
        E(f"v_cvt_pk_bf16_f32 v9, v{58+2*i}, v{59+2*i}"); E(f"v_cvt_pk_bf16_f32 v10, v{40+2*i}, v{41+2*i}")
        E(f"ds_write_b32 v7, v9 offset:{i*128}"); E(f"ds_write_b32 v7, v10 offset:{2304 + i*128}")
    lds_set(C_UV, 1, 9, 1)
    stamp(5)

    E.label("L_tailprep")
    E("s_cmp_ge_u32 s5, 27"); E("s_cbranch_scc1 L_svc_end")
    lds_wait(C_BAR, 1, 1, 8, sleep=4)
    E("s_mov_b32 s6, s28")
    E("v_bfe_u32 v4, v0, 2, 2"); E("v_lshrrev_b32 v5, 4, v0"); E("v_lshl_add_u32 v4, v5, 3, v4"); E("v_lshlrev_b32 v4, 7, v4")
    E("v_and_b32 v6, 3, v0"); E("v_lshl_add_u32 v4, v6, 3, v4")
    E("v_bfe_u32 v7, v0, 3, 2"); E("v_xor_b32 v7, s3, v7"); E("v_lshl_add_u32 v2, v7, 5, v4")
    E("v_and_b32 v3, 1, v0"); E("v_mul_u32_u24 v3, 1152, v3"); E("v_lshl_add_u32 v3, v5, 4, v3")
    E("v_mul_u32_u24 v4, 1152, v6"); E("v_lshl_add_u32 v4, v5, 4, v4")
    BR = lambda k: 96 + 4 * k
    AT = lambda k: 24 + 4 * k
    def stage_b(slot, nk):
        E(f"v_add_u32 v5, {slot}, v2"); E(f"v_add_u32 v6, {slot + 36864}, v2")
        for k in range(nk):
            a = 5 if k < 9 else 6; o = (k % 9) * 4096
            E(f"ds_read_b64_tr_b16 v[{BR(k)}:{BR(k)+1}], v{a} offset:{o}"); E(f"ds_read_b64_tr_b16 v[{BR(k)+2}:{BR(k)+3}], v{a} offset:{o+512}")
        E("s_waitcnt lgkmcnt(0)")
    def gemv(areg, aoff, nk, d):
        for k in range(min(nk, 15)): E(f"ds_read_b128 v[{AT(k)}:{AT(k)+3}], v{areg} offset:{aoff + k*64}")
        issued = min(nk, 15)
        for k in range(nk):
            E(f"s_waitcnt lgkmcnt({issued - 1 - k})")
            c = "0" if k == 0 else f"v[{d}:{d+3}]"
            E(f"v_mfma_f32_16x16x32_bf16 v[{d}:{d+3}], v[{AT(k)}:{AT(k)+3}], v[{BR(k)}:{BR(k)+3}], {c}")
            if issued < nk:
                E(f"ds_read_b128 v[{AT(issued)}:{AT(issued)+3}], v{areg} offset:{aoff + issued*64}"); issued += 1
    lds_wait(C_DMAA, 1, 1, 8, sleep=8)
    E("s_cmp_lt_u32 s5, 9"); E("s_cbranch_scc1 L_owner")

    stage_b(SLOT_A, 18)
    lds_wait(C_UV, 1, 1, 8, sleep=8)
    E(f"v_add_u32 v4, {UVBUF}, v4")
    gemv(4, 0, 18, 8)
    E("s_sub_u32 s28, s5, 9"); E("s_lshl_b32 s28, s28, 2"); E("s_add_u32 s28, s28, s3")
    E("s_lshl_b32 s16, s28, 8"); E("s_mul_i32 s29, s4, 18432"); E("s_add_u32 s16, s16, s29"); E(f"s_add_u32 s16, s16, {UV_OFF}")
    E("s_lshl_b32 s17, s28, 7"); E("s_mul_i32 s29, s4, 9216"); E("s_add_u32 s17, s17, s29"); E(f"s_add_u32 s17, s17, {G_OFF}")
    E("s_mul_i32 s18, s4, 2304"); E(f"s_add_u32 s18, s18, {Z_OFF}")
    E("v_lshlrev_b32 v5, 4, v0"); E("v_lshlrev_b32 v7, 3, v0")
    E("s_mov_b64 exec, 0xffff")
    intra_store(["buffer_store_dwordx4 v[8:11], v5, s[24:27], s16 offen"])
    E("s_mov_b64 exec, -1")
    E("v_min_u32 v6, 15, v0"); E("v_lshlrev_b32 v6, 4, v6")
    E("s_lshl_b32 s28, s3, 12"); E(f"s_add_u32 s28, s28, {SLOT_B}")
    E("v_add_u32 v3, s28, v3"); E("v_add_u32 v2, s28, v5"); E("v_add_u32 v4, s28, v6")
    stamp(6)
    E("s_barrier")
    stamp(7)
    def zbody():
        E("buffer_load_dwordx4 v[8:11], v5, s[24:27], s18 offen sc1"); E("buffer_load_dwordx4 v[12:15], v5, s[24:27], s18 offen offset:1024 sc1")
        E("buffer_load_dwordx4 v[16:19], v6, s[24:27], s18 offen offset:2048 sc1")
        E("s_waitcnt vmcnt(0)")
        E("v_max3_u32 v20, v8, v9, v10"); E("v_max3_u32 v21, v11, v12, v13"); E("v_max3_u32 v22, v14, v15, v16"); E("v_max3_u32 v23, v17, v18, v19")
        E("v_max3_u32 v20, v20, v21, v22"); E("v_max_u32 v20, v20, v23"); E("v_cmp_eq_u32 vcc, -1, v20")
    poll(zbody, 0)
    stamp(8)
    E("ds_write_b128 v2, v[8:11]"); E("ds_write_b128 v2, v[12:15] offset:1024"); E("ds_write_b128 v4, v[16:19] offset:2048")
    E("s_waitcnt lgkmcnt(0)")
    gemv(3, 0, 18, 8)
    E("s_mov_b64 exec, 0xffff")
    intra_store(["buffer_store_dwordx2 v[8:9], v7, s[24:27], s17 offen"])
    stamp(9)
    E("s_branch L_svc_end")

    E.label("L_owner")
    stage_b(SLOT_A, 16)
    E("s_lshl_b32 s28, s4, 5"); E("s_lshl_b32 s29, s3, 3"); E("s_add_u32 s28, s28, s29")
    E("s_lshl_b32 s16, s28, 10"); E("s_add_u32 s17, s16, 4096")
    E("s_lshl_b32 s28, s28, 4"); E(f"s_add_u32 s28, s28, {ML_OFF}")
    E("v_lshrrev_b32 v5, 5, v0"); E("v_lshlrev_b32 v5, 3, v5")
    def mlbody():
        for s in range(8): E(f"buffer_load_dwordx2 v[{24+2*s}:{25+2*s}], v5, s[24:27], s28 offen offset:{s*16} sc1")
        E("s_waitcnt vmcnt(0)")
        E("v_add_f32 v6, v24, v25")
        for r in range(26, 40): E(f"v_add_f32 v6, v6, v{r}")
        E("v_cmp_u_f32 vcc, v6, v6")
    poll(mlbody, sl_long)
    E("v_max3_f32 v6, v24, v26, v28"); E("v_max3_f32 v6, v6, v30, v32"); E("v_max3_f32 v6, v6, v34, v36"); E("v_max_f32 v6, v6, v38")
    E(f"s_mov_b32 s31, {LOG2E}"); E("v_mov_b32 v7, 0")
    for s in range(8):
        E(f"v_sub_f32 v{8+s}, v{24+2*s}, v6"); E(f"v_mul_f32 v{8+s}, s31, v{8+s}"); E(f"v_exp_f32 v{8+s}, v{8+s}"); E(f"v_fmac_f32 v7, v{8+s}, v{25+2*s}")
    E("v_rcp_f32 v7, v7")
    for s in range(8): E(f"v_mul_f32 v{8+s}, v{8+s}, v7")
    E("s_lshl_b32 s22, s5, 2"); E("s_add_u32 s22, s22, s3")
    E("v_and_b32 v20, 31, v0"); E("v_lshrrev_b32 v6, 1, v20"); E("v_and_b32 v7, 1, v0"); E("v_lshlrev_b32 v20, 2, v20")
    E("v_mul_u32_u24 v21, 1152, v7"); E("v_lshl_add_u32 v21, v6, 1, v21")
    E("v_lshlrev_b32 v5, 3, v6")
    E("s_lshl_b32 s23, s22, 5")
    srd(12, 36, 2304)
    E("buffer_load_ushort v16, v21, s[12:15], s23 offen")
    E("s_lshl_b32 s28, s22, 7"); E(f"s_add_u32 s28, s28, {MOD_OFF + 1152*8}"); E(f"s_add_u32 s29, s28, {1152*8}"); E(f"s_add_u32 s30, s29, {576*8}")
    def gabody():
        for k in range(3): E(f"buffer_load_dwordx2 v[{24+2*k}:{25+2*k}], v5, s[24:27], s{28+k} offen sc1")
        E("s_waitcnt vmcnt(0)")
        tagcheck(6, [25, 27, 29])
    poll(gabody, sl_long)
    E("v_cmp_eq_u32 vcc, 0, v7"); E("v_mov_b32 v5, 0x03020c0c"); E("v_mov_b32 v6, 0x01000c0c"); E("v_cndmask_b32 v5, v5, v6, vcc")
    for k in range(3): E(f"v_perm_b32 v{17+k}, v{24+2*k}, v{24+2*k}, v5")
    E("v_lshlrev_b32 v16, 16, v16"); E("v_add_f32 v18, 1.0, v18"); rnd(18, 18)
    srd(12, 58, 2304)
    E("v_lshlrev_b32 v5, 4, v0"); E("v_lshlrev_b32 v7, 3, v0")
    E("s_lshr_b32 s28, s3, 1"); E("s_mul_i32 s28, s28, 1152"); E("s_and_b32 s29, s3, 1"); E("s_lshl_b32 s29, s29, 9"); E("s_add_u32 s28, s28, s29")
    E("v_add_u32 v6, s28, v7")
    E("s_lshl_b32 s28, s22, 7")
    E("s_mul_i32 s29, s4, 4608"); E("s_add_u32 s29, s29, s28")
    E(f"s_add_u32 s18, s29, {X_OFF}"); E(f"s_add_u32 s19, s29, {Y_OFF}")
    for k in range(8): E(f"s_add_u32 s{64+k if not stamps else 94+k}, s28, {X_OFF + k*4608}")
    XS = lambda k: (64 + k if not stamps else 94 + k)
    E("s_mul_i32 s20, s4, 2304"); E("s_add_u32 s20, s20, s23"); E(f"s_add_u32 s20, s20, {Z_OFF}")
    E("s_mul_i32 s21, s4, 640"); E("s_lshl_b32 s28, s22, 4"); E("s_add_u32 s21, s21, s28"); E(f"s_add_u32 s21, s21, {ST_OFF}")
    lds_wait(C_DMAB, 1, 1, 22, sleep=8)
    stamp(6)
    E("s_barrier")
    stamp(7)
    def obody():
        for s in range(8): E(f"buffer_load_dwordx4 v[{24+4*s}:{27+4*s}], v5, s[24:27], s{16 + s//4} offen offset:{(s%4)*1024} sc1")
        for s in range(8):
            E(f"s_waitcnt vmcnt({7-s})")
            for k in range(4):
                if s == 0: E(f"v_mul_f32 v{56+k}, v8, v{24+k}")
                else: E(f"v_fmac_f32 v{56+k}, v{8+s}, v{24+4*s+k}")
        E("v_add_f32 v60, v56, v57"); E("v_add_f32 v61, v58, v59"); E("v_cmp_u_f32 vcc, v60, v61")
    poll(obody, 0)
    stamp(8)
    E("v_cvt_pk_bf16_f32 v56, v56, v57"); E("v_cvt_pk_bf16_f32 v57, v58, v59")
    E(f"ds_write_b64 v6, v[56:57] offset:{ABUF0}")
    E("s_waitcnt lgkmcnt(0)")
    E("s_barrier")
    gemv(3, ABUF0, 16, 8)
    E("s_mov_b64 exec, 0xffff")
    E("buffer_store_dwordx2 v[8:9], v7, s[24:27], s18 offen sc1")
    E("s_mov_b64 exec, -1")
    stamp(9)
    def sum8(delta):
        def body():
            for k in range(8): E(f"buffer_load_dword v{24+k}, v20, s[24:27], s{XS(k)} offen sc1")
            E("s_waitcnt vmcnt(0)")
            E("v_add_f32 v24, v24, v25"); E("v_add_f32 v26, v26, v27"); E("v_add_f32 v28, v28, v29"); E("v_add_f32 v30, v30, v31")
            E("v_add_f32 v24, v24, v26"); E("v_add_f32 v28, v28, v30"); E("v_add_f32 v24, v24, v28")
            E("v_cmp_u_f32 vcc, v24, v24")
        return body
    poll(sum8(0), 0)
    stamp(10)
    rnd(24, 24); E("v_mul_f32 v24, v17, v24"); rnd(24, 24); E("v_add_f32 v16, v16, v24"); rnd(16, 16)
    E("v_mul_f32 v24, v16, v18")
    E("v_mov_b32_dpp v25, v24 quad_perm:[2,3,2,3] row_mask:0xf bank_mask:0xf")
    E("v_cvt_pk_bf16_f32 v24, v24, v25")
    E("s_mov_b64 exec, 0x33333333")
    intra_store(["buffer_store_dword v24, v21, s[24:27], s20 offen"])
    E("s_mov_b64 exec, -1")
    stamp(11)
    E("v_mov_b32 v26, v16"); E("v_mul_f32 v27, v16, v16")
    for k in (2, 4, 8):
        for r in (26, 27): E(f"v_add_f32_dpp v{r}, v{r}, v{r} row_ror:{k} row_mask:0xf bank_mask:0xf")
    swap_reduce("v_add_f32", 26, 28, 16); swap_reduce("v_add_f32", 27, 28, 16)
    E("s_mov_b64 exec, 3")
    intra_store(["buffer_store_dwordx2 v[26:27], v7, s[24:27], s21 offen"])
    E("s_mov_b64 exec, -1")
    stage_b(SLOT_B, 18)
    for k in range(8): E(f"s_add_u32 s{XS(k)}, s{XS(k)}, {Y_OFF - X_OFF}")
    E("s_barrier")
    stamp(12)
    gemv(3, ABUF1, 18, 8)
    E("s_mov_b64 exec, 0xffff")
    E("buffer_store_dwordx2 v[8:9], v7, s[24:27], s19 offen sc1")
    E("s_mov_b64 exec, -1")
    stamp(13)
    E("s_and_b32 s28, s5, 7"); E("s_cmp_lg_u32 s28, s4"); E("s_cbranch_scc1 L_svc_end")
    poll(sum8(0), 0)
    stamp(14)
    rnd(24, 24); E("v_mul_f32 v24, v19, v24"); rnd(24, 24); E("v_add_f32 v24, v16, v24")
    E("v_mov_b32_dpp v25, v24 quad_perm:[2,3,2,3] row_mask:0xf bank_mask:0xf")
    E("v_cvt_pk_bf16_f32 v24, v24, v25")
    E("s_mov_b64 exec, 0x33333333")
    E("buffer_store_dword v24, v21, s[12:15], s23 offen")
    stamp(15)
    E("s_cmp_lg_u32 s22, 0"); E("s_cbranch_scc1 L_svc_end")
    E("s_mov_b64 exec, 1"); E("v_mov_b32 v24, s35"); E(f"s_mov_b32 s28, {EP_OFF}")
    E("buffer_store_dword v24, v1, s[24:27], s28 offen")
    E.label("L_svc_end")
    E("s_waitcnt lgkmcnt(0)")
    if stamps: E("s_add_u32 s3, s3, 8")
    stamp_flush()
    E.label("L_exit")
    body = E.finish()
    hdr = open('cdna_kernels/' + NAME + '.s.ref').read().split('; Override launch')[0] if False else HDR
    return hdr + f"""; @launch grid=(256,1,1) block=(768,1,1) lds=163840
.amdgcn_target "amdgcn-amd-amdhsa--gfx950"
.text
.globl {NAME}_kernel
.p2align 8
.type {NAME}_kernel,@function
{NAME}_kernel:
{body}
    s_endpgm
.section .rodata,"a"
.p2align 6
.amdhsa_kernel {NAME}_kernel
  .amdhsa_next_free_vgpr 168
  .amdhsa_next_free_sgpr 102
  .amdhsa_accum_offset 168
  .amdhsa_group_segment_fixed_size 0
  .amdhsa_kernarg_size 112
  .amdhsa_float_denorm_mode_32 3
  .amdhsa_user_sgpr_count 2
  .amdhsa_user_sgpr_kernarg_segment_ptr 1
  .amdhsa_system_sgpr_workgroup_id_x 1
.end_amdhsa_kernel
"""

HDR = """; adaLN-conditioned GQA decode attention + SwiGLU block, one persistent launch (generated by gen/gen.py)
"""
if __name__ == '__main__':
    kw = eval('dict(' + (sys.argv[2] if len(sys.argv) > 2 else '') + ')')
    open(sys.argv[1], 'w').write(gen(**kw))
```

```python
import sys
from emit import Emit
NAME = 'adaLN_cond__gqa_block_cached__glu_gated_swiglu__decode'

O_OFF, UV_OFF, G_OFF, X_OFF, Y_OFF = 0x0, 0x40000, 0x64000, 0x76000, 0x7F000
Z_OFF, ST_OFF, ML_OFF = 0x88000, 0x8D000, 0x8F000
Q_OFF, MOD_OFF = 0xC8000, 0xD0000
EP_OFF = 0xC0000
STAMP_OFF = 0x100000
WS_SIZE = 0x200000
C_BAR, C_Q, C_CNT, C_DMAA, C_DMAB, C_UV, C_GO = 0, 4, 8, 12, 16, 20, 24
FAC, MLB, QBUF, ABUF0, ABUF1, OBUF = 64, 128, 256, 1024, 3328, 8192
SLOT_A, SLOT_B = 16384, 90112
UVBUF = SLOT_B + 16384
LOG2E = 0x3fb8aa3b
SCALE = 0x3db504f3

def gen(D=4, DW=8, DJ=32, stamps=False, force_slow=False, wstart=0, sl_long=8, sl_bar=16, gate=1, kvf='nt', wf='nt', plim=0x2000):
    E = Emit()
    uid = [0]
    def L(p):
        uid[0] += 1
        return f"L_{p}_{uid[0]}"
    def stamp(k):
        if stamps:
            E("s_memrealtime s[92:93]"); E("s_waitcnt lgkmcnt(0)"); E(f"s_mov_b32 s{70+k}, s92")
    def stamp_flush():
        if stamps:
            E("s_mov_b64 exec, -1")
            E("v_mov_b32 v4, 0")
            for k in range(16): E(f"v_writelane_b32 v4, s{70+k}, {k}")
            E("s_lshl_b32 s28, s4, 5"); E("s_add_u32 s28, s28, s5"); E("s_mul_i32 s28, s28, 12"); E("s_add_u32 s28, s28, s3")
            E("s_lshl_b32 s28, s28, 6"); E(f"s_add_u32 s28, s28, {STAMP_OFF}")
            E("v_mbcnt_lo_u32_b32 v5, -1, 0"); E("v_mbcnt_hi_u32_b32 v5, -1, v5"); E("v_lshlrev_b32 v5, 2, v5")
            E("s_mov_b64 exec, 0xffff")
            E("buffer_store_dword v4, v5, s[24:27], s28 offen")
    def end_wave():
        stamp_flush(); E("s_endpgm")
    def srd(r, p, size):
        E(f"s_mov_b32 s{r}, s{p}"); E(f"s_mov_b32 s{r+1}, s{p+1}"); E(f"s_mov_b32 s{r+2}, {size}"); E(f"s_mov_b32 s{r+3}, 0x20000")
    def lds_wait(off, val, vz, vt, sleep=2):
        a, b = L("lw"), L("lwd")
        E("s_mov_b32 s7, 0"); E.label(a)
        E(f"ds_read_b32 v{vt}, v{vz} offset:{off}"); E("s_waitcnt lgkmcnt(0)")
        E(f"v_readfirstlane_b32 s28, v{vt}"); E(f"s_cmp_ge_u32 s28, {val}"); E(f"s_cbranch_scc1 {b}")
        E(f"s_sleep {sleep}"); E("s_add_u32 s7, s7, 1"); E(f"s_cmp_lt_u32 s7, {plim*8}"); E(f"s_cbranch_scc1 {a}")
        E.label(b)
    def lds_set(off, vz, vt, val):
        E(f"v_mov_b32 v{vt}, {val}"); E(f"ds_write_b32 v{vz}, v{vt} offset:{off}")
    def poll(body, sleep=0):
        a, b = L("pl"), L("pld")
        E("s_mov_b32 s7, 0"); E.label(a)
        body()
        E(f"s_cbranch_vccz {b}")
        if sleep: E(f"s_sleep {sleep}")
        E("s_add_u32 s7, s7, 1"); E(f"s_cmp_lt_u32 s7, {plim}"); E(f"s_cbranch_scc1 {a}")
        E.label(b)
    def intra_store(ins):
        a, b = L("is"), L("isd")
        E("s_cmp_eq_u32 s6, 3"); E(f"s_cbranch_scc1 {a}")
        for i in ins: E(i + " sc1")
        E(f"s_branch {b}"); E.label(a)
        for i in ins: E(i)
        E.label(b)
    def rnd(dst, src, tmp=None):
        E(f"v_cvt_pk_bf16_f32 v{dst}, v{src}, v{src}"); E(f"v_and_b32 v{dst}, 0xffff0000, v{dst}")
    def row_reduce(op, r, t, rors):
        for k in rors:
            E(f"{op}_dpp v{r}, v{r}, v{r} row_ror:{k} row_mask:0xf bank_mask:0xf")
    def swap_reduce(op, r, t, which):
        E(f"v_mov_b32 v{t}, v{r}"); E(f"v_permlane{which}_swap_b32 v{r}, v{t}"); E(f"{op} v{r}, v{r}, v{t}")

    def mktag():
        E("s_waitcnt lgkmcnt(0)")
        E("s_mul_i32 s35, s34, 0x9E3779B1"); E("s_add_u32 s35, s35, 0x7F4A7C15")
    def tagcheck(acc, regs):
        E(f"v_xor_b32 v{acc}, s35, v{regs[0]}")
        for r in regs[1:]: E(f"v_bitop3_b32 v{acc}, v{acc}, v{r}, s35 bitop3:0xf6")
        E(f"v_cmp_ne_u32 vcc, 0, v{acc}")

    E("s_load_dwordx16 s[36:51], s[0:1], 0")
    E("s_load_dwordx8 s[52:59], s[0:1], 64")
    E("s_load_dwordx4 s[60:63], s[0:1], 96")
    E("s_cmp_ge_u32 s2, 256"); E("s_cbranch_scc1 L_exit")
    if stamps:
        for k in range(16): E(f"s_mov_b32 s{70+k}, 0")
    E("v_lshrrev_b32 v1, 6, v0"); E("v_and_b32 v0, 63, v0"); E("v_readfirstlane_b32 s3, v1")
    E("s_and_b32 s4, s2, 7"); E("s_lshr_b32 s5, s2, 3")
    E("s_cmp_ge_u32 s3, 8"); E("s_cbranch_scc1 L_service")

    SL = lambda i: 40 + 4 * i
    E("v_lshlrev_b32 v1, 4, v0")
    E("v_and_b32 v3, 3, v0"); E("v_lshrrev_b32 v4, 4, v0"); E("v_lshl_add_u32 v3, v4, 2, v3")
    E("v_bfe_u32 v4, v0, 2, 2"); E("v_lshlrev_b32 v4, 8, v4"); E("v_lshl_add_u32 v2, v3, 4, v4")
    E("v_bfe_u32 v4, v0, 3, 1"); E("v_lshlrev_b32 v4, 8, v4"); E("v_lshl_add_u32 v36, v3, 4, v4")
    E("s_lshr_b32 s28, s5, 4"); E("s_lshl_b32 s28, s28, 4")
    E("s_lshl_b32 s29, s4, 1"); E("s_add_u32 s28, s28, s29")
    E("s_bfe_u32 s29, s5, 0x10003"); E("s_add_u32 s28, s28, s29")
    E("s_lshl_b32 s28, s28, 21")
    E("s_and_b32 s29, s5, 7"); E("s_lshl_b32 s29, s29, 18"); E("s_add_u32 s28, s28, s29")
    E("s_lshl_b32 s29, s3, 12"); E("s_add_u32 s28, s28, s29")
    E("s_add_u32 s29, s5, s3")
    for u in range(8):
        E(f"s_add_u32 s30, s29, {u}"); E("s_and_b32 s30, s30, 7"); E("s_lshl_b32 s30, s30, 15"); E(f"s_add_u32 s{16+u}, s28, s30")
    E("s_waitcnt lgkmcnt(0)")
    stamp(0)
    srd(8, 38, 0x4000000); srd(12, 40, 0x4000000); srd(24, 62, WS_SIZE)
    def kload(i): E(f"buffer_load_dwordx4 v[{SL(i)}:{SL(i)+3}], v2, s[8:11], s{16+i//4} offen offset:{(i%4)*1024} {kvf}")
    def vload(i): E(f"buffer_load_dwordx4 v[{SL(i)}:{SL(i)+3}], v1, s[12:15], s{16+i//4} offen offset:{(i%4)*1024} {kvf}")
    if gate:
        E("s_mov_b32 s31, 0")
        E("s_cmp_ge_u32 s5, 9"); E("s_cselect_b32 s31, 1, 0")
        E("s_cmp_ge_u32 s5, 14"); E("s_cselect_b32 s31, 0, s31")
        E("s_cmp_ge_u32 s5, 27"); E("s_cselect_b32 s31, 2, s31")
        E("s_cmp_eq_u32 s31, 0"); E("s_cbranch_scc1 L_nogate")
        E("s_barrier")
        E("v_mov_b32 v3, 0")
        lds_wait(C_GO, "s31", 3, 4, sleep=4)
        for i in range(D): kload(i)
        E("s_branch L_gated")
        E.label("L_nogate")
    for i in range(D): kload(i)
    E("s_barrier")
    if gate: E.label("L_gated")
    for i in range(D, 32):
        E(f"s_waitcnt vmcnt({D-1})"); kload(i)
    stamp(1)
    E("v_mov_b32 v2, 0")
    lds_wait(C_Q, 1, 2, 3)
    E(f"ds_read_b128 v[20:23], v36 offset:{QBUF}")
    E(f"s_mov_b32 s30, {SCALE}"); E(f"s_mov_b32 s31, {LOG2E}")
    E("v_mov_b32 v36, 0xff800000")
    E("s_waitcnt lgkmcnt(0)")
    stamp(2)
    st = dict(issued=0)
    def qk_mfma(u):
        n = (28 - 4*u) + st['issued']
        if n < D + st['issued'] and n < 63: E(f"s_waitcnt vmcnt({n})")
        for i in range(4*u, 4*u+4):
            E(f"v_mfma_f32_16x16x32_bf16 v[{SL(i)}:{SL(i)+3}], v[{SL(i)}:{SL(i)+3}], v[20:23], 0")
    def qk_post(u):
        T = [24, 25, 26, 27]
        for k in range(4):
            for a in range(4):
                r = SL(4*u + a) + k
                if k == 0: E(f"v_mov_b32_dpp v{T[a]}, v{r} quad_perm:[0,0,0,0] row_mask:0xf bank_mask:0xf")
                else: E(f"v_add_f32_dpp v{T[a]}, v{r}, v{T[a]} quad_perm:[{k},{k},{k},{k}] row_mask:0xf bank_mask:0xf")
        E("v_cvt_pk_bf16_f32 v28, v24, v25"); E("v_cvt_pk_bf16_f32 v29, v26, v27")
        E("v_lshlrev_b32 v24, 16, v28"); E("v_and_b32 v25, 0xffff0000, v28")
        E("v_lshlrev_b32 v26, 16, v29"); E("v_and_b32 v27, 0xffff0000, v29")
        for a in range(4): E(f"v_mul_f32 v{T[a]}, s30, v{T[a]}")
        E(f"v_cvt_pk_bf16_f32 v{4+2*u}, v24, v25"); E(f"v_cvt_pk_bf16_f32 v{5+2*u}, v26, v27")
        E("v_max3_f32 v36, v24, v25, v36"); E("v_max3_f32 v36, v26, v27, v36")
    def vissue():
        i = st['issued']
        E(f"s_waitcnt vmcnt({D-1})"); vload(i); st['issued'] += 1
    def expo(k):
        E(f"v_lshlrev_b32 v24, 16, v{4+k}"); E(f"v_and_b32 v25, 0xffff0000, v{4+k}")
        E("v_fma_f32 v24, v24, s31, -v37"); E("v_fma_f32 v25, v25, s31, -v37")
        E("v_exp_f32 v24, v24"); E("v_exp_f32 v25, v25")
        E("v_add_f32 v38, v38, v24"); E("v_add_f32 v39, v39, v25")
        E(f"v_cvt_pk_bf16_f32 v{4+k}, v24, v25")
    qk_mfma(0); qk_mfma(1); qk_post(0)
    for _ in range(4): vissue()
    qk_mfma(2); qk_post(1); qk_mfma(3); qk_post(2); vissue()
    qk_mfma(4); qk_post(3); qk_mfma(5); qk_post(4); vissue()
    qk_mfma(6); qk_post(5); qk_mfma(7); qk_post(6); vissue()
    qk_post(7)
    swap_reduce("v_max_f32", 36, 24, 16); swap_reduce("v_max_f32", 36, 24, 32)
    rnd(36, 36)
    E("v_mul_f32 v37, s31, v36"); E("v_mov_b32 v38, 0"); E("v_mov_b32 v39, 0")
    vissue()
    for k in range(0, 6): expo(k)
    vissue()
    for k in range(6, 12): expo(k)
    vissue()
    for k in range(12, 16): expo(k)
    E("v_add_f32 v37, v38, v39")
    swap_reduce("v_add_f32", 37, 24, 16); swap_reduce("v_add_f32", 37, 24, 32)
    E("s_lshl_b32 s28, s3, 4"); E("v_add_u32 v3, s28, v0"); E("v_mov_b32 v24, 1")
    E("s_mov_b64 exec, 0x101"); E(f"ds_write_b64 v3, v[36:37] offset:{MLB}")
    E("s_mov_b64 exec, 1"); E(f"ds_add_u32 v2, v24 offset:{C_CNT}")
    E("s_mov_b64 exec, -1")
    stamp(3)
    E("v_and_b32 v3, 1, v0"); E("v_cmp_eq_u32 vcc, 1, v3")
    E("v_mov_b32 v32, 0x0c0c0100"); E("v_mov_b32 v33, 0x01000c0c"); E("v_cndmask_b32 v32, v32, v33, vcc")
    E("v_mov_b32 v34, 0x0c0c0302"); E("v_mov_b32 v33, 0x03020c0c"); E("v_cndmask_b32 v33, v34, v33, vcc")
    E("v_bfe_u32 v3, v0, 1, 2"); E("v_mov_b32 v34, 0x0c0c0c0c")
    for r in range(4):
        E(f"v_cmp_eq_u32 vcc, {r}, v3"); E(f"v_cndmask_b32 v{24+r}, v34, v32, vcc"); E(f"v_cndmask_b32 v{28+r}, v34, v33, vcc")
    E("v_and_b32 v3, 15, v0"); E("v_lshlrev_b32 v3, 5, v3"); E("v_bfe_u32 v2, v0, 4, 1"); E("v_lshl_add_u32 v3, v2, 4, v3")
    E("v_lshrrev_b32 v2, 5, v0"); E("v_lshl_add_u32 v3, v2, 9, v3"); E("s_lshl_b32 s28, s3, 10"); E("v_add_u32 v3, s28, v3")
    pv = dict(done=0)
    def pv_prep(i):
        A0 = 32 + 4 * (i & 1)
        for r in range(4): E(f"v_perm_b32 v{A0+r}, v{4+i//2}, v{4+i//2}, v{24+4*(i&1)+r}")
    def pv_mfma(i):
        A0 = 32 + 4 * (i & 1)
        c = "0" if i == 0 else "v[20:23]"
        E(f"v_mfma_f32_16x16x32_bf16 v[20:23], v[{A0}:{A0+3}], v[{SL(i)}:{SL(i)+3}], {c}")
    while st['issued'] < 32:
        vissue()
        n = 0
        while pv['done'] <= st['issued'] - 1 - D and n < 3:
            pv_prep(pv['done']); pv_mfma(pv['done']); pv['done'] += 1; n += 1
    while pv['done'] < 32:
        i = pv['done']
        pv_prep(i)
        if 31 - i < D: E(f"s_waitcnt vmcnt({31-i})")
        pv_mfma(i); pv['done'] += 1
    E(f"ds_write_b128 v3, v[20:23] offset:{OBUF}")
    stamp(4)
    E("s_waitcnt lgkmcnt(0)")
    E("s_barrier")
    E("s_cmp_lg_u32 s3, 0"); E("s_cbranch_scc1 L_noreduce")
    for w in range(8): E(f"ds_read_b128 v[{40+4*w}:{43+4*w}], v1 offset:{OBUF + w*1024}")
    E("v_lshrrev_b32 v2, 5, v0"); E("v_lshlrev_b32 v2, 5, v2")
    E(f"ds_read_b128 v[4:7], v2 offset:{FAC}"); E(f"ds_read_b128 v[8:11], v2 offset:{FAC+16}")
    E("v_mov_b32 v3, 0"); E(f"ds_read_b32 v3, v3 offset:{C_BAR}")
    E("s_lshl_b32 s28, s4, 5"); E("s_add_u32 s28, s28, s5"); E("s_lshl_b32 s28, s28, 10")
    E("s_waitcnt lgkmcnt(0)")
    E("v_readfirstlane_b32 s6, v3")
    for k in range(4): E(f"v_mul_f32 v{12+k}, v4, v{40+k}")
    for w in range(1, 8):
        for k in range(4): E(f"v_fmac_f32 v{12+k}, v{4+w}, v{40+4*w+k}")
    intra_store(["buffer_store_dwordx4 v[12:15], v1, s[24:27], s28 offen"])
    stamp(5)
    E.label("L_noreduce")
    E("s_cmp_ge_u32 s5, 9"); E("s_cbranch_scc1 L_sdone")
    E("s_cmp_ge_u32 s3, 5"); E("s_cbranch_scc1 L_sdone")
    E("s_lshl_b32 s28, s3, 6"); E("v_add_u32 v2, s28, v0"); E("v_min_u32 v2, 287, v2")
    E("v_lshlrev_b32 v3, 5, v2")
    E("v_lshlrev_b32 v1, 4, v2")
    E("v_lshlrev_b32 v2, 2, v2")
    E("s_mul_i32 s16, s4, 18432"); E(f"s_add_u32 s16, s16, {UV_OFF}"); E("s_add_u32 s17, s16, 9216")
    E("s_mul_i32 s18, s4, 9216"); E(f"s_add_u32 s18, s18, {G_OFF}"); E("s_add_u32 s19, s18, 4608")
    E("s_mul_i32 s20, s4, 640"); E(f"s_add_u32 s20, s20, {ST_OFF}")
    def uvbody():
        E("buffer_load_dwordx4 v[40:43], v3, s[24:27], s16 offen sc1"); E("buffer_load_dwordx4 v[44:47], v3, s[24:27], s16 offen offset:16 sc1")
        E("buffer_load_dwordx4 v[48:51], v3, s[24:27], s17 offen sc1"); E("buffer_load_dwordx4 v[52:55], v3, s[24:27], s17 offen offset:16 sc1")
        E("s_waitcnt vmcnt(0)")
        E("v_add_f32 v4, v40, v41")
        for r in range(42, 56): E(f"v_add_f32 v4, v4, v{r}")
        E("v_cmp_u_f32 vcc, v4, v4")
    E("s_barrier")
    poll(uvbody, 2)
    E("v_min_u32 v4, 35, v0"); E("v_lshlrev_b32 v4, 4, v4")
    def stbody():
        E("buffer_load_dwordx4 v[8:11], v4, s[24:27], s20 offen sc1"); E("s_waitcnt vmcnt(0)")
        E("v_add_f32 v5, v8, v9"); E("v_add_f32 v6, v10, v11"); E("v_cmp_u_f32 vcc, v5, v6")
    poll(stbody, 1)
    E("v_cmp_gt_u32 vcc, 36, v0")
    for r in range(8, 12): E(f"v_cndmask_b32 v{r}, 0, v{r}, vcc")
    for k in (1, 2, 4, 8):
        for r in range(8, 12): E(f"v_add_f32_dpp v{r}, v{r}, v{r} row_ror:{k} row_mask:0xf bank_mask:0xf")
    for wh in (16, 32):
        for r in range(8, 12): E(f"v_mov_b32 v{r+4}, v{r}")
        for r in range(8, 12): E(f"v_permlane{wh}_swap_b32 v{r}, v{r+4}")
        for r in range(8, 12): E(f"v_add_f32 v{r}, v{r}, v{r+4}")
    E("s_mov_b32 s28, 0x3ae38e39")
    E("s_mov_b32 s29, 0x3727c5ac")
    for b in range(2):
        s1, s2 = 8 + 2*b, 9 + 2*b
        E(f"v_mul_f32 v{s1}, s28, v{s1}"); E(f"v_mul_f32 v{s2}, s28, v{s2}")
        E(f"v_fma_f32 v{s2}, -v{s1}, v{s1}, v{s2}"); E(f"v_max_f32 v{s2}, 0, v{s2}")
        rnd(s2, s2); E(f"v_add_f32 v{s2}, s29, v{s2}"); rnd(s2, s2)
        E(f"v_sqrt_f32 v{s2}, v{s2}"); rnd(s2, s2); E(f"v_rcp_f32 v{s2}, v{s2}")
        rnd(s1, s1); E(f"v_mul_f32 v{s1}, v{s1}, v{s2}")
    for base in (40, 44, 48, 52):
        for b in range(2): E(f"v_fma_f32 v{base+2+b}, -v{8+2*b}, v{base+b}, v{base+2+b}")
    E(f"s_mov_b32 s28, {LOG2E ^ 0x80000000}")
    stamp(6)
    def gbody():
        E("buffer_load_dwordx4 v[12:15], v1, s[24:27], s18 offen sc1"); E("buffer_load_dwordx4 v[16:19], v1, s[24:27], s19 offen sc1")
        E("s_waitcnt vmcnt(0)")
        for e in range(4):
            c, b = e >> 1, e & 1
            E(f"v_fma_f32 v{12+e}, v{12+e}, v{9+2*b}, v{40+4*c+2+b}")
            E(f"v_fma_f32 v{16+e}, v{16+e}, v{9+2*b}, v{48+4*c+2+b}")
        for e in range(4): E(f"v_mul_f32 v{16+e}, v{16+e}, v{12+e}")
        E("v_add_f32 v20, v16, v17"); E("v_add_f32 v21, v18, v19"); E("v_cmp_u_f32 vcc, v20, v21")
    poll(gbody, 0)
    for e in range(4): E(f"v_mul_f32 v{12+e}, s28, v{12+e}")
    for e in range(4): E(f"v_exp_f32 v{12+e}, v{12+e}")
    for e in range(4): E(f"v_add_f32 v{12+e}, 1.0, v{12+e}")
    for e in range(4): E(f"v_rcp_f32 v{12+e}, v{12+e}")
    for e in range(4): E(f"v_mul_f32 v{16+e}, v{16+e}, v{12+e}")
    E("v_cvt_pk_bf16_f32 v12, v16, v18"); E("v_cvt_pk_bf16_f32 v13, v17, v19")
    E(f"ds_write_b32 v2, v12 offset:{ABUF1}"); E(f"ds_write_b32 v2, v13 offset:{ABUF1+1152}")
    E("s_waitcnt lgkmcnt(0)")
    E("s_barrier")
    stamp(7)
    E.label("L_sdone")
    end_wave()

    E.label("L_service")
    E("v_mov_b32 v1, 0")
    E("s_sub_u32 s3, s3, 8")
    E("s_cmp_lg_u32 s3, 0"); E("s_cbranch_scc1 L_sv1")
    E("v_lshlrev_b32 v2, 2, v0"); E("s_mov_b64 exec, 0xffff"); E("ds_write_b32 v2, v1"); E("s_mov_b64 exec, -1")
    E.label("L_sv1")
    E("s_waitcnt lgkmcnt(0)")
    stamp(0)
    E(f"s_load_dword s34, s[62:63], {EP_OFF}")
    srd(24, 62, WS_SIZE)
    E("s_barrier")
    E("s_cmp_eq_u32 s3, 3"); E("s_cbranch_scc1 L_s3")
    E("s_cmp_lg_u32 s3, 0"); E("s_cbranch_scc1 L_s12")
    mktag()
    E("v_lshlrev_b32 v2, 5, v0")
    E("s_lshl_b32 s28, s4, 12"); E("s_bfe_u32 s29, s5, 0x10003"); E("s_lshl_b32 s29, s29, 11"); E("s_add_u32 s28, s28, s29"); E(f"s_add_u32 s28, s28, {Q_OFF}")
    def qbody():
        E("buffer_load_dwordx4 v[8:11], v2, s[24:27], s28 offen sc1"); E("buffer_load_dwordx4 v[12:15], v2, s[24:27], s28 offen offset:16 sc1")
        E("s_waitcnt vmcnt(0)")
        tagcheck(16, [9, 11, 13, 15])
    poll(qbody, sl_long)
    E("s_mov_b32 s29, 0x05040100"); E("s_cmp_ge_u32 s5, 16"); E("s_cselect_b32 s29, 0x07060302, s29")
    E("v_perm_b32 v8, v10, v8, s29"); E("v_perm_b32 v9, v14, v12, s29"); E("v_lshlrev_b32 v3, 3, v0")
    E(f"ds_write_b64 v3, v[8:9] offset:{QBUF}")
    lds_set(C_Q, 1, 10, 1)
    stamp(3)
    lds_wait(C_BAR, 1, 1, 8, sleep=4)
    E("s_mov_b32 s6, s28")
    lds_wait(C_CNT, 8, 1, 8, sleep=4)
    E("v_and_b32 v3, 15, v0"); E("v_lshlrev_b32 v4, 3, v3"); E(f"ds_read_b64 v[8:9], v4 offset:{MLB}")
    E(f"s_mov_b32 s31, {LOG2E}")
    E("s_waitcnt lgkmcnt(0)")
    E("v_mov_b32 v10, v8"); row_reduce("v_max_f32", 10, None, (2, 4, 8))
    E("v_sub_f32 v12, v8, v10"); E("v_mul_f32 v12, s31, v12"); E("v_exp_f32 v12, v12"); E("v_mul_f32 v11, v12, v9")
    row_reduce("v_add_f32", 11, None, (2, 4, 8))
    E("v_and_b32 v5, 1, v0"); E("v_lshlrev_b32 v5, 5, v5"); E("v_lshrrev_b32 v6, 1, v3"); E("v_lshl_add_u32 v5, v6, 2, v5")
    E(f"ds_write_b32 v5, v12 offset:{FAC}")
    E("s_lshl_b32 s28, s4, 5"); E("s_add_u32 s28, s28, s5"); E("s_lshl_b32 s28, s28, 4"); E(f"s_add_u32 s28, s28, {ML_OFF}")
    E("s_mov_b64 exec, 3")
    intra_store(["buffer_store_dwordx2 v[10:11], v4, s[24:27], s28 offen"])
    E("s_mov_b64 exec, -1")
    E("s_waitcnt lgkmcnt(0)")
    stamp(4)
    E("s_branch L_tailprep")

    E.label("L_s3")
    srd(8, 60, 256)
    E("v_lshlrev_b32 v2, 4, v0")
    for k in range(4): E(f"v_mov_b32 v{4+k}, -1")
    E("s_mul_i32 s28, s2, 3072")
    for k in range(3): E(f"buffer_store_dwordx4 v[4:7], v2, s[24:27], s28 offen offset:{k*1024} sc1")
    E("s_getreg_b32 s29, hwreg(HW_REG_XCC_ID)"); E("s_and_b32 s29, s29, 15")
    E("s_mul_i32 s30, s29, s29"); E("s_lshl_b32 s30, s30, 18"); E("s_lshl_b32 s29, s29, 8"); E("s_add_u32 s29, s29, s30"); E("s_add_u32 s29, s29, 1")
    E("v_mov_b32 v8, s29"); E("s_lshl_b32 s28, s4, 5")
    E("s_waitcnt vmcnt(0)")
    stamp(1)
    E("s_mov_b64 exec, 1"); E("buffer_atomic_add v8, v1, s[8:11], s28 offen sc1"); E("s_mov_b64 exec, -1")
    E("v_and_b32 v3, 7, v0"); E("v_lshlrev_b32 v3, 5, v3")
    mktag()
    lds_wait(C_Q, 1, 1, 8, sleep=8)
    def barbody():
        E("buffer_load_dword v8, v3, s[8:11], 0 offen sc1"); E("s_waitcnt vmcnt(0)")
        E("v_and_b32 v9, 0xff, v8"); E("v_cmp_ne_u32 vcc, 32, v9")
    poll(barbody, sl_bar)
    E("v_readlane_b32 s29, v8, s4")
    E("s_bfe_u32 s30, s29, 0xa0008"); E("s_mul_i32 s30, s30, s30"); E("s_lshr_b32 s29, s29, 18"); E("s_lshl_b32 s29, s29, 5")
    E("s_cmp_eq_u32 s29, s30"); E(f"s_cselect_b32 s6, {1 if force_slow else 3}, 1")
    E("v_mov_b32 v8, s6"); E(f"ds_write_b32 v1, v8 offset:{C_BAR}")
    stamp(2)
    E("s_branch L_tailprep")

    E.label("L_s12")
    E("s_mov_b32 s11, 0x20000"); E("s_mov_b32 s19, 36"); E("s_mov_b32 s21, 0"); E("s_mov_b32 s22, 0")
    E("s_mov_b32 s8, s56"); E("s_mov_b32 s9, s57"); E("s_mov_b32 s10, 0"); E("s_mov_b32 s16, 0"); E("s_mov_b32 s20, 0")
    E("s_cmp_eq_u32 s3, 2"); E("s_cbranch_scc1 L_selB")
    E(f"s_mov_b32 s18, {SLOT_A}"); E(f"s_mov_b32 s23, {ABUF0}")
    E("s_cmp_lt_u32 s5, 9"); E("s_cbranch_scc1 L_sel_wo")
    E("s_cmp_lt_u32 s5, 18"); E("s_cbranch_scc1 L_sel_w1")
    E("s_cmp_lt_u32 s5, 27"); E("s_cbranch_scc1 L_sel_w3")
    E("s_sub_u32 s22, s5, 27"); E("s_branch L_sel_m")
    E.label("L_selB")
    E(f"s_mov_b32 s18, {SLOT_B}"); E(f"s_mov_b32 s23, {ABUF1}")
    E("s_cmp_lt_u32 s5, 9"); E("s_cbranch_scc1 L_sel_w2")
    E("s_sub_u32 s22, s5, 4")
    E("s_cmp_lt_u32 s5, 11"); E("s_cbranch_scc1 L_sel_m")
    E("s_sub_u32 s22, s5, 6")
    E("s_cmp_lt_u32 s5, 14"); E("s_cbranch_scc1 L_sel_q")
    E("s_sub_u32 s22, s5, 27")
    E("s_cmp_ge_u32 s5, 27"); E("s_cbranch_scc1 L_sel_q")
    E("s_branch L_jobdone")
    E.label("L_sel_wo")
    E("s_mov_b32 s8, s44"); E("s_mov_b32 s9, s45"); E(f"s_mov_b32 s10, {4096*1152}"); E("s_mov_b32 s20, 1152"); E("s_mov_b32 s19, 32")
    E(f"s_mul_i32 s16, s4, {512*1152}"); E("s_lshl_b32 s28, s5, 7"); E("s_add_u32 s16, s16, s28"); E("s_mov_b32 s21, 1"); E("s_branch L_dma")
    E.label("L_sel_w2")
    E("s_mov_b32 s8, s52"); E("s_mov_b32 s9, s53"); E(f"s_mov_b32 s10, {4608*1152}"); E("s_mov_b32 s20, 1152")
    E(f"s_mul_i32 s16, s4, {576*1152}"); E("s_lshl_b32 s28, s5, 7"); E("s_add_u32 s16, s16, s28"); E("s_mov_b32 s21, 1"); E("s_branch L_dma")
    E.label("L_sel_w1")
    E("s_mov_b32 s8, s48"); E("s_mov_b32 s9, s49"); E("s_sub_u32 s28, s5, 9"); E("s_branch L_sel_w13")
    E.label("L_sel_w3")
    E("s_mov_b32 s8, s50"); E("s_mov_b32 s9, s51"); E("s_sub_u32 s28, s5, 18")
    E.label("L_sel_w13")
    E(f"s_mov_b32 s10, {576*9216}"); E("s_mov_b32 s20, 9216")
    E("s_mul_i32 s16, s4, 1152"); E("s_lshl_b32 s28, s28, 7"); E("s_add_u32 s16, s16, s28"); E("s_mov_b32 s21, 1"); E("s_branch L_dma")
    E.label("L_sel_m")
    E("s_lshl_b32 s22, s22, 3"); E("s_add_u32 s22, s22, s4")
    E("s_cmp_ge_u32 s22, 54"); E("s_cbranch_scc1 L_nojob")
    E(f"s_mov_b32 s10, {576*6912}"); E("s_mov_b32 s20, 6912"); E("s_lshl_b32 s16, s22, 7"); E("s_mov_b32 s21, 2"); E("s_branch L_dma")
    E.label("L_sel_q")
    E("s_mov_b32 s8, s42"); E("s_mov_b32 s9, s43"); E(f"s_mov_b32 s10, {576*8192}"); E("s_mov_b32 s20, 8192")
    E("s_lshl_b32 s16, s4, 10"); E("s_lshl_b32 s28, s22, 7"); E("s_add_u32 s16, s16, s28"); E("s_mov_b32 s21, 3")
    E.label("L_dma")
    E("v_lshrrev_b32 v2, 3, v0"); E("v_mul_lo_u32 v2, v2, s20")
    E("v_and_b32 v3, 7, v0"); E("v_bfe_u32 v4, v0, 4, 1"); E("v_lshlrev_b32 v4, 1, v4"); E("v_xor_b32 v3, v3, v4")
    E("v_xor_b32 v4, 4, v3"); E("v_lshl_add_u32 v3, v3, 4, v2"); E("v_lshl_add_u32 v4, v4, 4, v2")
    E("s_lshl_b32 s17, s20, 3"); E("s_mov_b32 s29, s18")
    E("v_lshrrev_b32 v5, 5, v0"); E("v_mul_u32_u24 v5, 1152, v5"); E("v_and_b32 v6, 31, v0"); E("v_lshl_add_u32 v5, v6, 2, v5")
    E("s_cmp_eq_u32 s21, 1"); E("s_cbranch_scc1 L_dma_plain")
    E("s_cmp_eq_u32 s21, 2"); E("s_cselect_b32 s12, s54, s36"); E("s_cselect_b32 s13, s55, s37"); E("s_mov_b32 s14, 2304"); E("s_mov_b32 s15, 0x20000")
    for i in range(9): E(f"buffer_load_dword v{8+i}, v5, s[12:15], 0 offen offset:{i*128}")
    def dma_loop(lab, depth):
        E.label(lab)
        E("s_mov_b32 m0, s29"); E("s_add_u32 s29, s29, 1024")
        E(f"buffer_load_dwordx4 v3, s[8:11], s16 offen {wf} lds"); E("s_add_u32 s16, s16, s17")
        E("s_mov_b32 m0, s29"); E("s_add_u32 s29, s29, 1024")
        E(f"buffer_load_dwordx4 v4, s[8:11], s16 offen {wf} lds"); E("s_add_u32 s16, s16, s17")
        E(f"s_waitcnt vmcnt({depth-2})")
        E("s_sub_u32 s19, s19, 1"); E("s_cmp_lg_u32 s19, 0"); E(f"s_cbranch_scc1 {lab}")
    if gate:
        E("s_cmp_lt_u32 s5, 27"); E("s_cbranch_scc1 L_dma_job")
        E("s_cmp_lg_u32 s21, 3"); E("s_cbranch_scc1 L_dma_job")
        lds_wait(C_GO, 1, 1, 2, sleep=2)
    dma_loop("L_dma_job", DJ)
    E("v_mov_b32 v2, 1"); E("s_mov_b64 exec, 1"); E(f"ds_add_u32 v1, v2 offset:{C_GO}"); E("s_mov_b64 exec, -1")
    mktag()
    stamp(1)
    E("v_add_u32 v7, s23, v5")
    E("s_cmp_eq_u32 s21, 3"); E("s_cbranch_scc1 L_prep_q")
    E(f"s_mov_b32 s28, {LOG2E ^ 0x80000000}")
    for i in range(9):
        E(f"v_lshlrev_b32 v20, 16, v{8+i}"); E(f"v_and_b32 v21, 0xffff0000, v{8+i}")
        E("v_mul_f32 v22, s28, v20"); E("v_mul_f32 v23, s28, v21"); E("v_exp_f32 v22, v22"); E("v_exp_f32 v23, v23")
        E("v_add_f32 v22, 1.0, v22"); E("v_add_f32 v23, 1.0, v23"); E("v_rcp_f32 v22, v22"); E("v_rcp_f32 v23, v23")
        E("v_mul_f32 v20, v20, v22"); E("v_mul_f32 v21, v21, v23"); E(f"v_cvt_pk_bf16_f32 v{8+i}, v20, v21")
        E(f"ds_write_b32 v7, v{8+i} offset:{i*128}")
    E("s_branch L_gemv")
    E.label("L_prep_q")
    for i in range(9):
        E(f"v_lshlrev_b32 v{20+2*i}, 16, v{8+i}"); E(f"v_and_b32 v{21+2*i}, 0xffff0000, v{8+i}")
    E("v_add_f32 v8, v20, v21")
    for r in range(22, 38): E(f"v_add_f32 v8, v8, v{r}")
    row_reduce("v_add_f32", 8, None, (1, 2, 4, 8)); swap_reduce("v_add_f32", 8, 9, 16)
    E("s_mov_b32 s28, 0x3ae38e39"); E("s_mov_b32 s29, 0x3727c5ac")
    E("v_mul_f32 v8, s28, v8")
    E("v_mov_b32 v10, 0")
    for r in range(20, 38): E(f"v_sub_f32 v9, v{r}, v8"); E("v_fmac_f32 v10, v9, v9")
    row_reduce("v_add_f32", 10, None, (1, 2, 4, 8)); swap_reduce("v_add_f32", 10, 9, 16)
    E("v_mul_f32 v10, s28, v10"); rnd(10, 10); E("v_add_f32 v10, s29, v10"); rnd(10, 10)
    E("v_sqrt_f32 v10, v10"); rnd(10, 10); E("v_rcp_f32 v10, v10"); rnd(8, 8)
    for r in range(20, 38):
        E(f"v_sub_f32 v{r}, v{r}, v8"); rnd(r, r); E(f"v_mul_f32 v{r}, v{r}, v10"); rnd(r, r)
    E(f"s_mov_b32 s30, {MOD_OFF}"); E(f"s_mov_b32 s31, {MOD_OFF + 576*8}")
    def modgather():
        E("v_and_b32 v8, 31, v0"); E("v_lshlrev_b32 v8, 4, v8"); E("v_add_u32 v10, 2048, v8")
        def body():
            for i in range(9):
                a_, o_ = (8, i*512) if i < 8 else (10, i*512 - 2048)
                E(f"buffer_load_dwordx4 v[{76+4*i}:{79+4*i}], v{a_}, s[24:27], s30 offen offset:{o_} sc1")
                E(f"buffer_load_dwordx4 v[{112+4*i}:{115+4*i}], v{a_}, s[24:27], s31 offen offset:{o_} sc1")
            E("s_waitcnt vmcnt(0)")
            tagcheck(9, list(range(77, 148, 2)))
        poll(body, sl_long)
        E("v_cmp_gt_u32 vcc, 32, v0"); E("v_mov_b32 v8, 0x03020c0c"); E("v_mov_b32 v9, 0x01000c0c"); E("v_cndmask_b32 v8, v8, v9, vcc")
        for e in range(36): E(f"v_perm_b32 v{40+e}, v{76+2*e}, v{76+2*e}, v8")
    modgather()
    stamp(2)
    for e in range(18):
        E(f"v_add_f32 v{58+e}, 1.0, v{58+e}"); rnd(58+e, 58+e); E(f"v_mul_f32 v{20+e}, v{20+e}, v{58+e}"); rnd(20+e, 20+e)
        E(f"v_add_f32 v{20+e}, v{20+e}, v{40+e}")
    for i in range(9):
        E(f"v_cvt_pk_bf16_f32 v9, v{20+2*i}, v{21+2*i}"); E(f"ds_write_b32 v7, v9 offset:{i*128}")
    E.label("L_gemv")
    def tr_addr(dst, cb_v=None, cb=None):
        pass
    E("v_and_b32 v2, 1, v0"); E("v_mul_u32_u24 v2, 1152, v2"); E("v_lshrrev_b32 v3, 4, v0"); E("v_lshl_add_u32 v2, v3, 4, v2"); E("v_add_u32 v2, s23, v2")
    E("v_lshrrev_b32 v3, 2, v0"); E("v_and_b32 v4, 3, v3"); E("v_lshrrev_b32 v5, 4, v0"); E("v_lshl_add_u32 v4, v5, 3, v4"); E("v_lshlrev_b32 v4, 7, v4")
    E("v_and_b32 v5, 3, v0"); E("v_lshl_add_u32 v4, v5, 3, v4"); E("v_add_u32 v4, s18, v4")
    E("v_bfe_u32 v5, v0, 3, 2")
    for cb in range(4):
        E(f"v_xor_b32 v6, {cb}, v5"); E(f"v_lshl_add_u32 v{8+cb}, v6, 5, v4"); E(f"v_add_u32 v{12+cb}, 36864, v{8+cb}")
    E("s_waitcnt lgkmcnt(0)")
    stamp(3)
    AR = lambda k: 64 + 4 * k
    for k in range(18):
        E(f"ds_read_b128 v[{AR(k)}:{AR(k)+3}], v2 offset:{k*64}")
    def bread(k):
        B0 = 32 + 16 * (k & 1)
        if 68 - 4*k < DJ: E(f"s_waitcnt vmcnt({68 - 4*k})")
        for cb in range(4):
            a = 8 + cb if k < 9 else 12 + cb
            o = (k % 9) * 4096
            E(f"ds_read_b64_tr_b16 v[{B0+4*cb}:{B0+4*cb+1}], v{a} offset:{o}"); E(f"ds_read_b64_tr_b16 v[{B0+4*cb+2}:{B0+4*cb+3}], v{a} offset:{o+512}")
    bread(0)
    for k in range(18):
        if k + 1 < 18: bread(k + 1); E("s_waitcnt lgkmcnt(8)")
        else: E("s_waitcnt lgkmcnt(0)")
        B0 = 32 + 16 * (k & 1)
        for cb in range(4):
            c = "0" if k == 0 else f"v[{16+4*cb}:{19+4*cb}]"
            E(f"v_mfma_f32_16x16x32_bf16 v[{16+4*cb}:{19+4*cb}], v[{AR(k)}:{AR(k)+3}], v[{B0+4*cb}:{B0+4*cb+3}], {c}")
    for cb in range(4):
        E(f"v_cvt_pk_bf16_f32 v{16+4*cb}, v{16+4*cb}, v{17+4*cb}"); E(f"v_mov_b32 v{17+4*cb}, s35")
    E("v_lshlrev_b32 v2, 3, v0")
    E("s_lshl_b32 s28, s22, 9"); E("s_lshl_b32 s29, s4, 12"); E(f"s_add_u32 s29, s29, {Q_OFF}")
    E("s_cmp_eq_u32 s21, 3"); E(f"s_cselect_b32 s29, s29, {MOD_OFF}"); E("s_add_u32 s28, s28, s29")
    E("s_mov_b64 exec, 0xffff")
    for cb in range(4): E(f"buffer_store_dwordx2 v[{16+4*cb}:{17+4*cb}], v2, s[24:27], s28 offen offset:{cb*128} sc1")
    E("s_mov_b64 exec, -1")
    stamp(4)
    E("s_branch L_jobdone")
    E.label("L_dma_plain")
    if wstart == 1: lds_wait(C_Q, 1, 1, 8, sleep=8)
    if wstart == 2: lds_wait(C_CNT, 8, 1, 8, sleep=8)
    dma_loop("L_dma_pl", DW)
    E("s_waitcnt vmcnt(0)")
    E("s_lshl_b32 s28, s3, 2"); E("v_mov_b32 v2, s28"); E("v_mov_b32 v3, 1"); E(f"ds_write_b32 v2, v3 offset:{C_DMAA-4}")
    stamp(1)
    E("s_branch L_jobdone")
    E.label("L_nojob")
    E("v_mov_b32 v2, 1"); E("s_mov_b64 exec, 1"); E(f"ds_add_u32 v1, v2 offset:{C_GO}"); E("s_mov_b64 exec, -1")
    E.label("L_jobdone")
    mktag()
    E("s_cmp_lg_u32 s3, 2"); E("s_cbranch_scc1 L_tailprep")
    E("s_cmp_lt_u32 s5, 9"); E("s_cbranch_scc1 L_tailprep")
    E("s_cmp_ge_u32 s5, 27"); E("s_cbranch_scc1 L_tailprep")
    E("v_and_b32 v6, 31, v0"); E("v_lshrrev_b32 v8, 5, v0"); E("v_mul_u32_u24 v7, 1152, v8"); E("v_lshl_add_u32 v7, v6, 2, v7"); E(f"v_add_u32 v7, {UVBUF}, v7")
    E(f"s_mov_b32 s30, {MOD_OFF + 1728*8}"); E(f"s_mov_b32 s31, {MOD_OFF + 2304*8}")
    lds_wait(C_Q, 1, 1, 8, sleep=8)
    modgather()
    for i in range(9):
        E(f"v_add_f32 v{58+2*i}, 1.0, v{58+2*i}"); E(f"v_add_f32 v{59+2*i}, 1.0, v{59+2*i}")
        E(f"v_cvt_pk_bf16_f32 v9, v{58+2*i}, v{59+2*i}"); E(f"v_cvt_pk_bf16_f32 v10, v{40+2*i}, v{41+2*i}")
        E(f"ds_write_b32 v7, v9 offset:{i*128}"); E(f"ds_write_b32 v7, v10 offset:{2304 + i*128}")
    lds_set(C_UV, 1, 9, 1)
    stamp(5)

    E.label("L_tailprep")
    E("s_cmp_ge_u32 s5, 27"); E("s_cbranch_scc1 L_svc_end")
    lds_wait(C_BAR, 1, 1, 8, sleep=4)
    E("s_mov_b32 s6, s28")
    E("v_bfe_u32 v4, v0, 2, 2"); E("v_lshrrev_b32 v5, 4, v0"); E("v_lshl_add_u32 v4, v5, 3, v4"); E("v_lshlrev_b32 v4, 7, v4")
    E("v_and_b32 v6, 3, v0"); E("v_lshl_add_u32 v4, v6, 3, v4")
    E("v_bfe_u32 v7, v0, 3, 2"); E("v_xor_b32 v7, s3, v7"); E("v_lshl_add_u32 v2, v7, 5, v4")
    E("v_and_b32 v3, 1, v0"); E("v_mul_u32_u24 v3, 1152, v3"); E("v_lshl_add_u32 v3, v5, 4, v3")
    E("v_mul_u32_u24 v4, 1152, v6"); E("v_lshl_add_u32 v4, v5, 4, v4")
    BR = lambda k: 96 + 4 * k
    AT = lambda k: 24 + 4 * k
    def stage_b(slot, nk):
        E(f"v_add_u32 v5, {slot}, v2"); E(f"v_add_u32 v6, {slot + 36864}, v2")
        for k in range(nk):
            a = 5 if k < 9 else 6; o = (k % 9) * 4096
            E(f"ds_read_b64_tr_b16 v[{BR(k)}:{BR(k)+1}], v{a} offset:{o}"); E(f"ds_read_b64_tr_b16 v[{BR(k)+2}:{BR(k)+3}], v{a} offset:{o+512}")
        E("s_waitcnt lgkmcnt(0)")
    def gemv(areg, aoff, nk, d):
        for k in range(min(nk, 15)): E(f"ds_read_b128 v[{AT(k)}:{AT(k)+3}], v{areg} offset:{aoff + k*64}")
        issued = min(nk, 15)
        for k in range(nk):
            E(f"s_waitcnt lgkmcnt({issued - 1 - k})")
            c = "0" if k == 0 else f"v[{d}:{d+3}]"
            E(f"v_mfma_f32_16x16x32_bf16 v[{d}:{d+3}], v[{AT(k)}:{AT(k)+3}], v[{BR(k)}:{BR(k)+3}], {c}")
            if issued < nk:
                E(f"ds_read_b128 v[{AT(issued)}:{AT(issued)+3}], v{areg} offset:{aoff + issued*64}"); issued += 1
    lds_wait(C_DMAA, 1, 1, 8, sleep=8)
    E("s_cmp_lt_u32 s5, 9"); E("s_cbranch_scc1 L_owner")

    stage_b(SLOT_A, 18)
    lds_wait(C_UV, 1, 1, 8, sleep=8)
    E(f"v_add_u32 v4, {UVBUF}, v4")
    gemv(4, 0, 18, 8)
    E("s_sub_u32 s28, s5, 9"); E("s_lshl_b32 s28, s28, 2"); E("s_add_u32 s28, s28, s3")
    E("s_lshl_b32 s16, s28, 8"); E("s_mul_i32 s29, s4, 18432"); E("s_add_u32 s16, s16, s29"); E(f"s_add_u32 s16, s16, {UV_OFF}")
    E("s_lshl_b32 s17, s28, 7"); E("s_mul_i32 s29, s4, 9216"); E("s_add_u32 s17, s17, s29"); E(f"s_add_u32 s17, s17, {G_OFF}")
    E("s_mul_i32 s18, s4, 2304"); E(f"s_add_u32 s18, s18, {Z_OFF}")
    E("v_lshlrev_b32 v5, 4, v0"); E("v_lshlrev_b32 v7, 3, v0")
    E("s_mov_b64 exec, 0xffff")
    intra_store(["buffer_store_dwordx4 v[8:11], v5, s[24:27], s16 offen"])
    E("s_mov_b64 exec, -1")
    E("v_min_u32 v6, 15, v0"); E("v_lshlrev_b32 v6, 4, v6")
    E("s_lshl_b32 s28, s3, 12"); E(f"s_add_u32 s28, s28, {SLOT_B}")
    E("v_add_u32 v3, s28, v3"); E("v_add_u32 v2, s28, v5"); E("v_add_u32 v4, s28, v6")
    stamp(6)
    E("s_barrier")
    stamp(7)
    def zbody():
        E("buffer_load_dwordx4 v[8:11], v5, s[24:27], s18 offen sc1"); E("buffer_load_dwordx4 v[12:15], v5, s[24:27], s18 offen offset:1024 sc1")
        E("buffer_load_dwordx4 v[16:19], v6, s[24:27], s18 offen offset:2048 sc1")
        E("s_waitcnt vmcnt(0)")
        E("v_max3_u32 v20, v8, v9, v10"); E("v_max3_u32 v21, v11, v12, v13"); E("v_max3_u32 v22, v14, v15, v16"); E("v_max3_u32 v23, v17, v18, v19")
        E("v_max3_u32 v20, v20, v21, v22"); E("v_max_u32 v20, v20, v23"); E("v_cmp_eq_u32 vcc, -1, v20")
    poll(zbody, 0)
    stamp(8)
    E("ds_write_b128 v2, v[8:11]"); E("ds_write_b128 v2, v[12:15] offset:1024"); E("ds_write_b128 v4, v[16:19] offset:2048")
    E("s_waitcnt lgkmcnt(0)")
    gemv(3, 0, 18, 8)
    E("s_mov_b64 exec, 0xffff")
    intra_store(["buffer_store_dwordx2 v[8:9], v7, s[24:27], s17 offen"])
    stamp(9)
    E("s_branch L_svc_end")

    E.label("L_owner")
    stage_b(SLOT_A, 16)
    E("s_lshl_b32 s28, s4, 5"); E("s_lshl_b32 s29, s3, 3"); E("s_add_u32 s28, s28, s29")
    E("s_lshl_b32 s16, s28, 10"); E("s_add_u32 s17, s16, 4096")
    E("s_lshl_b32 s28, s28, 4"); E(f"s_add_u32 s28, s28, {ML_OFF}")
    E("v_lshrrev_b32 v5, 5, v0"); E("v_lshlrev_b32 v5, 3, v5")
    def mlbody():
        for s in range(8): E(f"buffer_load_dwordx2 v[{24+2*s}:{25+2*s}], v5, s[24:27], s28 offen offset:{s*16} sc1")
        E("s_waitcnt vmcnt(0)")
        E("v_add_f32 v6, v24, v25")
        for r in range(26, 40): E(f"v_add_f32 v6, v6, v{r}")
        E("v_cmp_u_f32 vcc, v6, v6")
    poll(mlbody, sl_long)
    E("v_max3_f32 v6, v24, v26, v28"); E("v_max3_f32 v6, v6, v30, v32"); E("v_max3_f32 v6, v6, v34, v36"); E("v_max_f32 v6, v6, v38")
    E(f"s_mov_b32 s31, {LOG2E}"); E("v_mov_b32 v7, 0")
    for s in range(8):
        E(f"v_sub_f32 v{8+s}, v{24+2*s}, v6"); E(f"v_mul_f32 v{8+s}, s31, v{8+s}"); E(f"v_exp_f32 v{8+s}, v{8+s}"); E(f"v_fmac_f32 v7, v{8+s}, v{25+2*s}")
    E("v_rcp_f32 v7, v7")
    for s in range(8): E(f"v_mul_f32 v{8+s}, v{8+s}, v7")
    E("s_lshl_b32 s22, s5, 2"); E("s_add_u32 s22, s22, s3")
    E("v_and_b32 v20, 31, v0"); E("v_lshrrev_b32 v6, 1, v20"); E("v_and_b32 v7, 1, v0"); E("v_lshlrev_b32 v20, 2, v20")
    E("v_mul_u32_u24 v21, 1152, v7"); E("v_lshl_add_u32 v21, v6, 1, v21")
    E("v_lshlrev_b32 v5, 3, v6")
    E("s_lshl_b32 s23, s22, 5")
    srd(12, 36, 2304)
    E("buffer_load_ushort v16, v21, s[12:15], s23 offen")
    E("s_lshl_b32 s28, s22, 7"); E(f"s_add_u32 s28, s28, {MOD_OFF + 1152*8}"); E(f"s_add_u32 s29, s28, {1152*8}"); E(f"s_add_u32 s30, s29, {576*8}")
    def gabody():
        for k in range(3): E(f"buffer_load_dwordx2 v[{24+2*k}:{25+2*k}], v5, s[24:27], s{28+k} offen sc1")
        E("s_waitcnt vmcnt(0)")
        tagcheck(6, [25, 27, 29])
    poll(gabody, sl_long)
    E("v_cmp_eq_u32 vcc, 0, v7"); E("v_mov_b32 v5, 0x03020c0c"); E("v_mov_b32 v6, 0x01000c0c"); E("v_cndmask_b32 v5, v5, v6, vcc")
    for k in range(3): E(f"v_perm_b32 v{17+k}, v{24+2*k}, v{24+2*k}, v5")
    E("v_lshlrev_b32 v16, 16, v16"); E("v_add_f32 v18, 1.0, v18"); rnd(18, 18)
    srd(12, 58, 2304)
    E("v_lshlrev_b32 v5, 4, v0"); E("v_lshlrev_b32 v7, 3, v0")
    E("s_lshr_b32 s28, s3, 1"); E("s_mul_i32 s28, s28, 1152"); E("s_and_b32 s29, s3, 1"); E("s_lshl_b32 s29, s29, 9"); E("s_add_u32 s28, s28, s29")
    E("v_add_u32 v6, s28, v7")
    E("s_lshl_b32 s28, s22, 7")
    E("s_mul_i32 s29, s4, 4608"); E("s_add_u32 s29, s29, s28")
    E(f"s_add_u32 s18, s29, {X_OFF}"); E(f"s_add_u32 s19, s29, {Y_OFF}")
    for k in range(8): E(f"s_add_u32 s{64+k if not stamps else 94+k}, s28, {X_OFF + k*4608}")
    XS = lambda k: (64 + k if not stamps else 94 + k)
    E("s_mul_i32 s20, s4, 2304"); E("s_add_u32 s20, s20, s23"); E(f"s_add_u32 s20, s20, {Z_OFF}")
    E("s_mul_i32 s21, s4, 640"); E("s_lshl_b32 s28, s22, 4"); E("s_add_u32 s21, s21, s28"); E(f"s_add_u32 s21, s21, {ST_OFF}")
    lds_wait(C_DMAB, 1, 1, 22, sleep=8)
    stamp(6)
    E("s_barrier")
    stamp(7)
    def obody():
        for s in range(8): E(f"buffer_load_dwordx4 v[{24+4*s}:{27+4*s}], v5, s[24:27], s{16 + s//4} offen offset:{(s%4)*1024} sc1")
        for s in range(8):
            E(f"s_waitcnt vmcnt({7-s})")
            for k in range(4):
                if s == 0: E(f"v_mul_f32 v{56+k}, v8, v{24+k}")
                else: E(f"v_fmac_f32 v{56+k}, v{8+s}, v{24+4*s+k}")
        E("v_add_f32 v60, v56, v57"); E("v_add_f32 v61, v58, v59"); E("v_cmp_u_f32 vcc, v60, v61")
    poll(obody, 0)
    stamp(8)
    E("v_cvt_pk_bf16_f32 v56, v56, v57"); E("v_cvt_pk_bf16_f32 v57, v58, v59")
    E(f"ds_write_b64 v6, v[56:57] offset:{ABUF0}")
    E("s_waitcnt lgkmcnt(0)")
    E("s_barrier")
    gemv(3, ABUF0, 16, 8)
    E("s_mov_b64 exec, 0xffff")
    E("buffer_store_dwordx2 v[8:9], v7, s[24:27], s18 offen sc1")
    E("s_mov_b64 exec, -1")
    stamp(9)
    def sum8(delta):
        def body():
            for k in range(8): E(f"buffer_load_dword v{24+k}, v20, s[24:27], s{XS(k)} offen sc1")
            E("s_waitcnt vmcnt(0)")
            E("v_add_f32 v24, v24, v25"); E("v_add_f32 v26, v26, v27"); E("v_add_f32 v28, v28, v29"); E("v_add_f32 v30, v30, v31")
            E("v_add_f32 v24, v24, v26"); E("v_add_f32 v28, v28, v30"); E("v_add_f32 v24, v24, v28")
            E("v_cmp_u_f32 vcc, v24, v24")
        return body
    poll(sum8(0), 0)
    stamp(10)
    rnd(24, 24); E("v_mul_f32 v24, v17, v24"); rnd(24, 24); E("v_add_f32 v16, v16, v24"); rnd(16, 16)
    E("v_mul_f32 v24, v16, v18")
    E("v_mov_b32_dpp v25, v24 quad_perm:[2,3,2,3] row_mask:0xf bank_mask:0xf")
    E("v_cvt_pk_bf16_f32 v24, v24, v25")
    E("s_mov_b64 exec, 0x33333333")
    intra_store(["buffer_store_dword v24, v21, s[24:27], s20 offen"])
    E("s_mov_b64 exec, -1")
    stamp(11)
    E("v_mov_b32 v26, v16"); E("v_mul_f32 v27, v16, v16")
    for k in (2, 4, 8):
        for r in (26, 27): E(f"v_add_f32_dpp v{r}, v{r}, v{r} row_ror:{k} row_mask:0xf bank_mask:0xf")
    swap_reduce("v_add_f32", 26, 28, 16); swap_reduce("v_add_f32", 27, 28, 16)
    E("s_mov_b64 exec, 3")
    intra_store(["buffer_store_dwordx2 v[26:27], v7, s[24:27], s21 offen"])
    E("s_mov_b64 exec, -1")
    stage_b(SLOT_B, 18)
    for k in range(8): E(f"s_add_u32 s{XS(k)}, s{XS(k)}, {Y_OFF - X_OFF}")
    E("s_barrier")
    stamp(12)
    gemv(3, ABUF1, 18, 8)
    E("s_mov_b64 exec, 0xffff")
    E("buffer_store_dwordx2 v[8:9], v7, s[24:27], s19 offen sc1")
    E("s_mov_b64 exec, -1")
    stamp(13)
    E("s_and_b32 s28, s5, 7"); E("s_cmp_lg_u32 s28, s4"); E("s_cbranch_scc1 L_svc_end")
    poll(sum8(0), 0)
    stamp(14)
    rnd(24, 24); E("v_mul_f32 v24, v19, v24"); rnd(24, 24); E("v_add_f32 v24, v16, v24")
    E("v_mov_b32_dpp v25, v24 quad_perm:[2,3,2,3] row_mask:0xf bank_mask:0xf")
    E("v_cvt_pk_bf16_f32 v24, v24, v25")
    E("s_mov_b64 exec, 0x33333333")
    E("buffer_store_dword v24, v21, s[12:15], s23 offen")
    stamp(15)
    E("s_cmp_lg_u32 s22, 0"); E("s_cbranch_scc1 L_svc_end")
    E("s_mov_b64 exec, 1"); E("v_mov_b32 v24, s35"); E(f"s_mov_b32 s28, {EP_OFF}")
    E("buffer_store_dword v24, v1, s[24:27], s28 offen")
    E.label("L_svc_end")
    E("s_waitcnt lgkmcnt(0)")
    if stamps: E("s_add_u32 s3, s3, 8")
    stamp_flush()
    E.label("L_exit")
    body = E.finish()
    hdr = open('cdna_kernels/' + NAME + '.s.ref').read().split('; Override launch')[0] if False else HDR
    return hdr + f"""; @launch grid=(256,1,1) block=(768,1,1) lds=163840
.amdgcn_target "amdgcn-amd-amdhsa--gfx950"
.text
.globl {NAME}_kernel
.p2align 8
.type {NAME}_kernel,@function
{NAME}_kernel:
{body}
    s_endpgm
.section .rodata,"a"
.p2align 6
.amdhsa_kernel {NAME}_kernel
  .amdhsa_next_free_vgpr 168
  .amdhsa_next_free_sgpr 102
  .amdhsa_accum_offset 168
  .amdhsa_group_segment_fixed_size 0
  .amdhsa_kernarg_size 112
  .amdhsa_float_denorm_mode_32 3
  .amdhsa_user_sgpr_count 2
  .amdhsa_user_sgpr_kernarg_segment_ptr 1
  .amdhsa_system_sgpr_workgroup_id_x 1
.end_amdhsa_kernel
"""

HDR = """; adaLN-conditioned GQA decode attention + SwiGLU block, one persistent launch (generated by gen/gen.py)
"""
if __name__ == '__main__':
    kw = eval('dict(' + (sys.argv[2] if len(sys.argv) > 2 else '') + ')')
    open(sys.argv[1], 'w').write(gen(**kw))
```

```python
import sys
from emit import Emit
NAME = 'adaLN_cond__gqa_block_cached__glu_gated_swiglu__decode'

O_OFF, UV_OFF, G_OFF, X_OFF, Y_OFF = 0x0, 0x40000, 0x64000, 0x76000, 0x7F000
Z_OFF, ST_OFF, ML_OFF = 0x88000, 0x8D000, 0x8F000
Q_OFF, MOD_OFF = 0xC8000, 0xD0000
EP_OFF = 0xC0000
STAMP_OFF = 0x100000
WS_SIZE = 0x200000
C_BAR, C_Q, C_CNT, C_DMAA, C_DMAB, C_UV, C_GO = 0, 4, 8, 12, 16, 20, 24
FAC, MLB, QBUF, ABUF0, ABUF1, OBUF = 64, 128, 256, 1024, 3328, 8192
SLOT_A, SLOT_B = 16384, 90112
UVBUF = SLOT_B + 16384
LOG2E = 0x3fb8aa3b
SCALE = 0x3db504f3

def gen(D=4, DW=8, DJ=32, stamps=False, force_slow=False, wstart=0, sl_long=8, sl_bar=16, gate=1, kvf='nt', wf='nt', plim=0x2000, probe=None):
    E = Emit()
    uid = [0]
    def L(p):
        uid[0] += 1
        return f"L_{p}_{uid[0]}"
    def stamp(k):
        if stamps:
            E("s_memrealtime s[92:93]"); E("s_waitcnt lgkmcnt(0)"); E(f"s_mov_b32 s{70+k}, s92")
    def stamp_flush():
        if stamps:
            E("s_mov_b64 exec, -1")
            E("v_mov_b32 v4, 0")
            for k in range(16): E(f"v_writelane_b32 v4, s{70+k}, {k}")
            E("s_lshl_b32 s28, s4, 5"); E("s_add_u32 s28, s28, s5"); E("s_mul_i32 s28, s28, 12"); E("s_add_u32 s28, s28, s3")
            E("s_lshl_b32 s28, s28, 6"); E(f"s_add_u32 s28, s28, {STAMP_OFF}")
            E("v_mbcnt_lo_u32_b32 v5, -1, 0"); E("v_mbcnt_hi_u32_b32 v5, -1, v5"); E("v_lshlrev_b32 v5, 2, v5")
            E("s_mov_b64 exec, 0xffff")
            E("buffer_store_dword v4, v5, s[24:27], s28 offen")
    def end_wave():
        stamp_flush(); E("s_endpgm")
    def srd(r, p, size):
        E(f"s_mov_b32 s{r}, s{p}"); E(f"s_mov_b32 s{r+1}, s{p+1}"); E(f"s_mov_b32 s{r+2}, {size}"); E(f"s_mov_b32 s{r+3}, 0x20000")
    def lds_wait(off, val, vz, vt, sleep=2):
        a, b = L("lw"), L("lwd")
        E("s_mov_b32 s7, 0"); E.label(a)
        E(f"ds_read_b32 v{vt}, v{vz} offset:{off}"); E("s_waitcnt lgkmcnt(0)")
        E(f"v_readfirstlane_b32 s28, v{vt}"); E(f"s_cmp_ge_u32 s28, {val}"); E(f"s_cbranch_scc1 {b}")
        E(f"s_sleep {sleep}"); E("s_add_u32 s7, s7, 1"); E(f"s_cmp_lt_u32 s7, {plim*8}"); E(f"s_cbranch_scc1 {a}")
        E.label(b)
    def lds_set(off, vz, vt, val):
        E(f"v_mov_b32 v{vt}, {val}"); E(f"ds_write_b32 v{vz}, v{vt} offset:{off}")
    def poll(body, sleep=0):
        a, b = L("pl"), L("pld")
        E("s_mov_b32 s7, 0"); E.label(a)
        body()
        E(f"s_cbranch_vccz {b}")
        if sleep: E(f"s_sleep {sleep}")
        E("s_add_u32 s7, s7, 1"); E(f"s_cmp_lt_u32 s7, {plim}"); E(f"s_cbranch_scc1 {a}")
        E.label(b)
    def intra_store(ins):
        a, b = L("is"), L("isd")
        E("s_cmp_eq_u32 s6, 3"); E(f"s_cbranch_scc1 {a}")
        for i in ins: E(i + " sc1")
        E(f"s_branch {b}"); E.label(a)
        for i in ins: E(i)
        E.label(b)
    def rnd(dst, src, tmp=None):
        E(f"v_cvt_pk_bf16_f32 v{dst}, v{src}, v{src}"); E(f"v_and_b32 v{dst}, 0xffff0000, v{dst}")
    def row_reduce(op, r, t, rors):
        for k in rors:
            E(f"{op}_dpp v{r}, v{r}, v{r} row_ror:{k} row_mask:0xf bank_mask:0xf")
    def swap_reduce(op, r, t, which):
        E(f"v_mov_b32 v{t}, v{r}"); E(f"v_permlane{which}_swap_b32 v{r}, v{t}"); E(f"{op} v{r}, v{r}, v{t}")

    def mktag():
        E("s_waitcnt lgkmcnt(0)")
        E("s_mul_i32 s35, s34, 0x9E3779B1"); E("s_add_u32 s35, s35, 0x7F4A7C15")
    def tagcheck(acc, regs):
        E(f"v_xor_b32 v{acc}, s35, v{regs[0]}")
        for r in regs[1:]: E(f"v_bitop3_b32 v{acc}, v{acc}, v{r}, s35 bitop3:0xf6")
        E(f"v_cmp_ne_u32 vcc, 0, v{acc}")

    E("s_load_dwordx16 s[36:51], s[0:1], 0")
    E("s_load_dwordx8 s[52:59], s[0:1], 64")
    E("s_load_dwordx4 s[60:63], s[0:1], 96")
    E("s_cmp_ge_u32 s2, 256"); E("s_cbranch_scc1 L_exit")
    if stamps:
        for k in range(16): E(f"s_mov_b32 s{70+k}, 0")
    E("v_lshrrev_b32 v1, 6, v0"); E("v_and_b32 v0, 63, v0"); E("v_readfirstlane_b32 s3, v1")
    E("s_and_b32 s4, s2, 7"); E("s_lshr_b32 s5, s2, 3")
    E("s_cmp_ge_u32 s3, 8"); E("s_cbranch_scc1 L_service")

    SL = lambda i: 40 + 4 * i
    E("v_lshlrev_b32 v1, 4, v0")
    E("v_and_b32 v3, 3, v0"); E("v_lshrrev_b32 v4, 4, v0"); E("v_lshl_add_u32 v3, v4, 2, v3")
    E("v_bfe_u32 v4, v0, 2, 2"); E("v_lshlrev_b32 v4, 8, v4"); E("v_lshl_add_u32 v2, v3, 4, v4")
    E("v_bfe_u32 v4, v0, 3, 1"); E("v_lshlrev_b32 v4, 8, v4"); E("v_lshl_add_u32 v36, v3, 4, v4")
    E("s_lshr_b32 s28, s5, 4"); E("s_lshl_b32 s28, s28, 4")
    E("s_lshl_b32 s29, s4, 1"); E("s_add_u32 s28, s28, s29")
    E("s_bfe_u32 s29, s5, 0x10003"); E("s_add_u32 s28, s28, s29")
    E("s_lshl_b32 s28, s28, 21")
    E("s_and_b32 s29, s5, 7"); E("s_lshl_b32 s29, s29, 18"); E("s_add_u32 s28, s28, s29")
    E("s_lshl_b32 s29, s3, 12"); E("s_add_u32 s28, s28, s29")
    E("s_add_u32 s29, s5, s3")
    for u in range(8):
        E(f"s_add_u32 s30, s29, {u}"); E("s_and_b32 s30, s30, 7"); E("s_lshl_b32 s30, s30, 15"); E(f"s_add_u32 s{16+u}, s28, s30")
    E("s_waitcnt lgkmcnt(0)")
    stamp(0)
    srd(8, 38, 0x4000000); srd(12, 40, 0x4000000); srd(24, 62, WS_SIZE)
    def kload(i): E(f"buffer_load_dwordx4 v[{SL(i)}:{SL(i)+3}], v2, s[8:11], s{16+i//4} offen offset:{(i%4)*1024} {kvf}")
    def vload(i): E(f"buffer_load_dwordx4 v[{SL(i)}:{SL(i)+3}], v1, s[12:15], s{16+i//4} offen offset:{(i%4)*1024} {kvf}")
    if gate:
        E("s_mov_b32 s31, 0")
        E("s_cmp_ge_u32 s5, 9"); E("s_cselect_b32 s31, 1, 0")
        E("s_cmp_ge_u32 s5, 14"); E("s_cselect_b32 s31, 0, s31")
        E("s_cmp_ge_u32 s5, 27"); E("s_cselect_b32 s31, 2, s31")
        E("s_cmp_eq_u32 s31, 0"); E("s_cbranch_scc1 L_nogate")
        E("s_barrier")
        E("v_mov_b32 v3, 0")
        lds_wait(C_GO, "s31", 3, 4, sleep=4)
        for i in range(D): kload(i)
        E("s_branch L_gated")
        E.label("L_nogate")
    for i in range(D): kload(i)
    E("s_barrier")
    if gate: E.label("L_gated")
    for i in range(D, 32):
        E(f"s_waitcnt vmcnt({D-1})"); kload(i)
    stamp(1)
    E("v_mov_b32 v2, 0")
    lds_wait(C_Q, 1, 2, 3)
    E(f"ds_read_b128 v[20:23], v36 offset:{QBUF}")
    E(f"s_mov_b32 s30, {SCALE}"); E(f"s_mov_b32 s31, {LOG2E}")
    E("v_mov_b32 v36, 0xff800000")
    E("s_waitcnt lgkmcnt(0)")
    stamp(2)
    st = dict(issued=0)
    def qk_mfma(u):
        n = (28 - 4*u) + st['issued']
        if n < D + st['issued'] and n < 63: E(f"s_waitcnt vmcnt({n})")
        for i in range(4*u, 4*u+4):
            E(f"v_mfma_f32_16x16x32_bf16 v[{SL(i)}:{SL(i)+3}], v[{SL(i)}:{SL(i)+3}], v[20:23], 0")
    def qk_post(u):
        T = [24, 25, 26, 27]
        for k in range(4):
            for a in range(4):
                r = SL(4*u + a) + k
                if k == 0: E(f"v_mov_b32_dpp v{T[a]}, v{r} quad_perm:[0,0,0,0] row_mask:0xf bank_mask:0xf")
                else: E(f"v_add_f32_dpp v{T[a]}, v{r}, v{T[a]} quad_perm:[{k},{k},{k},{k}] row_mask:0xf bank_mask:0xf")
        E("v_cvt_pk_bf16_f32 v28, v24, v25"); E("v_cvt_pk_bf16_f32 v29, v26, v27")
        E("v_lshlrev_b32 v24, 16, v28"); E("v_and_b32 v25, 0xffff0000, v28")
        E("v_lshlrev_b32 v26, 16, v29"); E("v_and_b32 v27, 0xffff0000, v29")
        for a in range(4): E(f"v_mul_f32 v{T[a]}, s30, v{T[a]}")
        E(f"v_cvt_pk_bf16_f32 v{4+2*u}, v24, v25"); E(f"v_cvt_pk_bf16_f32 v{5+2*u}, v26, v27")
        E("v_max3_f32 v36, v24, v25, v36"); E("v_max3_f32 v36, v26, v27, v36")
    def vissue():
        i = st['issued']
        E(f"s_waitcnt vmcnt({D-1})"); vload(i); st['issued'] += 1
    def expo(k):
        E(f"v_lshlrev_b32 v24, 16, v{4+k}"); E(f"v_and_b32 v25, 0xffff0000, v{4+k}")
        E("v_fma_f32 v24, v24, s31, -v37"); E("v_fma_f32 v25, v25, s31, -v37")
        E("v_exp_f32 v24, v24"); E("v_exp_f32 v25, v25")
        E("v_add_f32 v38, v38, v24"); E("v_add_f32 v39, v39, v25")
        E(f"v_cvt_pk_bf16_f32 v{4+k}, v24, v25")
    qk_mfma(0); qk_mfma(1); qk_post(0)
    for _ in range(4): vissue()
    qk_mfma(2); qk_post(1); qk_mfma(3); qk_post(2); vissue()
    qk_mfma(4); qk_post(3); qk_mfma(5); qk_post(4); vissue()
    qk_mfma(6); qk_post(5); qk_mfma(7); qk_post(6); vissue()
    qk_post(7)
    swap_reduce("v_max_f32", 36, 24, 16); swap_reduce("v_max_f32", 36, 24, 32)
    rnd(36, 36)
    E("v_mul_f32 v37, s31, v36"); E("v_mov_b32 v38, 0"); E("v_mov_b32 v39, 0")
    vissue()
    for k in range(0, 6): expo(k)
    vissue()
    for k in range(6, 12): expo(k)
    vissue()
    for k in range(12, 16): expo(k)
    E("v_add_f32 v37, v38, v39")
    swap_reduce("v_add_f32", 37, 24, 16); swap_reduce("v_add_f32", 37, 24, 32)
    E("s_lshl_b32 s28, s3, 4"); E("v_add_u32 v3, s28, v0"); E("v_mov_b32 v24, 1")
    E("s_mov_b64 exec, 0x101"); E(f"ds_write_b64 v3, v[36:37] offset:{MLB}")
    E("s_mov_b64 exec, 1"); E(f"ds_add_u32 v2, v24 offset:{C_CNT}")
    E("s_mov_b64 exec, -1")
    stamp(3)
    E("v_and_b32 v3, 1, v0"); E("v_cmp_eq_u32 vcc, 1, v3")
    E("v_mov_b32 v32, 0x0c0c0100"); E("v_mov_b32 v33, 0x01000c0c"); E("v_cndmask_b32 v32, v32, v33, vcc")
    E("v_mov_b32 v34, 0x0c0c0302"); E("v_mov_b32 v33, 0x03020c0c"); E("v_cndmask_b32 v33, v34, v33, vcc")
    E("v_bfe_u32 v3, v0, 1, 2"); E("v_mov_b32 v34, 0x0c0c0c0c")
    for r in range(4):
        E(f"v_cmp_eq_u32 vcc, {r}, v3"); E(f"v_cndmask_b32 v{24+r}, v34, v32, vcc"); E(f"v_cndmask_b32 v{28+r}, v34, v33, vcc")
    E("v_and_b32 v3, 15, v0"); E("v_lshlrev_b32 v3, 5, v3"); E("v_bfe_u32 v2, v0, 4, 1"); E("v_lshl_add_u32 v3, v2, 4, v3")
    E("v_lshrrev_b32 v2, 5, v0"); E("v_lshl_add_u32 v3, v2, 9, v3"); E("s_lshl_b32 s28, s3, 10"); E("v_add_u32 v3, s28, v3")
    pv = dict(done=0)
    def pv_prep(i):
        A0 = 32 + 4 * (i & 1)
        for r in range(4): E(f"v_perm_b32 v{A0+r}, v{4+i//2}, v{4+i//2}, v{24+4*(i&1)+r}")
    def pv_mfma(i):
        A0 = 32 + 4 * (i & 1)
        c = "0" if i == 0 else "v[20:23]"
        E(f"v_mfma_f32_16x16x32_bf16 v[20:23], v[{A0}:{A0+3}], v[{SL(i)}:{SL(i)+3}], {c}")
    while st['issued'] < 32:
        vissue()
        n = 0
        while pv['done'] <= st['issued'] - 1 - D and n < 3:
            pv_prep(pv['done']); pv_mfma(pv['done']); pv['done'] += 1; n += 1
    while pv['done'] < 32:
        i = pv['done']
        pv_prep(i)
        if 31 - i < D: E(f"s_waitcnt vmcnt({31-i})")
        pv_mfma(i); pv['done'] += 1
    E(f"ds_write_b128 v3, v[20:23] offset:{OBUF}")
    stamp(4)
    E("s_waitcnt lgkmcnt(0)")
    E("s_barrier")
    E("s_cmp_lg_u32 s3, 0"); E("s_cbranch_scc1 L_noreduce")
    for w in range(8): E(f"ds_read_b128 v[{40+4*w}:{43+4*w}], v1 offset:{OBUF + w*1024}")
    E("v_lshrrev_b32 v2, 5, v0"); E("v_lshlrev_b32 v2, 5, v2")
    E(f"ds_read_b128 v[4:7], v2 offset:{FAC}"); E(f"ds_read_b128 v[8:11], v2 offset:{FAC+16}")
    E("v_mov_b32 v3, 0"); E(f"ds_read_b32 v3, v3 offset:{C_BAR}")
    E("s_lshl_b32 s28, s4, 5"); E("s_add_u32 s28, s28, s5"); E("s_lshl_b32 s28, s28, 10")
    E("s_waitcnt lgkmcnt(0)")
    E("v_readfirstlane_b32 s6, v3")
    for k in range(4): E(f"v_mul_f32 v{12+k}, v4, v{40+k}")
    for w in range(1, 8):
        for k in range(4): E(f"v_fmac_f32 v{12+k}, v{4+w}, v{40+4*w+k}")
    intra_store(["buffer_store_dwordx4 v[12:15], v1, s[24:27], s28 offen"])
    stamp(5)
    E.label("L_noreduce")
    E("s_cmp_ge_u32 s5, 9"); E("s_cbranch_scc1 L_sdone")
    E("s_cmp_ge_u32 s3, 5"); E("s_cbranch_scc1 L_sdone")
    E("s_lshl_b32 s28, s3, 6"); E("v_add_u32 v2, s28, v0"); E("v_min_u32 v2, 287, v2")
    E("v_lshlrev_b32 v3, 5, v2")
    E("v_lshlrev_b32 v1, 4, v2")
    E("v_lshlrev_b32 v2, 2, v2")
    E("s_mul_i32 s16, s4, 18432"); E(f"s_add_u32 s16, s16, {UV_OFF}"); E("s_add_u32 s17, s16, 9216")
    E("s_mul_i32 s18, s4, 9216"); E(f"s_add_u32 s18, s18, {G_OFF}"); E("s_add_u32 s19, s18, 4608")
    E("s_mul_i32 s20, s4, 640"); E(f"s_add_u32 s20, s20, {ST_OFF}")
    def uvbody():
        E("buffer_load_dwordx4 v[40:43], v3, s[24:27], s16 offen sc1"); E("buffer_load_dwordx4 v[44:47], v3, s[24:27], s16 offen offset:16 sc1")
        E("buffer_load_dwordx4 v[48:51], v3, s[24:27], s17 offen sc1"); E("buffer_load_dwordx4 v[52:55], v3, s[24:27], s17 offen offset:16 sc1")
        E("s_waitcnt vmcnt(0)")
        E("v_add_f32 v4, v40, v41")
        for r in range(42, 56): E(f"v_add_f32 v4, v4, v{r}")
        E("v_cmp_u_f32 vcc, v4, v4")
    E("s_barrier")
    poll(uvbody, 2)
    E("v_min_u32 v4, 35, v0"); E("v_lshlrev_b32 v4, 4, v4")
    def stbody():
        E("buffer_load_dwordx4 v[8:11], v4, s[24:27], s20 offen sc1"); E("s_waitcnt vmcnt(0)")
        E("v_add_f32 v5, v8, v9"); E("v_add_f32 v6, v10, v11"); E("v_cmp_u_f32 vcc, v5, v6")
    poll(stbody, 1)
    E("v_cmp_gt_u32 vcc, 36, v0")
    for r in range(8, 12): E(f"v_cndmask_b32 v{r}, 0, v{r}, vcc")
    for k in (1, 2, 4, 8):
        for r in range(8, 12): E(f"v_add_f32_dpp v{r}, v{r}, v{r} row_ror:{k} row_mask:0xf bank_mask:0xf")
    for wh in (16, 32):
        for r in range(8, 12): E(f"v_mov_b32 v{r+4}, v{r}")
        for r in range(8, 12): E(f"v_permlane{wh}_swap_b32 v{r}, v{r+4}")
        for r in range(8, 12): E(f"v_add_f32 v{r}, v{r}, v{r+4}")
    E("s_mov_b32 s28, 0x3ae38e39")
    E("s_mov_b32 s29, 0x3727c5ac")
    for b in range(2):
        s1, s2 = 8 + 2*b, 9 + 2*b
        E(f"v_mul_f32 v{s1}, s28, v{s1}"); E(f"v_mul_f32 v{s2}, s28, v{s2}")
        E(f"v_fma_f32 v{s2}, -v{s1}, v{s1}, v{s2}"); E(f"v_max_f32 v{s2}, 0, v{s2}")
        rnd(s2, s2); E(f"v_add_f32 v{s2}, s29, v{s2}"); rnd(s2, s2)
        E(f"v_sqrt_f32 v{s2}, v{s2}"); rnd(s2, s2); E(f"v_rcp_f32 v{s2}, v{s2}")
        rnd(s1, s1); E(f"v_mul_f32 v{s1}, v{s1}, v{s2}")
    for base in (40, 44, 48, 52):
        for b in range(2): E(f"v_fma_f32 v{base+2+b}, -v{8+2*b}, v{base+b}, v{base+2+b}")
    E(f"s_mov_b32 s28, {LOG2E ^ 0x80000000}")
    stamp(6)
    def gbody():
        E("buffer_load_dwordx4 v[12:15], v1, s[24:27], s18 offen sc1"); E("buffer_load_dwordx4 v[16:19], v1, s[24:27], s19 offen sc1")
        E("s_waitcnt vmcnt(0)")
        for e in range(4):
            c, b = e >> 1, e & 1
            E(f"v_fma_f32 v{12+e}, v{12+e}, v{9+2*b}, v{40+4*c+2+b}")
            E(f"v_fma_f32 v{16+e}, v{16+e}, v{9+2*b}, v{48+4*c+2+b}")
        for e in range(4): E(f"v_mul_f32 v{16+e}, v{16+e}, v{12+e}")
        E("v_add_f32 v20, v16, v17"); E("v_add_f32 v21, v18, v19"); E("v_cmp_u_f32 vcc, v20, v21")
    poll(gbody, 0)
    for e in range(4): E(f"v_mul_f32 v{12+e}, s28, v{12+e}")
    for e in range(4): E(f"v_exp_f32 v{12+e}, v{12+e}")
    for e in range(4): E(f"v_add_f32 v{12+e}, 1.0, v{12+e}")
    for e in range(4): E(f"v_rcp_f32 v{12+e}, v{12+e}")
    for e in range(4): E(f"v_mul_f32 v{16+e}, v{16+e}, v{12+e}")
    E("v_cvt_pk_bf16_f32 v12, v16, v18"); E("v_cvt_pk_bf16_f32 v13, v17, v19")
    E(f"ds_write_b32 v2, v12 offset:{ABUF1}"); E(f"ds_write_b32 v2, v13 offset:{ABUF1+1152}")
    E("s_waitcnt lgkmcnt(0)")
    E("s_barrier")
    stamp(7)
    E.label("L_sdone")
    end_wave()

    E.label("L_service")
    E("v_mov_b32 v1, 0")
    E("s_sub_u32 s3, s3, 8")
    E("s_cmp_lg_u32 s3, 0"); E("s_cbranch_scc1 L_sv1")
    E("v_lshlrev_b32 v2, 2, v0"); E("s_mov_b64 exec, 0xffff"); E("ds_write_b32 v2, v1"); E("s_mov_b64 exec, -1")
    E.label("L_sv1")
    E("s_waitcnt lgkmcnt(0)")
    stamp(0)
    E(f"s_load_dword s34, s[62:63], {EP_OFF}")
    srd(24, 62, WS_SIZE)
    E("s_barrier")
    E("s_cmp_eq_u32 s3, 3"); E("s_cbranch_scc1 L_s3")
    E("s_cmp_lg_u32 s3, 0"); E("s_cbranch_scc1 L_s12")
    mktag()
    E("v_lshlrev_b32 v2, 5, v0")
    E("s_lshl_b32 s28, s4, 12"); E("s_bfe_u32 s29, s5, 0x10003"); E("s_lshl_b32 s29, s29, 11"); E("s_add_u32 s28, s28, s29"); E(f"s_add_u32 s28, s28, {Q_OFF}")
    def qbody():
        E("buffer_load_dwordx4 v[8:11], v2, s[24:27], s28 offen sc1"); E("buffer_load_dwordx4 v[12:15], v2, s[24:27], s28 offen offset:16 sc1")
        E("s_waitcnt vmcnt(0)")
        tagcheck(16, [9, 11, 13, 15])
    poll(qbody, sl_long)
    E("s_mov_b32 s29, 0x05040100"); E("s_cmp_ge_u32 s5, 16"); E("s_cselect_b32 s29, 0x07060302, s29")
    E("v_perm_b32 v8, v10, v8, s29"); E("v_perm_b32 v9, v14, v12, s29"); E("v_lshlrev_b32 v3, 3, v0")
    E(f"ds_write_b64 v3, v[8:9] offset:{QBUF}")
    lds_set(C_Q, 1, 10, 1)
    stamp(3)
    lds_wait(C_BAR, 1, 1, 8, sleep=4)
    E("s_mov_b32 s6, s28")
    lds_wait(C_CNT, 8, 1, 8, sleep=4)
    E("v_and_b32 v3, 15, v0"); E("v_lshlrev_b32 v4, 3, v3"); E(f"ds_read_b64 v[8:9], v4 offset:{MLB}")
    E(f"s_mov_b32 s31, {LOG2E}")
    E("s_waitcnt lgkmcnt(0)")
    E("v_mov_b32 v10, v8"); row_reduce("v_max_f32", 10, None, (2, 4, 8))
    E("v_sub_f32 v12, v8, v10"); E("v_mul_f32 v12, s31, v12"); E("v_exp_f32 v12, v12"); E("v_mul_f32 v11, v12, v9")
    row_reduce("v_add_f32", 11, None, (2, 4, 8))
    E("v_and_b32 v5, 1, v0"); E("v_lshlrev_b32 v5, 5, v5"); E("v_lshrrev_b32 v6, 1, v3"); E("v_lshl_add_u32 v5, v6, 2, v5")
    E(f"ds_write_b32 v5, v12 offset:{FAC}")
    E("s_lshl_b32 s28, s4, 5"); E("s_add_u32 s28, s28, s5"); E("s_lshl_b32 s28, s28, 4"); E(f"s_add_u32 s28, s28, {ML_OFF}")
    E("s_mov_b64 exec, 3")
    intra_store(["buffer_store_dwordx2 v[10:11], v4, s[24:27], s28 offen"])
    E("s_mov_b64 exec, -1")
    E("s_waitcnt lgkmcnt(0)")
    stamp(4)
    E("s_branch L_tailprep")

    E.label("L_s3")
    srd(8, 60, 256)
    E("v_lshlrev_b32 v2, 4, v0")
    for k in range(4): E(f"v_mov_b32 v{4+k}, -1")
    E("s_mul_i32 s28, s2, 3072")
    for k in range(3): E(f"buffer_store_dwordx4 v[4:7], v2, s[24:27], s28 offen offset:{k*1024} sc1")
    E("s_getreg_b32 s29, hwreg(HW_REG_XCC_ID)"); E("s_and_b32 s29, s29, 15")
    E("s_mul_i32 s30, s29, s29"); E("s_lshl_b32 s30, s30, 18"); E("s_lshl_b32 s29, s29, 8"); E("s_add_u32 s29, s29, s30"); E("s_add_u32 s29, s29, 1")
    E("v_mov_b32 v8, s29"); E("s_lshl_b32 s28, s4, 5")
    E("s_waitcnt vmcnt(0)")
    stamp(1)
    E("s_mov_b64 exec, 1"); E("buffer_atomic_add v8, v1, s[8:11], s28 offen sc1"); E("s_mov_b64 exec, -1")
    E("v_and_b32 v3, 7, v0"); E("v_lshlrev_b32 v3, 5, v3")
    mktag()
    lds_wait(C_Q, 1, 1, 8, sleep=8)
    def barbody():
        E("buffer_load_dword v8, v3, s[8:11], 0 offen sc1"); E("s_waitcnt vmcnt(0)")
        E("v_and_b32 v9, 0xff, v8"); E("v_cmp_ne_u32 vcc, 32, v9")
    poll(barbody, sl_bar)
    E("v_readlane_b32 s29, v8, s4")
    E("s_bfe_u32 s30, s29, 0xa0008"); E("s_mul_i32 s30, s30, s30"); E("s_lshr_b32 s29, s29, 18"); E("s_lshl_b32 s29, s29, 5")
    E("s_cmp_eq_u32 s29, s30"); E(f"s_cselect_b32 s6, {1 if force_slow else 3}, 1")
    E("v_mov_b32 v8, s6"); E(f"ds_write_b32 v1, v8 offset:{C_BAR}")
    stamp(2)
    E("s_branch L_tailprep")

    E.label("L_s12")
    E("s_mov_b32 s11, 0x20000"); E("s_mov_b32 s19, 36"); E("s_mov_b32 s21, 0"); E("s_mov_b32 s22, 0")
    E("s_mov_b32 s8, s56"); E("s_mov_b32 s9, s57"); E("s_mov_b32 s10, 0"); E("s_mov_b32 s16, 0"); E("s_mov_b32 s20, 0")
    E("s_cmp_eq_u32 s3, 2"); E("s_cbranch_scc1 L_selB")
    E(f"s_mov_b32 s18, {SLOT_A}"); E(f"s_mov_b32 s23, {ABUF0}")
    E("s_cmp_lt_u32 s5, 9"); E("s_cbranch_scc1 L_sel_wo")
    E("s_cmp_lt_u32 s5, 18"); E("s_cbranch_scc1 L_sel_w1")
    E("s_cmp_lt_u32 s5, 27"); E("s_cbranch_scc1 L_sel_w3")
    E("s_sub_u32 s22, s5, 27"); E("s_branch L_sel_m")
    E.label("L_selB")
    E(f"s_mov_b32 s18, {SLOT_B}"); E(f"s_mov_b32 s23, {ABUF1}")
    E("s_cmp_lt_u32 s5, 9"); E("s_cbranch_scc1 L_sel_w2")
    E("s_sub_u32 s22, s5, 4")
    E("s_cmp_lt_u32 s5, 11"); E("s_cbranch_scc1 L_sel_m")
    E("s_sub_u32 s22, s5, 6")
    E("s_cmp_lt_u32 s5, 14"); E("s_cbranch_scc1 L_sel_q")
    E("s_sub_u32 s22, s5, 27")
    E("s_cmp_ge_u32 s5, 27"); E("s_cbranch_scc1 L_sel_q")
    E("s_branch L_jobdone")
    E.label("L_sel_wo")
    E("s_mov_b32 s8, s44"); E("s_mov_b32 s9, s45"); E(f"s_mov_b32 s10, {4096*1152}"); E("s_mov_b32 s20, 1152"); E("s_mov_b32 s19, 32")
    E(f"s_mul_i32 s16, s4, {512*1152}"); E("s_lshl_b32 s28, s5, 7"); E("s_add_u32 s16, s16, s28"); E("s_mov_b32 s21, 1"); E("s_branch L_dma")
    E.label("L_sel_w2")
    E("s_mov_b32 s8, s52"); E("s_mov_b32 s9, s53"); E(f"s_mov_b32 s10, {4608*1152}"); E("s_mov_b32 s20, 1152")
    E(f"s_mul_i32 s16, s4, {576*1152}"); E("s_lshl_b32 s28, s5, 7"); E("s_add_u32 s16, s16, s28"); E("s_mov_b32 s21, 1"); E("s_branch L_dma")
    E.label("L_sel_w1")
    E("s_mov_b32 s8, s48"); E("s_mov_b32 s9, s49"); E("s_sub_u32 s28, s5, 9"); E("s_branch L_sel_w13")
    E.label("L_sel_w3")
    E("s_mov_b32 s8, s50"); E("s_mov_b32 s9, s51"); E("s_sub_u32 s28, s5, 18")
    E.label("L_sel_w13")
    E(f"s_mov_b32 s10, {576*9216}"); E("s_mov_b32 s20, 9216")
    E("s_mul_i32 s16, s4, 1152"); E("s_lshl_b32 s28, s28, 7"); E("s_add_u32 s16, s16, s28"); E("s_mov_b32 s21, 1"); E("s_branch L_dma")
    E.label("L_sel_m")
    E("s_lshl_b32 s22, s22, 3"); E("s_add_u32 s22, s22, s4")
    E("s_cmp_ge_u32 s22, 54"); E("s_cbranch_scc1 L_nojob")
    E(f"s_mov_b32 s10, {576*6912}"); E("s_mov_b32 s20, 6912"); E("s_lshl_b32 s16, s22, 7"); E("s_mov_b32 s21, 2"); E("s_branch L_dma")
    E.label("L_sel_q")
    E("s_mov_b32 s8, s42"); E("s_mov_b32 s9, s43"); E(f"s_mov_b32 s10, {576*8192}"); E("s_mov_b32 s20, 8192")
    E("s_lshl_b32 s16, s4, 10"); E("s_lshl_b32 s28, s22, 7"); E("s_add_u32 s16, s16, s28"); E("s_mov_b32 s21, 3")
    E.label("L_dma")
    E("v_lshrrev_b32 v2, 3, v0"); E("v_mul_lo_u32 v2, v2, s20")
    E("v_and_b32 v3, 7, v0"); E("v_bfe_u32 v4, v0, 4, 1"); E("v_lshlrev_b32 v4, 1, v4"); E("v_xor_b32 v3, v3, v4")
    E("v_xor_b32 v4, 4, v3"); E("v_lshl_add_u32 v3, v3, 4, v2"); E("v_lshl_add_u32 v4, v4, 4, v2")
    E("s_lshl_b32 s17, s20, 3"); E("s_mov_b32 s29, s18")
    E("v_lshrrev_b32 v5, 5, v0"); E("v_mul_u32_u24 v5, 1152, v5"); E("v_and_b32 v6, 31, v0"); E("v_lshl_add_u32 v5, v6, 2, v5")
    E("s_cmp_eq_u32 s21, 1"); E("s_cbranch_scc1 L_dma_plain")
    E("s_cmp_eq_u32 s21, 2"); E("s_cselect_b32 s12, s54, s36"); E("s_cselect_b32 s13, s55, s37"); E("s_mov_b32 s14, 2304"); E("s_mov_b32 s15, 0x20000")
    for i in range(9): E(f"buffer_load_dword v{8+i}, v5, s[12:15], 0 offen offset:{i*128}")
    def dma_loop(lab, depth):
        E.label(lab)
        E("s_mov_b32 m0, s29"); E("s_add_u32 s29, s29, 1024")
        E(f"buffer_load_dwordx4 v3, s[8:11], s16 offen {wf} lds"); E("s_add_u32 s16, s16, s17")
        E("s_mov_b32 m0, s29"); E("s_add_u32 s29, s29, 1024")
        E(f"buffer_load_dwordx4 v4, s[8:11], s16 offen {wf} lds"); E("s_add_u32 s16, s16, s17")
        E(f"s_waitcnt vmcnt({depth-2})")
        E("s_sub_u32 s19, s19, 1"); E("s_cmp_lg_u32 s19, 0"); E(f"s_cbranch_scc1 {lab}")
    if gate:
        E("s_cmp_lt_u32 s5, 27"); E("s_cbranch_scc1 L_dma_job")
        E("s_cmp_lg_u32 s21, 3"); E("s_cbranch_scc1 L_dma_job")
        lds_wait(C_GO, 1, 1, 2, sleep=2)
    dma_loop("L_dma_job", DJ)
    E("v_mov_b32 v2, 1"); E("s_mov_b64 exec, 1"); E(f"ds_add_u32 v1, v2 offset:{C_GO}"); E("s_mov_b64 exec, -1")
    mktag()
    stamp(1)
    E("v_add_u32 v7, s23, v5")
    E("s_cmp_eq_u32 s21, 3"); E("s_cbranch_scc1 L_prep_q")
    E(f"s_mov_b32 s28, {LOG2E ^ 0x80000000}")
    for i in range(9):
        E(f"v_lshlrev_b32 v20, 16, v{8+i}"); E(f"v_and_b32 v21, 0xffff0000, v{8+i}")
        E("v_mul_f32 v22, s28, v20"); E("v_mul_f32 v23, s28, v21"); E("v_exp_f32 v22, v22"); E("v_exp_f32 v23, v23")
        E("v_add_f32 v22, 1.0, v22"); E("v_add_f32 v23, 1.0, v23"); E("v_rcp_f32 v22, v22"); E("v_rcp_f32 v23, v23")
        E("v_mul_f32 v20, v20, v22"); E("v_mul_f32 v21, v21, v23"); E(f"v_cvt_pk_bf16_f32 v{8+i}, v20, v21")
        E(f"ds_write_b32 v7, v{8+i} offset:{i*128}")
    E("s_branch L_gemv")
    E.label("L_prep_q")
    for i in range(9):
        E(f"v_lshlrev_b32 v{20+2*i}, 16, v{8+i}"); E(f"v_and_b32 v{21+2*i}, 0xffff0000, v{8+i}")
    E("v_add_f32 v8, v20, v21")
    for r in range(22, 38): E(f"v_add_f32 v8, v8, v{r}")
    row_reduce("v_add_f32", 8, None, (1, 2, 4, 8)); swap_reduce("v_add_f32", 8, 9, 16)
    E("s_mov_b32 s28, 0x3ae38e39"); E("s_mov_b32 s29, 0x3727c5ac")
    E("v_mul_f32 v8, s28, v8")
    E("v_mov_b32 v10, 0")
    for r in range(20, 38): E(f"v_sub_f32 v9, v{r}, v8"); E("v_fmac_f32 v10, v9, v9")
    row_reduce("v_add_f32", 10, None, (1, 2, 4, 8)); swap_reduce("v_add_f32", 10, 9, 16)
    E("v_mul_f32 v10, s28, v10"); rnd(10, 10); E("v_add_f32 v10, s29, v10"); rnd(10, 10)
    E("v_sqrt_f32 v10, v10"); rnd(10, 10); E("v_rcp_f32 v10, v10"); rnd(8, 8)
    for r in range(20, 38):
        E(f"v_sub_f32 v{r}, v{r}, v8"); rnd(r, r); E(f"v_mul_f32 v{r}, v{r}, v10"); rnd(r, r)
    E(f"s_mov_b32 s30, {MOD_OFF}"); E(f"s_mov_b32 s31, {MOD_OFF + 576*8}")
    def modgather():
        E("v_and_b32 v8, 31, v0"); E("v_lshlrev_b32 v8, 4, v8"); E("v_add_u32 v10, 2048, v8")
        def body():
            for i in range(9):
                a_, o_ = (8, i*512) if i < 8 else (10, i*512 - 2048)
                E(f"buffer_load_dwordx4 v[{76+4*i}:{79+4*i}], v{a_}, s[24:27], s30 offen offset:{o_} sc1")
                E(f"buffer_load_dwordx4 v[{112+4*i}:{115+4*i}], v{a_}, s[24:27], s31 offen offset:{o_} sc1")
            E("s_waitcnt vmcnt(0)")
            tagcheck(9, list(range(77, 148, 2)))
        poll(body, sl_long)
        E("v_cmp_gt_u32 vcc, 32, v0"); E("v_mov_b32 v8, 0x03020c0c"); E("v_mov_b32 v9, 0x01000c0c"); E("v_cndmask_b32 v8, v8, v9, vcc")
        for e in range(36): E(f"v_perm_b32 v{40+e}, v{76+2*e}, v{76+2*e}, v8")
    modgather()
    stamp(2)
    for e in range(18):
        E(f"v_add_f32 v{58+e}, 1.0, v{58+e}"); rnd(58+e, 58+e); E(f"v_mul_f32 v{20+e}, v{20+e}, v{58+e}"); rnd(20+e, 20+e)
        E(f"v_add_f32 v{20+e}, v{20+e}, v{40+e}")
    for i in range(9):
        E(f"v_cvt_pk_bf16_f32 v9, v{20+2*i}, v{21+2*i}"); E(f"ds_write_b32 v7, v9 offset:{i*128}")
    E.label("L_gemv")
    def tr_addr(dst, cb_v=None, cb=None):
        pass
    E("v_and_b32 v2, 1, v0"); E("v_mul_u32_u24 v2, 1152, v2"); E("v_lshrrev_b32 v3, 4, v0"); E("v_lshl_add_u32 v2, v3, 4, v2"); E("v_add_u32 v2, s23, v2")
    E("v_lshrrev_b32 v3, 2, v0"); E("v_and_b32 v4, 3, v3"); E("v_lshrrev_b32 v5, 4, v0"); E("v_lshl_add_u32 v4, v5, 3, v4"); E("v_lshlrev_b32 v4, 7, v4")
    E("v_and_b32 v5, 3, v0"); E("v_lshl_add_u32 v4, v5, 3, v4"); E("v_add_u32 v4, s18, v4")
    E("v_bfe_u32 v5, v0, 3, 2")
    for cb in range(4):
        E(f"v_xor_b32 v6, {cb}, v5"); E(f"v_lshl_add_u32 v{8+cb}, v6, 5, v4"); E(f"v_add_u32 v{12+cb}, 36864, v{8+cb}")
    E("s_waitcnt lgkmcnt(0)")
    stamp(3)
    AR = lambda k: 64 + 4 * k
    for k in range(18):
        E(f"ds_read_b128 v[{AR(k)}:{AR(k)+3}], v2 offset:{k*64}")
    def bread(k):
        B0 = 32 + 16 * (k & 1)
        if 68 - 4*k < DJ: E(f"s_waitcnt vmcnt({68 - 4*k})")
        for cb in range(4):
            a = 8 + cb if k < 9 else 12 + cb
            o = (k % 9) * 4096
            E(f"ds_read_b64_tr_b16 v[{B0+4*cb}:{B0+4*cb+1}], v{a} offset:{o}"); E(f"ds_read_b64_tr_b16 v[{B0+4*cb+2}:{B0+4*cb+3}], v{a} offset:{o+512}")
    bread(0)
    for k in range(18):
        if k + 1 < 18: bread(k + 1); E("s_waitcnt lgkmcnt(8)")
        else: E("s_waitcnt lgkmcnt(0)")
        B0 = 32 + 16 * (k & 1)
        for cb in range(4):
            c = "0" if k == 0 else f"v[{16+4*cb}:{19+4*cb}]"
            E(f"v_mfma_f32_16x16x32_bf16 v[{16+4*cb}:{19+4*cb}], v[{AR(k)}:{AR(k)+3}], v[{B0+4*cb}:{B0+4*cb+3}], {c}")
    for cb in range(4):
        E(f"v_cvt_pk_bf16_f32 v{16+4*cb}, v{16+4*cb}, v{17+4*cb}"); E(f"v_mov_b32 v{17+4*cb}, s35")
    E("v_lshlrev_b32 v2, 3, v0")
    E("s_lshl_b32 s28, s22, 9"); E("s_lshl_b32 s29, s4, 12"); E(f"s_add_u32 s29, s29, {Q_OFF}")
    E("s_cmp_eq_u32 s21, 3"); E(f"s_cselect_b32 s29, s29, {MOD_OFF}"); E("s_add_u32 s28, s28, s29")
    E("s_mov_b64 exec, 0xffff")
    for cb in range(4): E(f"buffer_store_dwordx2 v[{16+4*cb}:{17+4*cb}], v2, s[24:27], s28 offen offset:{cb*128} sc1")
    E("s_mov_b64 exec, -1")
    stamp(4)
    E("s_branch L_jobdone")
    E.label("L_dma_plain")
    if wstart == 1: lds_wait(C_Q, 1, 1, 8, sleep=8)
    if wstart == 2: lds_wait(C_CNT, 8, 1, 8, sleep=8)
    dma_loop("L_dma_pl", DW)
    E("s_waitcnt vmcnt(0)")
    E("s_lshl_b32 s28, s3, 2"); E("v_mov_b32 v2, s28"); E("v_mov_b32 v3, 1"); E(f"ds_write_b32 v2, v3 offset:{C_DMAA-4}")
    stamp(1)
    E("s_branch L_jobdone")
    E.label("L_nojob")
    E("v_mov_b32 v2, 1"); E("s_mov_b64 exec, 1"); E(f"ds_add_u32 v1, v2 offset:{C_GO}"); E("s_mov_b64 exec, -1")
    E.label("L_jobdone")
    mktag()
    E("s_cmp_lg_u32 s3, 2"); E("s_cbranch_scc1 L_tailprep")
    E("s_cmp_lt_u32 s5, 9"); E("s_cbranch_scc1 L_tailprep")
    E("s_cmp_ge_u32 s5, 27"); E("s_cbranch_scc1 L_tailprep")
    E("v_and_b32 v6, 31, v0"); E("v_lshrrev_b32 v8, 5, v0"); E("v_mul_u32_u24 v7, 1152, v8"); E("v_lshl_add_u32 v7, v6, 2, v7"); E(f"v_add_u32 v7, {UVBUF}, v7")
    E(f"s_mov_b32 s30, {MOD_OFF + 1728*8}"); E(f"s_mov_b32 s31, {MOD_OFF + 2304*8}")
    lds_wait(C_Q, 1, 1, 8, sleep=8)
    modgather()
    for i in range(9):
        E(f"v_add_f32 v{58+2*i}, 1.0, v{58+2*i}"); E(f"v_add_f32 v{59+2*i}, 1.0, v{59+2*i}")
        E(f"v_cvt_pk_bf16_f32 v9, v{58+2*i}, v{59+2*i}"); E(f"v_cvt_pk_bf16_f32 v10, v{40+2*i}, v{41+2*i}")
        E(f"ds_write_b32 v7, v9 offset:{i*128}"); E(f"ds_write_b32 v7, v10 offset:{2304 + i*128}")
    lds_set(C_UV, 1, 9, 1)
    stamp(5)

    E.label("L_tailprep")
    E("s_cmp_ge_u32 s5, 27"); E("s_cbranch_scc1 L_svc_end")
    lds_wait(C_BAR, 1, 1, 8, sleep=4)
    E("s_mov_b32 s6, s28")
    E("v_bfe_u32 v4, v0, 2, 2"); E("v_lshrrev_b32 v5, 4, v0"); E("v_lshl_add_u32 v4, v5, 3, v4"); E("v_lshlrev_b32 v4, 7, v4")
    E("v_and_b32 v6, 3, v0"); E("v_lshl_add_u32 v4, v6, 3, v4")
    E("v_bfe_u32 v7, v0, 3, 2"); E("v_xor_b32 v7, s3, v7"); E("v_lshl_add_u32 v2, v7, 5, v4")
    E("v_and_b32 v3, 1, v0"); E("v_mul_u32_u24 v3, 1152, v3"); E("v_lshl_add_u32 v3, v5, 4, v3")
    E("v_mul_u32_u24 v4, 1152, v6"); E("v_lshl_add_u32 v4, v5, 4, v4")
    BR = lambda k: 96 + 4 * k
    AT = lambda k: 24 + 4 * k
    def stage_b(slot, nk):
        E(f"v_add_u32 v5, {slot}, v2"); E(f"v_add_u32 v6, {slot + 36864}, v2")
        for k in range(nk):
            a = 5 if k < 9 else 6; o = (k % 9) * 4096
            E(f"ds_read_b64_tr_b16 v[{BR(k)}:{BR(k)+1}], v{a} offset:{o}"); E(f"ds_read_b64_tr_b16 v[{BR(k)+2}:{BR(k)+3}], v{a} offset:{o+512}")
        E("s_waitcnt lgkmcnt(0)")
    def gemv(areg, aoff, nk, d):
        for k in range(min(nk, 15)): E(f"ds_read_b128 v[{AT(k)}:{AT(k)+3}], v{areg} offset:{aoff + k*64}")
        issued = min(nk, 15)
        for k in range(nk):
            E(f"s_waitcnt lgkmcnt({issued - 1 - k})")
            c = "0" if k == 0 else f"v[{d}:{d+3}]"
            E(f"v_mfma_f32_16x16x32_bf16 v[{d}:{d+3}], v[{AT(k)}:{AT(k)+3}], v[{BR(k)}:{BR(k)+3}], {c}")
            if issued < nk:
                E(f"ds_read_b128 v[{AT(issued)}:{AT(issued)+3}], v{areg} offset:{aoff + issued*64}"); issued += 1
    lds_wait(C_DMAA, 1, 1, 8, sleep=8)
    E("s_cmp_lt_u32 s5, 9"); E("s_cbranch_scc1 L_owner")

    stage_b(SLOT_A, 18)
    lds_wait(C_UV, 1, 1, 8, sleep=8)
    E(f"v_add_u32 v4, {UVBUF}, v4")
    gemv(4, 0, 18, 8)
    E("s_sub_u32 s28, s5, 9"); E("s_lshl_b32 s28, s28, 2"); E("s_add_u32 s28, s28, s3")
    E("s_lshl_b32 s16, s28, 8"); E("s_mul_i32 s29, s4, 18432"); E("s_add_u32 s16, s16, s29"); E(f"s_add_u32 s16, s16, {UV_OFF}")
    E("s_lshl_b32 s17, s28, 7"); E("s_mul_i32 s29, s4, 9216"); E("s_add_u32 s17, s17, s29"); E(f"s_add_u32 s17, s17, {G_OFF}")
    E("s_mul_i32 s18, s4, 2304"); E(f"s_add_u32 s18, s18, {Z_OFF}")
    E("v_lshlrev_b32 v5, 4, v0"); E("v_lshlrev_b32 v7, 3, v0")
    E("s_mov_b64 exec, 0xffff")
    intra_store(["buffer_store_dwordx4 v[8:11], v5, s[24:27], s16 offen"])
    E("s_mov_b64 exec, -1")
    E("v_min_u32 v6, 15, v0"); E("v_lshlrev_b32 v6, 4, v6")
    E("s_lshl_b32 s28, s3, 12"); E(f"s_add_u32 s28, s28, {SLOT_B}")
    E("v_add_u32 v3, s28, v3"); E("v_add_u32 v2, s28, v5"); E("v_add_u32 v4, s28, v6")
    stamp(6)
    E("s_barrier")
    stamp(7)
    def zbody():
        E("buffer_load_dwordx4 v[8:11], v5, s[24:27], s18 offen sc1"); E("buffer_load_dwordx4 v[12:15], v5, s[24:27], s18 offen offset:1024 sc1")
        E("buffer_load_dwordx4 v[16:19], v6, s[24:27], s18 offen offset:2048 sc1")
        E("s_waitcnt vmcnt(0)")
        E("v_max3_u32 v20, v8, v9, v10"); E("v_max3_u32 v21, v11, v12, v13"); E("v_max3_u32 v22, v14, v15, v16"); E("v_max3_u32 v23, v17, v18, v19")
        E("v_max3_u32 v20, v20, v21, v22"); E("v_max_u32 v20, v20, v23"); E("v_cmp_eq_u32 vcc, -1, v20")
    poll(zbody, 0)
    stamp(8)
    E("ds_write_b128 v2, v[8:11]"); E("ds_write_b128 v2, v[12:15] offset:1024"); E("ds_write_b128 v4, v[16:19] offset:2048")
    E("s_waitcnt lgkmcnt(0)")
    gemv(3, 0, 18, 8)
    E("s_mov_b64 exec, 0xffff")
    intra_store(["buffer_store_dwordx2 v[8:9], v7, s[24:27], s17 offen"])
    stamp(9)
    E("s_branch L_svc_end")

    E.label("L_owner")
    stage_b(SLOT_A, 16)
    E("s_lshl_b32 s28, s4, 5"); E("s_lshl_b32 s29, s3, 3"); E("s_add_u32 s28, s28, s29")
    E("s_lshl_b32 s16, s28, 10"); E("s_add_u32 s17, s16, 4096")
    E("s_lshl_b32 s28, s28, 4"); E(f"s_add_u32 s28, s28, {ML_OFF}")
    E("v_lshrrev_b32 v5, 5, v0"); E("v_lshlrev_b32 v5, 3, v5")
    def mlbody():
        for s in range(8): E(f"buffer_load_dwordx2 v[{24+2*s}:{25+2*s}], v5, s[24:27], s28 offen offset:{s*16} sc1")
        E("s_waitcnt vmcnt(0)")
        E("v_add_f32 v6, v24, v25")
        for r in range(26, 40): E(f"v_add_f32 v6, v6, v{r}")
        E("v_cmp_u_f32 vcc, v6, v6")
    poll(mlbody, sl_long)
    E("v_max3_f32 v6, v24, v26, v28"); E("v_max3_f32 v6, v6, v30, v32"); E("v_max3_f32 v6, v6, v34, v36"); E("v_max_f32 v6, v6, v38")
    E(f"s_mov_b32 s31, {LOG2E}"); E("v_mov_b32 v7, 0")
    for s in range(8):
        E(f"v_sub_f32 v{8+s}, v{24+2*s}, v6"); E(f"v_mul_f32 v{8+s}, s31, v{8+s}"); E(f"v_exp_f32 v{8+s}, v{8+s}"); E(f"v_fmac_f32 v7, v{8+s}, v{25+2*s}")
    E("v_rcp_f32 v7, v7")
    for s in range(8): E(f"v_mul_f32 v{8+s}, v{8+s}, v7")
    E("s_lshl_b32 s22, s5, 2"); E("s_add_u32 s22, s22, s3")
    E("v_and_b32 v20, 31, v0"); E("v_lshrrev_b32 v6, 1, v20"); E("v_and_b32 v7, 1, v0"); E("v_lshlrev_b32 v20, 2, v20")
    E("v_mul_u32_u24 v21, 1152, v7"); E("v_lshl_add_u32 v21, v6, 1, v21")
    E("v_lshlrev_b32 v5, 3, v6")
    E("s_lshl_b32 s23, s22, 5")
    srd(12, 36, 2304)
    E("buffer_load_ushort v16, v21, s[12:15], s23 offen")
    E("s_lshl_b32 s28, s22, 7"); E(f"s_add_u32 s28, s28, {MOD_OFF + 1152*8}"); E(f"s_add_u32 s29, s28, {1152*8}"); E(f"s_add_u32 s30, s29, {576*8}")
    def gabody():
        for k in range(3): E(f"buffer_load_dwordx2 v[{24+2*k}:{25+2*k}], v5, s[24:27], s{28+k} offen sc1")
        E("s_waitcnt vmcnt(0)")
        tagcheck(6, [25, 27, 29])
    poll(gabody, sl_long)
    E("v_cmp_eq_u32 vcc, 0, v7"); E("v_mov_b32 v5, 0x03020c0c"); E("v_mov_b32 v6, 0x01000c0c"); E("v_cndmask_b32 v5, v5, v6, vcc")
    for k in range(3): E(f"v_perm_b32 v{17+k}, v{24+2*k}, v{24+2*k}, v5")
    E("v_lshlrev_b32 v16, 16, v16"); E("v_add_f32 v18, 1.0, v18"); rnd(18, 18)
    srd(12, 58, 2304)
    E("v_lshlrev_b32 v5, 4, v0"); E("v_lshlrev_b32 v7, 3, v0")
    E("s_lshr_b32 s28, s3, 1"); E("s_mul_i32 s28, s28, 1152"); E("s_and_b32 s29, s3, 1"); E("s_lshl_b32 s29, s29, 9"); E("s_add_u32 s28, s28, s29")
    E("v_add_u32 v6, s28, v7")
    E("s_lshl_b32 s28, s22, 7")
    E("s_mul_i32 s29, s4, 4608"); E("s_add_u32 s29, s29, s28")
    E(f"s_add_u32 s18, s29, {X_OFF}"); E(f"s_add_u32 s19, s29, {Y_OFF}")
    for k in range(8): E(f"s_add_u32 s{64+k if not stamps else 94+k}, s28, {X_OFF + k*4608}")
    XS = lambda k: (64 + k if not stamps else 94 + k)
    E("s_mul_i32 s20, s4, 2304"); E("s_add_u32 s20, s20, s23"); E(f"s_add_u32 s20, s20, {Z_OFF}")
    E("s_mul_i32 s21, s4, 640"); E("s_lshl_b32 s28, s22, 4"); E("s_add_u32 s21, s21, s28"); E(f"s_add_u32 s21, s21, {ST_OFF}")
    lds_wait(C_DMAB, 1, 1, 22, sleep=8)
    stamp(6)
    E("s_barrier")
    stamp(7)
    def obody():
        for s in range(8): E(f"buffer_load_dwordx4 v[{24+4*s}:{27+4*s}], v5, s[24:27], s{16 + s//4} offen offset:{(s%4)*1024} sc1")
        for s in range(8):
            E(f"s_waitcnt vmcnt({7-s})")
            for k in range(4):
                if s == 0: E(f"v_mul_f32 v{56+k}, v8, v{24+k}")
                else: E(f"v_fmac_f32 v{56+k}, v{8+s}, v{24+4*s+k}")
        E("v_add_f32 v60, v56, v57"); E("v_add_f32 v61, v58, v59"); E("v_cmp_u_f32 vcc, v60, v61")
    poll(obody, 0)
    stamp(8)
    E("v_cvt_pk_bf16_f32 v56, v56, v57"); E("v_cvt_pk_bf16_f32 v57, v58, v59")
    E(f"ds_write_b64 v6, v[56:57] offset:{ABUF0}")
    E("s_waitcnt lgkmcnt(0)")
    E("s_barrier")
    gemv(3, ABUF0, 16, 8)
    E("s_mov_b64 exec, 0xffff")
    E("buffer_store_dwordx2 v[8:9], v7, s[24:27], s18 offen sc1")
    E("s_mov_b64 exec, -1")
    stamp(9)
    def sum8(delta):
        def body():
            for k in range(8): E(f"buffer_load_dword v{24+k}, v20, s[24:27], s{XS(k)} offen sc1")
            E("s_waitcnt vmcnt(0)")
            E("v_add_f32 v24, v24, v25"); E("v_add_f32 v26, v26, v27"); E("v_add_f32 v28, v28, v29"); E("v_add_f32 v30, v30, v31")
            E("v_add_f32 v24, v24, v26"); E("v_add_f32 v28, v28, v30"); E("v_add_f32 v24, v24, v28")
            E("v_cmp_u_f32 vcc, v24, v24")
        return body
    poll(sum8(0), 0)
    stamp(10)
    rnd(24, 24); E("v_mul_f32 v24, v17, v24"); rnd(24, 24); E("v_add_f32 v16, v16, v24"); rnd(16, 16)
    E("v_mul_f32 v24, v16, v18")
    E("v_mov_b32_dpp v25, v24 quad_perm:[2,3,2,3] row_mask:0xf bank_mask:0xf")
    E("v_cvt_pk_bf16_f32 v24, v24, v25")
    E("s_mov_b64 exec, 0x33333333")
    intra_store(["buffer_store_dword v24, v21, s[24:27], s20 offen"])
    E("s_mov_b64 exec, -1")
    stamp(11)
    E("v_mov_b32 v26, v16"); E("v_mul_f32 v27, v16, v16")
    for k in (2, 4, 8):
        for r in (26, 27): E(f"v_add_f32_dpp v{r}, v{r}, v{r} row_ror:{k} row_mask:0xf bank_mask:0xf")
    swap_reduce("v_add_f32", 26, 28, 16); swap_reduce("v_add_f32", 27, 28, 16)
    E("s_mov_b64 exec, 3")
    intra_store(["buffer_store_dwordx2 v[26:27], v7, s[24:27], s21 offen"])
    E("s_mov_b64 exec, -1")
    stage_b(SLOT_B, 18)
    for k in range(8): E(f"s_add_u32 s{XS(k)}, s{XS(k)}, {Y_OFF - X_OFF}")
    E("s_barrier")
    stamp(12)
    gemv(3, ABUF1, 18, 8)
    E("s_mov_b64 exec, 0xffff")
    E("buffer_store_dwordx2 v[8:9], v7, s[24:27], s19 offen sc1")
    E("s_mov_b64 exec, -1")
    stamp(13)
    E("s_and_b32 s28, s5, 7"); E("s_cmp_lg_u32 s28, s4"); E("s_cbranch_scc1 L_svc_end")
    poll(sum8(0), 0)
    stamp(14)
    rnd(24, 24); E("v_mul_f32 v24, v19, v24"); rnd(24, 24); E("v_add_f32 v24, v16, v24")
    E("v_mov_b32_dpp v25, v24 quad_perm:[2,3,2,3] row_mask:0xf bank_mask:0xf")
    E("v_cvt_pk_bf16_f32 v24, v24, v25")
    E("s_mov_b64 exec, 0x33333333")
    E("buffer_store_dword v24, v21, s[12:15], s23 offen")
    stamp(15)
    E("s_cmp_lg_u32 s22, 0"); E("s_cbranch_scc1 L_svc_end")
    E("s_mov_b64 exec, 1"); E("v_mov_b32 v24, s35"); E(f"s_mov_b32 s28, {EP_OFF}")
    E("buffer_store_dword v24, v1, s[24:27], s28 offen")
    if probe is not None:
        E(f"s_add_u32 s29, s{70+probe}, 6000")
        E.label("L_probe")
        E("s_sleep 1"); E("s_memrealtime s[92:93]"); E("s_waitcnt lgkmcnt(0)"); E("s_sub_u32 s28, s29, s92"); E("s_cmp_gt_i32 s28, 0"); E("s_cbranch_scc1 L_probe")
    E.label("L_svc_end")
    E("s_waitcnt lgkmcnt(0)")
    if stamps: E("s_add_u32 s3, s3, 8")
    stamp_flush()
    E.label("L_exit")
    body = E.finish()
    hdr = open('cdna_kernels/' + NAME + '.s.ref').read().split('; Override launch')[0] if False else HDR
    return hdr + f"""; @launch grid=(256,1,1) block=(768,1,1) lds=163840
.amdgcn_target "amdgcn-amd-amdhsa--gfx950"
.text
.globl {NAME}_kernel
.p2align 8
.type {NAME}_kernel,@function
{NAME}_kernel:
{body}
    s_endpgm
.section .rodata,"a"
.p2align 6
.amdhsa_kernel {NAME}_kernel
  .amdhsa_next_free_vgpr 168
  .amdhsa_next_free_sgpr 102
  .amdhsa_accum_offset 168
  .amdhsa_group_segment_fixed_size 0
  .amdhsa_kernarg_size 112
  .amdhsa_float_denorm_mode_32 3
  .amdhsa_user_sgpr_count 2
  .amdhsa_user_sgpr_kernarg_segment_ptr 1
  .amdhsa_system_sgpr_workgroup_id_x 1
.end_amdhsa_kernel
"""

HDR = """; adaLN-conditioned GQA decode attention + SwiGLU block, one persistent launch (generated by gen/gen.py)
"""
if __name__ == '__main__':
    kw = eval('dict(' + (sys.argv[2] if len(sys.argv) > 2 else '') + ')')
    open(sys.argv[1], 'w').write(gen(**kw))
```

```python
import sys
from emit import Emit
NAME = 'adaLN_cond__gqa_block_cached__glu_gated_swiglu__decode'

O_OFF, UV_OFF, G_OFF, X_OFF, Y_OFF = 0x0, 0x40000, 0x64000, 0x76000, 0x7F000
Z_OFF, ST_OFF, ML_OFF = 0x88000, 0x8D000, 0x8F000
EP_OFF = 0xC0000
FL_OFF = 0xC1000
Q_OFF, MOD_OFF = 0xC8000, 0xD0000
STAMP_OFF = 0x100000
WS_SIZE = 0x200000
C_BAR, C_Q, C_CNT, C_DMAA, C_DMAB, C_UV, C_GO, C_J1, C_J2, C_KH = 0, 4, 8, 12, 16, 20, 24, 28, 32, 36
FAC, MLB, QBUF, ABUF0, ABUF1, JBUF, OBUF = 64, 128, 256, 1024, 3328, 5632, 8192
SLOT_A, SLOT_B = 16384, 90112
LOG2E = 0x3fb8aa3b
SCALE = 0x3db504f3
JM0, JM1, JQ0 = 9, 16, 24

def gen(D=4, DW=8, stamps=False, force_slow=False, wstart=0, sl_long=2, sl_bar=16, gateq=1, kvf='nt', wf='nt',
        plim=0x2000, probe=None, cpf=1, sl_o=0, sl_z=0, notail=0, DV=4, DQ=4, dbg='', XW=(0,0,0,0,0), XD=1, sl_ml=32, kh=16, sl_q=4, DWJ=None, XG=4, DE=0, NE=0, wpat=0):
    E = Emit()
    uid = [0]
    def L(p):
        uid[0] += 1
        return f"L_{p}_{uid[0]}"
    def stamp(k):
        if stamps:
            E("s_memrealtime s[92:93]"); E("s_waitcnt lgkmcnt(0)"); E(f"s_mov_b32 s{70+k}, s92")
    def stamp_flush():
        if stamps:
            E("s_mov_b64 exec, -1")
            E("v_mov_b32 v4, 0")
            for k in range(16): E(f"v_writelane_b32 v4, s{70+k}, {k}")
            E("s_lshl_b32 s28, s4, 5"); E("s_add_u32 s28, s28, s5"); E("s_mul_i32 s28, s28, 12"); E("s_add_u32 s28, s28, s3")
            E("s_lshl_b32 s28, s28, 6"); E(f"s_add_u32 s28, s28, {STAMP_OFF}")
            E("v_mbcnt_lo_u32_b32 v5, -1, 0"); E("v_mbcnt_hi_u32_b32 v5, -1, v5"); E("v_lshlrev_b32 v5, 2, v5")
            E("s_mov_b64 exec, 0xffff")
            E("buffer_store_dword v4, v5, s[24:27], s28 offen")
    def srd(r, p, size):
        E(f"s_mov_b32 s{r}, s{p}"); E(f"s_mov_b32 s{r+1}, s{p+1}"); E(f"s_mov_b32 s{r+2}, {size}"); E(f"s_mov_b32 s{r+3}, 0x20000")
    def lds_wait(off, val, vz, vt, sleep=2):
        a, b = L("lw"), L("lwd")
        E("s_mov_b32 s7, 0"); E.label(a)
        E(f"ds_read_b32 v{vt}, v{vz} offset:{off}"); E("s_waitcnt lgkmcnt(0)")
        E(f"v_readfirstlane_b32 s28, v{vt}"); E(f"s_cmp_ge_u32 s28, {val}"); E(f"s_cbranch_scc1 {b}")
        if sleep: E(f"s_sleep {sleep}")
        E("s_add_u32 s7, s7, 1"); E(f"s_cmp_lt_u32 s7, {plim*8}"); E(f"s_cbranch_scc1 {a}")
        E.label(b)
    def lds_set(off, vz, vt, val):
        E(f"v_mov_b32 v{vt}, {val}"); E(f"ds_write_b32 v{vz}, v{vt} offset:{off}")
    def lds_inc(off, vz, vt):
        E(f"v_mov_b32 v{vt}, 1"); E("s_mov_b64 exec, 1"); E(f"ds_add_u32 v{vz}, v{vt} offset:{off}"); E("s_mov_b64 exec, -1")
    def soft_barrier(off, vz, vt, sleep=0):
        lds_inc(off, vz, vt); lds_wait(off, 4, vz, vt, sleep)
    def poll(body, sleep=0):
        a, b = L("pl"), L("pld")
        E("s_mov_b32 s7, 0"); E.label(a)
        body()
        E(f"s_cbranch_vccz {b}")
        if sleep: E(f"s_sleep {sleep}")
        E("s_add_u32 s7, s7, 1"); E(f"s_cmp_lt_u32 s7, {plim}"); E(f"s_cbranch_scc1 {a}")
        E.label(b)
    def intra_store(ins):
        a, b = L("is"), L("isd")
        E("s_cmp_eq_u32 s6, 3"); E(f"s_cbranch_scc1 {a}")
        for i in ins: E(i + " sc1")
        E(f"s_branch {b}"); E.label(a)
        for i in ins: E(i)
        E.label(b)
    def rnd(dst, src):
        E(f"v_cvt_pk_bf16_f32 v{dst}, v{src}, v{src}"); E(f"v_and_b32 v{dst}, 0xffff0000, v{dst}")
    def row_reduce(op, r, rors):
        for k in rors: E(f"{op}_dpp v{r}, v{r}, v{r} row_ror:{k} row_mask:0xf bank_mask:0xf")
    def swap_reduce(op, r, t, which):
        E(f"v_mov_b32 v{t}, v{r}"); E(f"v_permlane{which}_swap_b32 v{r}, v{t}"); E(f"{op} v{r}, v{r}, v{t}")
    def mktag():
        E("s_waitcnt lgkmcnt(0)")
        E("s_mul_i32 s35, s34, 0x9E3779B1"); E("s_add_u32 s35, s35, 0x7F4A7C15")
    def tagcheck(acc, regs):
        E(f"v_xor_b32 v{acc}, s35, v{regs[0]}")
        for r in regs[1:]: E(f"v_bitop3_b32 v{acc}, v{acc}, v{r}, s35 bitop3:0xf6")
        E(f"v_cmp_ne_u32 vcc, 0, v{acc}")
    BR = lambda k: 96 + 4 * k
    AT = lambda k: 24 + 4 * k
    def op_addrs():
        E("v_bfe_u32 v4, v0, 2, 2"); E("v_lshrrev_b32 v5, 4, v0"); E("v_lshl_add_u32 v4, v5, 3, v4"); E("v_lshlrev_b32 v4, 7, v4")
        E("v_and_b32 v6, 3, v0"); E("v_lshl_add_u32 v4, v6, 3, v4")
        E("v_bfe_u32 v7, v0, 3, 2"); E("v_xor_b32 v7, s3, v7"); E("v_lshl_add_u32 v2, v7, 5, v4")
        E("v_and_b32 v3, 1, v0"); E("v_mul_u32_u24 v3, 1152, v3"); E("v_lshl_add_u32 v3, v5, 4, v3")
        E("v_mul_u32_u24 v4, 1152, v6"); E("v_lshl_add_u32 v4, v5, 4, v4")
    def stage_b(slot, nk, wait=True):
        E(f"v_add_u32 v5, {slot}, v2"); E(f"v_add_u32 v6, {slot + 36864}, v2")
        for k in range(nk):
            a = 5 if k < 9 else 6; o = (k % 9) * 4096
            E(f"ds_read_b64_tr_b16 v[{BR(k)}:{BR(k)+1}], v{a} offset:{o}"); E(f"ds_read_b64_tr_b16 v[{BR(k)+2}:{BR(k)+3}], v{a} offset:{o+512}")
        if wait: E("s_waitcnt lgkmcnt(0)")
    def gemv(areg, aoff, nk, d):
        for k in range(min(nk, 15)): E(f"ds_read_b128 v[{AT(k)}:{AT(k)+3}], v{areg} offset:{aoff + k*64}")
        issued = min(nk, 15)
        for k in range(nk):
            E(f"s_waitcnt lgkmcnt({issued - 1 - k})")
            c = "0" if k == 0 else f"v[{d}:{d+3}]"
            E(f"v_mfma_f32_16x16x32_bf16 v[{d}:{d+3}], v[{AT(k)}:{AT(k)+3}], v[{BR(k)}:{BR(k)+3}], {c}")
            if issued < nk:
                E(f"ds_read_b128 v[{AT(issued)}:{AT(issued)+3}], v{areg} offset:{aoff + issued*64}"); issued += 1
    def own_map():
        E("v_and_b32 v8, 31, v0"); E("v_min_u32 v9, 7, v8"); E("s_mul_i32 s28, s3, 72")
        E("v_add_u32 v8, s28, v8"); E("s_add_u32 s28, s28, 64"); E("v_add_u32 v9, s28, v9")
        E("v_lshrrev_b32 v11, 5, v0"); E("v_mul_u32_u24 v11, 1152, v11"); E("v_lshl_add_u32 v10, v8, 2, v11"); E("v_lshl_add_u32 v11, v9, 2, v11")
    def modgather(o1, o2):
        E(f"s_mov_b32 s30, {MOD_OFF + o1*8}"); E(f"s_mov_b32 s31, {MOD_OFF + o2*8}")
        E("v_lshlrev_b32 v12, 4, v8"); E("v_lshlrev_b32 v13, 4, v9")
        def body():
            for h in range(2):
                E(f"buffer_load_dwordx4 v[{36+12*h}:{39+12*h}], v12, s[24:27], s{30+h} offen sc1")
                E(f"buffer_load_dwordx4 v[{40+12*h}:{43+12*h}], v12, s[24:27], s{30+h} offen offset:512 sc1")
                E(f"buffer_load_dwordx4 v[{44+12*h}:{47+12*h}], v13, s[24:27], s{30+h} offen sc1")
            E("s_waitcnt vmcnt(0)")
            tagcheck(14, list(range(37, 60, 2)))
        poll(body, sl_long)
        E("v_cmp_gt_u32 vcc, 32, v0"); E("v_mov_b32 v12, 0x03020c0c"); E("v_mov_b32 v13, 0x01000c0c"); E("v_cndmask_b32 v12, v12, v13, vcc")
        for e in range(12): E(f"v_perm_b32 v{24+e}, v{36+2*e}, v{36+2*e}, v12")
    def dma_addrs():
        E("v_lshrrev_b32 v2, 3, v0"); E("v_mul_lo_u32 v2, v2, s20")
        E("v_and_b32 v3, 7, v0"); E("v_bfe_u32 v4, v0, 4, 1"); E("v_lshlrev_b32 v4, 1, v4"); E("v_xor_b32 v3, v3, v4")
        E("v_xor_b32 v4, 4, v3"); E("v_lshl_add_u32 v3, v3, 4, v2"); E("v_lshl_add_u32 v4, v4, 4, v2")
        E("s_lshl_b32 s17, s20, 3")
        if wpat == 1:
            E("v_lshlrev_b32 v3, 4, v0"); E("v_mov_b32 v4, v3"); E("s_mov_b32 s17, 1024")
        if wpat == 2:
            E("v_lshrrev_b32 v2, 4, v0"); E("v_mul_lo_u32 v2, v2, s20"); E("v_and_b32 v3, 15, v0"); E("v_lshl_add_u32 v3, v3, 4, v2"); E("v_mov_b32 v4, v3"); E("s_lshl_b32 s17, s20, 2")
    def dma_loop(lab, depth):
        E.label(lab)
        E("s_mov_b32 m0, s29"); E("s_add_u32 s29, s29, 1024")
        E(f"buffer_load_dwordx4 v3, s[8:11], s16 offen {wf} lds"); E("s_add_u32 s16, s16, s17")
        if depth: E(f"s_waitcnt vmcnt({depth-1})")
        E("s_mov_b32 m0, s29"); E("s_add_u32 s29, s29, 1024")
        E(f"buffer_load_dwordx4 v4, s[8:11], s16 offen {wf} lds"); E("s_add_u32 s16, s16, s17")
        if depth: E(f"s_waitcnt vmcnt({depth-1})")
        E("s_sub_u32 s19, s19, 1"); E("s_cmp_lg_u32 s19, 0"); E(f"s_cbranch_scc1 {lab}")

    E.label("L_code0")
    E("s_load_dwordx16 s[36:51], s[0:1], 0")
    E("s_load_dwordx8 s[52:59], s[0:1], 64")
    E("s_load_dwordx4 s[60:63], s[0:1], 96")
    E("s_cmp_ge_u32 s2, 256"); E("s_cbranch_scc1 L_exit")
    if stamps:
        for k in range(16): E(f"s_mov_b32 s{70+k}, 0")
    E("v_lshrrev_b32 v1, 6, v0"); E("v_and_b32 v0, 63, v0"); E("v_readfirstlane_b32 s3, v1")
    E("s_and_b32 s4, s2, 7"); E("s_lshr_b32 s5, s2, 3")
    E(f"s_sub_u32 s22, s2, {JM0*8}"); E("s_cmp_lt_u32 s22, 54"); E("s_cselect_b32 s21, 2, 0")
    E(f"s_cmp_ge_u32 s5, {JQ0}"); E("s_cselect_b32 s21, 3, s21")
    if 'j' in dbg: E("s_mov_b32 s21, 0")
    E("s_cmp_ge_u32 s3, 8"); E("s_cbranch_scc1 L_service")

    SL = lambda i: 40 + 4 * i
    E("v_and_b32 v3, 3, v0"); E("v_lshrrev_b32 v4, 4, v0"); E("v_lshl_add_u32 v3, v4, 2, v3")
    E("v_bfe_u32 v4, v0, 2, 2"); E("v_lshlrev_b32 v4, 8, v4"); E("v_lshl_add_u32 v2, v3, 4, v4")
    E("s_and_b32 s28, s5, 16"); E("s_lshl_b32 s29, s4, 1"); E("s_add_u32 s28, s28, s29")
    E("s_lshl_b32 s28, s28, 3"); E("s_and_b32 s29, s5, 15"); E("s_add_u32 s28, s28, s29")
    E("s_lshl_b32 s28, s28, 6"); E("s_add_u32 s28, s28, s3"); E("s_lshl_b32 s33, s28, 12")
    E("s_add_u32 s32, s5, s3")
    def soff(u):
        E(f"s_add_u32 s30, s32, {u}"); E("s_and_b32 s30, s30, 7"); E("s_lshl_b32 s30, s30, 15"); E(f"s_add_u32 s{64+u if not stamps else 94+u}, s33, s30")
    SO = lambda u: (64 + u if not stamps else 94 + u)
    soff(0)
    if D > 4: soff(1)
    E("s_mov_b32 s10, 0x4000000"); E("s_mov_b32 s11, 0x20000")
    E("s_waitcnt lgkmcnt(0)")
    E("s_mov_b32 s8, s38"); E("s_mov_b32 s9, s39")
    stamp(0)
    def kload(i): E(f"buffer_load_dwordx4 v[{SL(i)}:{SL(i)+3}], v2, s[8:11], s{SO(i//4)} offen offset:{(i%4)*1024} {kvf}")
    def vload(i): E(f"buffer_load_dwordx4 v[{SL(i)}:{SL(i)+3}], v1, s[12:15], s{SO(i//4)} offen offset:{(i%4)*1024} {kvf}")
    E("s_cmp_eq_u32 s21, 0"); E("s_cbranch_scc1 L_k0")
    E("s_barrier")
    E.label("L_k0")
    for i in range(D): kload(i)
    E("s_cbranch_scc0 L_stream")
    E("s_barrier")
    E("s_branch L_stream")

    E.label("L_service")
    E("v_mov_b32 v1, 0")
    E("s_sub_u32 s3, s3, 8")
    E("v_lshlrev_b32 v2, 2, v0"); E("s_mov_b64 exec, 0xffff"); E("ds_write_b32 v2, v1"); E("s_mov_b64 exec, -1")
    E("s_cmp_eq_u32 s21, 0"); E("s_cbranch_scc1 L_nojob")
    E("s_cmp_eq_u32 s21, 3")
    E("s_cselect_b32 s20, 8192, 6912") if False else (E("s_mov_b32 s20, 6912"), E("s_cselect_b32 s20, 8192, s20"))
    dma_addrs()
    own_map()
    E("s_lshl_b32 s28, s4, 3"); E(f"s_sub_u32 s29, s5, {JQ0}"); E("s_add_u32 s28, s28, s29")
    E("s_cmp_eq_u32 s21, 3"); E("s_cselect_b32 s22, s28, s22")
    E("s_mul_i32 s10, s20, 576"); E("s_mov_b32 s11, 0x20000")
    E("s_mul_i32 s16, s20, 144"); E("s_mul_i32 s16, s16, s3"); E("s_lshl_b32 s28, s22, 7"); E("s_add_u32 s16, s16, s28")
    E("s_mul_i32 s29, s3, 18432"); E(f"s_add_u32 s29, s29, {SLOT_B}"); E("s_mov_b32 s19, 9")
    E("s_mov_b32 s14, 2304"); E("s_mov_b32 s15, 0x20000")
    E("v_lshrrev_b32 v5, 5, v0"); E("v_mul_u32_u24 v5, 1152, v5"); E("v_and_b32 v6, 31, v0"); E("v_lshl_add_u32 v5, v6, 2, v5")
    E("s_waitcnt lgkmcnt(0)")
    stamp(0)
    E("s_cmp_eq_u32 s21, 3")
    E("s_cselect_b32 s8, s42, s56"); E("s_cselect_b32 s9, s43, s57"); E("s_cselect_b32 s12, s36, s54"); E("s_cselect_b32 s13, s37, s55")
    E("buffer_load_dword v16, v10, s[12:15], 0 offen"); E("buffer_load_dword v17, v10, s[12:15], 0 offen offset:128"); E("buffer_load_dword v18, v11, s[12:15], 0 offen")
    for i in range(9): E(f"buffer_load_dword v{60+i}, v5, s[12:15], 0 offen offset:{i*128}")
    if wpat == 1: E("s_lshl_b32 s16, s22, 2"); E("s_add_u32 s16, s16, s3"); E("s_mul_i32 s16, s16, 18432")
    if wpat == 2:
        E("s_and_b32 s28, s22, 1"); E("s_lshl_b32 s28, s28, 2"); E("s_add_u32 s28, s28, s3"); E("s_mul_i32 s28, s28, 72"); E("s_mul_i32 s16, s28, s20")
        E("s_lshr_b32 s28, s22, 1"); E("s_lshl_b32 s28, s28, 8"); E("s_add_u32 s16, s16, s28")
    dma_loop("L_dma_job", 0)
    E(f"s_load_dword s34, s[62:63], {EP_OFF}")
    srd(24, 62, WS_SIZE)
    E("s_barrier")
    stamp(9)
    op_addrs()
    E("s_waitcnt vmcnt(18)")
    for i in range(3):
        E(f"v_and_b32 v{71+2*i}, 0xffff0000, v{16+i}"); E(f"v_lshlrev_b32 v{70+2*i}, 16, v{16+i}")
    E("s_cmp_eq_u32 s21, 3"); E("s_cbranch_scc1 L_prep_q")
    E(f"s_mov_b32 s28, {LOG2E ^ 0x80000000}"); E("s_mov_b32 s29, 0xb2a57060"); E("s_mov_b32 s30, 0x3f317218")
    for e in range(6): E(f"v_mul_f32 v{24+e}, s28, v{70+e}")
    for e in range(6): E(f"v_fma_f32 v{30+e}, v{70+e}, s28, -v{24+e}")
    for e in range(6): E(f"v_fma_f32 v{30+e}, v{70+e}, s29, v{30+e}")
    for e in range(6): E(f"v_min_f32 v{24+e}, 0x42fc0000, v{24+e}")
    for e in range(6): E(f"v_exp_f32 v{24+e}, v{24+e}")
    for e in range(6): E(f"v_mul_f32 v{30+e}, s30, v{30+e}")
    for e in range(6): E(f"v_fma_f32 v{24+e}, v{24+e}, v{30+e}, v{24+e}")
    for e in range(6): E(f"v_add_f32 v{24+e}, 1.0, v{24+e}")
    for e in range(6): E(f"v_rcp_f32 v{30+e}, v{24+e}")
    for e in range(6): E(f"v_mul_f32 v{36+e}, v{70+e}, v{30+e}")
    for e in range(6): E(f"v_fma_f32 v{70+e}, -v{24+e}, v{36+e}, v{70+e}")
    for e in range(6): E(f"v_fma_f32 v{70+e}, v{70+e}, v{30+e}, v{36+e}")
    def write_a(buf):
        for i in range(3): E(f"v_cvt_pk_bf16_f32 v{16+i}, v{70+2*i}, v{71+2*i}")
        E(f"ds_write_b32 v10, v16 offset:{buf}"); E(f"ds_write_b32 v10, v17 offset:{buf+128}"); E(f"ds_write_b32 v11, v18 offset:{buf}")
    write_a(JBUF)
    E("s_waitcnt vmcnt(0)")
    soft_barrier(C_J1, 1, 16)
    stamp(10)
    stage_b(SLOT_B, 18, wait=False)
    E("s_branch L_gemv")
    E.label("L_prep_q")
    for i in range(9):
        E(f"v_lshlrev_b32 v{24+2*i}, 16, v{60+i}"); E(f"v_and_b32 v{25+2*i}, 0xffff0000, v{60+i}")
    E("v_add_f32 v16, v24, v25")
    for r in range(26, 42): E(f"v_add_f32 v16, v16, v{r}")
    row_reduce("v_add_f32", 16, (1, 2, 4, 8)); swap_reduce("v_add_f32", 16, 17, 16)
    E("s_mov_b32 s28, 0x3ae38e39"); E("s_mov_b32 s29, 0x3727c5ac")
    E("v_mul_f32 v16, s28, v16")
    E("v_mov_b32 v18, 0")
    for r in range(24, 42): E(f"v_sub_f32 v17, v{r}, v16"); E("v_fmac_f32 v18, v17, v17")
    row_reduce("v_add_f32", 18, (1, 2, 4, 8)); swap_reduce("v_add_f32", 18, 17, 16)
    E("v_mul_f32 v18, s28, v18"); rnd(18, 18); E("v_add_f32 v18, s29, v18"); rnd(18, 18)
    E("v_sqrt_f32 v18, v18"); rnd(18, 18); E("v_rcp_f32 v19, v18"); rnd(16, 16)
    for r in range(70, 76):
        E(f"v_sub_f32 v{r}, v{r}, v16"); rnd(r, r)
        E(f"v_mul_f32 v17, v{r}, v19"); E(f"v_fma_f32 v{r}, -v18, v17, v{r}"); E(f"v_fma_f32 v{r}, v{r}, v19, v17"); rnd(r, r)
    E("s_waitcnt vmcnt(0)")
    soft_barrier(C_J1, 1, 16)
    stamp(10)
    stage_b(SLOT_B, 18)
    mktag()
    modgather(0, 576)
    stamp(11)
    for e in range(6):
        E(f"v_add_f32 v{30+e}, 1.0, v{30+e}"); rnd(30+e, 30+e); E(f"v_mul_f32 v{70+e}, v{70+e}, v{30+e}"); rnd(70+e, 70+e)
        E(f"v_add_f32 v{70+e}, v{70+e}, v{24+e}")
    write_a(JBUF)
    soft_barrier(C_J2, 1, 16)
    E.label("L_gemv")
    gemv(3, JBUF, 18, 8)
    mktag()
    E("s_lshl_b32 s28, s22, 2"); E("s_add_u32 s28, s28, s3"); E("s_lshl_b32 s28, s28, 7")
    E(f"s_mov_b32 s29, {MOD_OFF}"); E("s_cmp_eq_u32 s21, 3"); E(f"s_cselect_b32 s29, {Q_OFF}, s29"); E("s_add_u32 s28, s28, s29")
    E("v_lshlrev_b32 v2, 3, v0")
    E("v_cvt_pk_bf16_f32 v8, v8, v9"); E("v_mov_b32 v9, s35")
    E("s_mov_b64 exec, 0xffff")
    E("buffer_store_dwordx2 v[8:9], v2, s[24:27], s28 offen sc1")
    E("s_mov_b64 exec, -1")
    lds_inc(C_GO, 1, 16)
    stamp(12)
    E("s_branch L_roles")
    E.label("L_nojob")
    E("s_waitcnt lgkmcnt(0)")
    stamp(0)
    E(f"s_load_dword s34, s[62:63], {EP_OFF}")
    srd(24, 62, WS_SIZE)
    E("s_barrier")
    E.label("L_roles")
    for w in '0123':
        if w in dbg: E(f"s_cmp_eq_u32 s3, {w}"); E("s_cbranch_scc1 L_svc_end")
    E("s_cmp_eq_u32 s3, 3"); E("s_cbranch_scc1 L_s3")
    E("s_cmp_eq_u32 s3, 0"); E("s_cbranch_scc1 L_s0")
    E("s_mov_b32 s11, 0x20000"); E("s_mov_b32 s19, 36")
    E("s_cmp_eq_u32 s3, 2"); E("s_cbranch_scc1 L_selB")
    E(f"s_mov_b32 s29, {SLOT_A}")
    E("s_cmp_ge_u32 s5, 27"); E("s_cbranch_scc1 L_svc_end")
    E("s_cmp_ge_u32 s5, 9"); E("s_cbranch_scc1 L_sel_w13")
    E("s_mov_b32 s8, s44"); E("s_mov_b32 s9, s45"); E(f"s_mov_b32 s10, {4096*1152}"); E("s_mov_b32 s20, 1152"); E("s_mov_b32 s19, 32")
    E(f"s_mul_i32 s16, s4, {512*1152}"); E("s_lshl_b32 s28, s5, 7"); E("s_add_u32 s16, s16, s28"); E("s_branch L_dma")
    E.label("L_selB")
    E("s_cmp_ge_u32 s5, 9"); E("s_cbranch_scc1 L_s2free")
    E(f"s_mov_b32 s29, {SLOT_B}")
    E("s_mov_b32 s8, s52"); E("s_mov_b32 s9, s53"); E(f"s_mov_b32 s10, {4608*1152}"); E("s_mov_b32 s20, 1152")
    E(f"s_mul_i32 s16, s4, {576*1152}"); E("s_lshl_b32 s28, s5, 7"); E("s_add_u32 s16, s16, s28"); E("s_branch L_dma")
    E.label("L_sel_w13")
    E("s_cmp_ge_u32 s5, 18"); E("s_cselect_b32 s8, s50, s48"); E("s_cselect_b32 s9, s51, s49"); E("s_cselect_b32 s28, 18, 9"); E("s_sub_u32 s28, s5, s28")
    E(f"s_mov_b32 s10, {576*9216}"); E("s_mov_b32 s20, 9216")
    E("s_mul_i32 s16, s4, 1152"); E("s_lshl_b32 s28, s28, 7"); E("s_add_u32 s16, s16, s28")
    E.label("L_dma")
    dma_addrs()
    if wpat:
        E("s_mov_b32 s28, s5"); E("s_cmp_ge_u32 s28, 18"); E("s_cselect_b32 s30, 18, 0"); E("s_sub_u32 s28, s28, s30")
        E("s_cmp_ge_u32 s28, 9"); E("s_cselect_b32 s30, 9, 0"); E("s_sub_u32 s28, s28, s30")
        E("s_mul_i32 s30, s4, 9"); E("s_add_u32 s28, s28, s30")
        if wpat == 1: E("s_lshl_b32 s30, s19, 11"); E("s_mul_i32 s16, s28, s30")
        else:
            E("s_cmp_eq_u32 s20, 9216"); E("s_cbranch_scc1 L_wp2")
            E("v_lshlrev_b32 v3, 4, v0"); E("v_mov_b32 v4, v3"); E("s_mov_b32 s17, 1024"); E("s_lshl_b32 s30, s19, 11"); E("s_mul_i32 s16, s28, s30"); E("s_branch L_wp3")
            E.label("L_wp2")
            E("s_and_b32 s30, s28, 1"); E(f"s_mul_i32 s16, s30, {288*9216}"); E("s_lshr_b32 s28, s28, 1"); E("s_lshl_b32 s28, s28, 8"); E("s_add_u32 s16, s16, s28")
            E.label("L_wp3")
    if wstart == 1: lds_wait(C_Q, 1, 1, 8, sleep=8)
    if wstart == 2: lds_wait(C_CNT, 8, 1, 8, sleep=8)
    if not notail:
        if DWJ is not None and DWJ != DW:
            E("s_cmp_eq_u32 s21, 0"); E("s_cbranch_scc1 L_dma_pl")
            dma_loop("L_dma_plj", DWJ); E("s_branch L_dma_end")
        dma_loop("L_dma_pl", DW)
        E.label("L_dma_end")
    E("s_waitcnt vmcnt(0)")
    E("s_lshl_b32 s28, s3, 2"); E("v_mov_b32 v2, s28"); E("v_mov_b32 v3, 1"); E(f"ds_write_b32 v2, v3 offset:{C_DMAA-4}")
    stamp(1)
    E("s_branch L_tailprep")
    E.label("L_s2free")
    if cpf:
        E("s_cmp_lg_u32 s5, 20"); E("s_cbranch_scc1 L_tailprep")
        E("s_getpc_b64 s[8:9]"); E.label("L_pc")
        E("s_sub_u32 s8, s8, L_pc-L_code0"); E("s_subb_u32 s9, s9, 0"); E("s_mov_b32 s10, L_exit-L_code0")
        E("v_lshlrev_b32 v2, 4, v0"); E("s_mov_b32 s16, 0")
        E.label("L_cpf")
        E("buffer_load_dwordx4 v[8:11], v2, s[8:11], s16 offen"); E("s_add_u32 s16, s16, 1024"); E("s_cmp_lt_u32 s16, s10"); E("s_cbranch_scc1 L_cpf")
        E("s_waitcnt vmcnt(0)")
    E("s_branch L_tailprep")

    E.label("L_s0")
    mktag()
    E("v_lshlrev_b32 v2, 4, v0")
    if kh:
        E("s_cmp_eq_u32 s21, 3"); E("s_cbranch_scc1 L_qgo")
        lds_wait(C_KH, 1, 1, 8, sleep=8)
        E.label("L_qgo")
    E("s_lshl_b32 s28, s4, 12"); E("s_bfe_u32 s29, s5, 0x10003"); E("s_lshl_b32 s29, s29, 11"); E("s_add_u32 s28, s28, s29"); E(f"s_add_u32 s28, s28, {Q_OFF}")
    def qbody():
        E("buffer_load_dwordx4 v[8:11], v2, s[24:27], s28 offen sc1"); E("buffer_load_dwordx4 v[12:15], v2, s[24:27], s28 offen offset:1024 sc1")
        E("s_waitcnt vmcnt(0)")
        tagcheck(16, [9, 11, 13, 15])
    poll(qbody, sl_q)
    E("s_mov_b32 s29, 0x05040100"); E("s_cmp_ge_u32 s5, 16"); E("s_cselect_b32 s29, 0x07060302, s29")
    E("v_perm_b32 v8, v10, v8, s29"); E("v_perm_b32 v9, v14, v12, s29"); E("v_lshlrev_b32 v3, 2, v0")
    E(f"ds_write_b32 v3, v8 offset:{QBUF}"); E(f"ds_write_b32 v3, v9 offset:{QBUF+256}")
    lds_set(C_Q, 1, 10, 1)
    stamp(3)
    lds_wait(C_BAR, 1, 1, 8, sleep=4)
    E("s_mov_b32 s6, s28")
    lds_wait(C_CNT, 8, 1, 8, sleep=4)
    E("v_and_b32 v3, 15, v0"); E("v_lshlrev_b32 v4, 3, v3"); E(f"ds_read_b64 v[8:9], v4 offset:{MLB}")
    E(f"s_mov_b32 s31, {LOG2E}")
    E("s_waitcnt lgkmcnt(0)")
    E("v_mov_b32 v10, v8"); row_reduce("v_max_f32", 10, (2, 4, 8))
    E("v_sub_f32 v12, v8, v10"); E("v_mul_f32 v12, s31, v12"); E("v_exp_f32 v12, v12"); E("v_mul_f32 v11, v12, v9")
    row_reduce("v_add_f32", 11, (2, 4, 8))
    E("v_and_b32 v5, 1, v0"); E("v_lshlrev_b32 v5, 5, v5"); E("v_lshrrev_b32 v6, 1, v3"); E("v_lshl_add_u32 v5, v6, 2, v5")
    E(f"ds_write_b32 v5, v12 offset:{FAC}")
    E("s_lshl_b32 s28, s4, 5"); E("s_add_u32 s28, s28, s5"); E("s_lshl_b32 s28, s28, 4"); E(f"s_add_u32 s28, s28, {ML_OFF}")
    E("s_mov_b64 exec, 3")
    intra_store(["buffer_store_dwordx2 v[10:11], v4, s[24:27], s28 offen"])
    E("s_mov_b64 exec, -1")
    E("s_waitcnt lgkmcnt(0)")
    stamp(4)
    E("s_branch L_tailprep")

    E.label("L_s3")
    E("v_lshlrev_b32 v2, 4, v0")
    for k in range(4): E(f"v_mov_b32 v{4+k}, -1")
    E("s_mul_i32 s28, s2, 3072")
    for k in range(3): E(f"buffer_store_dwordx4 v[4:7], v2, s[24:27], s28 offen offset:{k*1024} sc1")
    E("s_getreg_b32 s29, hwreg(HW_REG_XCC_ID)"); E("s_and_b32 s29, s29, 15")
    mktag()
    E("v_mov_b32 v8, s29"); E("v_mov_b32 v9, s35")
    E("s_lshl_b32 s28, s4, 5"); E("s_add_u32 s28, s28, s5"); E("s_lshl_b32 s28, s28, 3"); E(f"s_add_u32 s28, s28, {FL_OFF}")
    E("s_waitcnt vmcnt(0)")
    stamp(1)
    E("s_mov_b64 exec, 1"); E("buffer_store_dwordx2 v[8:9], v1, s[24:27], s28 offen sc1"); E("s_mov_b64 exec, -1")
    if 'q' in dbg: E("s_branch L_svc_end")
    lds_wait(C_CNT, 8, 1, 8, sleep=8)
    E(f"s_mov_b32 s30, {FL_OFF}")
    def barbody():
        E("buffer_load_dwordx4 v[8:11], v2, s[24:27], s30 offen sc1"); E("buffer_load_dwordx4 v[12:15], v2, s[24:27], s30 offen offset:1024 sc1")
        E("s_waitcnt vmcnt(0)")
        tagcheck(16, [9, 11, 13, 15])
    poll(barbody, sl_bar)
    E("s_cmp_ge_u32 s4, 4"); E("s_cselect_b64 vcc, -1, 0")
    E("v_cndmask_b32 v8, v8, v12, vcc"); E("v_cndmask_b32 v10, v10, v14, vcc")
    E("v_xor_b32 v8, s29, v8"); E("v_bitop3_b32 v8, v8, v10, s29 bitop3:0xf6"); E("v_cmp_ne_u32 vcc, 0, v8")
    E("s_and_b32 s30, s4, 3"); E("s_lshl_b32 s30, s30, 4"); E("s_lshr_b64 s[30:31], vcc, s30"); E("s_and_b32 s30, s30, 0xffff")
    E(f"s_cselect_b32 s6, 1, {1 if force_slow else 3}")
    E("v_mov_b32 v8, s6"); E(f"ds_write_b32 v1, v8 offset:{C_BAR}")
    stamp(2)
    E("s_branch L_tailprep")

    E.label("L_stream")
    xd = XD if any(XW) else 0
    if xd:
        E(f"s_mov_b32 s23, {XW[0]}")
        for lo, n in zip((9, 16, 24, 27), XW[1:]):
            E(f"s_cmp_ge_u32 s5, {lo}"); E(f"s_cselect_b32 s23, {n}, s23")
    def setscc(): pass
    tp = [0]
    def throttle(d):
        thr = [0, 4, 2, 6, 1, 5, 3, 7][(tp[0] // XG) % 8]; tp[0] += 1
        if xd and thr < max(XW):
            if thr < min(XW): E(f"s_waitcnt vmcnt({d-1+xd})")
            else:
                a = L("th"); E(f"s_cmp_gt_u32 s23, {thr}"); E(f"s_waitcnt vmcnt({d-1+xd})"); E(f"s_cbranch_scc1 {a}"); E(f"s_waitcnt vmcnt({d-1})"); E.label(a)
        else: E(f"s_waitcnt vmcnt({d-1})")
    for u in range(2 if D > 4 else 1, 8): soff(u)
    srd(12, 40, 0x4000000); srd(24, 62, WS_SIZE)
    E("v_lshlrev_b32 v1, 4, v0")
    E("v_bfe_u32 v4, v0, 3, 1"); E("v_lshlrev_b32 v4, 8, v4"); E("v_lshl_add_u32 v36, v3, 4, v4")
    if gateq:
        E("s_cmp_lg_u32 s21, 3"); E("s_cbranch_scc1 L_kgo")
        E("v_mov_b32 v3, 0")
        lds_wait(C_GO, 4, 3, 4, sleep=4)
        E.label("L_kgo")
    setscc()
    for i in range(D, 32):
        throttle(D); kload(i)
        if kh and i == kh: E("v_mov_b32 v3, 0"); E("v_mov_b32 v4, 1"); E(f"ds_write_b32 v3, v4 offset:{C_KH}")
    stamp(1)
    E("v_mov_b32 v2, 0")
    if 'q' not in dbg: lds_wait(C_Q, 1, 2, 3)
    E(f"ds_read_b128 v[20:23], v36 offset:{QBUF}")
    E(f"s_mov_b32 s30, {SCALE}"); E(f"s_mov_b32 s31, {LOG2E}")
    E("v_mov_b32 v36, 0xff800000")
    E("s_waitcnt lgkmcnt(0)")
    stamp(2)
    setscc()
    st = dict(issued=0)
    def qk_mfma(u):
        n = (28 - 4*u) + st['issued']
        if n < D + xd + st['issued'] and n < 63: E(f"s_waitcnt vmcnt({n})")
        for i in range(4*u, 4*u+4):
            E(f"v_mfma_f32_16x16x32_bf16 v[{SL(i)}:{SL(i)+3}], v[{SL(i)}:{SL(i)+3}], v[20:23], 0")
    def qk_post(u):
        if 'c' in dbg: return
        T = [24, 25, 26, 27]
        for k in range(4):
            for a in range(4):
                r = SL(4*u + a) + k
                if k == 0: E(f"v_mov_b32_dpp v{T[a]}, v{r} quad_perm:[0,0,0,0] row_mask:0xf bank_mask:0xf")
                else: E(f"v_add_f32_dpp v{T[a]}, v{r}, v{T[a]} quad_perm:[{k},{k},{k},{k}] row_mask:0xf bank_mask:0xf")
        E("v_cvt_pk_bf16_f32 v28, v24, v25"); E("v_cvt_pk_bf16_f32 v29, v26, v27")
        E("v_lshlrev_b32 v24, 16, v28"); E("v_and_b32 v25, 0xffff0000, v28")
        E("v_lshlrev_b32 v26, 16, v29"); E("v_and_b32 v27, 0xffff0000, v29")
        for a in range(4): E(f"v_mul_f32 v{T[a]}, s30, v{T[a]}")
        E(f"v_cvt_pk_bf16_f32 v{4+2*u}, v24, v25"); E(f"v_cvt_pk_bf16_f32 v{5+2*u}, v26, v27")
        E("v_max3_f32 v36, v24, v25, v36"); E("v_max3_f32 v36, v26, v27, v36")
    def vissue(d=None):
        i = st['issued']
        d = DV if d is None else d
        throttle(d); vload(i); st['issued'] += 1
    def expo(k):
        if 'c' in dbg: return
        E(f"v_lshlrev_b32 v24, 16, v{4+k}"); E(f"v_and_b32 v25, 0xffff0000, v{4+k}")
        E("v_fma_f32 v24, v24, s31, -v37"); E("v_fma_f32 v25, v25, s31, -v37")
        E("v_exp_f32 v24, v24"); E("v_exp_f32 v25, v25")
        E("v_add_f32 v38, v38, v24"); E("v_add_f32 v39, v39, v25")
        E(f"v_cvt_pk_bf16_f32 v{4+k}, v24, v25")
    qk_mfma(0); qk_mfma(1); qk_post(0)
    for _ in range(4): vissue(DQ)
    qk_mfma(2); qk_post(1)
    for _ in range(1 if DQ <= 4 else 4): vissue(DQ)
    for u in range(3, 8):
        qk_mfma(u); qk_post(u-1);
        if DQ > 4 or u % 2 == 0: vissue(DQ)
    qk_post(7)
    swap_reduce("v_max_f32", 36, 24, 16); swap_reduce("v_max_f32", 36, 24, 32)
    rnd(36, 36)
    E("v_mul_f32 v37, s31, v36"); E("v_mov_b32 v38, 0"); E("v_mov_b32 v39, 0")
    for k in range(16):
        if k % 4 == 0: vissue(DQ)
        expo(k)
    E("v_add_f32 v37, v38, v39")
    swap_reduce("v_add_f32", 37, 24, 16); swap_reduce("v_add_f32", 37, 24, 32)
    E("s_lshl_b32 s28, s3, 4"); E("v_add_u32 v3, s28, v0"); E("v_mov_b32 v24, 1")
    E("s_mov_b64 exec, 0x101"); E(f"ds_write_b64 v3, v[36:37] offset:{MLB}")
    E("s_mov_b64 exec, 1"); E(f"ds_add_u32 v2, v24 offset:{C_CNT}")
    E("s_mov_b64 exec, -1")
    stamp(3)
    E("v_and_b32 v3, 1, v0"); E("v_cmp_eq_u32 vcc, 1, v3")
    E("v_mov_b32 v32, 0x0c0c0100"); E("v_mov_b32 v33, 0x01000c0c"); E("v_cndmask_b32 v32, v32, v33, vcc")
    E("v_mov_b32 v34, 0x0c0c0302"); E("v_mov_b32 v33, 0x03020c0c"); E("v_cndmask_b32 v33, v34, v33, vcc")
    E("v_bfe_u32 v3, v0, 1, 2"); E("v_mov_b32 v34, 0x0c0c0c0c")
    for r in range(4):
        E(f"v_cmp_eq_u32 vcc, {r}, v3"); E(f"v_cndmask_b32 v{24+r}, v34, v32, vcc"); E(f"v_cndmask_b32 v{28+r}, v34, v33, vcc")
    E("v_and_b32 v3, 15, v0"); E("v_lshlrev_b32 v3, 5, v3"); E("v_bfe_u32 v2, v0, 4, 1"); E("v_lshl_add_u32 v3, v2, 4, v3")
    E("v_lshrrev_b32 v2, 5, v0"); E("v_lshl_add_u32 v3, v2, 9, v3"); E("s_lshl_b32 s28, s3, 10"); E("v_add_u32 v3, s28, v3")
    setscc()
    pv = dict(done=0)
    def pv_prep(i):
        A0 = 32 + 4 * (i & 1)
        for r in range(4): E(f"v_perm_b32 v{A0+r}, v{4+i//2}, v{4+i//2}, v{24+4*(i&1)+r}")
    def pv_mfma(i):
        A0 = 32 + 4 * (i & 1)
        c = "0" if i == 0 else "v[20:23]"
        E(f"v_mfma_f32_16x16x32_bf16 v[20:23], v[{A0}:{A0+3}], v[{SL(i)}:{SL(i)+3}], {c}")
    while st['issued'] < 32:
        vissue(DV + (DE if st['issued'] >= 32 - NE else 0))
        n = 0
        while pv['done'] <= st['issued'] - 1 - DV - xd - (DE if st['issued'] > 32 - NE else 0) and n < 3:
            pv_prep(pv['done']); pv_mfma(pv['done']); pv['done'] += 1; n += 1
    while pv['done'] < 32:
        i = pv['done']
        pv_prep(i)
        if 31 - i < DV + xd + DE: E(f"s_waitcnt vmcnt({31-i})")
        pv_mfma(i); pv['done'] += 1
    E(f"ds_write_b128 v3, v[20:23] offset:{OBUF}")
    stamp(4)
    E("s_waitcnt lgkmcnt(0)")
    E("s_barrier")
    E("s_cmp_lg_u32 s3, 0"); E("s_cbranch_scc1 L_noreduce")
    for w in range(8): E(f"ds_read_b128 v[{40+4*w}:{43+4*w}], v1 offset:{OBUF + w*1024}")
    E("v_lshrrev_b32 v2, 5, v0"); E("v_lshlrev_b32 v2, 5, v2")
    E(f"ds_read_b128 v[4:7], v2 offset:{FAC}"); E(f"ds_read_b128 v[8:11], v2 offset:{FAC+16}")
    E("v_mov_b32 v3, 0"); E(f"ds_read_b32 v3, v3 offset:{C_BAR}")
    E("s_lshl_b32 s28, s4, 5"); E("s_add_u32 s28, s28, s5"); E("s_lshl_b32 s28, s28, 10")
    E("s_waitcnt lgkmcnt(0)")
    E("v_readfirstlane_b32 s6, v3")
    for k in range(4): E(f"v_mul_f32 v{12+k}, v4, v{40+k}")
    for w in range(1, 8):
        for k in range(4): E(f"v_fmac_f32 v{12+k}, v{4+w}, v{40+4*w+k}")
    intra_store(["buffer_store_dwordx4 v[12:15], v1, s[24:27], s28 offen"])
    stamp(5)
    E.label("L_noreduce")
    if 't' in dbg: E("s_branch L_sdone")
    E("s_cmp_ge_u32 s5, 9"); E("s_cbranch_scc1 L_sdone")
    E("s_cmp_ge_u32 s3, 5"); E("s_cbranch_scc1 L_sdone")
    E("s_lshl_b32 s28, s3, 6"); E("v_add_u32 v2, s28, v0"); E("v_min_u32 v2, 287, v2")
    E("v_lshlrev_b32 v3, 5, v2")
    E("v_lshlrev_b32 v1, 4, v2")
    E("v_lshlrev_b32 v2, 2, v2")
    E("s_mul_i32 s16, s4, 18432"); E(f"s_add_u32 s16, s16, {UV_OFF}"); E("s_add_u32 s17, s16, 9216")
    E("s_mul_i32 s18, s4, 9216"); E(f"s_add_u32 s18, s18, {G_OFF}"); E("s_add_u32 s19, s18, 4608")
    E("s_mul_i32 s20, s4, 640"); E(f"s_add_u32 s20, s20, {ST_OFF}")
    def uvbody():
        E("buffer_load_dwordx4 v[40:43], v3, s[24:27], s16 offen sc1"); E("buffer_load_dwordx4 v[44:47], v3, s[24:27], s16 offen offset:16 sc1")
        E("buffer_load_dwordx4 v[48:51], v3, s[24:27], s17 offen sc1"); E("buffer_load_dwordx4 v[52:55], v3, s[24:27], s17 offen offset:16 sc1")
        E("s_waitcnt vmcnt(0)")
        E("v_add_f32 v4, v40, v41")
        for r in range(42, 56): E(f"v_add_f32 v4, v4, v{r}")
        E("v_cmp_u_f32 vcc, v4, v4")
    E("s_barrier")
    poll(uvbody, 2)
    E("v_min_u32 v4, 35, v0"); E("v_lshlrev_b32 v4, 4, v4")
    def stbody():
        E("buffer_load_dwordx4 v[8:11], v4, s[24:27], s20 offen sc1"); E("s_waitcnt vmcnt(0)")
        E("v_add_f32 v5, v8, v9"); E("v_add_f32 v6, v10, v11"); E("v_cmp_u_f32 vcc, v5, v6")
    poll(stbody, 1)
    E("v_cmp_gt_u32 vcc, 36, v0")
    for r in range(8, 12): E(f"v_cndmask_b32 v{r}, 0, v{r}, vcc")
    for k in (1, 2, 4, 8):
        for r in range(8, 12): E(f"v_add_f32_dpp v{r}, v{r}, v{r} row_ror:{k} row_mask:0xf bank_mask:0xf")
    for wh in (16, 32):
        for r in range(8, 12): E(f"v_mov_b32 v{r+4}, v{r}")
        for r in range(8, 12): E(f"v_permlane{wh}_swap_b32 v{r}, v{r+4}")
        for r in range(8, 12): E(f"v_add_f32 v{r}, v{r}, v{r+4}")
    E("s_mov_b32 s28, 0x3ae38e39")
    E("s_mov_b32 s29, 0x3727c5ac")
    for b in range(2):
        s1, s2 = 8 + 2*b, 9 + 2*b
        E(f"v_mul_f32 v{s1}, s28, v{s1}"); E(f"v_mul_f32 v{s2}, s28, v{s2}")
        E(f"v_fma_f32 v{s2}, -v{s1}, v{s1}, v{s2}"); E(f"v_max_f32 v{s2}, 0, v{s2}")
        rnd(s2, s2); E(f"v_add_f32 v{s2}, s29, v{s2}"); rnd(s2, s2)
        E(f"v_sqrt_f32 v{s2}, v{s2}"); rnd(s2, s2); E(f"v_rcp_f32 v{s2}, v{s2}")
        rnd(s1, s1); E(f"v_mul_f32 v{s1}, v{s1}, v{s2}")
    for base in (40, 44, 48, 52):
        for b in range(2): E(f"v_fma_f32 v{base+2+b}, -v{8+2*b}, v{base+b}, v{base+2+b}")
    E(f"s_mov_b32 s28, {LOG2E ^ 0x80000000}")
    stamp(6)
    def gbody():
        E("buffer_load_dwordx4 v[12:15], v1, s[24:27], s18 offen sc1"); E("buffer_load_dwordx4 v[16:19], v1, s[24:27], s19 offen sc1")
        E("s_waitcnt vmcnt(0)")
        for e in range(4):
            c, b = e >> 1, e & 1
            E(f"v_fma_f32 v{12+e}, v{12+e}, v{9+2*b}, v{40+4*c+2+b}")
            E(f"v_fma_f32 v{16+e}, v{16+e}, v{9+2*b}, v{48+4*c+2+b}")
        for e in range(4): E(f"v_mul_f32 v{16+e}, v{16+e}, v{12+e}")
        E("v_add_f32 v20, v16, v17"); E("v_add_f32 v21, v18, v19"); E("v_cmp_u_f32 vcc, v20, v21")
    poll(gbody, 0)
    for e in range(4): E(f"v_mul_f32 v{12+e}, s28, v{12+e}")
    for e in range(4): E(f"v_exp_f32 v{12+e}, v{12+e}")
    for e in range(4): E(f"v_add_f32 v{12+e}, 1.0, v{12+e}")
    for e in range(4): E(f"v_rcp_f32 v{12+e}, v{12+e}")
    for e in range(4): E(f"v_mul_f32 v{16+e}, v{16+e}, v{12+e}")
    E("v_cvt_pk_bf16_f32 v12, v16, v18"); E("v_cvt_pk_bf16_f32 v13, v17, v19")
    E(f"ds_write_b32 v2, v12 offset:{ABUF1}"); E(f"ds_write_b32 v2, v13 offset:{ABUF1+1152}")
    E("s_waitcnt lgkmcnt(0)")
    E("s_barrier")
    stamp(7)
    E.label("L_sdone")
    stamp_flush(); E("s_endpgm")

    E.label("L_tailprep")
    if 't' in dbg: E("s_branch L_svc_end")
    E("s_cmp_ge_u32 s5, 27"); E("s_cbranch_scc1 L_svc_end")
    lds_wait(C_BAR, 1, 1, 8, sleep=4)
    E("s_mov_b32 s6, s28")
    mktag()
    op_addrs()
    E("s_cmp_lt_u32 s5, 9"); E("s_cbranch_scc1 L_owner")

    own_map()
    modgather(1728, 2304)
    for i in range(3):
        E(f"v_add_f32 v{30+2*i}, 1.0, v{30+2*i}"); E(f"v_add_f32 v{31+2*i}, 1.0, v{31+2*i}")
        E(f"v_cvt_pk_bf16_f32 v12, v{30+2*i}, v{31+2*i}"); E(f"v_cvt_pk_bf16_f32 v13, v{24+2*i}, v{25+2*i}")
        a_, o_ = ((10, 0), (10, 128), (11, 0))[i]
        E(f"ds_write_b32 v{a_}, v12 offset:{ABUF0+o_}"); E(f"ds_write_b32 v{a_}, v13 offset:{ABUF1+o_}")
    lds_inc(C_UV, 1, 8)
    lds_wait(C_DMAA, 1, 1, 8, sleep=8)
    stage_b(SLOT_A, 18)
    lds_wait(C_UV, 4, 1, 8, sleep=4)
    gemv(4, ABUF0, 18, 8)
    E("s_sub_u32 s28, s5, 9"); E("s_lshl_b32 s28, s28, 2"); E("s_add_u32 s28, s28, s3")
    E("s_lshl_b32 s16, s28, 8"); E("s_mul_i32 s29, s4, 18432"); E("s_add_u32 s16, s16, s29"); E(f"s_add_u32 s16, s16, {UV_OFF}")
    E("s_lshl_b32 s17, s28, 7"); E("s_mul_i32 s29, s4, 9216"); E("s_add_u32 s17, s17, s29"); E(f"s_add_u32 s17, s17, {G_OFF}")
    E("s_mul_i32 s18, s4, 2304"); E(f"s_add_u32 s18, s18, {Z_OFF}")
    E("v_lshlrev_b32 v5, 4, v0"); E("v_lshlrev_b32 v7, 3, v0")
    E("s_mov_b64 exec, 0xffff")
    intra_store(["buffer_store_dwordx4 v[8:11], v5, s[24:27], s16 offen"])
    E("s_mov_b64 exec, -1")
    E("v_min_u32 v6, 15, v0"); E("v_lshlrev_b32 v6, 4, v6")
    E("s_lshl_b32 s28, s3, 12"); E(f"s_add_u32 s28, s28, {SLOT_B}")
    E("v_add_u32 v3, s28, v3"); E("v_add_u32 v2, s28, v5"); E("v_add_u32 v4, s28, v6")
    stamp(6)
    E("s_barrier")
    stamp(7)
    def zbody():
        E("buffer_load_dwordx4 v[8:11], v5, s[24:27], s18 offen sc1"); E("buffer_load_dwordx4 v[12:15], v5, s[24:27], s18 offen offset:1024 sc1")
        E("buffer_load_dwordx4 v[16:19], v6, s[24:27], s18 offen offset:2048 sc1")
        E("s_waitcnt vmcnt(0)")
        E("v_max3_u32 v20, v8, v9, v10"); E("v_max3_u32 v21, v11, v12, v13"); E("v_max3_u32 v22, v14, v15, v16"); E("v_max3_u32 v23, v17, v18, v19")
        E("v_max3_u32 v20, v20, v21, v22"); E("v_max_u32 v20, v20, v23"); E("v_cmp_eq_u32 vcc, -1, v20")
    poll(zbody, sl_z)
    stamp(8)
    E("ds_write_b128 v2, v[8:11]"); E("ds_write_b128 v2, v[12:15] offset:1024"); E("ds_write_b128 v4, v[16:19] offset:2048")
    E("s_waitcnt lgkmcnt(0)")
    gemv(3, 0, 18, 8)
    E("s_mov_b64 exec, 0xffff")
    intra_store(["buffer_store_dwordx2 v[8:9], v7, s[24:27], s17 offen"])
    stamp(13)
    E("s_branch L_svc_end")

    E.label("L_owner")
    lds_wait(C_DMAA, 1, 1, 8, sleep=8)
    stage_b(SLOT_A, 16)
    E("s_lshl_b32 s28, s4, 5"); E("s_lshl_b32 s29, s3, 3"); E("s_add_u32 s28, s28, s29")
    E("s_lshl_b32 s16, s28, 10"); E("s_add_u32 s17, s16, 4096")
    E("s_lshl_b32 s28, s28, 4"); E(f"s_add_u32 s28, s28, {ML_OFF}")
    E("v_and_b32 v5, 15, v0"); E("v_lshlrev_b32 v5, 3, v5")
    def mlbody():
        E("buffer_load_dwordx2 v[24:25], v5, s[24:27], s28 offen sc1"); E("s_waitcnt vmcnt(0)"); E("v_cmp_u_f32 vcc, v24, v25")
    poll(mlbody, sl_ml)
    E(f"s_mov_b32 s31, {LOG2E}")
    E("v_mov_b32 v6, v24"); row_reduce("v_max_f32", 6, (2, 4, 8))
    E("v_sub_f32 v6, v24, v6"); E("v_mul_f32 v6, s31, v6"); E("v_exp_f32 v6, v6"); E("v_mul_f32 v7, v6, v25")
    row_reduce("v_add_f32", 7, (2, 4, 8))
    E("v_rcp_f32 v7, v7"); E("v_lshrrev_b32 v5, 5, v0"); E("v_lshlrev_b32 v5, 2, v5"); E("v_mul_f32 v6, v6, v7")
    for s_ in range(8): E(f"ds_bpermute_b32 v{8+s_}, v5, v6 offset:{8*s_}")
    E("s_waitcnt lgkmcnt(0)")
    E("s_lshl_b32 s22, s5, 2"); E("s_add_u32 s22, s22, s3")
    E("v_and_b32 v20, 31, v0"); E("v_lshrrev_b32 v6, 1, v20"); E("v_and_b32 v7, 1, v0"); E("v_lshlrev_b32 v20, 2, v20")
    E("v_mul_u32_u24 v21, 1152, v7"); E("v_lshl_add_u32 v21, v6, 1, v21")
    E("v_lshlrev_b32 v5, 3, v6")
    E("s_lshl_b32 s23, s22, 5")
    srd(12, 36, 2304)
    E("buffer_load_ushort v16, v21, s[12:15], s23 offen")
    E("s_lshl_b32 s28, s22, 7"); E(f"s_add_u32 s28, s28, {MOD_OFF + 1152*8}"); E(f"s_add_u32 s29, s28, {1152*8}"); E(f"s_add_u32 s30, s29, {576*8}")
    def gabody():
        for k in range(3): E(f"buffer_load_dwordx2 v[{24+2*k}:{25+2*k}], v5, s[24:27], s{28+k} offen sc1")
        E("s_waitcnt vmcnt(0)")
        tagcheck(6, [25, 27, 29])
    poll(gabody, 8)
    E("v_cmp_eq_u32 vcc, 0, v7"); E("v_mov_b32 v5, 0x03020c0c"); E("v_mov_b32 v6, 0x01000c0c"); E("v_cndmask_b32 v5, v5, v6, vcc")
    for k in range(3): E(f"v_perm_b32 v{17+k}, v{24+2*k}, v{24+2*k}, v5")
    E("v_lshlrev_b32 v16, 16, v16"); E("v_add_f32 v18, 1.0, v18"); rnd(18, 18)
    srd(12, 58, 2304)
    E("v_lshlrev_b32 v5, 4, v0"); E("v_lshlrev_b32 v7, 3, v0")
    E("s_lshr_b32 s28, s3, 1"); E("s_mul_i32 s28, s28, 1152"); E("s_and_b32 s29, s3, 1"); E("s_lshl_b32 s29, s29, 9"); E("s_add_u32 s28, s28, s29")
    E("v_add_u32 v6, s28, v7")
    E("s_lshl_b32 s28, s22, 7")
    E("s_mul_i32 s29, s4, 4608"); E("s_add_u32 s29, s29, s28")
    E(f"s_add_u32 s18, s29, {X_OFF}"); E(f"s_add_u32 s19, s29, {Y_OFF}")
    XS = SO
    for k in range(8): E(f"s_add_u32 s{XS(k)}, s28, {X_OFF + k*4608}")
    E("s_mul_i32 s20, s4, 2304"); E("s_add_u32 s20, s20, s23"); E(f"s_add_u32 s20, s20, {Z_OFF}")
    E("s_mul_i32 s21, s4, 640"); E("s_lshl_b32 s28, s22, 4"); E("s_add_u32 s21, s21, s28"); E(f"s_add_u32 s21, s21, {ST_OFF}")
    lds_wait(C_DMAB, 1, 1, 22, sleep=8)
    stamp(6)
    E("s_barrier")
    stamp(7)
    def obody():
        for s in range(8): E(f"buffer_load_dwordx4 v[{24+4*s}:{27+4*s}], v5, s[24:27], s{16 + s//4} offen offset:{(s%4)*1024} sc1")
        for s in range(8):
            E(f"s_waitcnt vmcnt({7-s})")
            for k in range(4):
                if s == 0: E(f"v_mul_f32 v{56+k}, v8, v{24+k}")
                else: E(f"v_fmac_f32 v{56+k}, v{8+s}, v{24+4*s+k}")
        E("v_add_f32 v60, v56, v57"); E("v_add_f32 v61, v58, v59"); E("v_cmp_u_f32 vcc, v60, v61")
    poll(obody, sl_o)
    stamp(8)
    E("v_cvt_pk_bf16_f32 v56, v56, v57"); E("v_cvt_pk_bf16_f32 v57, v58, v59")
    E(f"ds_write_b64 v6, v[56:57] offset:{ABUF0}")
    E("s_waitcnt lgkmcnt(0)")
    E("s_barrier")
    gemv(3, ABUF0, 16, 8)
    E("s_mov_b64 exec, 0xffff")
    E("buffer_store_dwordx2 v[8:9], v7, s[24:27], s18 offen sc1")
    E("s_mov_b64 exec, -1")
    stamp(9)
    def sum8():
        for k in range(8): E(f"buffer_load_dword v{24+k}, v20, s[24:27], s{XS(k)} offen sc1")
        E("s_waitcnt vmcnt(0)")
        E("v_add_f32 v24, v24, v25"); E("v_add_f32 v26, v26, v27"); E("v_add_f32 v28, v28, v29"); E("v_add_f32 v30, v30, v31")
        E("v_add_f32 v24, v24, v26"); E("v_add_f32 v28, v28, v30"); E("v_add_f32 v24, v24, v28")
        E("v_cmp_u_f32 vcc, v24, v24")
    poll(sum8, 0)
    stamp(10)
    rnd(24, 24); E("v_mul_f32 v24, v17, v24"); rnd(24, 24); E("v_add_f32 v16, v16, v24"); rnd(16, 16)
    E("v_mul_f32 v24, v16, v18")
    E("v_mov_b32_dpp v25, v24 quad_perm:[2,3,2,3] row_mask:0xf bank_mask:0xf")
    E("v_cvt_pk_bf16_f32 v24, v24, v25")
    E("s_mov_b64 exec, 0x33333333")
    intra_store(["buffer_store_dword v24, v21, s[24:27], s20 offen"])
    E("s_mov_b64 exec, -1")
    stamp(11)
    E("v_mov_b32 v26, v16"); E("v_mul_f32 v27, v16, v16")
    for k in (2, 4, 8):
        for r in (26, 27): E(f"v_add_f32_dpp v{r}, v{r}, v{r} row_ror:{k} row_mask:0xf bank_mask:0xf")
    swap_reduce("v_add_f32", 26, 28, 16); swap_reduce("v_add_f32", 27, 28, 16)
    E("s_mov_b64 exec, 3")
    intra_store(["buffer_store_dwordx2 v[26:27], v7, s[24:27], s21 offen"])
    E("s_mov_b64 exec, -1")
    stage_b(SLOT_B, 18)
    for k in range(8): E(f"s_add_u32 s{XS(k)}, s{XS(k)}, {Y_OFF - X_OFF}")
    E("s_barrier")
    stamp(12)
    gemv(3, ABUF1, 18, 8)
    E("s_mov_b64 exec, 0xffff")
    E("buffer_store_dwordx2 v[8:9], v7, s[24:27], s19 offen sc1")
    E("s_mov_b64 exec, -1")
    stamp(13)
    E("s_and_b32 s28, s5, 7"); E("s_cmp_lg_u32 s28, s4"); E("s_cbranch_scc1 L_svc_end")
    poll(sum8, 0)
    stamp(14)
    rnd(24, 24); E("v_mul_f32 v24, v19, v24"); rnd(24, 24); E("v_add_f32 v24, v16, v24")
    E("v_mov_b32_dpp v25, v24 quad_perm:[2,3,2,3] row_mask:0xf bank_mask:0xf")
    E("v_cvt_pk_bf16_f32 v24, v24, v25")
    E("s_mov_b64 exec, 0x33333333")
    E("buffer_store_dword v24, v21, s[12:15], s23 offen")
    stamp(15)
    E("s_cmp_lg_u32 s22, 0"); E("s_cbranch_scc1 L_svc_end")
    E("s_mov_b64 exec, 1"); E("v_mov_b32 v24, s35"); E(f"s_mov_b32 s28, {EP_OFF}")
    E("buffer_store_dword v24, v1, s[24:27], s28 offen")
    if probe is not None:
        E(f"s_add_u32 s29, s{70+probe}, 6000")
        E.label("L_probe")
        E("s_sleep 1"); E("s_memrealtime s[92:93]"); E("s_waitcnt lgkmcnt(0)"); E("s_sub_u32 s28, s29, s92"); E("s_cmp_gt_i32 s28, 0"); E("s_cbranch_scc1 L_probe")
    E.label("L_svc_end")
    E("s_waitcnt lgkmcnt(0)")
    if stamps: E("s_add_u32 s3, s3, 8")
    stamp_flush()
    E.label("L_exit")
    body = E.finish()
    verify_stream(body)
    return HDR + f"""; @launch grid=(256,1,1) block=(768,1,1) lds=163840
.amdgcn_target "amdgcn-amd-amdhsa--gfx950"
.text
.globl {NAME}_kernel
.p2align 8
.type {NAME}_kernel,@function
{NAME}_kernel:
{body}
    s_endpgm
.section .rodata,"a"
.p2align 6
.amdhsa_kernel {NAME}_kernel
  .amdhsa_next_free_vgpr 168
  .amdhsa_next_free_sgpr 102
  .amdhsa_accum_offset 168
  .amdhsa_group_segment_fixed_size 0
  .amdhsa_kernarg_size 112
  .amdhsa_float_denorm_mode_32 3
  .amdhsa_user_sgpr_count 2
  .amdhsa_user_sgpr_kernarg_segment_ptr 1
  .amdhsa_system_sgpr_workgroup_id_x 1
.end_amdhsa_kernel
"""

def verify_stream(body):
    import re
    lines = [l.strip() for l in body.split('\n')]
    a = lines.index('L_k0:'); b = lines.index('L_service:'); c = lines.index('L_stream:'); d = lines.index('L_noreduce:')
    path = lines[a:b] + lines[c:d]
    issued = []; landed = 0; skip = None; last = {}
    for l in path:
        if skip:
            if l == skip + ':': skip = None
            continue
        m = re.match(r's_cbranch_scc1 (L_th_\d+)', l)
        if m: skip = m.group(1); continue
        m = re.match(r'buffer_load_dwordx4 v\[(\d+):', l)
        if m: issued.append(int(m.group(1))); last[int(m.group(1))] = len(issued); continue
        m = re.search(r'vmcnt\((\d+)\)', l)
        if m: landed = max(landed, len(issued) - int(m.group(1))); continue
        m = re.match(r'v_mfma\S+ v\[(\d+):\d+\], v\[(\d+):\d+\], v\[(\d+):', l)
        if m:
            for r in (int(m.group(2)), int(m.group(3))):
                if r in last: assert last[r] <= landed, f"unwaited operand: {l}"
    assert len(issued) == 64 and landed == 64

HDR = """; adaLN-conditioned GQA decode attention + SwiGLU block, one persistent launch (generated by gen/gen2.py)
"""
if __name__ == '__main__':
    kw = eval('dict(' + (sys.argv[2] if len(sys.argv) > 2 else '') + ')')
    open(sys.argv[1], 'w').write(gen(**kw))
```

```python
import sys
from emit import Emit
NAME = 'adaLN_cond__gqa_block_cached__glu_gated_swiglu__decode'

O_OFF, G_OFF, X_OFF, Y_OFF = 0x0, 0x40000, 0x52000, 0x5B000
Z_OFF, ST_OFF, ML_OFF = 0x64000, 0x69000, 0x6B000
EP_OFF = 0xC0000
FL_OFF = 0xC1000
Q_OFF, MOD_OFF = 0xC8000, 0xD0000
STAMP_OFF = 0x100000
WS_SIZE = 0x200000
C_BAR, C_Q, C_CNT, C_D1, C_D2, C_CS, C_GO, C_J1, C_J2, C_KH, C_VH, C_OC, C_FAC, C_V2, C_TAG = range(0, 60, 4)
FAC, MLB, QBUF = 64, 128, 256
CBUF, SBUF = 1216, 3552
ABUF = 1216
ACT0, ACT1 = 15104, 64
JBUF, ZBUF, OBUF = 5888, 5888, 8192
SLOT_A, SLOT_B = 16384, 90112
LOG2E = 0x3fb8aa3b
SCALE = 0x3db504f3
JW2, JQ0 = 15, 24

def gen(D=3, DV=3, DQ=3, stamps=False, force_slow=False, sl_long=2, sl_bar=16, gateq=0, kvf='nt', wf='nt',
        plim=0x2000, probe=None, cpf=1, sl_o=0, sl_z=0, dbg='', XW=(0,0,0,0,0), XD=1, sl_ml=32, kh=16, sl_q=4,
        XG=1, DE=0, NE=0, kv=24, DW=0, DEA=0, DJ=0, K0=0, DJQ=4, EB=0, QB=0, ko=0):
    E = Emit()
    uid = [0]
    def L(p):
        uid[0] += 1
        return f"L_{p}_{uid[0]}"
    def stamp(k):
        if stamps:
            E("s_memrealtime s[92:93]"); E("s_waitcnt lgkmcnt(0)"); E(f"s_mov_b32 s{70+k}, s92")
    def stamp_flush():
        if stamps:
            E("s_mov_b64 exec, -1")
            E("v_mov_b32 v4, 0")
            for k in range(16): E(f"v_writelane_b32 v4, s{70+k}, {k}")
            E("s_lshl_b32 s28, s4, 5"); E("s_add_u32 s28, s28, s5"); E("s_mul_i32 s28, s28, 12"); E("s_add_u32 s28, s28, s3")
            E("s_lshl_b32 s28, s28, 6"); E(f"s_add_u32 s28, s28, {STAMP_OFF}")
            E("v_mbcnt_lo_u32_b32 v5, -1, 0"); E("v_mbcnt_hi_u32_b32 v5, -1, v5"); E("v_lshlrev_b32 v5, 2, v5")
            E("s_mov_b64 exec, 0xffff")
            E("buffer_store_dword v4, v5, s[24:27], s28 offen")
    def srd(r, p, size):
        E(f"s_mov_b32 s{r}, s{p}"); E(f"s_mov_b32 s{r+1}, s{p+1}"); E(f"s_mov_b32 s{r+2}, {size}"); E(f"s_mov_b32 s{r+3}, 0x20000")
    def lds_wait(off, val, vz, vt, sleep=2):
        a, b = L("lw"), L("lwd")
        E("s_mov_b32 s7, 0"); E.label(a)
        E(f"ds_read_b32 v{vt}, v{vz} offset:{off}"); E("s_waitcnt lgkmcnt(0)")
        E(f"v_readfirstlane_b32 s28, v{vt}"); E(f"s_cmp_ge_u32 s28, {val}"); E(f"s_cbranch_scc1 {b}")
        if sleep: E(f"s_sleep {sleep}")
        E("s_add_u32 s7, s7, 1"); E(f"s_cmp_lt_u32 s7, {plim*8}"); E(f"s_cbranch_scc1 {a}")
        E.label(b)
    def lds_set(off, vz, vt, val):
        E(f"v_mov_b32 v{vt}, {val}"); E(f"ds_write_b32 v{vz}, v{vt} offset:{off}")
    def lds_inc(off, vz, vt):
        E(f"v_mov_b32 v{vt}, 1"); E("s_mov_b64 exec, 1"); E(f"ds_add_u32 v{vz}, v{vt} offset:{off}"); E("s_mov_b64 exec, -1")
    def soft_barrier(off, vz, vt, sleep=0, n=4):
        lds_inc(off, vz, vt); lds_wait(off, n, vz, vt, sleep)
    def poll(body, sleep=0):
        a, b = L("pl"), L("pld")
        E("s_mov_b32 s7, 0"); E.label(a)
        body()
        E(f"s_cbranch_vccz {b}")
        if sleep: E(f"s_sleep {sleep}")
        E("s_add_u32 s7, s7, 1"); E(f"s_cmp_lt_u32 s7, {plim}"); E(f"s_cbranch_scc1 {a}")
        E.label(b)
    def intra_store(ins):
        a, b = L("is"), L("isd")
        E("s_cmp_eq_u32 s6, 3"); E(f"s_cbranch_scc1 {a}")
        for i in ins: E(i + (" sc1" if i.startswith("buffer_") else ""))
        E(f"s_branch {b}"); E.label(a)
        for i in ins: E(i)
        E.label(b)
    def rnd(dst, src):
        E(f"v_cvt_pk_bf16_f32 v{dst}, v{src}, v{src}"); E(f"v_and_b32 v{dst}, 0xffff0000, v{dst}")
    def row_reduce(op, r, rors):
        for k in rors: E(f"{op}_dpp v{r}, v{r}, v{r} row_ror:{k} row_mask:0xf bank_mask:0xf")
    def swap_reduce(op, r, t, which):
        E(f"v_mov_b32 v{t}, v{r}"); E(f"v_permlane{which}_swap_b32 v{r}, v{t}"); E(f"{op} v{r}, v{r}, v{t}")
    def mktag():
        E("s_waitcnt lgkmcnt(0)")
        E("s_mul_i32 s35, s34, 0x9E3779B1"); E("s_add_u32 s35, s35, 0x7F4A7C15"); E("s_mov_b32 s90, 0xffffff00")
    def tagcheck(acc, regs):
        E(f"v_xor_b32 v{acc}, s35, v{regs[0]}")
        for r in regs[1:]: E(f"v_bitop3_b32 v{acc}, v{acc}, v{r}, s35 bitop3:0xf6")
        E(f"v_cmp_ne_u32 vcc, 0, v{acc}")
    def tagbyte(dst, idx):
        E(f"v_and_b32 v{dst}, 3, v{idx}"); E(f"v_lshlrev_b32 v{dst}, 3, v{dst}"); E(f"v_lshrrev_b32 v{dst}, v{dst}, s35"); E(f"v_and_b32 v{dst}, 0xff, v{dst}")
    def settag(r, tg): E(f"v_and_or_b32 v{r}, v{r}, s{SM}, v{tg}")
    def lowcheck(acc, regs, tg):
        E(f"v_xor_b32 v{acc}, v{tg}, v{regs[0]}")
        for r in regs[1:]: E(f"v_bitop3_b32 v{acc}, v{acc}, v{r}, v{tg} bitop3:0xf6")
        E(f"v_and_b32 v{acc}, 0xff, v{acc}"); E(f"v_cmp_ne_u32 vcc, 0, v{acc}")
    SM = 90
    BR = lambda k: 96 + 4 * k
    AT = lambda k: 24 + 4 * k
    def op_addrs():
        E("v_bfe_u32 v4, v0, 2, 2"); E("v_lshrrev_b32 v5, 4, v0"); E("v_lshl_add_u32 v4, v5, 3, v4"); E("v_lshlrev_b32 v4, 7, v4")
        E("v_and_b32 v6, 3, v0"); E("v_lshl_add_u32 v4, v6, 3, v4")
        E("v_bfe_u32 v7, v0, 3, 2"); E("v_xor_b32 v7, s3, v7"); E("v_lshl_add_u32 v2, v7, 5, v4")
        E("v_and_b32 v3, 1, v0"); E("v_mul_u32_u24 v3, 1152, v3"); E("v_lshl_add_u32 v3, v5, 4, v3")
    def stage_b(slot, nk, wait=True):
        E(f"v_add_u32 v5, {slot}, v2"); E(f"v_add_u32 v6, {slot + 36864}, v2")
        for k in range(nk):
            a = 5 if k < 9 else 6; o = (k % 9) * 4096
            E(f"ds_read_b64_tr_b16 v[{BR(k)}:{BR(k)+1}], v{a} offset:{o}"); E(f"ds_read_b64_tr_b16 v[{BR(k)+2}:{BR(k)+3}], v{a} offset:{o+512}")
        if wait: E("s_waitcnt lgkmcnt(0)")
    def gemv(areg, aoff, nk, d, fill=None):
        fill = list(fill or [])
        per = -(-len(fill) // nk)
        for k in range(min(nk, 15)): E(f"ds_read_b128 v[{AT(k)}:{AT(k)+3}], v{areg} offset:{aoff + k*64}")
        issued = min(nk, 15)
        for k in range(nk):
            for _ in range(per):
                if fill: E(fill.pop(0))
            E(f"s_waitcnt lgkmcnt({issued - 1 - k})")
            c = "0" if k == 0 else f"v[{d}:{d+3}]"
            E(f"v_mfma_f32_16x16x32_bf16 v[{d}:{d+3}], v[{AT(k)}:{AT(k)+3}], v[{BR(k)}:{BR(k)+3}], {c}")
            if issued < nk:
                E(f"ds_read_b128 v[{AT(issued)}:{AT(issued)+3}], v{areg} offset:{aoff + issued*64}"); issued += 1
    def own_map():
        E("v_and_b32 v8, 31, v0"); E("v_min_u32 v9, 7, v8"); E("s_mul_i32 s28, s3, 72")
        E("v_add_u32 v8, s28, v8"); E("s_add_u32 s28, s28, 64"); E("v_add_u32 v9, s28, v9")
        E("v_lshrrev_b32 v11, 5, v0"); E("v_mul_u32_u24 v11, 1152, v11"); E("v_lshl_add_u32 v10, v8, 2, v11"); E("v_lshl_add_u32 v11, v9, 2, v11")
    def modgather(o1, o2):
        E(f"s_mov_b32 s30, {MOD_OFF + o1*8}"); E(f"s_mov_b32 s31, {MOD_OFF + o2*8}")
        E("v_lshlrev_b32 v12, 4, v8"); E("v_lshlrev_b32 v13, 4, v9")
        def body():
            for h in range(2):
                E(f"buffer_load_dwordx4 v[{36+12*h}:{39+12*h}], v12, s[24:27], s{30+h} offen sc1")
                E(f"buffer_load_dwordx4 v[{40+12*h}:{43+12*h}], v12, s[24:27], s{30+h} offen offset:512 sc1")
                E(f"buffer_load_dwordx4 v[{44+12*h}:{47+12*h}], v13, s[24:27], s{30+h} offen sc1")
            E("s_waitcnt vmcnt(0)")
            tagcheck(14, list(range(37, 60, 2)))
        poll(body, sl_long)
        E("v_cmp_gt_u32 vcc, 32, v0"); E("v_mov_b32 v12, 0x03020c0c"); E("v_mov_b32 v13, 0x01000c0c"); E("v_cndmask_b32 v12, v12, v13, vcc")
        for e in range(12): E(f"v_perm_b32 v{24+e}, v{36+2*e}, v{36+2*e}, v12")
    def dma_addrs():
        E("v_lshrrev_b32 v2, 3, v0"); E("v_mul_lo_u32 v2, v2, s20")
        E("v_and_b32 v3, 7, v0"); E("v_bfe_u32 v4, v0, 4, 1"); E("v_lshlrev_b32 v4, 1, v4"); E("v_xor_b32 v3, v3, v4")
        E("v_xor_b32 v4, 4, v3"); E("v_lshl_add_u32 v3, v3, 4, v2"); E("v_lshl_add_u32 v4, v4, 4, v2")
        E("s_lshl_b32 s17, s20, 3")
    def dma_loop(lab, depth):
        E.label(lab)
        E("s_mov_b32 m0, s29"); E("s_add_u32 s29, s29, 1024")
        E(f"buffer_load_dwordx4 v3, s[8:11], s16 offen {wf} lds"); E("s_add_u32 s16, s16, s17")
        if depth: E(f"s_waitcnt vmcnt({depth-1})")
        E("s_mov_b32 m0, s29"); E("s_add_u32 s29, s29, 1024")
        E(f"buffer_load_dwordx4 v4, s[8:11], s16 offen {wf} lds"); E("s_add_u32 s16, s16, s17")
        if depth: E(f"s_waitcnt vmcnt({depth-1})")
        E("s_sub_u32 s19, s19, 1"); E("s_cmp_lg_u32 s19, 0"); E(f"s_cbranch_scc1 {lab}")

    E.label("L_code0")
    E("s_load_dwordx16 s[36:51], s[0:1], 0")
    E("s_load_dwordx8 s[52:59], s[0:1], 64")
    E("s_load_dwordx4 s[60:63], s[0:1], 96")
    E("s_cmp_ge_u32 s2, 256"); E("s_cbranch_scc1 L_exit")
    if stamps:
        for k in range(16): E(f"s_mov_b32 s{70+k}, 0")
    E("v_lshrrev_b32 v1, 6, v0"); E("v_and_b32 v0, 63, v0"); E("v_readfirstlane_b32 s3, v1")
    E("s_and_b32 s4, s2, 7"); E("s_lshr_b32 s5, s2, 3")
    E("s_sub_u32 s22, s2, 72"); E("s_cmp_lt_u32 s22, 48"); E("s_cselect_b32 s21, 2, 0")
    E(f"s_cmp_ge_u32 s5, {JQ0}"); E("s_cselect_b32 s21, 3, s21")
    if 'j' in dbg: E("s_mov_b32 s21, 0")
    E("s_cmp_ge_u32 s3, 8"); E("s_cbranch_scc1 L_service")

    SL = lambda i: 40 + 4 * i
    E("v_and_b32 v3, 3, v0"); E("v_lshrrev_b32 v4, 4, v0"); E("v_lshl_add_u32 v3, v4, 2, v3")
    E("v_bfe_u32 v4, v0, 2, 2"); E("v_lshlrev_b32 v4, 8, v4"); E("v_lshl_add_u32 v2, v3, 4, v4")
    E("s_and_b32 s28, s5, 16"); E("s_lshl_b32 s29, s4, 1"); E("s_add_u32 s28, s28, s29")
    E("s_lshl_b32 s28, s28, 3"); E("s_and_b32 s29, s5, 15"); E("s_add_u32 s28, s28, s29")
    E("s_lshl_b32 s28, s28, 6"); E("s_add_u32 s28, s28, s3"); E("s_lshl_b32 s33, s28, 12")
    E("s_add_u32 s32, s5, s3")
    def soff(u):
        E(f"s_add_u32 s30, s32, {u}"); E("s_and_b32 s30, s30, 7"); E("s_lshl_b32 s30, s30, 15"); E(f"s_add_u32 s{64+u if not stamps else 94+u}, s33, s30")
    SO = lambda u: (64 + u if not stamps else 94 + u)
    soff(0)
    if D > 4: soff(1)
    E("s_mov_b32 s10, 0x4000000"); E("s_mov_b32 s11, 0x20000")
    E("s_waitcnt lgkmcnt(0)")
    E("s_mov_b32 s8, s38"); E("s_mov_b32 s9, s39")
    stamp(0)
    def kload(i): E(f"buffer_load_dwordx4 v[{SL(i)}:{SL(i)+3}], v2, s[8:11], s{SO(i//4)} offen offset:{(i%4)*1024} {kvf}")
    def vload(i): E(f"buffer_load_dwordx4 v[{SL(i)}:{SL(i)+3}], v1, s[12:15], s{SO(i//4)} offen offset:{(i%4)*1024} {kvf}")
    E.label("L_k0")
    for i in range(K0): kload(i)
    E("s_barrier")
    for i in range(K0, D): kload(i)
    E("s_branch L_stream")

    E.label("L_service")
    E("v_mov_b32 v1, 0")
    E("s_sub_u32 s3, s3, 8")
    E("v_lshlrev_b32 v2, 2, v0"); E("s_mov_b64 exec, 0xffff"); E("ds_write_b32 v2, v1"); E("s_mov_b64 exec, -1")
    E("s_mov_b32 s18, 4")
    E("s_cmp_eq_u32 s21, 0"); E("s_cbranch_scc1 L_nojob")
    E.label("L_job")
    E("s_cmp_eq_u32 s21, 3")
    E("s_cselect_b32 s20, 8192, 6912") if False else (E("s_mov_b32 s20, 6912"), E("s_cselect_b32 s20, 8192, s20"))
    dma_addrs()
    own_map()
    E("s_lshl_b32 s28, s4, 3"); E(f"s_sub_u32 s29, s5, {JQ0}"); E("s_add_u32 s28, s28, s29")
    E("s_cmp_eq_u32 s21, 3"); E("s_cselect_b32 s22, s28, s22")
    E("s_mul_i32 s10, s20, 576"); E("s_mov_b32 s11, 0x20000")
    E("s_mul_i32 s16, s20, 144"); E("s_mul_i32 s16, s16, s3"); E("s_lshl_b32 s28, s22, 7"); E("s_add_u32 s16, s16, s28")
    E("s_mul_i32 s29, s3, 18432"); E(f"s_add_u32 s29, s29, {SLOT_B}"); E("s_mov_b32 s19, 9")
    E("s_mov_b32 s14, 2304"); E("s_mov_b32 s15, 0x20000")
    E("v_lshrrev_b32 v5, 5, v0"); E("v_mul_u32_u24 v5, 1152, v5"); E("v_and_b32 v6, 31, v0"); E("v_lshl_add_u32 v5, v6, 2, v5")
    E("s_waitcnt lgkmcnt(0)")
    if stamps:
        E("s_cmp_eq_u32 s18, 8"); E("s_cbranch_scc1 L_nost0"); stamp(0); E.label("L_nost0")
    E("s_cmp_eq_u32 s21, 3")
    E("s_cselect_b32 s8, s42, s56"); E("s_cselect_b32 s9, s43, s57"); E("s_cselect_b32 s12, s36, s54"); E("s_cselect_b32 s13, s37, s55")
    E("buffer_load_dword v16, v10, s[12:15], 0 offen"); E("buffer_load_dword v17, v10, s[12:15], 0 offen offset:128"); E("buffer_load_dword v18, v11, s[12:15], 0 offen")
    for i in range(9): E(f"buffer_load_dword v{60+i}, v5, s[12:15], 0 offen offset:{i*128}")
    E("s_cmp_eq_u32 s18, 8"); E("s_cbranch_scc1 L_dma_jq")
    E(f"s_load_dword s34, s[62:63], {EP_OFF}")
    srd(24, 62, WS_SIZE)
    if QB: E(f"s_cmp_eq_u32 s5, 27"); E("s_cbranch_scc1 L_jq")
    dma_loop("L_dma_job", DJ)
    E("s_barrier")
    E("s_branch L_job2")
    if QB:
        E.label("L_jq")
        E("s_barrier")
        dma_loop("L_dma_j27", QB - 1)
        E("s_branch L_job2")
    dma_loop("L_dma_jq", DJQ)
    E.label("L_job2")
    stamp(9)
    op_addrs()
    E("s_waitcnt vmcnt(18)")
    for i in range(3):
        E(f"v_and_b32 v{71+2*i}, 0xffff0000, v{16+i}"); E(f"v_lshlrev_b32 v{70+2*i}, 16, v{16+i}")
    E("s_cmp_eq_u32 s21, 3"); E("s_cbranch_scc1 L_prep_q")
    E(f"s_mov_b32 s28, {LOG2E ^ 0x80000000}"); E("s_mov_b32 s29, 0xb2a57060"); E("s_mov_b32 s30, 0x3f317218")
    for e in range(6): E(f"v_mul_f32 v{24+e}, s28, v{70+e}")
    for e in range(6): E(f"v_fma_f32 v{30+e}, v{70+e}, s28, -v{24+e}")
    for e in range(6): E(f"v_fma_f32 v{30+e}, v{70+e}, s29, v{30+e}")
    for e in range(6): E(f"v_min_f32 v{24+e}, 0x42fc0000, v{24+e}")
    for e in range(6): E(f"v_exp_f32 v{24+e}, v{24+e}")
    for e in range(6): E(f"v_mul_f32 v{30+e}, s30, v{30+e}")
    for e in range(6): E(f"v_fma_f32 v{24+e}, v{24+e}, v{30+e}, v{24+e}")
    for e in range(6): E(f"v_add_f32 v{24+e}, 1.0, v{24+e}")
    for e in range(6): E(f"v_rcp_f32 v{30+e}, v{24+e}")
    for e in range(6): E(f"v_mul_f32 v{36+e}, v{70+e}, v{30+e}")
    for e in range(6): E(f"v_fma_f32 v{70+e}, -v{24+e}, v{36+e}, v{70+e}")
    for e in range(6): E(f"v_fma_f32 v{70+e}, v{70+e}, v{30+e}, v{36+e}")
    def write_a(buf):
        for i in range(3): E(f"v_cvt_pk_bf16_f32 v{16+i}, v{70+2*i}, v{71+2*i}")
        E(f"ds_write_b32 v10, v16 offset:{buf}"); E(f"ds_write_b32 v10, v17 offset:{buf+128}"); E(f"ds_write_b32 v11, v18 offset:{buf}")
    write_a(JBUF)
    E("s_waitcnt vmcnt(0)")
    soft_barrier(C_J1, 1, 16, n="s18")
    stamp(10)
    stage_b(SLOT_B, 18, wait=False)
    E("s_branch L_gemv")
    E.label("L_prep_q")
    for i in range(9):
        E(f"v_lshlrev_b32 v{24+2*i}, 16, v{60+i}"); E(f"v_and_b32 v{25+2*i}, 0xffff0000, v{60+i}")
    E("v_add_f32 v16, v24, v25")
    for r in range(26, 42): E(f"v_add_f32 v16, v16, v{r}")
    row_reduce("v_add_f32", 16, (1, 2, 4, 8)); swap_reduce("v_add_f32", 16, 17, 16)
    E("s_mov_b32 s28, 0x3ae38e39"); E("s_mov_b32 s29, 0x3727c5ac")
    E("v_mul_f32 v16, s28, v16")
    E("v_mov_b32 v18, 0")
    for r in range(24, 42): E(f"v_sub_f32 v17, v{r}, v16"); E("v_fmac_f32 v18, v17, v17")
    row_reduce("v_add_f32", 18, (1, 2, 4, 8)); swap_reduce("v_add_f32", 18, 17, 16)
    E("v_mul_f32 v18, s28, v18"); rnd(18, 18); E("v_add_f32 v18, s29, v18"); rnd(18, 18)
    E("v_sqrt_f32 v18, v18"); rnd(18, 18); E("v_rcp_f32 v19, v18"); rnd(16, 16)
    for r in range(70, 76):
        E(f"v_sub_f32 v{r}, v{r}, v16"); rnd(r, r)
        E(f"v_mul_f32 v17, v{r}, v19"); E(f"v_fma_f32 v{r}, -v18, v17, v{r}"); E(f"v_fma_f32 v{r}, v{r}, v19, v17"); rnd(r, r)
    E("s_waitcnt vmcnt(0)")
    soft_barrier(C_J1, 1, 16)
    stamp(10)
    stage_b(SLOT_B, 18)
    mktag()
    modgather(0, 576)
    stamp(11)
    for e in range(6):
        E(f"v_add_f32 v{30+e}, 1.0, v{30+e}"); rnd(30+e, 30+e); E(f"v_mul_f32 v{70+e}, v{70+e}, v{30+e}"); rnd(70+e, 70+e)
        E(f"v_add_f32 v{70+e}, v{70+e}, v{24+e}")
    write_a(JBUF)
    soft_barrier(C_J2, 1, 16)
    E.label("L_gemv")
    gemv(3, JBUF, 18, 8)
    mktag()
    E("s_lshl_b32 s28, s22, 2"); E("s_add_u32 s28, s28, s3"); E("s_lshl_b32 s28, s28, 7")
    E(f"s_mov_b32 s29, {MOD_OFF}"); E("s_cmp_eq_u32 s21, 3"); E(f"s_cselect_b32 s29, {Q_OFF}, s29"); E("s_add_u32 s28, s28, s29")
    E("v_lshlrev_b32 v2, 3, v0")
    E("v_cvt_pk_bf16_f32 v8, v8, v9"); E("v_mov_b32 v9, s35")
    E("s_mov_b64 exec, 0xffff")
    E("buffer_store_dwordx2 v[8:9], v2, s[24:27], s28 offen sc1")
    E("s_mov_b64 exec, -1")
    lds_inc(C_GO, 1, 16)
    stamp(12)
    E("s_cmp_eq_u32 s18, 8"); E("s_cbranch_scc1 L_svc_end")
    E("s_branch L_roles")
    E.label("L_nojob")
    E("s_mov_b32 s20, 1152")
    dma_addrs()
    E("s_lshl_b32 s28, s4, 2"); E("s_add_u32 s28, s28, s3"); E(f"s_sub_u32 s30, s5, {JW2}")
    E("s_cmp_lt_u32 s5, 9")
    E("s_cselect_b32 s19, 8, 9"); E("s_cselect_b32 s30, s5, s30"); E(f"s_mov_b32 s29, {SLOT_B}"); E(f"s_cselect_b32 s29, {SLOT_A}, s29")
    E("s_mul_i32 s16, s19, 18432"); E("s_lshl_b32 s10, s16, 5"); E("s_mul_i32 s16, s16, s28"); E("s_lshl_b32 s30, s30, 7"); E("s_add_u32 s16, s16, s30")
    E("s_lshl_b32 s30, s19, 11"); E("s_mul_i32 s30, s30, s3"); E("s_add_u32 s29, s29, s30"); E("s_mov_b32 s11, 0x20000")
    E("s_waitcnt lgkmcnt(0)")
    E("s_cmp_lt_u32 s5, 9"); E("s_cselect_b32 s8, s44, s52"); E("s_cselect_b32 s9, s45, s53")
    stamp(0)
    if EB: E("s_barrier")
    if 'e' not in dbg: dma_loop("L_dma_early", DEA)
    E(f"s_load_dword s34, s[62:63], {EP_OFF}")
    srd(24, 62, WS_SIZE)
    if not EB: E("s_barrier")
    E.label("L_roles")
    for w in '0123':
        if w in dbg: E(f"s_cmp_eq_u32 s3, {w}"); E("s_cbranch_scc1 L_svc_end")
    if 'z' in dbg: E("s_branch L_tailprep")
    E("s_cmp_eq_u32 s3, 3"); E("s_cbranch_scc1 L_s3")
    E("s_cmp_eq_u32 s3, 0"); E("s_cbranch_scc1 L_s0")
    if cpf:
        E("s_cmp_lg_u32 s3, 2"); E("s_cbranch_scc1 L_tailprep")
        E("s_cmp_lg_u32 s5, 3"); E("s_cbranch_scc1 L_tailprep")
        E("s_getpc_b64 s[8:9]"); E.label("L_pc")
        E("s_sub_u32 s8, s8, L_pc-L_code0"); E("s_subb_u32 s9, s9, 0"); E("s_mov_b32 s10, L_exit-L_code0"); E("s_mov_b32 s11, 0x20000")
        E("v_lshlrev_b32 v2, 4, v0"); E("s_mov_b32 s16, 0")
        E.label("L_cpf")
        E("buffer_load_dwordx4 v[8:11], v2, s[8:11], s16 offen"); E("s_add_u32 s16, s16, 1024"); E("s_cmp_lt_u32 s16, s10"); E("s_cbranch_scc1 L_cpf")
    E("s_branch L_tailprep")

    E.label("L_s0")
    mktag()
    E("v_lshlrev_b32 v2, 4, v0")
    if kh:
        E("s_cmp_eq_u32 s21, 3"); E("s_cbranch_scc1 L_qgo")
        lds_wait(C_KH, 1, 1, 8, sleep=8)
        E.label("L_qgo")
    E("s_lshl_b32 s28, s4, 12"); E("s_bfe_u32 s29, s5, 0x10003"); E("s_lshl_b32 s29, s29, 11"); E("s_add_u32 s28, s28, s29"); E(f"s_add_u32 s28, s28, {Q_OFF}")
    def qbody():
        E("buffer_load_dwordx4 v[8:11], v2, s[24:27], s28 offen sc1"); E("buffer_load_dwordx4 v[12:15], v2, s[24:27], s28 offen offset:1024 sc1")
        E("s_waitcnt vmcnt(0)")
        tagcheck(16, [9, 11, 13, 15])
    poll(qbody, sl_q)
    E("s_mov_b32 s29, 0x05040100"); E("s_cmp_ge_u32 s5, 16"); E("s_cselect_b32 s29, 0x07060302, s29")
    E("v_perm_b32 v8, v10, v8, s29"); E("v_perm_b32 v9, v14, v12, s29"); E("v_lshlrev_b32 v3, 2, v0")
    E(f"ds_write_b32 v3, v8 offset:{QBUF}"); E(f"ds_write_b32 v3, v9 offset:{QBUF+256}")
    lds_set(C_Q, 1, 10, 1)
    stamp(3)
    lds_wait(C_BAR, 1, 1, 8, sleep=4)
    E("s_mov_b32 s6, s28")
    lds_wait(C_CNT, 8, 1, 8, sleep=4)
    E("v_and_b32 v3, 15, v0"); E("v_lshlrev_b32 v4, 3, v3"); E(f"ds_read_b64 v[8:9], v4 offset:{MLB}")
    E(f"s_mov_b32 s31, {LOG2E}")
    E("s_waitcnt lgkmcnt(0)")
    E("v_mov_b32 v10, v8"); row_reduce("v_max_f32", 10, (2, 4, 8))
    E("v_sub_f32 v12, v8, v10"); E("v_mul_f32 v12, s31, v12"); E("v_exp_f32 v12, v12"); E("v_mul_f32 v11, v12, v9")
    row_reduce("v_add_f32", 11, (2, 4, 8))
    E("v_and_b32 v5, 1, v0"); E("v_lshlrev_b32 v5, 5, v5"); E("v_lshrrev_b32 v6, 1, v3"); E("v_lshl_add_u32 v5, v6, 2, v5")
    E(f"ds_write_b32 v5, v12 offset:{FAC}")
    E("s_lshl_b32 s28, s4, 5"); E("s_add_u32 s28, s28, s5"); E("s_lshl_b32 s28, s28, 4"); E(f"s_add_u32 s28, s28, {ML_OFF}")
    E("s_lshl_b32 s29, s5, 1"); E("v_add_u32 v13, s29, v0"); tagbyte(13, 13); settag(11, 13)
    E("v_mov_b32 v6, s6"); E(f"ds_write_b32 v1, v6 offset:{C_FAC}")
    E("s_mov_b64 exec, 3")
    intra_store(["buffer_store_dwordx2 v[10:11], v4, s[24:27], s28 offen"])
    E("s_mov_b64 exec, -1")
    E("s_waitcnt lgkmcnt(0)")
    stamp(4)
    E("s_branch L_tailprep")

    E.label("L_s3")
    E("v_lshlrev_b32 v2, 4, v0")
    for k in range(4): E(f"v_mov_b32 v{4+k}, -1")
    E("s_cmp_ge_u32 s5, 9"); E("s_cbranch_scc1 L_noclr")
    E("s_mul_i32 s28, s4, 2304"); E("s_lshl_b32 s29, s5, 8"); E("s_add_u32 s28, s28, s29"); E(f"s_add_u32 s28, s28, {Z_OFF}")
    E("s_mov_b64 exec, 0xffff"); E("buffer_store_dwordx4 v[4:7], v2, s[24:27], s28 offen sc1"); E("s_mov_b64 exec, -1")
    E.label("L_noclr")
    E("s_getreg_b32 s29, hwreg(HW_REG_XCC_ID)"); E("s_and_b32 s29, s29, 15")
    mktag()
    E("v_mov_b32 v8, s29"); E("v_mov_b32 v9, s35")
    E("s_lshl_b32 s28, s4, 5"); E("s_add_u32 s28, s28, s5"); E("s_lshl_b32 s28, s28, 3"); E(f"s_add_u32 s28, s28, {FL_OFF}")
    E("s_waitcnt vmcnt(0)")
    stamp(1)
    E("s_mov_b64 exec, 1"); E("buffer_store_dwordx2 v[8:9], v1, s[24:27], s28 offen sc1"); E("s_mov_b64 exec, -1")
    if 'q' in dbg: E("s_branch L_svc_end")
    lds_wait(C_CNT, 8, 1, 8, sleep=8)
    E(f"s_mov_b32 s30, {FL_OFF}")
    def barbody():
        E("buffer_load_dwordx4 v[8:11], v2, s[24:27], s30 offen sc1"); E("buffer_load_dwordx4 v[12:15], v2, s[24:27], s30 offen offset:1024 sc1")
        E("s_waitcnt vmcnt(0)")
        tagcheck(16, [9, 11, 13, 15])
    poll(barbody, sl_bar)
    E("s_cmp_ge_u32 s4, 4"); E("s_cselect_b64 vcc, -1, 0")
    E("v_cndmask_b32 v8, v8, v12, vcc"); E("v_cndmask_b32 v10, v10, v14, vcc")
    E("v_xor_b32 v8, s29, v8"); E("v_bitop3_b32 v8, v8, v10, s29 bitop3:0xf6"); E("v_cmp_ne_u32 vcc, 0, v8")
    E("s_and_b32 s30, s4, 3"); E("s_lshl_b32 s30, s30, 4"); E("s_lshr_b64 s[30:31], vcc, s30"); E("s_and_b32 s30, s30, 0xffff")
    E(f"s_cselect_b32 s6, 1, {1 if force_slow else 3}")
    E("v_mov_b32 v8, s6"); E(f"ds_write_b32 v1, v8 offset:{C_BAR}")
    stamp(2)
    E("s_branch L_tailprep")

    E.label("L_stream")
    xd = XD if any(XW) else 0
    if xd:
        E(f"s_mov_b32 s23, {XW[0]}")
        for lo, n in zip((9, 15, 24), XW[1:4]):
            E(f"s_cmp_ge_u32 s5, {lo}"); E(f"s_cselect_b32 s23, {n}, s23")
        E("s_cmp_eq_u32 s5, 27"); E(f"s_cselect_b32 s23, {XW[4]}, s23")
    def setscc(): pass
    tp = [0]
    def throttle(d):
        thr = [0, 4, 2, 6, 1, 5, 3, 7][(tp[0] // XG) % 8]; tp[0] += 1
        if xd and thr < max(XW):
            if thr < min(XW): E(f"s_waitcnt vmcnt({d-1+xd})")
            else:
                a = L("th"); E(f"s_cmp_gt_u32 s23, {thr}"); E(f"s_waitcnt vmcnt({d-1+xd})"); E(f"s_cbranch_scc1 {a}"); E(f"s_waitcnt vmcnt({d-1})"); E.label(a)
        else: E(f"s_waitcnt vmcnt({d-1})")
    for u in range(2 if D > 4 else 1, 8): soff(u)
    srd(12, 40, 0x4000000); srd(24, 62, WS_SIZE)
    E(f"s_load_dword s34, s[62:63], {EP_OFF}")
    E("v_lshlrev_b32 v1, 4, v0")
    E("v_bfe_u32 v4, v0, 3, 1"); E("v_lshlrev_b32 v4, 8, v4"); E("v_lshl_add_u32 v36, v3, 4, v4")
    if gateq:
        E("s_cmp_lg_u32 s21, 3"); E("s_cbranch_scc1 L_kgo")
        E("v_mov_b32 v3, 0")
        lds_wait(C_GO, 4, 3, 4, sleep=4)
        E.label("L_kgo")
    setscc()
    for i in range(D, 32):
        throttle(D); kload(i)
        if kh and i == kh: E("v_mov_b32 v3, 0"); E("v_mov_b32 v4, 1"); E(f"ds_write_b32 v3, v4 offset:{C_KH}")
    stamp(1)
    E("v_mov_b32 v2, 0")
    if 'q' not in dbg: lds_wait(C_Q, 1, 2, 3)
    E(f"ds_read_b128 v[20:23], v36 offset:{QBUF}")
    E(f"s_mov_b32 s30, {SCALE}"); E(f"s_mov_b32 s31, {LOG2E}")
    E("v_mov_b32 v36, 0xff800000")
    mktag()
    stamp(2)
    setscc()
    st = dict(issued=0)
    def qk_mfma(u):
        n = (28 - 4*u) + st['issued']
        if n < D + xd + st['issued'] and n < 63: E(f"s_waitcnt vmcnt({n})")
        for i in range(4*u, 4*u+4):
            E(f"v_mfma_f32_16x16x32_bf16 v[{SL(i)}:{SL(i)+3}], v[{SL(i)}:{SL(i)+3}], v[20:23], 0")
    def qk_post(u):
        if 'c' in dbg: return
        T = [24, 25, 26, 27]
        for k in range(4):
            for a in range(4):
                r = SL(4*u + a) + k
                if k == 0: E(f"v_mov_b32_dpp v{T[a]}, v{r} quad_perm:[0,0,0,0] row_mask:0xf bank_mask:0xf")
                else: E(f"v_add_f32_dpp v{T[a]}, v{r}, v{T[a]} quad_perm:[{k},{k},{k},{k}] row_mask:0xf bank_mask:0xf")
        E("v_cvt_pk_bf16_f32 v28, v24, v25"); E("v_cvt_pk_bf16_f32 v29, v26, v27")
        E("v_lshlrev_b32 v24, 16, v28"); E("v_and_b32 v25, 0xffff0000, v28")
        E("v_lshlrev_b32 v26, 16, v29"); E("v_and_b32 v27, 0xffff0000, v29")
        for a in range(4): E(f"v_mul_f32 v{T[a]}, s30, v{T[a]}")
        E(f"v_cvt_pk_bf16_f32 v{4+2*u}, v24, v25"); E(f"v_cvt_pk_bf16_f32 v{5+2*u}, v26, v27")
        E("v_max3_f32 v36, v24, v25, v36"); E("v_max3_f32 v36, v26, v27, v36")
    def vissue(d=None):
        i = st['issued']
        d = DV if d is None else d
        throttle(d); vload(i); st['issued'] += 1
        if i == 20: E("s_mov_b64 exec, 2"); E(f"ds_write_b32 v1, v1 offset:{C_V2-16}"); E("s_mov_b64 exec, -1")
        if i == kv:
            E("s_mov_b64 exec, 2"); E(f"ds_write_b32 v1, v1 offset:{C_VH-16}"); E("s_mov_b64 exec, -1")
    def expo(k):
        if 'c' in dbg: return
        E(f"v_lshlrev_b32 v24, 16, v{4+k}"); E(f"v_and_b32 v25, 0xffff0000, v{4+k}")
        E("v_fma_f32 v24, v24, s31, -v37"); E("v_fma_f32 v25, v25, s31, -v37")
        E("v_exp_f32 v24, v24"); E("v_exp_f32 v25, v25")
        E("v_add_f32 v38, v38, v24"); E("v_add_f32 v39, v39, v25")
        E(f"v_cvt_pk_bf16_f32 v{4+k}, v24, v25")
    qk_mfma(0); qk_mfma(1); qk_post(0)
    for _ in range(4): vissue(DQ)
    qk_mfma(2); qk_post(1)
    for _ in range(1 if DQ <= 4 else 4): vissue(DQ)
    for u in range(3, 8):
        qk_mfma(u); qk_post(u-1);
        if DQ > 4 or u % 2 == 0: vissue(DQ)
    qk_post(7)
    swap_reduce("v_max_f32", 36, 24, 16); swap_reduce("v_max_f32", 36, 24, 32)
    rnd(36, 36)
    E("v_mul_f32 v37, s31, v36"); E("v_mov_b32 v38, 0"); E("v_mov_b32 v39, 0")
    for k in range(16):
        if k % 4 == 0: vissue(DQ)
        expo(k)
    E("v_add_f32 v37, v38, v39")
    swap_reduce("v_add_f32", 37, 24, 16); swap_reduce("v_add_f32", 37, 24, 32)
    E("s_lshl_b32 s28, s3, 4"); E("v_add_u32 v3, s28, v0"); E("v_mov_b32 v24, 1")
    E("s_mov_b64 exec, 0x101"); E(f"ds_write_b64 v3, v[36:37] offset:{MLB}")
    E("s_mov_b64 exec, 1"); E(f"ds_add_u32 v2, v24 offset:{C_CNT}")
    E("s_mov_b64 exec, -1")
    stamp(3)
    E("v_and_b32 v3, 1, v0"); E("v_cmp_eq_u32 vcc, 1, v3")
    E("v_mov_b32 v32, 0x0c0c0100"); E("v_mov_b32 v33, 0x01000c0c"); E("v_cndmask_b32 v32, v32, v33, vcc")
    E("v_mov_b32 v34, 0x0c0c0302"); E("v_mov_b32 v33, 0x03020c0c"); E("v_cndmask_b32 v33, v34, v33, vcc")
    E("v_bfe_u32 v3, v0, 1, 2"); E("v_mov_b32 v34, 0x0c0c0c0c")
    for r in range(4):
        E(f"v_cmp_eq_u32 vcc, {r}, v3"); E(f"v_cndmask_b32 v{24+r}, v34, v32, vcc"); E(f"v_cndmask_b32 v{28+r}, v34, v33, vcc")
    E("v_and_b32 v3, 15, v0"); E("v_lshlrev_b32 v3, 5, v3"); E("v_bfe_u32 v2, v0, 4, 1"); E("v_lshl_add_u32 v3, v2, 4, v3")
    E("v_lshrrev_b32 v2, 5, v0"); E("v_lshl_add_u32 v3, v2, 9, v3"); E("s_lshl_b32 s28, s3, 10"); E("v_add_u32 v3, s28, v3")
    setscc()
    pv = dict(done=0)
    def pv_prep(i):
        A0 = 32 + 4 * (i & 1)
        for r in range(4): E(f"v_perm_b32 v{A0+r}, v{4+i//2}, v{4+i//2}, v{24+4*(i&1)+r}")
    def pv_mfma(i):
        A0 = 32 + 4 * (i & 1)
        c = "0" if i == 0 else "v[20:23]"
        E(f"v_mfma_f32_16x16x32_bf16 v[20:23], v[{A0}:{A0+3}], v[{SL(i)}:{SL(i)+3}], {c}")
    while st['issued'] < 32:
        vissue(DV + (DE if st['issued'] >= 32 - NE else 0))
        n = 0
        while pv['done'] <= st['issued'] - 1 - DV - xd - (DE if st['issued'] > 32 - NE else 0) and n < 3:
            pv_prep(pv['done']); pv_mfma(pv['done']); pv['done'] += 1; n += 1
    while pv['done'] < 32:
        i = pv['done']
        pv_prep(i)
        if 31 - i < DV + xd + DE: E(f"s_waitcnt vmcnt({31-i})")
        pv_mfma(i); pv['done'] += 1
    tagbyte(17, 0)
    E("v_mov_b32 v2, 0"); E("v_mov_b32 v4, 1")
    E("s_lshl_b32 s29, s4, 5"); E("s_add_u32 s29, s29, s5"); E("s_lshl_b32 s29, s29, 10")
    E(f"ds_write_b128 v3, v[20:23] offset:{OBUF}")
    E("s_mov_b64 exec, 1"); E(f"ds_add_rtn_u32 v4, v2, v4 offset:{C_OC}"); E("s_mov_b64 exec, -1")
    E("v_lshrrev_b32 v3, 5, v0"); E("v_lshlrev_b32 v3, 5, v3")
    stamp(4)
    E("s_waitcnt lgkmcnt(0)")
    E("v_readfirstlane_b32 s28, v4"); E("s_cmp_lg_u32 s28, 7"); E("s_cbranch_scc1 L_noreduce")
    E("s_mov_b32 s7, 0")
    E.label("L_red")
    E(f"ds_read_b32 v16, v2 offset:{C_FAC}")
    E(f"ds_read_b128 v[4:7], v3 offset:{FAC}"); E(f"ds_read_b128 v[8:11], v3 offset:{FAC+16}")
    for w in range(8): E(f"ds_read_b128 v[{40+4*w}:{43+4*w}], v1 offset:{OBUF + w*1024}")
    E("s_waitcnt lgkmcnt(8)")
    E("v_readfirstlane_b32 s6, v16"); E("s_add_u32 s7, s7, 1"); E(f"s_cmp_gt_u32 s7, {plim*8}"); E("s_cbranch_scc1 L_red2")
    E("s_cmp_eq_u32 s6, 0"); E("s_cbranch_scc1 L_red")
    E.label("L_red2")
    for w in range(8):
        E(f"s_waitcnt lgkmcnt({7-w})")
        for k in range(4):
            if w == 0: E(f"v_mul_f32 v{12+k}, v4, v{40+k}")
            else: E(f"v_fmac_f32 v{12+k}, v{4+w}, v{40+4*w+k}")
    settag(12, 17)
    intra_store(["buffer_store_dwordx4 v[12:15], v1, s[24:27], s29 offen"])
    stamp(5)
    E.label("L_noreduce")
    if 't' in dbg: E("s_branch L_sdone")
    E(f"s_sub_u32 s28, s5, {JW2}"); E("s_cmp_ge_u32 s28, 9"); E("s_cbranch_scc1 L_sdone")
    E("s_cmp_ge_u32 s3, 5"); E("s_cbranch_scc1 L_sdone")
    lds_wait(C_D2, 4, 2, 3, sleep=2)
    E("s_lshl_b32 s28, s3, 6"); E("v_add_u32 v2, s28, v0"); E("v_min_u32 v2, 287, v2")
    tagbyte(22, 2)
    E("v_lshlrev_b32 v1, 4, v2")
    E("v_lshlrev_b32 v2, 2, v2")
    E("s_mul_i32 s18, s4, 9216"); E(f"s_add_u32 s18, s18, {G_OFF}"); E("s_add_u32 s19, s18, 4608")
    E(f"s_mov_b32 s28, {LOG2E ^ 0x80000000}")
    stamp(6)
    def gbody():
        E("buffer_load_dwordx4 v[12:15], v1, s[24:27], s18 offen sc1"); E("buffer_load_dwordx4 v[16:19], v1, s[24:27], s19 offen sc1")
        E("s_waitcnt vmcnt(0)")
        lowcheck(20, list(range(12, 20)), 22)
    poll(gbody, sl_z)
    for e in range(4): E(f"v_mul_f32 v{16+e}, v{16+e}, v{12+e}")
    for e in range(4): E(f"v_mul_f32 v{12+e}, s28, v{12+e}")
    for e in range(4): E(f"v_exp_f32 v{12+e}, v{12+e}")
    for e in range(4): E(f"v_add_f32 v{12+e}, 1.0, v{12+e}")
    for e in range(4): E(f"v_rcp_f32 v{12+e}, v{12+e}")
    for e in range(4): E(f"v_mul_f32 v{16+e}, v{16+e}, v{12+e}")
    E("v_cvt_pk_bf16_f32 v12, v16, v18"); E("v_cvt_pk_bf16_f32 v13, v17, v19")
    E(f"ds_write_b32 v2, v12 offset:{ACT0}"); E(f"ds_write_b32 v2, v13 offset:{ACT1}")
    E("s_waitcnt lgkmcnt(0)")
    E("s_barrier")
    stamp(7)
    E.label("L_sdone")
    stamp_flush(); E("s_endpgm")

    E.label("L_tailprep")
    E("s_cmp_lt_u32 s5, 27"); E("s_cbranch_scc1 L_tail1")
    E("s_sub_u32 s28, s2, 224"); E("s_cmp_ge_u32 s28, 6"); E("s_cbranch_scc1 L_svc_end")
    lds_wait(C_GO, 4, 1, 8, sleep=4)
    if ko: lds_wait(C_OC, ko, 1, 8, sleep=2)
    else: lds_wait(C_VH, 1, 1, 8, sleep=4)
    E("s_mov_b32 s21, 2"); E("s_add_u32 s22, s4, 48"); E("s_mov_b32 s18, 8"); E("s_branch L_job")
    E.label("L_tail1")
    E("s_cmp_lt_u32 s5, 9"); E("s_cbranch_scc1 L_owner")

    if 't' not in dbg:
        lds_wait(C_Q, 1, 1, 8, sleep=8)
        mktag()
        own_map()
        modgather(1728, 2304)
        for i in range(3):
            E(f"v_add_f32 v{30+2*i}, 1.0, v{30+2*i}"); E(f"v_add_f32 v{31+2*i}, 1.0, v{31+2*i}")
            E(f"v_cvt_pk_bf16_f32 v12, v{30+2*i}, v{31+2*i}"); E(f"v_cvt_pk_bf16_f32 v13, v{24+2*i}, v{25+2*i}")
            a_, o_ = ((10, 0), (10, 128), (11, 0))[i]
            E(f"ds_write_b32 v{a_}, v12 offset:{CBUF+o_}"); E(f"ds_write_b32 v{a_}, v13 offset:{SBUF+o_}")
    E("s_mov_b32 s20, 9216")
    dma_addrs()
    E("s_cmp_ge_u32 s5, 18"); E("s_cselect_b32 s8, s50, s48"); E("s_cselect_b32 s9, s51, s49"); E("s_cselect_b32 s28, 18, 9"); E("s_sub_u32 s28, s5, s28")
    E(f"s_mov_b32 s10, {576*9216}"); E("s_mov_b32 s11, 0x20000")
    E("s_mul_i32 s16, s4, 1152"); E("s_lshl_b32 s28, s28, 7"); E("s_add_u32 s16, s16, s28")
    E(f"s_mul_i32 s28, s3, {144*9216}"); E("s_add_u32 s16, s16, s28")
    E("s_mul_i32 s29, s3, 18432"); E(f"s_add_u32 s29, s29, {SLOT_A}"); E("s_mov_b32 s19, 9")
    if ko: lds_wait(C_OC, ko, 1, 8, sleep=2)
    else: lds_wait(C_VH, 1, 1, 8, sleep=4)
    stamp(5)
    if 'w' not in dbg: dma_loop("L_dma_late", DW)
    if 't' in dbg:
        E("s_waitcnt vmcnt(0)"); stamp(6); E("s_branch L_svc_end")
    lds_wait(C_BAR, 1, 1, 8, sleep=4)
    E("s_mov_b32 s6, s28")
    op_addrs()
    E("s_mul_i32 s28, s3, 2304"); E(f"s_add_u32 s28, s28, {ZBUF}")
    E("v_mov_b32 v8, s28"); E(f"v_mov_b32 v9, {CBUF}"); E(f"v_mov_b32 v10, {SBUF}")
    E("v_cmp_eq_u32 vcc, 1, v6"); E("v_cndmask_b32 v4, v8, v9, vcc"); E("v_cmp_eq_u32 vcc, 2, v6"); E("v_cndmask_b32 v4, v4, v10, vcc")
    E("v_bfe_u32 v7, v0, 2, 1"); E("v_mul_u32_u24 v7, 1152, v7"); E("v_lshl_add_u32 v7, v5, 4, v7"); E("v_add_u32 v4, v4, v7")
    E("v_and_b32 v3, 1, v0"); E("v_xor_b32 v3, 1, v3"); E(f"v_mul_u32_u24 v3, {ACT0-ACT1}, v3"); E("v_lshl_add_u32 v3, v5, 4, v3")
    E("s_sub_u32 s30, s5, 9"); E("s_lshl_b32 s30, s30, 2"); E("s_add_u32 s30, s30, s3")
    E("s_lshl_b32 s17, s30, 7"); E("s_mul_i32 s29, s4, 9216"); E("s_add_u32 s17, s17, s29"); E(f"s_add_u32 s17, s17, {G_OFF}")
    E("s_mul_i32 s18, s4, 2304"); E(f"s_add_u32 s18, s18, {Z_OFF}")
    E("s_mul_i32 s20, s4, 640"); E(f"s_add_u32 s20, s20, {ST_OFF}")
    E(f"s_sub_u32 s30, s5, {JW2}"); E("s_lshl_b32 s30, s30, 2"); E("s_add_u32 s30, s30, s3"); E("s_lshl_b32 s30, s30, 7")
    E("s_mul_i32 s19, s4, 4608"); E("s_add_u32 s19, s19, s30"); E(f"s_add_u32 s19, s19, {Y_OFF}")
    E("v_lshlrev_b32 v12, 4, v0"); E("v_min_u32 v13, 15, v0"); E("v_lshlrev_b32 v13, 4, v13")
    E("v_add_u32 v14, s28, v12"); E("v_add_u32 v15, s28, v13")
    E("v_and_b32 v8, 15, v0"); E("v_lshrrev_b32 v9, 5, v0"); E("v_lshl_add_u32 v9, v9, 4, v8"); E("v_cmp_gt_u32 s[32:33], 18, v9")
    E("v_min_u32 v9, 17, v9"); E("v_bfe_u32 v10, v0, 4, 1"); E("v_mul_u32_u24 v11, 288, v10"); E("v_lshl_add_u32 v16, v9, 4, v11")
    E("v_lshlrev_b32 v10, 2, v10"); E("v_lshl_add_u32 v17, v8, 3, v10")
    E("v_lshlrev_b32 v7, 3, v0")
    E("s_mov_b32 s30, 0x3ae38e39"); E("s_mov_b32 s31, 0x3727c5ac")
    E("s_waitcnt vmcnt(0)")
    soft_barrier(C_D2, 1, 8, sleep=0)
    stamp(6)
    stage_b(SLOT_A, 18)
    E("v_lshrrev_b32 v5, 1, v0"); tagbyte(5, 5)
    E("v_lshrrev_b32 v6, 4, v16"); E("v_bfe_u32 v8, v0, 4, 1"); E("v_lshlrev_b32 v8, 1, v8"); E("v_sub_u32 v6, v6, v8"); tagbyte(6, 6)
    stamp(7)
    def zbody():
        E("buffer_load_dwordx4 v[24:27], v12, s[24:27], s18 offen sc1"); E("buffer_load_dwordx4 v[28:31], v12, s[24:27], s18 offen offset:1024 sc1")
        E("buffer_load_dwordx4 v[32:35], v13, s[24:27], s18 offen offset:2048 sc1"); E("buffer_load_dwordx4 v[20:23], v16, s[24:27], s20 offen sc1")
        E("s_waitcnt vmcnt(0)")
        E("v_max3_u32 v8, v24, v25, v26"); E("v_max3_u32 v9, v27, v28, v29"); E("v_max3_u32 v10, v30, v31, v32"); E("v_max3_u32 v11, v33, v34, v35")
        E("v_max3_u32 v8, v8, v10, v11"); E("v_xor_b32 v10, v6, v20"); E("v_max_u32 v8, v8, v9"); E("v_bitop3_b32 v10, v10, v22, v6 bitop3:0xf6")
        E("v_cmp_eq_u32 s[22:23], -1, v8"); E("v_and_b32 v10, 0xff, v10"); E("v_cmp_ne_u32 vcc, 0, v10"); E("s_or_b64 vcc, vcc, s[22:23]")
    poll(zbody, sl_z)
    stamp(8)
    E("ds_write_b128 v14, v[24:27]"); E("ds_write_b128 v14, v[28:31] offset:1024"); E("ds_write_b128 v15, v[32:35] offset:2048")
    F = ["v_add_f32 v18, v20, v22", "v_add_f32 v19, v21, v23", "v_cndmask_b32 v18, 0, v18, s[32:33]", "v_cndmask_b32 v19, 0, v19, s[32:33]"]
    for k in (1, 2, 4, 8):
        F += [f"v_add_f32_dpp v{r}, v{r}, v{r} row_ror:{k} row_mask:0xf bank_mask:0xf" for r in (18, 19)]
    F += ["v_mov_b32 v20, v18", "v_mov_b32 v21, v19", "v_permlane32_swap_b32 v18, v20", "v_permlane32_swap_b32 v19, v21", "v_add_f32 v18, v18, v20", "v_add_f32 v19, v19, v21"]
    R = lambda r: [f"v_cvt_pk_bf16_f32 v{r}, v{r}, v{r}", f"v_and_b32 v{r}, 0xffff0000, v{r}"]
    F += ["v_mul_f32 v18, s30, v18", "v_mul_f32 v19, s30, v19", "v_fma_f32 v19, -v18, v18, v19", "v_max_f32 v19, 0, v19"] + R(19)
    F += ["v_add_f32 v19, s31, v19"] + R(19) + ["v_sqrt_f32 v19, v19"] + R(18) + R(19) + ["v_rcp_f32 v19, v19"]
    for f in F[:4]: E(f)
    E("s_waitcnt lgkmcnt(0)")
    gemv(4, 0, 18, 8, F[4:])
    E("v_fma_f32 v8, -v18, v9, v8"); E("v_fma_f32 v8, v8, v19, v10")
    settag(8, 5)
    E("s_mov_b32 exec_hi, 0")
    intra_store(["buffer_store_dword v8, v17, s[24:27], s17 offen"])
    E("s_mov_b64 exec, -1")
    stamp(13)
    E(f"s_sub_u32 s28, s5, {JW2}"); E("s_cmp_ge_u32 s28, 9"); E("s_cbranch_scc1 L_svc_end")
    stage_b(SLOT_B, 18)
    tagbyte(5, 0)
    E("s_barrier")
    stamp(14)
    gemv(3, ACT1, 18, 8)
    settag(8, 5); settag(9, 5)
    E("s_mov_b64 exec, 0xffff")
    E("buffer_store_dwordx2 v[8:9], v7, s[24:27], s19 offen sc1")
    stamp(15)
    E("s_branch L_svc_end")

    E.label("L_owner")
    if 't' in dbg: E("s_waitcnt vmcnt(0)"); E("s_branch L_svc_end")
    E("s_waitcnt vmcnt(0)")
    lds_inc(C_D1, 1, 8)
    lds_wait(C_BAR, 1, 1, 8, sleep=8)
    E("s_mov_b32 s6, s28")
    mktag()
    op_addrs()
    lds_wait(C_D1, 4, 1, 8, sleep=4)
    stage_b(SLOT_A, 16)
    E("s_lshl_b32 s22, s5, 2"); E("s_add_u32 s22, s22, s3")
    E("v_and_b32 v20, 31, v0"); E("v_lshrrev_b32 v6, 1, v20"); E("v_and_b32 v7, 1, v0"); E("v_lshlrev_b32 v20, 2, v20")
    E("v_mul_u32_u24 v21, 1152, v7"); E("v_lshl_add_u32 v21, v6, 1, v21")
    E("v_mul_u32_u24 v22, 288, v7")
    E("v_lshlrev_b32 v5, 3, v6")
    E("s_lshl_b32 s23, s22, 5")
    srd(12, 36, 2304)
    E("buffer_load_ushort v16, v21, s[12:15], s23 offen")
    E("s_lshl_b32 s28, s22, 7"); E(f"s_add_u32 s28, s28, {MOD_OFF + 1152*8}"); E(f"s_add_u32 s29, s28, {1152*8}"); E(f"s_add_u32 s30, s29, {576*8}")
    def gabody():
        for k in range(2): E(f"buffer_load_dwordx2 v[{24+2*k}:{25+2*k}], v5, s[24:27], s{28+k} offen sc1")
        E("s_waitcnt vmcnt(0)")
        tagcheck(6, [25, 27])
    poll(gabody, 8)
    E("s_mov_b32 s19, s30")
    E("v_cmp_eq_u32 vcc, 0, v7"); E("v_mov_b32 v19, 0x03020c0c"); E("v_mov_b32 v6, 0x01000c0c"); E("v_cndmask_b32 v19, v19, v6, vcc")
    for k in range(2): E(f"v_perm_b32 v{17+k}, v{24+2*k}, v{24+2*k}, v19")
    E("v_lshlrev_b32 v16, 16, v16"); E("v_add_f32 v18, 1.0, v18"); rnd(18, 18)
    srd(12, 58, 2304)
    lds_wait(C_V2, 1, 1, 8, sleep=8)
    E("s_lshl_b32 s28, s4, 5"); E("s_lshl_b32 s29, s3, 3"); E("s_add_u32 s28, s28, s29")
    E("s_lshl_b32 s16, s28, 10"); E("s_add_u32 s17, s16, 4096")
    E("s_lshl_b32 s28, s28, 4"); E(f"s_add_u32 s28, s28, {ML_OFF}")
    E("v_and_b32 v5, 15, v0"); E("v_lshlrev_b32 v5, 3, v5")
    def mlbody():
        E("buffer_load_dwordx2 v[24:25], v5, s[24:27], s28 offen sc1"); E("s_waitcnt vmcnt(0)"); lowcheck(6, [25], 4)
    tagbyte(4, 0)
    E("v_lshrrev_b32 v2, 1, v0"); tagbyte(2, 2)
    poll(mlbody, sl_ml)
    E(f"s_mov_b32 s31, {LOG2E}")
    E("v_mov_b32 v6, v24"); row_reduce("v_max_f32", 6, (2, 4, 8))
    E("v_sub_f32 v6, v24, v6"); E("v_mul_f32 v6, s31, v6"); E("v_exp_f32 v6, v6"); E("v_mul_f32 v7, v6, v25")
    row_reduce("v_add_f32", 7, (2, 4, 8))
    E("v_rcp_f32 v7, v7"); E("v_lshrrev_b32 v5, 5, v0"); E("v_lshlrev_b32 v5, 2, v5"); E("v_mul_f32 v6, v6, v7")
    for s_ in range(8): E(f"ds_bpermute_b32 v{8+s_}, v5, v6 offset:{8*s_}")
    E("s_waitcnt lgkmcnt(0)")
    E("v_lshlrev_b32 v5, 4, v0"); E("v_lshlrev_b32 v7, 3, v0")
    E("s_lshr_b32 s28, s3, 1"); E("s_mul_i32 s28, s28, 1152"); E("s_and_b32 s29, s3, 1"); E("s_lshl_b32 s29, s29, 9"); E("s_add_u32 s28, s28, s29")
    E("v_add_u32 v6, s28, v7")
    E("s_lshl_b32 s28, s22, 7")
    E("s_mul_i32 s29, s4, 4608"); E("s_add_u32 s29, s29, s28")
    E(f"s_add_u32 s18, s29, {X_OFF}")
    XS = SO
    for k in range(8): E(f"s_add_u32 s{XS(k)}, s28, {X_OFF + k*4608}")
    E("s_mul_i32 s20, s4, 2304"); E("s_add_u32 s20, s20, s23"); E(f"s_add_u32 s20, s20, {Z_OFF}")
    E("s_mul_i32 s21, s4, 640"); E("s_lshl_b32 s28, s22, 3"); E("s_add_u32 s21, s21, s28"); E(f"s_add_u32 s21, s21, {ST_OFF}")
    stamp(6)
    lds_wait(C_OC, 8, 1, 23, sleep=1)
    stamp(7)
    def obody():
        for s in range(8): E(f"buffer_load_dwordx4 v[{24+4*s}:{27+4*s}], v5, s[24:27], s{16 + s//4} offen offset:{(s%4)*1024} sc1")
        for s in range(8):
            E(f"s_waitcnt vmcnt({7-s})")
            for k in range(4):
                if s == 0: E(f"v_mul_f32 v{56+k}, v8, v{24+k}")
                else: E(f"v_fmac_f32 v{56+k}, v{8+s}, v{24+4*s+k}")
            if s == 0: E("v_xor_b32 v60, v4, v24")
            else: E(f"v_bitop3_b32 v60, v60, v{24+4*s}, v4 bitop3:0xf6")
        E("v_and_b32 v60, 0xff, v60"); E("v_cmp_ne_u32 vcc, 0, v60")
    poll(obody, sl_o)
    stamp(8)
    E("v_cvt_pk_bf16_f32 v56, v56, v57"); E("v_cvt_pk_bf16_f32 v57, v58, v59")
    E(f"ds_write_b64 v6, v[56:57] offset:{ABUF}")
    E("s_waitcnt lgkmcnt(0)")
    E("s_barrier")
    gemv(3, ABUF, 16, 8)
    settag(8, 4); settag(9, 4)
    E("s_mov_b64 exec, 0xffff")
    E("buffer_store_dwordx2 v[8:9], v7, s[24:27], s18 offen sc1")
    E("s_mov_b64 exec, -1")
    stamp(9)
    def sum8():
        for k in range(8): E(f"buffer_load_dword v{24+k}, v20, s[24:27], s{XS(k)} offen sc1")
        E("s_waitcnt vmcnt(0)")
        lowcheck(32, list(range(24, 32)), 2)
    def add8():
        E("v_add_f32 v24, v24, v25"); E("v_add_f32 v26, v26, v27"); E("v_add_f32 v28, v28, v29"); E("v_add_f32 v30, v30, v31")
        E("v_add_f32 v24, v24, v26"); E("v_add_f32 v28, v28, v30"); E("v_add_f32 v24, v24, v28")
    E("s_lshr_b32 s28, s22, 1"); E("v_mov_b32 v23, s28"); tagbyte(23, 23)
    poll(sum8, 0)
    stamp(10)
    add8()
    rnd(24, 24); E("v_mul_f32 v24, v17, v24"); rnd(24, 24); E("v_add_f32 v16, v16, v24"); rnd(16, 16)
    E("v_mul_f32 v24, v16, v18"); E("v_mul_f32 v27, v16, v16")
    E("v_add_f32_dpp v26, v16, v16 row_ror:2 row_mask:0xf bank_mask:0xf")
    E("v_mov_b32_dpp v25, v24 quad_perm:[2,3,2,3] row_mask:0xf bank_mask:0xf")
    E("v_add_f32_dpp v27, v27, v27 row_ror:2 row_mask:0xf bank_mask:0xf")
    E("v_cvt_pk_bf16_f32 v24, v24, v25")
    for k in (4, 8):
        for r in (26, 27): E(f"v_add_f32_dpp v{r}, v{r}, v{r} row_ror:{k} row_mask:0xf bank_mask:0xf")
    E("v_mov_b32 v28, v26"); E("v_mov_b32 v29, v27")
    E("v_permlane16_swap_b32 v26, v28"); E("v_permlane16_swap_b32 v27, v29"); E("v_add_f32 v26, v26, v28"); E("v_add_f32 v27, v27, v29")
    settag(26, 23)
    intra_store(["s_mov_b64 exec, 0x33333333", "buffer_store_dword v24, v21, s[24:27], s20 offen", "s_mov_b64 exec, 3", "buffer_store_dwordx2 v[26:27], v22, s[24:27], s21 offen"])
    E("s_mov_b64 exec, -1")
    stamp(11)
    E("s_and_b32 s28, s5, 7"); E("s_cmp_lg_u32 s28, s4"); E("s_cbranch_scc1 L_svc_end")
    for k in range(8): E(f"s_add_u32 s{XS(k)}, s{XS(k)}, {Y_OFF - X_OFF}")
    E("v_bfe_u32 v5, v0, 1, 4"); E("v_lshlrev_b32 v5, 3, v5")
    def gbbody():
        E("buffer_load_dwordx2 v[24:25], v5, s[24:27], s19 offen sc1"); E("s_waitcnt vmcnt(0)"); tagcheck(6, [25])
    poll(gbbody, 1)
    E("v_perm_b32 v19, v24, v24, v19")
    poll(sum8, 0)
    stamp(14)
    add8()
    rnd(24, 24); E("v_mul_f32 v24, v19, v24"); rnd(24, 24); E("v_add_f32 v24, v16, v24")
    E("v_mov_b32_dpp v25, v24 quad_perm:[2,3,2,3] row_mask:0xf bank_mask:0xf")
    E("v_cvt_pk_bf16_f32 v24, v24, v25")
    E("s_mov_b64 exec, 0x33333333")
    E("buffer_store_dword v24, v21, s[12:15], s23 offen")
    stamp(15)
    E("s_cmp_lg_u32 s22, 0"); E("s_cbranch_scc1 L_svc_end")
    E("s_mov_b64 exec, 1"); E("v_mov_b32 v24, s35"); E(f"s_mov_b32 s28, {EP_OFF}")
    E("buffer_store_dword v24, v1, s[24:27], s28 offen")
    if probe is not None:
        E(f"s_add_u32 s29, s{70+probe}, 6000")
        E.label("L_probe")
        E("s_sleep 1"); E("s_memrealtime s[92:93]"); E("s_waitcnt lgkmcnt(0)"); E("s_sub_u32 s28, s29, s92"); E("s_cmp_gt_i32 s28, 0"); E("s_cbranch_scc1 L_probe")
    E.label("L_svc_end")
    E("s_waitcnt lgkmcnt(0)")
    if stamps: E("s_add_u32 s3, s3, 8")
    stamp_flush()
    E.label("L_exit")
    body = E.finish()
    verify_stream(body)
    return HDR + f"""; @launch grid=(256,1,1) block=(768,1,1) lds=163840
.amdgcn_target "amdgcn-amd-amdhsa--gfx950"
.text
.globl {NAME}_kernel
.p2align 8
.type {NAME}_kernel,@function
{NAME}_kernel:
{body}
    s_endpgm
.section .rodata,"a"
.p2align 6
.amdhsa_kernel {NAME}_kernel
  .amdhsa_next_free_vgpr 168
  .amdhsa_next_free_sgpr 102
  .amdhsa_accum_offset 168
  .amdhsa_group_segment_fixed_size 0
  .amdhsa_kernarg_size 112
  .amdhsa_float_denorm_mode_32 3
  .amdhsa_user_sgpr_count 2
  .amdhsa_user_sgpr_kernarg_segment_ptr 1
  .amdhsa_system_sgpr_workgroup_id_x 1
.end_amdhsa_kernel
"""

def verify_stream(body):
    import re
    lines = [l.strip() for l in body.split('\n')]
    a = lines.index('L_k0:'); b = lines.index('L_service:'); c = lines.index('L_stream:'); d = lines.index('L_noreduce:')
    path = lines[a:b] + lines[c:d]
    issued = []; landed = 0; skip = None; last = {}
    for l in path:
        if skip:
            if l == skip + ':': skip = None
            continue
        m = re.match(r's_cbranch_scc1 (L_th_\d+)', l)
        if m: skip = m.group(1); continue
        m = re.match(r'buffer_load_dwordx4 v\[(\d+):', l)
        if m: issued.append(int(m.group(1))); last[int(m.group(1))] = len(issued); continue
        m = re.search(r'vmcnt\((\d+)\)', l)
        if m: landed = max(landed, len(issued) - int(m.group(1))); continue
        m = re.match(r'v_mfma\S+ v\[(\d+):\d+\], v\[(\d+):\d+\], v\[(\d+):', l)
        if m:
            for r in (int(m.group(2)), int(m.group(3))):
                if r in last: assert last[r] <= landed, f"unwaited operand: {l}"
    assert len(issued) == 64 and landed == 64

HDR = """; adaLN-conditioned GQA decode attention + SwiGLU block, one persistent launch (generated by gen/gen3.py)
"""
if __name__ == '__main__':
    kw = eval('dict(' + (sys.argv[2] if len(sys.argv) > 2 else '') + ')')
    open(sys.argv[1], 'w').write(gen(**kw))
```

```python
import sys
from emit import Emit
NAME = 'adaLN_cond__gqa_block_cached__glu_gated_swiglu__decode'

O_OFF, G_OFF, X_OFF, Y_OFF = 0x0, 0x40000, 0x52000, 0x5B000
Z_OFF, ST_OFF, ML_OFF = 0x64000, 0x69000, 0x6B000
EP_OFF = 0xC0000
FL_OFF = 0xC1000
Q_OFF, MOD_OFF = 0xC8000, 0xD0000
STAMP_OFF = 0x100000
WS_SIZE = 0x200000
C_BAR, C_Q, C_CNT, C_D1, C_D2, C_CS, C_GO, C_J1, C_J2, C_KH, C_VH, C_OC, C_FAC, C_V2, C_TAG = range(0, 60, 4)
FAC, MLB, QBUF = 64, 128, 256
CBUF, SBUF = 1216, 3552
ABUF = 1216
ACT0, ACT1 = 15104, 64
JBUF, ZBUF, OBUF = 5888, 5888, 8192
SLOT_A, SLOT_B = 16384, 90112
LOG2E = 0x3fb8aa3b
SCALE = 0x3db504f3
JW2, JQ0 = 15, 24

def gen(D=3, DV=3, DQ=3, stamps=False, force_slow=False, sl_long=2, sl_bar=16, gateq=0, kvf='nt', wf='nt',
        plim=0x2000, probe=None, cpf=1, sl_o=0, sl_z=0, dbg='', XW=(0,0,0,0,0), XD=1, sl_ml=32, kh=16, sl_q=4,
        XG=1, DE=0, NE=0, kv=24, DW=0, DEA=0, DJ=0, K0=0, DJQ=4, EB=0, QB=0, ko=0):
    E = Emit()
    uid = [0]
    def L(p):
        uid[0] += 1
        return f"L_{p}_{uid[0]}"
    def stamp(k):
        if stamps:
            E("s_memrealtime s[92:93]"); E("s_waitcnt lgkmcnt(0)"); E(f"s_mov_b32 s{70+k}, s92")
    def stamp_flush():
        if stamps:
            E("s_mov_b64 exec, -1")
            E("v_mov_b32 v4, 0")
            for k in range(16): E(f"v_writelane_b32 v4, s{70+k}, {k}")
            E("s_lshl_b32 s28, s4, 5"); E("s_add_u32 s28, s28, s5"); E("s_mul_i32 s28, s28, 12"); E("s_add_u32 s28, s28, s3")
            E("s_lshl_b32 s28, s28, 6"); E(f"s_add_u32 s28, s28, {STAMP_OFF}")
            E("v_mbcnt_lo_u32_b32 v5, -1, 0"); E("v_mbcnt_hi_u32_b32 v5, -1, v5"); E("v_lshlrev_b32 v5, 2, v5")
            E("s_mov_b64 exec, 0xffff")
            E("buffer_store_dword v4, v5, s[24:27], s28 offen")
    def srd(r, p, size):
        E(f"s_mov_b32 s{r}, s{p}"); E(f"s_mov_b32 s{r+1}, s{p+1}"); E(f"s_mov_b32 s{r+2}, {size}"); E(f"s_mov_b32 s{r+3}, 0x20000")
    def lds_wait(off, val, vz, vt, sleep=2):
        a, b = L("lw"), L("lwd")
        E("s_mov_b32 s7, 0"); E.label(a)
        E(f"ds_read_b32 v{vt}, v{vz} offset:{off}"); E("s_waitcnt lgkmcnt(0)")
        E(f"v_readfirstlane_b32 s28, v{vt}"); E(f"s_cmp_ge_u32 s28, {val}"); E(f"s_cbranch_scc1 {b}")
        if sleep: E(f"s_sleep {sleep}")
        E("s_add_u32 s7, s7, 1"); E(f"s_cmp_lt_u32 s7, {plim*8}"); E(f"s_cbranch_scc1 {a}")
        E.label(b)
    def lds_set(off, vz, vt, val):
        E(f"v_mov_b32 v{vt}, {val}"); E(f"ds_write_b32 v{vz}, v{vt} offset:{off}")
    def lds_inc(off, vz, vt):
        E(f"v_mov_b32 v{vt}, 1"); E("s_mov_b64 exec, 1"); E(f"ds_add_u32 v{vz}, v{vt} offset:{off}"); E("s_mov_b64 exec, -1")
    def soft_barrier(off, vz, vt, sleep=0, n=4):
        lds_inc(off, vz, vt); lds_wait(off, n, vz, vt, sleep)
    def poll(body, sleep=0):
        a, b = L("pl"), L("pld")
        E("s_mov_b32 s7, 0"); E.label(a)
        body()
        E(f"s_cbranch_vccz {b}")
        if sleep: E(f"s_sleep {sleep}")
        E("s_add_u32 s7, s7, 1"); E(f"s_cmp_lt_u32 s7, {plim}"); E(f"s_cbranch_scc1 {a}")
        E.label(b)
    def intra_store(ins):
        a, b = L("is"), L("isd")
        E("s_cmp_eq_u32 s6, 3"); E(f"s_cbranch_scc1 {a}")
        for i in ins: E(i + (" sc1" if i.startswith("buffer_") else ""))
        E(f"s_branch {b}"); E.label(a)
        for i in ins: E(i)
        E.label(b)
    def rnd(dst, src):
        E(f"v_cvt_pk_bf16_f32 v{dst}, v{src}, v{src}"); E(f"v_and_b32 v{dst}, 0xffff0000, v{dst}")
    def row_reduce(op, r, rors):
        for k in rors: E(f"{op}_dpp v{r}, v{r}, v{r} row_ror:{k} row_mask:0xf bank_mask:0xf")
    def swap_reduce(op, r, t, which):
        E(f"v_mov_b32 v{t}, v{r}"); E(f"v_permlane{which}_swap_b32 v{r}, v{t}"); E(f"{op} v{r}, v{r}, v{t}")
    def mktag():
        E("s_waitcnt lgkmcnt(0)")
        E("s_mul_i32 s35, s34, 0x9E3779B1"); E("s_add_u32 s35, s35, 0x7F4A7C15"); E("s_mov_b32 s90, 0xffffff00")
    def tagcheck(acc, regs):
        E(f"v_xor_b32 v{acc}, s35, v{regs[0]}")
        for r in regs[1:]: E(f"v_bitop3_b32 v{acc}, v{acc}, v{r}, s35 bitop3:0xf6")
        E(f"v_cmp_ne_u32 vcc, 0, v{acc}")
    def tagbyte(dst, idx):
        E(f"v_and_b32 v{dst}, 3, v{idx}"); E(f"v_lshlrev_b32 v{dst}, 3, v{dst}"); E(f"v_lshrrev_b32 v{dst}, v{dst}, s35"); E(f"v_and_b32 v{dst}, 0xff, v{dst}")
    def settag(r, tg): E(f"v_and_or_b32 v{r}, v{r}, s{SM}, v{tg}")
    def lowcheck(acc, regs, tg):
        for r in regs: E(f"v_xor_b32 v{r}, v{tg}, v{r}")
        ortree(acc, regs)
    def ortree(acc, regs):
        regs = list(regs)
        if len(regs) == 1: E(f"v_and_b32 v{acc}, 0xff, v{regs[0]}")
        else:
            first = True
            while regs:
                if first:
                    t = regs[:3]; regs = regs[3:]; first = False
                    E(f"v_or3_b32 v{acc}, v{t[0]}, v{t[1]}, v{t[2]}") if len(t) == 3 else E(f"v_or_b32 v{acc}, v{t[0]}, v{t[1]}")
                else:
                    t = regs[:2]; regs = regs[2:]
                    E(f"v_or3_b32 v{acc}, v{acc}, v{t[0]}, v{t[1]}") if len(t) == 2 else E(f"v_or_b32 v{acc}, v{acc}, v{t[0]}")
            E(f"v_and_b32 v{acc}, 0xff, v{acc}")
        E(f"v_cmp_ne_u32 vcc, 0, v{acc}")
    SM = 90
    BR = lambda k: 96 + 4 * k
    AT = lambda k: 24 + 4 * k
    def op_addrs():
        E("v_bfe_u32 v4, v0, 2, 2"); E("v_lshrrev_b32 v5, 4, v0"); E("v_lshl_add_u32 v4, v5, 3, v4"); E("v_lshlrev_b32 v4, 7, v4")
        E("v_and_b32 v6, 3, v0"); E("v_lshl_add_u32 v4, v6, 3, v4")
        E("v_bfe_u32 v7, v0, 3, 2"); E("v_xor_b32 v7, s3, v7"); E("v_lshl_add_u32 v2, v7, 5, v4")
        E("v_and_b32 v3, 1, v0"); E("v_mul_u32_u24 v3, 1152, v3"); E("v_lshl_add_u32 v3, v5, 4, v3")
    def stage_b(slot, nk, wait=True):
        E(f"v_add_u32 v5, {slot}, v2"); E(f"v_add_u32 v6, {slot + 36864}, v2")
        for k in range(nk):
            a = 5 if k < 9 else 6; o = (k % 9) * 4096
            E(f"ds_read_b64_tr_b16 v[{BR(k)}:{BR(k)+1}], v{a} offset:{o}"); E(f"ds_read_b64_tr_b16 v[{BR(k)+2}:{BR(k)+3}], v{a} offset:{o+512}")
        if wait: E("s_waitcnt lgkmcnt(0)")
    def gemv(areg, aoff, nk, d, fill=None):
        fill = list(fill or [])
        per = -(-len(fill) // nk)
        for k in range(min(nk, 15)): E(f"ds_read_b128 v[{AT(k)}:{AT(k)+3}], v{areg} offset:{aoff + k*64}")
        issued = min(nk, 15)
        for k in range(nk):
            for _ in range(per):
                if fill: E(fill.pop(0))
            E(f"s_waitcnt lgkmcnt({issued - 1 - k})")
            c = "0" if k == 0 else f"v[{d}:{d+3}]"
            E(f"v_mfma_f32_16x16x32_bf16 v[{d}:{d+3}], v[{AT(k)}:{AT(k)+3}], v[{BR(k)}:{BR(k)+3}], {c}")
            if issued < nk:
                E(f"ds_read_b128 v[{AT(issued)}:{AT(issued)+3}], v{areg} offset:{aoff + issued*64}"); issued += 1
    def own_map():
        E("v_and_b32 v8, 31, v0"); E("v_min_u32 v9, 7, v8"); E("s_mul_i32 s28, s3, 72")
        E("v_add_u32 v8, s28, v8"); E("s_add_u32 s28, s28, 64"); E("v_add_u32 v9, s28, v9")
        E("v_lshrrev_b32 v11, 5, v0"); E("v_mul_u32_u24 v11, 1152, v11"); E("v_lshl_add_u32 v10, v8, 2, v11"); E("v_lshl_add_u32 v11, v9, 2, v11")
    def modgather(o1, o2):
        E(f"s_mov_b32 s30, {MOD_OFF + o1*8}"); E(f"s_mov_b32 s31, {MOD_OFF + o2*8}")
        E("v_lshlrev_b32 v12, 4, v8"); E("v_lshlrev_b32 v13, 4, v9")
        def body():
            for h in range(2):
                E(f"buffer_load_dwordx4 v[{36+12*h}:{39+12*h}], v12, s[24:27], s{30+h} offen sc1")
                E(f"buffer_load_dwordx4 v[{40+12*h}:{43+12*h}], v12, s[24:27], s{30+h} offen offset:512 sc1")
                E(f"buffer_load_dwordx4 v[{44+12*h}:{47+12*h}], v13, s[24:27], s{30+h} offen sc1")
            E("s_waitcnt vmcnt(0)")
            tagcheck(14, list(range(37, 60, 2)))
        poll(body, sl_long)
        E("v_cmp_gt_u32 vcc, 32, v0"); E("v_mov_b32 v12, 0x03020c0c"); E("v_mov_b32 v13, 0x01000c0c"); E("v_cndmask_b32 v12, v12, v13, vcc")
        for e in range(12): E(f"v_perm_b32 v{24+e}, v{36+2*e}, v{36+2*e}, v12")
    def dma_addrs():
        E("v_lshrrev_b32 v2, 3, v0"); E("v_mul_lo_u32 v2, v2, s20")
        E("v_and_b32 v3, 7, v0"); E("v_bfe_u32 v4, v0, 4, 1"); E("v_lshlrev_b32 v4, 1, v4"); E("v_xor_b32 v3, v3, v4")
        E("v_xor_b32 v4, 4, v3"); E("v_lshl_add_u32 v3, v3, 4, v2"); E("v_lshl_add_u32 v4, v4, 4, v2")
        E("s_lshl_b32 s17, s20, 3")
    def dma_loop(lab, depth):
        E.label(lab)
        E("s_mov_b32 m0, s29"); E("s_add_u32 s29, s29, 1024")
        E(f"buffer_load_dwordx4 v3, s[8:11], s16 offen {wf} lds"); E("s_add_u32 s16, s16, s17")
        if depth: E(f"s_waitcnt vmcnt({depth-1})")
        E("s_mov_b32 m0, s29"); E("s_add_u32 s29, s29, 1024")
        E(f"buffer_load_dwordx4 v4, s[8:11], s16 offen {wf} lds"); E("s_add_u32 s16, s16, s17")
        if depth: E(f"s_waitcnt vmcnt({depth-1})")
        E("s_sub_u32 s19, s19, 1"); E("s_cmp_lg_u32 s19, 0"); E(f"s_cbranch_scc1 {lab}")

    E.label("L_code0")
    if probe == 16: E("s_memrealtime s[86:87]")
    E("s_load_dwordx16 s[36:51], s[0:1], 0")
    E("s_load_dwordx8 s[52:59], s[0:1], 64")
    E("s_load_dwordx4 s[60:63], s[0:1], 96")
    E("s_cmp_ge_u32 s2, 256"); E("s_cbranch_scc1 L_exit")
    if stamps:
        for k in range(16): E(f"s_mov_b32 s{70+k}, 0")
    E("v_lshrrev_b32 v1, 6, v0"); E("v_and_b32 v0, 63, v0"); E("v_readfirstlane_b32 s3, v1")
    E("s_and_b32 s4, s2, 7"); E("s_lshr_b32 s5, s2, 3")
    E("s_sub_u32 s22, s2, 72"); E("s_cmp_lt_u32 s22, 48"); E("s_cselect_b32 s21, 2, 0")
    E(f"s_cmp_ge_u32 s5, {JQ0}"); E("s_cselect_b32 s21, 3, s21")
    if 'j' in dbg: E("s_mov_b32 s21, 0")
    E("s_cmp_ge_u32 s3, 8"); E("s_cbranch_scc1 L_service")

    SL = lambda i: 40 + 4 * i
    E("v_and_b32 v3, 3, v0"); E("v_lshrrev_b32 v4, 4, v0"); E("v_lshl_add_u32 v3, v4, 2, v3")
    E("v_bfe_u32 v4, v0, 2, 2"); E("v_lshlrev_b32 v4, 8, v4"); E("v_lshl_add_u32 v2, v3, 4, v4")
    E("s_and_b32 s28, s5, 16"); E("s_lshl_b32 s29, s4, 1"); E("s_add_u32 s28, s28, s29")
    E("s_lshl_b32 s28, s28, 3"); E("s_and_b32 s29, s5, 15"); E("s_add_u32 s28, s28, s29")
    E("s_lshl_b32 s28, s28, 6"); E("s_add_u32 s28, s28, s3"); E("s_lshl_b32 s33, s28, 12")
    E("s_add_u32 s32, s5, s3")
    def soff(u):
        E(f"s_add_u32 s30, s32, {u}"); E("s_and_b32 s30, s30, 7"); E("s_lshl_b32 s30, s30, 15"); E(f"s_add_u32 s{64+u if not stamps else 94+u}, s33, s30")
    SO = lambda u: (64 + u if not stamps else 94 + u)
    soff(0)
    if D > 4: soff(1)
    E("s_mov_b32 s10, 0x4000000"); E("s_mov_b32 s11, 0x20000")
    E("s_waitcnt lgkmcnt(0)")
    E("s_mov_b32 s8, s38"); E("s_mov_b32 s9, s39")
    stamp(0)
    def kload(i): E(f"buffer_load_dwordx4 v[{SL(i)}:{SL(i)+3}], v2, s[8:11], s{SO(i//4)} offen offset:{(i%4)*1024} {kvf}")
    def vload(i): E(f"buffer_load_dwordx4 v[{SL(i)}:{SL(i)+3}], v1, s[12:15], s{SO(i//4)} offen offset:{(i%4)*1024} {kvf}")
    E.label("L_k0")
    for i in range(K0): kload(i)
    E("s_barrier")
    for i in range(K0, D): kload(i)
    E("s_branch L_stream")

    E.label("L_service")
    E("v_mov_b32 v1, 0")
    E("s_sub_u32 s3, s3, 8")
    E("v_lshlrev_b32 v2, 2, v0"); E("s_mov_b64 exec, 0xffff"); E("ds_write_b32 v2, v1"); E("s_mov_b64 exec, -1")
    E("s_mov_b32 s18, 4")
    E("s_cmp_eq_u32 s21, 0"); E("s_cbranch_scc1 L_nojob")
    E.label("L_job")
    E("s_cmp_eq_u32 s21, 3")
    E("s_cselect_b32 s20, 8192, 6912") if False else (E("s_mov_b32 s20, 6912"), E("s_cselect_b32 s20, 8192, s20"))
    dma_addrs()
    own_map()
    E("s_lshl_b32 s28, s4, 3"); E(f"s_sub_u32 s29, s5, {JQ0}"); E("s_add_u32 s28, s28, s29")
    E("s_cmp_eq_u32 s21, 3"); E("s_cselect_b32 s22, s28, s22")
    E("s_mul_i32 s10, s20, 576"); E("s_mov_b32 s11, 0x20000")
    E("s_mul_i32 s16, s20, 144"); E("s_mul_i32 s16, s16, s3"); E("s_lshl_b32 s28, s22, 7"); E("s_add_u32 s16, s16, s28")
    E("s_mul_i32 s29, s3, 18432"); E(f"s_add_u32 s29, s29, {SLOT_B}"); E("s_mov_b32 s19, 9")
    E("s_mov_b32 s14, 2304"); E("s_mov_b32 s15, 0x20000")
    E("v_lshrrev_b32 v5, 5, v0"); E("v_mul_u32_u24 v5, 1152, v5"); E("v_and_b32 v6, 31, v0"); E("v_lshl_add_u32 v5, v6, 2, v5")
    E("s_waitcnt lgkmcnt(0)")
    if stamps:
        E("s_cmp_eq_u32 s18, 8"); E("s_cbranch_scc1 L_nost0"); stamp(0); E.label("L_nost0")
    E("s_cmp_eq_u32 s21, 3")
    E("s_cselect_b32 s8, s42, s56"); E("s_cselect_b32 s9, s43, s57"); E("s_cselect_b32 s12, s36, s54"); E("s_cselect_b32 s13, s37, s55")
    E("buffer_load_dword v16, v10, s[12:15], 0 offen"); E("buffer_load_dword v17, v10, s[12:15], 0 offen offset:128"); E("buffer_load_dword v18, v11, s[12:15], 0 offen")
    for i in range(9): E(f"buffer_load_dword v{60+i}, v5, s[12:15], 0 offen offset:{i*128}")
    E("s_cmp_eq_u32 s18, 8"); E("s_cbranch_scc1 L_dma_jq")
    E(f"s_load_dword s34, s[62:63], {EP_OFF}")
    srd(24, 62, WS_SIZE)
    if QB: E(f"s_cmp_eq_u32 s5, 27"); E("s_cbranch_scc1 L_jq")
    dma_loop("L_dma_job", DJ)
    E("s_barrier")
    E("s_branch L_job2")
    if QB:
        E.label("L_jq")
        E("s_barrier")
        dma_loop("L_dma_j27", QB - 1)
        E("s_branch L_job2")
    dma_loop("L_dma_jq", DJQ)
    E.label("L_job2")
    stamp(9)
    op_addrs()
    E("s_waitcnt vmcnt(18)")
    for i in range(3):
        E(f"v_and_b32 v{71+2*i}, 0xffff0000, v{16+i}"); E(f"v_lshlrev_b32 v{70+2*i}, 16, v{16+i}")
    E("s_cmp_eq_u32 s21, 3"); E("s_cbranch_scc1 L_prep_q")
    E(f"s_mov_b32 s28, {LOG2E ^ 0x80000000}"); E("s_mov_b32 s29, 0xb2a57060"); E("s_mov_b32 s30, 0x3f317218")
    for e in range(6): E(f"v_mul_f32 v{24+e}, s28, v{70+e}")
    for e in range(6): E(f"v_fma_f32 v{30+e}, v{70+e}, s28, -v{24+e}")
    for e in range(6): E(f"v_fma_f32 v{30+e}, v{70+e}, s29, v{30+e}")
    for e in range(6): E(f"v_min_f32 v{24+e}, 0x42fc0000, v{24+e}")
    for e in range(6): E(f"v_exp_f32 v{24+e}, v{24+e}")
    for e in range(6): E(f"v_mul_f32 v{30+e}, s30, v{30+e}")
    for e in range(6): E(f"v_fma_f32 v{24+e}, v{24+e}, v{30+e}, v{24+e}")
    for e in range(6): E(f"v_add_f32 v{24+e}, 1.0, v{24+e}")
    for e in range(6): E(f"v_rcp_f32 v{30+e}, v{24+e}")
    for e in range(6): E(f"v_mul_f32 v{36+e}, v{70+e}, v{30+e}")
    for e in range(6): E(f"v_fma_f32 v{70+e}, -v{24+e}, v{36+e}, v{70+e}")
    for e in range(6): E(f"v_fma_f32 v{70+e}, v{70+e}, v{30+e}, v{36+e}")
    def write_a(buf):
        for i in range(3): E(f"v_cvt_pk_bf16_f32 v{16+i}, v{70+2*i}, v{71+2*i}")
        E(f"ds_write_b32 v10, v16 offset:{buf}"); E(f"ds_write_b32 v10, v17 offset:{buf+128}"); E(f"ds_write_b32 v11, v18 offset:{buf}")
    write_a(JBUF)
    E("s_waitcnt vmcnt(0)")
    soft_barrier(C_J1, 1, 16, n="s18")
    stamp(10)
    stage_b(SLOT_B, 18, wait=False)
    E("s_branch L_gemv")
    E.label("L_prep_q")
    for i in range(9):
        E(f"v_lshlrev_b32 v{24+2*i}, 16, v{60+i}"); E(f"v_and_b32 v{25+2*i}, 0xffff0000, v{60+i}")
    E("v_add_f32 v16, v24, v25")
    for r in range(26, 42): E(f"v_add_f32 v16, v16, v{r}")
    row_reduce("v_add_f32", 16, (1, 2, 4, 8)); swap_reduce("v_add_f32", 16, 17, 16)
    E("s_mov_b32 s28, 0x3ae38e39"); E("s_mov_b32 s29, 0x3727c5ac")
    E("v_mul_f32 v16, s28, v16")
    E("v_mov_b32 v18, 0")
    for r in range(24, 42): E(f"v_sub_f32 v17, v{r}, v16"); E("v_fmac_f32 v18, v17, v17")
    row_reduce("v_add_f32", 18, (1, 2, 4, 8)); swap_reduce("v_add_f32", 18, 17, 16)
    E("v_mul_f32 v18, s28, v18"); rnd(18, 18); E("v_add_f32 v18, s29, v18"); rnd(18, 18)
    E("v_sqrt_f32 v18, v18"); rnd(18, 18); E("v_rcp_f32 v19, v18"); rnd(16, 16)
    for r in range(70, 76):
        E(f"v_sub_f32 v{r}, v{r}, v16"); rnd(r, r)
        E(f"v_mul_f32 v17, v{r}, v19"); E(f"v_fma_f32 v{r}, -v18, v17, v{r}"); E(f"v_fma_f32 v{r}, v{r}, v19, v17"); rnd(r, r)
    E("s_waitcnt vmcnt(0)")
    soft_barrier(C_J1, 1, 16)
    stamp(10)
    stage_b(SLOT_B, 18)
    mktag()
    modgather(0, 576)
    stamp(11)
    for e in range(6):
        E(f"v_add_f32 v{30+e}, 1.0, v{30+e}"); rnd(30+e, 30+e); E(f"v_mul_f32 v{70+e}, v{70+e}, v{30+e}"); rnd(70+e, 70+e)
        E(f"v_add_f32 v{70+e}, v{70+e}, v{24+e}")
    write_a(JBUF)
    soft_barrier(C_J2, 1, 16)
    E.label("L_gemv")
    gemv(3, JBUF, 18, 8)
    mktag()
    E("s_lshl_b32 s28, s22, 2"); E("s_add_u32 s28, s28, s3"); E("s_lshl_b32 s28, s28, 7")
    E(f"s_mov_b32 s29, {MOD_OFF}"); E("s_cmp_eq_u32 s21, 3"); E(f"s_cselect_b32 s29, {Q_OFF}, s29"); E("s_add_u32 s28, s28, s29")
    E("v_lshlrev_b32 v2, 3, v0")
    E("v_cvt_pk_bf16_f32 v8, v8, v9"); E("v_mov_b32 v9, s35")
    E("s_mov_b64 exec, 0xffff")
    E("buffer_store_dwordx2 v[8:9], v2, s[24:27], s28 offen sc1")
    E("s_mov_b64 exec, -1")
    lds_inc(C_GO, 1, 16)
    stamp(12)
    E("s_cmp_eq_u32 s18, 8"); E("s_cbranch_scc1 L_svc_end")
    E("s_branch L_roles")
    E.label("L_nojob")
    E("s_mov_b32 s20, 1152")
    dma_addrs()
    E("s_lshl_b32 s28, s4, 2"); E("s_add_u32 s28, s28, s3"); E(f"s_sub_u32 s30, s5, {JW2}")
    E("s_cmp_lt_u32 s5, 9")
    E("s_cselect_b32 s19, 8, 9"); E("s_cselect_b32 s30, s5, s30"); E(f"s_mov_b32 s29, {SLOT_B}"); E(f"s_cselect_b32 s29, {SLOT_A}, s29")
    E("s_mul_i32 s16, s19, 18432"); E("s_lshl_b32 s10, s16, 5"); E("s_mul_i32 s16, s16, s28"); E("s_lshl_b32 s30, s30, 7"); E("s_add_u32 s16, s16, s30")
    E("s_lshl_b32 s30, s19, 11"); E("s_mul_i32 s30, s30, s3"); E("s_add_u32 s29, s29, s30"); E("s_mov_b32 s11, 0x20000")
    E("s_waitcnt lgkmcnt(0)")
    E("s_cmp_lt_u32 s5, 9"); E("s_cselect_b32 s8, s44, s52"); E("s_cselect_b32 s9, s45, s53")
    stamp(0)
    if EB: E("s_barrier")
    if 'e' not in dbg: dma_loop("L_dma_early", DEA)
    E(f"s_load_dword s34, s[62:63], {EP_OFF}")
    srd(24, 62, WS_SIZE)
    if not EB: E("s_barrier")
    E.label("L_roles")
    for w in '0123':
        if w in dbg: E(f"s_cmp_eq_u32 s3, {w}"); E("s_cbranch_scc1 L_svc_end")
    if 'z' in dbg: E("s_branch L_tailprep")
    E("s_cmp_eq_u32 s3, 3"); E("s_cbranch_scc1 L_s3")
    E("s_cmp_eq_u32 s3, 0"); E("s_cbranch_scc1 L_s0")
    if cpf:
        E("s_cmp_lg_u32 s3, 2"); E("s_cbranch_scc1 L_tailprep")
        E("s_cmp_lg_u32 s5, 3"); E("s_cbranch_scc1 L_tailprep")
        E("s_getpc_b64 s[8:9]"); E.label("L_pc")
        E("s_sub_u32 s8, s8, L_pc-L_code0"); E("s_subb_u32 s9, s9, 0"); E("s_mov_b32 s10, L_exit-L_code0"); E("s_mov_b32 s11, 0x20000")
        E("v_lshlrev_b32 v2, 4, v0"); E("s_mov_b32 s16, 0")
        E.label("L_cpf")
        E("buffer_load_dwordx4 v[8:11], v2, s[8:11], s16 offen"); E("s_add_u32 s16, s16, 1024"); E("s_cmp_lt_u32 s16, s10"); E("s_cbranch_scc1 L_cpf")
    E("s_branch L_tailprep")

    E.label("L_s0")
    mktag()
    E("v_lshlrev_b32 v2, 4, v0")
    if kh:
        E("s_cmp_eq_u32 s21, 3"); E("s_cbranch_scc1 L_qgo")
        lds_wait(C_KH, 1, 1, 8, sleep=8)
        E.label("L_qgo")
    E("s_lshl_b32 s28, s4, 12"); E("s_bfe_u32 s29, s5, 0x10003"); E("s_lshl_b32 s29, s29, 11"); E("s_add_u32 s28, s28, s29"); E(f"s_add_u32 s28, s28, {Q_OFF}")
    def qbody():
        E("buffer_load_dwordx4 v[8:11], v2, s[24:27], s28 offen sc1"); E("buffer_load_dwordx4 v[12:15], v2, s[24:27], s28 offen offset:1024 sc1")
        E("s_waitcnt vmcnt(0)")
        tagcheck(16, [9, 11, 13, 15])
    poll(qbody, sl_q)
    E("s_mov_b32 s29, 0x05040100"); E("s_cmp_ge_u32 s5, 16"); E("s_cselect_b32 s29, 0x07060302, s29")
    E("v_perm_b32 v8, v10, v8, s29"); E("v_perm_b32 v9, v14, v12, s29"); E("v_lshlrev_b32 v3, 2, v0")
    E(f"ds_write_b32 v3, v8 offset:{QBUF}"); E(f"ds_write_b32 v3, v9 offset:{QBUF+256}")
    lds_set(C_Q, 1, 10, 1)
    stamp(3)
    lds_wait(C_BAR, 1, 1, 8, sleep=4)
    E("s_mov_b32 s6, s28")
    lds_wait(C_CNT, 8, 1, 8, sleep=4)
    E("v_and_b32 v3, 15, v0"); E("v_lshlrev_b32 v4, 3, v3"); E(f"ds_read_b64 v[8:9], v4 offset:{MLB}")
    E(f"s_mov_b32 s31, {LOG2E}")
    E("s_waitcnt lgkmcnt(0)")
    E("v_mov_b32 v10, v8"); row_reduce("v_max_f32", 10, (2, 4, 8))
    E("v_sub_f32 v12, v8, v10"); E("v_mul_f32 v12, s31, v12"); E("v_exp_f32 v12, v12"); E("v_mul_f32 v11, v12, v9")
    row_reduce("v_add_f32", 11, (2, 4, 8))
    E("v_and_b32 v5, 1, v0"); E("v_lshlrev_b32 v5, 5, v5"); E("v_lshrrev_b32 v6, 1, v3"); E("v_lshl_add_u32 v5, v6, 2, v5")
    E(f"ds_write_b32 v5, v12 offset:{FAC}")
    E("s_lshl_b32 s28, s4, 5"); E("s_add_u32 s28, s28, s5"); E("s_lshl_b32 s28, s28, 4"); E(f"s_add_u32 s28, s28, {ML_OFF}")
    E("s_lshl_b32 s29, s5, 1"); E("v_add_u32 v13, s29, v0"); tagbyte(13, 13); settag(11, 13)
    E("v_mov_b32 v6, s6"); E(f"ds_write_b32 v1, v6 offset:{C_FAC}")
    E("s_mov_b64 exec, 3")
    intra_store(["buffer_store_dwordx2 v[10:11], v4, s[24:27], s28 offen"])
    E("s_mov_b64 exec, -1")
    E("s_waitcnt lgkmcnt(0)")
    stamp(4)
    E("s_branch L_tailprep")

    E.label("L_s3")
    E("v_lshlrev_b32 v2, 4, v0")
    for k in range(4): E(f"v_mov_b32 v{4+k}, -1")
    E("s_cmp_ge_u32 s5, 9"); E("s_cbranch_scc1 L_noclr")
    E("s_mul_i32 s28, s4, 2304"); E("s_lshl_b32 s29, s5, 8"); E("s_add_u32 s28, s28, s29"); E(f"s_add_u32 s28, s28, {Z_OFF}")
    E("s_mov_b64 exec, 0xffff"); E("buffer_store_dwordx4 v[4:7], v2, s[24:27], s28 offen sc1"); E("s_mov_b64 exec, -1")
    E.label("L_noclr")
    E("s_getreg_b32 s29, hwreg(HW_REG_XCC_ID)"); E("s_and_b32 s29, s29, 15")
    mktag()
    E("v_mov_b32 v8, s29"); E("v_mov_b32 v9, s35")
    E("s_lshl_b32 s28, s4, 5"); E("s_add_u32 s28, s28, s5"); E("s_lshl_b32 s28, s28, 3"); E(f"s_add_u32 s28, s28, {FL_OFF}")
    E("s_waitcnt vmcnt(0)")
    stamp(1)
    E("s_mov_b64 exec, 1"); E("buffer_store_dwordx2 v[8:9], v1, s[24:27], s28 offen sc1"); E("s_mov_b64 exec, -1")
    if 'q' in dbg: E("s_branch L_svc_end")
    lds_wait(C_CNT, 8, 1, 8, sleep=8)
    E(f"s_mov_b32 s30, {FL_OFF}")
    def barbody():
        E("buffer_load_dwordx4 v[8:11], v2, s[24:27], s30 offen sc1"); E("buffer_load_dwordx4 v[12:15], v2, s[24:27], s30 offen offset:1024 sc1")
        E("s_waitcnt vmcnt(0)")
        tagcheck(16, [9, 11, 13, 15])
    poll(barbody, sl_bar)
    E("s_cmp_ge_u32 s4, 4"); E("s_cselect_b64 vcc, -1, 0")
    E("v_cndmask_b32 v8, v8, v12, vcc"); E("v_cndmask_b32 v10, v10, v14, vcc")
    E("v_xor_b32 v8, s29, v8"); E("v_bitop3_b32 v8, v8, v10, s29 bitop3:0xf6"); E("v_cmp_ne_u32 vcc, 0, v8")
    E("s_and_b32 s30, s4, 3"); E("s_lshl_b32 s30, s30, 4"); E("s_lshr_b64 s[30:31], vcc, s30"); E("s_and_b32 s30, s30, 0xffff")
    E(f"s_cselect_b32 s6, 1, {1 if force_slow else 3}")
    E("v_mov_b32 v8, s6"); E(f"ds_write_b32 v1, v8 offset:{C_BAR}")
    stamp(2)
    E("s_branch L_tailprep")

    E.label("L_stream")
    xd = XD if any(XW) else 0
    if xd:
        E(f"s_mov_b32 s23, {XW[0]}")
        for lo, n in zip((9, 15, 24), XW[1:4]):
            E(f"s_cmp_ge_u32 s5, {lo}"); E(f"s_cselect_b32 s23, {n}, s23")
        E("s_cmp_eq_u32 s5, 27"); E(f"s_cselect_b32 s23, {XW[4]}, s23")
    def setscc(): pass
    tp = [0]
    def throttle(d):
        thr = [0, 4, 2, 6, 1, 5, 3, 7][(tp[0] // XG) % 8]; tp[0] += 1
        if xd and thr < max(XW):
            if thr < min(XW): E(f"s_waitcnt vmcnt({d-1+xd})")
            else:
                a = L("th"); E(f"s_cmp_gt_u32 s23, {thr}"); E(f"s_waitcnt vmcnt({d-1+xd})"); E(f"s_cbranch_scc1 {a}"); E(f"s_waitcnt vmcnt({d-1})"); E.label(a)
        else: E(f"s_waitcnt vmcnt({d-1})")
    for u in range(2 if D > 4 else 1, 8): soff(u)
    srd(12, 40, 0x4000000); srd(24, 62, WS_SIZE)
    E(f"s_load_dword s34, s[62:63], {EP_OFF}")
    E("v_lshlrev_b32 v1, 4, v0")
    E("v_bfe_u32 v4, v0, 3, 1"); E("v_lshlrev_b32 v4, 8, v4"); E("v_lshl_add_u32 v36, v3, 4, v4")
    if gateq:
        E("s_cmp_lg_u32 s21, 3"); E("s_cbranch_scc1 L_kgo")
        E("v_mov_b32 v3, 0")
        lds_wait(C_GO, 4, 3, 4, sleep=4)
        E.label("L_kgo")
    setscc()
    for i in range(D, 32):
        throttle(D); kload(i)
        if kh and i == kh: E("v_mov_b32 v3, 0"); E("v_mov_b32 v4, 1"); E(f"ds_write_b32 v3, v4 offset:{C_KH}")
    stamp(1)
    E("v_mov_b32 v2, 0")
    if 'q' not in dbg: lds_wait(C_Q, 1, 2, 3)
    E(f"ds_read_b128 v[20:23], v36 offset:{QBUF}")
    E(f"s_mov_b32 s30, {SCALE}"); E(f"s_mov_b32 s31, {LOG2E}")
    E("v_mov_b32 v36, 0xff800000")
    mktag()
    stamp(2)
    setscc()
    st = dict(issued=0)
    def qk_mfma(u):
        n = (28 - 4*u) + st['issued']
        if n < D + xd + st['issued'] and n < 63: E(f"s_waitcnt vmcnt({n})")
        for i in range(4*u, 4*u+4):
            E(f"v_mfma_f32_16x16x32_bf16 v[{SL(i)}:{SL(i)+3}], v[{SL(i)}:{SL(i)+3}], v[20:23], 0")
    def qk_post(u):
        if 'c' in dbg: return
        T = [24, 25, 26, 27]
        for k in range(4):
            for a in range(4):
                r = SL(4*u + a) + k
                if k == 0: E(f"v_mov_b32_dpp v{T[a]}, v{r} quad_perm:[0,0,0,0] row_mask:0xf bank_mask:0xf")
                else: E(f"v_add_f32_dpp v{T[a]}, v{r}, v{T[a]} quad_perm:[{k},{k},{k},{k}] row_mask:0xf bank_mask:0xf")
        E("v_cvt_pk_bf16_f32 v28, v24, v25"); E("v_cvt_pk_bf16_f32 v29, v26, v27")
        E("v_lshlrev_b32 v24, 16, v28"); E("v_and_b32 v25, 0xffff0000, v28")
        E("v_lshlrev_b32 v26, 16, v29"); E("v_and_b32 v27, 0xffff0000, v29")
        for a in range(4): E(f"v_mul_f32 v{T[a]}, s30, v{T[a]}")
        E(f"v_cvt_pk_bf16_f32 v{4+2*u}, v24, v25"); E(f"v_cvt_pk_bf16_f32 v{5+2*u}, v26, v27")
        E("v_max3_f32 v36, v24, v25, v36"); E("v_max3_f32 v36, v26, v27, v36")
    def vissue(d=None):
        i = st['issued']
        d = DV if d is None else d
        throttle(d); vload(i); st['issued'] += 1
        if i == 20: E("s_mov_b64 exec, 2"); E(f"ds_write_b32 v1, v1 offset:{C_V2-16}"); E("s_mov_b64 exec, -1")
        if i == kv:
            E("s_mov_b64 exec, 2"); E(f"ds_write_b32 v1, v1 offset:{C_VH-16}"); E("s_mov_b64 exec, -1")
    def expo(k):
        if 'c' in dbg: return
        E(f"v_lshlrev_b32 v24, 16, v{4+k}"); E(f"v_and_b32 v25, 0xffff0000, v{4+k}")
        E("v_fma_f32 v24, v24, s31, -v37"); E("v_fma_f32 v25, v25, s31, -v37")
        E("v_exp_f32 v24, v24"); E("v_exp_f32 v25, v25")
        E("v_add_f32 v38, v38, v24"); E("v_add_f32 v39, v39, v25")
        E(f"v_cvt_pk_bf16_f32 v{4+k}, v24, v25")
    qk_mfma(0); qk_mfma(1); qk_post(0)
    for _ in range(4): vissue(DQ)
    qk_mfma(2); qk_post(1)
    for _ in range(1 if DQ <= 4 else 4): vissue(DQ)
    for u in range(3, 8):
        qk_mfma(u); qk_post(u-1);
        if DQ > 4 or u % 2 == 0: vissue(DQ)
    qk_post(7)
    swap_reduce("v_max_f32", 36, 24, 16); swap_reduce("v_max_f32", 36, 24, 32)
    rnd(36, 36)
    E("v_mul_f32 v37, s31, v36"); E("v_mov_b32 v38, 0"); E("v_mov_b32 v39, 0")
    for k in range(16):
        if k % 4 == 0: vissue(DQ)
        expo(k)
    E("v_add_f32 v37, v38, v39")
    swap_reduce("v_add_f32", 37, 24, 16); swap_reduce("v_add_f32", 37, 24, 32)
    E("s_lshl_b32 s28, s3, 4"); E("v_add_u32 v3, s28, v0"); E("v_mov_b32 v24, 1")
    E("s_mov_b64 exec, 0x101"); E(f"ds_write_b64 v3, v[36:37] offset:{MLB}")
    E("s_mov_b64 exec, 1"); E(f"ds_add_u32 v2, v24 offset:{C_CNT}")
    E("s_mov_b64 exec, -1")
    stamp(3)
    E("v_and_b32 v3, 1, v0"); E("v_cmp_eq_u32 vcc, 1, v3")
    E("v_mov_b32 v32, 0x0c0c0100"); E("v_mov_b32 v33, 0x01000c0c"); E("v_cndmask_b32 v32, v32, v33, vcc")
    E("v_mov_b32 v34, 0x0c0c0302"); E("v_mov_b32 v33, 0x03020c0c"); E("v_cndmask_b32 v33, v34, v33, vcc")
    E("v_bfe_u32 v3, v0, 1, 2"); E("v_mov_b32 v34, 0x0c0c0c0c")
    for r in range(4):
        E(f"v_cmp_eq_u32 vcc, {r}, v3"); E(f"v_cndmask_b32 v{24+r}, v34, v32, vcc"); E(f"v_cndmask_b32 v{28+r}, v34, v33, vcc")
    E("v_and_b32 v3, 15, v0"); E("v_lshlrev_b32 v3, 5, v3"); E("v_bfe_u32 v2, v0, 4, 1"); E("v_lshl_add_u32 v3, v2, 4, v3")
    E("v_lshrrev_b32 v2, 5, v0"); E("v_lshl_add_u32 v3, v2, 9, v3"); E("s_lshl_b32 s28, s3, 10"); E("v_add_u32 v3, s28, v3")
    setscc()
    pv = dict(done=0)
    def pv_prep(i):
        A0 = 32 + 4 * (i & 1)
        for r in range(4): E(f"v_perm_b32 v{A0+r}, v{4+i//2}, v{4+i//2}, v{24+4*(i&1)+r}")
    def pv_mfma(i):
        A0 = 32 + 4 * (i & 1)
        c = "0" if i == 0 else "v[20:23]"
        E(f"v_mfma_f32_16x16x32_bf16 v[20:23], v[{A0}:{A0+3}], v[{SL(i)}:{SL(i)+3}], {c}")
    while st['issued'] < 32:
        vissue(DV + (DE if st['issued'] >= 32 - NE else 0))
        n = 0
        while pv['done'] <= st['issued'] - 1 - DV - xd - (DE if st['issued'] > 32 - NE else 0) and n < 3:
            pv_prep(pv['done']); pv_mfma(pv['done']); pv['done'] += 1; n += 1
    while pv['done'] < 32:
        i = pv['done']
        pv_prep(i)
        if 31 - i < DV + xd + DE: E(f"s_waitcnt vmcnt({31-i})")
        pv_mfma(i); pv['done'] += 1
    tagbyte(17, 0)
    E("v_mov_b32 v2, 0"); E("v_mov_b32 v4, 1")
    E("s_lshl_b32 s29, s4, 5"); E("s_add_u32 s29, s29, s5"); E("s_lshl_b32 s29, s29, 10")
    E(f"ds_write_b128 v3, v[20:23] offset:{OBUF}")
    E("s_mov_b64 exec, 1"); E(f"ds_add_rtn_u32 v4, v2, v4 offset:{C_OC}"); E("s_mov_b64 exec, -1")
    E("v_lshrrev_b32 v3, 5, v0"); E("v_lshlrev_b32 v3, 5, v3")
    stamp(4)
    E("s_waitcnt lgkmcnt(0)")
    E("v_readfirstlane_b32 s28, v4"); E("s_cmp_lg_u32 s28, 7"); E("s_cbranch_scc1 L_noreduce")
    E("s_mov_b32 s7, 0")
    E.label("L_red")
    E(f"ds_read_b32 v16, v2 offset:{C_FAC}")
    E(f"ds_read_b128 v[4:7], v3 offset:{FAC}"); E(f"ds_read_b128 v[8:11], v3 offset:{FAC+16}")
    for w in range(8): E(f"ds_read_b128 v[{40+4*w}:{43+4*w}], v1 offset:{OBUF + w*1024}")
    E("s_waitcnt lgkmcnt(8)")
    E("v_readfirstlane_b32 s6, v16"); E("s_add_u32 s7, s7, 1"); E(f"s_cmp_gt_u32 s7, {plim*8}"); E("s_cbranch_scc1 L_red2")
    E("s_cmp_eq_u32 s6, 0"); E("s_cbranch_scc1 L_red")
    E.label("L_red2")
    for w in range(8):
        E(f"s_waitcnt lgkmcnt({7-w})")
        for k in range(4):
            if w == 0: E(f"v_mul_f32 v{12+k}, v4, v{40+k}")
            else: E(f"v_fmac_f32 v{12+k}, v{4+w}, v{40+4*w+k}")
    settag(12, 17)
    intra_store(["buffer_store_dwordx4 v[12:15], v1, s[24:27], s29 offen"])
    stamp(5)
    E.label("L_noreduce")
    if 't' in dbg: E("s_branch L_sdone")
    E(f"s_sub_u32 s28, s5, {JW2}"); E("s_cmp_ge_u32 s28, 9"); E("s_cbranch_scc1 L_sdone")
    E("s_cmp_ge_u32 s3, 5"); E("s_cbranch_scc1 L_sdone")
    lds_wait(C_D2, 4, 2, 3, sleep=2)
    E("s_lshl_b32 s28, s3, 6"); E("v_add_u32 v2, s28, v0"); E("v_min_u32 v2, 287, v2")
    tagbyte(22, 2)
    E("v_lshlrev_b32 v1, 4, v2")
    E("v_lshlrev_b32 v2, 2, v2")
    E("s_mul_i32 s18, s4, 9216"); E(f"s_add_u32 s18, s18, {G_OFF}"); E("s_add_u32 s19, s18, 4608")
    E(f"s_mov_b32 s28, {LOG2E ^ 0x80000000}")
    stamp(6)
    def gbody():
        E("buffer_load_dwordx4 v[12:15], v1, s[24:27], s18 offen sc1"); E("buffer_load_dwordx4 v[16:19], v1, s[24:27], s19 offen sc1")
        E("s_waitcnt vmcnt(0)")
        lowcheck(20, list(range(12, 20)), 22)
    poll(gbody, sl_z)
    for e in range(4): E(f"v_mul_f32 v{16+e}, v{16+e}, v{12+e}")
    for e in range(4): E(f"v_mul_f32 v{12+e}, s28, v{12+e}")
    for e in range(4): E(f"v_exp_f32 v{12+e}, v{12+e}")
    for e in range(4): E(f"v_add_f32 v{12+e}, 1.0, v{12+e}")
    for e in range(4): E(f"v_rcp_f32 v{12+e}, v{12+e}")
    for e in range(4): E(f"v_mul_f32 v{16+e}, v{16+e}, v{12+e}")
    E("v_cvt_pk_bf16_f32 v12, v16, v18"); E("v_cvt_pk_bf16_f32 v13, v17, v19")
    E(f"ds_write_b32 v2, v12 offset:{ACT0}"); E(f"ds_write_b32 v2, v13 offset:{ACT1}")
    E("s_waitcnt lgkmcnt(0)")
    E("s_barrier")
    stamp(7)
    E.label("L_sdone")
    stamp_flush(); E("s_endpgm")

    E.label("L_tailprep")
    E("s_cmp_lt_u32 s5, 27"); E("s_cbranch_scc1 L_tail1")
    E("s_sub_u32 s28, s2, 224"); E("s_cmp_ge_u32 s28, 6"); E("s_cbranch_scc1 L_svc_end")
    lds_wait(C_GO, 4, 1, 8, sleep=4)
    if ko: lds_wait(C_OC, ko, 1, 8, sleep=2)
    else: lds_wait(C_VH, 1, 1, 8, sleep=4)
    E("s_mov_b32 s21, 2"); E("s_add_u32 s22, s4, 48"); E("s_mov_b32 s18, 8"); E("s_branch L_job")
    E.label("L_tail1")
    E("s_cmp_lt_u32 s5, 9"); E("s_cbranch_scc1 L_owner")

    if 't' not in dbg:
        lds_wait(C_Q, 1, 1, 8, sleep=8)
        mktag()
        own_map()
        modgather(1728, 2304)
        for i in range(3):
            E(f"v_add_f32 v{30+2*i}, 1.0, v{30+2*i}"); E(f"v_add_f32 v{31+2*i}, 1.0, v{31+2*i}")
            E(f"v_cvt_pk_bf16_f32 v12, v{30+2*i}, v{31+2*i}"); E(f"v_cvt_pk_bf16_f32 v13, v{24+2*i}, v{25+2*i}")
            a_, o_ = ((10, 0), (10, 128), (11, 0))[i]
            E(f"ds_write_b32 v{a_}, v12 offset:{CBUF+o_}"); E(f"ds_write_b32 v{a_}, v13 offset:{SBUF+o_}")
    E("s_mov_b32 s20, 9216")
    dma_addrs()
    E("s_cmp_ge_u32 s5, 18"); E("s_cselect_b32 s8, s50, s48"); E("s_cselect_b32 s9, s51, s49"); E("s_cselect_b32 s28, 18, 9"); E("s_sub_u32 s28, s5, s28")
    E(f"s_mov_b32 s10, {576*9216}"); E("s_mov_b32 s11, 0x20000")
    E("s_mul_i32 s16, s4, 1152"); E("s_lshl_b32 s28, s28, 7"); E("s_add_u32 s16, s16, s28")
    E(f"s_mul_i32 s28, s3, {144*9216}"); E("s_add_u32 s16, s16, s28")
    E("s_mul_i32 s29, s3, 18432"); E(f"s_add_u32 s29, s29, {SLOT_A}"); E("s_mov_b32 s19, 9")
    if ko: lds_wait(C_OC, ko, 1, 8, sleep=2)
    else: lds_wait(C_VH, 1, 1, 8, sleep=4)
    stamp(5)
    if 'w' not in dbg: dma_loop("L_dma_late", DW)
    if 't' in dbg:
        E("s_waitcnt vmcnt(0)"); stamp(6); E("s_branch L_svc_end")
    lds_wait(C_BAR, 1, 1, 8, sleep=4)
    E("s_mov_b32 s6, s28")
    op_addrs()
    E("s_mul_i32 s28, s3, 2304"); E(f"s_add_u32 s28, s28, {ZBUF}")
    E("v_mov_b32 v8, s28"); E(f"v_mov_b32 v9, {CBUF}"); E(f"v_mov_b32 v10, {SBUF}")
    E("v_cmp_eq_u32 vcc, 1, v6"); E("v_cndmask_b32 v4, v8, v9, vcc"); E("v_cmp_eq_u32 vcc, 2, v6"); E("v_cndmask_b32 v4, v4, v10, vcc")
    E("v_bfe_u32 v7, v0, 2, 1"); E("v_mul_u32_u24 v7, 1152, v7"); E("v_lshl_add_u32 v7, v5, 4, v7"); E("v_add_u32 v4, v4, v7")
    E("v_and_b32 v3, 1, v0"); E("v_xor_b32 v3, 1, v3"); E(f"v_mul_u32_u24 v3, {ACT0-ACT1}, v3"); E("v_lshl_add_u32 v3, v5, 4, v3")
    E("s_sub_u32 s30, s5, 9"); E("s_lshl_b32 s30, s30, 2"); E("s_add_u32 s30, s30, s3")
    E("s_lshl_b32 s17, s30, 7"); E("s_mul_i32 s29, s4, 9216"); E("s_add_u32 s17, s17, s29"); E(f"s_add_u32 s17, s17, {G_OFF}")
    E("s_mul_i32 s18, s4, 2304"); E(f"s_add_u32 s18, s18, {Z_OFF}")
    E("s_mul_i32 s20, s4, 640"); E(f"s_add_u32 s20, s20, {ST_OFF}")
    E(f"s_sub_u32 s30, s5, {JW2}"); E("s_lshl_b32 s30, s30, 2"); E("s_add_u32 s30, s30, s3"); E("s_lshl_b32 s30, s30, 7")
    E("s_mul_i32 s19, s4, 4608"); E("s_add_u32 s19, s19, s30"); E(f"s_add_u32 s19, s19, {Y_OFF}")
    E("v_lshlrev_b32 v12, 4, v0"); E("v_min_u32 v13, 15, v0"); E("v_lshlrev_b32 v13, 4, v13")
    E("v_add_u32 v14, s28, v12"); E("v_add_u32 v15, s28, v13")
    E("v_and_b32 v8, 15, v0"); E("v_lshrrev_b32 v9, 5, v0"); E("v_lshl_add_u32 v9, v9, 4, v8"); E("v_cmp_gt_u32 s[32:33], 18, v9")
    E("v_min_u32 v9, 17, v9"); E("v_bfe_u32 v10, v0, 4, 1"); E("v_mul_u32_u24 v11, 288, v10"); E("v_lshl_add_u32 v16, v9, 4, v11")
    E("v_lshlrev_b32 v10, 2, v10"); E("v_lshl_add_u32 v17, v8, 3, v10")
    E("v_lshlrev_b32 v7, 3, v0")
    E("s_mov_b32 s30, 0x3ae38e39"); E("s_mov_b32 s31, 0x3727c5ac")
    E("s_waitcnt vmcnt(0)")
    soft_barrier(C_D2, 1, 8, sleep=0)
    stamp(6)
    stage_b(SLOT_A, 18)
    E("v_lshrrev_b32 v5, 1, v0"); tagbyte(5, 5)
    E("v_lshrrev_b32 v6, 4, v16"); E("v_bfe_u32 v8, v0, 4, 1"); E("v_lshlrev_b32 v8, 1, v8"); E("v_sub_u32 v6, v6, v8"); tagbyte(6, 6)
    stamp(7)
    def zbody():
        E("buffer_load_dwordx4 v[24:27], v12, s[24:27], s18 offen sc1"); E("buffer_load_dwordx4 v[28:31], v12, s[24:27], s18 offen offset:1024 sc1")
        E("buffer_load_dwordx4 v[32:35], v13, s[24:27], s18 offen offset:2048 sc1"); E("buffer_load_dwordx4 v[20:23], v16, s[24:27], s20 offen sc1")
        E("s_waitcnt vmcnt(0)")
        E("v_max3_u32 v8, v24, v25, v26"); E("v_max3_u32 v9, v27, v28, v29"); E("v_max3_u32 v10, v30, v31, v32"); E("v_max3_u32 v11, v33, v34, v35")
        E("v_max3_u32 v8, v8, v10, v11"); E("v_xor_b32 v20, v6, v20"); E("v_xor_b32 v22, v6, v22"); E("v_max_u32 v8, v8, v9"); E("v_or_b32 v10, v20, v22")
        E("v_cmp_eq_u32 s[22:23], -1, v8"); E("v_and_b32 v10, 0xff, v10"); E("v_cmp_ne_u32 vcc, 0, v10"); E("s_or_b64 vcc, vcc, s[22:23]")
    poll(zbody, sl_z)
    stamp(8)
    E("ds_write_b128 v14, v[24:27]"); E("ds_write_b128 v14, v[28:31] offset:1024"); E("ds_write_b128 v15, v[32:35] offset:2048")
    F = ["v_add_f32 v18, v20, v22", "v_add_f32 v19, v21, v23", "v_cndmask_b32 v18, 0, v18, s[32:33]", "v_cndmask_b32 v19, 0, v19, s[32:33]"]
    for k in (1, 2, 4, 8):
        F += [f"v_add_f32_dpp v{r}, v{r}, v{r} row_ror:{k} row_mask:0xf bank_mask:0xf" for r in (18, 19)]
    F += ["v_mov_b32 v20, v18", "v_mov_b32 v21, v19", "v_permlane32_swap_b32 v18, v20", "v_permlane32_swap_b32 v19, v21", "v_add_f32 v18, v18, v20", "v_add_f32 v19, v19, v21"]
    R = lambda r: [f"v_cvt_pk_bf16_f32 v{r}, v{r}, v{r}", f"v_and_b32 v{r}, 0xffff0000, v{r}"]
    F += ["v_mul_f32 v18, s30, v18", "v_mul_f32 v19, s30, v19", "v_fma_f32 v19, -v18, v18, v19", "v_max_f32 v19, 0, v19"] + R(19)
    F += ["v_add_f32 v19, s31, v19"] + R(19) + ["v_sqrt_f32 v19, v19"] + R(18) + R(19) + ["v_rcp_f32 v19, v19"]
    for f in F[:4]: E(f)
    E("s_waitcnt lgkmcnt(0)")
    gemv(4, 0, 18, 8, F[4:])
    E("v_fma_f32 v8, -v18, v9, v8"); E("v_fma_f32 v8, v8, v19, v10")
    settag(8, 5)
    E("s_mov_b32 exec_hi, 0")
    intra_store(["buffer_store_dword v8, v17, s[24:27], s17 offen"])
    E("s_mov_b64 exec, -1")
    stamp(13)
    E(f"s_sub_u32 s28, s5, {JW2}"); E("s_cmp_ge_u32 s28, 9"); E("s_cbranch_scc1 L_svc_end")
    stage_b(SLOT_B, 18)
    tagbyte(5, 0)
    E("s_barrier")
    stamp(14)
    gemv(3, ACT1, 18, 8)
    settag(8, 5); settag(9, 5)
    E("s_mov_b64 exec, 0xffff")
    E("buffer_store_dwordx2 v[8:9], v7, s[24:27], s19 offen sc1")
    stamp(15)
    E("s_branch L_svc_end")

    E.label("L_owner")
    if 't' in dbg: E("s_waitcnt vmcnt(0)"); E("s_branch L_svc_end")
    E("s_waitcnt vmcnt(0)")
    lds_inc(C_D1, 1, 8)
    lds_wait(C_BAR, 1, 1, 8, sleep=8)
    E("s_mov_b32 s6, s28")
    mktag()
    op_addrs()
    lds_wait(C_D1, 4, 1, 8, sleep=4)
    stage_b(SLOT_A, 16)
    E("s_lshl_b32 s22, s5, 2"); E("s_add_u32 s22, s22, s3")
    E("v_and_b32 v20, 31, v0"); E("v_lshrrev_b32 v6, 1, v20"); E("v_and_b32 v7, 1, v0"); E("v_lshlrev_b32 v20, 2, v20")
    E("v_mul_u32_u24 v21, 1152, v7"); E("v_lshl_add_u32 v21, v6, 1, v21")
    E("v_mul_u32_u24 v22, 288, v7")
    E("v_lshlrev_b32 v5, 3, v6")
    E("s_lshl_b32 s23, s22, 5")
    srd(12, 36, 2304)
    E("buffer_load_ushort v16, v21, s[12:15], s23 offen")
    E("s_lshl_b32 s28, s22, 7"); E(f"s_add_u32 s28, s28, {MOD_OFF + 1152*8}"); E(f"s_add_u32 s29, s28, {1152*8}"); E(f"s_add_u32 s30, s29, {576*8}")
    def gabody():
        for k in range(2): E(f"buffer_load_dwordx2 v[{24+2*k}:{25+2*k}], v5, s[24:27], s{28+k} offen sc1")
        E("s_waitcnt vmcnt(0)")
        tagcheck(6, [25, 27])
    poll(gabody, 8)
    E("s_mov_b32 s19, s30")
    E("v_cmp_eq_u32 vcc, 0, v7"); E("v_mov_b32 v19, 0x03020c0c"); E("v_mov_b32 v6, 0x01000c0c"); E("v_cndmask_b32 v19, v19, v6, vcc")
    for k in range(2): E(f"v_perm_b32 v{17+k}, v{24+2*k}, v{24+2*k}, v19")
    E("v_lshlrev_b32 v16, 16, v16"); E("v_add_f32 v18, 1.0, v18"); rnd(18, 18)
    srd(12, 58, 2304)
    lds_wait(C_V2, 1, 1, 8, sleep=8)
    E("s_lshl_b32 s28, s4, 5"); E("s_lshl_b32 s29, s3, 3"); E("s_add_u32 s28, s28, s29")
    E("s_lshl_b32 s16, s28, 10"); E("s_add_u32 s17, s16, 4096")
    E("s_lshl_b32 s28, s28, 4"); E(f"s_add_u32 s28, s28, {ML_OFF}")
    E("v_and_b32 v5, 15, v0"); E("v_lshlrev_b32 v5, 3, v5")
    def mlbody():
        E("buffer_load_dwordx2 v[24:25], v5, s[24:27], s28 offen sc1"); E("s_waitcnt vmcnt(0)"); lowcheck(6, [25], 4)
    tagbyte(4, 0)
    E("v_lshrrev_b32 v2, 1, v0"); tagbyte(2, 2)
    poll(mlbody, sl_ml)
    E(f"s_mov_b32 s31, {LOG2E}")
    E("v_mov_b32 v6, v24"); row_reduce("v_max_f32", 6, (2, 4, 8))
    E("v_sub_f32 v6, v24, v6"); E("v_mul_f32 v6, s31, v6"); E("v_exp_f32 v6, v6"); E("v_mul_f32 v7, v6, v25")
    row_reduce("v_add_f32", 7, (2, 4, 8))
    E("v_rcp_f32 v7, v7"); E("v_lshrrev_b32 v5, 5, v0"); E("v_lshlrev_b32 v5, 2, v5"); E("v_mul_f32 v6, v6, v7")
    for s_ in range(8): E(f"ds_bpermute_b32 v{8+s_}, v5, v6 offset:{8*s_}")
    E("s_waitcnt lgkmcnt(0)")
    E("v_lshlrev_b32 v5, 4, v0"); E("v_lshlrev_b32 v7, 3, v0")
    E("s_lshr_b32 s28, s3, 1"); E("s_mul_i32 s28, s28, 1152"); E("s_and_b32 s29, s3, 1"); E("s_lshl_b32 s29, s29, 9"); E("s_add_u32 s28, s28, s29")
    E("v_add_u32 v6, s28, v7")
    E("s_lshl_b32 s28, s22, 7")
    E("s_mul_i32 s29, s4, 4608"); E("s_add_u32 s29, s29, s28")
    E(f"s_add_u32 s18, s29, {X_OFF}")
    XS = SO
    for k in range(8): E(f"s_add_u32 s{XS(k)}, s28, {X_OFF + k*4608}")
    E("s_mul_i32 s20, s4, 2304"); E("s_add_u32 s20, s20, s23"); E(f"s_add_u32 s20, s20, {Z_OFF}")
    E("s_mul_i32 s21, s4, 640"); E("s_lshl_b32 s28, s22, 3"); E("s_add_u32 s21, s21, s28"); E(f"s_add_u32 s21, s21, {ST_OFF}")
    stamp(6)
    lds_wait(C_OC, 8, 1, 23, sleep=1)
    stamp(7)
    def obody():
        for s in range(8): E(f"buffer_load_dwordx4 v[{24+4*s}:{27+4*s}], v5, s[24:27], s{16 + s//4} offen offset:{(s%4)*1024} sc1")
        for s in range(8):
            E(f"s_waitcnt vmcnt({7-s})")
            E(f"v_xor_b32 v{24+4*s}, v4, v{24+4*s}")
            for k in (1, 2, 3, 0):
                if s == 0: E(f"v_mul_f32 v{56+k}, v8, v{24+k}")
                else: E(f"v_fmac_f32 v{56+k}, v{8+s}, v{24+4*s+k}")
            if s == 2: E("v_or3_b32 v60, v24, v28, v32")
            if s in (4, 6): E(f"v_or3_b32 v60, v60, v{20+4*s}, v{24+4*s}")
        E("v_or_b32 v60, v60, v52"); E("v_and_b32 v60, 0xff, v60"); E("v_cmp_ne_u32 vcc, 0, v60")
    poll(obody, sl_o)
    stamp(8)
    E("v_cvt_pk_bf16_f32 v56, v56, v57"); E("v_cvt_pk_bf16_f32 v57, v58, v59")
    E(f"ds_write_b64 v6, v[56:57] offset:{ABUF}")
    E("s_waitcnt lgkmcnt(0)")
    E("s_barrier")
    gemv(3, ABUF, 16, 8)
    settag(8, 4); settag(9, 4)
    E("s_mov_b64 exec, 0xffff")
    E("buffer_store_dwordx2 v[8:9], v7, s[24:27], s18 offen sc1")
    E("s_mov_b64 exec, -1")
    stamp(9)
    def sum8():
        for k in range(8): E(f"buffer_load_dword v{24+k}, v20, s[24:27], s{XS(k)} offen sc1")
        E("s_waitcnt vmcnt(0)")
        lowcheck(32, list(range(24, 32)), 2)
    def add8():
        E("v_add_f32 v24, v24, v25"); E("v_add_f32 v26, v26, v27"); E("v_add_f32 v28, v28, v29"); E("v_add_f32 v30, v30, v31")
        E("v_add_f32 v24, v24, v26"); E("v_add_f32 v28, v28, v30"); E("v_add_f32 v24, v24, v28")
    E("s_lshr_b32 s28, s22, 1"); E("v_mov_b32 v23, s28"); tagbyte(23, 23)
    poll(sum8, 0)
    stamp(10)
    add8()
    rnd(24, 24); E("v_mul_f32 v24, v17, v24"); rnd(24, 24); E("v_add_f32 v16, v16, v24"); rnd(16, 16)
    E("v_mul_f32 v24, v16, v18"); E("v_mul_f32 v27, v16, v16")
    E("v_add_f32_dpp v26, v16, v16 row_ror:2 row_mask:0xf bank_mask:0xf")
    E("v_mov_b32_dpp v25, v24 quad_perm:[2,3,2,3] row_mask:0xf bank_mask:0xf")
    E("v_add_f32_dpp v27, v27, v27 row_ror:2 row_mask:0xf bank_mask:0xf")
    E("v_cvt_pk_bf16_f32 v24, v24, v25")
    for k in (4, 8):
        for r in (26, 27): E(f"v_add_f32_dpp v{r}, v{r}, v{r} row_ror:{k} row_mask:0xf bank_mask:0xf")
    E("v_mov_b32 v28, v26"); E("v_mov_b32 v29, v27")
    E("v_permlane16_swap_b32 v26, v28"); E("v_permlane16_swap_b32 v27, v29"); E("v_add_f32 v26, v26, v28"); E("v_add_f32 v27, v27, v29")
    settag(26, 23)
    intra_store(["s_mov_b64 exec, 0x33333333", "buffer_store_dword v24, v21, s[24:27], s20 offen", "s_mov_b64 exec, 3", "buffer_store_dwordx2 v[26:27], v22, s[24:27], s21 offen"])
    E("s_mov_b64 exec, -1")
    stamp(11)
    E("s_and_b32 s28, s5, 7"); E("s_cmp_lg_u32 s28, s4"); E("s_cbranch_scc1 L_svc_end")
    for k in range(8): E(f"s_add_u32 s{XS(k)}, s{XS(k)}, {Y_OFF - X_OFF}")
    E("v_bfe_u32 v5, v0, 1, 4"); E("v_lshlrev_b32 v5, 3, v5")
    def gbbody():
        E("buffer_load_dwordx2 v[24:25], v5, s[24:27], s19 offen sc1"); E("s_waitcnt vmcnt(0)"); tagcheck(6, [25])
    poll(gbbody, 1)
    E("v_perm_b32 v19, v24, v24, v19")
    poll(sum8, 0)
    stamp(14)
    add8()
    rnd(24, 24); E("v_mul_f32 v24, v19, v24"); rnd(24, 24); E("v_add_f32 v24, v16, v24")
    E("v_mov_b32_dpp v25, v24 quad_perm:[2,3,2,3] row_mask:0xf bank_mask:0xf")
    E("v_cvt_pk_bf16_f32 v24, v24, v25")
    E("s_mov_b64 exec, 0x33333333")
    E("buffer_store_dword v24, v21, s[12:15], s23 offen")
    stamp(15)
    E("s_cmp_lg_u32 s22, 0"); E("s_cbranch_scc1 L_svc_end")
    E("s_mov_b64 exec, 1"); E("v_mov_b32 v24, s35"); E(f"s_mov_b32 s28, {EP_OFF}")
    E("buffer_store_dword v24, v1, s[24:27], s28 offen")
    if probe is not None:
        E(f"s_add_u32 s29, s{70+probe}, 6000")
        E.label("L_probe")
        E("s_sleep 1"); E("s_memrealtime s[92:93]"); E("s_waitcnt lgkmcnt(0)"); E("s_sub_u32 s28, s29, s92"); E("s_cmp_gt_i32 s28, 0"); E("s_cbranch_scc1 L_probe")
    E.label("L_svc_end")
    E("s_waitcnt lgkmcnt(0)")
    if stamps: E("s_add_u32 s3, s3, 8")
    stamp_flush()
    E.label("L_exit")
    body = E.finish()
    verify_stream(body)
    return HDR + f"""; @launch grid=(256,1,1) block=(768,1,1) lds=163840
.amdgcn_target "amdgcn-amd-amdhsa--gfx950"
.text
.globl {NAME}_kernel
.p2align 8
.type {NAME}_kernel,@function
{NAME}_kernel:
{body}
    s_endpgm
.section .rodata,"a"
.p2align 6
.amdhsa_kernel {NAME}_kernel
  .amdhsa_next_free_vgpr 168
  .amdhsa_next_free_sgpr 102
  .amdhsa_accum_offset 168
  .amdhsa_group_segment_fixed_size 0
  .amdhsa_kernarg_size 112
  .amdhsa_float_denorm_mode_32 3
  .amdhsa_user_sgpr_count 2
  .amdhsa_user_sgpr_kernarg_segment_ptr 1
  .amdhsa_system_sgpr_workgroup_id_x 1
.end_amdhsa_kernel
"""

def verify_stream(body):
    import re
    lines = [l.strip() for l in body.split('\n')]
    a = lines.index('L_k0:'); b = lines.index('L_service:'); c = lines.index('L_stream:'); d = lines.index('L_noreduce:')
    path = lines[a:b] + lines[c:d]
    issued = []; landed = 0; skip = None; last = {}
    for l in path:
        if skip:
            if l == skip + ':': skip = None
            continue
        m = re.match(r's_cbranch_scc1 (L_th_\d+)', l)
        if m: skip = m.group(1); continue
        m = re.match(r'buffer_load_dwordx4 v\[(\d+):', l)
        if m: issued.append(int(m.group(1))); last[int(m.group(1))] = len(issued); continue
        m = re.search(r'vmcnt\((\d+)\)', l)
        if m: landed = max(landed, len(issued) - int(m.group(1))); continue
        m = re.match(r'v_mfma\S+ v\[(\d+):\d+\], v\[(\d+):\d+\], v\[(\d+):', l)
        if m:
            for r in (int(m.group(2)), int(m.group(3))):
                if r in last: assert last[r] <= landed, f"unwaited operand: {l}"
    assert len(issued) == 64 and landed == 64

HDR = """; adaLN-conditioned GQA decode attention + SwiGLU block, one persistent launch (generated by gen/gen3.py)
"""
if __name__ == '__main__':
    kw = eval('dict(' + (sys.argv[2] if len(sys.argv) > 2 else '') + ')')
    open(sys.argv[1], 'w').write(gen(**kw))
```

```python
import sys
from emit import Emit
NAME = 'adaLN_cond__gqa_block_cached__glu_gated_swiglu__decode'

O_OFF, G_OFF, X_OFF, Y_OFF = 0x0, 0x40000, 0x52000, 0x5B000
Z_OFF, ST_OFF, ML_OFF = 0x64000, 0x69000, 0x6B000
EP_OFF = 0xC0000
FL_OFF = 0xC1000
Q_OFF, MOD_OFF = 0xC8000, 0xD0000
STAMP_OFF = 0x100000
WS_SIZE = 0x200000
C_BAR, C_Q, C_CNT, C_D1, C_D2, C_CS, C_GO, C_J1, C_J2, C_KH, C_VH, C_OC, C_FAC, C_V2, C_TAG = range(0, 60, 4)
FAC, MLB, QBUF = 64, 128, 256
CBUF, SBUF = 1216, 3552
ABUF = 1216
ACT0, ACT1 = 15104, 64
JBUF, ZBUF, OBUF = 5888, 5888, 8192
SLOT_A, SLOT_B = 16384, 90112
LOG2E = 0x3fb8aa3b
SCALE = 0x3db504f3
JW2, JQ0 = 15, 24

def gen(D=3, DV=3, DQ=3, stamps=False, force_slow=False, sl_long=2, sl_bar=16, gateq=0, kvf='nt', wf='nt',
        plim=0x2000, probe=None, cpf=0, sl_o=0, sl_z=0, dbg='', XW=(0,0,0,0,3,4), XD=1, sl_ml=32, kh=24, sl_q=4,
        XG=1, DE=3, NE=8, kv=12, DW=0, DEA=0, DJ=0, K0=3, DJQ=8, EB=0, QB=0, ko=9, omask=0, xwait=0, NP=0, DW1=2, NP3=4, XL=0):
    E = Emit()
    uid = [0]
    def L(p):
        uid[0] += 1
        return f"L_{p}_{uid[0]}"
    def stamp(k):
        if stamps and (stamps != 'lite' or k in (0, 15)):
            E("s_memrealtime s[92:93]"); E("s_waitcnt lgkmcnt(0)"); E(f"s_mov_b32 s{70+k}, s92")
    def stamp_flush():
        if stamps:
            E("s_mov_b64 exec, -1")
            E("v_mov_b32 v4, 0")
            for k in range(16): E(f"v_writelane_b32 v4, s{70+k}, {k}")
            E("s_lshl_b32 s28, s4, 5"); E("s_add_u32 s28, s28, s5"); E("s_mul_i32 s28, s28, 12"); E("s_add_u32 s28, s28, s3")
            E("s_lshl_b32 s28, s28, 6"); E(f"s_add_u32 s28, s28, {STAMP_OFF}")
            E("v_mbcnt_lo_u32_b32 v5, -1, 0"); E("v_mbcnt_hi_u32_b32 v5, -1, v5"); E("v_lshlrev_b32 v5, 2, v5")
            E("s_mov_b64 exec, 0xffff")
            E("buffer_store_dword v4, v5, s[24:27], s28 offen")
    def srd(r, p, size):
        E(f"s_mov_b32 s{r}, s{p}"); E(f"s_mov_b32 s{r+1}, s{p+1}"); E(f"s_mov_b32 s{r+2}, {size}"); E(f"s_mov_b32 s{r+3}, 0x20000")
    def lds_wait(off, val, vz, vt, sleep=2):
        a, b = L("lw"), L("lwd")
        E("s_mov_b32 s7, 0"); E.label(a)
        E(f"ds_read_b32 v{vt}, v{vz} offset:{off}"); E("s_waitcnt lgkmcnt(0)")
        E(f"v_readfirstlane_b32 s28, v{vt}"); E(f"s_cmp_ge_u32 s28, {val}"); E(f"s_cbranch_scc1 {b}")
        if sleep: E(f"s_sleep {sleep}")
        E("s_add_u32 s7, s7, 1"); E(f"s_cmp_lt_u32 s7, {plim*8}"); E(f"s_cbranch_scc1 {a}")
        E.label(b)
    def lds_set(off, vz, vt, val):
        E(f"v_mov_b32 v{vt}, {val}"); E(f"ds_write_b32 v{vz}, v{vt} offset:{off}")
    def lds_inc(off, vz, vt):
        E(f"v_mov_b32 v{vt}, 1"); E("s_mov_b64 exec, 1"); E(f"ds_add_u32 v{vz}, v{vt} offset:{off}"); E("s_mov_b64 exec, -1")
    def soft_barrier(off, vz, vt, sleep=0, n=4):
        lds_inc(off, vz, vt); lds_wait(off, n, vz, vt, sleep)
    def poll(body, sleep=0):
        a, b = L("pl"), L("pld")
        E("s_mov_b32 s7, 0"); E.label(a)
        body()
        E(f"s_cbranch_vccz {b}")
        if sleep: E(f"s_sleep {sleep}")
        E("s_add_u32 s7, s7, 1"); E(f"s_cmp_lt_u32 s7, {plim}"); E(f"s_cbranch_scc1 {a}")
        E.label(b)
    def intra_store(ins):
        a, b = L("is"), L("isd")
        E("s_cmp_eq_u32 s6, 3"); E(f"s_cbranch_scc1 {a}")
        for i in ins: E(i + (" sc1" if i.startswith("buffer_") else ""))
        E(f"s_branch {b}"); E.label(a)
        for i in ins: E(i)
        E.label(b)
    def rnd(dst, src):
        E(f"v_cvt_pk_bf16_f32 v{dst}, v{src}, v{src}"); E(f"v_and_b32 v{dst}, 0xffff0000, v{dst}")
    def row_reduce(op, r, rors):
        for k in rors: E(f"{op}_dpp v{r}, v{r}, v{r} row_ror:{k} row_mask:0xf bank_mask:0xf")
    def swap_reduce(op, r, t, which):
        E(f"v_mov_b32 v{t}, v{r}"); E(f"v_permlane{which}_swap_b32 v{r}, v{t}"); E(f"{op} v{r}, v{r}, v{t}")
    def mktag():
        E("s_waitcnt lgkmcnt(0)")
        E("s_mul_i32 s35, s34, 0x9E3779B1"); E("s_add_u32 s35, s35, 0x7F4A7C15"); E("s_mov_b32 s90, 0xffffff00")
    def tagcheck(acc, regs):
        E(f"v_xor_b32 v{acc}, s35, v{regs[0]}")
        for r in regs[1:]: E(f"v_bitop3_b32 v{acc}, v{acc}, v{r}, s35 bitop3:0xf6")
        E(f"v_cmp_ne_u32 vcc, 0, v{acc}")
    def tagbyte(dst, idx):
        E(f"v_and_b32 v{dst}, 3, v{idx}"); E(f"v_lshlrev_b32 v{dst}, 3, v{dst}"); E(f"v_lshrrev_b32 v{dst}, v{dst}, s35"); E(f"v_and_b32 v{dst}, 0xff, v{dst}")
    def settag(r, tg): E(f"v_and_or_b32 v{r}, v{r}, s{SM}, v{tg}")
    def lowcheck(acc, regs, tg):
        for r in regs: E(f"v_xor_b32 v{r}, v{tg}, v{r}")
        ortree(acc, regs)
    def ortree(acc, regs):
        regs = list(regs)
        if len(regs) == 1: E(f"v_and_b32 v{acc}, 0xff, v{regs[0]}")
        else:
            first = True
            while regs:
                if first:
                    t = regs[:3]; regs = regs[3:]; first = False
                    E(f"v_or3_b32 v{acc}, v{t[0]}, v{t[1]}, v{t[2]}") if len(t) == 3 else E(f"v_or_b32 v{acc}, v{t[0]}, v{t[1]}")
                else:
                    t = regs[:2]; regs = regs[2:]
                    E(f"v_or3_b32 v{acc}, v{acc}, v{t[0]}, v{t[1]}") if len(t) == 2 else E(f"v_or_b32 v{acc}, v{acc}, v{t[0]}")
            E(f"v_and_b32 v{acc}, 0xff, v{acc}")
        E(f"v_cmp_ne_u32 vcc, 0, v{acc}")
    SM = 90
    BR = lambda k: 96 + 4 * k
    AT = lambda k: 24 + 4 * k
    def op_addrs():
        E("v_bfe_u32 v4, v0, 2, 2"); E("v_lshrrev_b32 v5, 4, v0"); E("v_lshl_add_u32 v4, v5, 3, v4"); E("v_lshlrev_b32 v4, 7, v4")
        E("v_and_b32 v6, 3, v0"); E("v_lshl_add_u32 v4, v6, 3, v4")
        E("v_bfe_u32 v7, v0, 3, 2"); E("v_xor_b32 v7, s3, v7"); E("v_lshl_add_u32 v2, v7, 5, v4")
        E("v_and_b32 v3, 1, v0"); E("v_mul_u32_u24 v3, 1152, v3"); E("v_lshl_add_u32 v3, v5, 4, v3")
    def stage_b(slot, nk, wait=True):
        E(f"v_add_u32 v5, {slot}, v2"); E(f"v_add_u32 v6, {slot + 36864}, v2")
        for k in range(nk):
            a = 5 if k < 9 else 6; o = (k % 9) * 4096
            E(f"ds_read_b64_tr_b16 v[{BR(k)}:{BR(k)+1}], v{a} offset:{o}"); E(f"ds_read_b64_tr_b16 v[{BR(k)+2}:{BR(k)+3}], v{a} offset:{o+512}")
        if wait: E("s_waitcnt lgkmcnt(0)")
    def gemv(areg, aoff, nk, d, fill=None):
        fill = list(fill or [])
        per = -(-len(fill) // nk)
        for k in range(min(nk, 15)): E(f"ds_read_b128 v[{AT(k)}:{AT(k)+3}], v{areg} offset:{aoff + k*64}")
        issued = min(nk, 15)
        for k in range(nk):
            for _ in range(per):
                if fill: E(fill.pop(0))
            E(f"s_waitcnt lgkmcnt({issued - 1 - k})")
            c = "0" if k == 0 else f"v[{d}:{d+3}]"
            E(f"v_mfma_f32_16x16x32_bf16 v[{d}:{d+3}], v[{AT(k)}:{AT(k)+3}], v[{BR(k)}:{BR(k)+3}], {c}")
            if issued < nk:
                E(f"ds_read_b128 v[{AT(issued)}:{AT(issued)+3}], v{areg} offset:{aoff + issued*64}"); issued += 1
    def own_map():
        E("v_and_b32 v8, 31, v0"); E("v_min_u32 v9, 7, v8"); E("s_mul_i32 s28, s3, 72")
        E("v_add_u32 v8, s28, v8"); E("s_add_u32 s28, s28, 64"); E("v_add_u32 v9, s28, v9")
        E("v_lshrrev_b32 v11, 5, v0"); E("v_mul_u32_u24 v11, 1152, v11"); E("v_lshl_add_u32 v10, v8, 2, v11"); E("v_lshl_add_u32 v11, v9, 2, v11")
    def modgather(o1, o2):
        E(f"s_mov_b32 s30, {MOD_OFF + o1*8}"); E(f"s_mov_b32 s31, {MOD_OFF + o2*8}")
        E("v_lshlrev_b32 v12, 4, v8"); E("v_lshlrev_b32 v13, 4, v9")
        def body():
            for h in range(2):
                E(f"buffer_load_dwordx4 v[{36+12*h}:{39+12*h}], v12, s[24:27], s{30+h} offen sc1")
                E(f"buffer_load_dwordx4 v[{40+12*h}:{43+12*h}], v12, s[24:27], s{30+h} offen offset:512 sc1")
                E(f"buffer_load_dwordx4 v[{44+12*h}:{47+12*h}], v13, s[24:27], s{30+h} offen sc1")
            E("s_waitcnt vmcnt(0)")
            tagcheck(14, list(range(37, 60, 2)))
        poll(body, sl_long)
        E("v_cmp_gt_u32 vcc, 32, v0"); E("v_mov_b32 v12, 0x03020c0c"); E("v_mov_b32 v13, 0x01000c0c"); E("v_cndmask_b32 v12, v12, v13, vcc")
        for e in range(12): E(f"v_perm_b32 v{24+e}, v{36+2*e}, v{36+2*e}, v12")
    def dma_addrs():
        E("v_lshrrev_b32 v2, 3, v0"); E("v_mul_lo_u32 v2, v2, s20")
        E("v_and_b32 v3, 7, v0"); E("v_bfe_u32 v4, v0, 4, 1"); E("v_lshlrev_b32 v4, 1, v4"); E("v_xor_b32 v3, v3, v4")
        E("v_xor_b32 v4, 4, v3"); E("v_lshl_add_u32 v3, v3, 4, v2"); E("v_lshl_add_u32 v4, v4, 4, v2")
        E("s_lshl_b32 s17, s20, 3")
    def dma_loop(lab, depth):
        E.label(lab)
        E("s_mov_b32 m0, s29"); E("s_add_u32 s29, s29, 1024")
        E(f"buffer_load_dwordx4 v3, s[8:11], s16 offen {wf} lds"); E("s_add_u32 s16, s16, s17")
        if depth: E(f"s_waitcnt vmcnt({depth-1})")
        E("s_mov_b32 m0, s29"); E("s_add_u32 s29, s29, 1024")
        E(f"buffer_load_dwordx4 v4, s[8:11], s16 offen {wf} lds"); E("s_add_u32 s16, s16, s17")
        if depth: E(f"s_waitcnt vmcnt({depth-1})")
        E("s_sub_u32 s19, s19, 1"); E("s_cmp_lg_u32 s19, 0"); E(f"s_cbranch_scc1 {lab}")

    E.label("L_code0")
    if probe == 16: E("s_memrealtime s[86:87]")
    E("s_load_dwordx16 s[36:51], s[0:1], 0")
    E("s_load_dwordx8 s[52:59], s[0:1], 64")
    E("s_load_dwordx4 s[60:63], s[0:1], 96")
    E("s_cmp_ge_u32 s2, 256"); E("s_cbranch_scc1 L_exit")
    if stamps:
        for k in range(16): E(f"s_mov_b32 s{70+k}, 0")
    E("v_lshrrev_b32 v1, 6, v0"); E("v_and_b32 v0, 63, v0"); E("v_readfirstlane_b32 s3, v1")
    E("s_and_b32 s4, s2, 7"); E("s_lshr_b32 s5, s2, 3")
    E("s_sub_u32 s22, s2, 72"); E("s_cmp_lt_u32 s22, 48"); E("s_cselect_b32 s21, 2, 0")
    E(f"s_cmp_ge_u32 s5, {JQ0}"); E("s_cselect_b32 s21, 3, s21")
    if 'j' in dbg: E("s_mov_b32 s21, 0")
    E("s_cmp_ge_u32 s3, 8"); E("s_cbranch_scc1 L_service")

    SL = lambda i: 40 + 4 * i
    E("v_and_b32 v3, 3, v0"); E("v_lshrrev_b32 v4, 4, v0"); E("v_lshl_add_u32 v3, v4, 2, v3")
    E("v_bfe_u32 v4, v0, 2, 2"); E("v_lshlrev_b32 v4, 8, v4"); E("v_lshl_add_u32 v2, v3, 4, v4")
    if 'l' in dbg: E("v_lshlrev_b32 v2, 4, v0")
    E("s_and_b32 s28, s5, 16"); E("s_lshl_b32 s29, s4, 1"); E("s_add_u32 s28, s28, s29")
    E("s_lshl_b32 s28, s28, 3"); E("s_and_b32 s29, s5, 15"); E("s_add_u32 s28, s28, s29")
    E("s_lshl_b32 s28, s28, 6"); E("s_add_u32 s28, s28, s3"); E("s_lshl_b32 s33, s28, 12")
    E("s_add_u32 s32, s5, s3")
    def soff(u):
        E(f"s_add_u32 s30, s32, {u}"); E("s_and_b32 s30, s30, 7"); E("s_lshl_b32 s30, s30, 15"); E(f"s_add_u32 s{64+u if not stamps else 94+u}, s33, s30")
    SO = lambda u: (64 + u if not stamps else 94 + u)
    soff(0)
    if K0 > 4: soff(1)
    E("s_mov_b32 s10, 0x4000000"); E("s_mov_b32 s11, 0x20000")
    E("s_waitcnt lgkmcnt(0)")
    E("s_mov_b32 s8, s38"); E("s_mov_b32 s9, s39")
    stamp(0)
    def kload(i): E(f"buffer_load_dwordx4 v[{SL(i)}:{SL(i)+3}], v2, s[8:11], s{SO(i//4)} offen offset:{(i%4)*1024} {kvf}")
    def vload(i): E(f"buffer_load_dwordx4 v[{SL(i)}:{SL(i)+3}], v1, s[12:15], s{SO(i//4)} offen offset:{(i%4)*1024} {kvf}")
    E.label("L_k0")
    for i in range(K0): kload(i)
    E("s_branch L_stream")

    E.label("L_service")
    E("v_mov_b32 v1, 0")
    E("s_sub_u32 s3, s3, 8")
    E("v_lshlrev_b32 v2, 2, v0"); E("s_mov_b64 exec, 0xffff"); E("ds_write_b32 v2, v1"); E("s_mov_b64 exec, -1")
    E("s_mov_b32 s18, 4")
    E("s_cmp_lg_u32 s21, 0"); E("s_cbranch_scc1 L_job")
    E("s_mov_b32 s20, 1152")
    dma_addrs()
    E("s_lshl_b32 s28, s4, 2"); E("s_add_u32 s28, s28, s3"); E(f"s_sub_u32 s30, s5, {JW2}")
    E("s_cmp_lt_u32 s5, 9")
    E("s_cselect_b32 s19, 8, 9"); E("s_cselect_b32 s30, s5, s30"); E(f"s_mov_b32 s29, {SLOT_B}"); E(f"s_cselect_b32 s29, {SLOT_A}, s29")
    E("s_mul_i32 s16, s19, 18432"); E("s_lshl_b32 s10, s16, 5"); E("s_mul_i32 s16, s16, s28"); E("s_lshl_b32 s30, s30, 7"); E("s_add_u32 s16, s16, s30")
    E("s_lshl_b32 s30, s19, 11"); E("s_mul_i32 s30, s30, s3"); E("s_add_u32 s29, s29, s30"); E("s_mov_b32 s11, 0x20000")
    E("s_waitcnt lgkmcnt(0)")
    E("s_cmp_lt_u32 s5, 9"); E("s_cselect_b32 s8, s44, s52"); E("s_cselect_b32 s9, s45, s53")
    stamp(0)
    if EB: E("s_barrier")
    if 'e' not in dbg: dma_loop("L_dma_early", DEA)
    E(f"s_load_dword s34, s[62:63], {EP_OFF}")
    srd(24, 62, WS_SIZE)
    if not EB: E("s_barrier")
    E("s_branch L_roles")
    E.label("L_job")
    E("s_cmp_eq_u32 s21, 3")
    E("s_cselect_b32 s20, 8192, 6912") if False else (E("s_mov_b32 s20, 6912"), E("s_cselect_b32 s20, 8192, s20"))
    dma_addrs()
    own_map()
    E("s_lshl_b32 s28, s4, 3"); E(f"s_sub_u32 s29, s5, {JQ0}"); E("s_add_u32 s28, s28, s29")
    E("s_cmp_eq_u32 s21, 3"); E("s_cselect_b32 s22, s28, s22")
    E("s_mul_i32 s10, s20, 576"); E("s_mov_b32 s11, 0x20000")
    E("s_mul_i32 s16, s20, 144"); E("s_mul_i32 s16, s16, s3"); E("s_lshl_b32 s28, s22, 7"); E("s_add_u32 s16, s16, s28")
    E("s_mul_i32 s29, s3, 18432"); E(f"s_add_u32 s29, s29, {SLOT_B}"); E("s_mov_b32 s19, 9")
    E("s_mov_b32 s14, 2304"); E("s_mov_b32 s15, 0x20000")
    E("s_waitcnt lgkmcnt(0)")
    if stamps:
        E("s_cmp_eq_u32 s18, 8"); E("s_cbranch_scc1 L_nost0"); stamp(0); E.label("L_nost0")
    E("s_cmp_eq_u32 s21, 3")
    E("s_cselect_b32 s8, s42, s56"); E("s_cselect_b32 s9, s43, s57"); E("s_cselect_b32 s12, s36, s54"); E("s_cselect_b32 s13, s37, s55")
    E("buffer_load_dword v16, v10, s[12:15], 0 offen"); E("buffer_load_dword v17, v10, s[12:15], 0 offen offset:128"); E("buffer_load_dword v18, v11, s[12:15], 0 offen")
    E("s_cmp_eq_u32 s18, 8"); E("s_cbranch_scc1 L_dma_jq")
    E(f"s_load_dword s34, s[62:63], {EP_OFF}")
    srd(24, 62, WS_SIZE)
    if QB: E(f"s_cmp_eq_u32 s5, 27"); E("s_cbranch_scc1 L_jq")
    dma_loop("L_dma_job", DJ)
    E("s_barrier")
    E("s_branch L_job2")
    if QB:
        E.label("L_jq")
        E("s_barrier")
        dma_loop("L_dma_j27", QB - 1)
        E("s_branch L_job2")
    dma_loop("L_dma_jq", DJQ)
    E.label("L_job2")
    stamp(9)
    op_addrs()
    E("s_waitcnt vmcnt(18)")
    for i in range(3):
        E(f"v_and_b32 v{71+2*i}, 0xffff0000, v{16+i}"); E(f"v_lshlrev_b32 v{70+2*i}, 16, v{16+i}")
    E("s_cmp_eq_u32 s21, 3"); E("s_cbranch_scc1 L_prep_q")
    E(f"s_mov_b32 s28, {LOG2E ^ 0x80000000}"); E("s_mov_b32 s29, 0xb2a57060"); E("s_mov_b32 s30, 0x3f317218")
    for e in range(6): E(f"v_mul_f32 v{24+e}, s28, v{70+e}")
    for e in range(6): E(f"v_fma_f32 v{30+e}, v{70+e}, s28, -v{24+e}")
    for e in range(6): E(f"v_fma_f32 v{30+e}, v{70+e}, s29, v{30+e}")
    for e in range(6): E(f"v_min_f32 v{24+e}, 0x42fc0000, v{24+e}")
    for e in range(6): E(f"v_exp_f32 v{24+e}, v{24+e}")
    for e in range(6): E(f"v_mul_f32 v{30+e}, s30, v{30+e}")
    for e in range(6): E(f"v_fma_f32 v{24+e}, v{24+e}, v{30+e}, v{24+e}")
    for e in range(6): E(f"v_add_f32 v{24+e}, 1.0, v{24+e}")
    for e in range(6): E(f"v_rcp_f32 v{30+e}, v{24+e}")
    for e in range(6): E(f"v_mul_f32 v{36+e}, v{70+e}, v{30+e}")
    for e in range(6): E(f"v_fma_f32 v{70+e}, -v{24+e}, v{36+e}, v{70+e}")
    for e in range(6): E(f"v_fma_f32 v{70+e}, v{70+e}, v{30+e}, v{36+e}")
    def write_a(buf):
        for i in range(3): E(f"v_cvt_pk_bf16_f32 v{16+i}, v{70+2*i}, v{71+2*i}")
        E(f"ds_write_b32 v10, v16 offset:{buf}"); E(f"ds_write_b32 v10, v17 offset:{buf+128}"); E(f"ds_write_b32 v11, v18 offset:{buf}")
    write_a(JBUF)
    E("s_waitcnt vmcnt(0)")
    soft_barrier(C_J1, 1, 16, n="s18")
    stamp(10)
    stage_b(SLOT_B, 18, wait=False)
    E("s_branch L_gemv")
    E.label("L_prep_q")
    E("v_lshrrev_b32 v12, 5, v0"); E("v_mul_u32_u24 v12, 1152, v12"); E("v_and_b32 v13, 31, v0"); E("v_lshl_add_u32 v12, v13, 2, v12")
    for i in range(9): E(f"buffer_load_dword v{60+i}, v12, s[12:15], 0 offen offset:{i*128}")
    E("s_waitcnt vmcnt(0)")
    for i in range(9):
        E(f"v_lshlrev_b32 v{24+2*i}, 16, v{60+i}"); E(f"v_and_b32 v{25+2*i}, 0xffff0000, v{60+i}")
    E("v_add_f32 v16, v24, v25")
    for r in range(26, 42): E(f"v_add_f32 v16, v16, v{r}")
    row_reduce("v_add_f32", 16, (1, 2, 4, 8)); swap_reduce("v_add_f32", 16, 17, 16)
    E("s_mov_b32 s28, 0x3ae38e39"); E("s_mov_b32 s29, 0x3727c5ac")
    E("v_mul_f32 v16, s28, v16")
    E("v_mov_b32 v18, 0")
    for r in range(24, 42): E(f"v_sub_f32 v17, v{r}, v16"); E("v_fmac_f32 v18, v17, v17")
    row_reduce("v_add_f32", 18, (1, 2, 4, 8)); swap_reduce("v_add_f32", 18, 17, 16)
    E("v_mul_f32 v18, s28, v18"); rnd(18, 18); E("v_add_f32 v18, s29, v18"); rnd(18, 18)
    E("v_sqrt_f32 v18, v18"); rnd(18, 18); E("v_rcp_f32 v19, v18"); rnd(16, 16)
    for r in range(70, 76):
        E(f"v_sub_f32 v{r}, v{r}, v16"); rnd(r, r)
        E(f"v_mul_f32 v17, v{r}, v19"); E(f"v_fma_f32 v{r}, -v18, v17, v{r}"); E(f"v_fma_f32 v{r}, v{r}, v19, v17"); rnd(r, r)
    E("s_waitcnt vmcnt(0)")
    soft_barrier(C_J1, 1, 16)
    stamp(10)
    stage_b(SLOT_B, 18)
    mktag()
    modgather(0, 576)
    stamp(11)
    for e in range(6):
        E(f"v_add_f32 v{30+e}, 1.0, v{30+e}"); rnd(30+e, 30+e); E(f"v_mul_f32 v{70+e}, v{70+e}, v{30+e}"); rnd(70+e, 70+e)
        E(f"v_add_f32 v{70+e}, v{70+e}, v{24+e}")
    write_a(JBUF)
    soft_barrier(C_J2, 1, 16)
    E.label("L_gemv")
    gemv(3, JBUF, 18, 8)
    mktag()
    E("s_lshl_b32 s28, s22, 2"); E("s_add_u32 s28, s28, s3"); E("s_lshl_b32 s28, s28, 7")
    E(f"s_mov_b32 s29, {MOD_OFF}"); E("s_cmp_eq_u32 s21, 3"); E(f"s_cselect_b32 s29, {Q_OFF}, s29"); E("s_add_u32 s28, s28, s29")
    E("v_lshlrev_b32 v2, 3, v0")
    E("v_cvt_pk_bf16_f32 v8, v8, v9"); E("v_mov_b32 v9, s35")
    E("s_mov_b64 exec, 0xffff")
    E("buffer_store_dwordx2 v[8:9], v2, s[24:27], s28 offen sc1")
    E("s_mov_b64 exec, -1")
    lds_inc(C_GO, 1, 16)
    stamp(12)
    E("s_cmp_eq_u32 s18, 8"); E("s_cbranch_scc1 L_svc_end")
    E.label("L_roles")
    for w in '0123':
        if w in dbg: E(f"s_cmp_eq_u32 s3, {w}"); E("s_cbranch_scc1 L_svc_end")
    if 'z' in dbg: E("s_branch L_tailprep")
    E("s_cmp_eq_u32 s3, 3"); E("s_cbranch_scc1 L_s3")
    E("s_cmp_eq_u32 s3, 0"); E("s_cbranch_scc1 L_s0")
    if cpf:
        E("s_cmp_lg_u32 s3, 1"); E("s_cbranch_scc1 L_tailprep")
        E("s_getpc_b64 s[8:9]"); E.label("L_pc")
        E("s_sub_u32 s8, s8, L_pc-L_code0"); E("s_subb_u32 s9, s9, 0"); E("s_mov_b32 s10, L_exit-L_code0"); E("s_mov_b32 s11, 0x20000")
        E("v_lshlrev_b32 v2, 4, v0"); E("s_lshl_b32 s16, s5, 10")
        if cpf == 2: lds_wait(C_KH, 1, 1, 8, sleep=8)
        E("buffer_load_dwordx4 v[8:11], v2, s[8:11], s16 offen"); E("s_waitcnt vmcnt(0)")
    E("s_branch L_tailprep")

    E.label("L_s0")
    mktag()
    E("v_lshlrev_b32 v2, 4, v0")
    if kh:
        if gateq: E("s_cmp_eq_u32 s21, 3"); E("s_cbranch_scc1 L_qgo")
        lds_wait(C_KH, 1, 1, 8, sleep=8)
        E.label("L_qgo")
    E("s_lshl_b32 s28, s4, 12"); E("s_bfe_u32 s29, s5, 0x10003"); E("s_lshl_b32 s29, s29, 11"); E("s_add_u32 s28, s28, s29"); E(f"s_add_u32 s28, s28, {Q_OFF}")
    def qbody():
        E("buffer_load_dwordx4 v[8:11], v2, s[24:27], s28 offen sc1"); E("buffer_load_dwordx4 v[12:15], v2, s[24:27], s28 offen offset:1024 sc1")
        E("s_waitcnt vmcnt(0)")
        tagcheck(16, [9, 11, 13, 15])
    poll(qbody, sl_q)
    E("s_mov_b32 s29, 0x05040100"); E("s_cmp_ge_u32 s5, 16"); E("s_cselect_b32 s29, 0x07060302, s29")
    E("v_perm_b32 v8, v10, v8, s29"); E("v_perm_b32 v9, v14, v12, s29"); E("v_lshlrev_b32 v3, 2, v0")
    E(f"ds_write_b32 v3, v8 offset:{QBUF}"); E(f"ds_write_b32 v3, v9 offset:{QBUF+256}")
    E("s_add_u32 s7, s7, 1"); lds_set(C_Q, 1, 10, "s7")
    if stamps is True: E("s_mov_b32 s71, s7")
    stamp(3)
    lds_wait(C_BAR, 1, 1, 8, sleep=4)
    E("s_mov_b32 s6, s28")
    lds_wait(C_CNT, 8, 1, 8, sleep=4)
    E("v_and_b32 v3, 15, v0"); E("v_lshlrev_b32 v4, 3, v3"); E(f"ds_read_b64 v[8:9], v4 offset:{MLB}")
    E(f"s_mov_b32 s31, {LOG2E}")
    E("s_waitcnt lgkmcnt(0)")
    E("v_mov_b32 v10, v8"); row_reduce("v_max_f32", 10, (2, 4, 8))
    E("v_sub_f32 v12, v8, v10"); E("v_mul_f32 v12, s31, v12"); E("v_exp_f32 v12, v12"); E("v_mul_f32 v11, v12, v9")
    row_reduce("v_add_f32", 11, (2, 4, 8))
    E("v_and_b32 v5, 1, v0"); E("v_lshlrev_b32 v5, 5, v5"); E("v_lshrrev_b32 v6, 1, v3"); E("v_lshl_add_u32 v5, v6, 2, v5")
    E(f"ds_write_b32 v5, v12 offset:{FAC}")
    E("s_lshl_b32 s28, s4, 5"); E("s_add_u32 s28, s28, s5"); E("s_lshl_b32 s28, s28, 4"); E(f"s_add_u32 s28, s28, {ML_OFF}")
    E("s_lshl_b32 s29, s5, 1"); E("v_add_u32 v13, s29, v0"); tagbyte(13, 13); settag(11, 13)
    E("v_mov_b32 v6, s6"); E(f"ds_write_b32 v1, v6 offset:{C_FAC}")
    E("s_mov_b64 exec, 3")
    intra_store(["buffer_store_dwordx2 v[10:11], v4, s[24:27], s28 offen"])
    E("s_mov_b64 exec, -1")
    E("s_waitcnt lgkmcnt(0)")
    stamp(4)
    E("s_branch L_tailprep")

    E.label("L_s3")
    E("v_lshlrev_b32 v2, 4, v0")
    for k in range(4): E(f"v_mov_b32 v{4+k}, -1")
    E("s_cmp_ge_u32 s5, 9"); E("s_cbranch_scc1 L_noclr")
    E("s_mul_i32 s28, s4, 2304"); E("s_lshl_b32 s29, s5, 8"); E("s_add_u32 s28, s28, s29"); E(f"s_add_u32 s28, s28, {Z_OFF}")
    E("s_mov_b64 exec, 0xffff"); E("buffer_store_dwordx4 v[4:7], v2, s[24:27], s28 offen sc1"); E("s_mov_b64 exec, -1")
    E.label("L_noclr")
    E("s_getreg_b32 s29, hwreg(HW_REG_XCC_ID)"); E("s_and_b32 s29, s29, 15")
    mktag()
    E("v_mov_b32 v8, s29"); E("v_mov_b32 v9, s35")
    E("s_lshl_b32 s28, s4, 5"); E("s_add_u32 s28, s28, s5"); E("s_lshl_b32 s28, s28, 3"); E(f"s_add_u32 s28, s28, {FL_OFF}")
    E("s_waitcnt vmcnt(0)")
    stamp(1)
    E("s_mov_b64 exec, 1"); E("buffer_store_dwordx2 v[8:9], v1, s[24:27], s28 offen sc1"); E("s_mov_b64 exec, -1")
    if 'q' in dbg: E("s_branch L_svc_end")
    lds_wait(C_CNT, 8, 1, 8, sleep=8)
    E(f"s_mov_b32 s30, {FL_OFF}")
    def barbody():
        E("buffer_load_dwordx4 v[8:11], v2, s[24:27], s30 offen sc1"); E("buffer_load_dwordx4 v[12:15], v2, s[24:27], s30 offen offset:1024 sc1")
        E("s_waitcnt vmcnt(0)")
        tagcheck(16, [9, 11, 13, 15])
    poll(barbody, sl_bar)
    E("s_cmp_ge_u32 s4, 4"); E("s_cselect_b64 vcc, -1, 0")
    E("v_cndmask_b32 v8, v8, v12, vcc"); E("v_cndmask_b32 v10, v10, v14, vcc")
    E("v_xor_b32 v8, s29, v8"); E("v_bitop3_b32 v8, v8, v10, s29 bitop3:0xf6"); E("v_cmp_ne_u32 vcc, 0, v8")
    E("s_and_b32 s30, s4, 3"); E("s_lshl_b32 s30, s30, 4"); E("s_lshr_b64 s[30:31], vcc, s30"); E("s_and_b32 s30, s30, 0xffff")
    E(f"s_cselect_b32 s6, 1, {1 if force_slow else 3}")
    E("v_mov_b32 v8, s6"); E(f"ds_write_b32 v1, v8 offset:{C_BAR}")
    stamp(2)
    E("s_branch L_tailprep")

    E.label("L_stream")
    xd = XD if any(XW) else 0
    if xd:
        E(f"s_mov_b32 s23, {XW[0]}")
        for lo, n in zip((9, 15, 24), XW[1:4]):
            E(f"s_cmp_ge_u32 s5, {lo}"); E(f"s_cselect_b32 s23, {n}, s23")
        E("s_cmp_eq_u32 s5, 27"); E(f"s_cselect_b32 s23, {XW[4]}, s23")
        if len(XW) > 5:
            E("s_cmp_ge_u32 s5, 18"); E("s_cselect_b32 s28, 18, 9"); E("s_sub_u32 s28, s5, s28"); E("s_cmp_lt_u32 s28, 9"); E("s_cselect_b32 s29, 0, 8")
            E("s_add_u32 s28, s28, s4"); E("s_and_b32 s28, s28, 7"); E("s_add_u32 s28, s28, s29")
            E("s_cmp_eq_u32 s28, 3"); E(f"s_cselect_b32 s23, {XW[5]}, s23")
    def setscc(): pass
    tp = [0]; XWV = [0]
    def throttle(d):
        thr = [0, 4, 2, 6, 1, 5, 3, 7][(tp[0] // XG) % 8]; tp[0] += 1
        if xd and thr < max(XW) + XWV[0]:
            if thr < min(XW): E(f"s_waitcnt vmcnt({d-1+xd})")
            else:
                a = L("th"); E(f"s_cmp_gt_u32 s23, {thr}"); E(f"s_waitcnt vmcnt({d-1+xd})"); E(f"s_cbranch_scc1 {a}"); E(f"s_waitcnt vmcnt({d-1})"); E.label(a)
        else: E(f"s_waitcnt vmcnt({d-1})")
    for u in range(2 if K0 > 4 else 1, 8): soff(u)
    srd(12, 40, 0x4000000); srd(24, 62, WS_SIZE)
    E(f"s_load_dword s34, s[62:63], {EP_OFF}")
    E("v_lshlrev_b32 v1, 4, v0")
    E("v_bfe_u32 v4, v0, 3, 1"); E("v_lshlrev_b32 v4, 8, v4"); E("v_lshl_add_u32 v36, v3, 4, v4")
    stamp(8)
    E("s_barrier")
    stamp(9)
    for i in range(K0, D): kload(i)
    if gateq:
        E("s_cmp_lg_u32 s21, 3"); E("s_cbranch_scc1 L_kgo")
        E("v_mov_b32 v3, 0")
        lds_wait(C_GO, 4, 3, 4, sleep=4)
        E.label("L_kgo")
    setscc()
    for i in range(max(D, K0), 32):
        throttle(D); kload(i)
        if i in (4, 8): stamp(10 + (i == 8))
        if kh and i == kh: E("v_mov_b32 v3, 0"); E("v_mov_b32 v4, 1"); E(f"ds_write_b32 v3, v4 offset:{C_KH}")
    stamp(1)
    E("v_mov_b32 v2, 0")
    if 'q' not in dbg: lds_wait(C_Q, 1, 2, 3)
    if XL:
        E("s_cmp_eq_u32 s28, 1"); E(f"s_cselect_b32 s28, {XL}, 0"); E("s_add_u32 s23, s23, s28")
        XWV[0] = XL
    E(f"ds_read_b128 v[20:23], v36 offset:{QBUF}")
    E(f"s_mov_b32 s30, {SCALE}"); E(f"s_mov_b32 s31, {LOG2E}")
    E("v_mov_b32 v36, 0xff800000")
    mktag()
    stamp(2)
    setscc()
    st = dict(issued=0)
    def qk_mfma(u):
        n = (28 - 4*u) + st['issued']
        if n < D + xd + st['issued'] and n < 63: E(f"s_waitcnt vmcnt({n})")
        for i in range(4*u, 4*u+4):
            E(f"v_mfma_f32_16x16x32_bf16 v[{SL(i)}:{SL(i)+3}], v[{SL(i)}:{SL(i)+3}], v[20:23], 0")
    def qk_post(u):
        if 'c' in dbg: return
        T = [24, 25, 26, 27]
        for k in range(4):
            for a in range(4):
                r = SL(4*u + a) + k
                if k == 0: E(f"v_mov_b32_dpp v{T[a]}, v{r} quad_perm:[0,0,0,0] row_mask:0xf bank_mask:0xf")
                else: E(f"v_add_f32_dpp v{T[a]}, v{r}, v{T[a]} quad_perm:[{k},{k},{k},{k}] row_mask:0xf bank_mask:0xf")
        E("v_cvt_pk_bf16_f32 v28, v24, v25"); E("v_cvt_pk_bf16_f32 v29, v26, v27")
        E("v_lshlrev_b32 v24, 16, v28"); E("v_and_b32 v25, 0xffff0000, v28")
        E("v_lshlrev_b32 v26, 16, v29"); E("v_and_b32 v27, 0xffff0000, v29")
        for a in range(4): E(f"v_mul_f32 v{T[a]}, s30, v{T[a]}")
        E(f"v_cvt_pk_bf16_f32 v{4+2*u}, v24, v25"); E(f"v_cvt_pk_bf16_f32 v{5+2*u}, v26, v27")
        E("v_max3_f32 v36, v24, v25, v36"); E("v_max3_f32 v36, v26, v27, v36")
    def vissue(d=None):
        i = st['issued']
        d = DV if d is None else d
        throttle(d); vload(i); st['issued'] += 1
        if i == 20: E("s_mov_b64 exec, 2"); E(f"ds_write_b32 v1, v1 offset:{C_V2-16}"); E("s_mov_b64 exec, -1")
        if i == kv:
            E("s_mov_b64 exec, 2"); E(f"ds_write_b32 v1, v1 offset:{C_VH-16}"); E("s_mov_b64 exec, -1")
    def expo(k):
        if 'c' in dbg: return
        E(f"v_lshlrev_b32 v24, 16, v{4+k}"); E(f"v_and_b32 v25, 0xffff0000, v{4+k}")
        E("v_fma_f32 v24, v24, s31, -v37"); E("v_fma_f32 v25, v25, s31, -v37")
        E("v_exp_f32 v24, v24"); E("v_exp_f32 v25, v25")
        E("v_add_f32 v38, v38, v24"); E("v_add_f32 v39, v39, v25")
        E(f"v_cvt_pk_bf16_f32 v{4+k}, v24, v25")
    qk_mfma(0); qk_mfma(1); qk_post(0)
    for _ in range(4): vissue(DQ)
    qk_mfma(2); qk_post(1)
    for _ in range(1 if DQ <= 4 else 4): vissue(DQ)
    for u in range(3, 8):
        qk_mfma(u); qk_post(u-1);
        if DQ > 4 or u % 2 == 0: vissue(DQ)
    qk_post(7)
    swap_reduce("v_max_f32", 36, 24, 16); swap_reduce("v_max_f32", 36, 24, 32)
    rnd(36, 36)
    E("v_mul_f32 v37, s31, v36"); E("v_mov_b32 v38, 0"); E("v_mov_b32 v39, 0")
    for k in range(16):
        if k % 4 == 0: vissue(DQ)
        expo(k)
    E("v_add_f32 v37, v38, v39")
    swap_reduce("v_add_f32", 37, 24, 16); swap_reduce("v_add_f32", 37, 24, 32)
    E("s_lshl_b32 s28, s3, 4"); E("v_add_u32 v3, s28, v0"); E("v_mov_b32 v24, 1")
    E("s_mov_b64 exec, 0x101"); E(f"ds_write_b64 v3, v[36:37] offset:{MLB}")
    E("s_mov_b64 exec, 1"); E(f"ds_add_u32 v2, v24 offset:{C_CNT}")
    E("s_mov_b64 exec, -1")
    stamp(3)
    E("v_and_b32 v3, 1, v0"); E("v_cmp_eq_u32 vcc, 1, v3")
    E("v_mov_b32 v32, 0x0c0c0100"); E("v_mov_b32 v33, 0x01000c0c"); E("v_cndmask_b32 v32, v32, v33, vcc")
    E("v_mov_b32 v34, 0x0c0c0302"); E("v_mov_b32 v33, 0x03020c0c"); E("v_cndmask_b32 v33, v34, v33, vcc")
    E("v_bfe_u32 v3, v0, 1, 2"); E("v_mov_b32 v34, 0x0c0c0c0c")
    for r in range(4):
        E(f"v_cmp_eq_u32 vcc, {r}, v3"); E(f"v_cndmask_b32 v{24+r}, v34, v32, vcc"); E(f"v_cndmask_b32 v{28+r}, v34, v33, vcc")
    E("v_and_b32 v3, 15, v0"); E("v_lshlrev_b32 v3, 5, v3"); E("v_bfe_u32 v2, v0, 4, 1"); E("v_lshl_add_u32 v3, v2, 4, v3")
    E("v_lshrrev_b32 v2, 5, v0"); E("v_lshl_add_u32 v3, v2, 9, v3"); E("s_lshl_b32 s28, s3, 10"); E("v_add_u32 v3, s28, v3")
    setscc()
    pv = dict(done=0)
    def pv_prep(i):
        A0 = 32 + 4 * (i & 1)
        for r in range(4): E(f"v_perm_b32 v{A0+r}, v{4+i//2}, v{4+i//2}, v{24+4*(i&1)+r}")
    def pv_mfma(i):
        A0 = 32 + 4 * (i & 1)
        c = "0" if i == 0 else "v[20:23]"
        E(f"v_mfma_f32_16x16x32_bf16 v[20:23], v[{A0}:{A0+3}], v[{SL(i)}:{SL(i)+3}], {c}")
    while st['issued'] < 32:
        vissue(DV + (DE if st['issued'] >= 32 - NE else 0))
        n = 0
        while pv['done'] <= st['issued'] - 1 - DV - xd - (DE if st['issued'] > 32 - NE else 0) and n < 3:
            pv_prep(pv['done']); pv_mfma(pv['done']); pv['done'] += 1; n += 1
    while pv['done'] < 32:
        i = pv['done']
        pv_prep(i)
        if 31 - i < DV + xd + DE: E(f"s_waitcnt vmcnt({31-i})")
        pv_mfma(i); pv['done'] += 1
    tagbyte(17, 0)
    E("v_mov_b32 v2, 0"); E("v_mov_b32 v4, 1")
    E("s_lshl_b32 s29, s4, 5"); E("s_add_u32 s29, s29, s5"); E("s_lshl_b32 s29, s29, 10")
    E(f"ds_write_b128 v3, v[20:23] offset:{OBUF}")
    E("s_mov_b64 exec, 1"); E(f"ds_add_rtn_u32 v4, v2, v4 offset:{C_OC}"); E("s_mov_b64 exec, -1")
    E("v_lshrrev_b32 v3, 5, v0"); E("v_lshlrev_b32 v3, 5, v3")
    stamp(4)
    E("s_waitcnt lgkmcnt(0)")
    E("v_readfirstlane_b32 s28, v4"); E("s_cmp_lg_u32 s28, 7"); E("s_cbranch_scc1 L_noreduce")
    E("s_mov_b32 s7, 0")
    E.label("L_red")
    E(f"ds_read_b32 v16, v2 offset:{C_FAC}")
    E(f"ds_read_b128 v[4:7], v3 offset:{FAC}"); E(f"ds_read_b128 v[8:11], v3 offset:{FAC+16}")
    for w in range(8): E(f"ds_read_b128 v[{40+4*w}:{43+4*w}], v1 offset:{OBUF + w*1024}")
    E("s_waitcnt lgkmcnt(8)")
    E("v_readfirstlane_b32 s6, v16"); E("s_add_u32 s7, s7, 1"); E(f"s_cmp_gt_u32 s7, {plim*8}"); E("s_cbranch_scc1 L_red2")
    E("s_cmp_eq_u32 s6, 0"); E("s_cbranch_scc1 L_red")
    E.label("L_red2")
    for w in range(8):
        E(f"s_waitcnt lgkmcnt({7-w})")
        for k in range(4):
            if w == 0: E(f"v_mul_f32 v{12+k}, v4, v{40+k}")
            else: E(f"v_fmac_f32 v{12+k}, v{4+w}, v{40+4*w+k}")
    settag(12, 17)
    intra_store(["buffer_store_dwordx4 v[12:15], v1, s[24:27], s29 offen"])
    lds_set(C_OC, 2, 4, 9)
    stamp(5)
    E.label("L_noreduce")
    if 't' in dbg: E("s_branch L_sdone")
    E(f"s_sub_u32 s28, s5, {JW2}"); E("s_cmp_ge_u32 s28, 9"); E("s_cbranch_scc1 L_sdone")
    E("s_cmp_ge_u32 s3, 5"); E("s_cbranch_scc1 L_sdone")
    lds_wait(C_D2, 4, 2, 3, sleep=2)
    E("s_lshl_b32 s28, s3, 6"); E("v_add_u32 v2, s28, v0"); E("v_min_u32 v2, 287, v2")
    tagbyte(22, 2)
    E("v_lshlrev_b32 v1, 4, v2")
    E("v_lshlrev_b32 v2, 2, v2")
    E("s_mul_i32 s18, s4, 9216"); E(f"s_add_u32 s18, s18, {G_OFF}"); E("s_add_u32 s19, s18, 4608")
    E(f"s_mov_b32 s28, {LOG2E ^ 0x80000000}")
    stamp(6)
    def gbody():
        E("buffer_load_dwordx4 v[12:15], v1, s[24:27], s18 offen sc1"); E("buffer_load_dwordx4 v[16:19], v1, s[24:27], s19 offen sc1")
        E("s_waitcnt vmcnt(0)")
        lowcheck(20, list(range(12, 20)), 22)
    poll(gbody, sl_z)
    for e in range(4): E(f"v_mul_f32 v{16+e}, v{16+e}, v{12+e}")
    for e in range(4): E(f"v_mul_f32 v{12+e}, s28, v{12+e}")
    for e in range(4): E(f"v_exp_f32 v{12+e}, v{12+e}")
    for e in range(4): E(f"v_add_f32 v{12+e}, 1.0, v{12+e}")
    for e in range(4): E(f"v_rcp_f32 v{12+e}, v{12+e}")
    for e in range(4): E(f"v_mul_f32 v{16+e}, v{16+e}, v{12+e}")
    E("v_cvt_pk_bf16_f32 v12, v16, v18"); E("v_cvt_pk_bf16_f32 v13, v17, v19")
    E(f"ds_write_b32 v2, v12 offset:{ACT0}"); E(f"ds_write_b32 v2, v13 offset:{ACT1}")
    E("s_waitcnt lgkmcnt(0)")
    E("s_barrier")
    stamp(7)
    E.label("L_sdone")
    stamp_flush(); E("s_endpgm")

    E.label("L_tailprep")
    E("s_cmp_lt_u32 s5, 27"); E("s_cbranch_scc1 L_tail1")
    E("s_sub_u32 s28, s2, 224"); E("s_cmp_ge_u32 s28, 6"); E("s_cbranch_scc1 L_svc_end")
    lds_wait(C_GO, 4, 1, 8, sleep=4)
    if ko: lds_wait(C_OC, ko, 1, 8, sleep=2)
    else: lds_wait(C_VH, 1, 1, 8, sleep=4)
    E("s_mov_b32 s21, 2"); E("s_add_u32 s22, s4, 48"); E("s_mov_b32 s18, 8"); E("s_branch L_job")
    E.label("L_tail1")
    E("s_cmp_lt_u32 s5, 9"); E("s_cbranch_scc1 L_owner")

    if 't' not in dbg:
        lds_wait(C_Q, 1, 1, 8, sleep=8)
        mktag()
        own_map()
        modgather(1728, 2304)
        for i in range(3):
            E(f"v_add_f32 v{30+2*i}, 1.0, v{30+2*i}"); E(f"v_add_f32 v{31+2*i}, 1.0, v{31+2*i}")
            E(f"v_cvt_pk_bf16_f32 v12, v{30+2*i}, v{31+2*i}"); E(f"v_cvt_pk_bf16_f32 v13, v{24+2*i}, v{25+2*i}")
            a_, o_ = ((10, 0), (10, 128), (11, 0))[i]
            E(f"ds_write_b32 v{a_}, v12 offset:{CBUF+o_}"); E(f"ds_write_b32 v{a_}, v13 offset:{SBUF+o_}")
    E("s_mov_b32 s20, 9216")
    dma_addrs()
    E("s_cmp_ge_u32 s5, 18"); E("s_cselect_b32 s8, s50, s48"); E("s_cselect_b32 s9, s51, s49"); E("s_cselect_b32 s28, 18, 9"); E("s_sub_u32 s28, s5, s28")
    E(f"s_mov_b32 s10, {576*9216}"); E("s_mov_b32 s11, 0x20000")
    E("s_mul_i32 s16, s4, 1152"); E("s_lshl_b32 s28, s28, 7"); E("s_add_u32 s16, s16, s28")
    E(f"s_mul_i32 s28, s3, {144*9216}"); E("s_add_u32 s16, s16, s28")
    E("s_mul_i32 s29, s3, 18432"); E(f"s_add_u32 s29, s29, {SLOT_A}"); E("s_mov_b32 s19, 9")
    if NP or NP3:
        E("s_bfe_u32 s30, s16, 0x30007"); E("s_cmp_eq_u32 s30, 3"); E(f"s_cselect_b32 s19, {NP3}, {NP}"); E("s_sub_u32 s31, 9, s19")
        E("s_cmp_eq_u32 s19, 0"); E("s_cbranch_scc1 L_nol1")
        lds_wait(C_VH, 1, 1, 8, sleep=4)
        dma_loop("L_dma_l1", DW1)
        E.label("L_nol1")
        E("s_mov_b32 s19, s31")
    if ko: lds_wait(C_OC, ko, 1, 8, sleep=1)
    else: lds_wait(C_VH, 1, 1, 8, sleep=4)
    stamp(5)
    if 'w' not in dbg: dma_loop("L_dma_late", DW)
    if 't' in dbg:
        E("s_waitcnt vmcnt(0)"); stamp(6); E("s_branch L_svc_end")
    lds_wait(C_BAR, 1, 1, 8, sleep=4)
    E("s_mov_b32 s6, s28")
    op_addrs()
    E("s_mul_i32 s28, s3, 2304"); E(f"s_add_u32 s28, s28, {ZBUF}")
    E("v_mov_b32 v8, s28"); E(f"v_mov_b32 v9, {CBUF}"); E(f"v_mov_b32 v10, {SBUF}")
    E("v_cmp_eq_u32 vcc, 1, v6"); E("v_cndmask_b32 v4, v8, v9, vcc"); E("v_cmp_eq_u32 vcc, 2, v6"); E("v_cndmask_b32 v4, v4, v10, vcc")
    E("v_bfe_u32 v7, v0, 2, 1"); E("v_mul_u32_u24 v7, 1152, v7"); E("v_lshl_add_u32 v7, v5, 4, v7"); E("v_add_u32 v4, v4, v7")
    E("v_and_b32 v3, 1, v0"); E("v_xor_b32 v3, 1, v3"); E(f"v_mul_u32_u24 v3, {ACT0-ACT1}, v3"); E("v_lshl_add_u32 v3, v5, 4, v3")
    E("s_sub_u32 s30, s5, 9"); E("s_lshl_b32 s30, s30, 2"); E("s_add_u32 s30, s30, s3")
    E("s_lshl_b32 s17, s30, 7"); E("s_mul_i32 s29, s4, 9216"); E("s_add_u32 s17, s17, s29"); E(f"s_add_u32 s17, s17, {G_OFF}")
    E("s_mul_i32 s18, s4, 2304"); E(f"s_add_u32 s18, s18, {Z_OFF}")
    E("s_mul_i32 s20, s4, 640"); E(f"s_add_u32 s20, s20, {ST_OFF}")
    E(f"s_sub_u32 s30, s5, {JW2}"); E("s_lshl_b32 s30, s30, 2"); E("s_add_u32 s30, s30, s3"); E("s_lshl_b32 s30, s30, 7")
    E("s_mul_i32 s19, s4, 4608"); E("s_add_u32 s19, s19, s30"); E(f"s_add_u32 s19, s19, {Y_OFF}")
    E("v_lshlrev_b32 v12, 4, v0"); E("v_min_u32 v13, 15, v0"); E("v_lshlrev_b32 v13, 4, v13")
    E("v_add_u32 v14, s28, v12"); E("v_add_u32 v15, s28, v13")
    E("v_and_b32 v8, 15, v0"); E("v_lshrrev_b32 v9, 5, v0"); E("v_lshl_add_u32 v9, v9, 4, v8"); E("v_cmp_gt_u32 s[32:33], 18, v9")
    E("v_min_u32 v9, 17, v9"); E("v_bfe_u32 v10, v0, 4, 1"); E("v_mul_u32_u24 v11, 288, v10"); E("v_lshl_add_u32 v16, v9, 4, v11")
    E("v_lshlrev_b32 v10, 2, v10"); E("v_lshl_add_u32 v17, v8, 3, v10")
    E("v_lshlrev_b32 v7, 3, v0")
    E("s_mov_b32 s30, 0x3ae38e39"); E("s_mov_b32 s31, 0x3727c5ac")
    E("s_waitcnt vmcnt(0)")
    soft_barrier(C_D2, 1, 8, sleep=0)
    stamp(6)
    def zloads():
        E("buffer_load_dwordx4 v[24:27], v12, s[24:27], s18 offen sc1"); E("buffer_load_dwordx4 v[28:31], v12, s[24:27], s18 offen offset:1024 sc1")
        E("buffer_load_dwordx4 v[32:35], v13, s[24:27], s18 offen offset:2048 sc1"); E("buffer_load_dwordx4 v[20:23], v16, s[24:27], s20 offen sc1")
    zloads()
    stage_b(SLOT_A, 18, wait=False)
    E("v_lshrrev_b32 v5, 1, v0"); tagbyte(5, 5)
    E("v_lshrrev_b32 v6, 4, v16"); E("v_bfe_u32 v8, v0, 4, 1"); E("v_lshlrev_b32 v8, 1, v8"); E("v_sub_u32 v6, v6, v8"); tagbyte(6, 6)
    stamp(7)
    E("s_mov_b32 s7, 0"); E("s_branch L_zchk")
    E.label("L_zpl")
    zloads()
    E.label("L_zchk")
    E("s_waitcnt vmcnt(0)")
    E("v_max3_u32 v8, v24, v25, v26"); E("v_max3_u32 v9, v27, v28, v29"); E("v_max3_u32 v10, v30, v31, v32"); E("v_max3_u32 v11, v33, v34, v35")
    E("v_max3_u32 v8, v8, v10, v11"); E("v_xor_b32 v20, v6, v20"); E("v_xor_b32 v22, v6, v22"); E("v_max_u32 v8, v8, v9"); E("v_or_b32 v10, v20, v22")
    E("v_cmp_eq_u32 s[22:23], -1, v8"); E("v_and_b32 v10, 0xff, v10"); E("v_cmp_ne_u32 vcc, 0, v10"); E("s_or_b64 vcc, vcc, s[22:23]")
    E("s_cbranch_vccz L_zok")
    E("s_add_u32 s7, s7, 1"); E(f"s_cmp_lt_u32 s7, {plim}"); E("s_cbranch_scc1 L_zpl")
    E.label("L_zok")
    stamp(8)
    E("ds_write_b128 v14, v[24:27]"); E("ds_write_b128 v14, v[28:31] offset:1024"); E("ds_write_b128 v15, v[32:35] offset:2048")
    F = ["v_add_f32 v18, v20, v22", "v_add_f32 v19, v21, v23", "v_cndmask_b32 v18, 0, v18, s[32:33]", "v_cndmask_b32 v19, 0, v19, s[32:33]"]
    for k in (1, 2, 4, 8):
        F += [f"v_add_f32_dpp v{r}, v{r}, v{r} row_ror:{k} row_mask:0xf bank_mask:0xf" for r in (18, 19)]
    F += ["v_mov_b32 v20, v18", "v_mov_b32 v21, v19", "v_permlane32_swap_b32 v18, v20", "v_permlane32_swap_b32 v19, v21", "v_add_f32 v18, v18, v20", "v_add_f32 v19, v19, v21"]
    R = lambda r: [f"v_cvt_pk_bf16_f32 v{r}, v{r}, v{r}", f"v_and_b32 v{r}, 0xffff0000, v{r}"]
    F += ["v_mul_f32 v18, s30, v18", "v_mul_f32 v19, s30, v19", "v_fma_f32 v19, -v18, v18, v19", "v_max_f32 v19, 0, v19"] + R(19)
    F += ["v_add_f32 v19, s31, v19"] + R(19) + ["v_sqrt_f32 v19, v19"] + R(18) + R(19) + ["v_rcp_f32 v19, v19"]
    for f in F[:4]: E(f)
    E("s_waitcnt lgkmcnt(0)")
    gemv(4, 0, 18, 8, F[4:])
    E("v_fma_f32 v8, -v18, v9, v8"); E("v_fma_f32 v8, v8, v19, v10")
    settag(8, 5)
    E("s_mov_b32 exec_hi, 0")
    intra_store(["buffer_store_dword v8, v17, s[24:27], s17 offen"])
    E("s_mov_b64 exec, -1")
    stamp(13)
    E(f"s_sub_u32 s28, s5, {JW2}"); E("s_cmp_ge_u32 s28, 9"); E("s_cbranch_scc1 L_svc_end")
    stage_b(SLOT_B, 18)
    tagbyte(5, 0)
    E("s_barrier")
    stamp(14)
    gemv(3, ACT1, 18, 8)
    settag(8, 5); settag(9, 5)
    E("s_mov_b64 exec, 0xffff")
    E("buffer_store_dwordx2 v[8:9], v7, s[24:27], s19 offen sc1")
    stamp(15)
    E("s_branch L_svc_end")

    E.label("L_owner")
    if 't' in dbg: E("s_waitcnt vmcnt(0)"); E("s_branch L_svc_end")
    E("s_waitcnt vmcnt(0)")
    lds_inc(C_D1, 1, 8)
    lds_wait(C_BAR, 1, 1, 8, sleep=8)
    E("s_mov_b32 s6, s28")
    mktag()
    op_addrs()
    lds_wait(C_D1, 4, 1, 8, sleep=4)
    stage_b(SLOT_A, 16)
    E("s_lshl_b32 s22, s5, 2"); E("s_add_u32 s22, s22, s3")
    E("v_and_b32 v20, 31, v0"); E("v_lshrrev_b32 v6, 1, v20"); E("v_and_b32 v7, 1, v0"); E("v_lshlrev_b32 v20, 2, v20")
    E("v_mul_u32_u24 v21, 1152, v7"); E("v_lshl_add_u32 v21, v6, 1, v21")
    E("v_mul_u32_u24 v22, 288, v7")
    E("v_lshlrev_b32 v5, 3, v6")
    E("s_lshl_b32 s23, s22, 5")
    srd(12, 36, 2304)
    E("buffer_load_ushort v16, v21, s[12:15], s23 offen")
    E("s_lshl_b32 s28, s22, 7"); E(f"s_add_u32 s28, s28, {MOD_OFF + 1152*8}"); E(f"s_add_u32 s29, s28, {1152*8}"); E(f"s_add_u32 s30, s29, {576*8}")
    def gabody():
        for k in range(2): E(f"buffer_load_dwordx2 v[{24+2*k}:{25+2*k}], v5, s[24:27], s{28+k} offen sc1")
        E("s_waitcnt vmcnt(0)")
        tagcheck(6, [25, 27])
    poll(gabody, 8)
    E("s_mov_b32 s19, s30")
    E("v_cmp_eq_u32 vcc, 0, v7"); E("v_mov_b32 v19, 0x03020c0c"); E("v_mov_b32 v6, 0x01000c0c"); E("v_cndmask_b32 v19, v19, v6, vcc")
    for k in range(2): E(f"v_perm_b32 v{17+k}, v{24+2*k}, v{24+2*k}, v19")
    E("v_lshlrev_b32 v16, 16, v16"); E("v_add_f32 v18, 1.0, v18"); rnd(18, 18)
    srd(12, 58, 2304)
    lds_wait(C_V2, 1, 1, 8, sleep=8)
    E("s_lshl_b32 s28, s4, 5"); E("s_lshl_b32 s29, s3, 3"); E("s_add_u32 s28, s28, s29")
    E("s_lshl_b32 s16, s28, 10"); E("s_add_u32 s17, s16, 4096")
    E("s_lshl_b32 s28, s28, 4"); E(f"s_add_u32 s28, s28, {ML_OFF}")
    E("v_and_b32 v5, 15, v0"); E("v_lshlrev_b32 v5, 3, v5")
    def mlbody():
        E("buffer_load_dwordx2 v[24:25], v5, s[24:27], s28 offen sc1"); E("s_waitcnt vmcnt(0)"); lowcheck(6, [25], 4)
    tagbyte(4, 0)
    E("v_lshrrev_b32 v2, 1, v0"); tagbyte(2, 2)
    poll(mlbody, sl_ml)
    E(f"s_mov_b32 s31, {LOG2E}")
    E("v_mov_b32 v6, v24"); row_reduce("v_max_f32", 6, (2, 4, 8))
    E("v_sub_f32 v6, v24, v6"); E("v_mul_f32 v6, s31, v6"); E("v_exp_f32 v6, v6"); E("v_mul_f32 v7, v6, v25")
    row_reduce("v_add_f32", 7, (2, 4, 8))
    E("v_rcp_f32 v7, v7"); E("v_lshrrev_b32 v5, 5, v0"); E("v_lshlrev_b32 v5, 2, v5"); E("v_mul_f32 v6, v6, v7")
    for s_ in range(8): E(f"ds_bpermute_b32 v{8+s_}, v5, v6 offset:{8*s_}")
    E("s_waitcnt lgkmcnt(0)")
    E("v_lshlrev_b32 v5, 4, v0"); E("v_lshlrev_b32 v7, 3, v0")
    E("s_lshr_b32 s28, s3, 1"); E("s_mul_i32 s28, s28, 1152"); E("s_and_b32 s29, s3, 1"); E("s_lshl_b32 s29, s29, 9"); E("s_add_u32 s28, s28, s29")
    E("v_add_u32 v6, s28, v7")
    E("s_lshl_b32 s28, s22, 7")
    E("s_mul_i32 s29, s4, 4608"); E("s_add_u32 s29, s29, s28")
    E(f"s_add_u32 s18, s29, {X_OFF}")
    XS = SO
    for k in range(8): E(f"s_add_u32 s{XS(k)}, s28, {X_OFF + k*4608}")
    E("s_mul_i32 s20, s4, 2304"); E("s_add_u32 s20, s20, s23"); E(f"s_add_u32 s20, s20, {Z_OFF}")
    E("s_mul_i32 s21, s4, 640"); E("s_lshl_b32 s28, s22, 3"); E("s_add_u32 s21, s21, s28"); E(f"s_add_u32 s21, s21, {ST_OFF}")
    stamp(6)
    lds_wait(C_OC, 8, 1, 23, sleep=1)
    stamp(7)
    def obody():
        for s in range(8): E(f"buffer_load_dwordx4 v[{24+4*s}:{27+4*s}], v5, s[24:27], s{16 + s//4} offen offset:{(s%4)*1024} sc1")
        for s in range(8):
            E(f"s_waitcnt vmcnt({7-s})")
            E(f"v_xor_b32 v{24+4*s}, v4, v{24+4*s}")
            for k in (1, 2, 3, 0):
                if s == 0: E(f"v_mul_f32 v{56+k}, v8, v{24+k}")
                else: E(f"v_fmac_f32 v{56+k}, v{8+s}, v{24+4*s+k}")
            if s == 2: E("v_or3_b32 v60, v24, v28, v32")
            if s in (4, 6): E(f"v_or3_b32 v60, v60, v{20+4*s}, v{24+4*s}")
        E("v_or_b32 v60, v60, v52"); E("v_and_b32 v60, 0xff, v60"); E("v_cmp_ne_u32 vcc, 0, v60")
    if not omask: poll(obody, sl_o)
    else:
        E("s_mov_b32 s7, 0"); E("s_mov_b32 s30, 0xff")
        E.label("L_om")
        for s_ in range(8):
            a_ = L("oi"); E(f"s_bitcmp1_b32 s30, {s_}"); E(f"s_cbranch_scc0 {a_}")
            E(f"buffer_load_dwordx4 v[{24+4*s_}:{27+4*s_}], v5, s[24:27], s{16 + s_//4} offen offset:{(s_%4)*1024} sc1"); E.label(a_)
        E("s_waitcnt vmcnt(0)")
        for s_ in range(8):
            a_ = L("oc"); E(f"s_bitcmp1_b32 s30, {s_}"); E(f"s_cbranch_scc0 {a_}")
            E(f"v_xor_b32 v{24+4*s_}, v4, v{24+4*s_}"); E(f"v_and_b32 v60, 0xff, v{24+4*s_}"); E("v_cmp_ne_u32 vcc, 0, v60")
            E(f"s_cbranch_vccnz {a_}"); E(f"s_bitset0_b32 s30, {s_}")
            for k in range(4): E(f"v_mul_f32 v{24+4*s_+k}, v{8+s_}, v{24+4*s_+k}")
            E.label(a_)
        E("s_cmp_eq_u32 s30, 0"); E("s_cbranch_scc1 L_omd")
        E("s_add_u32 s7, s7, 1"); E(f"s_cmp_lt_u32 s7, {plim}"); E("s_cbranch_scc1 L_om")
        E.label("L_omd")
        for k in range(4):
            E(f"v_add3_f32 v{56+k}, v{24+k}, v{28+k}, v{32+k}") if False else None
        for lvl in ((0, 1), (2, 3), (4, 5), (6, 7), (0, 2), (4, 6)):
            E(f"v_pk_add_f32 v[{24+4*lvl[0]}:{25+4*lvl[0]}], v[{24+4*lvl[0]}:{25+4*lvl[0]}], v[{24+4*lvl[1]}:{25+4*lvl[1]}]")
            E(f"v_pk_add_f32 v[{26+4*lvl[0]}:{27+4*lvl[0]}], v[{26+4*lvl[0]}:{27+4*lvl[0]}], v[{26+4*lvl[1]}:{27+4*lvl[1]}]")
        E("v_pk_add_f32 v[56:57], v[24:25], v[40:41]"); E("v_pk_add_f32 v[58:59], v[26:27], v[42:43]")
    stamp(8)
    E("v_cvt_pk_bf16_f32 v56, v56, v57"); E("v_cvt_pk_bf16_f32 v57, v58, v59")
    E(f"ds_write_b64 v6, v[56:57] offset:{ABUF}")
    E("s_waitcnt lgkmcnt(0)")
    E("s_barrier")
    gemv(3, ABUF, 16, 8)
    settag(8, 4); settag(9, 4)
    E("s_mov_b64 exec, 0xffff")
    E("buffer_store_dwordx2 v[8:9], v7, s[24:27], s18 offen sc1")
    E("s_mov_b64 exec, -1")
    stamp(9)
    def sum8():
        for k in range(8): E(f"buffer_load_dword v{24+k}, v20, s[24:27], s{XS(k)} offen sc1")
        E("s_waitcnt vmcnt(0)")
        lowcheck(32, list(range(24, 32)), 2)
    def add8():
        E("v_add_f32 v24, v24, v25"); E("v_add_f32 v26, v26, v27"); E("v_add_f32 v28, v28, v29"); E("v_add_f32 v30, v30, v31")
        E("v_add_f32 v24, v24, v26"); E("v_add_f32 v28, v28, v30"); E("v_add_f32 v24, v24, v28")
    if xwait: E("s_waitcnt vmcnt(0)")
    E("s_lshr_b32 s28, s22, 1"); E("v_mov_b32 v23, s28"); tagbyte(23, 23)
    poll(sum8, 0)
    stamp(10)
    add8()
    rnd(24, 24); E("v_mul_f32 v24, v17, v24"); rnd(24, 24); E("v_add_f32 v16, v16, v24"); rnd(16, 16)
    E("v_mul_f32 v24, v16, v18"); E("v_mul_f32 v27, v16, v16")
    E("v_add_f32_dpp v26, v16, v16 row_ror:2 row_mask:0xf bank_mask:0xf")
    E("v_mov_b32_dpp v25, v24 quad_perm:[2,3,2,3] row_mask:0xf bank_mask:0xf")
    E("v_add_f32_dpp v27, v27, v27 row_ror:2 row_mask:0xf bank_mask:0xf")
    E("v_cvt_pk_bf16_f32 v24, v24, v25")
    for k in (4, 8):
        for r in (26, 27): E(f"v_add_f32_dpp v{r}, v{r}, v{r} row_ror:{k} row_mask:0xf bank_mask:0xf")
    E("v_mov_b32 v28, v26"); E("v_mov_b32 v29, v27")
    E("v_permlane16_swap_b32 v26, v28"); E("v_permlane16_swap_b32 v27, v29"); E("v_add_f32 v26, v26, v28"); E("v_add_f32 v27, v27, v29")
    settag(26, 23)
    intra_store(["s_mov_b64 exec, 0x33333333", "buffer_store_dword v24, v21, s[24:27], s20 offen", "s_mov_b64 exec, 3", "buffer_store_dwordx2 v[26:27], v22, s[24:27], s21 offen"])
    E("s_mov_b64 exec, -1")
    stamp(11)
    E("s_and_b32 s28, s5, 7"); E("s_cmp_lg_u32 s28, s4"); E("s_cbranch_scc1 L_svc_end")
    for k in range(8): E(f"s_add_u32 s{XS(k)}, s{XS(k)}, {Y_OFF - X_OFF}")
    E("v_bfe_u32 v5, v0, 1, 4"); E("v_lshlrev_b32 v5, 3, v5")
    def gbbody():
        E("buffer_load_dwordx2 v[24:25], v5, s[24:27], s19 offen sc1"); E("s_waitcnt vmcnt(0)"); tagcheck(6, [25])
    poll(gbbody, 1)
    E("v_perm_b32 v19, v24, v24, v19")
    poll(sum8, 0)
    stamp(14)
    add8()
    rnd(24, 24); E("v_mul_f32 v24, v19, v24"); rnd(24, 24); E("v_add_f32 v24, v16, v24")
    E("v_mov_b32_dpp v25, v24 quad_perm:[2,3,2,3] row_mask:0xf bank_mask:0xf")
    E("v_cvt_pk_bf16_f32 v24, v24, v25")
    E("s_mov_b64 exec, 0x33333333")
    E("buffer_store_dword v24, v21, s[12:15], s23 offen")
    stamp(15)
    E("s_cmp_lg_u32 s22, 0"); E("s_cbranch_scc1 L_svc_end")
    E("s_mov_b64 exec, 1"); E("v_mov_b32 v24, s35"); E(f"s_mov_b32 s28, {EP_OFF}")
    E("buffer_store_dword v24, v1, s[24:27], s28 offen")
    if probe is not None:
        E(f"s_add_u32 s29, s{70+probe}, 6000")
        E.label("L_probe")
        E("s_sleep 1"); E("s_memrealtime s[92:93]"); E("s_waitcnt lgkmcnt(0)"); E("s_sub_u32 s28, s29, s92"); E("s_cmp_gt_i32 s28, 0"); E("s_cbranch_scc1 L_probe")
    E.label("L_svc_end")
    E("s_waitcnt lgkmcnt(0)")
    if stamps: E("s_add_u32 s3, s3, 8")
    stamp_flush()
    E.label("L_exit")
    body = E.finish()
    verify_stream(body)
    return HDR + f"""; @launch grid=(256,1,1) block=(768,1,1) lds=163840
.amdgcn_target "amdgcn-amd-amdhsa--gfx950"
.text
.globl {NAME}_kernel
.p2align 8
.type {NAME}_kernel,@function
{NAME}_kernel:
{body}
    s_endpgm
.section .rodata,"a"
.p2align 6
.amdhsa_kernel {NAME}_kernel
  .amdhsa_next_free_vgpr 168
  .amdhsa_next_free_sgpr 102
  .amdhsa_accum_offset 168
  .amdhsa_group_segment_fixed_size 0
  .amdhsa_kernarg_size 112
  .amdhsa_float_denorm_mode_32 3
  .amdhsa_user_sgpr_count 2
  .amdhsa_user_sgpr_kernarg_segment_ptr 1
  .amdhsa_system_sgpr_workgroup_id_x 1
.end_amdhsa_kernel
"""

def verify_stream(body):
    import re
    lines = [l.strip() for l in body.split('\n')]
    a = lines.index('L_k0:'); b = lines.index('L_service:'); c = lines.index('L_stream:'); d = lines.index('L_noreduce:')
    path = lines[a:b] + lines[c:d]
    issued = []; landed = 0; skip = None; last = {}
    for l in path:
        if skip:
            if l == skip + ':': skip = None
            continue
        m = re.match(r's_cbranch_scc1 (L_th_\d+)', l)
        if m: skip = m.group(1); continue
        m = re.match(r'buffer_load_dwordx4 v\[(\d+):', l)
        if m: issued.append(int(m.group(1))); last[int(m.group(1))] = len(issued); continue
        m = re.search(r'vmcnt\((\d+)\)', l)
        if m: landed = max(landed, len(issued) - int(m.group(1))); continue
        m = re.match(r'v_mfma\S+ v\[(\d+):\d+\], v\[(\d+):\d+\], v\[(\d+):', l)
        if m:
            for r in (int(m.group(2)), int(m.group(3))):
                if r in last: assert last[r] <= landed, f"unwaited operand: {l}"
    assert len(issued) == 64 and landed == 64

HDR = """; adaLN-conditioned GQA decode attention + SwiGLU block, one persistent launch (generated by gen/gen4.py)
"""
if __name__ == '__main__':
    kw = eval('dict(' + (sys.argv[2] if len(sys.argv) > 2 else '') + ')')
    open(sys.argv[1], 'w').write(gen(**kw))
```

```python
import sys, re
from emit import Emit
NAME = 'adaLN_cond__gqa_block_cached__glu_gated_swiglu__decode'

O_OFF, G_OFF = 0x0, 0x40000
X_OFF, Y_OFF = 0x80000, 0xA0000
Z_OFF, ST_OFF, ML_OFF = 0x64000, 0x69000, 0x6C000
EP_OFF = 0xC0000
FL_OFF = 0xC1000
VT_OFF = 0xC2000
Q_OFF, MOD_OFF = 0xC8000, 0xD0000
STAMP_OFF = 0x100000
WS_SIZE = 0x200000
C_BAR, C_Q, C_CNT, C_D1, C_D2, C_CS, C_GO, C_J1, C_J2, C_KH, C_VH, C_OC, C_FAC, C_V2, C_G, C_NR = range(0, 64, 4)
FAC, MLB, QBUF = 64, 128, 256
CBUF, SBUF = 1216, 3552
ABUF = 1216
ACT0, ACT1 = 15104, 64
JBUF, ZBUF, OBUF = 5888, 5888, 8192
SLOT_A, SLOT_B = 16384, 90112
LOG2E = 0x3fb8aa3b
SCALE = 0x3db504f3
JW2, JQ0 = 15, 24

def gen(D=3, DV=3, DQ=3, stamps=False, force_slow=False, sl_long=2, sl_bar=16, gateq=0, kvf='nt', wf='nt',
        plim=0x2000, probe=None, cpf=0, sl_o=0, sl_z=0, dbg='', XW=(0,0,0,0,3,4), XD=1, sl_ml=32, kh=29, sl_q=4,
        XG=1, DE=3, NE=8, kv=12, DW=0, DEA=0, DJ=0, K0=3, DJQ=8, EB=0, QB=0, ko=9, omask=0, xwait=0, NP=0, DW1=2, NP3=4, XL=0, k1=0, N1=2, PX=1, PG=1, hg=1, reh=1, oack=0, tlb=0, warm='', NL=4, v2=22, qs=1, numa=1, NRR=2, pool=1, KA=12, ZL=2):
    assert ko == 9
    E = Emit()
    uid = [0]
    def L(p):
        uid[0] += 1
        return f"L_{p}_{uid[0]}"
    def stamp(k):
        if stamps and (stamps != 'lite' or k in (0, 15)):
            E("s_memrealtime s[92:93]"); E("s_waitcnt lgkmcnt(0)"); E(f"s_mov_b32 s{70+k}, s92")
    def stamp_flush():
        if stamps:
            E("s_mov_b64 exec, -1")
            E("v_mov_b32 v4, 0")
            for k in range(16): E(f"v_writelane_b32 v4, s{70+k}, {k}")
            E("s_lshl_b32 s28, s4, 5"); E("s_add_u32 s28, s28, s5"); E("s_mul_i32 s28, s28, 12"); E("s_add_u32 s28, s28, s3")
            E("s_lshl_b32 s28, s28, 6"); E(f"s_add_u32 s28, s28, {STAMP_OFF}")
            E("v_mbcnt_lo_u32_b32 v5, -1, 0"); E("v_mbcnt_hi_u32_b32 v5, -1, v5"); E("v_lshlrev_b32 v5, 2, v5")
            E("s_mov_b64 exec, 0xffff")
            E("buffer_store_dword v4, v5, s[24:27], s28 offen")
    def srd(r, p, size):
        E(f"s_mov_b32 s{r}, s{p}"); E(f"s_mov_b32 s{r+1}, s{p+1}"); E(f"s_mov_b32 s{r+2}, {size}"); E(f"s_mov_b32 s{r+3}, 0x20000")
    def lds_wait(off, val, vz, vt, sleep=2):
        a, b = L("lw"), L("lwd")
        E("s_mov_b32 s7, 0"); E.label(a)
        E(f"ds_read_b32 v{vt}, v{vz} offset:{off}"); E("s_waitcnt lgkmcnt(0)")
        E(f"v_readfirstlane_b32 s28, v{vt}"); E(f"s_cmp_ge_u32 s28, {val}"); E(f"s_cbranch_scc1 {b}")
        if sleep: E(f"s_sleep {sleep}")
        E("s_add_u32 s7, s7, 1"); E(f"s_cmp_lt_u32 s7, {plim*8}"); E(f"s_cbranch_scc1 {a}")
        E.label(b)
    def lds_set(off, vz, vt, val):
        E(f"v_mov_b32 v{vt}, {val}"); E(f"ds_write_b32 v{vz}, v{vt} offset:{off}")
    def lds_inc(off, vz, vt):
        E(f"v_mov_b32 v{vt}, 1"); E("s_mov_b64 exec, 1"); E(f"ds_add_u32 v{vz}, v{vt} offset:{off}"); E("s_mov_b64 exec, -1")
    def soft_barrier(off, vz, vt, sleep=0, n=4):
        lds_inc(off, vz, vt); lds_wait(off, n, vz, vt, sleep)
    def poll(body, sleep=0):
        a, b = L("pl"), L("pld")
        E("s_mov_b32 s7, 0"); E.label(a)
        body()
        E(f"s_cbranch_vccz {b}")
        if sleep: E(f"s_sleep {sleep}")
        E("s_add_u32 s7, s7, 1"); E(f"s_cmp_lt_u32 s7, {plim}"); E(f"s_cbranch_scc1 {a}")
        E.label(b)
    def ppoll(nsets, nload, loads, check, finish):
        a, d = L("pp"), L("ppd"); ok = [L("ppk") for _ in range(nsets)]
        E("s_mov_b32 s7, 0")
        for t in range(nsets): loads(t)
        E.label(a)
        for t in range(nsets):
            E(f"s_waitcnt vmcnt({(nsets-1)*nload})"); check(t); E(f"s_cbranch_vccz {ok[t]}"); loads(t)
        E("s_add_u32 s7, s7, 1"); E(f"s_cmp_lt_u32 s7, {plim}"); E(f"s_cbranch_scc1 {a}")
        E("s_waitcnt vmcnt(0)")
        for t in range(nsets):
            E.label(ok[t]); finish(t)
            if t + 1 < nsets: E(f"s_branch {d}")
        E.label(d)
    def intra_store(ins):
        a, b = L("is"), L("isd")
        E("s_cmp_eq_u32 s6, 3"); E(f"s_cbranch_scc1 {a}")
        for i in ins: E(i + (" sc1" if i.startswith("buffer_") else ""))
        E(f"s_branch {b}"); E.label(a)
        for i in ins: E(i)
        E.label(b)
    def X(m):
        return "s_mov_b64 exec, s[88:89]" if m == -1 else f"s_and_b64 exec, s[88:89], {m:#x}"
    def walk(target, ret):
        E("s_mov_b64 s[88:89], 0"); E("s_mov_b64 exec, 0"); E(f"s_branch {target}")
        E.label(ret)
        E("s_mov_b64 s[88:89], -1"); E("s_mov_b64 exec, -1")
    def live(ins):
        a = L("lv"); E(f"s_cbranch_execz {a}"); E(ins); E.label(a)
    def rnd(dst, src):
        E(f"v_cvt_pk_bf16_f32 v{dst}, v{src}, v{src}"); E(f"v_and_b32 v{dst}, 0xffff0000, v{dst}")
    def row_reduce(op, r, rors):
        for k in rors: E(f"{op}_dpp v{r}, v{r}, v{r} row_ror:{k} row_mask:0xf bank_mask:0xf")
    def swap_reduce(op, r, t, which):
        E(f"v_mov_b32 v{t}, v{r}"); E(f"v_permlane{which}_swap_b32 v{r}, v{t}"); E(f"{op} v{r}, v{r}, v{t}")
    def mktag():
        E("s_waitcnt lgkmcnt(0)")
        E("s_mul_i32 s35, s34, 0x9E3779B1"); E("s_add_u32 s35, s35, 0x7F4A7C15"); E("s_mov_b32 s90, 0xfffff000")
    def tagcheck(acc, regs):
        E(f"v_xor_b32 v{acc}, s35, v{regs[0]}")
        for r in regs[1:]: E(f"v_bitop3_b32 v{acc}, v{acc}, v{r}, s35 bitop3:0xf6")
        E(f"v_cmp_ne_u32 vcc, 0, v{acc}")
    def tagbyte(dst, idx):
        E(f"v_and_b32 v{dst}, 3, v{idx}"); E(f"v_mul_u32_u24 v{dst}, 7, v{dst}"); E(f"v_bfe_u32 v{dst}, s35, v{dst}, 12")
    def settag(r, tg): E(f"v_and_or_b32 v{r}, v{r}, s{SM}, v{tg}")
    def lowcheck(acc, regs, tg):
        for r in regs: E(f"v_xor_b32 v{r}, v{tg}, v{r}")
        ortree(acc, regs)
    def ortree(acc, regs):
        regs = list(regs)
        if len(regs) == 1: E(f"v_and_b32 v{acc}, 0xfff, v{regs[0]}")
        else:
            first = True
            while regs:
                if first:
                    t = regs[:3]; regs = regs[3:]; first = False
                    E(f"v_or3_b32 v{acc}, v{t[0]}, v{t[1]}, v{t[2]}") if len(t) == 3 else E(f"v_or_b32 v{acc}, v{t[0]}, v{t[1]}")
                else:
                    t = regs[:2]; regs = regs[2:]
                    E(f"v_or3_b32 v{acc}, v{acc}, v{t[0]}, v{t[1]}") if len(t) == 2 else E(f"v_or_b32 v{acc}, v{acc}, v{t[0]}")
            E(f"v_and_b32 v{acc}, 0xfff, v{acc}")
        E(f"v_cmp_ne_u32 vcc, 0, v{acc}")
    SM = 90
    BR = lambda k: 96 + 4 * k
    AT = lambda k: 24 + 4 * k
    def op_addrs():
        E("v_bfe_u32 v4, v0, 2, 2"); E("v_lshrrev_b32 v5, 4, v0"); E("v_lshl_add_u32 v4, v5, 3, v4"); E("v_lshlrev_b32 v4, 7, v4")
        E("v_and_b32 v6, 3, v0"); E("v_lshl_add_u32 v4, v6, 3, v4")
        E("v_bfe_u32 v7, v0, 3, 2"); E("v_xor_b32 v7, s3, v7"); E("v_lshl_add_u32 v2, v7, 5, v4")
        E("v_and_b32 v3, 1, v0"); E("v_mul_u32_u24 v3, 1152, v3"); E("v_lshl_add_u32 v3, v5, 4, v3")
    def stage_b(slot, nk, wait=True, k0=0, t=5):
        E(f"v_add_u32 v{t}, {slot}, v2"); E(f"v_add_u32 v{t+1}, {slot + 36864}, v2")
        for k in range(k0, nk):
            a = t if k < 9 else t + 1; o = (k % 9) * 4096
            E(f"ds_read_b64_tr_b16 v[{BR(k)}:{BR(k)+1}], v{a} offset:{o}"); E(f"ds_read_b64_tr_b16 v[{BR(k)+2}:{BR(k)+3}], v{a} offset:{o+512}")
        if wait: E("s_waitcnt lgkmcnt(0)")
    def gemv(areg, aoff, nk, d, fill=None, pre=0):
        fill = list(fill or [])
        per = -(-len(fill) // nk)
        for k in range(pre, min(nk, 15)): E(f"ds_read_b128 v[{AT(k)}:{AT(k)+3}], v{areg} offset:{aoff + k*64}")
        issued = min(nk, 15)
        for k in range(nk):
            E(f"s_waitcnt lgkmcnt({issued - 1 - k})")
            c = "0" if k == 0 else f"v[{d}:{d+3}]"
            E(f"v_mfma_f32_16x16x32_bf16 v[{d}:{d+3}], v[{AT(k)}:{AT(k)+3}], v[{BR(k)}:{BR(k)+3}], {c}")
            if issued < nk:
                E(f"ds_read_b128 v[{AT(issued)}:{AT(issued)+3}], v{areg} offset:{aoff + issued*64}"); issued += 1
            for _ in range(per):
                if fill: E(fill.pop(0))
    def own_map():
        E("v_and_b32 v8, 31, v0"); E("v_min_u32 v9, 7, v8"); E("s_mul_i32 s28, s3, 72")
        E("v_add_u32 v8, s28, v8"); E("s_add_u32 s28, s28, 64"); E("v_add_u32 v9, s28, v9")
        E("v_lshrrev_b32 v11, 5, v0"); E("v_mul_u32_u24 v11, 1152, v11"); E("v_lshl_add_u32 v10, v8, 2, v11"); E("v_lshl_add_u32 v11, v9, 2, v11")
    def modgather(o1, o2):
        E(f"s_mov_b32 s30, {MOD_OFF + o1*8}"); E(f"s_mov_b32 s31, {MOD_OFF + o2*8}")
        E("v_lshlrev_b32 v12, 4, v8"); E("v_lshlrev_b32 v13, 4, v9")
        def body():
            for h in range(2):
                E(f"buffer_load_dwordx4 v[{36+12*h}:{39+12*h}], v12, s[24:27], s{30+h} offen sc1")
                E(f"buffer_load_dwordx4 v[{40+12*h}:{43+12*h}], v12, s[24:27], s{30+h} offen offset:512 sc1")
                E(f"buffer_load_dwordx4 v[{44+12*h}:{47+12*h}], v13, s[24:27], s{30+h} offen sc1")
            E("s_waitcnt vmcnt(0)")
            tagcheck(14, list(range(37, 60, 2)))
        poll(body, sl_long)
        E("v_cmp_gt_u32 vcc, 32, v0"); E("v_mov_b32 v12, 0x03020c0c"); E("v_mov_b32 v13, 0x01000c0c"); E("v_cndmask_b32 v12, v12, v13, vcc")
        for e in range(12): E(f"v_perm_b32 v{24+e}, v{36+2*e}, v{36+2*e}, v12")
    def dma_addrs(a=3, b=4, t=2):
        E(f"v_lshrrev_b32 v{t}, 3, v0"); E(f"v_mul_lo_u32 v{t}, v{t}, s20")
        E(f"v_and_b32 v{a}, 7, v0"); E(f"v_bfe_u32 v{b}, v0, 4, 1"); E(f"v_lshlrev_b32 v{b}, 1, v{b}"); E(f"v_xor_b32 v{a}, v{a}, v{b}")
        E(f"v_xor_b32 v{b}, 4, v{a}"); E(f"v_lshl_add_u32 v{a}, v{a}, 4, v{t}"); E(f"v_lshl_add_u32 v{b}, v{b}, 4, v{t}")
        E("s_lshl_b32 s17, s20, 3")
    def dma_loop(lab, depth, a=3, b=4, ls=1024):
        E.label(lab)
        E("s_mov_b32 m0, s29"); E(f"s_add_u32 s29, s29, {ls}")
        E(f"buffer_load_dwordx4 v{a}, s[8:11], s16 offen {wf} lds"); E("s_add_u32 s16, s16, s17")
        if depth: E(f"s_waitcnt vmcnt({depth-1})")
        E("s_mov_b32 m0, s29"); E(f"s_add_u32 s29, s29, {ls}")
        E(f"buffer_load_dwordx4 v{b}, s[8:11], s16 offen {wf} lds"); E("s_add_u32 s16, s16, s17")
        if depth: E(f"s_waitcnt vmcnt({depth-1})")
        E("s_sub_u32 s19, s19, 1"); E("s_cmp_lg_u32 s19, 0"); E(f"s_cbranch_scc1 {lab}")

    E.label("L_code0")
    if probe == 16: E("s_memrealtime s[86:87]")
    E("s_load_dwordx16 s[36:51], s[0:1], 0")
    E("s_load_dwordx8 s[52:59], s[0:1], 64")
    E("s_load_dwordx4 s[60:63], s[0:1], 96")
    E("s_cmp_ge_u32 s2, 256"); E("s_cbranch_scc1 L_exit")
    if stamps:
        for k in range(16): E(f"s_mov_b32 s{70+k}, 0")
    E("v_lshrrev_b32 v1, 6, v0"); E("v_and_b32 v0, 63, v0"); E("v_readfirstlane_b32 s3, v1")
    E("s_and_b32 s4, s2, 7"); E("s_lshr_b32 s5, s2, 3")
    E("s_sub_u32 s22, s2, 72"); E("s_cmp_lt_u32 s22, 48"); E("s_cselect_b32 s21, 2, 0")
    E(f"s_cmp_ge_u32 s5, {JQ0}"); E("s_cselect_b32 s21, 3, s21")
    if 'j' in dbg: E("s_mov_b32 s21, 0")
    E("s_cmp_ge_u32 s3, 8"); E("s_cbranch_scc1 L_service")

    SL = lambda i: 40 + 4 * i
    E("v_and_b32 v3, 3, v0"); E("v_lshrrev_b32 v4, 4, v0"); E("v_lshl_add_u32 v3, v4, 2, v3")
    E("v_bfe_u32 v4, v0, 2, 2"); E("v_lshlrev_b32 v4, 8, v4"); E("v_lshl_add_u32 v2, v3, 4, v4")
    if 'l' in dbg: E("v_lshlrev_b32 v2, 4, v0")
    E("s_and_b32 s28, s5, 16"); E("s_lshl_b32 s29, s4, 1"); E("s_add_u32 s28, s28, s29")
    E("s_lshl_b32 s28, s28, 3"); E("s_and_b32 s29, s5, 15"); E("s_add_u32 s28, s28, s29")
    E("s_lshl_b32 s28, s28, 6"); E("s_add_u32 s28, s28, s3"); E("s_lshl_b32 s33, s28, 12")
    E("s_add_u32 s32, s5, s3")
    def soff(u):
        E(f"s_add_u32 s30, s32, {u}"); E("s_and_b32 s30, s30, 7"); E("s_lshl_b32 s30, s30, 15"); E(f"s_add_u32 s{64+u if not stamps else 94+u}, s33, s30")
    SO = lambda u: (64 + u if not stamps else 94 + u)
    soff(0)
    if K0 > 4: soff(1)
    E("s_mov_b32 s10, 0x4000000"); E("s_mov_b32 s11, 0x20000")
    E("s_waitcnt lgkmcnt(0)")
    E("s_mov_b32 s8, s38"); E("s_mov_b32 s9, s39")
    stamp(0)
    def kload(i): E(f"buffer_load_dwordx4 v[{SL(i)}:{SL(i)+3}], v2, s[8:11], s{SO(i//4)} offen offset:{(i%4)*1024} {kvf}")
    VS = lambda i: SL((i - NL) % 32)
    def vload(i):
        if i < NL: E(f"buffer_load_dwordx4 v1, s[12:15], s{SO(i//4)} offen offset:{(i%4)*1024} {kvf} lds")
        else: E(f"buffer_load_dwordx4 v[{VS(i)}:{VS(i)+3}], v1, s[12:15], s{SO(i//4)} offen offset:{(i%4)*1024} {kvf}")
    E.label("L_k0")
    for i in range(K0): kload(i)
    E("s_branch L_stream")

    E.label("L_service")
    E("v_mov_b32 v1, 0")
    E("s_sub_u32 s3, s3, 8")
    E("v_lshlrev_b32 v2, 2, v0"); E("s_mov_b64 exec, 0xffff"); E("ds_write_b32 v2, v1"); E("s_mov_b64 exec, -1")
    E("s_mov_b32 s18, 4")
    E("s_cmp_lg_u32 s21, 0"); E("s_cbranch_scc1 L_job")
    E("s_mov_b32 s20, 1152")
    dma_addrs()
    E("s_lshl_b32 s28, s4, 2"); E("s_add_u32 s28, s28, s3"); E(f"s_sub_u32 s30, s5, {JW2}")
    E("s_cmp_lt_u32 s5, 9")
    E("s_cselect_b32 s19, 8, 9"); E("s_cselect_b32 s30, s5, s30"); E(f"s_mov_b32 s29, {SLOT_B}"); E(f"s_cselect_b32 s29, {SLOT_A}, s29")
    E("s_mul_i32 s16, s19, 18432"); E("s_lshl_b32 s10, s16, 5"); E("s_mul_i32 s16, s16, s28"); E("s_lshl_b32 s30, s30, 7"); E("s_add_u32 s16, s16, s30")
    E("s_lshl_b32 s30, s19, 11"); E("s_mul_i32 s30, s30, s3"); E("s_add_u32 s29, s29, s30"); E("s_mov_b32 s11, 0x20000")
    E("s_waitcnt lgkmcnt(0)")
    E("s_cmp_lt_u32 s5, 9"); E("s_cselect_b32 s8, s44, s52"); E("s_cselect_b32 s9, s45, s53")
    stamp(0)
    if EB: E("s_barrier")
    if 'e' not in dbg: dma_loop("L_dma_early", DEA)
    E(f"s_load_dword s34, s[62:63], {EP_OFF}")
    srd(24, 62, WS_SIZE)
    if not EB: E("s_barrier")
    E("s_branch L_roles")
    E.label("L_job")
    E("s_cmp_eq_u32 s21, 3")
    E("s_cselect_b32 s20, 8192, 6912") if False else (E("s_mov_b32 s20, 6912"), E("s_cselect_b32 s20, 8192, s20"))
    dma_addrs()
    own_map()
    E("s_lshl_b32 s28, s4, 3"); E(f"s_sub_u32 s29, s5, {JQ0}"); E("s_add_u32 s28, s28, s29")
    E("s_cmp_eq_u32 s21, 3"); E("s_cselect_b32 s22, s28, s22")
    E("s_mul_i32 s10, s20, 576"); E("s_mov_b32 s11, 0x20000")
    E("s_mul_i32 s16, s20, 144"); E("s_mul_i32 s16, s16, s3"); E("s_lshl_b32 s28, s22, 7"); E("s_add_u32 s16, s16, s28")
    E("s_mul_i32 s29, s3, 18432"); E(f"s_add_u32 s29, s29, {SLOT_B}"); E("s_mov_b32 s19, 9")
    E("s_mov_b32 s14, 2304"); E("s_mov_b32 s15, 0x20000")
    E("s_waitcnt lgkmcnt(0)")
    if stamps:
        E("s_cmp_eq_u32 s18, 8"); E("s_cbranch_scc1 L_nost0"); stamp(0); E.label("L_nost0")
    E("s_cmp_eq_u32 s21, 3")
    E("s_cselect_b32 s8, s42, s56"); E("s_cselect_b32 s9, s43, s57"); E("s_cselect_b32 s12, s36, s54"); E("s_cselect_b32 s13, s37, s55")
    E("buffer_load_dword v16, v10, s[12:15], 0 offen"); E("buffer_load_dword v17, v10, s[12:15], 0 offen offset:128"); E("buffer_load_dword v18, v11, s[12:15], 0 offen")
    srd(24, 62, WS_SIZE)
    E("s_cmp_eq_u32 s18, 8"); E("s_cbranch_scc1 L_dma_jq")
    E(f"s_load_dword s34, s[62:63], {EP_OFF}")
    if QB: E(f"s_cmp_eq_u32 s5, 27"); E("s_cbranch_scc1 L_jq")
    dma_loop("L_dma_job", DJ)
    E("s_barrier")
    E("s_branch L_job2")
    if QB:
        E.label("L_jq")
        E("s_barrier")
        dma_loop("L_dma_j27", QB - 1)
        E("s_branch L_job2")
    dma_loop("L_dma_jq", DJQ)
    E.label("L_job2")
    stamp(9)
    op_addrs()
    E("s_waitcnt vmcnt(18)")
    for i in range(3):
        E(f"v_and_b32 v{71+2*i}, 0xffff0000, v{16+i}"); E(f"v_lshlrev_b32 v{70+2*i}, 16, v{16+i}")
    E("s_cmp_eq_u32 s21, 3"); E("s_cbranch_scc1 L_prep_q")
    E(f"s_mov_b32 s28, {LOG2E ^ 0x80000000}"); E("s_mov_b32 s29, 0xb2a57060"); E("s_mov_b32 s30, 0x3f317218")
    for e in range(6): E(f"v_mul_f32 v{24+e}, s28, v{70+e}")
    for e in range(6): E(f"v_fma_f32 v{30+e}, v{70+e}, s28, -v{24+e}")
    for e in range(6): E(f"v_fma_f32 v{30+e}, v{70+e}, s29, v{30+e}")
    for e in range(6): E(f"v_min_f32 v{24+e}, 0x42fc0000, v{24+e}")
    for e in range(6): E(f"v_exp_f32 v{24+e}, v{24+e}")
    for e in range(6): E(f"v_mul_f32 v{30+e}, s30, v{30+e}")
    for e in range(6): E(f"v_fma_f32 v{24+e}, v{24+e}, v{30+e}, v{24+e}")
    for e in range(6): E(f"v_add_f32 v{24+e}, 1.0, v{24+e}")
    for e in range(6): E(f"v_rcp_f32 v{30+e}, v{24+e}")
    for e in range(6): E(f"v_mul_f32 v{36+e}, v{70+e}, v{30+e}")
    for e in range(6): E(f"v_fma_f32 v{70+e}, -v{24+e}, v{36+e}, v{70+e}")
    for e in range(6): E(f"v_fma_f32 v{70+e}, v{70+e}, v{30+e}, v{36+e}")
    def write_a(buf):
        for i in range(3): E(f"v_cvt_pk_bf16_f32 v{16+i}, v{70+2*i}, v{71+2*i}")
        E(f"ds_write_b32 v10, v16 offset:{buf}"); E(f"ds_write_b32 v10, v17 offset:{buf+128}"); E(f"ds_write_b32 v11, v18 offset:{buf}")
    write_a(JBUF)
    E("s_waitcnt vmcnt(0)")
    soft_barrier(C_J1, 1, 16, n="s18")
    stamp(10)
    stage_b(SLOT_B, 18, wait=False)
    E("s_branch L_gemv")
    E.label("L_prep_q")
    E("v_lshrrev_b32 v12, 5, v0"); E("v_mul_u32_u24 v12, 1152, v12"); E("v_and_b32 v13, 31, v0"); E("v_lshl_add_u32 v12, v13, 2, v12")
    for i in range(9): E(f"buffer_load_dword v{60+i}, v12, s[12:15], 0 offen offset:{i*128}")
    E("s_waitcnt vmcnt(0)")
    for i in range(9):
        E(f"v_lshlrev_b32 v{24+2*i}, 16, v{60+i}"); E(f"v_and_b32 v{25+2*i}, 0xffff0000, v{60+i}")
    E("v_add_f32 v16, v24, v25")
    for r in range(26, 42): E(f"v_add_f32 v16, v16, v{r}")
    row_reduce("v_add_f32", 16, (1, 2, 4, 8)); swap_reduce("v_add_f32", 16, 17, 16)
    E("s_mov_b32 s28, 0x3ae38e39"); E("s_mov_b32 s29, 0x3727c5ac")
    E("v_mul_f32 v16, s28, v16")
    E("v_mov_b32 v18, 0")
    for r in range(24, 42): E(f"v_sub_f32 v17, v{r}, v16"); E("v_fmac_f32 v18, v17, v17")
    row_reduce("v_add_f32", 18, (1, 2, 4, 8)); swap_reduce("v_add_f32", 18, 17, 16)
    E("v_mul_f32 v18, s28, v18"); rnd(18, 18); E("v_add_f32 v18, s29, v18"); rnd(18, 18)
    E("v_sqrt_f32 v18, v18"); rnd(18, 18); E("v_rcp_f32 v19, v18"); rnd(16, 16)
    for r in range(70, 76):
        E(f"v_sub_f32 v{r}, v{r}, v16"); rnd(r, r)
        E(f"v_mul_f32 v17, v{r}, v19"); E(f"v_fma_f32 v{r}, -v18, v17, v{r}"); E(f"v_fma_f32 v{r}, v{r}, v19, v17"); rnd(r, r)
    E("s_waitcnt vmcnt(0)")
    soft_barrier(C_J1, 1, 16)
    stamp(10)
    stage_b(SLOT_B, 18)
    mktag()
    modgather(0, 576)
    stamp(11)
    for e in range(6):
        E(f"v_add_f32 v{30+e}, 1.0, v{30+e}"); rnd(30+e, 30+e); E(f"v_mul_f32 v{70+e}, v{70+e}, v{30+e}"); rnd(70+e, 70+e)
        E(f"v_add_f32 v{70+e}, v{70+e}, v{24+e}")
    write_a(JBUF)
    soft_barrier(C_J2, 1, 16)
    E.label("L_gemv")
    gemv(3, JBUF, 18, 8)
    mktag()
    E("s_lshl_b32 s28, s22, 2"); E("s_add_u32 s28, s28, s3"); E("s_lshl_b32 s28, s28, 7")
    E(f"s_mov_b32 s29, {MOD_OFF}"); E("s_cmp_eq_u32 s21, 3"); E(f"s_cselect_b32 s29, {Q_OFF}, s29"); E("s_add_u32 s28, s28, s29")
    E("v_lshlrev_b32 v2, 3, v0")
    E("v_cvt_pk_bf16_f32 v8, v8, v9"); E("v_mov_b32 v9, s35")
    E("s_mov_b64 exec, 0xffff")
    E("buffer_store_dwordx2 v[8:9], v2, s[24:27], s28 offen sc1")
    E("s_mov_b64 exec, -1")
    lds_inc(C_GO, 1, 16)
    stamp(12)
    E("s_cmp_eq_u32 s18, 8"); E("s_cbranch_scc1 L_svc_end")
    E.label("L_roles")
    for w in '0123':
        if w in dbg: E(f"s_cmp_eq_u32 s3, {w}"); E("s_cbranch_scc1 L_svc_end")
    if 'z' in dbg: E("s_branch L_tailprep")
    E("s_cmp_eq_u32 s3, 3"); E("s_cbranch_scc1 L_s3")
    E("s_cmp_eq_u32 s3, 0"); E("s_cbranch_scc1 L_s0")
    if cpf:
        E("s_cmp_lg_u32 s3, 1"); E("s_cbranch_scc1 L_tailprep")
        E("s_getpc_b64 s[8:9]"); E.label("L_pc")
        E("s_sub_u32 s8, s8, L_pc-L_code0"); E("s_subb_u32 s9, s9, 0"); E("s_mov_b32 s10, L_exit-L_code0"); E("s_mov_b32 s11, 0x20000")
        E("v_lshlrev_b32 v2, 4, v0"); E("s_lshl_b32 s16, s5, 10")
        if cpf == 2: lds_wait(C_KH, 1, 1, 8, sleep=8)
        E("buffer_load_dwordx4 v[8:11], v2, s[8:11], s16 offen"); E("s_waitcnt vmcnt(0)")
    E("s_branch L_tailprep")

    E.label("L_s0")
    mktag()
    E("v_lshlrev_b32 v2, 4, v0")
    if kh:
        if gateq: E("s_cmp_eq_u32 s21, 3"); E("s_cbranch_scc1 L_qgo")
        lds_wait(C_KH, 1, 1, 8, sleep=8)
        E.label("L_qgo")
    E("s_lshl_b32 s28, s4, 12"); E("s_bfe_u32 s29, s5, 0x10003"); E("s_lshl_b32 s29, s29, 11"); E("s_add_u32 s28, s28, s29"); E(f"s_add_u32 s28, s28, {Q_OFF}")
    def qbody():
        E("buffer_load_dwordx4 v[8:11], v2, s[24:27], s28 offen sc1"); E("buffer_load_dwordx4 v[12:15], v2, s[24:27], s28 offen offset:1024 sc1")
        E("s_waitcnt vmcnt(0)")
        tagcheck(16, [9, 11, 13, 15])
    poll(qbody, sl_q)
    E("s_mov_b32 s29, 0x05040100"); E("s_cmp_ge_u32 s5, 16"); E("s_cselect_b32 s29, 0x07060302, s29")
    E("v_perm_b32 v8, v10, v8, s29"); E("v_perm_b32 v9, v14, v12, s29"); E("v_lshlrev_b32 v3, 2, v0")
    E(f"ds_write_b32 v3, v8 offset:{QBUF}"); E(f"ds_write_b32 v3, v9 offset:{QBUF+256}")
    E("s_add_u32 s7, s7, 1"); lds_set(C_Q, 1, 10, "s7")
    if stamps is True: E("s_mov_b32 s71, s7")
    stamp(3)
    lds_wait(C_BAR, 1, 1, 8, sleep=4)
    E("s_mov_b32 s6, s28")
    lds_wait(C_CNT, 8, 1, 8, sleep=4)
    E("v_and_b32 v3, 15, v0"); E("v_lshlrev_b32 v4, 3, v3"); E(f"ds_read_b64 v[8:9], v4 offset:{MLB}")
    E(f"s_mov_b32 s31, {LOG2E}")
    E("s_waitcnt lgkmcnt(0)")
    E("v_mov_b32 v10, v8"); row_reduce("v_max_f32", 10, (2, 4, 8))
    E("v_sub_f32 v12, v8, v10"); E("v_mul_f32 v12, s31, v12"); E("v_exp_f32 v12, v12"); E("v_mul_f32 v11, v12, v9")
    row_reduce("v_add_f32", 11, (2, 4, 8))
    E("v_and_b32 v5, 1, v0"); E("v_lshlrev_b32 v5, 5, v5"); E("v_lshrrev_b32 v6, 1, v3"); E("v_lshl_add_u32 v5, v6, 2, v5")
    E(f"ds_write_b32 v5, v12 offset:{FAC}")
    E("s_lshl_b32 s28, s4, 5"); E("s_add_u32 s28, s28, s5"); E("s_lshl_b32 s28, s28, 5"); E(f"s_add_u32 s28, s28, {ML_OFF}")
    E("v_mov_b32 v12, s35"); E("v_mov_b32 v13, s35"); E("v_lshlrev_b32 v4, 4, v0")
    E("v_mov_b32 v6, s6"); E(f"ds_write_b32 v1, v6 offset:{C_FAC}")
    E("s_mov_b64 exec, 3")
    intra_store(["buffer_store_dwordx4 v[10:13], v4, s[24:27], s28 offen"])
    E("s_mov_b64 exec, -1")
    E("s_waitcnt lgkmcnt(0)")
    stamp(4)
    E("s_branch L_tailprep")

    E.label("L_s3")
    E("v_lshlrev_b32 v2, 4, v0")
    for k in range(4): E(f"v_mov_b32 v{4+k}, -1")
    E("s_cmp_ge_u32 s5, 9"); E("s_cbranch_scc1 L_noclr")
    E("s_mul_i32 s28, s4, 2304"); E("s_lshl_b32 s29, s5, 8"); E("s_add_u32 s28, s28, s29"); E(f"s_add_u32 s28, s28, {Z_OFF}")
    E("s_mul_i32 s29, s4, 640"); E("s_lshl_b32 s30, s5, 6"); E("s_add_u32 s29, s29, s30"); E(f"s_add_u32 s29, s29, {ST_OFF}")
    E("s_mov_b64 exec, 0xffff"); E("buffer_store_dwordx4 v[4:7], v2, s[24:27], s28 offen sc1")
    E("s_mov_b64 exec, 15"); E("buffer_store_dwordx4 v[4:7], v2, s[24:27], s29 offen sc1"); E("s_mov_b64 exec, -1")
    E.label("L_noclr")
    E("s_getreg_b32 s29, hwreg(HW_REG_XCC_ID)"); E("s_and_b32 s29, s29, 15")
    mktag()
    E("v_mov_b32 v8, s29"); E("v_mov_b32 v9, s35")
    E("s_lshl_b32 s28, s4, 5"); E("s_add_u32 s28, s28, s5"); E("s_lshl_b32 s28, s28, 3"); E(f"s_add_u32 s28, s28, {FL_OFF}")
    E("s_waitcnt vmcnt(0)")
    stamp(1)
    E("s_mov_b64 exec, 1"); E("buffer_store_dwordx2 v[8:9], v1, s[24:27], s28 offen sc1"); E("s_mov_b64 exec, -1")
    if 'q' in dbg: E("s_branch L_svc_end")
    lds_wait(C_Q if NL else C_CNT, 1 if NL else 8, 1, 8, sleep=8)
    E(f"s_mov_b32 s30, {FL_OFF}")
    def barbody():
        E("buffer_load_dwordx4 v[8:11], v2, s[24:27], s30 offen sc1"); E("buffer_load_dwordx4 v[12:15], v2, s[24:27], s30 offen offset:1024 sc1")
        E("s_waitcnt vmcnt(0)")
        tagcheck(16, [9, 11, 13, 15])
    poll(barbody, sl_bar)
    E("s_cmp_ge_u32 s4, 4"); E("s_cselect_b64 vcc, -1, 0")
    E("v_cndmask_b32 v8, v8, v12, vcc"); E("v_cndmask_b32 v10, v10, v14, vcc")
    E("v_xor_b32 v8, s29, v8"); E("v_bitop3_b32 v8, v8, v10, s29 bitop3:0xf6"); E("v_cmp_ne_u32 vcc, 0, v8")
    E("s_and_b32 s30, s4, 3"); E("s_lshl_b32 s30, s30, 4"); E("s_lshr_b64 s[30:31], vcc, s30"); E("s_and_b32 s30, s30, 0xffff")
    E(f"s_cselect_b32 s6, 1, {1 if force_slow else 3}")
    E("v_mov_b32 v8, s6"); E(f"ds_write_b32 v1, v8 offset:{C_BAR}")
    stamp(2)
    E("s_branch L_tailprep")

    E.label("L_stream")
    xd = XD if any(XW) else 0
    if xd:
        E(f"s_mov_b32 s23, {XW[0]}")
        for lo, n in zip((9, 15, 24), XW[1:4]):
            E(f"s_cmp_ge_u32 s5, {lo}"); E(f"s_cselect_b32 s23, {n}, s23")
        E("s_cmp_eq_u32 s5, 27"); E(f"s_cselect_b32 s23, {XW[4]}, s23")
        if len(XW) > 5:
            E("s_cmp_ge_u32 s5, 18"); E("s_cselect_b32 s28, 18, 9"); E("s_sub_u32 s28, s5, s28"); E("s_cmp_lt_u32 s28, 9"); E("s_cselect_b32 s29, 0, 8")
            E("s_add_u32 s28, s28, s4"); E("s_and_b32 s28, s28, 7"); E("s_add_u32 s28, s28, s29")
            E("s_cmp_eq_u32 s28, 3"); E(f"s_cselect_b32 s23, {XW[5]}, s23")
    def setscc(): pass
    tp = [0]; XWV = [0]
    def throttle(d):
        thr = [0, 4, 2, 6, 1, 5, 3, 7][(tp[0] // XG) % 8]; tp[0] += 1
        if xd and thr < max(XW) + XWV[0]:
            if thr < min(XW): E(f"s_waitcnt vmcnt({d-1+xd})")
            else:
                a = L("th"); E(f"s_cmp_gt_u32 s23, {thr}"); E(f"s_waitcnt vmcnt({d-1+xd})"); E(f"s_cbranch_scc1 {a}"); E(f"s_waitcnt vmcnt({d-1})"); E.label(a)
        else: E(f"s_waitcnt vmcnt({d-1})")
    for u in range(2 if K0 > 4 else 1, 8): soff(u)
    srd(12, 40, 0x4000000); srd(24, 62, WS_SIZE)
    E(f"s_load_dword s34, s[62:63], {EP_OFF}")
    E("v_lshlrev_b32 v1, 4, v0")
    E("v_bfe_u32 v4, v0, 3, 1"); E("v_lshlrev_b32 v4, 8, v4"); E("v_lshl_add_u32 v36, v3, 4, v4")
    if warm:
        E("s_cmp_lg_u32 s3, 7"); E("s_cbranch_scc1 L_nowarm")
        E("s_mov_b64 exec, 1")
        if 'v' in warm: E(f"buffer_load_dword v5, v1, s[12:15], s{SO(0)} offen nt")
        if 's' in warm: E(f"s_mov_b32 s28, {EP_OFF}"); E("buffer_load_dword v5, v1, s[24:27], s28 offen nt")
        if 'w' in warm:
            E("s_cmp_ge_u32 s5, 18"); E("s_cselect_b32 s16, s50, s48"); E("s_cselect_b32 s17, s51, s49"); E(f"s_mov_b32 s18, {576*9216}"); E("s_mov_b32 s19, 0x20000")
            E("s_mov_b64 exec, 15"); E(f"v_mul_u32_u24 v6, {191*9216}, v0"); E("s_lshl_b32 s28, s2, 5")
            E("buffer_load_dword v5, v6, s[16:19], s28 offen nt")
        E("s_mov_b64 exec, -1")
        E.label("L_nowarm")
    stamp(8)
    E("s_barrier")
    stamp(9)
    for i in range(K0, D): kload(i)
    if gateq:
        E("s_cmp_lg_u32 s21, 3"); E("s_cbranch_scc1 L_kgo")
        E("v_mov_b32 v3, 0")
        lds_wait(C_GO, 4, 3, 4, sleep=4)
        E.label("L_kgo")
    setscc()
    for i in range(max(D, K0), 32):
        throttle(D); kload(i)
        if i in (4, 8): stamp(10 + (i == 8))
        if kh and i == kh: E("v_mov_b32 v3, 0"); E("v_mov_b32 v4, 1"); E(f"ds_write_b32 v3, v4 offset:{C_KH}")
    stamp(1)
    if NL:
        E(f"s_mov_b32 s22, {SLOT_A}"); E("s_cmp_lt_u32 s5, 9"); E(f"s_cselect_b32 s22, {SLOT_B}, s22"); E(f"s_mul_i32 s28, s3, {NL*1024}"); E("s_add_u32 s22, s22, s28")
        for i in range(NL):
            if i % 4 == 0: E(f"s_add_u32 m0, s22, {i*1024}")
            throttle(D); vload(i)
            if kh == 32 + i: E("v_mov_b32 v3, 0"); E("v_mov_b32 v4, 1"); E(f"ds_write_b32 v3, v4 offset:{C_KH}")
    stamp(12)
    E("v_mov_b32 v2, 0")
    if 'q' not in dbg: lds_wait(C_Q, 1, 2, 3)
    if XL:
        E("s_cmp_eq_u32 s28, 1"); E(f"s_cselect_b32 s28, {XL}, 0"); E("s_add_u32 s23, s23, s28")
        XWV[0] = XL
    E(f"ds_read_b128 v[20:23], v36 offset:{QBUF}")
    E(f"s_mov_b32 s30, {SCALE}"); E(f"s_mov_b32 s31, {LOG2E}")
    E("v_mov_b32 v36, 0xff800000")
    mktag()
    stamp(2)
    setscc()
    st = dict(issued=NL)
    def qk_mfma(u):
        n = (28 - 4*u) + st['issued']
        if n < D + xd + st['issued'] and n < 63: E(f"s_waitcnt vmcnt({n})")
        for i in range(4*u, 4*u+4):
            E(f"v_mfma_f32_16x16x32_bf16 v[{SL(i)}:{SL(i)+3}], v[{SL(i)}:{SL(i)+3}], v[20:23], 0")
    def qk_post(u):
        if 'c' in dbg: return
        T = [24, 25, 26, 27]
        for k in range(4):
            for a in range(4):
                r = SL(4*u + a) + k
                if k == 0: E(f"v_mov_b32_dpp v{T[a]}, v{r} quad_perm:[0,0,0,0] row_mask:0xf bank_mask:0xf")
                else: E(f"v_add_f32_dpp v{T[a]}, v{r}, v{T[a]} quad_perm:[{k},{k},{k},{k}] row_mask:0xf bank_mask:0xf")
        E("v_cvt_pk_bf16_f32 v28, v24, v25"); E("v_cvt_pk_bf16_f32 v29, v26, v27")
        E("v_lshlrev_b32 v24, 16, v28"); E("v_and_b32 v25, 0xffff0000, v28")
        E("v_lshlrev_b32 v26, 16, v29"); E("v_and_b32 v27, 0xffff0000, v29")
        for a in range(4): E(f"v_mul_f32 v{T[a]}, s30, v{T[a]}")
        E(f"v_cvt_pk_bf16_f32 v{4+2*u}, v24, v25"); E(f"v_cvt_pk_bf16_f32 v{5+2*u}, v26, v27")
        E("v_max3_f32 v36, v24, v25, v36"); E("v_max3_f32 v36, v26, v27, v36")
    def vissue(d=None):
        i = st['issued']
        d = DV if d is None else d
        throttle(d); vload(i); st['issued'] += 1
        if i == v2: E("s_mov_b64 exec, 2"); E(f"ds_write_b32 v1, v1 offset:{C_V2-16}"); E("s_mov_b64 exec, -1")
        if i == kv:
            E("s_mov_b64 exec, 2"); E(f"ds_write_b32 v1, v1 offset:{C_VH-16}"); E("s_mov_b64 exec, -1")
    def expo(k):
        if 'c' in dbg: return
        E(f"v_lshlrev_b32 v24, 16, v{4+k}"); E(f"v_and_b32 v25, 0xffff0000, v{4+k}")
        E("v_fma_f32 v24, v24, s31, -v37"); E("v_fma_f32 v25, v25, s31, -v37")
        E("v_exp_f32 v24, v24"); E("v_exp_f32 v25, v25")
        E("v_add_f32 v38, v38, v24"); E("v_add_f32 v39, v39, v25")
        E(f"v_cvt_pk_bf16_f32 v{4+k}, v24, v25")
    qk_mfma(0); qk_mfma(1); qk_post(0)
    if qs == 0:
        for _ in range(4): vissue(DQ)
        qk_mfma(2); qk_post(1)
        for _ in range(1 if DQ <= 4 else 4): vissue(DQ)
        for u in range(3, 8):
            qk_mfma(u); qk_post(u-1)
            if DQ > 4 or u % 2 == 0: vissue(DQ)
    else:
        vissue(DQ); vissue(DQ)
        for u in range(2, 8):
            qk_mfma(u); qk_post(u-1)
            if u % 2 == 1: vissue(DQ)
    qk_post(7)
    if NL:
        E(f"s_waitcnt vmcnt({st['issued'] - NL})"); E("v_add_u32 v3, s22, v1")
        for i in range(NL): E(f"ds_read_b128 v[{VS(i)}:{VS(i)+3}], v3 offset:{i*1024}")
    swap_reduce("v_max_f32", 36, 24, 16); swap_reduce("v_max_f32", 36, 24, 32)
    rnd(36, 36)
    E("v_mul_f32 v37, s31, v36"); E("v_mov_b32 v38, 0"); E("v_mov_b32 v39, 0")
    for k in range(16):
        if k % (4 if qs == 0 else 6) == (0 if qs == 0 else 2): vissue(DQ)
        expo(k)
    E("v_add_f32 v37, v38, v39")
    swap_reduce("v_add_f32", 37, 24, 16); swap_reduce("v_add_f32", 37, 24, 32)
    E("s_lshl_b32 s28, s3, 4"); E("v_add_u32 v3, s28, v0"); E("v_mov_b32 v24, 1")
    E("s_mov_b64 exec, 0x101"); E(f"ds_write_b64 v3, v[36:37] offset:{MLB}")
    E("s_mov_b64 exec, 1"); E(f"ds_add_u32 v2, v24 offset:{C_CNT}")
    E("s_mov_b64 exec, -1")
    stamp(3)
    E("v_and_b32 v3, 1, v0"); E("v_cmp_eq_u32 vcc, 1, v3")
    E("v_mov_b32 v32, 0x0c0c0100"); E("v_mov_b32 v33, 0x01000c0c"); E("v_cndmask_b32 v32, v32, v33, vcc")
    E("v_mov_b32 v34, 0x0c0c0302"); E("v_mov_b32 v33, 0x03020c0c"); E("v_cndmask_b32 v33, v34, v33, vcc")
    E("v_bfe_u32 v3, v0, 1, 2"); E("v_mov_b32 v34, 0x0c0c0c0c")
    for r in range(4):
        E(f"v_cmp_eq_u32 vcc, {r}, v3"); E(f"v_cndmask_b32 v{24+r}, v34, v32, vcc"); E(f"v_cndmask_b32 v{28+r}, v34, v33, vcc")
    E("v_and_b32 v3, 15, v0"); E("v_lshlrev_b32 v3, 5, v3"); E("v_bfe_u32 v2, v0, 4, 1"); E("v_lshl_add_u32 v3, v2, 4, v3")
    E("v_lshrrev_b32 v2, 5, v0"); E("v_lshl_add_u32 v3, v2, 9, v3"); E("s_lshl_b32 s28, s3, 10"); E("v_add_u32 v3, s28, v3")
    setscc()
    if NL: E("s_waitcnt lgkmcnt(0)")
    pv = dict(done=0)
    def pv_prep(i):
        A0 = 32 + 4 * (i & 1)
        for r in range(4): E(f"v_perm_b32 v{A0+r}, v{4+i//2}, v{4+i//2}, v{24+4*(i&1)+r}")
    def pv_mfma(i):
        A0 = 32 + 4 * (i & 1)
        c = "0" if i == 0 else "v[20:23]"
        E(f"v_mfma_f32_16x16x32_bf16 v[20:23], v[{A0}:{A0+3}], v[{VS(i)}:{VS(i)+3}], {c}")
    while st['issued'] < 32:
        vissue(DV + (DE if st['issued'] >= 32 - NE else 0))
        n = 0
        while pv['done'] <= st['issued'] - 1 - DV - xd - (DE if st['issued'] > 32 - NE else 0) and n < 4:
            pv_prep(pv['done']); pv_mfma(pv['done']); pv['done'] += 1; n += 1
    E("v_mov_b32 v2, 0")
    lds_wait(C_FAC, 1, 2, 4, sleep=1)
    E("s_mov_b32 s6, s28"); E("s_lshl_b32 s28, s3, 2")
    E("v_and_b32 v4, 32, v0"); E("v_add_u32 v4, s28, v4"); E(f"ds_read_b32 v5, v4 offset:{FAC}")
    tagbyte(6, 0)
    E("v_mov_b32 v4, 1")
    E("s_lshl_b32 s29, s4, 5"); E("s_add_u32 s29, s29, s5"); E("s_lshl_b32 s29, s29, 10")
    assert pv['done'] >= 6
    while pv['done'] < 32:
        i = pv['done']
        pv_prep(i)
        if 31 - i < DV + xd + DE: E(f"s_waitcnt vmcnt({31-i})")
        pv_mfma(i); pv['done'] += 1
    E("s_waitcnt lgkmcnt(0)")
    for k in range(4): E(f"v_mul_f32 v{20+k}, v5, v{20+k}")
    E(f"ds_write_b128 v3, v[20:23] offset:{OBUF}")
    E("s_mov_b64 exec, 1"); E(f"ds_add_rtn_u32 v4, v2, v4 offset:{C_OC}"); E("s_mov_b64 exec, -1")
    for w in range(8): E(f"ds_read_b128 v[{40+4*w}:{43+4*w}], v1 offset:{OBUF + w*1024}")
    if stamps is True: stamp(4)
    E("s_waitcnt lgkmcnt(8)")
    E("v_readfirstlane_b32 s28, v4"); E("s_cmp_lg_u32 s28, 7"); E("s_cbranch_scc1 L_noreduce")
    E.label("L_reduce")
    PK = lambda d, x, y: (E(f"v_pk_add_f32 v[{d}:{d+1}], v[{x}:{x+1}], v[{y}:{y+1}]"), E(f"v_pk_add_f32 v[{d+2}:{d+3}], v[{x+2}:{x+3}], v[{y+2}:{y+3}]"))
    E("s_waitcnt lgkmcnt(6)"); PK(40, 40, 44)
    E("s_waitcnt lgkmcnt(4)"); PK(48, 48, 52); PK(40, 40, 48)
    E("s_waitcnt lgkmcnt(2)"); PK(56, 56, 60); PK(40, 40, 56)
    E("s_waitcnt lgkmcnt(0)"); PK(64, 64, 68); PK(40, 40, 64)
    settag(40, 6)
    intra_store(["buffer_store_dwordx4 v[40:43], v1, s[24:27], s29 offen"])
    if oack: live("s_waitcnt vmcnt(0)")
    lds_set(C_OC, 2, 4, 9)
    stamp(5)
    E.label("L_noreduce")
    if 't' in dbg: E("s_branch L_sdone")
    E(f"s_sub_u32 s28, s5, {JW2}"); E("s_cmp_ge_u32 s28, 9"); E("s_cbranch_scc1 L_sdone")
    E("s_cmp_ge_u32 s3, 5"); E("s_cbranch_scc1 L_sdone")
    E("s_lshl_b32 s28, s3, 6"); E("v_add_u32 v2, s28, v0"); E("v_min_u32 v2, 287, v2")
    tagbyte(22, 2)
    E("v_lshlrev_b32 v1, 4, v2")
    E("v_lshlrev_b32 v2, 2, v2")
    E("s_mul_i32 s18, s4, 9216"); E(f"s_add_u32 s18, s18, {G_OFF}"); E("s_add_u32 s19, s18, 4608")
    E(f"v_mov_b32 v8, {LOG2E ^ 0x80000000}"); E("v_mov_b32 v9, v8"); E("v_mov_b32 v10, 1.0"); E("v_mov_b32 v11, 1.0")
    E("v_mov_b32 v3, 0")
    Rh = lambda t: 40 + 8 * t
    def gloads(t):
        E(f"buffer_load_dwordx4 v[{Rh(t)}:{Rh(t)+3}], v1, s[24:27], s18 offen sc1"); E(f"buffer_load_dwordx4 v[{Rh(t)+4}:{Rh(t)+7}], v1, s[24:27], s19 offen sc1")
    E("s_cbranch_execz L_hgo")
    lds_wait(C_D2, 4, 3, 4, sleep=2)
    if hg:
        gloads(0)
        lds_wait(C_G, 1, 3, 4, sleep=1)
        E("s_waitcnt vmcnt(0)")
    E.label("L_hgo")
    stamp(6)
    def gfin(t):
        g, u = Rh(t), Rh(t) + 4
        E(f"v_pk_mul_f32 v[4:5], v[{g}:{g+1}], v[8:9]"); E(f"v_pk_mul_f32 v[6:7], v[{g+2}:{g+3}], v[8:9]")
        E(f"v_pk_mul_f32 v[16:17], v[{u}:{u+1}], v[{g}:{g+1}]"); E(f"v_pk_mul_f32 v[18:19], v[{u+2}:{u+3}], v[{g+2}:{g+3}]")
    ppoll(PG, 2, gloads, lambda t: lowcheck(20, [Rh(t), Rh(t)+2, Rh(t)+4, Rh(t)+6], 22), gfin)
    for e in range(4): E(f"v_exp_f32 v{4+e}, v{4+e}")
    E("v_pk_add_f32 v[4:5], v[4:5], v[10:11]"); E("v_pk_add_f32 v[6:7], v[6:7], v[10:11]")
    for e in range(4): E(f"v_rcp_f32 v{4+e}, v{4+e}")
    E("v_pk_mul_f32 v[16:17], v[16:17], v[4:5]"); E("v_pk_mul_f32 v[18:19], v[18:19], v[6:7]")
    E("v_cvt_pk_bf16_f32 v12, v16, v18"); E("v_cvt_pk_bf16_f32 v13, v17, v19")
    E(f"ds_write_b32 v2, v12 offset:{ACT0}"); E(f"ds_write_b32 v2, v13 offset:{ACT1}")
    E("s_waitcnt lgkmcnt(0)")
    E("s_cbranch_execz L_ret_s")
    E("s_barrier")
    stamp(7)
    E.label("L_sdone")
    E("s_cbranch_execz L_ret_s")
    stamp_flush(); E("s_endpgm")

    E.label("L_tailprep")
    E("s_mov_b64 s[88:89], -1")
    if reh:
        E("s_cmp_lg_u32 s3, 2"); E("s_cbranch_scc1 L_tp2")
        E("s_mov_b32 s6, 3"); E("s_mov_b32 s29, 0"); E("v_mov_b32 v2, 0")
        walk("L_reduce", "L_ret_s")
        E.label("L_tp2")
    else:
        E.label("L_ret_s")
    E("s_cmp_lt_u32 s5, 27"); E("s_cbranch_scc1 L_tail1")
    E("s_sub_u32 s28, s2, 224"); E("s_cmp_ge_u32 s28, 6"); E("s_cbranch_scc1 L_svc_end")
    lds_wait(C_GO, 4, 1, 8, sleep=4)
    if ko: lds_wait(C_OC, ko, 1, 8, sleep=2)
    else: lds_wait(C_VH, 1, 1, 8, sleep=4)
    E("s_mov_b32 s21, 2"); E("s_add_u32 s22, s4, 48"); E("s_mov_b32 s18, 8"); E("s_branch L_job")
    E.label("L_tail1")
    E("s_cmp_lt_u32 s5, 9"); E("s_cbranch_scc1 L_owner")

    def wsetup():
        op_addrs()
        E("s_mul_i32 s28, s3, 2304"); E(f"s_add_u32 s28, s28, {ZBUF}")
        E("v_mov_b32 v8, s28"); E(f"v_mov_b32 v9, {CBUF}"); E(f"v_mov_b32 v10, {SBUF}")
        E("v_cmp_eq_u32 vcc, 1, v6"); E("v_cndmask_b32 v4, v8, v9, vcc"); E("v_cmp_eq_u32 vcc, 2, v6"); E("v_cndmask_b32 v4, v4, v10, vcc")
        E("v_bfe_u32 v7, v0, 2, 1"); E("v_mul_u32_u24 v7, 1152, v7"); E("v_lshl_add_u32 v7, v5, 4, v7"); E("v_add_u32 v4, v4, v7")
        E("v_and_b32 v3, 1, v0"); E("v_xor_b32 v3, 1, v3"); E(f"v_mul_u32_u24 v3, {ACT0-ACT1}, v3"); E("v_lshl_add_u32 v3, v5, 4, v3")
        E("s_sub_u32 s30, s5, 9"); E("s_lshl_b32 s30, s30, 2"); E("s_add_u32 s30, s30, s3")
        E("s_lshl_b32 @S0@, s30, 7"); E("s_mul_i32 s29, s4, 9216"); E("s_add_u32 @S0@, @S0@, s29"); E(f"s_add_u32 @S0@, @S0@, {G_OFF}")
        E("s_mul_i32 @S1@, s4, 2304"); E(f"s_add_u32 @S1@, @S1@, {Z_OFF}")
        E("s_mul_i32 @S3@, s4, 640"); E(f"s_add_u32 @S3@, @S3@, {ST_OFF}")
        E(f"s_sub_u32 s30, s5, {JW2}"); E("s_lshl_b32 s30, s30, 2"); E("s_add_u32 s30, s30, s3"); E("s_lshl_b32 s30, s30, 7")
        E("s_lshl_b32 @S2@, s4, 14"); E("s_add_u32 @S2@, @S2@, s30"); E(f"s_add_u32 @S2@, @S2@, {Y_OFF}"); E("s_add_u32 @S6@, @S2@, 8192")
        E("v_lshlrev_b32 v12, 4, v0"); E("v_min_u32 v13, 15, v0"); E("v_lshlrev_b32 v13, 4, v13")
        E("v_add_u32 v14, s28, v12"); E("v_add_u32 v15, s28, v13")
        E("v_and_b32 v8, 15, v0"); E("v_lshrrev_b32 v9, 5, v0"); E("v_lshl_add_u32 v9, v9, 4, v8"); E("v_cmp_gt_u32 s[32:33], 18, v9")
        E("v_min_u32 v9, 17, v9"); E("v_bfe_u32 v10, v0, 4, 1"); E("v_mul_u32_u24 v11, 288, v10"); E("v_lshl_add_u32 v16, v9, 4, v11")
        E("v_lshlrev_b32 v7, 3, v0")
        E("s_mov_b32 @S4@, 0x3ae38e39"); E("s_mov_b32 @S5@, 0x3727c5ac")
    if reh:
        E("s_cmp_lg_u32 s3, 1"); E("s_cbranch_scc1 L_now_w")
        wsetup()
        E("s_mov_b32 s6, 3")
        walk("L_wt", "L_ret_w")
        E.label("L_now_w")
    else: E.label("L_ret_w")
    if 't' not in dbg:
        lds_wait(C_Q, 1, 1, 8, sleep=8)
        mktag()
        own_map()
        modgather(1728, 2304)
        for i in range(3):
            E(f"v_add_f32 v{30+2*i}, 1.0, v{30+2*i}"); E(f"v_add_f32 v{31+2*i}, 1.0, v{31+2*i}")
            E(f"v_cvt_pk_bf16_f32 v12, v{30+2*i}, v{31+2*i}"); E(f"v_cvt_pk_bf16_f32 v13, v{24+2*i}, v{25+2*i}")
            a_, o_ = ((10, 0), (10, 128), (11, 0))[i]
            E(f"ds_write_b32 v{a_}, v12 offset:{CBUF+o_}"); E(f"ds_write_b32 v{a_}, v13 offset:{SBUF+o_}")
    lds_wait(C_BAR, 1, 1, 8, sleep=4)
    E("s_mov_b32 s6, s28")
    wsetup()
    E("s_mov_b32 s20, 9216")
    dma_addrs(24, 25, 26)
    E("s_cmp_ge_u32 s5, 18"); E("s_cselect_b32 s8, s50, s48"); E("s_cselect_b32 s9, s51, s49"); E("s_cselect_b32 s28, 18, 9"); E("s_sub_u32 s28, s5, s28")
    E(f"s_mov_b32 s10, {576*9216}"); E("s_mov_b32 s11, 0x20000")
    E("s_mul_i32 s16, s4, 1152"); E("s_lshl_b32 s28, s28, 7"); E("s_add_u32 s16, s16, s28")
    E(f"s_mul_i32 s28, s3, {8*9216}"); E("s_add_u32 s16, s16, s28"); E(f"s_mov_b32 s17, {32*9216}")
    E("s_lshl_b32 s29, s3, 10"); E(f"s_add_u32 s29, s29, {SLOT_A}"); E("s_mov_b32 s19, 9")
    E("s_bitcmp1_b32 s3, 0"); E("s_cselect_b64 vcc, -1, 0"); E("v_cndmask_b32 v24, v24, v25, vcc")
    E("v_lshrrev_b32 v5, 1, v0"); tagbyte(5, 5)

    if tlb:
        E(f"v_mul_u32_u24 v26, {143*9216}, v0"); E("s_mov_b64 exec, 3"); E("buffer_load_dword v27, v26, s[8:11], s16 offen nt"); E("s_mov_b64 exec, -1")
    if NP or NP3:
        E("s_bfe_u32 s30, s16, 0x30007"); E("s_cmp_eq_u32 s30, 3"); E(f"s_cselect_b32 s19, {NP3}, {NP}"); E("s_sub_u32 s31, 9, s19")
        E("s_cmp_eq_u32 s19, 0"); E("s_cbranch_scc1 L_nol1")
        if NL: lds_wait(C_CNT, 8, 1, 8, sleep=4)
        else: lds_wait(C_VH, 1, 1, 8, sleep=4)
        dma_loop("L_dma_l1", DW1, 24, 24, 4096)
        E.label("L_nol1")
        E("s_mov_b32 s19, s31")
    if k1:
        lds_wait(C_OC, k1, 1, 8, sleep=1)
        E(f"s_sub_u32 s31, s19, {N1}"); E(f"s_mov_b32 s19, {N1}"); dma_loop("L_dma_l2", 0, 24, 24, 4096); E("s_mov_b32 s19, s31")
    lds_wait(C_OC, ko, 1, 8, sleep=1)
    stamp(5)
    if 'w' not in dbg: dma_loop("L_dma_late", DW, 24, 24, 4096)
    if 't' in dbg:
        E("s_waitcnt vmcnt(0)"); stamp(6); E("s_branch L_svc_end")
    def zloads():
        E("buffer_load_dwordx4 v[84:87], v12, s[24:27], @S1@ offen sc1"); E("buffer_load_dwordx4 v[88:91], v12, s[24:27], @S1@ offen offset:1024 sc1")
        E("buffer_load_dwordx4 v[92:95], v13, s[24:27], @S1@ offen offset:2048 sc1"); E("buffer_load_dwordx4 v[20:23], v16, s[24:27], @S3@ offen sc1")
    if KA:
        E(f"s_waitcnt vmcnt({18-KA})")
        soft_barrier(C_D1, 1, 8, sleep=0)
    E.label("L_wt")
    if KA: stage_b(SLOT_A, KA, wait=False, t=9)
    E(f"s_waitcnt vmcnt({ZL})")
    zloads()
    E("s_cbranch_execz L_wt2")
    E("s_waitcnt vmcnt(4)")
    soft_barrier(C_D2, 1, 8, sleep=0)
    stamp(6)
    E.label("L_wt2")
    stage_b(SLOT_A, 18, wait=False, k0=KA, t=9)
    stamp(7)
    E("s_mov_b32 s7, 0"); E("s_branch L_zchk")
    E.label("L_zpl")
    zloads()
    E.label("L_zchk")
    E("s_waitcnt vmcnt(1)")
    E("ds_write_b128 v14, v[84:87]"); E("ds_write_b128 v14, v[88:91] offset:1024"); E("ds_write_b128 v15, v[92:95] offset:2048")
    NSP = 8
    for k in range(NSP): E(f"ds_read_b128 v[{AT(k)}:{AT(k)+3}], v4 offset:{k*64}")
    E("v_max3_u32 v8, v84, v85, v86"); E("v_max3_u32 v9, v87, v88, v89"); E("v_max3_u32 v10, v90, v91, v92"); E("v_max3_u32 v11, v93, v94, v95")
    E("v_max3_u32 v8, v8, v10, v11")
    E("s_waitcnt vmcnt(0)")
    E("v_max3_u32 v9, v9, v20, v21"); E("v_max3_u32 v8, v8, v22, v23"); E("v_max_u32 v8, v8, v9"); E("v_cmp_eq_u32 vcc, -1, v8")
    E("s_cbranch_vccz L_zok")
    E("s_add_u32 s7, s7, 1"); E(f"s_cmp_lt_u32 s7, {plim}"); E("s_cbranch_scc1 L_zpl")
    E.label("L_zok")
    stamp(8)
    F = ["v_add_f32 v18, v20, v22", "v_add_f32 v19, v21, v23", "v_cndmask_b32 v18, 0, v18, s[32:33]", "v_cndmask_b32 v19, 0, v19, s[32:33]"]
    for k in (1, 2, 4, 8):
        F += [f"v_add_f32_dpp v{r}, v{r}, v{r} row_ror:{k} row_mask:0xf bank_mask:0xf" for r in (18, 19)]
    F += ["v_mov_b32 v20, v18", "v_mov_b32 v21, v19", "v_permlane32_swap_b32 v18, v20", "v_permlane32_swap_b32 v19, v21", "v_add_f32 v18, v18, v20", "v_add_f32 v19, v19, v21"]
    R = lambda r: [f"v_cvt_pk_bf16_f32 v{r}, v{r}, v{r}", f"v_and_b32 v{r}, 0xffff0000, v{r}"]
    F += ["v_mul_f32 v18, @S4@, v18", "v_mul_f32 v19, @S4@, v19", "v_fma_f32 v19, -v18, v18, v19", "v_max_f32 v19, 0, v19"] + R(19)
    F += ["v_add_f32 v19, @S5@, v19"] + R(19) + ["v_sqrt_f32 v19, v19"] + R(18) + R(19) + ["v_rcp_f32 v19, v19"]
    gemv(4, 0, 18, 8, F, pre=NSP)
    E("v_fma_f32 v8, -v18, v9, v8"); E("v_fma_f32 v8, v8, v19, v10")
    E("v_mov_b32 v9, v8"); E("v_permlane16_swap_b32 v8, v9")
    settag(8, 5)
    E(X(0xffff))
    intra_store(["buffer_store_dwordx2 v[8:9], v7, s[24:27], @S0@ offen"])
    E(X(2)); E(f"ds_write_b32 v7, v7 offset:{C_G-8}"); E(X(-1))
    stamp(13)
    E(f"s_sub_u32 s28, s5, {JW2}"); E("s_cmp_ge_u32 s28, 9"); E("s_cbranch_scc1 L_wend")
    stage_b(SLOT_B, 18)
    tagbyte(5, 0)
    live("s_barrier")
    stamp(14)
    gemv(3, ACT1, 18, 8)
    settag(8, 5)
    E(X(0xffff))
    E("buffer_store_dwordx2 v[8:9], v7, s[24:27], @S2@ offen sc1")
    if numa: E("buffer_store_dwordx2 v[8:9], v7, s[24:27], @S6@ offen sc1")
    stamp(15)
    E.label("L_wend")
    E("s_cbranch_execz L_ret_w")
    E("s_branch L_svc_end")

    E.label("L_owner")
    if 't' in dbg: E("s_waitcnt vmcnt(0)"); E("s_branch L_svc_end")
    E("s_waitcnt vmcnt(0)")
    lds_inc(C_D1, 1, 8)
    mktag()
    op_addrs()
    E("s_lshl_b32 s22, s5, 2"); E("s_add_u32 s22, s22, s3")
    E("v_and_b32 v6, 15, v0"); E("v_bfe_u32 v7, v0, 4, 1"); E("v_lshrrev_b32 v20, 4, v0"); E("v_lshlrev_b32 v20, 14, v20"); E("v_lshl_add_u32 v20, v6, 3, v20")
    E("v_mul_u32_u24 v21, 1152, v7"); E("v_lshl_add_u32 v21, v6, 1, v21")
    E("v_mul_u32_u24 v22, 288, v7")
    E("v_lshlrev_b32 v23, 3, v6")
    E("v_cmp_eq_u32 vcc, 0, v7"); E("v_mov_b32 v19, 0x03020c0c"); E("v_mov_b32 v6, 0x01000c0c"); E("v_cndmask_b32 v19, v19, v6, vcc")
    E("s_lshl_b32 s23, s22, 5")
    srd(8, 36, 2304); srd(12, 58, 2304)
    E("s_lshl_b32 s28, s22, 7"); E(f"s_add_u32 s32, s28, {MOD_OFF + 1152*8}"); E(f"s_add_u32 s33, s32, {1152*8}"); E(f"s_add_u32 s19, s33, {576*8}")
    E("s_lshl_b32 s29, s4, 14"); E("s_add_u32 s29, s29, s28")
    E(f"s_add_u32 s18, s29, {X_OFF}"); E(f"s_add_u32 s{SO(4)}, s18, 8192")
    XS = SO
    for k in range(4): E(f"s_add_u32 s{XS(k)}, s28, {(X_OFF, X_OFF + 4*16384, Y_OFF, Y_OFF + 4*16384)[k]}")
    E("s_mul_i32 s20, s4, 2304"); E("s_add_u32 s20, s20, s23"); E(f"s_add_u32 s20, s20, {Z_OFF}")
    E("s_mul_i32 s21, s4, 640"); E("s_lshl_b32 s28, s22, 3"); E("s_add_u32 s21, s21, s28"); E(f"s_add_u32 s21, s21, {ST_OFF}")
    E("s_lshl_b32 s28, s4, 5"); E("s_lshl_b32 s29, s3, 3"); E("s_add_u32 s28, s28, s29")
    E("s_lshl_b32 s16, s28, 10"); E("s_add_u32 s17, s16, 4096")
    E("v_lshlrev_b32 v7, 3, v0"); E("v_mov_b32 v6, 0")
    if reh:
        E("s_cmp_lg_u32 s3, 1"); E("s_cbranch_scc1 L_now_o")
        E("s_mov_b32 s6, 3")
        walk("L_ot", "L_ret_o")
        E.label("L_now_o")
    else: E.label("L_ret_o")
    if numa:
        E("s_cmp_lg_u32 s3, 2"); E("s_cbranch_scc1 L_nonuma")
        E("s_lshl_b32 s28, s4, 14"); E("s_lshl_b32 s29, s5, 8"); E("s_add_u32 s28, s28, s29"); E(f"s_add_u32 s28, s28, {X_OFF + 4608}")
        NPR = 4
        for k in range(NPR):
            E(f"s_add_u32 s{36+2*k}, s28, {(k & 1) * 0x20000 + (k >> 1) * 1152}"); E(f"s_add_u32 s{37+2*k}, s{36+2*k}, 8192")
        for k in range(2 * NPR): E(f"s_buffer_load_dword s{44+k}, s[24:27], s{36+k} glc")
        E("s_mov_b32 s30, 0"); E("s_mov_b32 s31, 0")
        E("s_waitcnt lgkmcnt(0)")
        E.label("L_numa")
        for k in range(NPR):
            order = (0, 1) if k & 1 else (1, 0)
            sec = order[1]
            E(f"s_not_b32 s{52+sec}, s{44+2*k+sec}")
            for c in order: E(f"s_buffer_load_dword s{52+c}, s[24:27], s{36+2*k+c} glc")
            E("s_waitcnt lgkmcnt(1)"); E("s_nop 7")
            E(f"s_cmp_{'eq' if sec else 'lg'}_u32 s{52+sec}, s{44+2*k+sec}"); E("s_addc_u32 s30, s30, 0")
            E("s_waitcnt lgkmcnt(0)")
        E("s_add_u32 s31, s31, 1"); E(f"s_cmp_lt_u32 s31, {NRR}"); E("s_cbranch_scc1 L_numa")
        if pool:
            E("s_lshl_b32 s31, s4, 7"); E(f"s_add_u32 s31, s31, {VT_OFF}"); E("s_lshl_b32 s29, s5, 3"); E("s_add_u32 s29, s29, s31")
            E("v_mov_b32 v24, s30"); E("v_mov_b32 v25, s35")
            E("s_mov_b64 exec, 1"); E("buffer_store_dwordx2 v[24:25], v1, s[24:27], s29 offen sc1"); E("s_mov_b64 exec, -1")
            lds_wait(C_CNT, 8, 1, 8, sleep=8)
            E("v_min_u32 v26, 64, v23")
            def vtbody():
                E("buffer_load_dwordx2 v[24:25], v26, s[24:27], s31 offen sc1"); E("s_waitcnt vmcnt(0)"); tagcheck(27, [25])
            poll(vtbody, 16)
            E("v_cmp_gt_u32 vcc, 72, v23"); E("v_cndmask_b32 v24, 0, v24, vcc")
            row_reduce("v_add_u32", 24, (1, 2, 4, 8))
            E("v_readfirstlane_b32 s30, v24")
        if stamps is True: E("s_mov_b32 s71, s30"); stamp(2)
        E(f"s_cmp_gt_u32 s30, {(9 if pool else 1)*NPR*NRR//2}"); E(f"s_cselect_b32 s30, {8193 if numa == 1 else 1}, {1 if numa == 1 else 8193}")
        lds_set(C_NR, 1, 8, "s30")
        E.label("L_nonuma")
    lds_wait(C_BAR, 1, 1, 8, sleep=8)
    E("s_mov_b32 s6, s28")
    lds_wait(C_D1, 4, 1, 8, sleep=4)
    stage_b(SLOT_A, 16)
    E("buffer_load_ushort v16, v21, s[8:11], s23 offen")
    def gabody():
        for k in range(2): E(f"buffer_load_dwordx2 v[{24+2*k}:{25+2*k}], v23, s[24:27], s{32+k} offen sc1")
        E("s_waitcnt vmcnt(0)")
        tagcheck(6, [25, 27])
    poll(gabody, 8)
    for k in range(2): E(f"v_perm_b32 v{17+k}, v{24+2*k}, v{24+2*k}, v19")
    E("v_lshlrev_b32 v16, 16, v16"); E("v_add_f32 v18, 1.0, v18"); rnd(18, 18)
    E("v_lshlrev_b32 v5, 4, v0")
    E("s_lshr_b32 s28, s3, 1"); E("s_mul_i32 s28, s28, 1152"); E("s_and_b32 s29, s3, 1"); E("s_lshl_b32 s29, s29, 9"); E("s_add_u32 s28, s28, s29")
    E("v_add_u32 v6, s28, v7")
    lds_wait(C_V2, 1, 1, 8, sleep=8)
    E("s_lshl_b32 s28, s4, 5"); E("s_lshl_b32 s29, s3, 3"); E("s_add_u32 s28, s28, s29")
    E("s_lshl_b32 s28, s28, 5"); E(f"s_add_u32 s28, s28, {ML_OFF}")
    E("v_and_b32 v28, 15, v0"); E("v_lshlrev_b32 v28, 4, v28")
    def mlbody():
        E("buffer_load_dwordx4 v[24:27], v28, s[24:27], s28 offen sc1"); E("s_waitcnt vmcnt(0)"); tagcheck(29, [26])
    tagbyte(4, 0)
    poll(mlbody, sl_ml)
    E(f"s_mov_b32 s31, {LOG2E}")
    E("v_mov_b32 v27, v24"); row_reduce("v_max_f32", 27, (2, 4, 8))
    E("v_sub_f32 v27, v24, v27"); E("v_mul_f32 v27, s31, v27"); E("v_exp_f32 v27, v27"); E("v_mul_f32 v28, v27, v25")
    row_reduce("v_add_f32", 28, (2, 4, 8))
    E("v_rcp_f32 v28, v28"); E("v_lshrrev_b32 v26, 5, v0"); E("v_lshlrev_b32 v26, 2, v26"); E("v_mul_f32 v27, v27, v28")
    for s_ in range(8): E(f"ds_bpermute_b32 v{8+s_}, v26, v27 offset:{8*s_}")
    E("s_waitcnt lgkmcnt(0)")
    if numa:
        lds_wait(C_NR, 1, 1, 24, sleep=4)
        E("s_sub_u32 s28, s28, 1"); E("v_add_u32 v20, s28, v20")
    stamp(6)
    lds_wait(C_OC, 8, 1, 24, sleep=1)
    stamp(7)
    E.label("L_ot")
    def obody():
        for s in range(8): E(f"buffer_load_dwordx4 v[{24+4*s}:{27+4*s}], v5, s[24:27], s{16 + s//4} offen offset:{(s%4)*1024} sc1")
        for s in range(8):
            E(f"s_waitcnt vmcnt({7-s})")
            E(f"v_xor_b32 v{24+4*s}, v4, v{24+4*s}")
            for k in (1, 2, 3, 0):
                if s == 0: E(f"v_mul_f32 v{56+k}, v8, v{24+k}")
                else: E(f"v_fmac_f32 v{56+k}, v{8+s}, v{24+4*s+k}")
            if s == 2: E("v_or3_b32 v60, v24, v28, v32")
            if s in (4, 6): E(f"v_or3_b32 v60, v60, v{20+4*s}, v{24+4*s}")
        E("v_cvt_pk_bf16_f32 v56, v56, v57"); E("v_cvt_pk_bf16_f32 v57, v58, v59")
        E(f"ds_write_b64 v6, v[56:57] offset:{ABUF}")
        E("v_or_b32 v60, v60, v52"); E("v_and_b32 v60, 0xfff, v60"); E("v_cmp_ne_u32 vcc, 0, v60")
    poll(obody, sl_o)
    stamp(8)
    E("s_waitcnt lgkmcnt(0)")
    live("s_barrier")
    gemv(3, ABUF, 16, 8)
    settag(8, 4)
    E(X(0xffff))
    E("buffer_store_dwordx2 v[8:9], v7, s[24:27], s18 offen sc1")
    if numa: E(f"buffer_store_dwordx2 v[8:9], v7, s[24:27], s{SO(4)} offen sc1")
    E(X(-1))
    stamp(9)
    def gather8(base):
        Rg = lambda t: 32 + 4 * t
        def loads(t):
            E(f"buffer_load_dwordx2 v[{Rg(t)}:{Rg(t)+1}], v20, s[24:27], s{XS(base)} offen sc1")
            E(f"buffer_load_dwordx2 v[{Rg(t)+2}:{Rg(t)+3}], v20, s[24:27], s{XS(base+1)} offen sc1")
        ppoll(PX, 2, loads, lambda t: lowcheck(28, [Rg(t), Rg(t)+2], 4),
              lambda t: E(f"v_pk_add_f32 v[24:25], v[{Rg(t)}:{Rg(t)+1}], v[{Rg(t)+2}:{Rg(t)+3}]"))
    def fold8():
        E("v_permlane16_swap_b32 v24, v25"); E("v_add_f32 v24, v24, v25"); swap_reduce("v_add_f32", 24, 25, 32)
    if xwait: E("s_waitcnt vmcnt(0)")
    gather8(0)
    stamp(10)
    fold8()
    rnd(24, 24); E("v_mul_f32 v24, v17, v24"); rnd(24, 24); E("v_add_f32 v16, v16, v24"); rnd(16, 16)
    E("v_mul_f32 v24, v16, v18"); E("v_mul_f32 v27, v16, v16")
    E("v_add_f32_dpp v26, v16, v16 row_ror:1 row_mask:0xf bank_mask:0xf")
    E("v_mov_b32_dpp v25, v24 quad_perm:[1,1,3,3] row_mask:0xf bank_mask:0xf")
    E("v_add_f32_dpp v27, v27, v27 row_ror:1 row_mask:0xf bank_mask:0xf")
    E("v_cvt_pk_bf16_f32 v24, v24, v25")
    rest = []
    for k in (2, 4, 8):
        rest += [f"v_add_f32_dpp v{r}, v{r}, v{r} row_ror:{k} row_mask:0xf bank_mask:0xf" for r in (26, 27)]
    intra_store([X(0x55555555), "buffer_store_dword v24, v21, s[24:27], s20 offen", X(-1)] + rest +
                [X(0x10001), "buffer_store_dwordx2 v[26:27], v22, s[24:27], s21 offen"])
    E(X(-1))
    stamp(11)
    E("s_and_b32 s28, s5, 7"); E("s_cmp_lg_u32 s28, s4"); E("s_cbranch_scc1 L_oend")
    E("v_and_b32 v5, 15, v0"); E("v_lshlrev_b32 v5, 3, v5")
    def gbbody():
        E("buffer_load_dwordx2 v[24:25], v5, s[24:27], s19 offen sc1"); E("s_waitcnt vmcnt(0)"); tagcheck(6, [25])
    poll(gbbody, 1)
    E("v_perm_b32 v19, v24, v24, v19")
    gather8(2)
    stamp(14)
    fold8()
    rnd(24, 24); E("v_mul_f32 v24, v19, v24"); rnd(24, 24); E("v_add_f32 v24, v16, v24")
    E("v_mov_b32_dpp v25, v24 quad_perm:[1,1,3,3] row_mask:0xf bank_mask:0xf")
    E("v_cvt_pk_bf16_f32 v24, v24, v25")
    E(X(0x55555555))
    E("buffer_store_dword v24, v21, s[12:15], s23 offen")
    stamp(15)
    E.label("L_oend")
    E("s_cbranch_execz L_ret_o")
    E("s_or_b32 s28, s22, s4"); E("s_cbranch_scc1 L_svc_end")
    E(X(1)); E("v_mov_b32 v24, s35"); E(f"s_mov_b32 s28, {EP_OFF}")
    E("buffer_store_dword v24, v1, s[24:27], s28 offen")
    if probe is not None:
        E(f"s_add_u32 s29, s{70+probe}, 6000")
        E.label("L_probe")
        E("s_sleep 1"); E("s_memrealtime s[92:93]"); E("s_waitcnt lgkmcnt(0)"); E("s_sub_u32 s28, s29, s92"); E("s_cmp_gt_i32 s28, 0"); E("s_cbranch_scc1 L_probe")
    E.label("L_svc_end")
    E("s_waitcnt lgkmcnt(0)")
    if stamps: E("s_add_u32 s3, s3, 8")
    stamp_flush()
    E.label("L_exit")
    E.lines = [re.sub(r'@S(\d)@', lambda m: 's%d' % SO(int(m.group(1))), l) for l in E.lines]
    body = E.finish()
    verify_stream(body)
    return HDR + f"""; @launch grid=(256,1,1) block=(768,1,1) lds=163840
.amdgcn_target "amdgcn-amd-amdhsa--gfx950"
.text
.globl {NAME}_kernel
.p2align 8
.type {NAME}_kernel,@function
{NAME}_kernel:
{body}
    s_endpgm
.section .rodata,"a"
.p2align 6
.amdhsa_kernel {NAME}_kernel
  .amdhsa_next_free_vgpr 168
  .amdhsa_next_free_sgpr 102
  .amdhsa_accum_offset 168
  .amdhsa_group_segment_fixed_size 0
  .amdhsa_kernarg_size 112
  .amdhsa_float_denorm_mode_32 3
  .amdhsa_user_sgpr_count 2
  .amdhsa_user_sgpr_kernarg_segment_ptr 1
  .amdhsa_system_sgpr_workgroup_id_x 1
.end_amdhsa_kernel
"""

def verify_stream(body):
    import re
    lines = [l.strip() for l in body.split('\n')]
    a = lines.index('L_k0:'); b = lines.index('L_service:'); c = lines.index('L_stream:'); d = lines.index('L_noreduce:')
    path = lines[a:b] + lines[c:d]
    issued = []; landed = 0; skip = None; last = {}
    for l in path:
        if skip:
            if l == skip + ':': skip = None
            continue
        m = re.match(r's_cbranch_scc1 (L_th_\d+)', l)
        if m: skip = m.group(1); continue
        m = re.match(r'buffer_load_dwordx4 v\[(\d+):', l)
        if m: issued.append(int(m.group(1))); last[int(m.group(1))] = len(issued); continue
        if re.match(r'buffer_load_dwordx4 v1, .* lds', l): issued.append(-1); nlds = len(issued); continue
        m = re.match(r'ds_read_b128 v\[(\d+):\d+\], v3 ', l)
        if m: assert landed >= nlds; last.pop(int(m.group(1)), None); continue
        m = re.search(r'vmcnt\((\d+)\)', l)
        if m: landed = max(landed, len(issued) - int(m.group(1))); continue
        m = re.match(r'v_mfma\S+ v\[(\d+):\d+\], v\[(\d+):\d+\], v\[(\d+):', l)
        if m:
            for r in (int(m.group(2)), int(m.group(3))):
                if r in last: assert last[r] <= landed, f"unwaited operand: {l}"
    assert len(issued) == 64 and landed == 64

HDR = """; adaLN-conditioned GQA decode attention + SwiGLU block, one persistent launch (generated by gen/gen7.py)
"""
if __name__ == '__main__':
    kw = eval('dict(' + (sys.argv[2] if len(sys.argv) > 2 else '') + ')')
    open(sys.argv[1], 'w').write(gen(**kw))
```

```python
import sys, re
from emit import Emit
NAME = 'adaLN_cond__gqa_block_cached__glu_gated_swiglu__decode'

O_OFF, G_OFF = 0x0, 0x40000
X_OFF, Y_OFF = 0x80000, 0xA0000
Z_OFF, ST_OFF, ML_OFF = 0x64000, 0x69000, 0x6C000
EP_OFF = 0xC0000
FL_OFF = 0xC1000
PG_OFF = 0xC3000
VT_OFF = 0xC2000
Q_OFF, MOD_OFF = 0xC8000, 0xD0000
STAMP_OFF = 0x100000
WS_SIZE = 0x200000
C_BAR, C_Q, C_CNT, C_D1, C_D2, C_GT, C_GO, C_J1, C_J2, C_KH, C_VH, C_OC, C_FAC, C_V2, C_G, C_NR = range(0, 64, 4)
FAC, MLB, QBUF = 64, 128, 256
CBUF, SBUF = 1216, 3552
ABUF = 1216
ACT0, ACT1 = 15104, 64
JBUF, ZBUF, OBUF = 5888, 5888, 8192
SLOT_A, SLOT_B = 16384, 90112
LOG2E = 0x3fb8aa3b
SCALE = 0x3db504f3
JW2, JQ0 = 15, 24

def gen(D=3, DV=3, DQ=3, stamps=False, force_slow=False, sl_long=2, sl_bar=16, gateq=0, kvf='nt', wf='nt',
        plim=0x2000, probe=None, cpf=0, sl_o=0, sl_z=0, dbg='', XW=(0,0,0,0,3,4), XD=1, sl_ml=32, kh=29, sl_q=4,
        XG=1, DE=3, NE=8, kv=12, DW=0, DEA=0, DJ=0, K0=3, DJQ=0, EB=0, QB=0, ko=9, omask=0, xwait=0, NP=0, DW1=2, NP3=4, XL=0, k1=0, N1=2, PX=1, PG=1, hg=1, reh=1, oack=0, tlb=0, warm='', NL=4, v2=22, qs=1, numa=1, NRR=2, pool=1, KA=12, ZL=2, gate=0, gj=20, gsl=2, gk=6, N2=2, k2=8, jreh=0, xe=1, fb=0, fbg=20, fbo=0, fbv=12, fbl=0, fbm=0, XN=(0,10,22,10,20,52,36,40), km=12, lj=0, XJ=40):
    assert ko == 9
    E = Emit()
    uid = [0]
    def L(p):
        uid[0] += 1
        return f"L_{p}_{uid[0]}"
    def stamp(k):
        if stamps and (stamps not in ('lite', 'entry') or k in (0, 15)):
            E("s_memrealtime s[92:93]"); E("s_waitcnt lgkmcnt(0)"); E(f"s_mov_b32 s{70+k}, s92")
    def stamp_flush():
        if stamps:
            E("s_mov_b64 exec, -1")
            if stamps == 'entry': E("s_mov_b32 s71, s86")
            E("v_mov_b32 v4, 0")
            for k in range(16): E(f"v_writelane_b32 v4, s{70+k}, {k}")
            E("s_lshl_b32 s28, s4, 5"); E("s_add_u32 s28, s28, s5"); E("s_mul_i32 s28, s28, 12"); E("s_add_u32 s28, s28, s3")
            E("s_lshl_b32 s28, s28, 6"); E(f"s_add_u32 s28, s28, {STAMP_OFF}")
            E("v_mbcnt_lo_u32_b32 v5, -1, 0"); E("v_mbcnt_hi_u32_b32 v5, -1, v5"); E("v_lshlrev_b32 v5, 2, v5")
            E("s_mov_b64 exec, 0xffff")
            E("buffer_store_dword v4, v5, s[24:27], s28 offen")
    def srd(r, p, size):
        E(f"s_mov_b32 s{r}, s{p}"); E(f"s_mov_b32 s{r+1}, s{p+1}"); E(f"s_mov_b32 s{r+2}, {size}"); E(f"s_mov_b32 s{r+3}, 0x20000")
    def lds_wait(off, val, vz, vt, sleep=2):
        a, b = L("lw"), L("lwd")
        E("s_mov_b32 s7, 0"); E.label(a)
        E(f"ds_read_b32 v{vt}, v{vz} offset:{off}"); E("s_waitcnt lgkmcnt(0)")
        E(f"v_readfirstlane_b32 s28, v{vt}"); E(f"s_cmp_ge_u32 s28, {val}"); E(f"s_cbranch_scc1 {b}")
        if sleep: E(f"s_sleep {sleep}")
        E("s_add_u32 s7, s7, 1"); E(f"s_cmp_lt_u32 s7, {plim*8}"); E(f"s_cbranch_scc1 {a}")
        E.label(b)
    def lds_set(off, vz, vt, val):
        E(f"v_mov_b32 v{vt}, {val}"); E(f"ds_write_b32 v{vz}, v{vt} offset:{off}")
    def lds_inc(off, vz, vt):
        E(f"v_mov_b32 v{vt}, 1"); E("s_mov_b64 exec, 1"); E(f"ds_add_u32 v{vz}, v{vt} offset:{off}"); E("s_mov_b64 exec, -1")
    def soft_barrier(off, vz, vt, sleep=0, n=4):
        lds_inc(off, vz, vt); lds_wait(off, n, vz, vt, sleep)
    def poll(body, sleep=0):
        a, b = L("pl"), L("pld")
        E("s_mov_b32 s7, 0"); E.label(a)
        body()
        E(f"s_cbranch_vccz {b}")
        if sleep: E(f"s_sleep {sleep}")
        E("s_add_u32 s7, s7, 1"); E(f"s_cmp_lt_u32 s7, {plim}"); E(f"s_cbranch_scc1 {a}")
        E.label(b)
    def ppoll(nsets, nload, loads, check, finish):
        a, d = L("pp"), L("ppd"); ok = [L("ppk") for _ in range(nsets)]
        E("s_mov_b32 s7, 0")
        for t in range(nsets): loads(t)
        E.label(a)
        for t in range(nsets):
            E(f"s_waitcnt vmcnt({(nsets-1)*nload})"); check(t); E(f"s_cbranch_vccz {ok[t]}"); loads(t)
        E("s_add_u32 s7, s7, 1"); E(f"s_cmp_lt_u32 s7, {plim}"); E(f"s_cbranch_scc1 {a}")
        E("s_waitcnt vmcnt(0)")
        for t in range(nsets):
            E.label(ok[t]); finish(t)
            if t + 1 < nsets: E(f"s_branch {d}")
        E.label(d)
    def intra_store(ins):
        a, b = L("is"), L("isd")
        E("s_cmp_eq_u32 s6, 3"); E(f"s_cbranch_scc1 {a}")
        for i in ins: E(i + (" sc1" if i.startswith("buffer_") else ""))
        E(f"s_branch {b}"); E.label(a)
        for i in ins: E(i)
        E.label(b)
    def X(m):
        return "s_mov_b64 exec, s[88:89]" if m == -1 else f"s_and_b64 exec, s[88:89], {m:#x}"
    def walk(target, ret):
        E("s_mov_b64 s[88:89], 0"); E("s_mov_b64 exec, 0"); E(f"s_branch {target}")
        E.label(ret)
        E("s_mov_b64 s[88:89], -1"); E("s_mov_b64 exec, -1")
    def live(ins):
        a = L("lv"); E(f"s_cbranch_execz {a}"); E(ins); E.label(a)
    def rnd(dst, src):
        E(f"v_cvt_pk_bf16_f32 v{dst}, v{src}, v{src}"); E(f"v_and_b32 v{dst}, 0xffff0000, v{dst}")
    def row_reduce(op, r, rors):
        for k in rors: E(f"{op}_dpp v{r}, v{r}, v{r} row_ror:{k} row_mask:0xf bank_mask:0xf")
    def swap_reduce(op, r, t, which):
        E(f"v_mov_b32 v{t}, v{r}"); E(f"v_permlane{which}_swap_b32 v{r}, v{t}"); E(f"{op} v{r}, v{r}, v{t}")
    def mktag():
        E("s_waitcnt lgkmcnt(0)")
        E("s_mul_i32 s35, s34, 0x9E3779B1"); E("s_add_u32 s35, s35, 0x7F4A7C15"); E("s_mov_b32 s90, 0xfffff000")
    def tagcheck(acc, regs):
        E(f"v_xor_b32 v{acc}, s35, v{regs[0]}")
        for r in regs[1:]: E(f"v_bitop3_b32 v{acc}, v{acc}, v{r}, s35 bitop3:0xf6")
        E(f"v_cmp_ne_u32 vcc, 0, v{acc}")
    def tagbyte(dst, idx):
        E(f"v_and_b32 v{dst}, 3, v{idx}"); E(f"v_mul_u32_u24 v{dst}, 7, v{dst}"); E(f"v_bfe_u32 v{dst}, s35, v{dst}, 12")
    def settag(r, tg): E(f"v_and_or_b32 v{r}, v{r}, s{SM}, v{tg}")
    def lowcheck(acc, regs, tg):
        for r in regs: E(f"v_xor_b32 v{r}, v{tg}, v{r}")
        ortree(acc, regs)
    def ortree(acc, regs):
        regs = list(regs)
        if len(regs) == 1: E(f"v_and_b32 v{acc}, 0xfff, v{regs[0]}")
        else:
            first = True
            while regs:
                if first:
                    t = regs[:3]; regs = regs[3:]; first = False
                    E(f"v_or3_b32 v{acc}, v{t[0]}, v{t[1]}, v{t[2]}") if len(t) == 3 else E(f"v_or_b32 v{acc}, v{t[0]}, v{t[1]}")
                else:
                    t = regs[:2]; regs = regs[2:]
                    E(f"v_or3_b32 v{acc}, v{acc}, v{t[0]}, v{t[1]}") if len(t) == 2 else E(f"v_or_b32 v{acc}, v{acc}, v{t[0]}")
            E(f"v_and_b32 v{acc}, 0xfff, v{acc}")
        E(f"v_cmp_ne_u32 vcc, 0, v{acc}")
    SM = 90
    BR = lambda k: 96 + 4 * k
    AT = lambda k: 24 + 4 * k
    def op_addrs():
        E("v_bfe_u32 v4, v0, 2, 2"); E("v_lshrrev_b32 v5, 4, v0"); E("v_lshl_add_u32 v4, v5, 3, v4"); E("v_lshlrev_b32 v4, 7, v4")
        E("v_and_b32 v6, 3, v0"); E("v_lshl_add_u32 v4, v6, 3, v4")
        E("v_bfe_u32 v7, v0, 3, 2"); E("v_xor_b32 v7, s3, v7"); E("v_lshl_add_u32 v2, v7, 5, v4")
        E("v_and_b32 v3, 1, v0"); E("v_mul_u32_u24 v3, 1152, v3"); E("v_lshl_add_u32 v3, v5, 4, v3")
    def stage_b(slot, nk, wait=True, k0=0, t=5):
        E(f"v_add_u32 v{t}, {slot}, v2"); E(f"v_add_u32 v{t+1}, {slot + 36864}, v2")
        for k in range(k0, nk):
            a = t if k < 9 else t + 1; o = (k % 9) * 4096
            E(f"ds_read_b64_tr_b16 v[{BR(k)}:{BR(k)+1}], v{a} offset:{o}"); E(f"ds_read_b64_tr_b16 v[{BR(k)+2}:{BR(k)+3}], v{a} offset:{o+512}")
        if wait: E("s_waitcnt lgkmcnt(0)")
    def gemv(areg, aoff, nk, d, fill=None, pre=0):
        fill = list(fill or [])
        per = -(-len(fill) // nk)
        for k in range(pre, min(nk, 15)): E(f"ds_read_b128 v[{AT(k)}:{AT(k)+3}], v{areg} offset:{aoff + k*64}")
        issued = min(nk, 15)
        for k in range(nk):
            E(f"s_waitcnt lgkmcnt({issued - 1 - k})")
            c = "0" if k == 0 else f"v[{d}:{d+3}]"
            E(f"v_mfma_f32_16x16x32_bf16 v[{d}:{d+3}], v[{AT(k)}:{AT(k)+3}], v[{BR(k)}:{BR(k)+3}], {c}")
            if issued < nk:
                E(f"ds_read_b128 v[{AT(issued)}:{AT(issued)+3}], v{areg} offset:{aoff + issued*64}"); issued += 1
            for _ in range(per):
                if fill: E(fill.pop(0))
    def own_map():
        E("v_and_b32 v8, 31, v0"); E("v_min_u32 v9, 7, v8"); E("s_mul_i32 s28, s3, 72")
        E("v_add_u32 v8, s28, v8"); E("s_add_u32 s28, s28, 64"); E("v_add_u32 v9, s28, v9")
        E("v_lshrrev_b32 v11, 5, v0"); E("v_mul_u32_u24 v11, 1152, v11"); E("v_lshl_add_u32 v10, v8, 2, v11"); E("v_lshl_add_u32 v11, v9, 2, v11")
    def modgather(o1, o2, lab=None):
        E(f"s_mov_b32 s30, {MOD_OFF + o1*8}"); E(f"s_mov_b32 s31, {MOD_OFF + o2*8}")
        E("v_lshlrev_b32 v12, 4, v8"); E("v_lshlrev_b32 v13, 4, v9")
        def body():
            for h in range(2):
                E(f"buffer_load_dwordx4 v[{36+12*h}:{39+12*h}], v12, s[24:27], s{30+h} offen sc1")
                E(f"buffer_load_dwordx4 v[{40+12*h}:{43+12*h}], v12, s[24:27], s{30+h} offen offset:512 sc1")
                E(f"buffer_load_dwordx4 v[{44+12*h}:{47+12*h}], v13, s[24:27], s{30+h} offen sc1")
            E("s_waitcnt vmcnt(0)")
            tagcheck(14, list(range(37, 60, 2)))
        poll(body, sl_long)
        if lab: E.label(lab)
        E("v_cmp_gt_u32 vcc, 32, v0"); E("v_mov_b32 v12, 0x03020c0c"); E("v_mov_b32 v13, 0x01000c0c"); E("v_cndmask_b32 v12, v12, v13, vcc")
        for e in range(12): E(f"v_perm_b32 v{24+e}, v{36+2*e}, v{36+2*e}, v12")
    def dma_addrs(a=3, b=4, t=2):
        E(f"v_lshrrev_b32 v{t}, 3, v0"); E(f"v_mul_lo_u32 v{t}, v{t}, s20")
        E(f"v_and_b32 v{a}, 7, v0"); E(f"v_bfe_u32 v{b}, v0, 4, 1"); E(f"v_lshlrev_b32 v{b}, 1, v{b}"); E(f"v_xor_b32 v{a}, v{a}, v{b}")
        E(f"v_xor_b32 v{b}, 4, v{a}"); E(f"v_lshl_add_u32 v{a}, v{a}, 4, v{t}"); E(f"v_lshl_add_u32 v{b}, v{b}, 4, v{t}")
        E("s_lshl_b32 s17, s20, 3")
    def dma_loop(lab, depth, a=3, b=4, ls=1024):
        E.label(lab)
        E("s_mov_b32 m0, s29"); E(f"s_add_u32 s29, s29, {ls}")
        E(f"buffer_load_dwordx4 v{a}, s[8:11], s16 offen {wf} lds"); E("s_add_u32 s16, s16, s17")
        if depth: E(f"s_waitcnt vmcnt({depth-1})")
        E("s_mov_b32 m0, s29"); E(f"s_add_u32 s29, s29, {ls}")
        E(f"buffer_load_dwordx4 v{b}, s[8:11], s16 offen {wf} lds"); E("s_add_u32 s16, s16, s17")
        if depth: E(f"s_waitcnt vmcnt({depth-1})")
        E("s_sub_u32 s19, s19, 1"); E("s_cmp_lg_u32 s19, 0"); E(f"s_cbranch_scc1 {lab}")

    E.label("L_code0")
    if probe == 16 or stamps == 'entry': E("s_memrealtime s[86:87]")
    E("s_load_dwordx16 s[36:51], s[0:1], 0")
    E("s_load_dwordx8 s[52:59], s[0:1], 64")
    E("s_load_dwordx4 s[60:63], s[0:1], 96")
    E("s_cmp_ge_u32 s2, 256"); E("s_cbranch_scc1 L_exit")
    if stamps == 'entry': E("s_mov_b32 s85, 0")
    elif stamps:
        for k in range(16): E(f"s_mov_b32 s{70+k}, 0")
    E("v_lshrrev_b32 v1, 6, v0"); E("v_and_b32 v0, 63, v0"); E("v_readfirstlane_b32 s3, v1")
    E("s_and_b32 s4, s2, 7"); E("s_lshr_b32 s5, s2, 3")
    E("s_sub_u32 s22, s2, 72"); E("s_cmp_lt_u32 s22, 48"); E("s_cselect_b32 s21, 2, 0")
    E(f"s_cmp_ge_u32 s5, {JQ0}"); E("s_cselect_b32 s21, 3, s21")
    if 'j' in dbg: E("s_mov_b32 s21, 0")
    E("s_cmp_ge_u32 s3, 8"); E("s_cbranch_scc1 L_service")

    SL = lambda i: 40 + 4 * i
    E("v_and_b32 v3, 3, v0"); E("v_lshrrev_b32 v4, 4, v0"); E("v_lshl_add_u32 v3, v4, 2, v3")
    E("v_bfe_u32 v4, v0, 2, 2"); E("v_lshlrev_b32 v4, 8, v4"); E("v_lshl_add_u32 v2, v3, 4, v4")
    if 'l' in dbg: E("v_lshlrev_b32 v2, 4, v0")
    E("s_and_b32 s28, s5, 16"); E("s_lshl_b32 s29, s4, 1"); E("s_add_u32 s28, s28, s29")
    E("s_lshl_b32 s28, s28, 3"); E("s_and_b32 s29, s5, 15"); E("s_add_u32 s28, s28, s29")
    E("s_lshl_b32 s28, s28, 6"); E("s_add_u32 s28, s28, s3"); E("s_lshl_b32 s33, s28, 12")
    E("s_add_u32 s32, s5, s3")
    def soff(u):
        E(f"s_add_u32 s30, s32, {u}"); E("s_and_b32 s30, s30, 7"); E("s_lshl_b32 s30, s30, 15"); E(f"s_add_u32 s{64+u if not stamps else 94+u}, s33, s30")
    SO = lambda u: (64 + u if not stamps else 94 + u)
    soff(0)
    if K0 > 4: soff(1)
    E("s_mov_b32 s10, 0x4000000"); E("s_mov_b32 s11, 0x20000")
    E("s_waitcnt lgkmcnt(0)")
    E("s_mov_b32 s8, s38"); E("s_mov_b32 s9, s39")
    stamp(0)
    def kload(i): E(f"buffer_load_dwordx4 v[{SL(i)}:{SL(i)+3}], v2, s[8:11], s{SO(i//4)} offen offset:{(i%4)*1024} {kvf}")
    VS = lambda i: SL((i - NL) % 32)
    def vload(i):
        if i < NL: E(f"buffer_load_dwordx4 v1, s[12:15], s{SO(i//4)} offen offset:{(i%4)*1024} {kvf} lds")
        else: E(f"buffer_load_dwordx4 v[{VS(i)}:{VS(i)+3}], v1, s[12:15], s{SO(i//4)} offen offset:{(i%4)*1024} {kvf}")
    E.label("L_k0")
    for i in range(K0): kload(i)
    E("s_branch L_stream")

    E.label("L_service")
    E("v_mov_b32 v1, 0")
    E("s_sub_u32 s3, s3, 8")
    E("v_lshlrev_b32 v2, 2, v0"); E("s_mov_b64 exec, 0xffff"); E("ds_write_b32 v2, v1"); E("s_mov_b64 exec, -1")
    E("s_mov_b32 s18, 4")
    E("s_cmp_lg_u32 s21, 0"); E("s_cbranch_scc1 L_job")
    E("s_mov_b32 s20, 1152")
    dma_addrs()
    E("s_lshl_b32 s28, s4, 2"); E("s_add_u32 s28, s28, s3"); E(f"s_sub_u32 s30, s5, {JW2}")
    E("s_cmp_lt_u32 s5, 9")
    E("s_cselect_b32 s19, 8, 9"); E("s_cselect_b32 s30, s5, s30"); E(f"s_mov_b32 s29, {SLOT_B}"); E(f"s_cselect_b32 s29, {SLOT_A}, s29")
    E("s_mul_i32 s16, s19, 18432"); E("s_lshl_b32 s10, s16, 5"); E("s_mul_i32 s16, s16, s28"); E("s_lshl_b32 s30, s30, 7"); E("s_add_u32 s16, s16, s30")
    E("s_lshl_b32 s30, s19, 11"); E("s_mul_i32 s30, s30, s3"); E("s_add_u32 s29, s29, s30"); E("s_mov_b32 s11, 0x20000")
    E("s_waitcnt lgkmcnt(0)")
    E("s_cmp_lt_u32 s5, 9"); E("s_cselect_b32 s8, s44, s52"); E("s_cselect_b32 s9, s45, s53")
    stamp(0)
    if EB: E("s_barrier")
    if 'e' not in dbg: dma_loop("L_dma_early", DEA)
    E(f"s_load_dword s34, s[62:63], {EP_OFF}")
    srd(24, 62, WS_SIZE)
    if not EB: E("s_barrier")
    E("s_branch L_roles")
    E.label("L_job")
    E("s_cmp_eq_u32 s21, 3")
    E("s_cselect_b32 s20, 8192, 6912") if False else (E("s_mov_b32 s20, 6912"), E("s_cselect_b32 s20, 8192, s20"))
    dma_addrs()
    own_map()
    E("s_lshl_b32 s28, s4, 3"); E(f"s_sub_u32 s29, s5, {JQ0}"); E("s_add_u32 s28, s28, s29")
    E("s_cmp_eq_u32 s21, 3"); E("s_cselect_b32 s22, s28, s22")
    E("s_mul_i32 s10, s20, 576"); E("s_mov_b32 s11, 0x20000")
    E("s_mul_i32 s16, s20, 144"); E("s_mul_i32 s16, s16, s3"); E("s_lshl_b32 s28, s22, 7"); E("s_add_u32 s16, s16, s28")
    E("s_mul_i32 s29, s3, 18432"); E(f"s_add_u32 s29, s29, {SLOT_B}"); E("s_mov_b32 s19, 9")
    E("s_mov_b32 s14, 2304"); E("s_mov_b32 s15, 0x20000")
    E("s_waitcnt lgkmcnt(0)")
    if stamps:
        E("s_cmp_eq_u32 s18, 8"); E("s_cbranch_scc1 L_nost0"); stamp(0); E.label("L_nost0")
    E("s_cmp_eq_u32 s21, 3")
    E("s_cselect_b32 s8, s42, s56"); E("s_cselect_b32 s9, s43, s57"); E("s_cselect_b32 s12, s36, s54"); E("s_cselect_b32 s13, s37, s55")
    E("buffer_load_dword v16, v10, s[12:15], 0 offen"); E("buffer_load_dword v17, v10, s[12:15], 0 offen offset:128"); E("buffer_load_dword v18, v11, s[12:15], 0 offen")
    srd(24, 62, WS_SIZE)
    if xe:
        E("s_cbranch_scc0 L_nox")
        E("v_lshrrev_b32 v12, 5, v0"); E("v_mul_u32_u24 v12, 1152, v12"); E("v_and_b32 v13, 31, v0"); E("v_lshl_add_u32 v12, v13, 2, v12")
        for i in range(9): E(f"buffer_load_dword v{60+i}, v12, s[12:15], 0 offen offset:{i*128}")
        E.label("L_nox")
    E("s_cmp_eq_u32 s18, 8"); E("s_cbranch_scc1 L_dma_jq")
    E(f"s_load_dword s34, s[62:63], {EP_OFF}")
    if QB: E(f"s_cmp_eq_u32 s5, 27"); E("s_cbranch_scc1 L_jq")
    dma_loop("L_dma_job", DJ)
    E("s_barrier")
    E("s_branch L_job2")
    if QB:
        E.label("L_jq")
        E("s_barrier")
        dma_loop("L_dma_j27", QB - 1)
        E("s_branch L_job2")
    dma_loop("L_dma_jq", DJQ)
    E.label("L_job2")
    stamp(9)
    op_addrs()
    E("s_waitcnt vmcnt(18)")
    for i in range(3):
        E(f"v_and_b32 v{71+2*i}, 0xffff0000, v{16+i}"); E(f"v_lshlrev_b32 v{70+2*i}, 16, v{16+i}")
    E("s_cmp_eq_u32 s21, 3"); E("s_cbranch_scc1 L_prep_q")
    E(f"s_mov_b32 s28, {LOG2E ^ 0x80000000}"); E("s_mov_b32 s29, 0xb2a57060"); E("s_mov_b32 s30, 0x3f317218")
    for e in range(6): E(f"v_mul_f32 v{24+e}, s28, v{70+e}")
    for e in range(6): E(f"v_fma_f32 v{30+e}, v{70+e}, s28, -v{24+e}")
    for e in range(6): E(f"v_fma_f32 v{30+e}, v{70+e}, s29, v{30+e}")
    for e in range(6): E(f"v_min_f32 v{24+e}, 0x42fc0000, v{24+e}")
    for e in range(6): E(f"v_exp_f32 v{24+e}, v{24+e}")
    for e in range(6): E(f"v_mul_f32 v{30+e}, s30, v{30+e}")
    for e in range(6): E(f"v_fma_f32 v{24+e}, v{24+e}, v{30+e}, v{24+e}")
    for e in range(6): E(f"v_add_f32 v{24+e}, 1.0, v{24+e}")
    for e in range(6): E(f"v_rcp_f32 v{30+e}, v{24+e}")
    for e in range(6): E(f"v_mul_f32 v{36+e}, v{70+e}, v{30+e}")
    for e in range(6): E(f"v_fma_f32 v{70+e}, -v{24+e}, v{36+e}, v{70+e}")
    for e in range(6): E(f"v_fma_f32 v{70+e}, v{70+e}, v{30+e}, v{36+e}")
    def write_a(buf):
        for i in range(3): E(f"v_cvt_pk_bf16_f32 v{16+i}, v{70+2*i}, v{71+2*i}")
        E(f"ds_write_b32 v10, v16 offset:{buf}"); E(f"ds_write_b32 v10, v17 offset:{buf+128}"); E(f"ds_write_b32 v11, v18 offset:{buf}")
    write_a(JBUF)
    if jreh: walk("L_mst", "L_ret_m")
    E("s_waitcnt vmcnt(0)")
    soft_barrier(C_J1, 1, 16, n="s18")
    stamp(10)
    E.label("L_mst")
    stage_b(SLOT_B, 18, wait=False)
    E("s_branch L_gemv")
    E.label("L_prep_q")
    if not xe:
        E("v_lshrrev_b32 v12, 5, v0"); E("v_mul_u32_u24 v12, 1152, v12"); E("v_and_b32 v13, 31, v0"); E("v_lshl_add_u32 v12, v13, 2, v12")
        for i in range(9): E(f"buffer_load_dword v{60+i}, v12, s[12:15], 0 offen offset:{i*128}")
        E("s_waitcnt vmcnt(0)")
    for i in range(9):
        E(f"v_lshlrev_b32 v{24+2*i}, 16, v{60+i}"); E(f"v_and_b32 v{25+2*i}, 0xffff0000, v{60+i}")
    E("v_add_f32 v16, v24, v25")
    for r in range(26, 42): E(f"v_add_f32 v16, v16, v{r}")
    row_reduce("v_add_f32", 16, (1, 2, 4, 8)); swap_reduce("v_add_f32", 16, 17, 16)
    E("s_mov_b32 s28, 0x3ae38e39"); E("s_mov_b32 s29, 0x3727c5ac")
    E("v_mul_f32 v16, s28, v16")
    E("v_mov_b32 v18, 0")
    for r in range(24, 42): E(f"v_sub_f32 v17, v{r}, v16"); E("v_fmac_f32 v18, v17, v17")
    row_reduce("v_add_f32", 18, (1, 2, 4, 8)); swap_reduce("v_add_f32", 18, 17, 16)
    E("v_mul_f32 v18, s28, v18"); rnd(18, 18); E("v_add_f32 v18, s29, v18"); rnd(18, 18)
    E("v_sqrt_f32 v18, v18"); rnd(18, 18); E("v_rcp_f32 v19, v18"); rnd(16, 16)
    for r in range(70, 76):
        E(f"v_sub_f32 v{r}, v{r}, v16"); rnd(r, r)
        E(f"v_mul_f32 v17, v{r}, v19"); E(f"v_fma_f32 v{r}, -v18, v17, v{r}"); E(f"v_fma_f32 v{r}, v{r}, v19, v17"); rnd(r, r)
    E("s_waitcnt vmcnt(0)")
    soft_barrier(C_J1, 1, 16)
    stamp(10)
    stage_b(SLOT_B, 18)
    mktag()
    if jreh: walk("L_qh", "L_ret_q")
    if km: lds_wait(C_NR, 1, 1, 16, sleep=4)
    modgather(0, 576, "L_qh")
    stamp(11)
    for e in range(6):
        E(f"v_add_f32 v{30+e}, 1.0, v{30+e}"); rnd(30+e, 30+e); E(f"v_mul_f32 v{70+e}, v{70+e}, v{30+e}"); rnd(70+e, 70+e)
        E(f"v_add_f32 v{70+e}, v{70+e}, v{24+e}")
    write_a(JBUF)
    E("s_cbranch_execz L_gemv")
    soft_barrier(C_J2, 1, 16)
    E.label("L_gemv")
    gemv(3, JBUF, 18, 20)
    mktag()
    E("s_lshl_b32 s28, s22, 2"); E("s_add_u32 s28, s28, s3"); E("s_lshl_b32 s28, s28, 7")
    E(f"s_mov_b32 s29, {MOD_OFF}"); E("s_cmp_eq_u32 s21, 3"); E(f"s_cselect_b32 s29, {Q_OFF}, s29"); E("s_add_u32 s28, s28, s29")
    E("v_lshlrev_b32 v2, 3, v0")
    E("v_cvt_pk_bf16_f32 v8, v20, v21"); E("v_mov_b32 v9, s35")
    if jreh:
        E("s_cbranch_execnz L_jpub")
        E("s_cmp_eq_u32 s21, 3"); E("s_cbranch_scc1 L_ret_q"); E("s_branch L_ret_m")
        E.label("L_jpub")
    E("s_mov_b64 exec, 0xffff")
    E("buffer_store_dwordx2 v[8:9], v2, s[24:27], s28 offen sc1")
    E("s_mov_b64 exec, -1")
    lds_inc(C_GO, 1, 16)
    stamp(12)
    E("s_cmp_eq_u32 s18, 8"); E("s_cbranch_scc1 L_svc_end")
    E.label("L_roles")
    for w in '0123':
        if w in dbg: E(f"s_cmp_eq_u32 s3, {w}"); E("s_cbranch_scc1 L_svc_end")
    if 'z' in dbg: E("s_branch L_tailprep")
    E("s_cmp_eq_u32 s3, 3"); E("s_cbranch_scc1 L_s3")
    E("s_cmp_eq_u32 s3, 0"); E("s_cbranch_scc1 L_s0")
    if cpf:
        E("s_cmp_lg_u32 s3, 1"); E("s_cbranch_scc1 L_tailprep")
        E("s_getpc_b64 s[8:9]"); E.label("L_pc")
        E("s_sub_u32 s8, s8, L_pc-L_code0"); E("s_subb_u32 s9, s9, 0"); E("s_mov_b32 s10, L_exit-L_code0"); E("s_mov_b32 s11, 0x20000")
        E("v_lshlrev_b32 v2, 4, v0"); E("s_lshl_b32 s16, s5, 10")
        if cpf == 2: lds_wait(C_KH, 1, 1, 8, sleep=8)
        E("buffer_load_dwordx4 v[8:11], v2, s[8:11], s16 offen"); E("s_waitcnt vmcnt(0)")
    E("s_branch L_tailprep")

    E.label("L_s0")
    mktag()
    E("v_lshlrev_b32 v2, 4, v0")
    if kh:
        if gateq: E("s_cmp_eq_u32 s21, 3"); E("s_cbranch_scc1 L_qgo")
        lds_wait(C_KH, 1, 1, 8, sleep=8)
        E.label("L_qgo")
    E("s_lshl_b32 s28, s4, 12"); E("s_bfe_u32 s29, s5, 0x10003"); E("s_lshl_b32 s29, s29, 11"); E("s_add_u32 s28, s28, s29"); E(f"s_add_u32 s28, s28, {Q_OFF}")
    def qbody():
        E("buffer_load_dwordx4 v[8:11], v2, s[24:27], s28 offen sc1"); E("buffer_load_dwordx4 v[12:15], v2, s[24:27], s28 offen offset:1024 sc1")
        E("s_waitcnt vmcnt(0)")
        tagcheck(16, [9, 11, 13, 15])
    poll(qbody, sl_q)
    E("s_mov_b32 s29, 0x05040100"); E("s_cmp_ge_u32 s5, 16"); E("s_cselect_b32 s29, 0x07060302, s29")
    E("v_perm_b32 v8, v10, v8, s29"); E("v_perm_b32 v9, v14, v12, s29"); E("v_lshlrev_b32 v3, 2, v0")
    E(f"ds_write_b32 v3, v8 offset:{QBUF}"); E(f"ds_write_b32 v3, v9 offset:{QBUF+256}")
    E("s_add_u32 s7, s7, 1"); lds_set(C_Q, 1, 10, "s7")
    if stamps is True: E("s_mov_b32 s71, s7")
    stamp(3)
    lds_wait(C_BAR, 1, 1, 8, sleep=4)
    E("s_mov_b32 s6, s28")
    lds_wait(C_CNT, 8, 1, 8, sleep=4)
    E("v_and_b32 v3, 15, v0"); E("v_lshlrev_b32 v4, 3, v3"); E(f"ds_read_b64 v[8:9], v4 offset:{MLB}")
    E(f"s_mov_b32 s31, {LOG2E}")
    E("s_waitcnt lgkmcnt(0)")
    E("v_mov_b32 v10, v8"); row_reduce("v_max_f32", 10, (2, 4, 8))
    E("v_sub_f32 v12, v8, v10"); E("v_mul_f32 v12, s31, v12"); E("v_exp_f32 v12, v12"); E("v_mul_f32 v11, v12, v9")
    row_reduce("v_add_f32", 11, (2, 4, 8))
    E("v_and_b32 v5, 1, v0"); E("v_lshlrev_b32 v5, 5, v5"); E("v_lshrrev_b32 v6, 1, v3"); E("v_lshl_add_u32 v5, v6, 2, v5")
    E(f"ds_write_b32 v5, v12 offset:{FAC}")
    E("s_lshl_b32 s28, s4, 5"); E("s_add_u32 s28, s28, s5"); E("s_lshl_b32 s28, s28, 5"); E(f"s_add_u32 s28, s28, {ML_OFF}")
    E("v_mov_b32 v12, s35"); E("v_mov_b32 v13, s35"); E("v_lshlrev_b32 v4, 4, v0")
    E("v_mov_b32 v6, s6"); E(f"ds_write_b32 v1, v6 offset:{C_FAC}")
    E("s_mov_b64 exec, 3")
    intra_store(["buffer_store_dwordx4 v[10:13], v4, s[24:27], s28 offen"])
    E("s_mov_b64 exec, -1")
    E("s_waitcnt lgkmcnt(0)")
    stamp(4)
    E("s_branch L_tailprep")

    E.label("L_s3")
    E("v_lshlrev_b32 v2, 4, v0")
    for k in range(4): E(f"v_mov_b32 v{4+k}, -1")
    E("s_cmp_ge_u32 s5, 9"); E("s_cbranch_scc1 L_noclr")
    E("s_mul_i32 s28, s4, 2304"); E("s_lshl_b32 s29, s5, 8"); E("s_add_u32 s28, s28, s29"); E(f"s_add_u32 s28, s28, {Z_OFF}")
    E("s_mul_i32 s29, s4, 640"); E("s_lshl_b32 s30, s5, 6"); E("s_add_u32 s29, s29, s30"); E(f"s_add_u32 s29, s29, {ST_OFF}")
    E("s_mov_b64 exec, 0xffff"); E("buffer_store_dwordx4 v[4:7], v2, s[24:27], s28 offen sc1")
    E("s_mov_b64 exec, 15"); E("buffer_store_dwordx4 v[4:7], v2, s[24:27], s29 offen sc1"); E("s_mov_b64 exec, -1")
    E.label("L_noclr")
    E("s_getreg_b32 s29, hwreg(HW_REG_XCC_ID)"); E("s_and_b32 s29, s29, 15")
    mktag()
    if fb:
        lds_wait(C_VH, 1, 1, 8, sleep=4)
        E("s_lshl_b32 s28, s28, 4"); E("s_or_b32 s29, s29, s28")
    E("v_mov_b32 v8, s29"); E("v_mov_b32 v9, s35")
    E("s_lshl_b32 s28, s4, 5"); E("s_add_u32 s28, s28, s5"); E("s_lshl_b32 s28, s28, 3"); E(f"s_add_u32 s28, s28, {FL_OFF}")
    E("s_waitcnt vmcnt(0)")
    stamp(1)
    E("s_mov_b64 exec, 1"); E("buffer_store_dwordx2 v[8:9], v1, s[24:27], s28 offen sc1"); E("s_mov_b64 exec, -1")
    if 'q' in dbg: E("s_branch L_svc_end")
    lds_wait(C_Q if NL and not fbl else C_CNT, 1 if NL and not fbl else (fbl or 8), 1, 8, sleep=8)
    E(f"s_mov_b32 s30, {FL_OFF}")
    def barbody():
        E("buffer_load_dwordx4 v[8:11], v2, s[24:27], s30 offen sc1"); E("buffer_load_dwordx4 v[12:15], v2, s[24:27], s30 offen offset:1024 sc1")
        E("s_waitcnt vmcnt(0)")
        tagcheck(16, [9, 11, 13, 15])
    poll(barbody, sl_bar)
    if fb:
        for r in (8, 10, 12, 14): E(f"v_sub_u32 v{r+1}, s29, v{r}"); E(f"v_ashrrev_i32 v{r+1}, 4, v{r+1}")
        E("v_add3_u32 v9, v9, v11, v13"); E("v_add_u32 v9, v9, v15")
        row_reduce("v_add_u32", 9, (1, 2, 4, 8)); swap_reduce("v_add_u32", 9, 11, 16); swap_reduce("v_add_u32", 9, 11, 32)
        E("v_readfirstlane_b32 s30, v9")
        E("s_ashr_i32 s30, s30, 8"); E(f"s_sub_i32 s30, s30, {fbo}"); E(f"s_mul_i32 s30, s30, {fbg}"); E("s_ashr_i32 s30, s30, 8")
        E("s_max_i32 s30, s30, 0"); E("s_min_i32 s30, s30, 8")
        if stamps is True: E("s_mov_b32 s73, s30")
        if fbm: E("s_sub_u32 s30, 8, s30")
        E("s_lshl_b32 s30, s30, 1"); E("s_or_b32 s30, s30, 1"); lds_set(C_KH, 1, 9, "s30")
    E("s_cmp_ge_u32 s4, 4"); E("s_cselect_b64 vcc, -1, 0")
    E("v_cndmask_b32 v8, v8, v12, vcc"); E("v_cndmask_b32 v10, v10, v14, vcc")
    E("v_xor_b32 v8, s29, v8"); E("v_bitop3_b32 v8, v8, v10, s29 bitop3:0xf6"); E("v_and_b32 v8, 15, v8"); E("v_cmp_ne_u32 vcc, 0, v8")
    E("s_and_b32 s30, s4, 3"); E("s_lshl_b32 s30, s30, 4"); E("s_lshr_b64 s[30:31], vcc, s30"); E("s_and_b32 s30, s30, 0xffff")
    E(f"s_cselect_b32 s6, 1, {1 if force_slow else 3}")
    E("v_mov_b32 v8, s6"); E(f"ds_write_b32 v1, v8 offset:{C_BAR}")
    stamp(2)
    E("s_branch L_tailprep")

    E.label("L_stream")
    xd = XD if any(XW) or XN else 0
    if XN:
        E(f"s_mov_b32 s23, {XN[0]}")
        E("s_bitcmp1_b32 s4, 0"); E(f"s_cselect_b32 s28, {XN[2]}, {XN[1]}"); E("s_cmp_ge_u32 s5, 9"); E("s_cselect_b32 s23, s28, s23")
        for lo, n in zip((15, 24), XN[3:5]):
            E(f"s_cmp_ge_u32 s5, {lo}"); E(f"s_cselect_b32 s23, {n}, s23")
        E("s_cmp_eq_u32 s5, 27"); E(f"s_cselect_b32 s23, {XN[5]}, s23")
        E("s_cmp_eq_u32 s2, 255"); E(f"s_cselect_b32 s23, {XN[7]}, s23")
        if XJ: E("s_sub_u32 s28, s2, 224"); E("s_cmp_lt_u32 s28, 6"); E(f"s_cselect_b32 s23, {XJ}, s23")
        E("s_cmp_ge_u32 s5, 18"); E("s_cselect_b32 s28, 18, 9"); E("s_sub_u32 s28, s5, s28"); E("s_cmp_lt_u32 s28, 9"); E("s_cselect_b32 s29, 0, 8")
        E("s_add_u32 s28, s28, s4"); E("s_and_b32 s28, s28, 7"); E("s_add_u32 s28, s28, s29")
        E("s_cmp_eq_u32 s28, 3"); E(f"s_cselect_b32 s28, {XN[6]}, 0"); E("s_add_u32 s23, s23, s28")
    elif xd:
        E(f"s_mov_b32 s23, {XW[0]}")
        for lo, n in zip((9, 15, 24), XW[1:4]):
            E(f"s_cmp_ge_u32 s5, {lo}"); E(f"s_cselect_b32 s23, {n}, s23")
        E("s_cmp_eq_u32 s5, 27"); E(f"s_cselect_b32 s23, {XW[4]}, s23")
        if len(XW) > 5:
            E("s_cmp_ge_u32 s5, 18"); E("s_cselect_b32 s28, 18, 9"); E("s_sub_u32 s28, s5, s28"); E("s_cmp_lt_u32 s28, 9"); E("s_cselect_b32 s29, 0, 8")
            E("s_add_u32 s28, s28, s4"); E("s_and_b32 s28, s28, 7"); E("s_add_u32 s28, s28, s29")
            E("s_cmp_eq_u32 s28, 3"); E(f"s_cselect_b32 s23, {XW[5]}, s23")
    def setscc(): pass
    tp = [0]; XWV = [0]
    def throttle(d):
        thr = [0, 4, 2, 6, 1, 5, 3, 7][(tp[0] // XG) % 8] if not XN else tp[0]; tp[0] += 1
        if xd and thr < ((max(XW) + XWV[0]) if not XN else max(max(XN), XJ, max(XN[1:5]) + XN[6])):
            if thr < (min(XW) if not XN else 0): E(f"s_waitcnt vmcnt({d-1+xd})")
            else:
                a = L("th"); E(f"s_cmp_gt_u32 s23, {thr}"); E(f"s_waitcnt vmcnt({d-1+xd})"); E(f"s_cbranch_scc1 {a}"); E(f"s_waitcnt vmcnt({d-1})"); E.label(a)
        else: E(f"s_waitcnt vmcnt({d-1})")
    for u in range(2 if K0 > 4 else 1, 8): soff(u)
    srd(12, 40, 0x4000000); srd(24, 62, WS_SIZE)
    E(f"s_load_dword s34, s[62:63], {EP_OFF}")
    E("v_lshlrev_b32 v1, 4, v0")
    E("v_bfe_u32 v4, v0, 3, 1"); E("v_lshlrev_b32 v4, 8, v4"); E("v_lshl_add_u32 v36, v3, 4, v4")
    if warm:
        E("s_cmp_lg_u32 s3, 7"); E("s_cbranch_scc1 L_nowarm")
        E("s_mov_b64 exec, 1")
        if 'v' in warm: E(f"buffer_load_dword v5, v1, s[12:15], s{SO(0)} offen nt")
        if 's' in warm: E(f"s_mov_b32 s28, {EP_OFF}"); E("buffer_load_dword v5, v1, s[24:27], s28 offen nt")
        if 'w' in warm:
            E("s_cmp_ge_u32 s5, 18"); E("s_cselect_b32 s16, s50, s48"); E("s_cselect_b32 s17, s51, s49"); E(f"s_mov_b32 s18, {576*9216}"); E("s_mov_b32 s19, 0x20000")
            E("s_mov_b64 exec, 15"); E(f"v_mul_u32_u24 v6, {191*9216}, v0"); E("s_lshl_b32 s28, s2, 5")
            E("buffer_load_dword v5, v6, s[16:19], s28 offen nt")
        E("s_mov_b64 exec, -1")
        E.label("L_nowarm")
    stamp(8)
    E("s_barrier")
    stamp(9)
    for i in range(K0, D): kload(i)
    if gateq:
        E("s_cmp_lg_u32 s21, 3"); E("s_cbranch_scc1 L_kgo")
        E("v_mov_b32 v3, 0")
        lds_wait(C_GO, 4, 3, 4, sleep=4)
        E.label("L_kgo")
    setscc()
    for i in range(max(D, K0), 32):
        throttle(D); kload(i)
        if i in (4, 8): stamp(10 + (i == 8))
        if km and i == km:
            E("s_cmp_lg_u32 s21, 3"); E("s_cbranch_scc1 L_nokm"); E("v_mov_b32 v3, 0"); E("v_mov_b32 v4, 1"); E(f"ds_write_b32 v3, v4 offset:{C_NR}"); E.label("L_nokm")
        if fb and i == fb:
            E("s_cmp_lg_u32 s3, 3"); E("s_cbranch_scc1 L_nofb")
            E("s_memrealtime s[28:29]"); E("v_mov_b32 v3, 0"); E("s_waitcnt lgkmcnt(0)"); E("s_or_b32 s28, s28, 1"); E("v_mov_b32 v4, s28"); E(f"ds_write_b32 v3, v4 offset:{C_VH}")
            E.label("L_nofb")
        if kh and i == kh: E("v_mov_b32 v3, 0"); E("v_mov_b32 v4, 1"); E(f"ds_write_b32 v3, v4 offset:{C_KH}")
    stamp(1)
    if NL:
        E(f"s_mov_b32 s22, {SLOT_A}"); E("s_cmp_lt_u32 s5, 9"); E(f"s_cselect_b32 s22, {SLOT_B}, s22"); E(f"s_mul_i32 s28, s3, {NL*1024}"); E("s_add_u32 s22, s22, s28")
        for i in range(NL):
            if i % 4 == 0: E(f"s_add_u32 m0, s22, {i*1024}")
            throttle(D); vload(i)
            if kh == 32 + i: E("v_mov_b32 v3, 0"); E("v_mov_b32 v4, 1"); E(f"ds_write_b32 v3, v4 offset:{C_KH}")
    stamp(12)
    E("v_mov_b32 v2, 0")
    if 'q' not in dbg: lds_wait(C_Q, 1, 2, 3)
    if XL:
        E("s_cmp_eq_u32 s28, 1"); E(f"s_cselect_b32 s28, {XL}, 0"); E("s_add_u32 s23, s23, s28")
        XWV[0] = XL
    E(f"ds_read_b128 v[20:23], v36 offset:{QBUF}")
    E(f"s_mov_b32 s30, {SCALE}"); E(f"s_mov_b32 s31, {LOG2E}")
    E("v_mov_b32 v36, 0xff800000")
    mktag()
    stamp(2)
    setscc()
    st = dict(issued=NL)
    def qk_mfma(u):
        n = (28 - 4*u) + st['issued']
        if n < D + xd + st['issued'] and n < 63: E(f"s_waitcnt vmcnt({n})")
        for i in range(4*u, 4*u+4):
            E(f"v_mfma_f32_16x16x32_bf16 v[{SL(i)}:{SL(i)+3}], v[{SL(i)}:{SL(i)+3}], v[20:23], 0")
    def qk_post(u):
        if 'c' in dbg: return
        T = [24, 25, 26, 27]
        for k in range(4):
            for a in range(4):
                r = SL(4*u + a) + k
                if k == 0: E(f"v_mov_b32_dpp v{T[a]}, v{r} quad_perm:[0,0,0,0] row_mask:0xf bank_mask:0xf")
                else: E(f"v_add_f32_dpp v{T[a]}, v{r}, v{T[a]} quad_perm:[{k},{k},{k},{k}] row_mask:0xf bank_mask:0xf")
        E("v_cvt_pk_bf16_f32 v28, v24, v25"); E("v_cvt_pk_bf16_f32 v29, v26, v27")
        E("v_lshlrev_b32 v24, 16, v28"); E("v_and_b32 v25, 0xffff0000, v28")
        E("v_lshlrev_b32 v26, 16, v29"); E("v_and_b32 v27, 0xffff0000, v29")
        for a in range(4): E(f"v_mul_f32 v{T[a]}, s30, v{T[a]}")
        E(f"v_cvt_pk_bf16_f32 v{4+2*u}, v24, v25"); E(f"v_cvt_pk_bf16_f32 v{5+2*u}, v26, v27")
        E("v_max3_f32 v36, v24, v25, v36"); E("v_max3_f32 v36, v26, v27, v36")
    def vissue(d=None):
        i = st['issued']
        d = DV if d is None else d
        throttle(d); vload(i); st['issued'] += 1
        if i == v2: E("s_mov_b64 exec, 2"); E(f"ds_write_b32 v1, v1 offset:{C_V2-16}"); E("s_mov_b64 exec, -1")
        if fb and i == fbv:
            E(f"ds_read_b32 v2, v1 offset:{C_KH}"); E("s_waitcnt lgkmcnt(0)"); E("v_readfirstlane_b32 s28, v2"); E("s_lshr_b32 s28, s28, 1"); E("s_sub_u32 s28, 8, s28" if fbm else "s_nop 0"); E("s_add_u32 s23, s23, s28"); XWV[0] = 8
        if i == kv and not fb:
            E("s_mov_b64 exec, 2"); E(f"ds_write_b32 v1, v1 offset:{C_VH-16}"); E("s_mov_b64 exec, -1")
    def expo(k):
        if 'c' in dbg: return
        E(f"v_lshlrev_b32 v24, 16, v{4+k}"); E(f"v_and_b32 v25, 0xffff0000, v{4+k}")
        E("v_fma_f32 v24, v24, s31, -v37"); E("v_fma_f32 v25, v25, s31, -v37")
        E("v_exp_f32 v24, v24"); E("v_exp_f32 v25, v25")
        E("v_add_f32 v38, v38, v24"); E("v_add_f32 v39, v39, v25")
        E(f"v_cvt_pk_bf16_f32 v{4+k}, v24, v25")
    qk_mfma(0); qk_mfma(1); qk_post(0)
    if qs == 0:
        for _ in range(4): vissue(DQ)
        qk_mfma(2); qk_post(1)
        for _ in range(1 if DQ <= 4 else 4): vissue(DQ)
        for u in range(3, 8):
            qk_mfma(u); qk_post(u-1)
            if DQ > 4 or u % 2 == 0: vissue(DQ)
    else:
        vissue(DQ); vissue(DQ)
        for u in range(2, 8):
            qk_mfma(u); qk_post(u-1)
            if u % 2 == 1: vissue(DQ)
    qk_post(7)
    if NL:
        E(f"s_waitcnt vmcnt({st['issued'] - NL})"); E("v_add_u32 v3, s22, v1")
        for i in range(NL): E(f"ds_read_b128 v[{VS(i)}:{VS(i)+3}], v3 offset:{i*1024}")
    swap_reduce("v_max_f32", 36, 24, 16); swap_reduce("v_max_f32", 36, 24, 32)
    rnd(36, 36)
    E("v_mul_f32 v37, s31, v36"); E("v_mov_b32 v38, 0"); E("v_mov_b32 v39, 0")
    for k in range(16):
        if k % (4 if qs == 0 else 6) == (0 if qs == 0 else 2): vissue(DQ)
        expo(k)
    E("v_add_f32 v37, v38, v39")
    swap_reduce("v_add_f32", 37, 24, 16); swap_reduce("v_add_f32", 37, 24, 32)
    E("s_lshl_b32 s28, s3, 4"); E("v_add_u32 v3, s28, v0"); E("v_mov_b32 v24, 1")
    E("s_mov_b64 exec, 0x101"); E(f"ds_write_b64 v3, v[36:37] offset:{MLB}")
    E("s_mov_b64 exec, 1"); E(f"ds_add_u32 v2, v24 offset:{C_CNT}")
    E("s_mov_b64 exec, -1")
    stamp(3)
    E("v_and_b32 v3, 1, v0"); E("v_cmp_eq_u32 vcc, 1, v3")
    E("v_mov_b32 v32, 0x0c0c0100"); E("v_mov_b32 v33, 0x01000c0c"); E("v_cndmask_b32 v32, v32, v33, vcc")
    E("v_mov_b32 v34, 0x0c0c0302"); E("v_mov_b32 v33, 0x03020c0c"); E("v_cndmask_b32 v33, v34, v33, vcc")
    E("v_bfe_u32 v3, v0, 1, 2"); E("v_mov_b32 v34, 0x0c0c0c0c")
    for r in range(4):
        E(f"v_cmp_eq_u32 vcc, {r}, v3"); E(f"v_cndmask_b32 v{24+r}, v34, v32, vcc"); E(f"v_cndmask_b32 v{28+r}, v34, v33, vcc")
    E("v_and_b32 v3, 15, v0"); E("v_lshlrev_b32 v3, 5, v3"); E("v_bfe_u32 v2, v0, 4, 1"); E("v_lshl_add_u32 v3, v2, 4, v3")
    E("v_lshrrev_b32 v2, 5, v0"); E("v_lshl_add_u32 v3, v2, 9, v3"); E("s_lshl_b32 s28, s3, 10"); E("v_add_u32 v3, s28, v3")
    setscc()
    if NL: E("s_waitcnt lgkmcnt(0)")
    pv = dict(done=0)
    def pv_prep(i):
        A0 = 32 + 4 * (i & 1)
        for r in range(4): E(f"v_perm_b32 v{A0+r}, v{4+i//2}, v{4+i//2}, v{24+4*(i&1)+r}")
    def pv_mfma(i):
        A0 = 32 + 4 * (i & 1)
        c = "0" if i == 0 else "v[20:23]"
        E(f"v_mfma_f32_16x16x32_bf16 v[20:23], v[{A0}:{A0+3}], v[{VS(i)}:{VS(i)+3}], {c}")
    while st['issued'] < 32:
        vissue(DV - (1 if fbm and st['issued'] > fbv else 0) + (DE if st['issued'] >= 32 - NE else 0))
        n = 0
        while pv['done'] <= st['issued'] - 1 - DV - xd - (DE if st['issued'] > 32 - NE else 0) and n < 4:
            pv_prep(pv['done']); pv_mfma(pv['done']); pv['done'] += 1; n += 1
    E("v_mov_b32 v2, 0")
    if N2: lds_inc(C_GT, 2, 4)
    lds_wait(C_FAC, 1, 2, 4, sleep=1)
    E("s_mov_b32 s6, s28"); E("s_lshl_b32 s28, s3, 2")
    E("v_and_b32 v4, 32, v0"); E("v_add_u32 v4, s28, v4"); E(f"ds_read_b32 v5, v4 offset:{FAC}")
    tagbyte(6, 0)
    E("v_mov_b32 v4, 1")
    E("s_lshl_b32 s29, s4, 5"); E("s_add_u32 s29, s29, s5"); E("s_lshl_b32 s29, s29, 10")
    assert pv['done'] >= 6
    while pv['done'] < 32:
        i = pv['done']
        pv_prep(i)
        if 31 - i < DV + xd + DE: E(f"s_waitcnt vmcnt({31-i})")
        pv_mfma(i); pv['done'] += 1
    E("s_waitcnt lgkmcnt(0)")
    for k in range(4): E(f"v_mul_f32 v{20+k}, v5, v{20+k}")
    E(f"ds_write_b128 v3, v[20:23] offset:{OBUF}")
    E("s_mov_b64 exec, 1"); E(f"ds_add_rtn_u32 v4, v2, v4 offset:{C_OC}"); E("s_mov_b64 exec, -1")
    for w in range(8): E(f"ds_read_b128 v[{40+4*w}:{43+4*w}], v1 offset:{OBUF + w*1024}")
    if stamps is True: stamp(4)
    E("s_waitcnt lgkmcnt(8)")
    E("v_readfirstlane_b32 s28, v4"); E("s_cmp_lg_u32 s28, 7"); E("s_cbranch_scc1 L_noreduce")
    E.label("L_reduce")
    PK = lambda d, x, y: (E(f"v_pk_add_f32 v[{d}:{d+1}], v[{x}:{x+1}], v[{y}:{y+1}]"), E(f"v_pk_add_f32 v[{d+2}:{d+3}], v[{x+2}:{x+3}], v[{y+2}:{y+3}]"))
    E("s_waitcnt lgkmcnt(6)"); PK(40, 40, 44)
    E("s_waitcnt lgkmcnt(4)"); PK(48, 48, 52); PK(40, 40, 48)
    E("s_waitcnt lgkmcnt(2)"); PK(56, 56, 60); PK(40, 40, 56)
    E("s_waitcnt lgkmcnt(0)"); PK(64, 64, 68); PK(40, 40, 64)
    settag(40, 6)
    intra_store(["buffer_store_dwordx4 v[40:43], v1, s[24:27], s29 offen"])
    if oack: live("s_waitcnt vmcnt(0)")
    lds_set(C_OC, 2, 4, 9)
    stamp(5)
    E.label("L_noreduce")
    if 't' in dbg: E("s_branch L_sdone")
    E(f"s_sub_u32 s28, s5, {JW2}"); E("s_cmp_ge_u32 s28, 9"); E("s_cbranch_scc1 L_sdone")
    E("s_cmp_ge_u32 s3, 5"); E("s_cbranch_scc1 L_sdone")
    E("s_lshl_b32 s28, s3, 6"); E("v_add_u32 v2, s28, v0"); E("v_min_u32 v2, 287, v2")
    tagbyte(22, 2)
    E("v_lshlrev_b32 v1, 4, v2")
    E("v_lshlrev_b32 v2, 2, v2")
    E("s_mul_i32 s18, s4, 9216"); E(f"s_add_u32 s18, s18, {G_OFF}"); E("s_add_u32 s19, s18, 4608")
    E(f"v_mov_b32 v8, {LOG2E ^ 0x80000000}"); E("v_mov_b32 v9, v8"); E("v_mov_b32 v10, 1.0"); E("v_mov_b32 v11, 1.0")
    E("v_mov_b32 v3, 0")
    Rh = lambda t: 40 + 8 * t
    def gloads(t):
        E(f"buffer_load_dwordx4 v[{Rh(t)}:{Rh(t)+3}], v1, s[24:27], s18 offen sc1"); E(f"buffer_load_dwordx4 v[{Rh(t)+4}:{Rh(t)+7}], v1, s[24:27], s19 offen sc1")
    E("s_cbranch_execz L_hgo")
    lds_wait(C_D2, 4, 3, 4, sleep=2)
    if hg:
        gloads(0)
        lds_wait(C_G, 1, 3, 4, sleep=1)
        E("s_waitcnt vmcnt(0)")
    E.label("L_hgo")
    stamp(6)
    def gfin(t):
        g, u = Rh(t), Rh(t) + 4
        E(f"v_pk_mul_f32 v[4:5], v[{g}:{g+1}], v[8:9]"); E(f"v_pk_mul_f32 v[6:7], v[{g+2}:{g+3}], v[8:9]")
        E(f"v_pk_mul_f32 v[16:17], v[{u}:{u+1}], v[{g}:{g+1}]"); E(f"v_pk_mul_f32 v[18:19], v[{u+2}:{u+3}], v[{g+2}:{g+3}]")
    ppoll(PG, 2, gloads, lambda t: lowcheck(20, [Rh(t), Rh(t)+2, Rh(t)+4, Rh(t)+6], 22), gfin)
    for e in range(4): E(f"v_exp_f32 v{4+e}, v{4+e}")
    E("v_pk_add_f32 v[4:5], v[4:5], v[10:11]"); E("v_pk_add_f32 v[6:7], v[6:7], v[10:11]")
    for e in range(4): E(f"v_rcp_f32 v{4+e}, v{4+e}")
    E("v_pk_mul_f32 v[16:17], v[16:17], v[4:5]"); E("v_pk_mul_f32 v[18:19], v[18:19], v[6:7]")
    E("v_cvt_pk_bf16_f32 v12, v16, v18"); E("v_cvt_pk_bf16_f32 v13, v17, v19")
    E(f"ds_write_b32 v2, v12 offset:{ACT0}"); E(f"ds_write_b32 v2, v13 offset:{ACT1}")
    E("s_waitcnt lgkmcnt(0)")
    E("s_cbranch_execz L_ret_s")
    E("s_barrier")
    stamp(7)
    E.label("L_sdone")
    E("s_cbranch_execz L_ret_s")
    stamp_flush(); E("s_endpgm")

    E.label("L_tailprep")
    E("s_mov_b64 s[88:89], -1")
    if reh:
        E("s_cmp_lg_u32 s3, 2"); E("s_cbranch_scc1 L_tp2")
        E("s_mov_b32 s6, 3"); E("s_mov_b32 s29, 0"); E("v_mov_b32 v2, 0")
        walk("L_reduce", "L_ret_s")
        E.label("L_tp2")
    else:
        E.label("L_ret_s")
    E("s_cmp_lt_u32 s5, 27"); E("s_cbranch_scc1 L_tail1")
    E("s_sub_u32 s28, s2, 224"); E("s_cmp_ge_u32 s28, 6"); E("s_cbranch_scc1 L_svc_end")
    lds_wait(C_GO, 4, 1, 8, sleep=4)
    if lj == 0: lds_wait(C_OC, ko, 1, 8, sleep=2)
    elif lj == 1: lds_wait(C_CNT, 8, 1, 8, sleep=4)
    elif lj == 2: lds_wait(C_V2, 1, 1, 8, sleep=4)
    E("s_mov_b32 s21, 2"); E("s_add_u32 s22, s4, 48"); E("s_mov_b32 s18, 8"); E("s_branch L_job")
    E.label("L_tail1")
    E("s_cmp_lt_u32 s5, 9"); E("s_cbranch_scc1 L_owner")

    def wsetup():
        op_addrs()
        E("s_mul_i32 s28, s3, 2304"); E(f"s_add_u32 s28, s28, {ZBUF}")
        E("v_mov_b32 v8, s28"); E(f"v_mov_b32 v9, {CBUF}"); E(f"v_mov_b32 v10, {SBUF}")
        E("v_cmp_eq_u32 vcc, 1, v6"); E("v_cndmask_b32 v4, v8, v9, vcc"); E("v_cmp_eq_u32 vcc, 2, v6"); E("v_cndmask_b32 v4, v4, v10, vcc")
        E("v_bfe_u32 v7, v0, 2, 1"); E("v_mul_u32_u24 v7, 1152, v7"); E("v_lshl_add_u32 v7, v5, 4, v7"); E("v_add_u32 v4, v4, v7")
        E("v_and_b32 v3, 1, v0"); E("v_xor_b32 v3, 1, v3"); E(f"v_mul_u32_u24 v3, {ACT0-ACT1}, v3"); E("v_lshl_add_u32 v3, v5, 4, v3")
        E("s_sub_u32 s30, s5, 9"); E("s_lshl_b32 s30, s30, 2"); E("s_add_u32 s30, s30, s3")
        E("s_lshl_b32 @S0@, s30, 7"); E("s_mul_i32 s29, s4, 9216"); E("s_add_u32 @S0@, @S0@, s29"); E(f"s_add_u32 @S0@, @S0@, {G_OFF}")
        E("s_mul_i32 @S1@, s4, 2304"); E(f"s_add_u32 @S1@, @S1@, {Z_OFF}")
        E("s_mul_i32 @S3@, s4, 640"); E(f"s_add_u32 @S3@, @S3@, {ST_OFF}")
        E(f"s_sub_u32 s30, s5, {JW2}"); E("s_lshl_b32 s30, s30, 2"); E("s_add_u32 s30, s30, s3"); E("s_lshl_b32 s30, s30, 7")
        E("s_lshl_b32 @S2@, s4, 14"); E("s_add_u32 @S2@, @S2@, s30"); E(f"s_add_u32 @S2@, @S2@, {Y_OFF}"); E("s_add_u32 @S6@, @S2@, 8192")
        E("v_lshlrev_b32 v12, 4, v0"); E("v_min_u32 v13, 15, v0"); E("v_lshlrev_b32 v13, 4, v13")
        E("v_add_u32 v14, s28, v12"); E("v_add_u32 v15, s28, v13")
        E("v_and_b32 v8, 15, v0"); E("v_lshrrev_b32 v9, 5, v0"); E("v_lshl_add_u32 v9, v9, 4, v8"); E("v_cmp_gt_u32 s[32:33], 18, v9")
        E("v_min_u32 v9, 17, v9"); E("v_bfe_u32 v10, v0, 4, 1"); E("v_mul_u32_u24 v11, 288, v10"); E("v_lshl_add_u32 v16, v9, 4, v11")
        E("v_lshlrev_b32 v7, 3, v0")
        E("s_mov_b32 @S4@, 0x3ae38e39"); E("s_mov_b32 @S5@, 0x3727c5ac")
    if reh:
        E("s_cmp_lg_u32 s3, 1"); E("s_cbranch_scc1 L_now_w")
        wsetup()
        E("s_mov_b32 s6, 3")
        walk("L_wt", "L_ret_w")
        E.label("L_now_w")
    else: E.label("L_ret_w")
    if 't' not in dbg:
        lds_wait(C_Q, 1, 1, 8, sleep=8)
        mktag()
        own_map()
        modgather(1728, 2304)
        for i in range(3):
            E(f"v_add_f32 v{30+2*i}, 1.0, v{30+2*i}"); E(f"v_add_f32 v{31+2*i}, 1.0, v{31+2*i}")
            E(f"v_cvt_pk_bf16_f32 v12, v{30+2*i}, v{31+2*i}"); E(f"v_cvt_pk_bf16_f32 v13, v{24+2*i}, v{25+2*i}")
            a_, o_ = ((10, 0), (10, 128), (11, 0))[i]
            E(f"ds_write_b32 v{a_}, v12 offset:{CBUF+o_}"); E(f"ds_write_b32 v{a_}, v13 offset:{SBUF+o_}")
    lds_wait(C_BAR, 1, 1, 8, sleep=4)
    E("s_mov_b32 s6, s28")
    wsetup()
    E("s_mov_b32 s20, 9216")
    dma_addrs(24, 25, 26)
    E("s_cmp_ge_u32 s5, 18"); E("s_cselect_b32 s8, s50, s48"); E("s_cselect_b32 s9, s51, s49"); E("s_cselect_b32 s28, 18, 9"); E("s_sub_u32 s28, s5, s28")
    E(f"s_mov_b32 s10, {576*9216}"); E("s_mov_b32 s11, 0x20000")
    E("s_mul_i32 s16, s4, 1152"); E("s_lshl_b32 s28, s28, 7"); E("s_add_u32 s16, s16, s28")
    E(f"s_mul_i32 s28, s3, {8*9216}"); E("s_add_u32 s16, s16, s28"); E(f"s_mov_b32 s17, {32*9216}")
    E("s_lshl_b32 s29, s3, 10"); E(f"s_add_u32 s29, s29, {SLOT_A}"); E("s_mov_b32 s19, 9")
    E("s_bitcmp1_b32 s3, 0"); E("s_cselect_b64 vcc, -1, 0"); E("v_cndmask_b32 v24, v24, v25, vcc")
    E("v_lshrrev_b32 v5, 1, v0"); tagbyte(5, 5)

    if tlb:
        E(f"v_mul_u32_u24 v26, {143*9216}, v0"); E("s_mov_b64 exec, 3"); E("buffer_load_dword v27, v26, s[8:11], s16 offen nt"); E("s_mov_b64 exec, -1")
    if NP or NP3:
        E("s_bfe_u32 s30, s16, 0x30007"); E("s_cmp_eq_u32 s30, 3"); E(f"s_cselect_b32 s19, {NP3}, {NP}"); E("s_sub_u32 s31, 9, s19")
        E("s_cmp_eq_u32 s19, 0"); E("s_cbranch_scc1 L_nol1")
        if NL: lds_wait(C_CNT, 8, 1, 8, sleep=4)
        else: lds_wait(C_VH, 1, 1, 8, sleep=4)
        dma_loop("L_dma_l1", DW1, 24, 24, 4096)
        E.label("L_nol1")
        E("s_mov_b32 s19, s31")
    if k1:
        lds_wait(C_OC, k1, 1, 8, sleep=1)
        E(f"s_sub_u32 s31, s19, {N1}"); E(f"s_mov_b32 s19, {N1}"); dma_loop("L_dma_l2", 0, 24, 24, 4096); E("s_mov_b32 s19, s31")
    if N2:
        assert not gate
        lds_wait(C_GT, k2, 1, 8, sleep=1)
        E(f"s_sub_u32 s31, s19, {N2}"); E(f"s_mov_b32 s19, {N2}"); dma_loop("L_dma_l3", 0, 24, 24, 4096); E("s_mov_b32 s19, s31")
    if gate:
        E("s_cmp_lg_u32 s3, 1"); E("s_cbranch_scc1 L_gt2")
        lds_wait(C_VH, 1, 1, 8, sleep=2)
        E(f"s_cmp_lg_u32 s5, {gj}"); E("s_cbranch_scc1 L_gt1")
        E("s_lshl_b32 s28, s4, 7"); E(f"s_add_u32 s28, s28, {PG_OFF}"); E("v_mov_b32 v8, s35")
        E("s_mov_b64 exec, 1"); E("buffer_store_dword v8, v1, s[24:27], s28 offen sc1"); E("s_mov_b64 exec, -1")
        E.label("L_gt1")
        lds_wait(C_OC, gk, 1, 8, sleep=1)
        E(f"s_mov_b32 s30, {PG_OFF}"); E("v_and_b32 v9, 7, v0"); E("v_lshlrev_b32 v9, 7, v9"); E("s_mov_b32 s7, 0")
        E.label("L_gtp")
        E("buffer_load_dword v8, v9, s[24:27], s30 offen sc1"); E("s_waitcnt vmcnt(0)")
        E("v_cmp_eq_u32 vcc, s35, v8"); E("s_bcnt1_i32_b64 s31, vcc")
        E(f"s_cmp_ge_u32 s31, {gate*8}"); E("s_cbranch_scc1 L_gtd")
        E(f"s_sleep {gsl}"); E("s_add_u32 s7, s7, 1"); E(f"s_cmp_lt_u32 s7, {plim}"); E("s_cbranch_scc1 L_gtp")
        E.label("L_gtd")
        lds_set(C_GT, 1, 8, 1)
        E.label("L_gt2")
        lds_wait(C_GT, 1, 1, 8, sleep=2)
    lds_wait(C_OC, ko, 1, 8, sleep=1)
    stamp(5)
    if 'w' not in dbg: dma_loop("L_dma_late", DW, 24, 24, 4096)
    if 't' in dbg:
        E("s_waitcnt vmcnt(0)"); stamp(6); E("s_branch L_svc_end")
    def zloads():
        E("buffer_load_dwordx4 v[84:87], v12, s[24:27], @S1@ offen sc1"); E("buffer_load_dwordx4 v[88:91], v12, s[24:27], @S1@ offen offset:1024 sc1")
        E("buffer_load_dwordx4 v[92:95], v13, s[24:27], @S1@ offen offset:2048 sc1"); E("buffer_load_dwordx4 v[20:23], v16, s[24:27], @S3@ offen sc1")
    if KA:
        E(f"s_waitcnt vmcnt({18-KA})")
        soft_barrier(C_D1, 1, 8, sleep=0)
    E.label("L_wt")
    if KA: stage_b(SLOT_A, KA, wait=False, t=9)
    E(f"s_waitcnt vmcnt({ZL})")
    zloads()
    E("s_cbranch_execz L_wt2")
    E("s_waitcnt vmcnt(4)")
    soft_barrier(C_D2, 1, 8, sleep=0)
    stamp(6)
    E.label("L_wt2")
    stage_b(SLOT_A, 18, wait=False, k0=KA, t=9)
    stamp(7)
    E("s_mov_b32 s7, 0"); E("s_branch L_zchk")
    E.label("L_zpl")
    zloads()
    E.label("L_zchk")
    E("s_waitcnt vmcnt(1)")
    E("ds_write_b128 v14, v[84:87]"); E("ds_write_b128 v14, v[88:91] offset:1024"); E("ds_write_b128 v15, v[92:95] offset:2048")
    NSP = 8
    for k in range(NSP): E(f"ds_read_b128 v[{AT(k)}:{AT(k)+3}], v4 offset:{k*64}")
    E("v_max3_u32 v8, v84, v85, v86"); E("v_max3_u32 v9, v87, v88, v89"); E("v_max3_u32 v10, v90, v91, v92"); E("v_max3_u32 v11, v93, v94, v95")
    E("v_max3_u32 v8, v8, v10, v11")
    E("s_waitcnt vmcnt(0)")
    E("v_max3_u32 v9, v9, v20, v21"); E("v_max3_u32 v8, v8, v22, v23"); E("v_max_u32 v8, v8, v9"); E("v_cmp_eq_u32 vcc, -1, v8")
    E("s_cbranch_vccz L_zok")
    E("s_add_u32 s7, s7, 1"); E(f"s_cmp_lt_u32 s7, {plim}"); E("s_cbranch_scc1 L_zpl")
    E.label("L_zok")
    stamp(8)
    F = ["v_add_f32 v18, v20, v22", "v_add_f32 v19, v21, v23", "v_cndmask_b32 v18, 0, v18, s[32:33]", "v_cndmask_b32 v19, 0, v19, s[32:33]"]
    for k in (1, 2, 4, 8):
        F += [f"v_add_f32_dpp v{r}, v{r}, v{r} row_ror:{k} row_mask:0xf bank_mask:0xf" for r in (18, 19)]
    F += ["v_mov_b32 v20, v18", "v_mov_b32 v21, v19", "v_permlane32_swap_b32 v18, v20", "v_permlane32_swap_b32 v19, v21", "v_add_f32 v18, v18, v20", "v_add_f32 v19, v19, v21"]
    R = lambda r: [f"v_cvt_pk_bf16_f32 v{r}, v{r}, v{r}", f"v_and_b32 v{r}, 0xffff0000, v{r}"]
    F += ["v_mul_f32 v18, @S4@, v18", "v_mul_f32 v19, @S4@, v19", "v_fma_f32 v19, -v18, v18, v19", "v_max_f32 v19, 0, v19"] + R(19)
    F += ["v_add_f32 v19, @S5@, v19"] + R(19) + ["v_sqrt_f32 v19, v19"] + R(18) + R(19) + ["v_rcp_f32 v19, v19"]
    gemv(4, 0, 18, 8, F, pre=NSP)
    E("v_fma_f32 v8, -v18, v9, v8"); E("v_fma_f32 v8, v8, v19, v10")
    E("v_mov_b32 v9, v8"); E("v_permlane16_swap_b32 v8, v9")
    settag(8, 5)
    E(X(0xffff))
    intra_store(["buffer_store_dwordx2 v[8:9], v7, s[24:27], @S0@ offen"])
    E(X(2)); E(f"ds_write_b32 v7, v7 offset:{C_G-8}"); E(X(-1))
    stamp(13)
    E(f"s_sub_u32 s28, s5, {JW2}"); E("s_cmp_ge_u32 s28, 9"); E("s_cbranch_scc1 L_wend")
    stage_b(SLOT_B, 18)
    tagbyte(5, 0)
    live("s_barrier")
    stamp(14)
    gemv(3, ACT1, 18, 8)
    settag(8, 5)
    E(X(0xffff))
    E("buffer_store_dwordx2 v[8:9], v7, s[24:27], @S2@ offen sc1")
    if numa: E("buffer_store_dwordx2 v[8:9], v7, s[24:27], @S6@ offen sc1")
    stamp(15)
    E.label("L_wend")
    E("s_cbranch_execz L_ret_w")
    E("s_branch L_svc_end")

    E.label("L_owner")
    if 't' in dbg: E("s_waitcnt vmcnt(0)"); E("s_branch L_svc_end")
    E("s_waitcnt vmcnt(0)")
    lds_inc(C_D1, 1, 8)
    mktag()
    op_addrs()
    E("s_lshl_b32 s22, s5, 2"); E("s_add_u32 s22, s22, s3")
    E("v_and_b32 v6, 15, v0"); E("v_bfe_u32 v7, v0, 4, 1"); E("v_lshrrev_b32 v20, 4, v0"); E("v_lshlrev_b32 v20, 14, v20"); E("v_lshl_add_u32 v20, v6, 3, v20")
    E("v_mul_u32_u24 v21, 1152, v7"); E("v_lshl_add_u32 v21, v6, 1, v21")
    E("v_mul_u32_u24 v22, 288, v7")
    E("v_lshlrev_b32 v23, 3, v6")
    E("v_cmp_eq_u32 vcc, 0, v7"); E("v_mov_b32 v19, 0x03020c0c"); E("v_mov_b32 v6, 0x01000c0c"); E("v_cndmask_b32 v19, v19, v6, vcc")
    E("s_lshl_b32 s23, s22, 5")
    srd(8, 36, 2304); srd(12, 58, 2304)
    E("s_lshl_b32 s28, s22, 7"); E(f"s_add_u32 s32, s28, {MOD_OFF + 1152*8}"); E(f"s_add_u32 s33, s32, {1152*8}"); E(f"s_add_u32 s19, s33, {576*8}")
    E("s_lshl_b32 s29, s4, 14"); E("s_add_u32 s29, s29, s28")
    E(f"s_add_u32 s18, s29, {X_OFF}"); E(f"s_add_u32 s{SO(4)}, s18, 8192")
    XS = SO
    for k in range(4): E(f"s_add_u32 s{XS(k)}, s28, {(X_OFF, X_OFF + 4*16384, Y_OFF, Y_OFF + 4*16384)[k]}")
    E("s_mul_i32 s20, s4, 2304"); E("s_add_u32 s20, s20, s23"); E(f"s_add_u32 s20, s20, {Z_OFF}")
    E("s_mul_i32 s21, s4, 640"); E("s_lshl_b32 s28, s22, 3"); E("s_add_u32 s21, s21, s28"); E(f"s_add_u32 s21, s21, {ST_OFF}")
    E("s_lshl_b32 s28, s4, 5"); E("s_lshl_b32 s29, s3, 3"); E("s_add_u32 s28, s28, s29")
    E("s_lshl_b32 s16, s28, 10"); E("s_add_u32 s17, s16, 4096")
    E("v_lshlrev_b32 v7, 3, v0"); E("v_mov_b32 v6, 0")
    if reh:
        E("s_cmp_lg_u32 s3, 1"); E("s_cbranch_scc1 L_now_o")
        E("s_mov_b32 s6, 3")
        walk("L_ot", "L_ret_o")
        E.label("L_now_o")
    else: E.label("L_ret_o")
    if numa:
        E("s_cmp_lg_u32 s3, 2"); E("s_cbranch_scc1 L_nonuma")
        E("s_lshl_b32 s28, s4, 14"); E("s_lshl_b32 s29, s5, 8"); E("s_add_u32 s28, s28, s29"); E(f"s_add_u32 s28, s28, {X_OFF + 4608}")
        NPR = 4
        for k in range(NPR):
            E(f"s_add_u32 s{36+2*k}, s28, {(k & 1) * 0x20000 + (k >> 1) * 1152}"); E(f"s_add_u32 s{37+2*k}, s{36+2*k}, 8192")
        for k in range(2 * NPR): E(f"s_buffer_load_dword s{44+k}, s[24:27], s{36+k} glc")
        E("s_mov_b32 s30, 0"); E("s_mov_b32 s31, 0")
        E("s_waitcnt lgkmcnt(0)")
        E.label("L_numa")
        for k in range(NPR):
            order = (0, 1) if k & 1 else (1, 0)
            sec = order[1]
            E(f"s_not_b32 s{52+sec}, s{44+2*k+sec}")
            for c in order: E(f"s_buffer_load_dword s{52+c}, s[24:27], s{36+2*k+c} glc")
            E("s_waitcnt lgkmcnt(1)"); E("s_nop 7")
            E(f"s_cmp_{'eq' if sec else 'lg'}_u32 s{52+sec}, s{44+2*k+sec}"); E("s_addc_u32 s30, s30, 0")
            E("s_waitcnt lgkmcnt(0)")
        E("s_add_u32 s31, s31, 1"); E(f"s_cmp_lt_u32 s31, {NRR}"); E("s_cbranch_scc1 L_numa")
        if pool:
            E("s_lshl_b32 s31, s4, 7"); E(f"s_add_u32 s31, s31, {VT_OFF}"); E("s_lshl_b32 s29, s5, 3"); E("s_add_u32 s29, s29, s31")
            E("v_mov_b32 v24, s30"); E("v_mov_b32 v25, s35")
            E("s_mov_b64 exec, 1"); E("buffer_store_dwordx2 v[24:25], v1, s[24:27], s29 offen sc1"); E("s_mov_b64 exec, -1")
            lds_wait(C_CNT, 8, 1, 8, sleep=8)
            E("v_min_u32 v26, 64, v23")
            def vtbody():
                E("buffer_load_dwordx2 v[24:25], v26, s[24:27], s31 offen sc1"); E("s_waitcnt vmcnt(0)"); tagcheck(27, [25])
            poll(vtbody, 16)
            E("v_cmp_gt_u32 vcc, 72, v23"); E("v_cndmask_b32 v24, 0, v24, vcc")
            row_reduce("v_add_u32", 24, (1, 2, 4, 8))
            E("v_readfirstlane_b32 s30, v24")
        if stamps is True: E("s_mov_b32 s71, s30"); stamp(2)
        E(f"s_cmp_gt_u32 s30, {(9 if pool else 1)*NPR*NRR//2}"); E(f"s_cselect_b32 s30, {8193 if numa == 1 else 1}, {1 if numa == 1 else 8193}")
        lds_set(C_NR, 1, 8, "s30")
        E.label("L_nonuma")
    lds_wait(C_BAR, 1, 1, 8, sleep=8)
    E("s_mov_b32 s6, s28")
    lds_wait(C_D1, 4, 1, 8, sleep=4)
    stage_b(SLOT_A, 16)
    E("buffer_load_ushort v16, v21, s[8:11], s23 offen")
    def gabody():
        for k in range(2): E(f"buffer_load_dwordx2 v[{24+2*k}:{25+2*k}], v23, s[24:27], s{32+k} offen sc1")
        E("s_waitcnt vmcnt(0)")
        tagcheck(6, [25, 27])
    poll(gabody, 8)
    for k in range(2): E(f"v_perm_b32 v{17+k}, v{24+2*k}, v{24+2*k}, v19")
    E("v_lshlrev_b32 v16, 16, v16"); E("v_add_f32 v18, 1.0, v18"); rnd(18, 18)
    E("v_lshlrev_b32 v5, 4, v0")
    E("s_lshr_b32 s28, s3, 1"); E("s_mul_i32 s28, s28, 1152"); E("s_and_b32 s29, s3, 1"); E("s_lshl_b32 s29, s29, 9"); E("s_add_u32 s28, s28, s29")
    E("v_add_u32 v6, s28, v7")
    lds_wait(C_V2, 1, 1, 8, sleep=8)
    E("s_lshl_b32 s28, s4, 5"); E("s_lshl_b32 s29, s3, 3"); E("s_add_u32 s28, s28, s29")
    E("s_lshl_b32 s28, s28, 5"); E(f"s_add_u32 s28, s28, {ML_OFF}")
    E("v_and_b32 v28, 15, v0"); E("v_lshlrev_b32 v28, 4, v28")
    def mlbody():
        E("buffer_load_dwordx4 v[24:27], v28, s[24:27], s28 offen sc1"); E("s_waitcnt vmcnt(0)"); tagcheck(29, [26])
    tagbyte(4, 0)
    poll(mlbody, sl_ml)
    E(f"s_mov_b32 s31, {LOG2E}")
    E("v_mov_b32 v27, v24"); row_reduce("v_max_f32", 27, (2, 4, 8))
    E("v_sub_f32 v27, v24, v27"); E("v_mul_f32 v27, s31, v27"); E("v_exp_f32 v27, v27"); E("v_mul_f32 v28, v27, v25")
    row_reduce("v_add_f32", 28, (2, 4, 8))
    E("v_rcp_f32 v28, v28"); E("v_lshrrev_b32 v26, 5, v0"); E("v_lshlrev_b32 v26, 2, v26"); E("v_mul_f32 v27, v27, v28")
    for s_ in range(8): E(f"ds_bpermute_b32 v{8+s_}, v26, v27 offset:{8*s_}")
    E("s_waitcnt lgkmcnt(0)")
    if numa:
        lds_wait(C_NR, 1, 1, 24, sleep=4)
        E("s_sub_u32 s28, s28, 1"); E("v_add_u32 v20, s28, v20")
    stamp(6)
    lds_wait(C_OC, 8, 1, 24, sleep=1)
    stamp(7)
    E.label("L_ot")
    def obody():
        for s in range(8): E(f"buffer_load_dwordx4 v[{24+4*s}:{27+4*s}], v5, s[24:27], s{16 + s//4} offen offset:{(s%4)*1024} sc1")
        for s in range(8):
            E(f"s_waitcnt vmcnt({7-s})")
            E(f"v_xor_b32 v{24+4*s}, v4, v{24+4*s}")
            for k in (1, 2, 3, 0):
                if s == 0: E(f"v_mul_f32 v{56+k}, v8, v{24+k}")
                else: E(f"v_fmac_f32 v{56+k}, v{8+s}, v{24+4*s+k}")
            if s == 2: E("v_or3_b32 v60, v24, v28, v32")
            if s in (4, 6): E(f"v_or3_b32 v60, v60, v{20+4*s}, v{24+4*s}")
        E("v_cvt_pk_bf16_f32 v56, v56, v57"); E("v_cvt_pk_bf16_f32 v57, v58, v59")
        E(f"ds_write_b64 v6, v[56:57] offset:{ABUF}")
        E("v_or_b32 v60, v60, v52"); E("v_and_b32 v60, 0xfff, v60"); E("v_cmp_ne_u32 vcc, 0, v60")
    poll(obody, sl_o)
    stamp(8)
    E("s_waitcnt lgkmcnt(0)")
    live("s_barrier")
    gemv(3, ABUF, 16, 8)
    settag(8, 4)
    E(X(0xffff))
    E("buffer_store_dwordx2 v[8:9], v7, s[24:27], s18 offen sc1")
    if numa: E(f"buffer_store_dwordx2 v[8:9], v7, s[24:27], s{SO(4)} offen sc1")
    E(X(-1))
    stamp(9)
    def gather8(base):
        Rg = lambda t: 32 + 4 * t
        def loads(t):
            E(f"buffer_load_dwordx2 v[{Rg(t)}:{Rg(t)+1}], v20, s[24:27], s{XS(base)} offen sc1")
            E(f"buffer_load_dwordx2 v[{Rg(t)+2}:{Rg(t)+3}], v20, s[24:27], s{XS(base+1)} offen sc1")
        ppoll(PX, 2, loads, lambda t: lowcheck(28, [Rg(t), Rg(t)+2], 4),
              lambda t: E(f"v_pk_add_f32 v[24:25], v[{Rg(t)}:{Rg(t)+1}], v[{Rg(t)+2}:{Rg(t)+3}]"))
    def fold8():
        E("v_permlane16_swap_b32 v24, v25"); E("v_add_f32 v24, v24, v25"); swap_reduce("v_add_f32", 24, 25, 32)
    if xwait: E("s_waitcnt vmcnt(0)")
    gather8(0)
    stamp(10)
    fold8()
    rnd(24, 24); E("v_mul_f32 v24, v17, v24"); rnd(24, 24); E("v_add_f32 v16, v16, v24"); rnd(16, 16)
    E("v_mul_f32 v24, v16, v18"); E("v_mul_f32 v27, v16, v16")
    E("v_add_f32_dpp v26, v16, v16 row_ror:1 row_mask:0xf bank_mask:0xf")
    E("v_mov_b32_dpp v25, v24 quad_perm:[1,1,3,3] row_mask:0xf bank_mask:0xf")
    E("v_add_f32_dpp v27, v27, v27 row_ror:1 row_mask:0xf bank_mask:0xf")
    E("v_cvt_pk_bf16_f32 v24, v24, v25")
    rest = []
    for k in (2, 4, 8):
        rest += [f"v_add_f32_dpp v{r}, v{r}, v{r} row_ror:{k} row_mask:0xf bank_mask:0xf" for r in (26, 27)]
    intra_store([X(0x55555555), "buffer_store_dword v24, v21, s[24:27], s20 offen", X(-1)] + rest +
                [X(0x10001), "buffer_store_dwordx2 v[26:27], v22, s[24:27], s21 offen"])
    E(X(-1))
    stamp(11)
    E("s_and_b32 s28, s5, 7"); E("s_cmp_lg_u32 s28, s4"); E("s_cbranch_scc1 L_oend")
    E("v_and_b32 v5, 15, v0"); E("v_lshlrev_b32 v5, 3, v5")
    def gbbody():
        E("buffer_load_dwordx2 v[24:25], v5, s[24:27], s19 offen sc1"); E("s_waitcnt vmcnt(0)"); tagcheck(6, [25])
    poll(gbbody, 1)
    E("v_perm_b32 v19, v24, v24, v19")
    gather8(2)
    stamp(14)
    fold8()
    rnd(24, 24); E("v_mul_f32 v24, v19, v24"); rnd(24, 24); E("v_add_f32 v24, v16, v24")
    E("v_mov_b32_dpp v25, v24 quad_perm:[1,1,3,3] row_mask:0xf bank_mask:0xf")
    E("v_cvt_pk_bf16_f32 v24, v24, v25")
    E(X(0x55555555))
    E("buffer_store_dword v24, v21, s[12:15], s23 offen")
    stamp(15)
    E.label("L_oend")
    E("s_cbranch_execz L_ret_o")
    E("s_or_b32 s28, s22, s4"); E("s_cbranch_scc1 L_svc_end")
    E(X(1)); E("v_mov_b32 v24, s35"); E(f"s_mov_b32 s28, {EP_OFF}")
    E("buffer_store_dword v24, v1, s[24:27], s28 offen")
    if probe is not None:
        E(f"s_add_u32 s29, s{70+probe}, 6000")
        E.label("L_probe")
        E("s_sleep 1"); E("s_memrealtime s[92:93]"); E("s_waitcnt lgkmcnt(0)"); E("s_sub_u32 s28, s29, s92"); E("s_cmp_gt_i32 s28, 0"); E("s_cbranch_scc1 L_probe")
    E.label("L_svc_end")
    E("s_waitcnt lgkmcnt(0)")
    if stamps: E("s_add_u32 s3, s3, 8")
    stamp_flush()
    E.label("L_exit")
    E.lines = [re.sub(r'@S(\d)@', lambda m: 's%d' % SO(int(m.group(1))), l) for l in E.lines]
    body = E.finish()
    verify_stream(body)
    return HDR + f"""; @launch grid=(256,1,1) block=(768,1,1) lds=163840
.amdgcn_target "amdgcn-amd-amdhsa--gfx950"
.text
.globl {NAME}_kernel
.p2align 8
.type {NAME}_kernel,@function
{NAME}_kernel:
{body}
    s_endpgm
.section .rodata,"a"
.p2align 6
.amdhsa_kernel {NAME}_kernel
  .amdhsa_next_free_vgpr 168
  .amdhsa_next_free_sgpr 102
  .amdhsa_accum_offset 168
  .amdhsa_group_segment_fixed_size 0
  .amdhsa_kernarg_size 112
  .amdhsa_float_denorm_mode_32 3
  .amdhsa_user_sgpr_count 2
  .amdhsa_user_sgpr_kernarg_segment_ptr 1
  .amdhsa_system_sgpr_workgroup_id_x 1
.end_amdhsa_kernel
"""

def verify_stream(body):
    import re
    lines = [l.strip() for l in body.split('\n')]
    a = lines.index('L_k0:'); b = lines.index('L_service:'); c = lines.index('L_stream:'); d = lines.index('L_noreduce:')
    path = lines[a:b] + lines[c:d]
    issued = []; landed = 0; skip = None; last = {}
    for l in path:
        if skip:
            if l == skip + ':': skip = None
            continue
        m = re.match(r's_cbranch_scc1 (L_th_\d+)', l)
        if m: skip = m.group(1); continue
        m = re.match(r'buffer_load_dwordx4 v\[(\d+):', l)
        if m: issued.append(int(m.group(1))); last[int(m.group(1))] = len(issued); continue
        if re.match(r'buffer_load_dwordx4 v1, .* lds', l): issued.append(-1); nlds = len(issued); continue
        m = re.match(r'ds_read_b128 v\[(\d+):\d+\], v3 ', l)
        if m: assert landed >= nlds; last.pop(int(m.group(1)), None); continue
        m = re.search(r'vmcnt\((\d+)\)', l)
        if m: landed = max(landed, len(issued) - int(m.group(1))); continue
        m = re.match(r'v_mfma\S+ v\[(\d+):\d+\], v\[(\d+):\d+\], v\[(\d+):', l)
        if m:
            for r in (int(m.group(2)), int(m.group(3))):
                if r in last: assert last[r] <= landed, f"unwaited operand: {l}"
    assert len(issued) == 64 and landed == 64

HDR = """; adaLN-conditioned GQA decode attention + SwiGLU block, one persistent launch (generated by gen/gen7.py)
"""
if __name__ == '__main__':
    kw = eval('dict(' + (sys.argv[2] if len(sys.argv) > 2 else '') + ')')
    open(sys.argv[1], 'w').write(gen(**kw))
```

```python
import sys, re
from emit import Emit
NAME = 'adaLN_cond__gqa_block_cached__glu_gated_swiglu__decode'

O_OFF, G_OFF = 0x0, 0x40000
X_OFF, Y_OFF = 0x80000, 0xA0000
Z_OFF, ML_OFF = 0x64000, 0x6C000; ZS = 3072; ST_OFF = Z_OFF + 2304
EP_OFF = 0xC0000
FL_OFF = 0xC1000
PG_OFF = 0xC3000
VT_OFF = 0xC2000
Q_OFF, MOD_OFF = 0xC8000, 0xD0000
STAMP_OFF = 0x100000
WS_SIZE = 0x200000
C_BAR, C_Q, C_CNT, C_D1, C_D2, C_GT, C_GO, C_J1, C_J2, C_KH, C_VH, C_OC, C_FAC, C_V2, C_G, C_NR = range(0, 64, 4)
FAC, MLB, QBUF = 64, 128, 256
CBUF, SBUF = 1216, 3552
ABUF = 1216
ACT0, ACT1 = 15104, 64
ZERO = 5856
JBUF, ZBUF, OBUF = 5888, 5888, 8192
SLOT_A, SLOT_B = 16384, 90112
LOG2E = 0x3fb8aa3b
SCALE = 0x3db504f3
JW2, JQ0 = 15, 24

def gen(D=3, DV=3, DQ=3, stamps=False, force_slow=False, sl_long=2, sl_bar=16, gateq=0, kvf='nt', wf='nt',
        plim=0x20000, probe=None, cpf=0, sl_o=0, sl_z=0, dbg='', XW=(0,0,0,0,3,4), XD=1, sl_ml=32, kh=29, sl_q=4,
        XG=1, DE=3, NE=8, kv=12, DW=0, DEA=0, DJ=0, K0=3, DJQ=0, EB=0, QB=0, ko=9, omask=0, xwait=0, NP=0, DW1=2, NP3=4, XL=0, k1=0, N1=2, PX=1, PG=1, hg=1, reh=1, oack=0, tlb=0, warm='', NL=4, v2=22, qs=1, numa=1, NRR=2, pool=1, KA=14, ZL=1, gate=0, gj=20, gsl=2, gk=6, N2=2, k2=8, jreh=0, xe=1, fb=0, fbg=20, fbo=0, fbv=12, fbl=0, fbm=0, XN=(0,10,22,10,20,52,36,40), km=12, LE=(), prio=3, AD=6, mim=0, lj=0, XJ=40):
    assert ko == 9
    E = Emit()
    uid = [0]
    def L(p):
        uid[0] += 1
        return f"L_{p}_{uid[0]}"
    def stamp(k):
        if stamps and (stamps not in ('lite', 'entry') or k in (0, 15)):
            E("s_memrealtime s[92:93]"); E("s_waitcnt lgkmcnt(0)"); E(f"s_mov_b32 s{70+k}, s92")
    def stamp_flush():
        if stamps:
            E("s_mov_b64 exec, -1")
            if stamps == 'entry': E("s_mov_b32 s71, s86")
            E("v_mov_b32 v4, 0")
            for k in range(16): E(f"v_writelane_b32 v4, s{70+k}, {k}")
            E("s_lshl_b32 s28, s4, 5"); E("s_add_u32 s28, s28, s5"); E("s_mul_i32 s28, s28, 12"); E("s_add_u32 s28, s28, s3")
            E("s_lshl_b32 s28, s28, 6"); E(f"s_add_u32 s28, s28, {STAMP_OFF}")
            E("v_mbcnt_lo_u32_b32 v5, -1, 0"); E("v_mbcnt_hi_u32_b32 v5, -1, v5"); E("v_lshlrev_b32 v5, 2, v5")
            E("s_mov_b64 exec, 0xffff")
            E("buffer_store_dword v4, v5, s[24:27], s28 offen")
    def srd(r, p, size):
        E(f"s_mov_b32 s{r}, s{p}"); E(f"s_mov_b32 s{r+1}, s{p+1}"); E(f"s_mov_b32 s{r+2}, {size}"); E(f"s_mov_b32 s{r+3}, 0x20000")
    def lds_wait(off, val, vz, vt, sleep=2):
        a, b = L("lw"), L("lwd")
        E("s_mov_b32 s7, 0"); E.label(a)
        E(f"ds_read_b32 v{vt}, v{vz} offset:{off}"); E("s_waitcnt lgkmcnt(0)")
        E(f"v_readfirstlane_b32 s28, v{vt}"); E(f"s_cmp_ge_u32 s28, {val}"); E(f"s_cbranch_scc1 {b}")
        if sleep: E(f"s_sleep {sleep}")
        E("s_add_u32 s7, s7, 1"); E(f"s_cmp_lt_u32 s7, {plim*8}"); E(f"s_cbranch_scc1 {a}")
        E.label(b)
    def lds_set(off, vz, vt, val):
        E(f"v_mov_b32 v{vt}, {val}"); E(f"ds_write_b32 v{vz}, v{vt} offset:{off}")
    def lds_inc(off, vz, vt):
        E(f"v_mov_b32 v{vt}, 1"); E("s_mov_b64 exec, 1"); E(f"ds_add_u32 v{vz}, v{vt} offset:{off}"); E("s_mov_b64 exec, -1")
    def soft_barrier(off, vz, vt, sleep=0, n=4):
        lds_inc(off, vz, vt); lds_wait(off, n, vz, vt, sleep)
    def poll(body, sleep=0):
        a, b = L("pl"), L("pld")
        E("s_mov_b32 s7, 0"); E.label(a)
        body()
        E(f"s_cbranch_vccz {b}")
        if sleep: E(f"s_sleep {sleep}")
        E("s_add_u32 s7, s7, 1"); E(f"s_cmp_lt_u32 s7, {plim}"); E(f"s_cbranch_scc1 {a}")
        E.label(b)
    def ppoll(nsets, nload, loads, check, finish):
        a, d = L("pp"), L("ppd"); ok = [L("ppk") for _ in range(nsets)]
        E("s_mov_b32 s7, 0")
        for t in range(nsets): loads(t)
        E.label(a)
        for t in range(nsets):
            E(f"s_waitcnt vmcnt({(nsets-1)*nload})"); check(t); E(f"s_cbranch_vccz {ok[t]}"); loads(t)
        E("s_add_u32 s7, s7, 1"); E(f"s_cmp_lt_u32 s7, {plim}"); E(f"s_cbranch_scc1 {a}")
        E("s_waitcnt vmcnt(0)")
        for t in range(nsets):
            E.label(ok[t]); finish(t)
            if t + 1 < nsets: E(f"s_branch {d}")
        E.label(d)
    cold = []
    def intra_store(ins):
        a, b = L("is"), L("isd")
        E("s_cmp_eq_u32 s6, 3"); E(f"s_cbranch_scc0 {a}")
        for i in ins: E(i)
        E.label(b)
        cold.append((a, b, ins))
    def X(m):
        return "s_mov_b64 exec, s[88:89]" if m == -1 else f"s_and_b64 exec, s[88:89], {m:#x}"
    def walk(target, ret):
        E("s_mov_b64 s[88:89], 0"); E("s_mov_b64 exec, 0"); E(f"s_branch {target}")
        E.label(ret)
        E("s_mov_b64 s[88:89], -1"); E("s_mov_b64 exec, -1")
    def live(ins):
        a = L("lv"); E(f"s_cbranch_execz {a}"); E(ins); E.label(a)
    def rnd(dst, src):
        E(f"v_cvt_pk_bf16_f32 v{dst}, v{src}, v{src}"); E(f"v_and_b32 v{dst}, 0xffff0000, v{dst}")
    def row_reduce(op, r, rors):
        for k in rors: E(f"{op}_dpp v{r}, v{r}, v{r} row_ror:{k} row_mask:0xf bank_mask:0xf")
    def swap_reduce(op, r, t, which):
        E(f"v_mov_b32 v{t}, v{r}"); E(f"v_permlane{which}_swap_b32 v{r}, v{t}"); E(f"{op} v{r}, v{r}, v{t}")
    def mktag():
        E("s_waitcnt lgkmcnt(0)")
        E("s_mul_i32 s35, s34, 0x9E3779B1"); E("s_add_u32 s35, s35, 0x7F4A7C15"); E("s_mov_b32 s90, 0xfffff000")
    def tagcheck(acc, regs):
        E(f"v_xor_b32 v{acc}, s35, v{regs[0]}")
        for r in regs[1:]: E(f"v_bitop3_b32 v{acc}, v{acc}, v{r}, s35 bitop3:0xf6")
        E(f"v_cmp_ne_u32 vcc, 0, v{acc}")
    def tagbyte(dst, idx):
        E(f"v_and_b32 v{dst}, 3, v{idx}"); E(f"v_mul_u32_u24 v{dst}, 7, v{dst}"); E(f"v_bfe_u32 v{dst}, s35, v{dst}, 12")
    def settag(r, tg): E(f"v_and_or_b32 v{r}, v{r}, s{SM}, v{tg}")
    def lowcheck(acc, regs, tg):
        for r in regs: E(f"v_xor_b32 v{r}, v{tg}, v{r}")
        ortree(acc, regs)
    def ortree(acc, regs):
        regs = list(regs)
        if len(regs) == 1: E(f"v_and_b32 v{acc}, 0xfff, v{regs[0]}")
        else:
            first = True
            while regs:
                if first:
                    t = regs[:3]; regs = regs[3:]; first = False
                    E(f"v_or3_b32 v{acc}, v{t[0]}, v{t[1]}, v{t[2]}") if len(t) == 3 else E(f"v_or_b32 v{acc}, v{t[0]}, v{t[1]}")
                else:
                    t = regs[:2]; regs = regs[2:]
                    E(f"v_or3_b32 v{acc}, v{acc}, v{t[0]}, v{t[1]}") if len(t) == 2 else E(f"v_or_b32 v{acc}, v{acc}, v{t[0]}")
            E(f"v_and_b32 v{acc}, 0xfff, v{acc}")
        E(f"v_cmp_ne_u32 vcc, 0, v{acc}")
    SM = 90
    BR = lambda k: 96 + 4 * k
    AT = lambda k: 24 + 4 * k
    def op_addrs():
        E("v_bfe_u32 v4, v0, 2, 2"); E("v_lshrrev_b32 v5, 4, v0"); E("v_lshl_add_u32 v4, v5, 3, v4"); E("v_lshlrev_b32 v4, 7, v4")
        E("v_and_b32 v6, 3, v0"); E("v_lshl_add_u32 v4, v6, 3, v4")
        E("v_bfe_u32 v7, v0, 3, 2"); E("v_xor_b32 v7, s3, v7"); E("v_lshl_add_u32 v2, v7, 5, v4")
        E("v_and_b32 v3, 1, v0"); E("v_mul_u32_u24 v3, 1152, v3"); E("v_lshl_add_u32 v3, v5, 4, v3")
    def stage_b(slot, nk, wait=True, k0=0, t=5):
        E(f"v_add_u32 v{t}, {slot}, v2"); E(f"v_add_u32 v{t+1}, {slot + 36864}, v2")
        for k in range(k0, nk):
            a = t if k < 9 else t + 1; o = (k % 9) * 4096
            E(f"ds_read_b64_tr_b16 v[{BR(k)}:{BR(k)+1}], v{a} offset:{o}"); E(f"ds_read_b64_tr_b16 v[{BR(k)+2}:{BR(k)+3}], v{a} offset:{o+512}")
        if wait: E("s_waitcnt lgkmcnt(0)")
    def gemv(areg, aoff, nk, d, fill=None, pre=0, extra=0):
        fill = list(fill or [])
        first = pre if extra else 0
        per = -(-len(fill) // (nk - first))
        depth = min(AD, 15 - extra)
        for k in range(pre, min(nk, depth)): E(f"ds_read_b128 v[{AT(k)}:{AT(k)+3}], v{areg} offset:{aoff + k*64}")
        issued = min(nk, depth)
        for k in range(nk):
            E(f"s_waitcnt lgkmcnt({issued - 1 - k + (extra if k < pre else 0)})")
            c = "0" if k == 0 else f"v[{d}:{d+3}]"
            E(f"v_mfma_f32_16x16x32_bf16 v[{d}:{d+3}], v[{AT(k)}:{AT(k)+3}], v[{BR(k)}:{BR(k)+3}], {c}")
            if issued < nk:
                E(f"ds_read_b128 v[{AT(issued)}:{AT(issued)+3}], v{areg} offset:{aoff + issued*64}"); issued += 1
            if k >= first:
                for _ in range(per):
                    if fill: E(fill.pop(0))
    def own_map():
        E("v_and_b32 v8, 31, v0"); E("v_min_u32 v9, 7, v8"); E("s_mul_i32 s28, s3, 72")
        E("v_add_u32 v8, s28, v8"); E("s_add_u32 s28, s28, 64"); E("v_add_u32 v9, s28, v9")
        E("v_lshrrev_b32 v11, 5, v0"); E("v_mul_u32_u24 v11, 1152, v11"); E("v_lshl_add_u32 v10, v8, 2, v11"); E("v_lshl_add_u32 v11, v9, 2, v11")
    def modgather(o1, o2, lab=None):
        E(f"s_mov_b32 s30, {MOD_OFF + o1*8}"); E(f"s_mov_b32 s31, {MOD_OFF + o2*8}")
        E("v_lshlrev_b32 v12, 4, v8"); E("v_lshlrev_b32 v13, 4, v9")
        def body():
            for h in range(2):
                E(f"buffer_load_dwordx4 v[{36+12*h}:{39+12*h}], v12, s[24:27], s{30+h} offen sc1")
                E(f"buffer_load_dwordx4 v[{40+12*h}:{43+12*h}], v12, s[24:27], s{30+h} offen offset:512 sc1")
                E(f"buffer_load_dwordx4 v[{44+12*h}:{47+12*h}], v13, s[24:27], s{30+h} offen sc1")
            E("s_waitcnt vmcnt(0)")
            tagcheck(14, list(range(37, 60, 2)))
        poll(body, sl_long)
        if lab: E.label(lab)
        E("v_cmp_gt_u32 vcc, 32, v0"); E("v_mov_b32 v12, 0x03020c0c"); E("v_mov_b32 v13, 0x01000c0c"); E("v_cndmask_b32 v12, v12, v13, vcc")
        for e in range(12): E(f"v_perm_b32 v{24+e}, v{36+2*e}, v{36+2*e}, v12")
    def dma_addrs(a=3, b=4, t=2):
        E(f"v_lshrrev_b32 v{t}, 3, v0"); E(f"v_mul_lo_u32 v{t}, v{t}, s20")
        E(f"v_and_b32 v{a}, 7, v0"); E(f"v_bfe_u32 v{b}, v0, 4, 1"); E(f"v_lshlrev_b32 v{b}, 1, v{b}"); E(f"v_xor_b32 v{a}, v{a}, v{b}")
        E(f"v_xor_b32 v{b}, 4, v{a}"); E(f"v_lshl_add_u32 v{a}, v{a}, 4, v{t}"); E(f"v_lshl_add_u32 v{b}, v{b}, 4, v{t}")
        E("s_lshl_b32 s17, s20, 3")
    def dma_loop(lab, depth, a=3, b=4, ls=1024):
        E.label(lab)
        E("s_mov_b32 m0, s29"); E(f"s_add_u32 s29, s29, {ls}")
        E(f"buffer_load_dwordx4 v{a}, s[8:11], s16 offen {wf} lds"); E("s_add_u32 s16, s16, s17")
        if depth: E(f"s_waitcnt vmcnt({depth-1})")
        E("s_mov_b32 m0, s29"); E(f"s_add_u32 s29, s29, {ls}")
        E(f"buffer_load_dwordx4 v{b}, s[8:11], s16 offen {wf} lds"); E("s_add_u32 s16, s16, s17")
        if depth: E(f"s_waitcnt vmcnt({depth-1})")
        E("s_sub_u32 s19, s19, 1"); E("s_cmp_lg_u32 s19, 0"); E(f"s_cbranch_scc1 {lab}")

    E.label("L_code0")
    if probe == 16 or stamps == 'entry': E("s_memrealtime s[86:87]")
    E("s_load_dwordx16 s[36:51], s[0:1], 0")
    E("s_load_dwordx8 s[52:59], s[0:1], 64")
    E("s_load_dwordx4 s[60:63], s[0:1], 96")
    E("s_cmp_ge_u32 s2, 256"); E("s_cbranch_scc1 L_exit")
    if stamps == 'entry': E("s_mov_b32 s85, 0")
    elif stamps:
        for k in range(16): E(f"s_mov_b32 s{70+k}, 0")
    E("v_lshrrev_b32 v1, 6, v0"); E("v_and_b32 v0, 63, v0"); E("v_readfirstlane_b32 s3, v1")
    E("s_and_b32 s4, s2, 7"); E("s_lshr_b32 s5, s2, 3")
    E("s_sub_u32 s22, s2, 72"); E("s_cmp_lt_u32 s22, 48"); E("s_cselect_b32 s21, 2, 0")
    E(f"s_cmp_ge_u32 s5, {JQ0}"); E("s_cselect_b32 s21, 3, s21")
    if 'j' in dbg: E("s_mov_b32 s21, 0")
    E("s_cmp_ge_u32 s3, 8"); E("s_cbranch_scc1 L_service")

    SL = lambda i: 40 + 4 * i
    E("v_and_b32 v3, 3, v0"); E("v_lshrrev_b32 v4, 4, v0"); E("v_lshl_add_u32 v3, v4, 2, v3")
    E("v_bfe_u32 v4, v0, 2, 2"); E("v_lshlrev_b32 v4, 8, v4"); E("v_lshl_add_u32 v2, v3, 4, v4")
    if 'l' in dbg: E("v_lshlrev_b32 v2, 4, v0")
    E("s_and_b32 s28, s5, 16"); E("s_lshl_b32 s29, s4, 1"); E("s_add_u32 s28, s28, s29")
    E("s_lshl_b32 s28, s28, 3"); E("s_and_b32 s29, s5, 15"); E("s_add_u32 s28, s28, s29")
    E("s_lshl_b32 s28, s28, 6"); E("s_add_u32 s28, s28, s3"); E("s_lshl_b32 s33, s28, 12")
    E("s_add_u32 s32, s5, s3")
    def soff(u):
        E(f"s_add_u32 s30, s32, {u}"); E("s_and_b32 s30, s30, 7"); E("s_lshl_b32 s30, s30, 15"); E(f"s_add_u32 s{64+u if not stamps else 94+u}, s33, s30")
    SO = lambda u: (64 + u if not stamps else 94 + u)
    soff(0)
    if K0 > 4: soff(1)
    E("s_mov_b32 s10, 0x4000000"); E("s_mov_b32 s11, 0x20000")
    E("s_waitcnt lgkmcnt(0)")
    E("s_mov_b32 s8, s38"); E("s_mov_b32 s9, s39")
    stamp(0)
    def kload(i): E(f"buffer_load_dwordx4 v[{SL(i)}:{SL(i)+3}], v2, s[8:11], s{SO(i//4)} offen offset:{(i%4)*1024} {kvf}")
    VS = lambda i: SL((i - NL) % 32)
    def vload(i):
        if i < NL: E(f"buffer_load_dwordx4 v1, s[12:15], s{SO(i//4)} offen offset:{(i%4)*1024} {kvf} lds")
        else: E(f"buffer_load_dwordx4 v[{VS(i)}:{VS(i)+3}], v1, s[12:15], s{SO(i//4)} offen offset:{(i%4)*1024} {kvf}")
    E.label("L_k0")
    for i in range(K0): kload(i)
    E("s_branch L_stream")

    E.label("L_service")
    E("v_mov_b32 v1, 0")
    E("s_sub_u32 s3, s3, 8")
    if cpf >= 3:
        E("s_getpc_b64 s[12:13]"); E.label("L_pc0")
        E("s_sub_u32 s12, s12, L_pc0-L_code0"); E("s_subb_u32 s13, s13, 0"); E("s_mov_b32 s14, L_exit-L_code0"); E("s_mov_b32 s15, 0x20000")
        E("s_lshl_b32 s28, s5, 2"); E("s_add_u32 s28, s28, s3"); E("s_lshl_b32 s28, s28, 8")
    E("v_lshlrev_b32 v2, 2, v0")
    if cpf >= 3: E("buffer_load_dword v95, v2, s[12:15], s28 offen" + (" nt" if cpf == 4 else ""))
    E("s_mov_b64 exec, 0xffff"); E("ds_write_b32 v2, v1"); E("s_mov_b64 exec, -1")
    E("s_mov_b32 s18, 4")
    E("s_cmp_lg_u32 s21, 0"); E("s_cbranch_scc1 L_job")
    E("s_mov_b32 s20, 1152")
    dma_addrs()
    E("s_lshl_b32 s28, s4, 2"); E("s_add_u32 s28, s28, s3"); E(f"s_sub_u32 s30, s5, {JW2}")
    E("s_cmp_lt_u32 s5, 9")
    E("s_cselect_b32 s19, 8, 9"); E("s_cselect_b32 s30, s5, s30"); E(f"s_mov_b32 s29, {SLOT_B}"); E(f"s_cselect_b32 s29, {SLOT_A}, s29")
    E("s_mul_i32 s16, s19, 18432"); E("s_lshl_b32 s10, s16, 5"); E("s_mul_i32 s16, s16, s28"); E("s_lshl_b32 s30, s30, 7"); E("s_add_u32 s16, s16, s30")
    E("s_lshl_b32 s30, s19, 11"); E("s_mul_i32 s30, s30, s3"); E("s_add_u32 s29, s29, s30"); E("s_mov_b32 s11, 0x20000")
    E("s_waitcnt lgkmcnt(0)")
    E("s_cmp_lt_u32 s5, 9"); E("s_cselect_b32 s8, s44, s52"); E("s_cselect_b32 s9, s45, s53")
    stamp(0)
    if EB: E("s_barrier")
    if 'e' not in dbg: dma_loop("L_dma_early", DEA)
    E(f"s_load_dword s34, s[62:63], {EP_OFF}")
    srd(24, 62, WS_SIZE)
    if not EB: E("s_barrier")
    E("s_branch L_roles")
    E.label("L_job")
    E("s_cmp_eq_u32 s21, 3")
    E("s_cselect_b32 s20, 8192, 6912") if False else (E("s_mov_b32 s20, 6912"), E("s_cselect_b32 s20, 8192, s20"))
    dma_addrs()
    own_map()
    E("s_lshl_b32 s28, s4, 3"); E(f"s_sub_u32 s29, s5, {JQ0}"); E("s_add_u32 s28, s28, s29")
    E("s_cmp_eq_u32 s21, 3"); E("s_cselect_b32 s22, s28, s22")
    E("s_mul_i32 s10, s20, 576"); E("s_mov_b32 s11, 0x20000")
    E("s_mul_i32 s16, s20, 144"); E("s_mul_i32 s16, s16, s3"); E("s_lshl_b32 s28, s22, 7"); E("s_add_u32 s16, s16, s28")
    E("s_mul_i32 s29, s3, 18432"); E(f"s_add_u32 s29, s29, {SLOT_B}"); E("s_mov_b32 s19, 9")
    E("s_mov_b32 s14, 2304"); E("s_mov_b32 s15, 0x20000")
    E("s_waitcnt lgkmcnt(0)")
    if stamps:
        E("s_cmp_eq_u32 s18, 8"); E("s_cbranch_scc1 L_nost0"); stamp(0); E.label("L_nost0")
    E("s_cmp_eq_u32 s21, 3")
    E("s_cselect_b32 s8, s42, s56"); E("s_cselect_b32 s9, s43, s57"); E("s_cselect_b32 s12, s36, s54"); E("s_cselect_b32 s13, s37, s55")
    E("buffer_load_dword v16, v10, s[12:15], 0 offen"); E("buffer_load_dword v17, v10, s[12:15], 0 offen offset:128"); E("buffer_load_dword v18, v11, s[12:15], 0 offen")
    srd(24, 62, WS_SIZE)
    if xe:
        E("s_cbranch_scc0 L_nox")
        E("v_lshrrev_b32 v12, 5, v0"); E("v_mul_u32_u24 v12, 1152, v12"); E("v_and_b32 v13, 31, v0"); E("v_lshl_add_u32 v12, v13, 2, v12")
        for i in range(9): E(f"buffer_load_dword v{60+i}, v12, s[12:15], 0 offen offset:{i*128}")
        E.label("L_nox")
    E("s_cmp_eq_u32 s18, 8"); E("s_cbranch_scc1 L_dma_jq")
    E(f"s_load_dword s34, s[62:63], {EP_OFF}")
    if QB: E(f"s_cmp_eq_u32 s5, 27"); E("s_cbranch_scc1 L_jq")
    dma_loop("L_dma_job", DJ)
    E("s_barrier")
    E("s_branch L_job2")
    if QB:
        E.label("L_jq")
        E("s_barrier")
        dma_loop("L_dma_j27", QB - 1)
        E("s_branch L_job2")
    dma_loop("L_dma_jq", DJQ)
    E.label("L_job2")
    stamp(9)
    op_addrs()
    E("s_waitcnt vmcnt(18)")
    for i in range(3):
        E(f"v_and_b32 v{71+2*i}, 0xffff0000, v{16+i}"); E(f"v_lshlrev_b32 v{70+2*i}, 16, v{16+i}")
    E("s_cmp_eq_u32 s21, 3"); E("s_cbranch_scc1 L_prep_q")
    E(f"s_mov_b32 s28, {LOG2E ^ 0x80000000}"); E("s_mov_b32 s29, 0xb2a57060"); E("s_mov_b32 s30, 0x3f317218")
    for e in range(6): E(f"v_mul_f32 v{24+e}, s28, v{70+e}")
    for e in range(6): E(f"v_fma_f32 v{30+e}, v{70+e}, s28, -v{24+e}")
    for e in range(6): E(f"v_fma_f32 v{30+e}, v{70+e}, s29, v{30+e}")
    for e in range(6): E(f"v_min_f32 v{24+e}, 0x42fc0000, v{24+e}")
    for e in range(6): E(f"v_exp_f32 v{24+e}, v{24+e}")
    for e in range(6): E(f"v_mul_f32 v{30+e}, s30, v{30+e}")
    for e in range(6): E(f"v_fma_f32 v{24+e}, v{24+e}, v{30+e}, v{24+e}")
    for e in range(6): E(f"v_add_f32 v{24+e}, 1.0, v{24+e}")
    for e in range(6): E(f"v_rcp_f32 v{30+e}, v{24+e}")
    for e in range(6): E(f"v_mul_f32 v{36+e}, v{70+e}, v{30+e}")
    for e in range(6): E(f"v_fma_f32 v{70+e}, -v{24+e}, v{36+e}, v{70+e}")
    for e in range(6): E(f"v_fma_f32 v{70+e}, v{70+e}, v{30+e}, v{36+e}")
    def write_a(buf):
        for i in range(3): E(f"v_cvt_pk_bf16_f32 v{16+i}, v{70+2*i}, v{71+2*i}")
        E(f"ds_write_b32 v10, v16 offset:{buf}"); E(f"ds_write_b32 v10, v17 offset:{buf+128}"); E(f"ds_write_b32 v11, v18 offset:{buf}")
    write_a(JBUF)
    if jreh: walk("L_mst", "L_ret_m")
    E("s_waitcnt vmcnt(0)")
    soft_barrier(C_J1, 1, 16, n="s18")
    stamp(10)
    E.label("L_mst")
    stage_b(SLOT_B, 18, wait=False)
    E("s_branch L_gemv")
    E.label("L_prep_q")
    if not xe:
        E("v_lshrrev_b32 v12, 5, v0"); E("v_mul_u32_u24 v12, 1152, v12"); E("v_and_b32 v13, 31, v0"); E("v_lshl_add_u32 v12, v13, 2, v12")
        for i in range(9): E(f"buffer_load_dword v{60+i}, v12, s[12:15], 0 offen offset:{i*128}")
        E("s_waitcnt vmcnt(0)")
    for i in range(9):
        E(f"v_lshlrev_b32 v{24+2*i}, 16, v{60+i}"); E(f"v_and_b32 v{25+2*i}, 0xffff0000, v{60+i}")
    E("v_add_f32 v16, v24, v25")
    for r in range(26, 42): E(f"v_add_f32 v16, v16, v{r}")
    row_reduce("v_add_f32", 16, (1, 2, 4, 8)); swap_reduce("v_add_f32", 16, 17, 16)
    E("s_mov_b32 s28, 0x3ae38e39"); E("s_mov_b32 s29, 0x3727c5ac")
    E("v_mul_f32 v16, s28, v16")
    E("v_mov_b32 v18, 0")
    for r in range(24, 42): E(f"v_sub_f32 v17, v{r}, v16"); E("v_fmac_f32 v18, v17, v17")
    row_reduce("v_add_f32", 18, (1, 2, 4, 8)); swap_reduce("v_add_f32", 18, 17, 16)
    E("v_mul_f32 v18, s28, v18"); rnd(18, 18); E("v_add_f32 v18, s29, v18"); rnd(18, 18)
    E("v_sqrt_f32 v18, v18"); rnd(18, 18); E("v_rcp_f32 v19, v18"); rnd(16, 16)
    for r in range(70, 76):
        E(f"v_sub_f32 v{r}, v{r}, v16"); rnd(r, r)
        E(f"v_mul_f32 v17, v{r}, v19"); E(f"v_fma_f32 v{r}, -v18, v17, v{r}"); E(f"v_fma_f32 v{r}, v{r}, v19, v17"); rnd(r, r)
    E("s_waitcnt vmcnt(0)")
    soft_barrier(C_J1, 1, 16)
    stamp(10)
    stage_b(SLOT_B, 18)
    mktag()
    if jreh: walk("L_qh", "L_ret_q")
    if km: lds_wait(C_NR, 1, 1, 16, sleep=4)
    modgather(0, 576, "L_qh")
    stamp(11)
    for e in range(6):
        E(f"v_add_f32 v{30+e}, 1.0, v{30+e}"); rnd(30+e, 30+e); E(f"v_mul_f32 v{70+e}, v{70+e}, v{30+e}"); rnd(70+e, 70+e)
        E(f"v_add_f32 v{70+e}, v{70+e}, v{24+e}")
    write_a(JBUF)
    E("s_cbranch_execz L_gemv")
    soft_barrier(C_J2, 1, 16)
    E.label("L_gemv")
    gemv(3, JBUF, 18, 20)
    mktag()
    E("s_lshl_b32 s28, s22, 2"); E("s_add_u32 s28, s28, s3"); E("s_lshl_b32 s28, s28, 7")
    E(f"s_mov_b32 s29, {MOD_OFF}"); E("s_cmp_eq_u32 s21, 3"); E(f"s_cselect_b32 s29, {Q_OFF}, s29"); E("s_add_u32 s28, s28, s29")
    E("v_lshlrev_b32 v2, 3, v0")
    E("v_cvt_pk_bf16_f32 v8, v20, v21"); E("v_mov_b32 v9, s35")
    if jreh:
        E("s_cbranch_execnz L_jpub")
        E("s_cmp_eq_u32 s21, 3"); E("s_cbranch_scc1 L_ret_q"); E("s_branch L_ret_m")
        E.label("L_jpub")
    E("s_mov_b64 exec, 0xffff")
    E("buffer_store_dwordx2 v[8:9], v2, s[24:27], s28 offen sc1")
    E("s_mov_b64 exec, -1")
    lds_inc(C_GO, 1, 16)
    stamp(12)
    E("s_cmp_eq_u32 s18, 8"); E("s_cbranch_scc1 L_svc_end")
    E.label("L_roles")
    for w in '0123':
        if w in dbg: E(f"s_cmp_eq_u32 s3, {w}"); E("s_cbranch_scc1 L_svc_end")
    if 'z' in dbg: E("s_branch L_tailprep")
    E("s_cmp_eq_u32 s3, 3"); E("s_cbranch_scc1 L_s3")
    E("s_cmp_eq_u32 s3, 0"); E("s_cbranch_scc1 L_s0")
    if cpf in (1, 2):
        E("s_cmp_lg_u32 s3, 1"); E("s_cbranch_scc1 L_tailprep")
        E("s_getpc_b64 s[8:9]"); E.label("L_pc")
        E("s_sub_u32 s8, s8, L_pc-L_code0"); E("s_subb_u32 s9, s9, 0"); E("s_mov_b32 s10, L_exit-L_code0"); E("s_mov_b32 s11, 0x20000")
        E("v_lshlrev_b32 v2, 4, v0"); E("s_lshl_b32 s16, s5, 10")
        if cpf == 2: lds_wait(C_KH, 1, 1, 8, sleep=8)
        E("buffer_load_dwordx4 v[8:11], v2, s[8:11], s16 offen"); E("s_waitcnt vmcnt(0)")
    E("s_branch L_tailprep")

    E.label("L_s0")
    mktag()
    E("v_lshlrev_b32 v2, 4, v0")
    if kh:
        if gateq: E("s_cmp_eq_u32 s21, 3"); E("s_cbranch_scc1 L_qgo")
        lds_wait(C_KH, 1, 1, 8, sleep=8)
        E.label("L_qgo")
    E("s_lshl_b32 s28, s4, 12"); E("s_bfe_u32 s29, s5, 0x10003"); E("s_lshl_b32 s29, s29, 11"); E("s_add_u32 s28, s28, s29"); E(f"s_add_u32 s28, s28, {Q_OFF}")
    def qbody():
        E("buffer_load_dwordx4 v[8:11], v2, s[24:27], s28 offen sc1"); E("buffer_load_dwordx4 v[12:15], v2, s[24:27], s28 offen offset:1024 sc1")
        E("s_waitcnt vmcnt(0)")
        tagcheck(16, [9, 11, 13, 15])
    poll(qbody, sl_q)
    E("s_mov_b32 s29, 0x05040100"); E("s_cmp_ge_u32 s5, 16"); E("s_cselect_b32 s29, 0x07060302, s29")
    E("v_perm_b32 v8, v10, v8, s29"); E("v_perm_b32 v9, v14, v12, s29"); E("v_lshlrev_b32 v3, 2, v0")
    E(f"ds_write_b32 v3, v8 offset:{QBUF}"); E(f"ds_write_b32 v3, v9 offset:{QBUF+256}")
    E("s_add_u32 s7, s7, 1"); lds_set(C_Q, 1, 10, "s7")
    if stamps is True: E("s_mov_b32 s71, s7")
    stamp(3)
    lds_wait(C_BAR, 1, 1, 8, sleep=4)
    E("s_mov_b32 s6, s28")
    lds_wait(C_CNT, 8, 1, 8, sleep=4)
    E("v_and_b32 v3, 15, v0"); E("v_lshlrev_b32 v4, 3, v3"); E(f"ds_read_b64 v[8:9], v4 offset:{MLB}")
    E(f"s_mov_b32 s31, {LOG2E}")
    E("s_waitcnt lgkmcnt(0)")
    E("v_mov_b32 v10, v8"); row_reduce("v_max_f32", 10, (2, 4, 8))
    E("v_sub_f32 v12, v8, v10"); E("v_mul_f32 v12, s31, v12"); E("v_exp_f32 v12, v12"); E("v_mul_f32 v11, v12, v9")
    row_reduce("v_add_f32", 11, (2, 4, 8))
    E("v_and_b32 v5, 1, v0"); E("v_lshlrev_b32 v5, 5, v5"); E("v_lshrrev_b32 v6, 1, v3"); E("v_lshl_add_u32 v5, v6, 2, v5")
    E(f"ds_write_b32 v5, v12 offset:{FAC}")
    E("s_lshl_b32 s28, s4, 5"); E("s_add_u32 s28, s28, s5"); E("s_lshl_b32 s28, s28, 5"); E(f"s_add_u32 s28, s28, {ML_OFF}")
    E("v_mov_b32 v12, s35"); E("v_mov_b32 v13, s35"); E("v_lshlrev_b32 v4, 4, v0")
    E("v_mov_b32 v6, s6"); E(f"ds_write_b32 v1, v6 offset:{C_FAC}")
    E("s_mov_b64 exec, 3")
    intra_store(["buffer_store_dwordx4 v[10:13], v4, s[24:27], s28 offen"])
    E("s_mov_b64 exec, -1")
    E("s_waitcnt lgkmcnt(0)")
    stamp(4)
    E("s_branch L_tailprep")

    E.label("L_s3")
    E("v_lshlrev_b32 v2, 4, v0")
    for k in range(4): E(f"v_mov_b32 v{4+k}, -1")
    E("s_cmp_ge_u32 s5, 9"); E("s_cbranch_scc1 L_noclr")
    E(f"s_mul_i32 s28, s4, {ZS}"); E("s_mul_i32 s29, s5, 320"); E("s_add_u32 s28, s28, s29"); E(f"s_add_u32 s28, s28, {Z_OFF}")
    E("s_mov_b64 exec, 0xfffff"); E("buffer_store_dwordx4 v[4:7], v2, s[24:27], s28 offen sc1"); E("s_mov_b64 exec, -1")
    E.label("L_noclr")
    E("s_getreg_b32 s29, hwreg(HW_REG_XCC_ID)"); E("s_and_b32 s29, s29, 15")
    mktag()
    if fb:
        lds_wait(C_VH, 1, 1, 8, sleep=4)
        E("s_lshl_b32 s28, s28, 4"); E("s_or_b32 s29, s29, s28")
    E("v_mov_b32 v8, s29"); E("v_mov_b32 v9, s35")
    E("s_lshl_b32 s28, s4, 5"); E("s_add_u32 s28, s28, s5"); E("s_lshl_b32 s28, s28, 3"); E(f"s_add_u32 s28, s28, {FL_OFF}")
    E("s_waitcnt vmcnt(0)")
    stamp(1)
    E("s_mov_b64 exec, 1"); E("buffer_store_dwordx2 v[8:9], v1, s[24:27], s28 offen sc1"); E("s_mov_b64 exec, -1")
    if 'q' in dbg: E("s_branch L_svc_end")
    lds_wait(C_Q if NL and not fbl else C_CNT, 1 if NL and not fbl else (fbl or 8), 1, 8, sleep=8)
    E(f"s_mov_b32 s30, {FL_OFF}")
    def barbody():
        E("buffer_load_dwordx4 v[8:11], v2, s[24:27], s30 offen sc1"); E("buffer_load_dwordx4 v[12:15], v2, s[24:27], s30 offen offset:1024 sc1")
        E("s_waitcnt vmcnt(0)")
        tagcheck(16, [9, 11, 13, 15])
    poll(barbody, sl_bar)
    if fb:
        for r in (8, 10, 12, 14): E(f"v_sub_u32 v{r+1}, s29, v{r}"); E(f"v_ashrrev_i32 v{r+1}, 4, v{r+1}")
        E("v_add3_u32 v9, v9, v11, v13"); E("v_add_u32 v9, v9, v15")
        row_reduce("v_add_u32", 9, (1, 2, 4, 8)); swap_reduce("v_add_u32", 9, 11, 16); swap_reduce("v_add_u32", 9, 11, 32)
        E("v_readfirstlane_b32 s30, v9")
        E("s_ashr_i32 s30, s30, 8"); E(f"s_sub_i32 s30, s30, {fbo}"); E(f"s_mul_i32 s30, s30, {fbg}"); E("s_ashr_i32 s30, s30, 8")
        E("s_max_i32 s30, s30, 0"); E("s_min_i32 s30, s30, 8")
        if stamps is True: E("s_mov_b32 s73, s30")
        if fbm: E("s_sub_u32 s30, 8, s30")
        E("s_lshl_b32 s30, s30, 1"); E("s_or_b32 s30, s30, 1"); lds_set(C_KH, 1, 9, "s30")
    E("s_cmp_ge_u32 s4, 4"); E("s_cselect_b64 vcc, -1, 0")
    E("v_cndmask_b32 v8, v8, v12, vcc"); E("v_cndmask_b32 v10, v10, v14, vcc")
    E("v_xor_b32 v8, s29, v8"); E("v_bitop3_b32 v8, v8, v10, s29 bitop3:0xf6"); E("v_and_b32 v8, 15, v8"); E("v_cmp_ne_u32 vcc, 0, v8")
    E("s_and_b32 s30, s4, 3"); E("s_lshl_b32 s30, s30, 4"); E("s_lshr_b64 s[30:31], vcc, s30"); E("s_and_b32 s30, s30, 0xffff")
    E(f"s_cselect_b32 s6, 1, {1 if force_slow else 3}")
    E("v_mov_b32 v8, s6"); E(f"ds_write_b32 v1, v8 offset:{C_BAR}")
    stamp(2)
    E("s_branch L_tailprep")

    E.label("L_stream")
    xd = XD if any(XW) or XN else 0
    if XN:
        E(f"s_mov_b32 s23, {XN[0]}")
        E("s_bitcmp1_b32 s4, 0"); E(f"s_cselect_b32 s28, {XN[2]}, {XN[1]}"); E("s_cmp_ge_u32 s5, 9"); E("s_cselect_b32 s23, s28, s23")
        for lo, n in zip((15, 24), XN[3:5]):
            E(f"s_cmp_ge_u32 s5, {lo}"); E(f"s_cselect_b32 s23, {n}, s23")
        E("s_cmp_eq_u32 s5, 27"); E(f"s_cselect_b32 s23, {XN[5]}, s23")
        E("s_cmp_eq_u32 s2, 255"); E(f"s_cselect_b32 s23, {XN[7]}, s23")
        if XJ: E("s_sub_u32 s28, s2, 224"); E("s_cmp_lt_u32 s28, 6"); E(f"s_cselect_b32 s23, {XJ}, s23")
        E("s_cmp_ge_u32 s5, 18"); E("s_cselect_b32 s28, 18, 9"); E("s_sub_u32 s28, s5, s28"); E("s_cmp_lt_u32 s28, 9"); E("s_cselect_b32 s29, 0, 8")
        E("s_add_u32 s28, s28, s4"); E("s_and_b32 s28, s28, 7"); E("s_add_u32 s28, s28, s29")
        E("s_cmp_eq_u32 s28, 3"); E(f"s_cselect_b32 s28, {XN[6]}, 0"); E("s_add_u32 s23, s23, s28")
    elif xd:
        E(f"s_mov_b32 s23, {XW[0]}")
        for lo, n in zip((9, 15, 24), XW[1:4]):
            E(f"s_cmp_ge_u32 s5, {lo}"); E(f"s_cselect_b32 s23, {n}, s23")
        E("s_cmp_eq_u32 s5, 27"); E(f"s_cselect_b32 s23, {XW[4]}, s23")
        if len(XW) > 5:
            E("s_cmp_ge_u32 s5, 18"); E("s_cselect_b32 s28, 18, 9"); E("s_sub_u32 s28, s5, s28"); E("s_cmp_lt_u32 s28, 9"); E("s_cselect_b32 s29, 0, 8")
            E("s_add_u32 s28, s28, s4"); E("s_and_b32 s28, s28, 7"); E("s_add_u32 s28, s28, s29")
            E("s_cmp_eq_u32 s28, 3"); E(f"s_cselect_b32 s23, {XW[5]}, s23")
    def setscc(): pass
    tp = [0]; XWV = [0]
    def throttle(d):
        if any(lo <= tp[0] < hi and (tp[0] - lo) % st_ == 0 for lo, hi, st_ in LE): d -= 1
        thr = [0, 4, 2, 6, 1, 5, 3, 7][(tp[0] // XG) % 8] if not XN else tp[0]; tp[0] += 1
        if xd and thr < ((max(XW) + XWV[0]) if not XN else max(max(XN), XJ, max(XN[1:5]) + XN[6])):
            if thr < (min(XW) if not XN else 0): E(f"s_waitcnt vmcnt({d-1+xd})")
            else:
                a = L("th"); E(f"s_cmp_gt_u32 s23, {thr}"); E(f"s_waitcnt vmcnt({d-1+xd})"); E(f"s_cbranch_scc1 {a}"); E(f"s_waitcnt vmcnt({d-1})"); E.label(a)
        else: E(f"s_waitcnt vmcnt({d-1})")
    for u in range(2 if K0 > 4 else 1, 8): soff(u)
    srd(12, 40, 0x4000000); srd(24, 62, WS_SIZE)
    E(f"s_load_dword s34, s[62:63], {EP_OFF}")
    E("v_lshlrev_b32 v1, 4, v0")
    E("v_bfe_u32 v4, v0, 3, 1"); E("v_lshlrev_b32 v4, 8, v4"); E("v_lshl_add_u32 v36, v3, 4, v4")
    if warm:
        E("s_cmp_lg_u32 s3, 7"); E("s_cbranch_scc1 L_nowarm")
        E("s_mov_b64 exec, 1")
        if 'v' in warm: E(f"buffer_load_dword v5, v1, s[12:15], s{SO(0)} offen nt")
        if 's' in warm: E(f"s_mov_b32 s28, {EP_OFF}"); E("buffer_load_dword v5, v1, s[24:27], s28 offen nt")
        if 'w' in warm:
            E("s_cmp_ge_u32 s5, 18"); E("s_cselect_b32 s16, s50, s48"); E("s_cselect_b32 s17, s51, s49"); E(f"s_mov_b32 s18, {576*9216}"); E("s_mov_b32 s19, 0x20000")
            E("s_mov_b64 exec, 15"); E(f"v_mul_u32_u24 v6, {191*9216}, v0"); E("s_lshl_b32 s28, s2, 5")
            E("buffer_load_dword v5, v6, s[16:19], s28 offen nt")
        E("s_mov_b64 exec, -1")
        E.label("L_nowarm")
    stamp(8)
    E("s_barrier")
    stamp(9)
    for i in range(K0, D): kload(i)
    if gateq:
        E("s_cmp_lg_u32 s21, 3"); E("s_cbranch_scc1 L_kgo")
        E("v_mov_b32 v3, 0")
        lds_wait(C_GO, 4, 3, 4, sleep=4)
        E.label("L_kgo")
    setscc()
    for i in range(max(D, K0), 32):
        throttle(D); kload(i)
        if i in (4, 8): stamp(10 + (i == 8))
        if km and i == km:
            E("s_cmp_lg_u32 s21, 3"); E("s_cbranch_scc1 L_nokm"); E("v_mov_b32 v3, 0"); E("v_mov_b32 v4, 1"); E(f"ds_write_b32 v3, v4 offset:{C_NR}"); E.label("L_nokm")
        if fb and i == fb:
            E("s_cmp_lg_u32 s3, 3"); E("s_cbranch_scc1 L_nofb")
            E("s_memrealtime s[28:29]"); E("v_mov_b32 v3, 0"); E("s_waitcnt lgkmcnt(0)"); E("s_or_b32 s28, s28, 1"); E("v_mov_b32 v4, s28"); E(f"ds_write_b32 v3, v4 offset:{C_VH}")
            E.label("L_nofb")
        if kh and i == kh: E("v_mov_b32 v3, 0"); E("v_mov_b32 v4, 1"); E(f"ds_write_b32 v3, v4 offset:{C_KH}")
    stamp(1)
    if NL:
        E(f"s_mov_b32 s22, {SLOT_A}"); E("s_cmp_lt_u32 s5, 9"); E(f"s_cselect_b32 s22, {SLOT_B}, s22"); E(f"s_mul_i32 s28, s3, {NL*1024}"); E("s_add_u32 s22, s22, s28")
        for i in range(NL):
            if i % 4 == 0: E(f"s_add_u32 m0, s22, {i*1024}")
            throttle(D); vload(i)
            if kh == 32 + i: E("v_mov_b32 v3, 0"); E("v_mov_b32 v4, 1"); E(f"ds_write_b32 v3, v4 offset:{C_KH}")
    stamp(12)
    E("v_mov_b32 v2, 0")
    if 'q' not in dbg: lds_wait(C_Q, 1, 2, 3)
    if XL:
        E("s_cmp_eq_u32 s28, 1"); E(f"s_cselect_b32 s28, {XL}, 0"); E("s_add_u32 s23, s23, s28")
        XWV[0] = XL
    E(f"ds_read_b128 v[20:23], v36 offset:{QBUF}")
    E(f"s_mov_b32 s30, {SCALE}"); E(f"s_mov_b32 s31, {LOG2E}")
    E("v_mov_b32 v36, 0xff800000")
    mktag()
    stamp(2)
    setscc()
    st = dict(issued=NL)
    def qk_mfma(u):
        n = (28 - 4*u) + st['issued']
        if n < D + xd + st['issued'] and n < 63: E(f"s_waitcnt vmcnt({n})")
        for i in range(4*u, 4*u+4):
            E(f"v_mfma_f32_16x16x32_bf16 v[{SL(i)}:{SL(i)+3}], v[{SL(i)}:{SL(i)+3}], v[20:23], 0")
    def qk_post(u):
        if 'c' in dbg: return
        T = [24, 25, 26, 27]
        for k in range(4):
            for a in range(4):
                r = SL(4*u + a) + k
                if k == 0: E(f"v_mov_b32_dpp v{T[a]}, v{r} quad_perm:[0,0,0,0] row_mask:0xf bank_mask:0xf")
                else: E(f"v_add_f32_dpp v{T[a]}, v{r}, v{T[a]} quad_perm:[{k},{k},{k},{k}] row_mask:0xf bank_mask:0xf")
        E("v_cvt_pk_bf16_f32 v28, v24, v25"); E("v_cvt_pk_bf16_f32 v29, v26, v27")
        E("v_lshlrev_b32 v24, 16, v28"); E("v_and_b32 v25, 0xffff0000, v28")
        E("v_lshlrev_b32 v26, 16, v29"); E("v_and_b32 v27, 0xffff0000, v29")
        for a in range(4): E(f"v_mul_f32 v{T[a]}, s30, v{T[a]}")
        E(f"v_cvt_pk_bf16_f32 v{4+2*u}, v24, v25"); E(f"v_cvt_pk_bf16_f32 v{5+2*u}, v26, v27")
        E("v_max3_f32 v36, v24, v25, v36"); E("v_max3_f32 v36, v26, v27, v36")
    def vissue(d=None):
        i = st['issued']
        d = DV if d is None else d
        throttle(d); vload(i); st['issued'] += 1
        if i == v2: E("s_mov_b64 exec, 2"); E(f"ds_write_b32 v1, v1 offset:{C_V2-16}"); E("s_mov_b64 exec, -1")
        if fb and i == fbv:
            E(f"ds_read_b32 v2, v1 offset:{C_KH}"); E("s_waitcnt lgkmcnt(0)"); E("v_readfirstlane_b32 s28, v2"); E("s_lshr_b32 s28, s28, 1"); E("s_sub_u32 s28, 8, s28" if fbm else "s_nop 0"); E("s_add_u32 s23, s23, s28"); XWV[0] = 8
        if i == kv and not fb:
            E("s_mov_b64 exec, 2"); E(f"ds_write_b32 v1, v1 offset:{C_VH-16}"); E("s_mov_b64 exec, -1")
    def expo(k):
        if 'c' in dbg: return
        E(f"v_lshlrev_b32 v24, 16, v{4+k}"); E(f"v_and_b32 v25, 0xffff0000, v{4+k}")
        E("v_fma_f32 v24, v24, s31, -v37"); E("v_fma_f32 v25, v25, s31, -v37")
        E("v_exp_f32 v24, v24"); E("v_exp_f32 v25, v25")
        E("v_add_f32 v38, v38, v24"); E("v_add_f32 v39, v39, v25")
        E(f"v_cvt_pk_bf16_f32 v{4+k}, v24, v25")
    qk_mfma(0); qk_mfma(1); qk_post(0)
    if qs == 0:
        for _ in range(4): vissue(DQ)
        qk_mfma(2); qk_post(1)
        for _ in range(1 if DQ <= 4 else 4): vissue(DQ)
        for u in range(3, 8):
            qk_mfma(u); qk_post(u-1)
            if DQ > 4 or u % 2 == 0: vissue(DQ)
    else:
        vissue(DQ); vissue(DQ)
        for u in range(2, 8):
            qk_mfma(u); qk_post(u-1)
            if u % 2 == 1: vissue(DQ)
    qk_post(7)
    if NL:
        E(f"s_waitcnt vmcnt({st['issued'] - NL})"); E("v_add_u32 v3, s22, v1")
        for i in range(NL): E(f"ds_read_b128 v[{VS(i)}:{VS(i)+3}], v3 offset:{i*1024}")
    swap_reduce("v_max_f32", 36, 24, 16); swap_reduce("v_max_f32", 36, 24, 32)
    rnd(36, 36)
    E("v_mul_f32 v37, s31, v36"); E("v_mov_b32 v38, 0"); E("v_mov_b32 v39, 0")
    for k in range(16):
        if k % (4 if qs == 0 else 6) == (0 if qs == 0 else 2): vissue(DQ)
        expo(k)
    E("v_add_f32 v37, v38, v39")
    swap_reduce("v_add_f32", 37, 24, 16); swap_reduce("v_add_f32", 37, 24, 32)
    E("s_lshl_b32 s28, s3, 4"); E("v_add_u32 v3, s28, v0"); E("v_mov_b32 v24, 1")
    E("s_mov_b64 exec, 0x101"); E(f"ds_write_b64 v3, v[36:37] offset:{MLB}")
    E("s_mov_b64 exec, 1"); E(f"ds_add_u32 v2, v24 offset:{C_CNT}")
    E("s_mov_b64 exec, -1")
    stamp(3)
    E("v_and_b32 v3, 1, v0"); E("v_cmp_eq_u32 vcc, 1, v3")
    E("v_mov_b32 v32, 0x0c0c0100"); E("v_mov_b32 v33, 0x01000c0c"); E("v_cndmask_b32 v32, v32, v33, vcc")
    E("v_mov_b32 v34, 0x0c0c0302"); E("v_mov_b32 v33, 0x03020c0c"); E("v_cndmask_b32 v33, v34, v33, vcc")
    E("v_bfe_u32 v3, v0, 1, 2"); E("v_mov_b32 v34, 0x0c0c0c0c")
    for r in range(4):
        E(f"v_cmp_eq_u32 vcc, {r}, v3"); E(f"v_cndmask_b32 v{24+r}, v34, v32, vcc"); E(f"v_cndmask_b32 v{28+r}, v34, v33, vcc")
    E("v_and_b32 v3, 15, v0"); E("v_lshlrev_b32 v3, 5, v3"); E("v_bfe_u32 v2, v0, 4, 1"); E("v_lshl_add_u32 v3, v2, 4, v3")
    E("v_lshrrev_b32 v2, 5, v0"); E("v_lshl_add_u32 v3, v2, 9, v3"); E("s_lshl_b32 s28, s3, 10"); E("v_add_u32 v3, s28, v3")
    setscc()
    if NL: E("s_waitcnt lgkmcnt(0)")
    pv = dict(done=0)
    def pv_prep(i):
        A0 = 32 + 4 * (i & 1)
        for r in range(4): E(f"v_perm_b32 v{A0+r}, v{4+i//2}, v{4+i//2}, v{24+4*(i&1)+r}")
    def pv_mfma(i):
        A0 = 32 + 4 * (i & 1)
        c = "0" if i == 0 else "v[20:23]"
        E(f"v_mfma_f32_16x16x32_bf16 v[20:23], v[{A0}:{A0+3}], v[{VS(i)}:{VS(i)+3}], {c}")
    while st['issued'] < 32:
        vissue(DV - (1 if fbm and st['issued'] > fbv else 0) + (DE if st['issued'] >= 32 - NE else 0))
        n = 0
        while pv['done'] <= st['issued'] - 1 - DV - xd - (DE if st['issued'] > 32 - NE else 0) and n < 4:
            pv_prep(pv['done']); pv_mfma(pv['done']); pv['done'] += 1; n += 1
    E("v_mov_b32 v2, 0")
    if N2: lds_inc(C_GT, 2, 4)
    lds_wait(C_FAC, 1, 2, 4, sleep=1)
    E("s_mov_b32 s6, s28"); E("s_lshl_b32 s28, s3, 2")
    E("v_and_b32 v4, 32, v0"); E("v_add_u32 v4, s28, v4"); E(f"ds_read_b32 v5, v4 offset:{FAC}")
    tagbyte(6, 0)
    E("v_mov_b32 v4, 1")
    E("s_lshl_b32 s29, s4, 5"); E("s_add_u32 s29, s29, s5"); E("s_lshl_b32 s29, s29, 10")
    assert pv['done'] >= 6
    while pv['done'] < 32:
        i = pv['done']
        pv_prep(i)
        if 31 - i < DV + xd + DE: E(f"s_waitcnt vmcnt({31-i})")
        pv_mfma(i); pv['done'] += 1
    E("s_waitcnt lgkmcnt(0)")
    for k in range(4): E(f"v_mul_f32 v{20+k}, v5, v{20+k}")
    E(f"ds_write_b128 v3, v[20:23] offset:{OBUF}")
    E("s_mov_b64 exec, 1"); E(f"ds_add_rtn_u32 v4, v2, v4 offset:{C_OC}"); E("s_mov_b64 exec, -1")
    for w in range(8): E(f"ds_read_b128 v[{40+4*w}:{43+4*w}], v1 offset:{OBUF + w*1024}")
    if stamps is True: stamp(4)
    E("s_waitcnt lgkmcnt(8)")
    E("v_readfirstlane_b32 s28, v4"); E("s_cmp_lg_u32 s28, 7"); E("s_cbranch_scc1 L_noreduce")
    E.label("L_reduce")
    PK = lambda d, x, y: (E(f"v_pk_add_f32 v[{d}:{d+1}], v[{x}:{x+1}], v[{y}:{y+1}]"), E(f"v_pk_add_f32 v[{d+2}:{d+3}], v[{x+2}:{x+3}], v[{y+2}:{y+3}]"))
    E("s_waitcnt lgkmcnt(6)"); PK(40, 40, 44)
    E("s_waitcnt lgkmcnt(4)"); PK(48, 48, 52); PK(40, 40, 48)
    E("s_waitcnt lgkmcnt(2)"); PK(56, 56, 60); PK(40, 40, 56)
    E("s_waitcnt lgkmcnt(0)"); PK(64, 64, 68); PK(40, 40, 64)
    settag(40, 6)
    intra_store(["buffer_store_dwordx4 v[40:43], v1, s[24:27], s29 offen"])
    if oack: live("s_waitcnt vmcnt(0)")
    lds_set(C_OC, 2, 4, 9)
    stamp(5)
    E.label("L_noreduce")
    if 't' in dbg: E("s_branch L_sdone")
    E(f"s_sub_u32 s28, s5, {JW2}"); E("s_cmp_ge_u32 s28, 9"); E("s_cbranch_scc1 L_sdone")
    E("s_cmp_ge_u32 s3, 5"); E("s_cbranch_scc1 L_sdone")
    E("s_lshl_b32 s28, s3, 6"); E("v_add_u32 v2, s28, v0"); E("v_min_u32 v2, 287, v2")
    tagbyte(22, 2)
    E("v_lshlrev_b32 v1, 4, v2")
    E("v_lshlrev_b32 v2, 2, v2")
    E("s_mul_i32 s18, s4, 9216"); E(f"s_add_u32 s18, s18, {G_OFF}"); E("s_add_u32 s19, s18, 4608")
    E(f"v_mov_b32 v8, {LOG2E ^ 0x80000000}"); E("v_mov_b32 v9, v8"); E("v_mov_b32 v10, 1.0"); E("v_mov_b32 v11, 1.0")
    E("v_mov_b32 v3, 0")
    Rh = lambda t: 40 + 8 * t
    def gloads(t):
        E(f"buffer_load_dwordx4 v[{Rh(t)}:{Rh(t)+3}], v1, s[24:27], s18 offen sc1"); E(f"buffer_load_dwordx4 v[{Rh(t)+4}:{Rh(t)+7}], v1, s[24:27], s19 offen sc1")
    E("s_cbranch_execz L_hgo")
    E("s_waitcnt lgkmcnt(0)")
    E("s_barrier"); E("s_barrier")
    gloads(0)
    E("s_barrier"); E("s_barrier")
    E("s_waitcnt vmcnt(0)")
    E.label("L_hgo")
    stamp(6)
    def gfin(t):
        g, u = Rh(t), Rh(t) + 4
        E(f"v_pk_mul_f32 v[4:5], v[{g}:{g+1}], v[8:9]"); E(f"v_pk_mul_f32 v[6:7], v[{g+2}:{g+3}], v[8:9]")
        E(f"v_pk_mul_f32 v[16:17], v[{u}:{u+1}], v[{g}:{g+1}]"); E(f"v_pk_mul_f32 v[18:19], v[{u+2}:{u+3}], v[{g+2}:{g+3}]")
    ppoll(PG, 2, gloads, lambda t: lowcheck(20, [Rh(t), Rh(t)+2, Rh(t)+4, Rh(t)+6], 22), gfin)
    for e in range(4): E(f"v_exp_f32 v{4+e}, v{4+e}")
    E("v_pk_add_f32 v[4:5], v[4:5], v[10:11]"); E("v_pk_add_f32 v[6:7], v[6:7], v[10:11]")
    for e in range(4): E(f"v_rcp_f32 v{4+e}, v{4+e}")
    E("v_pk_mul_f32 v[16:17], v[16:17], v[4:5]"); E("v_pk_mul_f32 v[18:19], v[18:19], v[6:7]")
    E("v_cvt_pk_bf16_f32 v12, v16, v18"); E("v_cvt_pk_bf16_f32 v13, v17, v19")
    E(f"ds_write_b32 v2, v12 offset:{ACT0}"); E(f"ds_write_b32 v2, v13 offset:{ACT1}")
    E("s_waitcnt lgkmcnt(0)")
    E("s_cbranch_execz L_ret_s")
    E("s_barrier")
    stamp(7)
    E.label("L_sdone")
    E("s_cbranch_execz L_ret_s")
    stamp_flush(); E("s_endpgm")

    E.label("L_tailprep")
    E("s_mov_b64 s[88:89], -1")
    if reh:
        E("s_cmp_lg_u32 s3, 2"); E("s_cbranch_scc1 L_tp2")
        E("s_mov_b32 s6, 3"); E("s_mov_b32 s29, 0"); E("v_mov_b32 v2, 0")
        walk("L_reduce", "L_ret_s")
        E.label("L_tp2")
    else:
        E.label("L_ret_s")
    E("s_cmp_lt_u32 s5, 27"); E("s_cbranch_scc1 L_tail1")
    E("s_sub_u32 s28, s2, 224"); E("s_cmp_ge_u32 s28, 6"); E("s_cbranch_scc1 L_svc_end")
    lds_wait(C_GO, 4, 1, 8, sleep=4)
    if lj == 0: lds_wait(C_OC, ko, 1, 8, sleep=2)
    elif lj == 1: lds_wait(C_CNT, 8, 1, 8, sleep=4)
    elif lj == 2: lds_wait(C_V2, 1, 1, 8, sleep=4)
    E("s_mov_b32 s21, 2"); E("s_add_u32 s22, s4, 48"); E("s_mov_b32 s18, 8"); E("s_branch L_job")
    E.label("L_tail1")
    E("s_cmp_lt_u32 s5, 9"); E("s_cbranch_scc1 L_owner")

    def wsetup():
        op_addrs()
        E(f"v_mov_b32 v8, {ZBUF}"); E(f"v_mov_b32 v9, {CBUF}"); E(f"v_mov_b32 v10, {SBUF}")
        E("v_cmp_eq_u32 vcc, 1, v6"); E("v_cndmask_b32 v4, v8, v9, vcc"); E("v_cmp_eq_u32 vcc, 2, v6"); E("v_cndmask_b32 v4, v4, v10, vcc")
        E("v_bfe_u32 v7, v0, 2, 1"); E("v_mul_u32_u24 v7, 1152, v7"); E("v_lshl_add_u32 v7, v5, 4, v7"); E("v_add_u32 v4, v4, v7")
        E("v_and_b32 v3, 1, v0"); E("v_xor_b32 v3, 1, v3"); E(f"v_mul_u32_u24 v3, {ACT0-ACT1}, v3"); E("v_lshl_add_u32 v3, v5, 4, v3")
        E("s_sub_u32 s30, s5, 9"); E("s_lshl_b32 s30, s30, 2"); E("s_add_u32 s30, s30, s3")
        E("s_lshl_b32 @S0@, s30, 7"); E("s_mul_i32 s29, s4, 9216"); E("s_add_u32 @S0@, @S0@, s29"); E(f"s_add_u32 @S0@, @S0@, {G_OFF}")
        E(f"s_mul_i32 @S1@, s4, {ZS}"); E(f"s_add_u32 @S1@, @S1@, {Z_OFF}")
        E(f"s_sub_u32 s30, s5, {JW2}"); E("s_lshl_b32 s30, s30, 2"); E("s_add_u32 s30, s30, s3"); E("s_lshl_b32 s30, s30, 7")
        E("s_lshl_b32 @S2@, s4, 14"); E("s_add_u32 @S2@, @S2@, s30"); E(f"s_add_u32 @S2@, @S2@, {Y_OFF}"); E("s_add_u32 @S6@, @S2@, 8192")
        E("s_mul_i32 s28, s3, 45"); E("v_min_u32 v12, 44, v0"); E("v_add_u32 v12, s28, v12"); E("v_lshlrev_b32 v12, 4, v12")
        E("v_and_b32 v8, 15, v0"); E("v_lshrrev_b32 v9, 5, v0"); E("v_lshl_add_u32 v9, v9, 4, v8"); E("v_cmp_gt_u32 vcc, 18, v9")
        E("v_bfe_u32 v10, v0, 4, 1"); E("v_mul_u32_u24 v11, 288, v10"); E("v_lshl_add_u32 v16, v9, 4, v11"); E(f"v_add_u32 v16, {ZBUF + 2304}, v16")
        E(f"v_mov_b32 v9, {ZERO}"); E("v_cndmask_b32 v16, v9, v16, vcc")
        E("v_and_b32 v8, 3, v0"); E("v_lshlrev_b32 v8, 2, v8"); E(f"ds_write_b32 v8, v1 offset:{ZERO}")
        E("v_lshlrev_b32 v7, 3, v0")
        E("s_mov_b32 @S4@, 0x3ae38e39"); E("s_mov_b32 @S5@, 0x3727c5ac")
    if reh:
        E("s_cmp_lg_u32 s3, 1"); E("s_cbranch_scc1 L_now_w")
        wsetup()
        E("s_mov_b32 s6, 3")
        walk("L_wt", "L_ret_w")
        E.label("L_now_w")
    else: E.label("L_ret_w")
    if 't' not in dbg:
        lds_wait(C_Q, 1, 1, 8, sleep=8)
        mktag()
        own_map()
        modgather(1728, 2304)
        for i in range(3):
            E(f"v_add_f32 v{30+2*i}, 1.0, v{30+2*i}"); E(f"v_add_f32 v{31+2*i}, 1.0, v{31+2*i}")
            E(f"v_cvt_pk_bf16_f32 v12, v{30+2*i}, v{31+2*i}"); E(f"v_cvt_pk_bf16_f32 v13, v{24+2*i}, v{25+2*i}")
            a_, o_ = ((10, 0), (10, 128), (11, 0))[i]
            E(f"ds_write_b32 v{a_}, v12 offset:{CBUF+o_}"); E(f"ds_write_b32 v{a_}, v13 offset:{SBUF+o_}")
    lds_wait(C_BAR, 1, 1, 8, sleep=4)
    E("s_mov_b32 s6, s28")
    wsetup()
    E("s_mov_b32 s20, 9216")
    dma_addrs(24, 25, 26)
    E("s_cmp_ge_u32 s5, 18"); E("s_cselect_b32 s8, s50, s48"); E("s_cselect_b32 s9, s51, s49"); E("s_cselect_b32 s28, 18, 9"); E("s_sub_u32 s28, s5, s28")
    E(f"s_mov_b32 s10, {576*9216}"); E("s_mov_b32 s11, 0x20000")
    E("s_mul_i32 s16, s4, 1152"); E("s_lshl_b32 s28, s28, 7"); E("s_add_u32 s16, s16, s28")
    E(f"s_mul_i32 s28, s3, {8*9216}"); E("s_add_u32 s16, s16, s28"); E(f"s_mov_b32 s17, {32*9216}")
    E("s_lshl_b32 s29, s3, 10"); E(f"s_add_u32 s29, s29, {SLOT_A}"); E("s_mov_b32 s19, 9")
    E("s_bitcmp1_b32 s3, 0"); E("s_cselect_b64 vcc, -1, 0"); E("v_cndmask_b32 v24, v24, v25, vcc")
    E("v_lshrrev_b32 v5, 1, v0"); tagbyte(5, 5)

    if tlb:
        E(f"v_mul_u32_u24 v26, {143*9216}, v0"); E("s_mov_b64 exec, 3"); E("buffer_load_dword v27, v26, s[8:11], s16 offen nt"); E("s_mov_b64 exec, -1")
    if NP or NP3:
        E("s_bfe_u32 s30, s16, 0x30007"); E("s_cmp_eq_u32 s30, 3"); E(f"s_cselect_b32 s19, {NP3}, {NP}"); E("s_sub_u32 s31, 9, s19")
        E("s_cmp_eq_u32 s19, 0"); E("s_cbranch_scc1 L_nol1")
        if NL: lds_wait(C_CNT, 8, 1, 8, sleep=4)
        else: lds_wait(C_VH, 1, 1, 8, sleep=4)
        dma_loop("L_dma_l1", DW1, 24, 24, 4096)
        E.label("L_nol1")
        E("s_mov_b32 s19, s31")
    if k1:
        lds_wait(C_OC, k1, 1, 8, sleep=1)
        E(f"s_sub_u32 s31, s19, {N1}"); E(f"s_mov_b32 s19, {N1}"); dma_loop("L_dma_l2", 0, 24, 24, 4096); E("s_mov_b32 s19, s31")
    if N2:
        assert not gate
        lds_wait(C_GT, k2, 1, 8, sleep=1)
        E(f"s_sub_u32 s31, s19, {N2}"); E(f"s_mov_b32 s19, {N2}"); dma_loop("L_dma_l3", 0, 24, 24, 4096); E("s_mov_b32 s19, s31")
    if gate:
        E("s_cmp_lg_u32 s3, 1"); E("s_cbranch_scc1 L_gt2")
        lds_wait(C_VH, 1, 1, 8, sleep=2)
        E(f"s_cmp_lg_u32 s5, {gj}"); E("s_cbranch_scc1 L_gt1")
        E("s_lshl_b32 s28, s4, 7"); E(f"s_add_u32 s28, s28, {PG_OFF}"); E("v_mov_b32 v8, s35")
        E("s_mov_b64 exec, 1"); E("buffer_store_dword v8, v1, s[24:27], s28 offen sc1"); E("s_mov_b64 exec, -1")
        E.label("L_gt1")
        lds_wait(C_OC, gk, 1, 8, sleep=1)
        E(f"s_mov_b32 s30, {PG_OFF}"); E("v_and_b32 v9, 7, v0"); E("v_lshlrev_b32 v9, 7, v9"); E("s_mov_b32 s7, 0")
        E.label("L_gtp")
        E("buffer_load_dword v8, v9, s[24:27], s30 offen sc1"); E("s_waitcnt vmcnt(0)")
        E("v_cmp_eq_u32 vcc, s35, v8"); E("s_bcnt1_i32_b64 s31, vcc")
        E(f"s_cmp_ge_u32 s31, {gate*8}"); E("s_cbranch_scc1 L_gtd")
        E(f"s_sleep {gsl}"); E("s_add_u32 s7, s7, 1"); E(f"s_cmp_lt_u32 s7, {plim}"); E("s_cbranch_scc1 L_gtp")
        E.label("L_gtd")
        lds_set(C_GT, 1, 8, 1)
        E.label("L_gt2")
        lds_wait(C_GT, 1, 1, 8, sleep=2)
    lds_wait(C_OC, ko, 1, 8, sleep=1)
    if prio: E(f"s_setprio {prio}")
    stamp(5)
    if 'w' not in dbg: dma_loop("L_dma_late", DW, 24, 24, 4096)
    if 't' in dbg:
        E("s_waitcnt vmcnt(0)"); stamp(6); E("s_branch L_svc_end")
    Rz = lambda t: 84 + 4 * t
    def zload(t): E(f"buffer_load_dwordx4 v[{Rz(t)}:{Rz(t)+3}], v12, s[24:27], @S1@ offen sc1")
    def zcheck(t):
        E(f"ds_write_b128 v12, v[{Rz(t)}:{Rz(t)+3}] offset:{ZBUF}")
        E(f"v_max3_u32 v8, v{Rz(t)}, v{Rz(t)+1}, v{Rz(t)+2}"); E(f"v_max_u32 v8, v8, v{Rz(t)+3}"); E("v_cmp_eq_u32 vcc, -1, v8")
    E(f"s_waitcnt vmcnt({18-KA})")
    E("s_barrier")
    E.label("L_wt")
    stage_b(SLOT_A, KA, wait=False, t=9)
    E(f"s_waitcnt vmcnt({ZL})")
    zload(0)
    E("s_cbranch_execz L_wt2")
    E("s_waitcnt vmcnt(1)")
    E("s_barrier")
    stamp(6)
    E.label("L_wt2")
    stage_b(SLOT_A, 18, wait=False, k0=KA, t=9)
    stamp(7)
    E("s_mov_b32 s7, 0"); E("s_branch L_zchk")
    E.label("L_zpl")
    zload(0)
    E.label("L_zchk")
    E("s_waitcnt vmcnt(0)")
    zcheck(0)
    E("s_cbranch_vccz L_zok")
    E("s_add_u32 s7, s7, 1"); E(f"s_cmp_lt_u32 s7, {plim}"); E("s_cbranch_scc1 L_zpl")
    E.label("L_zok")
    E("s_waitcnt lgkmcnt(0)")
    live("s_barrier")
    stamp(8)
    NSP = 2
    for k in range(NSP): E(f"ds_read_b128 v[{AT(k)}:{AT(k)+3}], v4 offset:{k*64}")
    E("ds_read_b128 v[20:23], v16")
    F = ["v_pk_add_f32 v[18:19], v[20:21], v[22:23]", "v_permlane32_swap_b32 v18, v19", "v_add_f32 v18, v18, v19"]
    F += [f"v_add_f32_dpp v18, v18, v18 row_ror:{k} row_mask:0xf bank_mask:0xf" for k in (1, 2, 4, 8)]
    F += ["v_mul_f32 v18, @S4@, v18", "v_mov_b32 v19, v18", "v_permlane32_swap_b32 v18, v19", "v_fma_f32 v19, -v18, v18, v19", "v_max_f32 v19, 0, v19"]
    R = lambda r: [f"v_cvt_pk_bf16_f32 v{r}, v{r}, v{r}", f"v_and_b32 v{r}, 0xffff0000, v{r}"]
    if mim: F += R(19) + ["v_add_f32 v19, @S5@, v19"] + R(19) + ["v_sqrt_f32 v19, v19"] + R(18) + R(19) + ["v_rcp_f32 v19, v19"]
    else: F += ["v_add_f32 v19, @S5@, v19", "v_rsq_f32 v19, v19"]
    gemv(4, 0, 18, 8, F, pre=NSP, extra=1)
    E("v_fma_f32 v8, -v18, v9, v8"); E("v_fma_f32 v8, v8, v19, v10")
    E("v_mov_b32 v9, v8"); E("v_permlane16_swap_b32 v8, v9")
    settag(8, 5)
    E(X(0xffff))
    intra_store(["buffer_store_dwordx2 v[8:9], v7, s[24:27], @S0@ offen"])
    E(X(-1))
    stamp(13)
    E(f"s_sub_u32 s28, s5, {JW2}"); E("s_cmp_ge_u32 s28, 9"); E("s_cbranch_scc1 L_wend")
    live("s_barrier")
    stage_b(SLOT_B, 18)
    tagbyte(5, 0)
    live("s_barrier")
    stamp(14)
    gemv(3, ACT1, 18, 8)
    settag(8, 5)
    E(X(0xffff))
    E("buffer_store_dwordx2 v[8:9], v7, s[24:27], @S2@ offen sc1")
    if numa: E("buffer_store_dwordx2 v[8:9], v7, s[24:27], @S6@ offen sc1")
    stamp(15)
    E.label("L_wend")
    E("s_cbranch_execz L_ret_w")
    E("s_branch L_svc_end")

    E.label("L_owner")
    if 't' in dbg: E("s_waitcnt vmcnt(0)"); E("s_branch L_svc_end")
    E("s_waitcnt vmcnt(0)")
    lds_inc(C_D1, 1, 8)
    mktag()
    op_addrs()
    E("s_lshl_b32 s22, s5, 2"); E("s_add_u32 s22, s22, s3")
    E("v_and_b32 v6, 15, v0"); E("v_bfe_u32 v7, v0, 4, 1"); E("v_lshrrev_b32 v20, 4, v0"); E("v_lshlrev_b32 v20, 14, v20"); E("v_lshl_add_u32 v20, v6, 3, v20")
    E("v_mul_u32_u24 v21, 1152, v7"); E("v_lshl_add_u32 v21, v6, 1, v21")
    E("v_mul_u32_u24 v22, 288, v7")
    E("v_lshlrev_b32 v23, 3, v6")
    E("v_cmp_eq_u32 vcc, 0, v7"); E("v_mov_b32 v19, 0x03020c0c"); E("v_mov_b32 v6, 0x01000c0c"); E("v_cndmask_b32 v19, v19, v6, vcc")
    E("s_lshl_b32 s23, s22, 5")
    srd(8, 36, 2304); srd(12, 58, 2304)
    E("s_lshl_b32 s28, s22, 7"); E(f"s_add_u32 s32, s28, {MOD_OFF + 1152*8}"); E(f"s_add_u32 s33, s32, {1152*8}"); E(f"s_add_u32 s19, s33, {576*8}")
    E("s_lshl_b32 s29, s4, 14"); E("s_add_u32 s29, s29, s28")
    E(f"s_add_u32 s18, s29, {X_OFF}"); E(f"s_add_u32 s{SO(4)}, s18, 8192")
    XS = SO
    for k in range(4): E(f"s_add_u32 s{XS(k)}, s28, {(X_OFF, X_OFF + 4*16384, Y_OFF, Y_OFF + 4*16384)[k]}")
    E(f"s_mul_i32 s20, s4, {ZS}"); E("s_add_u32 s20, s20, s23"); E(f"s_add_u32 s20, s20, {Z_OFF}")
    E(f"s_mul_i32 s21, s4, {ZS}"); E("s_lshl_b32 s28, s22, 3"); E("s_add_u32 s21, s21, s28"); E(f"s_add_u32 s21, s21, {ST_OFF}")
    E("s_lshl_b32 s28, s4, 5"); E("s_lshl_b32 s29, s3, 3"); E("s_add_u32 s28, s28, s29")
    E("s_lshl_b32 s16, s28, 10"); E("s_add_u32 s17, s16, 4096")
    E("v_lshlrev_b32 v7, 3, v0"); E("v_mov_b32 v6, 0")
    if reh:
        E("s_cmp_lg_u32 s3, 1"); E("s_cbranch_scc1 L_now_o")
        E("s_mov_b32 s6, 3")
        walk("L_ot", "L_ret_o")
        E.label("L_now_o")
    else: E.label("L_ret_o")
    if numa:
        E("s_cmp_lg_u32 s3, 2"); E("s_cbranch_scc1 L_nonuma")
        E("s_lshl_b32 s28, s4, 14"); E("s_lshl_b32 s29, s5, 8"); E("s_add_u32 s28, s28, s29"); E(f"s_add_u32 s28, s28, {X_OFF + 4608}")
        NPR = 4
        for k in range(NPR):
            E(f"s_add_u32 s{36+2*k}, s28, {(k & 1) * 0x20000 + (k >> 1) * 1152}"); E(f"s_add_u32 s{37+2*k}, s{36+2*k}, 8192")
        for k in range(2 * NPR): E(f"s_buffer_load_dword s{44+k}, s[24:27], s{36+k} glc")
        E("s_mov_b32 s30, 0"); E("s_mov_b32 s31, 0")
        E("s_waitcnt lgkmcnt(0)")
        E.label("L_numa")
        for k in range(NPR):
            order = (0, 1) if k & 1 else (1, 0)
            sec = order[1]
            E(f"s_not_b32 s{52+sec}, s{44+2*k+sec}")
            for c in order: E(f"s_buffer_load_dword s{52+c}, s[24:27], s{36+2*k+c} glc")
            E("s_waitcnt lgkmcnt(1)"); E("s_nop 7")
            E(f"s_cmp_{'eq' if sec else 'lg'}_u32 s{52+sec}, s{44+2*k+sec}"); E("s_addc_u32 s30, s30, 0")
            E("s_waitcnt lgkmcnt(0)")
        E("s_add_u32 s31, s31, 1"); E(f"s_cmp_lt_u32 s31, {NRR}"); E("s_cbranch_scc1 L_numa")
        if pool:
            E("s_lshl_b32 s31, s4, 7"); E(f"s_add_u32 s31, s31, {VT_OFF}"); E("s_lshl_b32 s29, s5, 3"); E("s_add_u32 s29, s29, s31")
            E("v_mov_b32 v24, s30"); E("v_mov_b32 v25, s35")
            E("s_mov_b64 exec, 1"); E("buffer_store_dwordx2 v[24:25], v1, s[24:27], s29 offen sc1"); E("s_mov_b64 exec, -1")
            lds_wait(C_CNT, 8, 1, 8, sleep=8)
            E("v_min_u32 v26, 64, v23")
            def vtbody():
                E("buffer_load_dwordx2 v[24:25], v26, s[24:27], s31 offen sc1"); E("s_waitcnt vmcnt(0)"); tagcheck(27, [25])
            poll(vtbody, 16)
            E("v_cmp_gt_u32 vcc, 72, v23"); E("v_cndmask_b32 v24, 0, v24, vcc")
            row_reduce("v_add_u32", 24, (1, 2, 4, 8))
            E("v_readfirstlane_b32 s30, v24")
        if stamps is True: E("s_mov_b32 s71, s30"); stamp(2)
        E(f"s_cmp_gt_u32 s30, {(9 if pool else 1)*NPR*NRR//2}"); E(f"s_cselect_b32 s30, {8193 if numa == 1 else 1}, {1 if numa == 1 else 8193}")
        lds_set(C_NR, 1, 8, "s30")
        E.label("L_nonuma")
    lds_wait(C_BAR, 1, 1, 8, sleep=8)
    E("s_mov_b32 s6, s28")
    lds_wait(C_D1, 4, 1, 8, sleep=4)
    stage_b(SLOT_A, 16)
    E("buffer_load_ushort v16, v21, s[8:11], s23 offen")
    def gabody():
        for k in range(2): E(f"buffer_load_dwordx2 v[{24+2*k}:{25+2*k}], v23, s[24:27], s{32+k} offen sc1")
        E("s_waitcnt vmcnt(0)")
        tagcheck(6, [25, 27])
    poll(gabody, 8)
    for k in range(2): E(f"v_perm_b32 v{17+k}, v{24+2*k}, v{24+2*k}, v19")
    E("v_lshlrev_b32 v16, 16, v16"); E("v_add_f32 v18, 1.0, v18"); rnd(18, 18)
    E("v_lshlrev_b32 v5, 4, v0")
    E("s_lshr_b32 s28, s3, 1"); E("s_mul_i32 s28, s28, 1152"); E("s_and_b32 s29, s3, 1"); E("s_lshl_b32 s29, s29, 9"); E("s_add_u32 s28, s28, s29")
    E("v_add_u32 v6, s28, v7")
    lds_wait(C_V2, 1, 1, 8, sleep=8)
    E("s_lshl_b32 s28, s4, 5"); E("s_lshl_b32 s29, s3, 3"); E("s_add_u32 s28, s28, s29")
    E("s_lshl_b32 s28, s28, 5"); E(f"s_add_u32 s28, s28, {ML_OFF}")
    E("v_and_b32 v28, 15, v0"); E("v_lshlrev_b32 v28, 4, v28")
    def mlbody():
        E("buffer_load_dwordx4 v[24:27], v28, s[24:27], s28 offen sc1"); E("s_waitcnt vmcnt(0)"); tagcheck(29, [26])
    tagbyte(4, 0)
    poll(mlbody, sl_ml)
    E(f"s_mov_b32 s31, {LOG2E}")
    E("v_mov_b32 v27, v24"); row_reduce("v_max_f32", 27, (2, 4, 8))
    E("v_sub_f32 v27, v24, v27"); E("v_mul_f32 v27, s31, v27"); E("v_exp_f32 v27, v27"); E("v_mul_f32 v28, v27, v25")
    row_reduce("v_add_f32", 28, (2, 4, 8))
    E("v_rcp_f32 v28, v28"); E("v_lshrrev_b32 v26, 5, v0"); E("v_lshlrev_b32 v26, 2, v26"); E("v_mul_f32 v27, v27, v28")
    for s_ in range(8): E(f"ds_bpermute_b32 v{8+s_}, v26, v27 offset:{8*s_}")
    E("s_waitcnt lgkmcnt(0)")
    if numa:
        lds_wait(C_NR, 1, 1, 24, sleep=4)
        E("s_sub_u32 s28, s28, 1"); E("v_add_u32 v20, s28, v20")
    stamp(6)
    lds_wait(C_OC, 8, 1, 24, sleep=1)
    stamp(7)
    E.label("L_ot")
    def obody():
        for s in range(8): E(f"buffer_load_dwordx4 v[{24+4*s}:{27+4*s}], v5, s[24:27], s{16 + s//4} offen offset:{(s%4)*1024} sc1")
        for s in range(8):
            E(f"s_waitcnt vmcnt({7-s})")
            E(f"v_xor_b32 v{24+4*s}, v4, v{24+4*s}")
            for k in (1, 2, 3, 0):
                if s == 0: E(f"v_mul_f32 v{56+k}, v8, v{24+k}")
                else: E(f"v_fmac_f32 v{56+k}, v{8+s}, v{24+4*s+k}")
            if s == 2: E("v_or3_b32 v60, v24, v28, v32")
            if s in (4, 6): E(f"v_or3_b32 v60, v60, v{20+4*s}, v{24+4*s}")
        E("v_cvt_pk_bf16_f32 v56, v56, v57"); E("v_cvt_pk_bf16_f32 v57, v58, v59")
        E(f"ds_write_b64 v6, v[56:57] offset:{ABUF}")
        E("v_or_b32 v60, v60, v52"); E("v_and_b32 v60, 0xfff, v60"); E("v_cmp_ne_u32 vcc, 0, v60")
    poll(obody, sl_o)
    stamp(8)
    E("s_waitcnt lgkmcnt(0)")
    live("s_barrier")
    gemv(3, ABUF, 16, 8)
    settag(8, 4)
    E(X(0xffff))
    E("buffer_store_dwordx2 v[8:9], v7, s[24:27], s18 offen sc1")
    if numa: E(f"buffer_store_dwordx2 v[8:9], v7, s[24:27], s{SO(4)} offen sc1")
    E(X(-1))
    stamp(9)
    def gather8(base):
        Rg = lambda t: 32 + 4 * t
        def loads(t):
            E(f"buffer_load_dwordx2 v[{Rg(t)}:{Rg(t)+1}], v20, s[24:27], s{XS(base)} offen sc1")
            E(f"buffer_load_dwordx2 v[{Rg(t)+2}:{Rg(t)+3}], v20, s[24:27], s{XS(base+1)} offen sc1")
        ppoll(PX, 2, loads, lambda t: lowcheck(28, [Rg(t), Rg(t)+2], 4),
              lambda t: E(f"v_pk_add_f32 v[24:25], v[{Rg(t)}:{Rg(t)+1}], v[{Rg(t)+2}:{Rg(t)+3}]"))
    def fold8():
        E("v_permlane16_swap_b32 v24, v25"); E("v_add_f32 v24, v24, v25"); swap_reduce("v_add_f32", 24, 25, 32)
    if xwait: E("s_waitcnt vmcnt(0)")
    gather8(0)
    stamp(10)
    fold8()
    rnd(24, 24); E("v_mul_f32 v24, v17, v24"); rnd(24, 24); E("v_add_f32 v16, v16, v24"); rnd(16, 16)
    E("v_mul_f32 v24, v16, v18"); E("v_mul_f32 v27, v16, v16")
    E("v_add_f32_dpp v26, v16, v16 row_ror:1 row_mask:0xf bank_mask:0xf")
    E("v_mov_b32_dpp v25, v24 quad_perm:[1,1,3,3] row_mask:0xf bank_mask:0xf")
    E("v_add_f32_dpp v27, v27, v27 row_ror:1 row_mask:0xf bank_mask:0xf")
    E("v_cvt_pk_bf16_f32 v24, v24, v25")
    rest = []
    for k in (2, 4, 8):
        rest += [f"v_add_f32_dpp v{r}, v{r}, v{r} row_ror:{k} row_mask:0xf bank_mask:0xf" for r in (26, 27)]
    intra_store([X(0x55555555), "buffer_store_dword v24, v21, s[24:27], s20 offen", X(-1)] + rest +
                [X(0x10001), "buffer_store_dwordx2 v[26:27], v22, s[24:27], s21 offen"])
    E(X(-1))
    stamp(11)
    E("s_and_b32 s28, s5, 7"); E("s_cmp_lg_u32 s28, s4"); E("s_cbranch_scc1 L_oend")
    E("v_and_b32 v5, 15, v0"); E("v_lshlrev_b32 v5, 3, v5")
    def gbbody():
        E("buffer_load_dwordx2 v[24:25], v5, s[24:27], s19 offen sc1"); E("s_waitcnt vmcnt(0)"); tagcheck(6, [25])
    poll(gbbody, 1)
    E("v_perm_b32 v19, v24, v24, v19")
    gather8(2)
    stamp(14)
    fold8()
    rnd(24, 24); E("v_mul_f32 v24, v19, v24"); rnd(24, 24); E("v_add_f32 v24, v16, v24")
    E("v_mov_b32_dpp v25, v24 quad_perm:[1,1,3,3] row_mask:0xf bank_mask:0xf")
    E("v_cvt_pk_bf16_f32 v24, v24, v25")
    E(X(0x55555555))
    E("buffer_store_dword v24, v21, s[12:15], s23 offen")
    stamp(15)
    E.label("L_oend")
    E("s_cbranch_execz L_ret_o")
    E("s_or_b32 s28, s22, s4"); E("s_cbranch_scc1 L_svc_end")
    E(X(1)); E("v_mov_b32 v24, s35"); E(f"s_mov_b32 s28, {EP_OFF}")
    E("buffer_store_dword v24, v1, s[24:27], s28 offen")
    if probe is not None:
        E(f"s_add_u32 s29, s{70+probe}, 6000")
        E.label("L_probe")
        E("s_sleep 1"); E("s_memrealtime s[92:93]"); E("s_waitcnt lgkmcnt(0)"); E("s_sub_u32 s28, s29, s92"); E("s_cmp_gt_i32 s28, 0"); E("s_cbranch_scc1 L_probe")
    E.label("L_svc_end")
    E("s_waitcnt lgkmcnt(0)")
    if stamps: E("s_add_u32 s3, s3, 8")
    stamp_flush()
    E("s_endpgm")
    for a_, b_, ins in cold:
        E.label(a_)
        for i in ins: E(i + (" sc1" if i.startswith("buffer_") else ""))
        E(f"s_branch {b_}")
    E.label("L_exit")
    E.lines = [re.sub(r'@S(\d)@', lambda m: 's%d' % SO(int(m.group(1))), l) for l in E.lines]
    body = E.finish()
    verify_stream(body)
    return HDR + f"""; @launch grid=(256,1,1) block=(768,1,1) lds=163840
.amdgcn_target "amdgcn-amd-amdhsa--gfx950"
.text
.globl {NAME}_kernel
.p2align 8
.type {NAME}_kernel,@function
{NAME}_kernel:
{body}
    s_endpgm
.section .rodata,"a"
.p2align 6
.amdhsa_kernel {NAME}_kernel
  .amdhsa_next_free_vgpr 168
  .amdhsa_next_free_sgpr 102
  .amdhsa_accum_offset 168
  .amdhsa_group_segment_fixed_size 0
  .amdhsa_kernarg_size 112
  .amdhsa_float_denorm_mode_32 3
  .amdhsa_user_sgpr_count 2
  .amdhsa_user_sgpr_kernarg_segment_ptr 1
  .amdhsa_system_sgpr_workgroup_id_x 1
.end_amdhsa_kernel
"""

def verify_stream(body):
    import re
    lines = [l.strip() for l in body.split('\n')]
    a = lines.index('L_k0:'); b = lines.index('L_service:'); c = lines.index('L_stream:'); d = lines.index('L_noreduce:')
    path = lines[a:b] + lines[c:d]
    issued = []; landed = 0; skip = None; last = {}
    for l in path:
        if skip:
            if l == skip + ':': skip = None
            continue
        m = re.match(r's_cbranch_scc1 (L_th_\d+)', l)
        if m: skip = m.group(1); continue
        m = re.match(r'buffer_load_dwordx4 v\[(\d+):', l)
        if m: issued.append(int(m.group(1))); last[int(m.group(1))] = len(issued); continue
        if re.match(r'buffer_load_dwordx4 v1, .* lds', l): issued.append(-1); nlds = len(issued); continue
        m = re.match(r'ds_read_b128 v\[(\d+):\d+\], v3 ', l)
        if m: assert landed >= nlds; last.pop(int(m.group(1)), None); continue
        m = re.search(r'vmcnt\((\d+)\)', l)
        if m: landed = max(landed, len(issued) - int(m.group(1))); continue
        m = re.match(r'v_mfma\S+ v\[(\d+):\d+\], v\[(\d+):\d+\], v\[(\d+):', l)
        if m:
            for r in (int(m.group(2)), int(m.group(3))):
                if r in last: assert last[r] <= landed, f"unwaited operand: {l}"
    assert len(issued) == 64 and landed == 64

HDR = """; adaLN-conditioned GQA decode attention + SwiGLU block, one persistent launch (generated by gen/gen10.py)
"""
if __name__ == '__main__':
    kw = eval('dict(' + (sys.argv[2] if len(sys.argv) > 2 else '') + ')')
    open(sys.argv[1], 'w').write(gen(**kw))
```

```python
import sys, re
from emit import Emit
NAME = 'adaLN_cond__gqa_block_cached__glu_gated_swiglu__decode'

O_OFF, G_OFF = 0x0, 0x40000
X_OFF, Y_OFF = 0x80000, 0xA0000
Z_OFF, ML_OFF = 0x64000, 0x6C000; ZS = 3072; ST_OFF = Z_OFF + 2304
EP_OFF = 0xC0000
FL_OFF = 0xC1000
PG_OFF = 0xC3000
VT_OFF = 0xC2000
Q_OFF, MOD_OFF = 0xC8000, 0xD0000
STAMP_OFF = 0x100000
WS_SIZE = 0x200000
C_BAR, C_Q, C_CNT, C_D1, C_D2, C_GT, C_GO, C_J1, C_J2, C_KH, C_VH, C_OC, C_FAC, C_V2, C_G, C_NR = range(0, 64, 4)
FAC, MLB, QBUF = 64, 128, 256
CBUF, SBUF = 1216, 3552
ABUF = 1216
ACT0, ACT1 = 15104, 64
ZERO = 5856
JBUF, ZBUF, OBUF = 5888, 5888, 8192
SLOT_A, SLOT_B = 16384, 90112
LOG2E = 0x3fb8aa3b
SCALE = 0x3db504f3
JW2, JQ0 = 15, 24

def gen(D=3, DV=3, DQ=3, stamps=False, force_slow=False, sl_long=2, sl_bar=16, gateq=0, kvf='nt', wf='nt',
        plim=0x20000, probe=None, cpf=0, sl_o=0, sl_z=0, dbg='', XW=(0,0,0,0,3,4), XD=1, sl_ml=32, kh=29, sl_q=4,
        XG=1, DE=5, NE=10, kv=12, DW=0, DEA=0, DJ=0, K0=3, DJQ=0, EB=0, QB=0, ko=9, omask=0, xwait=0, NP=0, DW1=2, NP3=4, XL=0, k1=0, N1=2, PX=1, PG=1, hg=1, reh=1, oack=0, tlb=0, warm='', NL=4, v2=22, qs=1, numa=1, NRR=2, pool=1, KA=14, ZL=1, gate=0, gj=20, gsl=2, gk=6, N2=2, k2=8, jreh=0, xe=1, fb=0, fbg=20, fbo=0, fbv=12, fbl=0, fbm=0, XN=(0,10,22,10,20,52,36,40), km=12, LE=((0,50,3),), prio=3, kms=1, LX=1, pat=dict(t=[(1,15,'j'),(2,10,'j1w'),(2,16,'j3w')]), XM=0, XMN=0, AD=6, mim=0, lj=0, XJ=40):
    assert ko == 9
    E = Emit()
    uid = [0]
    def L(p):
        uid[0] += 1
        return f"L_{p}_{uid[0]}"
    def stamp(k):
        if stamps and (stamps not in ('lite', 'entry') or k in (0, 15)):
            E("s_memrealtime s[92:93]"); E("s_waitcnt lgkmcnt(0)"); E(f"s_mov_b32 s{70+k}, s92")
    def stamp_flush():
        if stamps:
            E("s_mov_b64 exec, -1")
            if stamps == 'entry': E("s_mov_b32 s71, s86")
            E("v_mov_b32 v4, 0")
            for k in range(16): E(f"v_writelane_b32 v4, s{70+k}, {k}")
            E("s_lshl_b32 s28, s4, 5"); E("s_add_u32 s28, s28, s5"); E("s_mul_i32 s28, s28, 12"); E("s_add_u32 s28, s28, s3")
            E("s_lshl_b32 s28, s28, 6"); E(f"s_add_u32 s28, s28, {STAMP_OFF}")
            E("v_mbcnt_lo_u32_b32 v5, -1, 0"); E("v_mbcnt_hi_u32_b32 v5, -1, v5"); E("v_lshlrev_b32 v5, 2, v5")
            E("s_mov_b64 exec, 0xffff")
            E("buffer_store_dword v4, v5, s[24:27], s28 offen")
    def srd(r, p, size):
        E(f"s_mov_b32 s{r}, s{p}"); E(f"s_mov_b32 s{r+1}, s{p+1}"); E(f"s_mov_b32 s{r+2}, {size}"); E(f"s_mov_b32 s{r+3}, 0x20000")
    def lds_wait(off, val, vz, vt, sleep=2):
        a, b = L("lw"), L("lwd")
        E("s_mov_b32 s7, 0"); E.label(a)
        E(f"ds_read_b32 v{vt}, v{vz} offset:{off}"); E("s_waitcnt lgkmcnt(0)")
        E(f"v_readfirstlane_b32 s28, v{vt}"); E(f"s_cmp_ge_u32 s28, {val}"); E(f"s_cbranch_scc1 {b}")
        if sleep: E(f"s_sleep {sleep}")
        E("s_add_u32 s7, s7, 1"); E(f"s_cmp_lt_u32 s7, {plim*8}"); E(f"s_cbranch_scc1 {a}")
        E.label(b)
    def lds_set(off, vz, vt, val):
        E(f"v_mov_b32 v{vt}, {val}"); E(f"ds_write_b32 v{vz}, v{vt} offset:{off}")
    def lds_inc(off, vz, vt):
        E(f"v_mov_b32 v{vt}, 1"); E("s_mov_b64 exec, 1"); E(f"ds_add_u32 v{vz}, v{vt} offset:{off}"); E("s_mov_b64 exec, -1")
    def soft_barrier(off, vz, vt, sleep=0, n=4):
        lds_inc(off, vz, vt); lds_wait(off, n, vz, vt, sleep)
    def poll(body, sleep=0):
        a, b = L("pl"), L("pld")
        E("s_mov_b32 s7, 0"); E.label(a)
        body()
        E(f"s_cbranch_vccz {b}")
        if sleep: E(f"s_sleep {sleep}")
        E("s_add_u32 s7, s7, 1"); E(f"s_cmp_lt_u32 s7, {plim}"); E(f"s_cbranch_scc1 {a}")
        E.label(b)
    def ppoll(nsets, nload, loads, check, finish):
        a, d = L("pp"), L("ppd"); ok = [L("ppk") for _ in range(nsets)]
        E("s_mov_b32 s7, 0")
        for t in range(nsets): loads(t)
        E.label(a)
        for t in range(nsets):
            E(f"s_waitcnt vmcnt({(nsets-1)*nload})"); check(t); E(f"s_cbranch_vccz {ok[t]}"); loads(t)
        E("s_add_u32 s7, s7, 1"); E(f"s_cmp_lt_u32 s7, {plim}"); E(f"s_cbranch_scc1 {a}")
        E("s_waitcnt vmcnt(0)")
        for t in range(nsets):
            E.label(ok[t]); finish(t)
            if t + 1 < nsets: E(f"s_branch {d}")
        E.label(d)
    cold = []
    def intra_store(ins):
        a, b = L("is"), L("isd")
        E("s_cmp_eq_u32 s6, 3"); E(f"s_cbranch_scc0 {a}")
        for i in ins: E(i)
        E.label(b)
        cold.append((a, b, ins))
    def X(m):
        return "s_mov_b64 exec, s[88:89]" if m == -1 else f"s_and_b64 exec, s[88:89], {m:#x}"
    def walk(target, ret):
        E("s_mov_b64 s[88:89], 0"); E("s_mov_b64 exec, 0"); E(f"s_branch {target}")
        E.label(ret)
        E("s_mov_b64 s[88:89], -1"); E("s_mov_b64 exec, -1")
    def live(ins):
        a = L("lv"); E(f"s_cbranch_execz {a}"); E(ins); E.label(a)
    def rnd(dst, src):
        E(f"v_cvt_pk_bf16_f32 v{dst}, v{src}, v{src}"); E(f"v_and_b32 v{dst}, 0xffff0000, v{dst}")
    def row_reduce(op, r, rors):
        for k in rors: E(f"{op}_dpp v{r}, v{r}, v{r} row_ror:{k} row_mask:0xf bank_mask:0xf")
    def swap_reduce(op, r, t, which):
        E(f"v_mov_b32 v{t}, v{r}"); E(f"v_permlane{which}_swap_b32 v{r}, v{t}"); E(f"{op} v{r}, v{r}, v{t}")
    def mktag():
        E("s_waitcnt lgkmcnt(0)")
        E("s_mul_i32 s35, s34, 0x9E3779B1"); E("s_add_u32 s35, s35, 0x7F4A7C15"); E("s_mov_b32 s90, 0xfffff000")
    def tagcheck(acc, regs):
        E(f"v_xor_b32 v{acc}, s35, v{regs[0]}")
        for r in regs[1:]: E(f"v_bitop3_b32 v{acc}, v{acc}, v{r}, s35 bitop3:0xf6")
        E(f"v_cmp_ne_u32 vcc, 0, v{acc}")
    def tagbyte(dst, idx):
        E(f"v_and_b32 v{dst}, 3, v{idx}"); E(f"v_mul_u32_u24 v{dst}, 7, v{dst}"); E(f"v_bfe_u32 v{dst}, s35, v{dst}, 12")
    def settag(r, tg): E(f"v_and_or_b32 v{r}, v{r}, s{SM}, v{tg}")
    def lowcheck(acc, regs, tg):
        for r in regs: E(f"v_xor_b32 v{r}, v{tg}, v{r}")
        ortree(acc, regs)
    def ortree(acc, regs):
        regs = list(regs)
        if len(regs) == 1: E(f"v_and_b32 v{acc}, 0xfff, v{regs[0]}")
        else:
            first = True
            while regs:
                if first:
                    t = regs[:3]; regs = regs[3:]; first = False
                    E(f"v_or3_b32 v{acc}, v{t[0]}, v{t[1]}, v{t[2]}") if len(t) == 3 else E(f"v_or_b32 v{acc}, v{t[0]}, v{t[1]}")
                else:
                    t = regs[:2]; regs = regs[2:]
                    E(f"v_or3_b32 v{acc}, v{acc}, v{t[0]}, v{t[1]}") if len(t) == 2 else E(f"v_or_b32 v{acc}, v{acc}, v{t[0]}")
            E(f"v_and_b32 v{acc}, 0xfff, v{acc}")
        E(f"v_cmp_ne_u32 vcc, 0, v{acc}")
    SM = 90
    BR = lambda k: 96 + 4 * k
    AT = lambda k: 24 + 4 * k
    def op_addrs():
        E("v_bfe_u32 v4, v0, 2, 2"); E("v_lshrrev_b32 v5, 4, v0"); E("v_lshl_add_u32 v4, v5, 3, v4"); E("v_lshlrev_b32 v4, 7, v4")
        E("v_and_b32 v6, 3, v0"); E("v_lshl_add_u32 v4, v6, 3, v4")
        E("v_bfe_u32 v7, v0, 3, 2"); E("v_xor_b32 v7, s3, v7"); E("v_lshl_add_u32 v2, v7, 5, v4")
        E("v_and_b32 v3, 1, v0"); E("v_mul_u32_u24 v3, 1152, v3"); E("v_lshl_add_u32 v3, v5, 4, v3")
    def stage_b(slot, nk, wait=True, k0=0, t=5):
        E(f"v_add_u32 v{t}, {slot}, v2"); E(f"v_add_u32 v{t+1}, {slot + 36864}, v2")
        for k in range(k0, nk):
            a = t if k < 9 else t + 1; o = (k % 9) * 4096
            E(f"ds_read_b64_tr_b16 v[{BR(k)}:{BR(k)+1}], v{a} offset:{o}"); E(f"ds_read_b64_tr_b16 v[{BR(k)+2}:{BR(k)+3}], v{a} offset:{o+512}")
        if wait: E("s_waitcnt lgkmcnt(0)")
    def gemv(areg, aoff, nk, d, fill=None, pre=0, extra=0):
        fill = list(fill or [])
        first = pre if extra else 0
        per = -(-len(fill) // (nk - first))
        depth = min(AD, 15 - extra)
        for k in range(pre, min(nk, depth)): E(f"ds_read_b128 v[{AT(k)}:{AT(k)+3}], v{areg} offset:{aoff + k*64}")
        issued = min(nk, depth)
        for k in range(nk):
            E(f"s_waitcnt lgkmcnt({issued - 1 - k + (extra if k < pre else 0)})")
            c = "0" if k == 0 else f"v[{d}:{d+3}]"
            E(f"v_mfma_f32_16x16x32_bf16 v[{d}:{d+3}], v[{AT(k)}:{AT(k)+3}], v[{BR(k)}:{BR(k)+3}], {c}")
            if issued < nk:
                E(f"ds_read_b128 v[{AT(issued)}:{AT(issued)+3}], v{areg} offset:{aoff + issued*64}"); issued += 1
            if k >= first:
                for _ in range(per):
                    if fill: E(fill.pop(0))
    def own_map():
        E("v_and_b32 v8, 31, v0"); E("v_min_u32 v9, 7, v8"); E("s_mul_i32 s28, s3, 72")
        E("v_add_u32 v8, s28, v8"); E("s_add_u32 s28, s28, 64"); E("v_add_u32 v9, s28, v9")
        E("v_lshrrev_b32 v11, 5, v0"); E("v_mul_u32_u24 v11, 1152, v11"); E("v_lshl_add_u32 v10, v8, 2, v11"); E("v_lshl_add_u32 v11, v9, 2, v11")
    def modgather(o1, o2, lab=None):
        E(f"s_mov_b32 s30, {MOD_OFF + o1*8}"); E(f"s_mov_b32 s31, {MOD_OFF + o2*8}")
        E("v_lshlrev_b32 v12, 4, v8"); E("v_lshlrev_b32 v13, 4, v9")
        def body():
            for h in range(2):
                E(f"buffer_load_dwordx4 v[{36+12*h}:{39+12*h}], v12, s[24:27], s{30+h} offen sc1")
                E(f"buffer_load_dwordx4 v[{40+12*h}:{43+12*h}], v12, s[24:27], s{30+h} offen offset:512 sc1")
                E(f"buffer_load_dwordx4 v[{44+12*h}:{47+12*h}], v13, s[24:27], s{30+h} offen sc1")
            E("s_waitcnt vmcnt(0)")
            tagcheck(14, list(range(37, 60, 2)))
        poll(body, sl_long)
        if lab: E.label(lab)
        E("v_cmp_gt_u32 vcc, 32, v0"); E("v_mov_b32 v12, 0x03020c0c"); E("v_mov_b32 v13, 0x01000c0c"); E("v_cndmask_b32 v12, v12, v13, vcc")
        for e in range(12): E(f"v_perm_b32 v{24+e}, v{36+2*e}, v{36+2*e}, v12")
    def dma_addrs(a=3, b=4, t=2):
        E(f"v_lshrrev_b32 v{t}, 3, v0"); E(f"v_mul_lo_u32 v{t}, v{t}, s20")
        E(f"v_and_b32 v{a}, 7, v0"); E(f"v_bfe_u32 v{b}, v0, 4, 1"); E(f"v_lshlrev_b32 v{b}, 1, v{b}"); E(f"v_xor_b32 v{a}, v{a}, v{b}")
        E(f"v_xor_b32 v{b}, 4, v{a}"); E(f"v_lshl_add_u32 v{a}, v{a}, 4, v{t}"); E(f"v_lshl_add_u32 v{b}, v{b}, 4, v{t}")
        E("s_lshl_b32 s17, s20, 3")
    def dma_loop(lab, depth, a=3, b=4, ls=1024):
        E.label(lab)
        E("s_mov_b32 m0, s29"); E(f"s_add_u32 s29, s29, {ls}")
        E(f"buffer_load_dwordx4 v{a}, s[8:11], s16 offen {wf} lds"); E("s_add_u32 s16, s16, s17")
        if depth: E(f"s_waitcnt vmcnt({depth-1})")
        E("s_mov_b32 m0, s29"); E(f"s_add_u32 s29, s29, {ls}")
        E(f"buffer_load_dwordx4 v{b}, s[8:11], s16 offen {wf} lds"); E("s_add_u32 s16, s16, s17")
        if depth: E(f"s_waitcnt vmcnt({depth-1})")
        E("s_sub_u32 s19, s19, 1"); E("s_cmp_lg_u32 s19, 0"); E(f"s_cbranch_scc1 {lab}")

    E.label("L_code0")
    if probe in (16, 'amp') or stamps == 'entry': E("s_memrealtime s[86:87]")
    E("s_load_dwordx16 s[36:51], s[0:1], 0")
    E("s_load_dwordx8 s[52:59], s[0:1], 64")
    E("s_load_dwordx4 s[60:63], s[0:1], 96")
    E("s_cmp_ge_u32 s2, 256"); E("s_cbranch_scc1 L_exit")
    if stamps == 'entry': E("s_mov_b32 s85, 0")
    elif stamps:
        for k in range(16): E(f"s_mov_b32 s{70+k}, 0")
    E("v_lshrrev_b32 v1, 6, v0"); E("v_and_b32 v0, 63, v0"); E("v_readfirstlane_b32 s3, v1")
    E("s_and_b32 s4, s2, 7"); E("s_lshr_b32 s5, s2, 3")
    E("s_sub_u32 s22, s2, 72"); E("s_cmp_lt_u32 s22, 48"); E("s_cselect_b32 s21, 2, 0")
    E(f"s_cmp_ge_u32 s5, {JQ0}"); E("s_cselect_b32 s21, 3, s21")
    if 'j' in dbg: E("s_mov_b32 s21, 0")
    E("s_cmp_ge_u32 s3, 8"); E("s_cbranch_scc1 L_service")

    SL = lambda i: 40 + 4 * i
    E("v_and_b32 v3, 3, v0"); E("v_lshrrev_b32 v4, 4, v0"); E("v_lshl_add_u32 v3, v4, 2, v3")
    E("v_bfe_u32 v4, v0, 2, 2"); E("v_lshlrev_b32 v4, 8, v4"); E("v_lshl_add_u32 v2, v3, 4, v4")
    if 'l' in dbg: E("v_lshlrev_b32 v2, 4, v0")
    E("s_and_b32 s28, s5, 16"); E("s_lshl_b32 s29, s4, 1"); E("s_add_u32 s28, s28, s29")
    E("s_lshl_b32 s28, s28, 3"); E("s_and_b32 s29, s5, 15"); E("s_add_u32 s28, s28, s29")
    E("s_lshl_b32 s28, s28, 6"); E("s_add_u32 s28, s28, s3"); E("s_lshl_b32 s33, s28, 12")
    E("s_add_u32 s32, s5, s3")
    def soff(u):
        E(f"s_add_u32 s30, s32, {u}"); E("s_and_b32 s30, s30, 7"); E("s_lshl_b32 s30, s30, 15"); E(f"s_add_u32 s{64+u if not stamps else 94+u}, s33, s30")
    SO = lambda u: (64 + u if not stamps else 94 + u)
    def soffB(k):
        if k < 4:
            E("s_lshr_b32 s30, s5, 3"); E("s_add_u32 s30, s30, s3"); E(f"s_add_u32 s30, s30, {k}"); E("s_and_b32 s30, s30, 3"); E("s_lshl_b32 s30, s30, 16"); E(f"s_add_u32 s{SO(k)}, s33, s30")
        else:
            E(f"s_add_u32 s30, s32, {k-4}"); E("s_and_b32 s30, s30, 3"); E(f"s_lshl_b32 s{SO(k)}, s30, 10")
    def addr(i):
        if pat == 'A': return f"s{SO(i//4)} offen offset:{(i%4)*1024}"
        if pat == 'A2':
            E(f"s_add_u32 s16, s{SO(i//4)}, s{17 + i%4}"); return "s16 offen"
        if i % 2 == 0: E(f"s_add_u32 s16, s{SO(i>>3)}, s{SO(4 + ((i>>1)&3))}")
        else: E("s_add_u32 s16, s16, 0x8000")
        return "s16 offen"
    GEN = isinstance(pat, dict)
    if GEN:
        gb = pat.get('g', (8, 9)); wb = pat.get('w', (12, 13, 14)); tf = pat['t']
        sb = pat.get('s', (18, 19, 20))
        used = list(gb) + list(wb) + list(sb) + [sh + k for n, sh, rot in tf for k in range(n)]
        assert sorted(used) == list(range(8, 21)), used
        if tuple(gb) != (8, 9): E("v_bfe_u32 v4, v0, 2, 1"); E("v_bfe_u32 v5, v0, 3, 1"); E(f"v_lshlrev_b32 v4, {gb[0]}, v4"); E(f"v_lshl_add_u32 v4, v5, {gb[1]}, v4"); E("v_lshl_add_u32 v2, v3, 4, v4")
        if tuple(wb) != (12, 13, 14) or tuple(sb) != (18, 19, 20):
            E("s_andn2_b32 s33, s33, 0x1fffff")
            for k, bit in enumerate(wb): E(f"s_bfe_u32 s30, s3, {0x10000 + k}"); E(f"s_lshl_b32 s30, s30, {bit}"); E("s_add_u32 s33, s33, s30")
            for k, bit in enumerate(sb): E(f"s_bfe_u32 s30, s5, {0x10000 + k}"); E(f"s_lshl_b32 s30, s30, {bit}"); E("s_add_u32 s33, s33, s30")
        ROT = {'j': 's5', 'jw': 's32', 'w': 's3', 'x': 's4'}
        for name, sh, plus in (('j2', 2, None), ('j2w', 2, 's3'), ('j3', 3, None), ('j3w', 3, 's3'), ('j1', 1, None), ('j1w', 1, 's3'), ('jx', 0, 's4'), ('j2x', 2, 's4'), ('j3x', 3, 's4')):
            if any(rot == name for n, _, rot in tf):
                r = SO(len(ROT) - 4); ROT[name] = f"s{r}"
                E(f"s_lshr_b32 s{r}, s5, {sh}")
                if plus: E(f"s_add_u32 s{r}, s{r}, {plus}")
        prev = {}
        def addr(i):
            const = 0; pos = 0; regs = []
            for f, (n, sh, rot) in enumerate(tf):
                c = (i >> pos) & ((1 << n) - 1); pos += n
                if rot == '0': const += c << sh
                else:
                    if prev.get(f) != c:
                        E(f"s_add_u32 s{17+f}, {ROT[rot]}, {c}"); E(f"s_and_b32 s{17+f}, s{17+f}, {(1 << n) - 1}"); E(f"s_lshl_b32 s{17+f}, s{17+f}, {sh}"); prev[f] = c
                    regs.append(f"s{17+f}")
            E(f"s_add_u32 s16, s33, {const}")
            for r in regs: E(f"s_add_u32 s16, s16, {r}")
            return "s16 offen"
    elif pat == 'B2':
        for k in (0, 4, 5): soffB(k)
    else: soff(0)
    if pat == 'A2':
        for k in range(4): E(f"s_add_u32 s30, s5, {k}"); E("s_and_b32 s30, s30, 3"); E(f"s_lshl_b32 s{17+k}, s30, 10")
    assert K0 <= 4
    E("s_mov_b32 s10, 0x4000000"); E("s_mov_b32 s11, 0x20000")
    E("s_waitcnt lgkmcnt(0)")
    E("s_mov_b32 s8, s38"); E("s_mov_b32 s9, s39")
    stamp(0)
    def kload(i): E(f"buffer_load_dwordx4 v[{SL(i)}:{SL(i)+3}], v2, s[8:11], {addr(i)} {kvf}")
    VS = lambda i: SL((i - NL) % 32)
    def vload(i):
        if i < NL: E(f"buffer_load_dwordx4 v1, s[12:15], {addr(i)} {kvf} lds")
        else: E(f"buffer_load_dwordx4 v[{VS(i)}:{VS(i)+3}], v1, s[12:15], {addr(i)} {kvf}")
        if i == 31 and GEN: E("v_lshlrev_b32 v1, 4, v0")
    E.label("L_k0")
    for i in range(K0): kload(i)
    E("s_branch L_stream")

    E.label("L_service")
    E("v_mov_b32 v1, 0")
    E("s_sub_u32 s3, s3, 8")
    if cpf >= 3:
        E("s_getpc_b64 s[12:13]"); E.label("L_pc0")
        E("s_sub_u32 s12, s12, L_pc0-L_code0"); E("s_subb_u32 s13, s13, 0"); E("s_mov_b32 s14, L_exit-L_code0"); E("s_mov_b32 s15, 0x20000")
        E("s_lshl_b32 s28, s5, 2"); E("s_add_u32 s28, s28, s3"); E("s_lshl_b32 s28, s28, 8")
    E("v_lshlrev_b32 v2, 2, v0")
    if cpf >= 3: E("buffer_load_dword v95, v2, s[12:15], s28 offen" + (" nt" if cpf == 4 else ""))
    E("s_mov_b64 exec, 0xffff"); E("ds_write_b32 v2, v1"); E("s_mov_b64 exec, -1")
    E("s_mov_b32 s18, 4")
    E("s_cmp_lg_u32 s21, 0"); E("s_cbranch_scc1 L_job")
    E("s_mov_b32 s20, 1152")
    dma_addrs()
    E("s_lshl_b32 s28, s4, 2"); E("s_add_u32 s28, s28, s3"); E(f"s_sub_u32 s30, s5, {JW2}")
    E("s_cmp_lt_u32 s5, 9")
    E("s_cselect_b32 s19, 8, 9"); E("s_cselect_b32 s30, s5, s30"); E(f"s_mov_b32 s29, {SLOT_B}"); E(f"s_cselect_b32 s29, {SLOT_A}, s29")
    E("s_mul_i32 s16, s19, 18432"); E("s_lshl_b32 s10, s16, 5"); E("s_mul_i32 s16, s16, s28"); E("s_lshl_b32 s30, s30, 7"); E("s_add_u32 s16, s16, s30")
    E("s_lshl_b32 s30, s19, 11"); E("s_mul_i32 s30, s30, s3"); E("s_add_u32 s29, s29, s30"); E("s_mov_b32 s11, 0x20000")
    E("s_waitcnt lgkmcnt(0)")
    E("s_cmp_lt_u32 s5, 9"); E("s_cselect_b32 s8, s44, s52"); E("s_cselect_b32 s9, s45, s53")
    stamp(0)
    if EB: E("s_barrier")
    if 'e' not in dbg: dma_loop("L_dma_early", DEA)
    E(f"s_load_dword s34, s[62:63], {EP_OFF}")
    srd(24, 62, WS_SIZE)
    if not EB: E("s_barrier")
    E("s_branch L_roles")
    E.label("L_job")
    E("s_cmp_eq_u32 s21, 3")
    E("s_cselect_b32 s20, 8192, 6912") if False else (E("s_mov_b32 s20, 6912"), E("s_cselect_b32 s20, 8192, s20"))
    dma_addrs()
    own_map()
    E("s_lshl_b32 s28, s4, 3"); E(f"s_sub_u32 s29, s5, {JQ0}"); E("s_add_u32 s28, s28, s29")
    E("s_cmp_eq_u32 s21, 3"); E("s_cselect_b32 s22, s28, s22")
    E("s_mul_i32 s10, s20, 576"); E("s_mov_b32 s11, 0x20000")
    E("s_mul_i32 s16, s20, 144"); E("s_mul_i32 s16, s16, s3"); E("s_lshl_b32 s28, s22, 7"); E("s_add_u32 s16, s16, s28")
    E("s_mul_i32 s29, s3, 18432"); E(f"s_add_u32 s29, s29, {SLOT_B}"); E("s_mov_b32 s19, 9")
    E("s_mov_b32 s14, 2304"); E("s_mov_b32 s15, 0x20000")
    E("s_waitcnt lgkmcnt(0)")
    if stamps:
        E("s_cmp_eq_u32 s18, 8"); E("s_cbranch_scc1 L_nost0"); stamp(0); E.label("L_nost0")
    E("s_cmp_eq_u32 s21, 3")
    E("s_cselect_b32 s8, s42, s56"); E("s_cselect_b32 s9, s43, s57"); E("s_cselect_b32 s12, s36, s54"); E("s_cselect_b32 s13, s37, s55")
    E("buffer_load_dword v16, v10, s[12:15], 0 offen"); E("buffer_load_dword v17, v10, s[12:15], 0 offen offset:128"); E("buffer_load_dword v18, v11, s[12:15], 0 offen")
    srd(24, 62, WS_SIZE)
    if xe:
        E("s_cbranch_scc0 L_nox")
        E("v_lshrrev_b32 v12, 5, v0"); E("v_mul_u32_u24 v12, 1152, v12"); E("v_and_b32 v13, 31, v0"); E("v_lshl_add_u32 v12, v13, 2, v12")
        for i in range(9): E(f"buffer_load_dword v{60+i}, v12, s[12:15], 0 offen offset:{i*128}")
        E.label("L_nox")
    E("s_cmp_eq_u32 s18, 8"); E("s_cbranch_scc1 L_dma_jq")
    E(f"s_load_dword s34, s[62:63], {EP_OFF}")
    if QB: E(f"s_cmp_eq_u32 s5, 27"); E("s_cbranch_scc1 L_jq")
    dma_loop("L_dma_job", DJ)
    E("s_barrier")
    E("s_branch L_job2")
    if QB:
        E.label("L_jq")
        E("s_barrier")
        dma_loop("L_dma_j27", QB - 1)
        E("s_branch L_job2")
    dma_loop("L_dma_jq", DJQ)
    E.label("L_job2")
    stamp(9)
    op_addrs()
    E("s_waitcnt vmcnt(18)")
    for i in range(3):
        E(f"v_and_b32 v{71+2*i}, 0xffff0000, v{16+i}"); E(f"v_lshlrev_b32 v{70+2*i}, 16, v{16+i}")
    E("s_cmp_eq_u32 s21, 3"); E("s_cbranch_scc1 L_prep_q")
    E(f"s_mov_b32 s28, {LOG2E ^ 0x80000000}"); E("s_mov_b32 s29, 0xb2a57060"); E("s_mov_b32 s30, 0x3f317218")
    for e in range(6): E(f"v_mul_f32 v{24+e}, s28, v{70+e}")
    for e in range(6): E(f"v_fma_f32 v{30+e}, v{70+e}, s28, -v{24+e}")
    for e in range(6): E(f"v_fma_f32 v{30+e}, v{70+e}, s29, v{30+e}")
    for e in range(6): E(f"v_min_f32 v{24+e}, 0x42fc0000, v{24+e}")
    for e in range(6): E(f"v_exp_f32 v{24+e}, v{24+e}")
    for e in range(6): E(f"v_mul_f32 v{30+e}, s30, v{30+e}")
    for e in range(6): E(f"v_fma_f32 v{24+e}, v{24+e}, v{30+e}, v{24+e}")
    for e in range(6): E(f"v_add_f32 v{24+e}, 1.0, v{24+e}")
    for e in range(6): E(f"v_rcp_f32 v{30+e}, v{24+e}")
    for e in range(6): E(f"v_mul_f32 v{36+e}, v{70+e}, v{30+e}")
    for e in range(6): E(f"v_fma_f32 v{70+e}, -v{24+e}, v{36+e}, v{70+e}")
    for e in range(6): E(f"v_fma_f32 v{70+e}, v{70+e}, v{30+e}, v{36+e}")
    def write_a(buf):
        for i in range(3): E(f"v_cvt_pk_bf16_f32 v{16+i}, v{70+2*i}, v{71+2*i}")
        E(f"ds_write_b32 v10, v16 offset:{buf}"); E(f"ds_write_b32 v10, v17 offset:{buf+128}"); E(f"ds_write_b32 v11, v18 offset:{buf}")
    write_a(JBUF)
    if jreh: walk("L_mst", "L_ret_m")
    E("s_waitcnt vmcnt(0)")
    soft_barrier(C_J1, 1, 16, n="s18")
    stamp(10)
    E.label("L_mst")
    stage_b(SLOT_B, 18, wait=False)
    E("s_branch L_gemv")
    E.label("L_prep_q")
    if not xe:
        E("v_lshrrev_b32 v12, 5, v0"); E("v_mul_u32_u24 v12, 1152, v12"); E("v_and_b32 v13, 31, v0"); E("v_lshl_add_u32 v12, v13, 2, v12")
        for i in range(9): E(f"buffer_load_dword v{60+i}, v12, s[12:15], 0 offen offset:{i*128}")
        E("s_waitcnt vmcnt(0)")
    for i in range(9):
        E(f"v_lshlrev_b32 v{24+2*i}, 16, v{60+i}"); E(f"v_and_b32 v{25+2*i}, 0xffff0000, v{60+i}")
    E("v_add_f32 v16, v24, v25")
    for r in range(26, 42): E(f"v_add_f32 v16, v16, v{r}")
    row_reduce("v_add_f32", 16, (1, 2, 4, 8)); swap_reduce("v_add_f32", 16, 17, 16)
    E("s_mov_b32 s28, 0x3ae38e39"); E("s_mov_b32 s29, 0x3727c5ac")
    E("v_mul_f32 v16, s28, v16")
    E("v_mov_b32 v18, 0")
    for r in range(24, 42): E(f"v_sub_f32 v17, v{r}, v16"); E("v_fmac_f32 v18, v17, v17")
    row_reduce("v_add_f32", 18, (1, 2, 4, 8)); swap_reduce("v_add_f32", 18, 17, 16)
    E("v_mul_f32 v18, s28, v18"); rnd(18, 18); E("v_add_f32 v18, s29, v18"); rnd(18, 18)
    E("v_sqrt_f32 v18, v18"); rnd(18, 18); E("v_rcp_f32 v19, v18"); rnd(16, 16)
    for r in range(70, 76):
        E(f"v_sub_f32 v{r}, v{r}, v16"); rnd(r, r)
        E(f"v_mul_f32 v17, v{r}, v19"); E(f"v_fma_f32 v{r}, -v18, v17, v{r}"); E(f"v_fma_f32 v{r}, v{r}, v19, v17"); rnd(r, r)
    E("s_waitcnt vmcnt(0)")
    soft_barrier(C_J1, 1, 16)
    stamp(10)
    stage_b(SLOT_B, 18)
    mktag()
    if jreh: walk("L_qh", "L_ret_q")
    if km:
        if kms:
            E("s_cmp_eq_u32 s5, 27"); E("s_cbranch_scc1 L_kms"); E("s_cmp_eq_u32 s2, 255"); E("s_cbranch_scc1 L_kms")
        lds_wait(C_NR, 1, 1, 16, sleep=4)
        if kms: E.label("L_kms")
    modgather(0, 576, "L_qh")
    stamp(11)
    for e in range(6):
        E(f"v_add_f32 v{30+e}, 1.0, v{30+e}"); rnd(30+e, 30+e); E(f"v_mul_f32 v{70+e}, v{70+e}, v{30+e}"); rnd(70+e, 70+e)
        E(f"v_add_f32 v{70+e}, v{70+e}, v{24+e}")
    write_a(JBUF)
    E("s_cbranch_execz L_gemv")
    soft_barrier(C_J2, 1, 16)
    E.label("L_gemv")
    gemv(3, JBUF, 18, 20)
    mktag()
    E("s_lshl_b32 s28, s22, 2"); E("s_add_u32 s28, s28, s3"); E("s_lshl_b32 s28, s28, 7")
    E(f"s_mov_b32 s29, {MOD_OFF}"); E("s_cmp_eq_u32 s21, 3"); E(f"s_cselect_b32 s29, {Q_OFF}, s29"); E("s_add_u32 s28, s28, s29")
    E("v_lshlrev_b32 v2, 3, v0")
    E("v_cvt_pk_bf16_f32 v8, v20, v21"); E("v_mov_b32 v9, s35")
    if jreh:
        E("s_cbranch_execnz L_jpub")
        E("s_cmp_eq_u32 s21, 3"); E("s_cbranch_scc1 L_ret_q"); E("s_branch L_ret_m")
        E.label("L_jpub")
    E("s_mov_b64 exec, 0xffff")
    E("buffer_store_dwordx2 v[8:9], v2, s[24:27], s28 offen sc1")
    E("s_mov_b64 exec, -1")
    lds_inc(C_GO, 1, 16)
    stamp(12)
    E("s_cmp_eq_u32 s18, 8"); E("s_cbranch_scc1 L_svc_end")
    E.label("L_roles")
    for w in '0123':
        if w in dbg: E(f"s_cmp_eq_u32 s3, {w}"); E("s_cbranch_scc1 L_svc_end")
    if 'z' in dbg: E("s_branch L_tailprep")
    E("s_cmp_eq_u32 s3, 3"); E("s_cbranch_scc1 L_s3")
    E("s_cmp_eq_u32 s3, 0"); E("s_cbranch_scc1 L_s0")
    if cpf in (1, 2):
        E("s_cmp_lg_u32 s3, 1"); E("s_cbranch_scc1 L_tailprep")
        E("s_getpc_b64 s[8:9]"); E.label("L_pc")
        E("s_sub_u32 s8, s8, L_pc-L_code0"); E("s_subb_u32 s9, s9, 0"); E("s_mov_b32 s10, L_exit-L_code0"); E("s_mov_b32 s11, 0x20000")
        E("v_lshlrev_b32 v2, 4, v0"); E("s_lshl_b32 s16, s5, 10")
        if cpf == 2: lds_wait(C_KH, 1, 1, 8, sleep=8)
        E("buffer_load_dwordx4 v[8:11], v2, s[8:11], s16 offen"); E("s_waitcnt vmcnt(0)")
    E("s_branch L_tailprep")

    E.label("L_s0")
    mktag()
    E("v_lshlrev_b32 v2, 4, v0")
    if kh:
        if gateq: E("s_cmp_eq_u32 s21, 3"); E("s_cbranch_scc1 L_qgo")
        lds_wait(C_KH, 1, 1, 8, sleep=8)
        E.label("L_qgo")
    E("s_lshl_b32 s28, s4, 12"); E("s_bfe_u32 s29, s5, 0x10003"); E("s_lshl_b32 s29, s29, 11"); E("s_add_u32 s28, s28, s29"); E(f"s_add_u32 s28, s28, {Q_OFF}")
    def qbody():
        E("buffer_load_dwordx4 v[8:11], v2, s[24:27], s28 offen sc1"); E("buffer_load_dwordx4 v[12:15], v2, s[24:27], s28 offen offset:1024 sc1")
        E("s_waitcnt vmcnt(0)")
        tagcheck(16, [9, 11, 13, 15])
    poll(qbody, sl_q)
    E("s_mov_b32 s29, 0x05040100"); E("s_cmp_ge_u32 s5, 16"); E("s_cselect_b32 s29, 0x07060302, s29")
    E("v_perm_b32 v8, v10, v8, s29"); E("v_perm_b32 v9, v14, v12, s29"); E("v_lshlrev_b32 v3, 2, v0")
    E(f"ds_write_b32 v3, v8 offset:{QBUF}"); E(f"ds_write_b32 v3, v9 offset:{QBUF+256}")
    E("s_add_u32 s7, s7, 1"); lds_set(C_Q, 1, 10, "s7")
    if stamps is True: E("s_mov_b32 s71, s7")
    stamp(3)
    lds_wait(C_BAR, 1, 1, 8, sleep=4)
    E("s_mov_b32 s6, s28")
    lds_wait(C_CNT, 8, 1, 8, sleep=4)
    E("v_and_b32 v3, 15, v0"); E("v_lshlrev_b32 v4, 3, v3"); E(f"ds_read_b64 v[8:9], v4 offset:{MLB}")
    E(f"s_mov_b32 s31, {LOG2E}")
    E("s_waitcnt lgkmcnt(0)")
    E("v_mov_b32 v10, v8"); row_reduce("v_max_f32", 10, (2, 4, 8))
    E("v_sub_f32 v12, v8, v10"); E("v_mul_f32 v12, s31, v12"); E("v_exp_f32 v12, v12"); E("v_mul_f32 v11, v12, v9")
    row_reduce("v_add_f32", 11, (2, 4, 8))
    E("v_and_b32 v5, 1, v0"); E("v_lshlrev_b32 v5, 5, v5"); E("v_lshrrev_b32 v6, 1, v3"); E("v_lshl_add_u32 v5, v6, 2, v5")
    E(f"ds_write_b32 v5, v12 offset:{FAC}")
    E("s_lshl_b32 s28, s4, 5"); E("s_add_u32 s28, s28, s5"); E("s_lshl_b32 s28, s28, 5"); E(f"s_add_u32 s28, s28, {ML_OFF}")
    E("v_mov_b32 v12, s35"); E("v_mov_b32 v13, s35"); E("v_lshlrev_b32 v4, 4, v0")
    E("v_mov_b32 v6, s6"); E(f"ds_write_b32 v1, v6 offset:{C_FAC}")
    E("s_mov_b64 exec, 3")
    intra_store(["buffer_store_dwordx4 v[10:13], v4, s[24:27], s28 offen"])
    E("s_mov_b64 exec, -1")
    E("s_waitcnt lgkmcnt(0)")
    stamp(4)
    E("s_branch L_tailprep")

    E.label("L_s3")
    E("v_lshlrev_b32 v2, 4, v0")
    for k in range(4): E(f"v_mov_b32 v{4+k}, -1")
    E("s_cmp_ge_u32 s5, 9"); E("s_cbranch_scc1 L_noclr")
    E(f"s_mul_i32 s28, s4, {ZS}"); E("s_mul_i32 s29, s5, 320"); E("s_add_u32 s28, s28, s29"); E(f"s_add_u32 s28, s28, {Z_OFF}")
    E("s_mov_b64 exec, 0xfffff"); E("buffer_store_dwordx4 v[4:7], v2, s[24:27], s28 offen sc1"); E("s_mov_b64 exec, -1")
    E.label("L_noclr")
    E("s_getreg_b32 s29, hwreg(HW_REG_XCC_ID)"); E("s_and_b32 s29, s29, 15")
    mktag()
    if fb:
        lds_wait(C_VH, 1, 1, 8, sleep=4)
        E("s_lshl_b32 s28, s28, 4"); E("s_or_b32 s29, s29, s28")
    E("v_mov_b32 v8, s29"); E("v_mov_b32 v9, s35")
    E("s_lshl_b32 s28, s4, 5"); E("s_add_u32 s28, s28, s5"); E("s_lshl_b32 s28, s28, 3"); E(f"s_add_u32 s28, s28, {FL_OFF}")
    E("s_waitcnt vmcnt(0)")
    stamp(1)
    E("s_mov_b64 exec, 1"); E("buffer_store_dwordx2 v[8:9], v1, s[24:27], s28 offen sc1"); E("s_mov_b64 exec, -1")
    if 'q' in dbg: E("s_branch L_svc_end")
    lds_wait(C_Q if NL and not fbl else C_CNT, 1 if NL and not fbl else (fbl or 8), 1, 8, sleep=8)
    E(f"s_mov_b32 s30, {FL_OFF}")
    def barbody():
        E("buffer_load_dwordx4 v[8:11], v2, s[24:27], s30 offen sc1"); E("buffer_load_dwordx4 v[12:15], v2, s[24:27], s30 offen offset:1024 sc1")
        E("s_waitcnt vmcnt(0)")
        tagcheck(16, [9, 11, 13, 15])
    poll(barbody, sl_bar)
    if fb:
        for r in (8, 10, 12, 14): E(f"v_sub_u32 v{r+1}, s29, v{r}"); E(f"v_ashrrev_i32 v{r+1}, 4, v{r+1}")
        E("v_add3_u32 v9, v9, v11, v13"); E("v_add_u32 v9, v9, v15")
        row_reduce("v_add_u32", 9, (1, 2, 4, 8)); swap_reduce("v_add_u32", 9, 11, 16); swap_reduce("v_add_u32", 9, 11, 32)
        E("v_readfirstlane_b32 s30, v9")
        E("s_ashr_i32 s30, s30, 8"); E(f"s_sub_i32 s30, s30, {fbo}"); E(f"s_mul_i32 s30, s30, {fbg}"); E("s_ashr_i32 s30, s30, 8")
        E("s_max_i32 s30, s30, 0"); E("s_min_i32 s30, s30, 8")
        if stamps is True: E("s_mov_b32 s73, s30")
        if fbm: E("s_sub_u32 s30, 8, s30")
        E("s_lshl_b32 s30, s30, 1"); E("s_or_b32 s30, s30, 1"); lds_set(C_KH, 1, 9, "s30")
    E("s_cmp_ge_u32 s4, 4"); E("s_cselect_b64 vcc, -1, 0")
    E("v_cndmask_b32 v8, v8, v12, vcc"); E("v_cndmask_b32 v10, v10, v14, vcc")
    E("v_xor_b32 v8, s29, v8"); E("v_bitop3_b32 v8, v8, v10, s29 bitop3:0xf6"); E("v_and_b32 v8, 15, v8"); E("v_cmp_ne_u32 vcc, 0, v8")
    E("s_and_b32 s30, s4, 3"); E("s_lshl_b32 s30, s30, 4"); E("s_lshr_b64 s[30:31], vcc, s30"); E("s_and_b32 s30, s30, 0xffff")
    E(f"s_cselect_b32 s6, 1, {1 if force_slow else 3}")
    E("v_mov_b32 v8, s6"); E(f"ds_write_b32 v1, v8 offset:{C_BAR}")
    stamp(2)
    E("s_branch L_tailprep")

    E.label("L_stream")
    xd = XD if any(XW) or XN else 0
    if XN:
        E(f"s_mov_b32 s23, {XN[0]}")
        E("s_bitcmp1_b32 s4, 0"); E(f"s_cselect_b32 s28, {XN[2]}, {XN[1]}"); E("s_cmp_ge_u32 s5, 9"); E("s_cselect_b32 s23, s28, s23")
        for lo, n in zip((15, 24), XN[3:5]):
            E(f"s_cmp_ge_u32 s5, {lo}"); E(f"s_cselect_b32 s23, {n}, s23")
        E("s_cmp_eq_u32 s5, 27"); E(f"s_cselect_b32 s23, {XN[5]}, s23")
        E("s_cmp_eq_u32 s2, 255"); E(f"s_cselect_b32 s23, {XN[7]}, s23")
        if XJ: E("s_sub_u32 s28, s2, 224"); E("s_cmp_lt_u32 s28, 6"); E(f"s_cselect_b32 s23, {XJ}, s23")
        E("s_cmp_ge_u32 s5, 18"); E("s_cselect_b32 s28, 18, 9"); E("s_sub_u32 s28, s5, s28"); E("s_cmp_lt_u32 s28, 9"); E("s_cselect_b32 s29, 0, 8")
        E("s_add_u32 s28, s28, s4"); E("s_and_b32 s28, s28, 7"); E("s_add_u32 s28, s28, s29")
        E("s_cmp_eq_u32 s28, 3"); E(f"s_cselect_b32 s28, {XN[6]}, 0"); E("s_add_u32 s23, s23, s28")
        if XM:
            E("s_getreg_b32 s28, hwreg(HW_REG_XCC_ID)"); E("s_and_b32 s28, s28, 15"); E(f"s_lshr_b32 s28, {XM}, s28"); E("s_and_b32 s28, s28, 1"); E(f"s_mul_i32 s28, s28, {XMN}"); E("s_add_u32 s23, s23, s28")
    elif xd:
        E(f"s_mov_b32 s23, {XW[0]}")
        for lo, n in zip((9, 15, 24), XW[1:4]):
            E(f"s_cmp_ge_u32 s5, {lo}"); E(f"s_cselect_b32 s23, {n}, s23")
        E("s_cmp_eq_u32 s5, 27"); E(f"s_cselect_b32 s23, {XW[4]}, s23")
        if len(XW) > 5:
            E("s_cmp_ge_u32 s5, 18"); E("s_cselect_b32 s28, 18, 9"); E("s_sub_u32 s28, s5, s28"); E("s_cmp_lt_u32 s28, 9"); E("s_cselect_b32 s29, 0, 8")
            E("s_add_u32 s28, s28, s4"); E("s_and_b32 s28, s28, 7"); E("s_add_u32 s28, s28, s29")
            E("s_cmp_eq_u32 s28, 3"); E(f"s_cselect_b32 s23, {XW[5]}, s23")
    def setscc(): pass
    tp = [0]; XWV = [0]
    def throttle(d):
        lean = any(lo <= tp[0] < hi and (tp[0] - lo) % st_ == 0 for lo, hi, st_ in LE)
        lo_ = d - 1 - lean; hi_ = d - 1 + xd - (lean and not LX)
        thr = tp[0]; tp[0] += 1
        if thr < max(max(XN), XJ, max(XN[1:5]) + XN[6]) + XMN:
            a = L("th"); E(f"s_cmp_gt_u32 s23, {thr}"); E(f"s_waitcnt vmcnt({hi_})"); E(f"s_cbranch_scc1 {a}"); E(f"s_waitcnt vmcnt({lo_})"); E.label(a)
        else: E(f"s_waitcnt vmcnt({lo_})")
    if GEN: pass
    elif pat == 'B2':
        for k in (1, 2, 3, 6, 7): soffB(k)
    else:
        for u in range(1, 8): soff(u)
    srd(12, 40, 0x4000000); srd(24, 62, WS_SIZE)
    E(f"s_load_dword s34, s[62:63], {EP_OFF}")
    if GEN:
        E("v_and_b32 v1, 15, v0"); E("v_lshlrev_b32 v1, 4, v1"); E("v_bfe_u32 v5, v0, 4, 1"); E(f"v_lshl_add_u32 v1, v5, {gb[0]}, v1"); E("v_lshrrev_b32 v5, 5, v0"); E(f"v_lshl_add_u32 v1, v5, {gb[1]}, v1")
    else: E("v_lshlrev_b32 v1, 4, v0")
    E("v_bfe_u32 v4, v0, 3, 1"); E("v_lshlrev_b32 v4, 8, v4"); E("v_lshl_add_u32 v36, v3, 4, v4")
    if warm:
        E("s_cmp_lg_u32 s3, 7"); E("s_cbranch_scc1 L_nowarm")
        E("s_mov_b64 exec, 1")
        if 'v' in warm: E(f"buffer_load_dword v5, v1, s[12:15], s{SO(0)} offen nt")
        if 's' in warm: E(f"s_mov_b32 s28, {EP_OFF}"); E("buffer_load_dword v5, v1, s[24:27], s28 offen nt")
        if 'w' in warm:
            E("s_cmp_ge_u32 s5, 18"); E("s_cselect_b32 s16, s50, s48"); E("s_cselect_b32 s17, s51, s49"); E(f"s_mov_b32 s18, {576*9216}"); E("s_mov_b32 s19, 0x20000")
            E("s_mov_b64 exec, 15"); E(f"v_mul_u32_u24 v6, {191*9216}, v0"); E("s_lshl_b32 s28, s2, 5")
            E("buffer_load_dword v5, v6, s[16:19], s28 offen nt")
        E("s_mov_b64 exec, -1")
        E.label("L_nowarm")
    stamp(8)
    E("s_barrier")
    stamp(9)
    for i in range(K0, D): kload(i)
    if gateq:
        E("s_cmp_lg_u32 s21, 3"); E("s_cbranch_scc1 L_kgo")
        E("v_mov_b32 v3, 0")
        lds_wait(C_GO, 4, 3, 4, sleep=4)
        E.label("L_kgo")
    setscc()
    for i in range(max(D, K0), 32):
        throttle(D); kload(i)
        if i in (4, 8): stamp(10 + (i == 8))
        if km and i == km:
            E("s_cmp_lg_u32 s21, 3"); E("s_cbranch_scc1 L_nokm"); E("v_mov_b32 v3, 0"); E("v_mov_b32 v4, 1"); E(f"ds_write_b32 v3, v4 offset:{C_NR}"); E.label("L_nokm")
        if fb and i == fb:
            E("s_cmp_lg_u32 s3, 3"); E("s_cbranch_scc1 L_nofb")
            E("s_memrealtime s[28:29]"); E("v_mov_b32 v3, 0"); E("s_waitcnt lgkmcnt(0)"); E("s_or_b32 s28, s28, 1"); E("v_mov_b32 v4, s28"); E(f"ds_write_b32 v3, v4 offset:{C_VH}")
            E.label("L_nofb")
        if kh and i == kh: E("v_mov_b32 v3, 0"); E("v_mov_b32 v4, 1"); E(f"ds_write_b32 v3, v4 offset:{C_KH}")
    stamp(1)
    if NL:
        E(f"s_mov_b32 s22, {SLOT_A}"); E("s_cmp_lt_u32 s5, 9"); E(f"s_cselect_b32 s22, {SLOT_B}, s22"); E(f"s_mul_i32 s28, s3, {NL*1024}"); E("s_add_u32 s22, s22, s28")
        for i in range(NL):
            if i % 4 == 0 or pat != 'A': E(f"s_add_u32 m0, s22, {i*1024}")
            throttle(D); vload(i)
            if kh == 32 + i: E("v_mov_b32 v3, 0"); E("v_mov_b32 v4, 1"); E(f"ds_write_b32 v3, v4 offset:{C_KH}")
    stamp(12)
    E("v_mov_b32 v2, 0")
    if 'q' not in dbg: lds_wait(C_Q, 1, 2, 3)
    if XL:
        E("s_cmp_eq_u32 s28, 1"); E(f"s_cselect_b32 s28, {XL}, 0"); E("s_add_u32 s23, s23, s28")
        XWV[0] = XL
    E(f"ds_read_b128 v[20:23], v36 offset:{QBUF}")
    E(f"s_mov_b32 s30, {SCALE}"); E(f"s_mov_b32 s31, {LOG2E}")
    E("v_mov_b32 v36, 0xff800000")
    mktag()
    stamp(2)
    setscc()
    st = dict(issued=NL)
    def qk_mfma(u):
        n = (28 - 4*u) + st['issued']
        if n < D + xd + st['issued'] and n < 63: E(f"s_waitcnt vmcnt({n})")
        for i in range(4*u, 4*u+4):
            E(f"v_mfma_f32_16x16x32_bf16 v[{SL(i)}:{SL(i)+3}], v[{SL(i)}:{SL(i)+3}], v[20:23], 0")
    def qk_post(u):
        if 'c' in dbg: return
        T = [24, 25, 26, 27]
        for k in range(4):
            for a in range(4):
                r = SL(4*u + a) + k
                if k == 0: E(f"v_mov_b32_dpp v{T[a]}, v{r} quad_perm:[0,0,0,0] row_mask:0xf bank_mask:0xf")
                else: E(f"v_add_f32_dpp v{T[a]}, v{r}, v{T[a]} quad_perm:[{k},{k},{k},{k}] row_mask:0xf bank_mask:0xf")
        E("v_cvt_pk_bf16_f32 v28, v24, v25"); E("v_cvt_pk_bf16_f32 v29, v26, v27")
        E("v_lshlrev_b32 v24, 16, v28"); E("v_and_b32 v25, 0xffff0000, v28")
        E("v_lshlrev_b32 v26, 16, v29"); E("v_and_b32 v27, 0xffff0000, v29")
        for a in range(4): E(f"v_mul_f32 v{T[a]}, s30, v{T[a]}")
        E(f"v_cvt_pk_bf16_f32 v{4+2*u}, v24, v25"); E(f"v_cvt_pk_bf16_f32 v{5+2*u}, v26, v27")
        E("v_max3_f32 v36, v24, v25, v36"); E("v_max3_f32 v36, v26, v27, v36")
    def vissue(d=None):
        i = st['issued']
        d = DV if d is None else d
        throttle(d); vload(i); st['issued'] += 1
        if i == v2: E("s_mov_b64 exec, 2"); E(f"ds_write_b32 v1, v1 offset:{C_V2-16}"); E("s_mov_b64 exec, -1")
        if fb and i == fbv:
            E(f"ds_read_b32 v2, v1 offset:{C_KH}"); E("s_waitcnt lgkmcnt(0)"); E("v_readfirstlane_b32 s28, v2"); E("s_lshr_b32 s28, s28, 1"); E("s_sub_u32 s28, 8, s28" if fbm else "s_nop 0"); E("s_add_u32 s23, s23, s28"); XWV[0] = 8
        if i == kv and not fb:
            E("s_mov_b64 exec, 2"); E(f"ds_write_b32 v1, v1 offset:{C_VH-16}"); E("s_mov_b64 exec, -1")
    def expo(k):
        if 'c' in dbg: return
        E(f"v_lshlrev_b32 v24, 16, v{4+k}"); E(f"v_and_b32 v25, 0xffff0000, v{4+k}")
        E("v_fma_f32 v24, v24, s31, -v37"); E("v_fma_f32 v25, v25, s31, -v37")
        E("v_exp_f32 v24, v24"); E("v_exp_f32 v25, v25")
        E("v_add_f32 v38, v38, v24"); E("v_add_f32 v39, v39, v25")
        E(f"v_cvt_pk_bf16_f32 v{4+k}, v24, v25")
    qk_mfma(0); qk_mfma(1); qk_post(0)
    if qs == 0:
        for _ in range(4): vissue(DQ)
        qk_mfma(2); qk_post(1)
        for _ in range(1 if DQ <= 4 else 4): vissue(DQ)
        for u in range(3, 8):
            qk_mfma(u); qk_post(u-1)
            if DQ > 4 or u % 2 == 0: vissue(DQ)
    else:
        vissue(DQ); vissue(DQ)
        for u in range(2, 8):
            qk_mfma(u); qk_post(u-1)
            if u % 2 == 1: vissue(DQ)
    qk_post(7)
    if NL:
        E(f"s_waitcnt vmcnt({st['issued'] - NL})"); E("v_lshl_add_u32 v3, v0, 4, s22")
        for i in range(NL): E(f"ds_read_b128 v[{VS(i)}:{VS(i)+3}], v3 offset:{i*1024}")
    swap_reduce("v_max_f32", 36, 24, 16); swap_reduce("v_max_f32", 36, 24, 32)
    rnd(36, 36)
    E("v_mul_f32 v37, s31, v36"); E("v_mov_b32 v38, 0"); E("v_mov_b32 v39, 0")
    for k in range(16):
        if k % (4 if qs == 0 else 6) == (0 if qs == 0 else 2): vissue(DQ)
        expo(k)
    E("v_add_f32 v37, v38, v39")
    swap_reduce("v_add_f32", 37, 24, 16); swap_reduce("v_add_f32", 37, 24, 32)
    E("s_lshl_b32 s28, s3, 4"); E("v_add_u32 v3, s28, v0"); E("v_mov_b32 v24, 1")
    E("s_mov_b64 exec, 0x101"); E(f"ds_write_b64 v3, v[36:37] offset:{MLB}")
    E("s_mov_b64 exec, 1"); E(f"ds_add_u32 v2, v24 offset:{C_CNT}")
    E("s_mov_b64 exec, -1")
    stamp(3)
    E("v_and_b32 v3, 1, v0"); E("v_cmp_eq_u32 vcc, 1, v3")
    E("v_mov_b32 v32, 0x0c0c0100"); E("v_mov_b32 v33, 0x01000c0c"); E("v_cndmask_b32 v32, v32, v33, vcc")
    E("v_mov_b32 v34, 0x0c0c0302"); E("v_mov_b32 v33, 0x03020c0c"); E("v_cndmask_b32 v33, v34, v33, vcc")
    E("v_bfe_u32 v3, v0, 1, 2"); E("v_mov_b32 v34, 0x0c0c0c0c")
    for r in range(4):
        E(f"v_cmp_eq_u32 vcc, {r}, v3"); E(f"v_cndmask_b32 v{24+r}, v34, v32, vcc"); E(f"v_cndmask_b32 v{28+r}, v34, v33, vcc")
    E("v_and_b32 v3, 15, v0"); E("v_lshlrev_b32 v3, 5, v3"); E("v_bfe_u32 v2, v0, 4, 1"); E("v_lshl_add_u32 v3, v2, 4, v3")
    E("v_lshrrev_b32 v2, 5, v0"); E("v_lshl_add_u32 v3, v2, 9, v3"); E("s_lshl_b32 s28, s3, 10"); E("v_add_u32 v3, s28, v3")
    setscc()
    if NL: E("s_waitcnt lgkmcnt(0)")
    pv = dict(done=0)
    def pv_prep(i):
        A0 = 32 + 4 * (i & 1)
        for r in range(4): E(f"v_perm_b32 v{A0+r}, v{4+i//2}, v{4+i//2}, v{24+4*(i&1)+r}")
    def pv_mfma(i):
        A0 = 32 + 4 * (i & 1)
        c = "0" if i == 0 else "v[20:23]"
        E(f"v_mfma_f32_16x16x32_bf16 v[20:23], v[{A0}:{A0+3}], v[{VS(i)}:{VS(i)+3}], {c}")
    while st['issued'] < 32:
        vissue(DV - (1 if fbm and st['issued'] > fbv else 0) + (DE if st['issued'] >= 32 - NE else 0))
        n = 0
        while pv['done'] <= st['issued'] - 1 - DV - xd - (DE if st['issued'] > 32 - NE else 0) and n < 4:
            pv_prep(pv['done']); pv_mfma(pv['done']); pv['done'] += 1; n += 1
    E("v_mov_b32 v2, 0")
    if N2: lds_inc(C_GT, 2, 4)
    lds_wait(C_FAC, 1, 2, 4, sleep=1)
    E("s_mov_b32 s6, s28"); E("s_lshl_b32 s28, s3, 2")
    E("v_and_b32 v4, 32, v0"); E("v_add_u32 v4, s28, v4"); E(f"ds_read_b32 v5, v4 offset:{FAC}")
    tagbyte(6, 0)
    E("v_mov_b32 v4, 1")
    E("s_lshl_b32 s29, s4, 5"); E("s_add_u32 s29, s29, s5"); E("s_lshl_b32 s29, s29, 10")
    assert pv['done'] >= 6
    while pv['done'] < 32:
        i = pv['done']
        pv_prep(i)
        if 31 - i < DV + xd + DE: E(f"s_waitcnt vmcnt({31-i})")
        pv_mfma(i); pv['done'] += 1
    E("s_waitcnt lgkmcnt(0)")
    for k in range(4): E(f"v_mul_f32 v{20+k}, v5, v{20+k}")
    E(f"ds_write_b128 v3, v[20:23] offset:{OBUF}")
    E("s_mov_b64 exec, 1"); E(f"ds_add_rtn_u32 v4, v2, v4 offset:{C_OC}"); E("s_mov_b64 exec, -1")
    for w in range(8): E(f"ds_read_b128 v[{40+4*w}:{43+4*w}], v1 offset:{OBUF + w*1024}")
    if stamps is True: stamp(4)
    E("s_waitcnt lgkmcnt(8)")
    E("v_readfirstlane_b32 s28, v4"); E("s_cmp_lg_u32 s28, 7"); E("s_cbranch_scc1 L_noreduce")
    E.label("L_reduce")
    PK = lambda d, x, y: (E(f"v_pk_add_f32 v[{d}:{d+1}], v[{x}:{x+1}], v[{y}:{y+1}]"), E(f"v_pk_add_f32 v[{d+2}:{d+3}], v[{x+2}:{x+3}], v[{y+2}:{y+3}]"))
    E("s_waitcnt lgkmcnt(6)"); PK(40, 40, 44)
    E("s_waitcnt lgkmcnt(4)"); PK(48, 48, 52); PK(40, 40, 48)
    E("s_waitcnt lgkmcnt(2)"); PK(56, 56, 60); PK(40, 40, 56)
    E("s_waitcnt lgkmcnt(0)"); PK(64, 64, 68); PK(40, 40, 64)
    settag(40, 6)
    intra_store(["buffer_store_dwordx4 v[40:43], v1, s[24:27], s29 offen"])
    if oack: live("s_waitcnt vmcnt(0)")
    lds_set(C_OC, 2, 4, 9)
    stamp(5)
    E.label("L_noreduce")
    if 't' in dbg: E("s_branch L_sdone")
    E(f"s_sub_u32 s28, s5, {JW2}"); E("s_cmp_ge_u32 s28, 9"); E("s_cbranch_scc1 L_sdone")
    E("s_cmp_ge_u32 s3, 5"); E("s_cbranch_scc1 L_sdone")
    E("s_lshl_b32 s28, s3, 6"); E("v_add_u32 v2, s28, v0"); E("v_min_u32 v2, 287, v2")
    tagbyte(22, 2)
    E("v_lshlrev_b32 v1, 4, v2")
    E("v_lshlrev_b32 v2, 2, v2")
    E("s_mul_i32 s18, s4, 9216"); E(f"s_add_u32 s18, s18, {G_OFF}"); E("s_add_u32 s19, s18, 4608")
    E(f"v_mov_b32 v8, {LOG2E ^ 0x80000000}"); E("v_mov_b32 v9, v8"); E("v_mov_b32 v10, 1.0"); E("v_mov_b32 v11, 1.0")
    E("v_mov_b32 v3, 0")
    Rh = lambda t: 40 + 8 * t
    def gloads(t):
        E(f"buffer_load_dwordx4 v[{Rh(t)}:{Rh(t)+3}], v1, s[24:27], s18 offen sc1"); E(f"buffer_load_dwordx4 v[{Rh(t)+4}:{Rh(t)+7}], v1, s[24:27], s19 offen sc1")
    E("s_cbranch_execz L_hgo")
    E("s_waitcnt lgkmcnt(0)")
    E("s_barrier"); E("s_barrier")
    gloads(0)
    E("s_barrier"); E("s_barrier")
    E("s_waitcnt vmcnt(0)")
    E.label("L_hgo")
    stamp(6)
    def gfin(t):
        g, u = Rh(t), Rh(t) + 4
        E(f"v_pk_mul_f32 v[4:5], v[{g}:{g+1}], v[8:9]"); E(f"v_pk_mul_f32 v[6:7], v[{g+2}:{g+3}], v[8:9]")
        E(f"v_pk_mul_f32 v[16:17], v[{u}:{u+1}], v[{g}:{g+1}]"); E(f"v_pk_mul_f32 v[18:19], v[{u+2}:{u+3}], v[{g+2}:{g+3}]")
    ppoll(PG, 2, gloads, lambda t: lowcheck(20, [Rh(t), Rh(t)+2, Rh(t)+4, Rh(t)+6], 22), gfin)
    for e in range(4): E(f"v_exp_f32 v{4+e}, v{4+e}")
    E("v_pk_add_f32 v[4:5], v[4:5], v[10:11]"); E("v_pk_add_f32 v[6:7], v[6:7], v[10:11]")
    for e in range(4): E(f"v_rcp_f32 v{4+e}, v{4+e}")
    E("v_pk_mul_f32 v[16:17], v[16:17], v[4:5]"); E("v_pk_mul_f32 v[18:19], v[18:19], v[6:7]")
    E("v_cvt_pk_bf16_f32 v12, v16, v18"); E("v_cvt_pk_bf16_f32 v13, v17, v19")
    E(f"ds_write_b32 v2, v12 offset:{ACT0}"); E(f"ds_write_b32 v2, v13 offset:{ACT1}")
    E("s_waitcnt lgkmcnt(0)")
    E("s_cbranch_execz L_ret_s")
    E("s_barrier")
    stamp(7)
    E.label("L_sdone")
    E("s_cbranch_execz L_ret_s")
    stamp_flush(); E("s_endpgm")

    E.label("L_tailprep")
    E("s_mov_b64 s[88:89], -1")
    if reh:
        E("s_cmp_lg_u32 s3, 2"); E("s_cbranch_scc1 L_tp2")
        E("s_mov_b32 s6, 3"); E("s_mov_b32 s29, 0"); E("v_mov_b32 v2, 0")
        walk("L_reduce", "L_ret_s")
        E.label("L_tp2")
    else:
        E.label("L_ret_s")
    E("s_cmp_lt_u32 s5, 27"); E("s_cbranch_scc1 L_tail1")
    E("s_sub_u32 s28, s2, 224"); E("s_cmp_ge_u32 s28, 6"); E("s_cbranch_scc1 L_svc_end")
    lds_wait(C_GO, 4, 1, 8, sleep=4)
    if lj == 0: lds_wait(C_OC, ko, 1, 8, sleep=2)
    elif lj == 1: lds_wait(C_CNT, 8, 1, 8, sleep=4)
    elif lj == 2: lds_wait(C_V2, 1, 1, 8, sleep=4)
    E("s_mov_b32 s21, 2"); E("s_add_u32 s22, s4, 48"); E("s_mov_b32 s18, 8"); E("s_branch L_job")
    E.label("L_tail1")
    E("s_cmp_lt_u32 s5, 9"); E("s_cbranch_scc1 L_owner")

    def wsetup():
        op_addrs()
        E(f"v_mov_b32 v8, {ZBUF}"); E(f"v_mov_b32 v9, {CBUF}"); E(f"v_mov_b32 v10, {SBUF}")
        E("v_cmp_eq_u32 vcc, 1, v6"); E("v_cndmask_b32 v4, v8, v9, vcc"); E("v_cmp_eq_u32 vcc, 2, v6"); E("v_cndmask_b32 v4, v4, v10, vcc")
        E("v_bfe_u32 v7, v0, 2, 1"); E("v_mul_u32_u24 v7, 1152, v7"); E("v_lshl_add_u32 v7, v5, 4, v7"); E("v_add_u32 v4, v4, v7")
        E("v_and_b32 v3, 1, v0"); E("v_xor_b32 v3, 1, v3"); E(f"v_mul_u32_u24 v3, {ACT0-ACT1}, v3"); E("v_lshl_add_u32 v3, v5, 4, v3")
        E("s_sub_u32 s30, s5, 9"); E("s_lshl_b32 s30, s30, 2"); E("s_add_u32 s30, s30, s3")
        E("s_lshl_b32 @S0@, s30, 7"); E("s_mul_i32 s29, s4, 9216"); E("s_add_u32 @S0@, @S0@, s29"); E(f"s_add_u32 @S0@, @S0@, {G_OFF}")
        E(f"s_mul_i32 @S1@, s4, {ZS}"); E(f"s_add_u32 @S1@, @S1@, {Z_OFF}")
        E(f"s_sub_u32 s30, s5, {JW2}"); E("s_lshl_b32 s30, s30, 2"); E("s_add_u32 s30, s30, s3"); E("s_lshl_b32 s30, s30, 7")
        E("s_lshl_b32 @S2@, s4, 14"); E("s_add_u32 @S2@, @S2@, s30"); E(f"s_add_u32 @S2@, @S2@, {Y_OFF}"); E("s_add_u32 @S6@, @S2@, 8192")
        E("s_mul_i32 s28, s3, 45"); E("v_min_u32 v12, 44, v0"); E("v_add_u32 v12, s28, v12"); E("v_lshlrev_b32 v12, 4, v12")
        E("v_and_b32 v8, 15, v0"); E("v_lshrrev_b32 v9, 5, v0"); E("v_lshl_add_u32 v9, v9, 4, v8"); E("v_cmp_gt_u32 vcc, 18, v9")
        E("v_bfe_u32 v10, v0, 4, 1"); E("v_mul_u32_u24 v11, 288, v10"); E("v_lshl_add_u32 v16, v9, 4, v11"); E(f"v_add_u32 v16, {ZBUF + 2304}, v16")
        E(f"v_mov_b32 v9, {ZERO}"); E("v_cndmask_b32 v16, v9, v16, vcc")
        E("v_and_b32 v8, 3, v0"); E("v_lshlrev_b32 v8, 2, v8"); E(f"ds_write_b32 v8, v1 offset:{ZERO}")
        E("v_lshlrev_b32 v7, 3, v0")
        E("s_mov_b32 @S4@, 0x3ae38e39"); E("s_mov_b32 @S5@, 0x3727c5ac")
    if reh:
        E("s_cmp_lg_u32 s3, 1"); E("s_cbranch_scc1 L_now_w")
        wsetup()
        E("s_mov_b32 s6, 3")
        walk("L_wt", "L_ret_w")
        E.label("L_now_w")
    else: E.label("L_ret_w")
    if 't' not in dbg:
        lds_wait(C_Q, 1, 1, 8, sleep=8)
        mktag()
        own_map()
        modgather(1728, 2304)
        for i in range(3):
            E(f"v_add_f32 v{30+2*i}, 1.0, v{30+2*i}"); E(f"v_add_f32 v{31+2*i}, 1.0, v{31+2*i}")
            E(f"v_cvt_pk_bf16_f32 v12, v{30+2*i}, v{31+2*i}"); E(f"v_cvt_pk_bf16_f32 v13, v{24+2*i}, v{25+2*i}")
            a_, o_ = ((10, 0), (10, 128), (11, 0))[i]
            E(f"ds_write_b32 v{a_}, v12 offset:{CBUF+o_}"); E(f"ds_write_b32 v{a_}, v13 offset:{SBUF+o_}")
    lds_wait(C_BAR, 1, 1, 8, sleep=4)
    E("s_mov_b32 s6, s28")
    wsetup()
    E("s_mov_b32 s20, 9216")
    dma_addrs(24, 25, 26)
    E("s_cmp_ge_u32 s5, 18"); E("s_cselect_b32 s8, s50, s48"); E("s_cselect_b32 s9, s51, s49"); E("s_cselect_b32 s28, 18, 9"); E("s_sub_u32 s28, s5, s28")
    E(f"s_mov_b32 s10, {576*9216}"); E("s_mov_b32 s11, 0x20000")
    E("s_mul_i32 s16, s4, 1152"); E("s_lshl_b32 s28, s28, 7"); E("s_add_u32 s16, s16, s28")
    E(f"s_mul_i32 s28, s3, {8*9216}"); E("s_add_u32 s16, s16, s28"); E(f"s_mov_b32 s17, {32*9216}")
    E("s_lshl_b32 s29, s3, 10"); E(f"s_add_u32 s29, s29, {SLOT_A}"); E("s_mov_b32 s19, 9")
    E("s_bitcmp1_b32 s3, 0"); E("s_cselect_b64 vcc, -1, 0"); E("v_cndmask_b32 v24, v24, v25, vcc")
    E("v_lshrrev_b32 v5, 1, v0"); tagbyte(5, 5)

    if tlb:
        E(f"v_mul_u32_u24 v26, {143*9216}, v0"); E("s_mov_b64 exec, 3"); E("buffer_load_dword v27, v26, s[8:11], s16 offen nt"); E("s_mov_b64 exec, -1")
    if NP or NP3:
        E("s_bfe_u32 s30, s16, 0x30007"); E("s_cmp_eq_u32 s30, 3"); E(f"s_cselect_b32 s19, {NP3}, {NP}"); E("s_sub_u32 s31, 9, s19")
        E("s_cmp_eq_u32 s19, 0"); E("s_cbranch_scc1 L_nol1")
        if NL: lds_wait(C_CNT, 8, 1, 8, sleep=4)
        else: lds_wait(C_VH, 1, 1, 8, sleep=4)
        dma_loop("L_dma_l1", DW1, 24, 24, 4096)
        E.label("L_nol1")
        E("s_mov_b32 s19, s31")
    if k1:
        lds_wait(C_OC, k1, 1, 8, sleep=1)
        E(f"s_sub_u32 s31, s19, {N1}"); E(f"s_mov_b32 s19, {N1}"); dma_loop("L_dma_l2", 0, 24, 24, 4096); E("s_mov_b32 s19, s31")
    if N2:
        assert not gate
        lds_wait(C_GT, k2, 1, 8, sleep=1)
        E(f"s_sub_u32 s31, s19, {N2}"); E(f"s_mov_b32 s19, {N2}"); dma_loop("L_dma_l3", 0, 24, 24, 4096); E("s_mov_b32 s19, s31")
    if gate:
        E("s_cmp_lg_u32 s3, 1"); E("s_cbranch_scc1 L_gt2")
        lds_wait(C_VH, 1, 1, 8, sleep=2)
        E(f"s_cmp_lg_u32 s5, {gj}"); E("s_cbranch_scc1 L_gt1")
        E("s_lshl_b32 s28, s4, 7"); E(f"s_add_u32 s28, s28, {PG_OFF}"); E("v_mov_b32 v8, s35")
        E("s_mov_b64 exec, 1"); E("buffer_store_dword v8, v1, s[24:27], s28 offen sc1"); E("s_mov_b64 exec, -1")
        E.label("L_gt1")
        lds_wait(C_OC, gk, 1, 8, sleep=1)
        E(f"s_mov_b32 s30, {PG_OFF}"); E("v_and_b32 v9, 7, v0"); E("v_lshlrev_b32 v9, 7, v9"); E("s_mov_b32 s7, 0")
        E.label("L_gtp")
        E("buffer_load_dword v8, v9, s[24:27], s30 offen sc1"); E("s_waitcnt vmcnt(0)")
        E("v_cmp_eq_u32 vcc, s35, v8"); E("s_bcnt1_i32_b64 s31, vcc")
        E(f"s_cmp_ge_u32 s31, {gate*8}"); E("s_cbranch_scc1 L_gtd")
        E(f"s_sleep {gsl}"); E("s_add_u32 s7, s7, 1"); E(f"s_cmp_lt_u32 s7, {plim}"); E("s_cbranch_scc1 L_gtp")
        E.label("L_gtd")
        lds_set(C_GT, 1, 8, 1)
        E.label("L_gt2")
        lds_wait(C_GT, 1, 1, 8, sleep=2)
    lds_wait(C_OC, ko, 1, 8, sleep=1)
    if prio: E(f"s_setprio {prio}")
    stamp(5)
    if 'w' not in dbg: dma_loop("L_dma_late", DW, 24, 24, 4096)
    if 't' in dbg:
        E("s_waitcnt vmcnt(0)"); stamp(6); E("s_branch L_svc_end")
    Rz = lambda t: 84 + 4 * t
    def zload(t): E(f"buffer_load_dwordx4 v[{Rz(t)}:{Rz(t)+3}], v12, s[24:27], @S1@ offen sc1")
    def zcheck(t):
        E(f"ds_write_b128 v12, v[{Rz(t)}:{Rz(t)+3}] offset:{ZBUF}")
        E(f"v_max3_u32 v8, v{Rz(t)}, v{Rz(t)+1}, v{Rz(t)+2}"); E(f"v_max_u32 v8, v8, v{Rz(t)+3}"); E("v_cmp_eq_u32 vcc, -1, v8")
    E(f"s_waitcnt vmcnt({18-KA})")
    E("s_barrier")
    E.label("L_wt")
    stage_b(SLOT_A, KA, wait=False, t=9)
    E(f"s_waitcnt vmcnt({ZL})")
    zload(0)
    E("s_cbranch_execz L_wt2")
    E("s_waitcnt vmcnt(1)")
    E("s_barrier")
    stamp(6)
    E.label("L_wt2")
    stage_b(SLOT_A, 18, wait=False, k0=KA, t=9)
    stamp(7)
    E("s_mov_b32 s7, 0"); E("s_branch L_zchk")
    E.label("L_zpl")
    zload(0)
    E.label("L_zchk")
    E("s_waitcnt vmcnt(0)")
    zcheck(0)
    E("s_cbranch_vccz L_zok")
    E("s_add_u32 s7, s7, 1"); E(f"s_cmp_lt_u32 s7, {plim}"); E("s_cbranch_scc1 L_zpl")
    E.label("L_zok")
    E("s_waitcnt lgkmcnt(0)")
    live("s_barrier")
    stamp(8)
    NSP = 2
    for k in range(NSP): E(f"ds_read_b128 v[{AT(k)}:{AT(k)+3}], v4 offset:{k*64}")
    E("ds_read_b128 v[20:23], v16")
    F = ["v_pk_add_f32 v[18:19], v[20:21], v[22:23]", "v_permlane32_swap_b32 v18, v19", "v_add_f32 v18, v18, v19"]
    F += [f"v_add_f32_dpp v18, v18, v18 row_ror:{k} row_mask:0xf bank_mask:0xf" for k in (1, 2, 4, 8)]
    F += ["v_mul_f32 v18, @S4@, v18", "v_mov_b32 v19, v18", "v_permlane32_swap_b32 v18, v19", "v_fma_f32 v19, -v18, v18, v19", "v_max_f32 v19, 0, v19"]
    R = lambda r: [f"v_cvt_pk_bf16_f32 v{r}, v{r}, v{r}", f"v_and_b32 v{r}, 0xffff0000, v{r}"]
    if mim: F += R(19) + ["v_add_f32 v19, @S5@, v19"] + R(19) + ["v_sqrt_f32 v19, v19"] + R(18) + R(19) + ["v_rcp_f32 v19, v19"]
    else: F += ["v_add_f32 v19, @S5@, v19", "v_rsq_f32 v19, v19"]
    gemv(4, 0, 18, 8, F, pre=NSP, extra=1)
    E("v_fma_f32 v8, -v18, v9, v8"); E("v_fma_f32 v8, v8, v19, v10")
    E("v_mov_b32 v9, v8"); E("v_permlane16_swap_b32 v8, v9")
    settag(8, 5)
    E(X(0xffff))
    intra_store(["buffer_store_dwordx2 v[8:9], v7, s[24:27], @S0@ offen"])
    E(X(-1))
    stamp(13)
    E(f"s_sub_u32 s28, s5, {JW2}"); E("s_cmp_ge_u32 s28, 9"); E("s_cbranch_scc1 L_wend")
    live("s_barrier")
    stage_b(SLOT_B, 18)
    tagbyte(5, 0)
    live("s_barrier")
    stamp(14)
    gemv(3, ACT1, 18, 8)
    settag(8, 5)
    E(X(0xffff))
    E("buffer_store_dwordx2 v[8:9], v7, s[24:27], @S2@ offen sc1")
    if numa: E("buffer_store_dwordx2 v[8:9], v7, s[24:27], @S6@ offen sc1")
    stamp(15)
    E.label("L_wend")
    E("s_cbranch_execz L_ret_w")
    E("s_branch L_svc_end")

    E.label("L_owner")
    if 't' in dbg: E("s_waitcnt vmcnt(0)"); E("s_branch L_svc_end")
    E("s_waitcnt vmcnt(0)")
    lds_inc(C_D1, 1, 8)
    mktag()
    op_addrs()
    E("s_lshl_b32 s22, s5, 2"); E("s_add_u32 s22, s22, s3")
    E("v_and_b32 v6, 15, v0"); E("v_bfe_u32 v7, v0, 4, 1"); E("v_lshrrev_b32 v20, 4, v0"); E("v_lshlrev_b32 v20, 14, v20"); E("v_lshl_add_u32 v20, v6, 3, v20")
    E("v_mul_u32_u24 v21, 1152, v7"); E("v_lshl_add_u32 v21, v6, 1, v21")
    E("v_mul_u32_u24 v22, 288, v7")
    E("v_lshlrev_b32 v23, 3, v6")
    E("v_cmp_eq_u32 vcc, 0, v7"); E("v_mov_b32 v19, 0x03020c0c"); E("v_mov_b32 v6, 0x01000c0c"); E("v_cndmask_b32 v19, v19, v6, vcc")
    E("s_lshl_b32 s23, s22, 5")
    srd(8, 36, 2304); srd(12, 58, 2304)
    E("s_lshl_b32 s28, s22, 7"); E(f"s_add_u32 s32, s28, {MOD_OFF + 1152*8}"); E(f"s_add_u32 s33, s32, {1152*8}"); E(f"s_add_u32 s19, s33, {576*8}")
    E("s_lshl_b32 s29, s4, 14"); E("s_add_u32 s29, s29, s28")
    E(f"s_add_u32 s18, s29, {X_OFF}"); E(f"s_add_u32 s{SO(4)}, s18, 8192")
    XS = SO
    for k in range(4): E(f"s_add_u32 s{XS(k)}, s28, {(X_OFF, X_OFF + 4*16384, Y_OFF, Y_OFF + 4*16384)[k]}")
    E(f"s_mul_i32 s20, s4, {ZS}"); E("s_add_u32 s20, s20, s23"); E(f"s_add_u32 s20, s20, {Z_OFF}")
    E(f"s_mul_i32 s21, s4, {ZS}"); E("s_lshl_b32 s28, s22, 3"); E("s_add_u32 s21, s21, s28"); E(f"s_add_u32 s21, s21, {ST_OFF}")
    E("s_lshl_b32 s28, s4, 5"); E("s_lshl_b32 s29, s3, 3"); E("s_add_u32 s28, s28, s29")
    E("s_lshl_b32 s16, s28, 10"); E("s_add_u32 s17, s16, 4096")
    E("v_lshlrev_b32 v7, 3, v0"); E("v_mov_b32 v6, 0")
    if reh:
        E("s_cmp_lg_u32 s3, 1"); E("s_cbranch_scc1 L_now_o")
        E("s_mov_b32 s6, 3")
        walk("L_ot", "L_ret_o")
        E.label("L_now_o")
    else: E.label("L_ret_o")
    if numa:
        E("s_cmp_lg_u32 s3, 2"); E("s_cbranch_scc1 L_nonuma")
        E("s_lshl_b32 s28, s4, 14"); E("s_lshl_b32 s29, s5, 8"); E("s_add_u32 s28, s28, s29"); E(f"s_add_u32 s28, s28, {X_OFF + 4608}")
        NPR = 4
        for k in range(NPR):
            E(f"s_add_u32 s{36+2*k}, s28, {(k & 1) * 0x20000 + (k >> 1) * 1152}"); E(f"s_add_u32 s{37+2*k}, s{36+2*k}, 8192")
        for k in range(2 * NPR): E(f"s_buffer_load_dword s{44+k}, s[24:27], s{36+k} glc")
        E("s_mov_b32 s30, 0"); E("s_mov_b32 s31, 0")
        E("s_waitcnt lgkmcnt(0)")
        E.label("L_numa")
        for k in range(NPR):
            order = (0, 1) if k & 1 else (1, 0)
            sec = order[1]
            E(f"s_not_b32 s{52+sec}, s{44+2*k+sec}")
            for c in order: E(f"s_buffer_load_dword s{52+c}, s[24:27], s{36+2*k+c} glc")
            E("s_waitcnt lgkmcnt(1)"); E("s_nop 7")
            E(f"s_cmp_{'eq' if sec else 'lg'}_u32 s{52+sec}, s{44+2*k+sec}"); E("s_addc_u32 s30, s30, 0")
            E("s_waitcnt lgkmcnt(0)")
        E("s_add_u32 s31, s31, 1"); E(f"s_cmp_lt_u32 s31, {NRR}"); E("s_cbranch_scc1 L_numa")
        if pool:
            E("s_lshl_b32 s31, s4, 7"); E(f"s_add_u32 s31, s31, {VT_OFF}"); E("s_lshl_b32 s29, s5, 3"); E("s_add_u32 s29, s29, s31")
            E("v_mov_b32 v24, s30"); E("v_mov_b32 v25, s35")
            E("s_mov_b64 exec, 1"); E("buffer_store_dwordx2 v[24:25], v1, s[24:27], s29 offen sc1"); E("s_mov_b64 exec, -1")
            lds_wait(C_CNT, 8, 1, 8, sleep=8)
            E("v_min_u32 v26, 64, v23")
            def vtbody():
                E("buffer_load_dwordx2 v[24:25], v26, s[24:27], s31 offen sc1"); E("s_waitcnt vmcnt(0)"); tagcheck(27, [25])
            poll(vtbody, 16)
            E("v_cmp_gt_u32 vcc, 72, v23"); E("v_cndmask_b32 v24, 0, v24, vcc")
            row_reduce("v_add_u32", 24, (1, 2, 4, 8))
            E("v_readfirstlane_b32 s30, v24")
        if stamps is True: E("s_mov_b32 s71, s30"); stamp(2)
        E(f"s_cmp_gt_u32 s30, {(9 if pool else 1)*NPR*NRR//2}"); E(f"s_cselect_b32 s30, {8193 if numa == 1 else 1}, {1 if numa == 1 else 8193}")
        lds_set(C_NR, 1, 8, "s30")
        E.label("L_nonuma")
    lds_wait(C_BAR, 1, 1, 8, sleep=8)
    E("s_mov_b32 s6, s28")
    lds_wait(C_D1, 4, 1, 8, sleep=4)
    stage_b(SLOT_A, 16)
    E("buffer_load_ushort v16, v21, s[8:11], s23 offen")
    def gabody():
        for k in range(2): E(f"buffer_load_dwordx2 v[{24+2*k}:{25+2*k}], v23, s[24:27], s{32+k} offen sc1")
        E("s_waitcnt vmcnt(0)")
        tagcheck(6, [25, 27])
    poll(gabody, 8)
    for k in range(2): E(f"v_perm_b32 v{17+k}, v{24+2*k}, v{24+2*k}, v19")
    E("v_lshlrev_b32 v16, 16, v16"); E("v_add_f32 v18, 1.0, v18"); rnd(18, 18)
    E("v_lshlrev_b32 v5, 4, v0")
    E("s_lshr_b32 s28, s3, 1"); E("s_mul_i32 s28, s28, 1152"); E("s_and_b32 s29, s3, 1"); E("s_lshl_b32 s29, s29, 9"); E("s_add_u32 s28, s28, s29")
    E("v_add_u32 v6, s28, v7")
    lds_wait(C_V2, 1, 1, 8, sleep=8)
    E("s_lshl_b32 s28, s4, 5"); E("s_lshl_b32 s29, s3, 3"); E("s_add_u32 s28, s28, s29")
    E("s_lshl_b32 s28, s28, 5"); E(f"s_add_u32 s28, s28, {ML_OFF}")
    E("v_and_b32 v28, 15, v0"); E("v_lshlrev_b32 v28, 4, v28")
    def mlbody():
        E("buffer_load_dwordx4 v[24:27], v28, s[24:27], s28 offen sc1"); E("s_waitcnt vmcnt(0)"); tagcheck(29, [26])
    tagbyte(4, 0)
    poll(mlbody, sl_ml)
    E(f"s_mov_b32 s31, {LOG2E}")
    E("v_mov_b32 v27, v24"); row_reduce("v_max_f32", 27, (2, 4, 8))
    E("v_sub_f32 v27, v24, v27"); E("v_mul_f32 v27, s31, v27"); E("v_exp_f32 v27, v27"); E("v_mul_f32 v28, v27, v25")
    row_reduce("v_add_f32", 28, (2, 4, 8))
    E("v_rcp_f32 v28, v28"); E("v_lshrrev_b32 v26, 5, v0"); E("v_lshlrev_b32 v26, 2, v26"); E("v_mul_f32 v27, v27, v28")
    for s_ in range(8): E(f"ds_bpermute_b32 v{8+s_}, v26, v27 offset:{8*s_}")
    E("s_waitcnt lgkmcnt(0)")
    if numa:
        lds_wait(C_NR, 1, 1, 24, sleep=4)
        E("s_sub_u32 s28, s28, 1"); E("v_add_u32 v20, s28, v20")
    stamp(6)
    lds_wait(C_OC, 8, 1, 24, sleep=1)
    stamp(7)
    E.label("L_ot")
    def obody():
        for s in range(8): E(f"buffer_load_dwordx4 v[{24+4*s}:{27+4*s}], v5, s[24:27], s{16 + s//4} offen offset:{(s%4)*1024} sc1")
        for s in range(8):
            E(f"s_waitcnt vmcnt({7-s})")
            E(f"v_xor_b32 v{24+4*s}, v4, v{24+4*s}")
            for k in (1, 2, 3, 0):
                if s == 0: E(f"v_mul_f32 v{56+k}, v8, v{24+k}")
                else: E(f"v_fmac_f32 v{56+k}, v{8+s}, v{24+4*s+k}")
            if s == 2: E("v_or3_b32 v60, v24, v28, v32")
            if s in (4, 6): E(f"v_or3_b32 v60, v60, v{20+4*s}, v{24+4*s}")
        E("v_cvt_pk_bf16_f32 v56, v56, v57"); E("v_cvt_pk_bf16_f32 v57, v58, v59")
        E(f"ds_write_b64 v6, v[56:57] offset:{ABUF}")
        E("v_or_b32 v60, v60, v52"); E("v_and_b32 v60, 0xfff, v60"); E("v_cmp_ne_u32 vcc, 0, v60")
    poll(obody, sl_o)
    stamp(8)
    E("s_waitcnt lgkmcnt(0)")
    live("s_barrier")
    gemv(3, ABUF, 16, 8)
    settag(8, 4)
    E(X(0xffff))
    E("buffer_store_dwordx2 v[8:9], v7, s[24:27], s18 offen sc1")
    if numa: E(f"buffer_store_dwordx2 v[8:9], v7, s[24:27], s{SO(4)} offen sc1")
    E(X(-1))
    stamp(9)
    def gather8(base):
        Rg = lambda t: 32 + 4 * t
        def loads(t):
            E(f"buffer_load_dwordx2 v[{Rg(t)}:{Rg(t)+1}], v20, s[24:27], s{XS(base)} offen sc1")
            E(f"buffer_load_dwordx2 v[{Rg(t)+2}:{Rg(t)+3}], v20, s[24:27], s{XS(base+1)} offen sc1")
        ppoll(PX, 2, loads, lambda t: lowcheck(28, [Rg(t), Rg(t)+2], 4),
              lambda t: E(f"v_pk_add_f32 v[24:25], v[{Rg(t)}:{Rg(t)+1}], v[{Rg(t)+2}:{Rg(t)+3}]"))
    def fold8():
        E("v_permlane16_swap_b32 v24, v25"); E("v_add_f32 v24, v24, v25"); swap_reduce("v_add_f32", 24, 25, 32)
    if xwait: E("s_waitcnt vmcnt(0)")
    gather8(0)
    stamp(10)
    fold8()
    rnd(24, 24); E("v_mul_f32 v24, v17, v24"); rnd(24, 24); E("v_add_f32 v16, v16, v24"); rnd(16, 16)
    E("v_mul_f32 v24, v16, v18"); E("v_mul_f32 v27, v16, v16")
    E("v_add_f32_dpp v26, v16, v16 row_ror:1 row_mask:0xf bank_mask:0xf")
    E("v_mov_b32_dpp v25, v24 quad_perm:[1,1,3,3] row_mask:0xf bank_mask:0xf")
    E("v_add_f32_dpp v27, v27, v27 row_ror:1 row_mask:0xf bank_mask:0xf")
    E("v_cvt_pk_bf16_f32 v24, v24, v25")
    rest = []
    for k in (2, 4, 8):
        rest += [f"v_add_f32_dpp v{r}, v{r}, v{r} row_ror:{k} row_mask:0xf bank_mask:0xf" for r in (26, 27)]
    intra_store([X(0x55555555), "buffer_store_dword v24, v21, s[24:27], s20 offen", X(-1)] + rest +
                [X(0x10001), "buffer_store_dwordx2 v[26:27], v22, s[24:27], s21 offen"])
    E(X(-1))
    stamp(11)
    E("s_and_b32 s28, s5, 7"); E("s_cmp_lg_u32 s28, s4"); E("s_cbranch_scc1 L_oend")
    E("v_and_b32 v5, 15, v0"); E("v_lshlrev_b32 v5, 3, v5")
    def gbbody():
        E("buffer_load_dwordx2 v[24:25], v5, s[24:27], s19 offen sc1"); E("s_waitcnt vmcnt(0)"); tagcheck(6, [25])
    poll(gbbody, 1)
    E("v_perm_b32 v19, v24, v24, v19")
    gather8(2)
    stamp(14)
    fold8()
    rnd(24, 24); E("v_mul_f32 v24, v19, v24"); rnd(24, 24); E("v_add_f32 v24, v16, v24")
    E("v_mov_b32_dpp v25, v24 quad_perm:[1,1,3,3] row_mask:0xf bank_mask:0xf")
    E("v_cvt_pk_bf16_f32 v24, v24, v25")
    E(X(0x55555555))
    E("buffer_store_dword v24, v21, s[12:15], s23 offen")
    stamp(15)
    E.label("L_oend")
    E("s_cbranch_execz L_ret_o")
    E("s_or_b32 s28, s22, s4"); E("s_cbranch_scc1 L_svc_end")
    E(X(1)); E("v_mov_b32 v24, s35"); E(f"s_mov_b32 s28, {EP_OFF}")
    E("buffer_store_dword v24, v1, s[24:27], s28 offen")
    if probe is not None:
        if probe == 'amp':
            E("s_memrealtime s[92:93]"); E("s_waitcnt lgkmcnt(0)"); E("s_sub_u32 s29, s92, s86"); E("s_mul_i32 s29, s29, 10"); E("s_add_u32 s29, s29, s86")
        else: E(f"s_add_u32 s29, s{70+probe}, 6000")
        E.label("L_probe")
        E("s_sleep 1"); E("s_memrealtime s[92:93]"); E("s_waitcnt lgkmcnt(0)"); E("s_sub_u32 s28, s29, s92"); E("s_cmp_gt_i32 s28, 0"); E("s_cbranch_scc1 L_probe")
    E.label("L_svc_end")
    E("s_waitcnt lgkmcnt(0)")
    if stamps: E("s_add_u32 s3, s3, 8")
    stamp_flush()
    E("s_endpgm")
    for a_, b_, ins in cold:
        E.label(a_)
        for i in ins: E(i + (" sc1" if i.startswith("buffer_") else ""))
        E(f"s_branch {b_}")
    E.label("L_exit")
    E.lines = [re.sub(r'@S(\d)@', lambda m: 's%d' % SO(int(m.group(1))), l) for l in E.lines]
    body = E.finish()
    verify_stream(body)
    return HDR + f"""; @launch grid=(256,1,1) block=(768,1,1) lds=163840
.amdgcn_target "amdgcn-amd-amdhsa--gfx950"
.text
.globl {NAME}_kernel
.p2align 8
.type {NAME}_kernel,@function
{NAME}_kernel:
{body}
    s_endpgm
.section .rodata,"a"
.p2align 6
.amdhsa_kernel {NAME}_kernel
  .amdhsa_next_free_vgpr 168
  .amdhsa_next_free_sgpr 102
  .amdhsa_accum_offset 168
  .amdhsa_group_segment_fixed_size 0
  .amdhsa_kernarg_size 112
  .amdhsa_float_denorm_mode_32 3
  .amdhsa_user_sgpr_count 2
  .amdhsa_user_sgpr_kernarg_segment_ptr 1
  .amdhsa_system_sgpr_workgroup_id_x 1
.end_amdhsa_kernel
"""

def verify_stream(body):
    import re
    lines = [l.strip() for l in body.split('\n')]
    a = lines.index('L_k0:'); b = lines.index('L_service:'); c = lines.index('L_stream:'); d = lines.index('L_noreduce:')
    path = lines[a:b] + lines[c:d]
    issued = []; landed = 0; skip = None; last = {}
    for l in path:
        if skip:
            if l == skip + ':': skip = None
            continue
        m = re.match(r's_cbranch_scc1 (L_th_\d+)', l)
        if m: skip = m.group(1); continue
        m = re.match(r'buffer_load_dwordx4 v\[(\d+):', l)
        if m: issued.append(int(m.group(1))); last[int(m.group(1))] = len(issued); continue
        if re.match(r'buffer_load_dwordx4 v1, .* lds', l): issued.append(-1); nlds = len(issued); continue
        m = re.match(r'ds_read_b128 v\[(\d+):\d+\], v3 ', l)
        if m: assert landed >= nlds; last.pop(int(m.group(1)), None); continue
        m = re.search(r'vmcnt\((\d+)\)', l)
        if m: landed = max(landed, len(issued) - int(m.group(1))); continue
        m = re.match(r'v_mfma\S+ v\[(\d+):\d+\], v\[(\d+):\d+\], v\[(\d+):', l)
        if m:
            for r in (int(m.group(2)), int(m.group(3))):
                if r in last: assert last[r] <= landed, f"unwaited operand: {l}"
    assert len(issued) == 64 and landed == 64

HDR = """; adaLN-conditioned GQA decode attention + SwiGLU block, one persistent launch (generated by gen/gen10.py)
"""
if __name__ == '__main__':
    kw = eval('dict(' + (sys.argv[2] if len(sys.argv) > 2 else '') + ')')
    open(sys.argv[1], 'w').write(gen(**kw))
```

```python
import sys, re
from emit import Emit
NAME = 'adaLN_cond__gqa_block_cached__glu_gated_swiglu__decode'

O_OFF, G_OFF = 0x0, 0x40000
X_OFF, Y_OFF = 0x80000, 0xA0000
Z_OFF, ML_OFF = 0x64000, 0x6C000; ZS = 3072; ST_OFF = Z_OFF + 2304
EP_OFF = 0xC0000
FL_OFF = 0xC1000
PG_OFF = 0xC3000
VT_OFF = 0xC2000
Q_OFF, MOD_OFF = 0xC8000, 0xD0000
STAMP_OFF = 0x100000
WS_SIZE = 0x200000
C_BAR, C_Q, C_CNT, C_D1, C_D2, C_GT, C_GO, C_J1, C_J2, C_KH, C_VH, C_OC, C_FAC, C_V2, C_G, C_NR = range(0, 64, 4)
FAC, MLB, QBUF = 64, 128, 256
CBUF, SBUF = 1216, 3552
ABUF = 1216
ACT0, ACT1 = 15104, 64
ZERO = 5856
JBUF, ZBUF, OBUF = 5888, 5888, 8192
SLOT_A, SLOT_B = 16384, 90112
LOG2E = 0x3fb8aa3b
SCALE = 0x3db504f3
JW2, JQ0 = 15, 24

def gen(D=3, DV=3, DQ=3, stamps=False, force_slow=False, sl_long=2, sl_bar=16, gateq=0, kvf='nt', wf='nt',
        plim=0x20000, probe=None, cpf=0, sl_o=0, sl_z=0, dbg='', XW=(0,0,0,0,3,4), XD=1, sl_ml=32, kh=29, sl_q=4,
        XG=1, DE=5, NE=10, kv=12, DW=0, DEA=0, DJ=0, K0=3, DJQ=0, EB=0, QB=0, ko=9, omask=0, xwait=0, NP=0, DW1=2, NP3=4, XL=0, k1=0, N1=2, PX=1, PG=1, hg=1, reh=1, oack=0, tlb=0, warm='', NL=4, v2=22, qs=1, numa=1, NRR=2, pool=1, KA=14, ZL=1, gate=0, gj=20, gsl=2, gk=6, N2=2, k2=8, jreh=0, xe=1, fb=0, fbg=20, fbo=0, fbv=12, fbl=0, fbm=0, XN=(0,10,22,10,20,52,36,40), km=12, LE=((0,50,3),), prio=3, kms=1, LX=1, pat=dict(t=[(1,15,'j'),(2,10,'j1w'),(2,16,'j3w')]), XM=0, XMN=0, AD=6, mim=0, lj=0, XJ=40):
    assert ko == 9
    E = Emit()
    uid = [0]
    def L(p):
        uid[0] += 1
        return f"L_{p}_{uid[0]}"
    def stamp(k):
        if stamps and (stamps not in ('lite', 'entry') or k in (0, 15)):
            E("s_memrealtime s[92:93]"); E("s_waitcnt lgkmcnt(0)"); E(f"s_mov_b32 s{70+k}, s92")
    def stamp_flush():
        if stamps:
            E("s_mov_b64 exec, -1")
            if stamps == 'entry': E("s_mov_b32 s71, s86")
            E("v_mov_b32 v4, 0")
            for k in range(16): E(f"v_writelane_b32 v4, s{70+k}, {k}")
            E("s_lshl_b32 s28, s4, 5"); E("s_add_u32 s28, s28, s5"); E("s_mul_i32 s28, s28, 12"); E("s_add_u32 s28, s28, s3")
            E("s_lshl_b32 s28, s28, 6"); E(f"s_add_u32 s28, s28, {STAMP_OFF}")
            E("v_mbcnt_lo_u32_b32 v5, -1, 0"); E("v_mbcnt_hi_u32_b32 v5, -1, v5"); E("v_lshlrev_b32 v5, 2, v5")
            E("s_mov_b64 exec, 0xffff")
            E("buffer_store_dword v4, v5, s[24:27], s28 offen")
    def srd(r, p, size):
        E(f"s_mov_b32 s{r}, s{p}"); E(f"s_mov_b32 s{r+1}, s{p+1}"); E(f"s_mov_b32 s{r+2}, {size}"); E(f"s_mov_b32 s{r+3}, 0x20000")
    def lds_wait(off, val, vz, vt, sleep=2):
        a, b = L("lw"), L("lwd")
        E("s_mov_b32 s7, 0"); E.label(a)
        E(f"ds_read_b32 v{vt}, v{vz} offset:{off}"); E("s_waitcnt lgkmcnt(0)")
        E(f"v_readfirstlane_b32 s28, v{vt}"); E(f"s_cmp_ge_u32 s28, {val}"); E(f"s_cbranch_scc1 {b}")
        if sleep: E(f"s_sleep {sleep}")
        E("s_add_u32 s7, s7, 1"); E(f"s_cmp_lt_u32 s7, {plim*8}"); E(f"s_cbranch_scc1 {a}")
        E.label(b)
    def lds_set(off, vz, vt, val):
        E(f"v_mov_b32 v{vt}, {val}"); E(f"ds_write_b32 v{vz}, v{vt} offset:{off}")
    def lds_inc(off, vz, vt):
        E(f"v_mov_b32 v{vt}, 1"); E("s_mov_b64 exec, 1"); E(f"ds_add_u32 v{vz}, v{vt} offset:{off}"); E("s_mov_b64 exec, -1")
    def soft_barrier(off, vz, vt, sleep=0, n=4):
        lds_inc(off, vz, vt); lds_wait(off, n, vz, vt, sleep)
    def poll(body, sleep=0):
        a, b = L("pl"), L("pld")
        E("s_mov_b32 s7, 0"); E.label(a)
        body()
        E(f"s_cbranch_vccz {b}")
        if sleep: E(f"s_sleep {sleep}")
        E("s_add_u32 s7, s7, 1"); E(f"s_cmp_lt_u32 s7, {plim}"); E(f"s_cbranch_scc1 {a}")
        E.label(b)
    def ppoll(nsets, nload, loads, check, finish):
        a, d = L("pp"), L("ppd"); ok = [L("ppk") for _ in range(nsets)]
        E("s_mov_b32 s7, 0")
        for t in range(nsets): loads(t)
        E.label(a)
        for t in range(nsets):
            E(f"s_waitcnt vmcnt({(nsets-1)*nload})"); check(t); E(f"s_cbranch_vccz {ok[t]}"); loads(t)
        E("s_add_u32 s7, s7, 1"); E(f"s_cmp_lt_u32 s7, {plim}"); E(f"s_cbranch_scc1 {a}")
        E("s_waitcnt vmcnt(0)")
        for t in range(nsets):
            E.label(ok[t]); finish(t)
            if t + 1 < nsets: E(f"s_branch {d}")
        E.label(d)
    cold = []
    def intra_store(ins):
        a, b = L("is"), L("isd")
        E("s_cmp_eq_u32 s6, 3"); E(f"s_cbranch_scc0 {a}")
        for i in ins: E(i)
        E.label(b)
        cold.append((a, b, ins))
    def X(m):
        return "s_mov_b64 exec, s[88:89]" if m == -1 else f"s_and_b64 exec, s[88:89], {m:#x}"
    def walk(target, ret):
        E("s_mov_b64 s[88:89], 0"); E("s_mov_b64 exec, 0"); E(f"s_branch {target}")
        E.label(ret)
        E("s_mov_b64 s[88:89], -1"); E("s_mov_b64 exec, -1")
    def live(ins):
        a = L("lv"); E(f"s_cbranch_execz {a}"); E(ins); E.label(a)
    def rnd(dst, src):
        E(f"v_cvt_pk_bf16_f32 v{dst}, v{src}, v{src}"); E(f"v_and_b32 v{dst}, 0xffff0000, v{dst}")
    def row_reduce(op, r, rors):
        for k in rors: E(f"{op}_dpp v{r}, v{r}, v{r} row_ror:{k} row_mask:0xf bank_mask:0xf")
    def swap_reduce(op, r, t, which):
        E(f"v_mov_b32 v{t}, v{r}"); E(f"v_permlane{which}_swap_b32 v{r}, v{t}"); E(f"{op} v{r}, v{r}, v{t}")
    def mktag():
        E("s_waitcnt lgkmcnt(0)")
        E("s_mul_i32 s35, s34, 0x9E3779B1"); E("s_add_u32 s35, s35, 0x7F4A7C15"); E("s_mov_b32 s90, 0xfffff000")
    def tagcheck(acc, regs):
        E(f"v_xor_b32 v{acc}, s35, v{regs[0]}")
        for r in regs[1:]: E(f"v_bitop3_b32 v{acc}, v{acc}, v{r}, s35 bitop3:0xf6")
        E(f"v_cmp_ne_u32 vcc, 0, v{acc}")
    def tagbyte(dst, idx):
        E(f"v_and_b32 v{dst}, 3, v{idx}"); E(f"v_mul_u32_u24 v{dst}, 7, v{dst}"); E(f"v_bfe_u32 v{dst}, s35, v{dst}, 12")
    def settag(r, tg): E(f"v_and_or_b32 v{r}, v{r}, s{SM}, v{tg}")
    def lowcheck(acc, regs, tg):
        for r in regs: E(f"v_xor_b32 v{r}, v{tg}, v{r}")
        ortree(acc, regs)
    def ortree(acc, regs):
        regs = list(regs)
        if len(regs) == 1: E(f"v_and_b32 v{acc}, 0xfff, v{regs[0]}")
        else:
            first = True
            while regs:
                if first:
                    t = regs[:3]; regs = regs[3:]; first = False
                    E(f"v_or3_b32 v{acc}, v{t[0]}, v{t[1]}, v{t[2]}") if len(t) == 3 else E(f"v_or_b32 v{acc}, v{t[0]}, v{t[1]}")
                else:
                    t = regs[:2]; regs = regs[2:]
                    E(f"v_or3_b32 v{acc}, v{acc}, v{t[0]}, v{t[1]}") if len(t) == 2 else E(f"v_or_b32 v{acc}, v{acc}, v{t[0]}")
            E(f"v_and_b32 v{acc}, 0xfff, v{acc}")
        E(f"v_cmp_ne_u32 vcc, 0, v{acc}")
    SM = 90
    BR = lambda k: 96 + 4 * k
    AT = lambda k: 24 + 4 * k
    def op_addrs():
        E("v_bfe_u32 v4, v0, 2, 2"); E("v_lshrrev_b32 v5, 4, v0"); E("v_lshl_add_u32 v4, v5, 3, v4"); E("v_lshlrev_b32 v4, 7, v4")
        E("v_and_b32 v6, 3, v0"); E("v_lshl_add_u32 v4, v6, 3, v4")
        E("v_bfe_u32 v7, v0, 3, 2"); E("v_xor_b32 v7, s3, v7"); E("v_lshl_add_u32 v2, v7, 5, v4")
        E("v_and_b32 v3, 1, v0"); E("v_mul_u32_u24 v3, 1152, v3"); E("v_lshl_add_u32 v3, v5, 4, v3")
    def stage_b(slot, nk, wait=True, k0=0, t=5):
        E(f"v_add_u32 v{t}, {slot}, v2"); E(f"v_add_u32 v{t+1}, {slot + 36864}, v2")
        for k in range(k0, nk):
            a = t if k < 9 else t + 1; o = (k % 9) * 4096
            E(f"ds_read_b64_tr_b16 v[{BR(k)}:{BR(k)+1}], v{a} offset:{o}"); E(f"ds_read_b64_tr_b16 v[{BR(k)+2}:{BR(k)+3}], v{a} offset:{o+512}")
        if wait: E("s_waitcnt lgkmcnt(0)")
    def gemv(areg, aoff, nk, d, fill=None, pre=0, extra=0):
        fill = list(fill or [])
        first = pre if extra else 0
        per = -(-len(fill) // (nk - first))
        depth = min(AD, 15 - extra)
        for k in range(pre, min(nk, depth)): E(f"ds_read_b128 v[{AT(k)}:{AT(k)+3}], v{areg} offset:{aoff + k*64}")
        issued = min(nk, depth)
        for k in range(nk):
            E(f"s_waitcnt lgkmcnt({issued - 1 - k + (extra if k < pre else 0)})")
            c = "0" if k == 0 else f"v[{d}:{d+3}]"
            E(f"v_mfma_f32_16x16x32_bf16 v[{d}:{d+3}], v[{AT(k)}:{AT(k)+3}], v[{BR(k)}:{BR(k)+3}], {c}")
            if issued < nk:
                E(f"ds_read_b128 v[{AT(issued)}:{AT(issued)+3}], v{areg} offset:{aoff + issued*64}"); issued += 1
            if k >= first:
                for _ in range(per):
                    if fill: E(fill.pop(0))
    def own_map():
        E("v_and_b32 v8, 31, v0"); E("v_min_u32 v9, 7, v8"); E("s_mul_i32 s28, s3, 72")
        E("v_add_u32 v8, s28, v8"); E("s_add_u32 s28, s28, 64"); E("v_add_u32 v9, s28, v9")
        E("v_lshrrev_b32 v11, 5, v0"); E("v_mul_u32_u24 v11, 1152, v11"); E("v_lshl_add_u32 v10, v8, 2, v11"); E("v_lshl_add_u32 v11, v9, 2, v11")
    def modgather(o1, o2, lab=None):
        E(f"s_mov_b32 s30, {MOD_OFF + o1*8}"); E(f"s_mov_b32 s31, {MOD_OFF + o2*8}")
        E("v_lshlrev_b32 v12, 4, v8"); E("v_lshlrev_b32 v13, 4, v9")
        def body():
            for h in range(2):
                E(f"buffer_load_dwordx4 v[{36+12*h}:{39+12*h}], v12, s[24:27], s{30+h} offen sc1")
                E(f"buffer_load_dwordx4 v[{40+12*h}:{43+12*h}], v12, s[24:27], s{30+h} offen offset:512 sc1")
                E(f"buffer_load_dwordx4 v[{44+12*h}:{47+12*h}], v13, s[24:27], s{30+h} offen sc1")
            E("s_waitcnt vmcnt(0)")
            tagcheck(14, list(range(37, 60, 2)))
        poll(body, sl_long)
        if lab: E.label(lab)
        E("v_cmp_gt_u32 vcc, 32, v0"); E("v_mov_b32 v12, 0x03020c0c"); E("v_mov_b32 v13, 0x01000c0c"); E("v_cndmask_b32 v12, v12, v13, vcc")
        for e in range(12): E(f"v_perm_b32 v{24+e}, v{36+2*e}, v{36+2*e}, v12")
    def dma_addrs(a=3, b=4, t=2):
        E(f"v_lshrrev_b32 v{t}, 3, v0"); E(f"v_mul_lo_u32 v{t}, v{t}, s20")
        E(f"v_and_b32 v{a}, 7, v0"); E(f"v_bfe_u32 v{b}, v0, 4, 1"); E(f"v_lshlrev_b32 v{b}, 1, v{b}"); E(f"v_xor_b32 v{a}, v{a}, v{b}")
        E(f"v_xor_b32 v{b}, 4, v{a}"); E(f"v_lshl_add_u32 v{a}, v{a}, 4, v{t}"); E(f"v_lshl_add_u32 v{b}, v{b}, 4, v{t}")
        E("s_lshl_b32 s17, s20, 3")
    def dma_loop(lab, depth, a=3, b=4, ls=1024):
        E.label(lab)
        E("s_mov_b32 m0, s29"); E(f"s_add_u32 s29, s29, {ls}")
        E(f"buffer_load_dwordx4 v{a}, s[8:11], s16 offen {wf} lds"); E("s_add_u32 s16, s16, s17")
        if depth: E(f"s_waitcnt vmcnt({depth-1})")
        E("s_mov_b32 m0, s29"); E(f"s_add_u32 s29, s29, {ls}")
        E(f"buffer_load_dwordx4 v{b}, s[8:11], s16 offen {wf} lds"); E("s_add_u32 s16, s16, s17")
        if depth: E(f"s_waitcnt vmcnt({depth-1})")
        E("s_sub_u32 s19, s19, 1"); E("s_cmp_lg_u32 s19, 0"); E(f"s_cbranch_scc1 {lab}")

    E.label("L_code0")
    if probe in (16, 'amp') or stamps == 'entry': E("s_memrealtime s[86:87]")
    E("s_load_dwordx16 s[36:51], s[0:1], 0")
    E("s_load_dwordx8 s[52:59], s[0:1], 64")
    E("s_load_dwordx4 s[60:63], s[0:1], 96")
    E("s_cmp_ge_u32 s2, 256"); E("s_cbranch_scc1 L_exit")
    if stamps == 'entry': E("s_mov_b32 s85, 0")
    elif stamps:
        for k in range(16): E(f"s_mov_b32 s{70+k}, 0")
    E("v_lshrrev_b32 v1, 6, v0"); E("v_and_b32 v0, 63, v0"); E("v_readfirstlane_b32 s3, v1")
    E("s_and_b32 s4, s2, 7"); E("s_lshr_b32 s5, s2, 3")
    E("s_sub_u32 s22, s2, 72"); E("s_cmp_lt_u32 s22, 48"); E("s_cselect_b32 s21, 2, 0")
    E(f"s_cmp_ge_u32 s5, {JQ0}"); E("s_cselect_b32 s21, 3, s21")
    if 'j' in dbg: E("s_mov_b32 s21, 0")
    E("s_cmp_ge_u32 s3, 8"); E("s_cbranch_scc1 L_service")

    SL = lambda i: 40 + 4 * i
    E("v_and_b32 v3, 3, v0"); E("v_lshrrev_b32 v4, 4, v0"); E("v_lshl_add_u32 v3, v4, 2, v3")
    E("v_bfe_u32 v4, v0, 2, 2"); E("v_lshlrev_b32 v4, 8, v4"); E("v_lshl_add_u32 v2, v3, 4, v4")
    if 'l' in dbg: E("v_lshlrev_b32 v2, 4, v0")
    E("s_and_b32 s28, s5, 16"); E("s_lshl_b32 s29, s4, 1"); E("s_add_u32 s28, s28, s29")
    E("s_lshl_b32 s28, s28, 3"); E("s_and_b32 s29, s5, 15"); E("s_add_u32 s28, s28, s29")
    E("s_lshl_b32 s28, s28, 6"); E("s_add_u32 s28, s28, s3"); E("s_lshl_b32 s33, s28, 12")
    E("s_add_u32 s32, s5, s3")
    def soff(u):
        E(f"s_add_u32 s30, s32, {u}"); E("s_and_b32 s30, s30, 7"); E("s_lshl_b32 s30, s30, 15"); E(f"s_add_u32 s{64+u if not stamps else 94+u}, s33, s30")
    SO = lambda u: (64 + u if not stamps else 94 + u)
    def soffB(k):
        if k < 4:
            E("s_lshr_b32 s30, s5, 3"); E("s_add_u32 s30, s30, s3"); E(f"s_add_u32 s30, s30, {k}"); E("s_and_b32 s30, s30, 3"); E("s_lshl_b32 s30, s30, 16"); E(f"s_add_u32 s{SO(k)}, s33, s30")
        else:
            E(f"s_add_u32 s30, s32, {k-4}"); E("s_and_b32 s30, s30, 3"); E(f"s_lshl_b32 s{SO(k)}, s30, 10")
    def addr(i):
        if pat == 'A': return f"s{SO(i//4)} offen offset:{(i%4)*1024}"
        if pat == 'A2':
            E(f"s_add_u32 s16, s{SO(i//4)}, s{17 + i%4}"); return "s16 offen"
        if i % 2 == 0: E(f"s_add_u32 s16, s{SO(i>>3)}, s{SO(4 + ((i>>1)&3))}")
        else: E("s_add_u32 s16, s16, 0x8000")
        return "s16 offen"
    GEN = isinstance(pat, dict)
    if GEN:
        gb = pat.get('g', (8, 9)); wb = pat.get('w', (12, 13, 14)); tf = pat['t']
        sb = pat.get('s', (18, 19, 20))
        used = list(gb) + list(wb) + list(sb) + [sh + k for n, sh, rot in tf for k in range(n)]
        assert sorted(used) == list(range(8, 21)), used
        if tuple(gb) != (8, 9): E("v_bfe_u32 v4, v0, 2, 1"); E("v_bfe_u32 v5, v0, 3, 1"); E(f"v_lshlrev_b32 v4, {gb[0]}, v4"); E(f"v_lshl_add_u32 v4, v5, {gb[1]}, v4"); E("v_lshl_add_u32 v2, v3, 4, v4")
        if tuple(wb) != (12, 13, 14) or tuple(sb) != (18, 19, 20):
            E("s_andn2_b32 s33, s33, 0x1fffff")
            for k, bit in enumerate(wb): E(f"s_bfe_u32 s30, s3, {0x10000 + k}"); E(f"s_lshl_b32 s30, s30, {bit}"); E("s_add_u32 s33, s33, s30")
            for k, bit in enumerate(sb): E(f"s_bfe_u32 s30, s5, {0x10000 + k}"); E(f"s_lshl_b32 s30, s30, {bit}"); E("s_add_u32 s33, s33, s30")
        ROT = {'j': 's5', 'jw': 's32', 'w': 's3', 'x': 's4'}
        for name, sh, plus in (('j2', 2, None), ('j2w', 2, 's3'), ('j3', 3, None), ('j3w', 3, 's3'), ('j1', 1, None), ('j1w', 1, 's3'), ('jx', 0, 's4'), ('j2x', 2, 's4'), ('j3x', 3, 's4')):
            if any(rot == name for n, _, rot in tf):
                r = SO(len(ROT) - 4); ROT[name] = f"s{r}"
                E(f"s_lshr_b32 s{r}, s5, {sh}")
                if plus: E(f"s_add_u32 s{r}, s{r}, {plus}")
        prev = {}
        def addr(i):
            const = 0; pos = 0; regs = []
            for f, (n, sh, rot) in enumerate(tf):
                c = (i >> pos) & ((1 << n) - 1); pos += n
                if rot == '0': const += c << sh
                else:
                    if prev.get(f) != c:
                        E(f"s_add_u32 s{17+f}, {ROT[rot]}, {c}"); E(f"s_and_b32 s{17+f}, s{17+f}, {(1 << n) - 1}"); E(f"s_lshl_b32 s{17+f}, s{17+f}, {sh}"); prev[f] = c
                    regs.append(f"s{17+f}")
            E(f"s_add_u32 s16, s33, {const}")
            for r in regs: E(f"s_add_u32 s16, s16, {r}")
            return "s16 offen"
    elif pat == 'B2':
        for k in (0, 4, 5): soffB(k)
    else: soff(0)
    if pat == 'A2':
        for k in range(4): E(f"s_add_u32 s30, s5, {k}"); E("s_and_b32 s30, s30, 3"); E(f"s_lshl_b32 s{17+k}, s30, 10")
    assert K0 <= 4
    E("s_mov_b32 s10, 0x4000000"); E("s_mov_b32 s11, 0x20000")
    E("s_waitcnt lgkmcnt(0)")
    E("s_mov_b32 s8, s38"); E("s_mov_b32 s9, s39")
    stamp(0)
    def kload(i): E(f"buffer_load_dwordx4 v[{SL(i)}:{SL(i)+3}], v2, s[8:11], {addr(i)} {kvf}")
    VS = lambda i: SL((i - NL) % 32)
    def vload(i):
        if i < NL: E(f"buffer_load_dwordx4 v1, s[12:15], {addr(i)} {kvf} lds")
        else: E(f"buffer_load_dwordx4 v[{VS(i)}:{VS(i)+3}], v1, s[12:15], {addr(i)} {kvf}")
        if i == 31 and GEN: E("v_lshlrev_b32 v1, 4, v0")
    E.label("L_k0")
    for i in range(K0): kload(i)
    E("s_branch L_stream")

    E.label("L_service")
    E("v_mov_b32 v1, 0")
    E("s_sub_u32 s3, s3, 8")
    if cpf >= 3:
        E("s_getpc_b64 s[12:13]"); E.label("L_pc0")
        E("s_sub_u32 s12, s12, L_pc0-L_code0"); E("s_subb_u32 s13, s13, 0"); E("s_mov_b32 s14, L_exit-L_code0"); E("s_mov_b32 s15, 0x20000")
        E("s_lshl_b32 s28, s5, 2"); E("s_add_u32 s28, s28, s3"); E("s_lshl_b32 s28, s28, 8")
    E("v_lshlrev_b32 v2, 2, v0")
    if cpf >= 3: E("buffer_load_dword v95, v2, s[12:15], s28 offen" + (" nt" if cpf == 4 else ""))
    E("s_mov_b64 exec, 0xffff"); E("ds_write_b32 v2, v1"); E("s_mov_b64 exec, -1")
    E("s_mov_b32 s18, 4")
    E("s_cmp_lg_u32 s21, 0"); E("s_cbranch_scc1 L_job")
    E("s_mov_b32 s20, 1152")
    dma_addrs()
    E("s_lshl_b32 s28, s4, 2"); E("s_add_u32 s28, s28, s3"); E(f"s_sub_u32 s30, s5, {JW2}")
    E("s_cmp_lt_u32 s5, 9")
    E("s_cselect_b32 s19, 8, 9"); E("s_cselect_b32 s30, s5, s30"); E(f"s_mov_b32 s29, {SLOT_B}"); E(f"s_cselect_b32 s29, {SLOT_A}, s29")
    E("s_mul_i32 s16, s19, 18432"); E("s_lshl_b32 s10, s16, 5"); E("s_mul_i32 s16, s16, s28"); E("s_lshl_b32 s30, s30, 7"); E("s_add_u32 s16, s16, s30")
    E("s_lshl_b32 s30, s19, 11"); E("s_mul_i32 s30, s30, s3"); E("s_add_u32 s29, s29, s30"); E("s_mov_b32 s11, 0x20000")
    E("s_waitcnt lgkmcnt(0)")
    E("s_cmp_lt_u32 s5, 9"); E("s_cselect_b32 s8, s44, s52"); E("s_cselect_b32 s9, s45, s53")
    stamp(0)
    if EB: E("s_barrier")
    if 'e' not in dbg: dma_loop("L_dma_early", DEA)
    E(f"s_load_dword s34, s[62:63], {EP_OFF}")
    srd(24, 62, WS_SIZE)
    if not EB: E("s_barrier")
    E("s_branch L_roles")
    E.label("L_job")
    E("s_cmp_eq_u32 s21, 3")
    E("s_cselect_b32 s20, 8192, 6912") if False else (E("s_mov_b32 s20, 6912"), E("s_cselect_b32 s20, 8192, s20"))
    dma_addrs()
    own_map()
    E("s_lshl_b32 s28, s4, 3"); E(f"s_sub_u32 s29, s5, {JQ0}"); E("s_add_u32 s28, s28, s29")
    E("s_cmp_eq_u32 s21, 3"); E("s_cselect_b32 s22, s28, s22")
    E("s_mul_i32 s10, s20, 576"); E("s_mov_b32 s11, 0x20000")
    E("s_mul_i32 s16, s20, 144"); E("s_mul_i32 s16, s16, s3"); E("s_lshl_b32 s28, s22, 7"); E("s_add_u32 s16, s16, s28")
    E("s_mul_i32 s29, s3, 18432"); E(f"s_add_u32 s29, s29, {SLOT_B}"); E("s_mov_b32 s19, 9")
    E("s_mov_b32 s14, 2304"); E("s_mov_b32 s15, 0x20000")
    E("s_waitcnt lgkmcnt(0)")
    if stamps:
        E("s_cmp_eq_u32 s18, 8"); E("s_cbranch_scc1 L_nost0"); stamp(0); E.label("L_nost0")
    E("s_cmp_eq_u32 s21, 3")
    E("s_cselect_b32 s8, s42, s56"); E("s_cselect_b32 s9, s43, s57"); E("s_cselect_b32 s12, s36, s54"); E("s_cselect_b32 s13, s37, s55")
    E("buffer_load_dword v16, v10, s[12:15], 0 offen"); E("buffer_load_dword v17, v10, s[12:15], 0 offen offset:128"); E("buffer_load_dword v18, v11, s[12:15], 0 offen")
    srd(24, 62, WS_SIZE)
    if xe:
        E("s_cbranch_scc0 L_nox")
        E("v_lshrrev_b32 v12, 5, v0"); E("v_mul_u32_u24 v12, 1152, v12"); E("v_and_b32 v13, 31, v0"); E("v_lshl_add_u32 v12, v13, 2, v12")
        for i in range(9): E(f"buffer_load_dword v{60+i}, v12, s[12:15], 0 offen offset:{i*128}")
        E.label("L_nox")
    E("s_cmp_eq_u32 s18, 8"); E("s_cbranch_scc1 L_dma_jq")
    E(f"s_load_dword s34, s[62:63], {EP_OFF}")
    if QB: E(f"s_cmp_eq_u32 s5, 27"); E("s_cbranch_scc1 L_jq")
    dma_loop("L_dma_job", DJ)
    E("s_barrier")
    E("s_branch L_job2")
    if QB:
        E.label("L_jq")
        E("s_barrier")
        dma_loop("L_dma_j27", QB - 1)
        E("s_branch L_job2")
    dma_loop("L_dma_jq", DJQ)
    E.label("L_job2")
    stamp(9)
    op_addrs()
    E("s_waitcnt vmcnt(18)")
    for i in range(3):
        E(f"v_and_b32 v{71+2*i}, 0xffff0000, v{16+i}"); E(f"v_lshlrev_b32 v{70+2*i}, 16, v{16+i}")
    E("s_cmp_eq_u32 s21, 3"); E("s_cbranch_scc1 L_prep_q")
    E(f"s_mov_b32 s28, {LOG2E ^ 0x80000000}"); E("s_mov_b32 s29, 0xb2a57060"); E("s_mov_b32 s30, 0x3f317218")
    for e in range(6): E(f"v_mul_f32 v{24+e}, s28, v{70+e}")
    for e in range(6): E(f"v_fma_f32 v{30+e}, v{70+e}, s28, -v{24+e}")
    for e in range(6): E(f"v_fma_f32 v{30+e}, v{70+e}, s29, v{30+e}")
    for e in range(6): E(f"v_min_f32 v{24+e}, 0x42fc0000, v{24+e}")
    for e in range(6): E(f"v_exp_f32 v{24+e}, v{24+e}")
    for e in range(6): E(f"v_mul_f32 v{30+e}, s30, v{30+e}")
    for e in range(6): E(f"v_fma_f32 v{24+e}, v{24+e}, v{30+e}, v{24+e}")
    for e in range(6): E(f"v_add_f32 v{24+e}, 1.0, v{24+e}")
    for e in range(6): E(f"v_rcp_f32 v{30+e}, v{24+e}")
    for e in range(6): E(f"v_mul_f32 v{36+e}, v{70+e}, v{30+e}")
    for e in range(6): E(f"v_fma_f32 v{70+e}, -v{24+e}, v{36+e}, v{70+e}")
    for e in range(6): E(f"v_fma_f32 v{70+e}, v{70+e}, v{30+e}, v{36+e}")
    def write_a(buf):
        for i in range(3): E(f"v_cvt_pk_bf16_f32 v{16+i}, v{70+2*i}, v{71+2*i}")
        E(f"ds_write_b32 v10, v16 offset:{buf}"); E(f"ds_write_b32 v10, v17 offset:{buf+128}"); E(f"ds_write_b32 v11, v18 offset:{buf}")
    write_a(JBUF)
    if jreh: walk("L_mst", "L_ret_m")
    E("s_waitcnt vmcnt(0)")
    soft_barrier(C_J1, 1, 16, n="s18")
    stamp(10)
    E.label("L_mst")
    stage_b(SLOT_B, 18, wait=False)
    E("s_branch L_gemv")
    E.label("L_prep_q")
    if not xe:
        E("v_lshrrev_b32 v12, 5, v0"); E("v_mul_u32_u24 v12, 1152, v12"); E("v_and_b32 v13, 31, v0"); E("v_lshl_add_u32 v12, v13, 2, v12")
        for i in range(9): E(f"buffer_load_dword v{60+i}, v12, s[12:15], 0 offen offset:{i*128}")
        E("s_waitcnt vmcnt(0)")
    for i in range(9):
        E(f"v_lshlrev_b32 v{24+2*i}, 16, v{60+i}"); E(f"v_and_b32 v{25+2*i}, 0xffff0000, v{60+i}")
    E("v_add_f32 v16, v24, v25")
    for r in range(26, 42): E(f"v_add_f32 v16, v16, v{r}")
    row_reduce("v_add_f32", 16, (1, 2, 4, 8)); swap_reduce("v_add_f32", 16, 17, 16)
    E("s_mov_b32 s28, 0x3ae38e39"); E("s_mov_b32 s29, 0x3727c5ac")
    E("v_mul_f32 v16, s28, v16")
    E("v_mov_b32 v18, 0")
    for r in range(24, 42): E(f"v_sub_f32 v17, v{r}, v16"); E("v_fmac_f32 v18, v17, v17")
    row_reduce("v_add_f32", 18, (1, 2, 4, 8)); swap_reduce("v_add_f32", 18, 17, 16)
    E("v_mul_f32 v18, s28, v18"); rnd(18, 18); E("v_add_f32 v18, s29, v18"); rnd(18, 18)
    E("v_sqrt_f32 v18, v18"); rnd(18, 18); E("v_rcp_f32 v19, v18"); rnd(16, 16)
    for r in range(70, 76):
        E(f"v_sub_f32 v{r}, v{r}, v16"); rnd(r, r)
        E(f"v_mul_f32 v17, v{r}, v19"); E(f"v_fma_f32 v{r}, -v18, v17, v{r}"); E(f"v_fma_f32 v{r}, v{r}, v19, v17"); rnd(r, r)
    E("s_waitcnt vmcnt(0)")
    soft_barrier(C_J1, 1, 16)
    stamp(10)
    stage_b(SLOT_B, 18)
    mktag()
    if jreh: walk("L_qh", "L_ret_q")
    if km:
        if kms:
            E("s_cmp_eq_u32 s5, 27"); E("s_cbranch_scc1 L_kms"); E("s_cmp_eq_u32 s2, 255"); E("s_cbranch_scc1 L_kms")
        lds_wait(C_NR, 1, 1, 16, sleep=4)
        if kms: E.label("L_kms")
    modgather(0, 576, "L_qh")
    stamp(11)
    for e in range(6):
        E(f"v_add_f32 v{30+e}, 1.0, v{30+e}"); rnd(30+e, 30+e); E(f"v_mul_f32 v{70+e}, v{70+e}, v{30+e}"); rnd(70+e, 70+e)
        E(f"v_add_f32 v{70+e}, v{70+e}, v{24+e}")
    write_a(JBUF)
    E("s_cbranch_execz L_gemv")
    soft_barrier(C_J2, 1, 16)
    E.label("L_gemv")
    gemv(3, JBUF, 18, 20)
    mktag()
    E("s_lshl_b32 s28, s22, 2"); E("s_add_u32 s28, s28, s3"); E("s_lshl_b32 s28, s28, 7")
    E(f"s_mov_b32 s29, {MOD_OFF}"); E("s_cmp_eq_u32 s21, 3"); E(f"s_cselect_b32 s29, {Q_OFF}, s29"); E("s_add_u32 s28, s28, s29")
    E("v_lshlrev_b32 v2, 3, v0")
    E("v_cvt_pk_bf16_f32 v8, v20, v21"); E("v_mov_b32 v9, s35")
    if jreh:
        E("s_cbranch_execnz L_jpub")
        E("s_cmp_eq_u32 s21, 3"); E("s_cbranch_scc1 L_ret_q"); E("s_branch L_ret_m")
        E.label("L_jpub")
    E("s_mov_b64 exec, 0xffff")
    E("buffer_store_dwordx2 v[8:9], v2, s[24:27], s28 offen sc1")
    E("s_mov_b64 exec, -1")
    lds_inc(C_GO, 1, 16)
    stamp(12)
    E("s_cmp_eq_u32 s18, 8"); E("s_cbranch_scc1 L_svc_end")
    E.label("L_roles")
    for w in '0123':
        if w in dbg: E(f"s_cmp_eq_u32 s3, {w}"); E("s_cbranch_scc1 L_svc_end")
    if 'z' in dbg: E("s_branch L_tailprep")
    E("s_cmp_eq_u32 s3, 3"); E("s_cbranch_scc1 L_s3")
    E("s_cmp_eq_u32 s3, 0"); E("s_cbranch_scc1 L_s0")
    if cpf in (1, 2):
        E("s_cmp_lg_u32 s3, 1"); E("s_cbranch_scc1 L_tailprep")
        E("s_getpc_b64 s[8:9]"); E.label("L_pc")
        E("s_sub_u32 s8, s8, L_pc-L_code0"); E("s_subb_u32 s9, s9, 0"); E("s_mov_b32 s10, L_exit-L_code0"); E("s_mov_b32 s11, 0x20000")
        E("v_lshlrev_b32 v2, 4, v0"); E("s_lshl_b32 s16, s5, 10")
        if cpf == 2: lds_wait(C_KH, 1, 1, 8, sleep=8)
        E("buffer_load_dwordx4 v[8:11], v2, s[8:11], s16 offen"); E("s_waitcnt vmcnt(0)")
    E("s_branch L_tailprep")

    E.label("L_s0")
    mktag()
    E("v_lshlrev_b32 v2, 4, v0")
    if kh:
        if gateq: E("s_cmp_eq_u32 s21, 3"); E("s_cbranch_scc1 L_qgo")
        lds_wait(C_KH, 1, 1, 8, sleep=8)
        E.label("L_qgo")
    E("s_lshl_b32 s28, s4, 12"); E("s_bfe_u32 s29, s5, 0x10003"); E("s_lshl_b32 s29, s29, 11"); E("s_add_u32 s28, s28, s29"); E(f"s_add_u32 s28, s28, {Q_OFF}")
    def qbody():
        E("buffer_load_dwordx4 v[8:11], v2, s[24:27], s28 offen sc1"); E("buffer_load_dwordx4 v[12:15], v2, s[24:27], s28 offen offset:1024 sc1")
        E("s_waitcnt vmcnt(0)")
        tagcheck(16, [9, 11, 13, 15])
    poll(qbody, sl_q)
    E("s_mov_b32 s29, 0x05040100"); E("s_cmp_ge_u32 s5, 16"); E("s_cselect_b32 s29, 0x07060302, s29")
    E("v_perm_b32 v8, v10, v8, s29"); E("v_perm_b32 v9, v14, v12, s29"); E("v_lshlrev_b32 v3, 2, v0")
    E(f"ds_write_b32 v3, v8 offset:{QBUF}"); E(f"ds_write_b32 v3, v9 offset:{QBUF+256}")
    E("s_add_u32 s7, s7, 1"); lds_set(C_Q, 1, 10, "s7")
    if stamps is True: E("s_mov_b32 s71, s7")
    stamp(3)
    lds_wait(C_BAR, 1, 1, 8, sleep=4)
    E("s_mov_b32 s6, s28")
    lds_wait(C_CNT, 8, 1, 8, sleep=4)
    E("v_and_b32 v3, 15, v0"); E("v_lshlrev_b32 v4, 3, v3"); E(f"ds_read_b64 v[8:9], v4 offset:{MLB}")
    E(f"s_mov_b32 s31, {LOG2E}")
    E("s_waitcnt lgkmcnt(0)")
    E("v_mov_b32 v10, v8"); row_reduce("v_max_f32", 10, (2, 4, 8))
    E("v_sub_f32 v12, v8, v10"); E("v_mul_f32 v12, s31, v12"); E("v_exp_f32 v12, v12"); E("v_mul_f32 v11, v12, v9")
    row_reduce("v_add_f32", 11, (2, 4, 8))
    E("v_and_b32 v5, 1, v0"); E("v_lshlrev_b32 v5, 5, v5"); E("v_lshrrev_b32 v6, 1, v3"); E("v_lshl_add_u32 v5, v6, 2, v5")
    E(f"ds_write_b32 v5, v12 offset:{FAC}")
    E("s_lshl_b32 s28, s4, 5"); E("s_add_u32 s28, s28, s5"); E("s_lshl_b32 s28, s28, 5"); E(f"s_add_u32 s28, s28, {ML_OFF}")
    E("v_mov_b32 v12, s35"); E("v_mov_b32 v13, s35"); E("v_lshlrev_b32 v4, 4, v0")
    E("v_mov_b32 v6, s6"); E(f"ds_write_b32 v1, v6 offset:{C_FAC}")
    E("s_mov_b64 exec, 3")
    intra_store(["buffer_store_dwordx4 v[10:13], v4, s[24:27], s28 offen"])
    E("s_mov_b64 exec, -1")
    E("s_waitcnt lgkmcnt(0)")
    stamp(4)
    E("s_branch L_tailprep")

    E.label("L_s3")
    E("v_lshlrev_b32 v2, 4, v0")
    for k in range(4): E(f"v_mov_b32 v{4+k}, -1")
    E("s_cmp_ge_u32 s5, 9"); E("s_cbranch_scc1 L_noclr")
    E(f"s_mul_i32 s28, s4, {ZS}"); E("s_mul_i32 s29, s5, 320"); E("s_add_u32 s28, s28, s29"); E(f"s_add_u32 s28, s28, {Z_OFF}")
    E("s_mov_b64 exec, 0xfffff"); E("buffer_store_dwordx4 v[4:7], v2, s[24:27], s28 offen sc1"); E("s_mov_b64 exec, -1")
    E.label("L_noclr")
    E("s_getreg_b32 s29, hwreg(HW_REG_XCC_ID)"); E("s_and_b32 s29, s29, 15")
    mktag()
    if fb:
        lds_wait(C_VH, 1, 1, 8, sleep=4)
        E("s_lshl_b32 s28, s28, 4"); E("s_or_b32 s29, s29, s28")
    E("v_mov_b32 v8, s29"); E("v_mov_b32 v9, s35")
    E("s_lshl_b32 s28, s4, 5"); E("s_add_u32 s28, s28, s5"); E("s_lshl_b32 s28, s28, 3"); E(f"s_add_u32 s28, s28, {FL_OFF}")
    E("s_waitcnt vmcnt(0)")
    stamp(1)
    E("s_mov_b64 exec, 1"); E("buffer_store_dwordx2 v[8:9], v1, s[24:27], s28 offen sc1"); E("s_mov_b64 exec, -1")
    if 'q' in dbg: E("s_branch L_svc_end")
    lds_wait(C_Q if NL and not fbl else C_CNT, 1 if NL and not fbl else (fbl or 8), 1, 8, sleep=8)
    E(f"s_mov_b32 s30, {FL_OFF}")
    def barbody():
        E("buffer_load_dwordx4 v[8:11], v2, s[24:27], s30 offen sc1"); E("buffer_load_dwordx4 v[12:15], v2, s[24:27], s30 offen offset:1024 sc1")
        E("s_waitcnt vmcnt(0)")
        tagcheck(16, [9, 11, 13, 15])
    poll(barbody, sl_bar)
    if fb:
        for r in (8, 10, 12, 14): E(f"v_sub_u32 v{r+1}, s29, v{r}"); E(f"v_ashrrev_i32 v{r+1}, 4, v{r+1}")
        E("v_add3_u32 v9, v9, v11, v13"); E("v_add_u32 v9, v9, v15")
        row_reduce("v_add_u32", 9, (1, 2, 4, 8)); swap_reduce("v_add_u32", 9, 11, 16); swap_reduce("v_add_u32", 9, 11, 32)
        E("v_readfirstlane_b32 s30, v9")
        E("s_ashr_i32 s30, s30, 8"); E(f"s_sub_i32 s30, s30, {fbo}"); E(f"s_mul_i32 s30, s30, {fbg}"); E("s_ashr_i32 s30, s30, 8")
        E("s_max_i32 s30, s30, 0"); E("s_min_i32 s30, s30, 8")
        if stamps is True: E("s_mov_b32 s73, s30")
        if fbm: E("s_sub_u32 s30, 8, s30")
        E("s_lshl_b32 s30, s30, 1"); E("s_or_b32 s30, s30, 1"); lds_set(C_KH, 1, 9, "s30")
    E("s_cmp_ge_u32 s4, 4"); E("s_cselect_b64 vcc, -1, 0")
    E("v_cndmask_b32 v8, v8, v12, vcc"); E("v_cndmask_b32 v10, v10, v14, vcc")
    E("v_xor_b32 v8, s29, v8"); E("v_bitop3_b32 v8, v8, v10, s29 bitop3:0xf6"); E("v_and_b32 v8, 15, v8"); E("v_cmp_ne_u32 vcc, 0, v8")
    E("s_and_b32 s30, s4, 3"); E("s_lshl_b32 s30, s30, 4"); E("s_lshr_b64 s[30:31], vcc, s30"); E("s_and_b32 s30, s30, 0xffff")
    E(f"s_cselect_b32 s6, 1, {1 if force_slow else 3}")
    E("v_mov_b32 v8, s6"); E(f"ds_write_b32 v1, v8 offset:{C_BAR}")
    stamp(2)
    E("s_branch L_tailprep")

    E.label("L_stream")
    xd = XD if any(XW) or XN else 0
    if XN:
        E(f"s_mov_b32 s23, {XN[0]}")
        E("s_bitcmp1_b32 s4, 0"); E(f"s_cselect_b32 s28, {XN[2]}, {XN[1]}"); E("s_cmp_ge_u32 s5, 9"); E("s_cselect_b32 s23, s28, s23")
        for lo, n in zip((15, 24), XN[3:5]):
            E(f"s_cmp_ge_u32 s5, {lo}"); E(f"s_cselect_b32 s23, {n}, s23")
        E("s_cmp_eq_u32 s5, 27"); E(f"s_cselect_b32 s23, {XN[5]}, s23")
        E("s_cmp_eq_u32 s2, 255"); E(f"s_cselect_b32 s23, {XN[7]}, s23")
        if XJ: E("s_sub_u32 s28, s2, 224"); E("s_cmp_lt_u32 s28, 6"); E(f"s_cselect_b32 s23, {XJ}, s23")
        E("s_cmp_ge_u32 s5, 18"); E("s_cselect_b32 s28, 18, 9"); E("s_sub_u32 s28, s5, s28"); E("s_cmp_lt_u32 s28, 9"); E("s_cselect_b32 s29, 0, 8")
        E("s_add_u32 s28, s28, s4"); E("s_and_b32 s28, s28, 7"); E("s_add_u32 s28, s28, s29")
        E("s_cmp_eq_u32 s28, 3"); E(f"s_cselect_b32 s28, {XN[6]}, 0"); E("s_add_u32 s23, s23, s28")
        if XM:
            E("s_getreg_b32 s28, hwreg(HW_REG_XCC_ID)"); E("s_and_b32 s28, s28, 15"); E(f"s_lshr_b32 s28, {XM}, s28"); E("s_and_b32 s28, s28, 1"); E(f"s_mul_i32 s28, s28, {XMN}"); E("s_add_u32 s23, s23, s28")
    elif xd:
        E(f"s_mov_b32 s23, {XW[0]}")
        for lo, n in zip((9, 15, 24), XW[1:4]):
            E(f"s_cmp_ge_u32 s5, {lo}"); E(f"s_cselect_b32 s23, {n}, s23")
        E("s_cmp_eq_u32 s5, 27"); E(f"s_cselect_b32 s23, {XW[4]}, s23")
        if len(XW) > 5:
            E("s_cmp_ge_u32 s5, 18"); E("s_cselect_b32 s28, 18, 9"); E("s_sub_u32 s28, s5, s28"); E("s_cmp_lt_u32 s28, 9"); E("s_cselect_b32 s29, 0, 8")
            E("s_add_u32 s28, s28, s4"); E("s_and_b32 s28, s28, 7"); E("s_add_u32 s28, s28, s29")
            E("s_cmp_eq_u32 s28, 3"); E(f"s_cselect_b32 s23, {XW[5]}, s23")
    def setscc(): pass
    tp = [0]; XWV = [0]
    def throttle(d):
        lean = any(lo <= tp[0] < hi and (tp[0] - lo) % st_ == 0 for lo, hi, st_ in LE)
        lo_ = d - 1 - lean; hi_ = d - 1 + xd - (lean and not LX)
        thr = tp[0]; tp[0] += 1
        if thr < max(max(XN), XJ, max(XN[1:5]) + XN[6]) + XMN:
            a = L("th"); E(f"s_cmp_gt_u32 s23, {thr}"); E(f"s_waitcnt vmcnt({hi_})"); E(f"s_cbranch_scc1 {a}"); E(f"s_waitcnt vmcnt({lo_})"); E.label(a)
        else: E(f"s_waitcnt vmcnt({lo_})")
    if GEN: pass
    elif pat == 'B2':
        for k in (1, 2, 3, 6, 7): soffB(k)
    else:
        for u in range(1, 8): soff(u)
    srd(12, 40, 0x4000000); srd(24, 62, WS_SIZE)
    E(f"s_load_dword s34, s[62:63], {EP_OFF}")
    if GEN:
        E("v_and_b32 v1, 15, v0"); E("v_lshlrev_b32 v1, 4, v1"); E("v_bfe_u32 v5, v0, 4, 1"); E(f"v_lshl_add_u32 v1, v5, {gb[0]}, v1"); E("v_lshrrev_b32 v5, 5, v0"); E(f"v_lshl_add_u32 v1, v5, {gb[1]}, v1")
    else: E("v_lshlrev_b32 v1, 4, v0")
    E("v_bfe_u32 v4, v0, 3, 1"); E("v_lshlrev_b32 v4, 8, v4"); E("v_lshl_add_u32 v36, v3, 4, v4")
    if warm:
        E("s_cmp_lg_u32 s3, 7"); E("s_cbranch_scc1 L_nowarm")
        E("s_mov_b64 exec, 1")
        if 'v' in warm: E(f"buffer_load_dword v5, v1, s[12:15], s{SO(0)} offen nt")
        if 's' in warm: E(f"s_mov_b32 s28, {EP_OFF}"); E("buffer_load_dword v5, v1, s[24:27], s28 offen nt")
        if 'w' in warm:
            E("s_cmp_ge_u32 s5, 18"); E("s_cselect_b32 s16, s50, s48"); E("s_cselect_b32 s17, s51, s49"); E(f"s_mov_b32 s18, {576*9216}"); E("s_mov_b32 s19, 0x20000")
            E("s_mov_b64 exec, 15"); E(f"v_mul_u32_u24 v6, {191*9216}, v0"); E("s_lshl_b32 s28, s2, 5")
            E("buffer_load_dword v5, v6, s[16:19], s28 offen nt")
        E("s_mov_b64 exec, -1")
        E.label("L_nowarm")
    stamp(8)
    E("s_barrier")
    stamp(9)
    for i in range(K0, D): kload(i)
    if gateq:
        E("s_cmp_lg_u32 s21, 3"); E("s_cbranch_scc1 L_kgo")
        E("v_mov_b32 v3, 0")
        lds_wait(C_GO, 4, 3, 4, sleep=4)
        E.label("L_kgo")
    setscc()
    for i in range(max(D, K0), 32):
        throttle(D); kload(i)
        if i in (4, 8): stamp(10 + (i == 8))
        if km and i == km:
            E("s_cmp_lg_u32 s21, 3"); E("s_cbranch_scc1 L_nokm"); E("v_mov_b32 v3, 0"); E("v_mov_b32 v4, 1"); E(f"ds_write_b32 v3, v4 offset:{C_NR}"); E.label("L_nokm")
        if fb and i == fb:
            E("s_cmp_lg_u32 s3, 3"); E("s_cbranch_scc1 L_nofb")
            E("s_memrealtime s[28:29]"); E("v_mov_b32 v3, 0"); E("s_waitcnt lgkmcnt(0)"); E("s_or_b32 s28, s28, 1"); E("v_mov_b32 v4, s28"); E(f"ds_write_b32 v3, v4 offset:{C_VH}")
            E.label("L_nofb")
        if kh and i == kh: E("v_mov_b32 v3, 0"); E("v_mov_b32 v4, 1"); E(f"ds_write_b32 v3, v4 offset:{C_KH}")
    stamp(1)
    if NL:
        E(f"s_mov_b32 s22, {SLOT_A}"); E("s_cmp_lt_u32 s5, 9"); E(f"s_cselect_b32 s22, {SLOT_B}, s22"); E(f"s_mul_i32 s28, s3, {NL*1024}"); E("s_add_u32 s22, s22, s28")
        for i in range(NL):
            if i % 4 == 0 or pat != 'A': E(f"s_add_u32 m0, s22, {i*1024}")
            throttle(D); vload(i)
            if kh == 32 + i: E("v_mov_b32 v3, 0"); E("v_mov_b32 v4, 1"); E(f"ds_write_b32 v3, v4 offset:{C_KH}")
    stamp(12)
    E("v_mov_b32 v2, 0")
    if 'q' not in dbg: lds_wait(C_Q, 1, 2, 3)
    if XL:
        E("s_cmp_eq_u32 s28, 1"); E(f"s_cselect_b32 s28, {XL}, 0"); E("s_add_u32 s23, s23, s28")
        XWV[0] = XL
    E(f"ds_read_b128 v[20:23], v36 offset:{QBUF}")
    E(f"s_mov_b32 s30, {SCALE}"); E(f"s_mov_b32 s31, {LOG2E}")
    E("v_mov_b32 v36, 0xff800000")
    mktag()
    stamp(2)
    setscc()
    st = dict(issued=NL)
    def qk_mfma(u):
        n = (28 - 4*u) + st['issued']
        if n < D + xd + st['issued'] and n < 63: E(f"s_waitcnt vmcnt({n})")
        for i in range(4*u, 4*u+4):
            E(f"v_mfma_f32_16x16x32_bf16 v[{SL(i)}:{SL(i)+3}], v[{SL(i)}:{SL(i)+3}], v[20:23], 0")
    def qk_post(u):
        if 'c' in dbg: return
        T = [24, 25, 26, 27]
        for k in range(4):
            for a in range(4):
                r = SL(4*u + a) + k
                if k == 0: E(f"v_mov_b32_dpp v{T[a]}, v{r} quad_perm:[0,0,0,0] row_mask:0xf bank_mask:0xf")
                else: E(f"v_add_f32_dpp v{T[a]}, v{r}, v{T[a]} quad_perm:[{k},{k},{k},{k}] row_mask:0xf bank_mask:0xf")
        E("v_cvt_pk_bf16_f32 v28, v24, v25"); E("v_cvt_pk_bf16_f32 v29, v26, v27")
        E("v_lshlrev_b32 v24, 16, v28"); E("v_and_b32 v25, 0xffff0000, v28")
        E("v_lshlrev_b32 v26, 16, v29"); E("v_and_b32 v27, 0xffff0000, v29")
        for a in range(4): E(f"v_mul_f32 v{T[a]}, s30, v{T[a]}")
        E(f"v_cvt_pk_bf16_f32 v{4+2*u}, v24, v25"); E(f"v_cvt_pk_bf16_f32 v{5+2*u}, v26, v27")
        E("v_max3_f32 v36, v24, v25, v36"); E("v_max3_f32 v36, v26, v27, v36")
    def vissue(d=None):
        i = st['issued']
        d = DV if d is None else d
        throttle(d); vload(i); st['issued'] += 1
        if i == v2: E("s_mov_b64 exec, 2"); E(f"ds_write_b32 v1, v1 offset:{C_V2-16}"); E("s_mov_b64 exec, -1")
        if fb and i == fbv:
            E(f"ds_read_b32 v2, v1 offset:{C_KH}"); E("s_waitcnt lgkmcnt(0)"); E("v_readfirstlane_b32 s28, v2"); E("s_lshr_b32 s28, s28, 1"); E("s_sub_u32 s28, 8, s28" if fbm else "s_nop 0"); E("s_add_u32 s23, s23, s28"); XWV[0] = 8
        if i == kv and not fb:
            E("s_mov_b64 exec, 2"); E(f"ds_write_b32 v1, v1 offset:{C_VH-16}"); E("s_mov_b64 exec, -1")
    def expo(k):
        if 'c' in dbg: return
        E(f"v_lshlrev_b32 v24, 16, v{4+k}"); E(f"v_and_b32 v25, 0xffff0000, v{4+k}")
        E("v_fma_f32 v24, v24, s31, -v37"); E("v_fma_f32 v25, v25, s31, -v37")
        E("v_exp_f32 v24, v24"); E("v_exp_f32 v25, v25")
        E("v_add_f32 v38, v38, v24"); E("v_add_f32 v39, v39, v25")
        E(f"v_cvt_pk_bf16_f32 v{4+k}, v24, v25")
    qk_mfma(0); qk_mfma(1); qk_post(0)
    if qs == 0:
        for _ in range(4): vissue(DQ)
        qk_mfma(2); qk_post(1)
        for _ in range(1 if DQ <= 4 else 4): vissue(DQ)
        for u in range(3, 8):
            qk_mfma(u); qk_post(u-1)
            if DQ > 4 or u % 2 == 0: vissue(DQ)
    else:
        vissue(DQ); vissue(DQ)
        for u in range(2, 8):
            qk_mfma(u); qk_post(u-1)
            if u % 2 == 1: vissue(DQ)
    qk_post(7)
    if NL:
        E(f"s_waitcnt vmcnt({st['issued'] - NL})"); E("v_lshl_add_u32 v3, v0, 4, s22")
        for i in range(NL): E(f"ds_read_b128 v[{VS(i)}:{VS(i)+3}], v3 offset:{i*1024}")
    swap_reduce("v_max_f32", 36, 24, 16); swap_reduce("v_max_f32", 36, 24, 32)
    rnd(36, 36)
    E("v_mul_f32 v37, s31, v36"); E("v_mov_b32 v38, 0"); E("v_mov_b32 v39, 0")
    for k in range(16):
        if k % (4 if qs == 0 else 6) == (0 if qs == 0 else 2): vissue(DQ)
        expo(k)
    E("v_add_f32 v37, v38, v39")
    swap_reduce("v_add_f32", 37, 24, 16); swap_reduce("v_add_f32", 37, 24, 32)
    E("s_lshl_b32 s28, s3, 4"); E("v_add_u32 v3, s28, v0"); E("v_mov_b32 v24, 1")
    E("s_mov_b64 exec, 0x101"); E(f"ds_write_b64 v3, v[36:37] offset:{MLB}")
    E("s_mov_b64 exec, 1"); E(f"ds_add_u32 v2, v24 offset:{C_CNT}")
    E("s_mov_b64 exec, -1")
    stamp(3)
    E("v_and_b32 v3, 1, v0"); E("v_cmp_eq_u32 vcc, 1, v3")
    E("v_mov_b32 v32, 0x0c0c0100"); E("v_mov_b32 v33, 0x01000c0c"); E("v_cndmask_b32 v32, v32, v33, vcc")
    E("v_mov_b32 v34, 0x0c0c0302"); E("v_mov_b32 v33, 0x03020c0c"); E("v_cndmask_b32 v33, v34, v33, vcc")
    E("v_bfe_u32 v3, v0, 1, 2"); E("v_mov_b32 v34, 0x0c0c0c0c")
    for r in range(4):
        E(f"v_cmp_eq_u32 vcc, {r}, v3"); E(f"v_cndmask_b32 v{24+r}, v34, v32, vcc"); E(f"v_cndmask_b32 v{28+r}, v34, v33, vcc")
    E("v_and_b32 v3, 15, v0"); E("v_lshlrev_b32 v3, 5, v3"); E("v_bfe_u32 v2, v0, 4, 1"); E("v_lshl_add_u32 v3, v2, 4, v3")
    E("v_lshrrev_b32 v2, 5, v0"); E("v_lshl_add_u32 v3, v2, 9, v3"); E("s_lshl_b32 s28, s3, 10"); E("v_add_u32 v3, s28, v3")
    setscc()
    if NL: E("s_waitcnt lgkmcnt(0)")
    pv = dict(done=0)
    def pv_prep(i):
        A0 = 32 + 4 * (i & 1)
        for r in range(4): E(f"v_perm_b32 v{A0+r}, v{4+i//2}, v{4+i//2}, v{24+4*(i&1)+r}")
    def pv_mfma(i):
        A0 = 32 + 4 * (i & 1)
        c = "0" if i == 0 else "v[20:23]"
        E(f"v_mfma_f32_16x16x32_bf16 v[20:23], v[{A0}:{A0+3}], v[{VS(i)}:{VS(i)+3}], {c}")
    while st['issued'] < 32:
        vissue(DV - (1 if fbm and st['issued'] > fbv else 0) + (DE if st['issued'] >= 32 - NE else 0))
        n = 0
        while pv['done'] <= st['issued'] - 1 - DV - xd - (DE if st['issued'] > 32 - NE else 0) and n < 4:
            pv_prep(pv['done']); pv_mfma(pv['done']); pv['done'] += 1; n += 1
    E("v_mov_b32 v2, 0")
    if N2: lds_inc(C_GT, 2, 4)
    lds_wait(C_FAC, 1, 2, 4, sleep=1)
    E("s_mov_b32 s6, s28"); E("s_lshl_b32 s28, s3, 2")
    E("v_and_b32 v4, 32, v0"); E("v_add_u32 v4, s28, v4"); E(f"ds_read_b32 v5, v4 offset:{FAC}")
    tagbyte(6, 0)
    E("v_mov_b32 v4, 1")
    E("s_lshl_b32 s29, s4, 5"); E("s_add_u32 s29, s29, s5"); E("s_lshl_b32 s29, s29, 10")
    assert pv['done'] >= 6
    while pv['done'] < 32:
        i = pv['done']
        pv_prep(i)
        if 31 - i < DV + xd + DE: E(f"s_waitcnt vmcnt({31-i})")
        pv_mfma(i); pv['done'] += 1
    E("s_waitcnt lgkmcnt(0)")
    for k in range(4): E(f"v_mul_f32 v{20+k}, v5, v{20+k}")
    E(f"ds_write_b128 v3, v[20:23] offset:{OBUF}")
    E("s_mov_b64 exec, 1"); E(f"ds_add_rtn_u32 v4, v2, v4 offset:{C_OC}"); E("s_mov_b64 exec, -1")
    for w in range(8): E(f"ds_read_b128 v[{40+4*w}:{43+4*w}], v1 offset:{OBUF + w*1024}")
    if stamps is True: stamp(4)
    E("s_waitcnt lgkmcnt(8)")
    E("v_readfirstlane_b32 s28, v4"); E("s_cmp_lg_u32 s28, 7"); E("s_cbranch_scc1 L_noreduce")
    E.label("L_reduce")
    PK = lambda d, x, y: (E(f"v_pk_add_f32 v[{d}:{d+1}], v[{x}:{x+1}], v[{y}:{y+1}]"), E(f"v_pk_add_f32 v[{d+2}:{d+3}], v[{x+2}:{x+3}], v[{y+2}:{y+3}]"))
    E("s_waitcnt lgkmcnt(6)"); PK(40, 40, 44)
    E("s_waitcnt lgkmcnt(4)"); PK(48, 48, 52); PK(40, 40, 48)
    E("s_waitcnt lgkmcnt(2)"); PK(56, 56, 60); PK(40, 40, 56)
    E("s_waitcnt lgkmcnt(0)"); PK(64, 64, 68); PK(40, 40, 64)
    settag(40, 6)
    intra_store(["buffer_store_dwordx4 v[40:43], v1, s[24:27], s29 offen"])
    if oack: live("s_waitcnt vmcnt(0)")
    lds_set(C_OC, 2, 4, 9)
    stamp(5)
    E.label("L_noreduce")
    if 't' in dbg: E("s_branch L_sdone")
    E(f"s_sub_u32 s28, s5, {JW2}"); E("s_cmp_ge_u32 s28, 9"); E("s_cbranch_scc1 L_sdone")
    E("s_cmp_ge_u32 s3, 5"); E("s_cbranch_scc1 L_sdone")
    E("s_lshl_b32 s28, s3, 6"); E("v_add_u32 v2, s28, v0"); E("v_min_u32 v2, 287, v2")
    tagbyte(22, 2)
    E("v_lshlrev_b32 v1, 4, v2")
    E("v_lshlrev_b32 v2, 2, v2")
    E("s_mul_i32 s18, s4, 9216"); E(f"s_add_u32 s18, s18, {G_OFF}"); E("s_add_u32 s19, s18, 4608")
    E(f"v_mov_b32 v8, {LOG2E ^ 0x80000000}"); E("v_mov_b32 v9, v8"); E("v_mov_b32 v10, 1.0"); E("v_mov_b32 v11, 1.0")
    E("v_mov_b32 v3, 0")
    Rh = lambda t: 40 + 8 * t
    def gloads(t):
        E(f"buffer_load_dwordx4 v[{Rh(t)}:{Rh(t)+3}], v1, s[24:27], s18 offen sc1"); E(f"buffer_load_dwordx4 v[{Rh(t)+4}:{Rh(t)+7}], v1, s[24:27], s19 offen sc1")
    E("s_cbranch_execz L_hgo")
    E("s_waitcnt lgkmcnt(0)")
    E("s_barrier"); E("s_barrier")
    gloads(0)
    E("s_barrier"); E("s_barrier")
    E("s_waitcnt vmcnt(0)")
    E.label("L_hgo")
    stamp(6)
    def gfin(t):
        g, u = Rh(t), Rh(t) + 4
        E(f"v_pk_mul_f32 v[4:5], v[{g}:{g+1}], v[8:9]"); E(f"v_pk_mul_f32 v[6:7], v[{g+2}:{g+3}], v[8:9]")
        E(f"v_pk_mul_f32 v[16:17], v[{u}:{u+1}], v[{g}:{g+1}]"); E(f"v_pk_mul_f32 v[18:19], v[{u+2}:{u+3}], v[{g+2}:{g+3}]")
    ppoll(PG, 2, gloads, lambda t: lowcheck(20, [Rh(t), Rh(t)+2, Rh(t)+4, Rh(t)+6], 22), gfin)
    for e in range(4): E(f"v_exp_f32 v{4+e}, v{4+e}")
    E("v_pk_add_f32 v[4:5], v[4:5], v[10:11]"); E("v_pk_add_f32 v[6:7], v[6:7], v[10:11]")
    for e in range(4): E(f"v_rcp_f32 v{4+e}, v{4+e}")
    E("v_pk_mul_f32 v[16:17], v[16:17], v[4:5]"); E("v_pk_mul_f32 v[18:19], v[18:19], v[6:7]")
    E("v_cvt_pk_bf16_f32 v12, v16, v18"); E("v_cvt_pk_bf16_f32 v13, v17, v19")
    E(f"ds_write_b32 v2, v12 offset:{ACT0}"); E(f"ds_write_b32 v2, v13 offset:{ACT1}")
    E("s_waitcnt lgkmcnt(0)")
    E("s_cbranch_execz L_ret_s")
    E("s_barrier")
    stamp(7)
    E.label("L_sdone")
    E("s_cbranch_execz L_ret_s")
    stamp_flush(); E("s_endpgm")

    E.label("L_tailprep")
    E("s_mov_b64 s[88:89], -1")
    if reh:
        E("s_cmp_lg_u32 s3, 2"); E("s_cbranch_scc1 L_tp2")
        E("s_mov_b32 s6, 3"); E("s_mov_b32 s29, 0"); E("v_mov_b32 v2, 0")
        walk("L_reduce", "L_ret_s")
        E.label("L_tp2")
    else:
        E.label("L_ret_s")
    E("s_cmp_lt_u32 s5, 27"); E("s_cbranch_scc1 L_tail1")
    E("s_sub_u32 s28, s2, 224"); E("s_cmp_ge_u32 s28, 6"); E("s_cbranch_scc1 L_svc_end")
    lds_wait(C_GO, 4, 1, 8, sleep=4)
    if lj == 0: lds_wait(C_OC, ko, 1, 8, sleep=2)
    elif lj == 1: lds_wait(C_CNT, 8, 1, 8, sleep=4)
    elif lj == 2: lds_wait(C_V2, 1, 1, 8, sleep=4)
    E("s_mov_b32 s21, 2"); E("s_add_u32 s22, s4, 48"); E("s_mov_b32 s18, 8"); E("s_branch L_job")
    E.label("L_tail1")
    E("s_cmp_lt_u32 s5, 9"); E("s_cbranch_scc1 L_owner")

    def wsetup():
        op_addrs()
        E(f"v_mov_b32 v8, {ZBUF}"); E(f"v_mov_b32 v9, {CBUF}"); E(f"v_mov_b32 v10, {SBUF}")
        E("v_cmp_eq_u32 vcc, 1, v6"); E("v_cndmask_b32 v4, v8, v9, vcc"); E("v_cmp_eq_u32 vcc, 2, v6"); E("v_cndmask_b32 v4, v4, v10, vcc")
        E("v_bfe_u32 v7, v0, 2, 1"); E("v_mul_u32_u24 v7, 1152, v7"); E("v_lshl_add_u32 v7, v5, 4, v7"); E("v_add_u32 v4, v4, v7")
        E("v_and_b32 v3, 1, v0"); E("v_xor_b32 v3, 1, v3"); E(f"v_mul_u32_u24 v3, {ACT0-ACT1}, v3"); E("v_lshl_add_u32 v3, v5, 4, v3")
        E("s_sub_u32 s30, s5, 9"); E("s_lshl_b32 s30, s30, 2"); E("s_add_u32 s30, s30, s3")
        E("s_lshl_b32 @S0@, s30, 7"); E("s_mul_i32 s29, s4, 9216"); E("s_add_u32 @S0@, @S0@, s29"); E(f"s_add_u32 @S0@, @S0@, {G_OFF}")
        E(f"s_mul_i32 @S1@, s4, {ZS}"); E(f"s_add_u32 @S1@, @S1@, {Z_OFF}")
        E(f"s_sub_u32 s30, s5, {JW2}"); E("s_lshl_b32 s30, s30, 2"); E("s_add_u32 s30, s30, s3"); E("s_lshl_b32 s30, s30, 7")
        E("s_lshl_b32 @S2@, s4, 14"); E("s_add_u32 @S2@, @S2@, s30"); E(f"s_add_u32 @S2@, @S2@, {Y_OFF}"); E("s_add_u32 @S6@, @S2@, 8192")
        E("s_mul_i32 s28, s3, 45"); E("v_min_u32 v12, 44, v0"); E("v_add_u32 v12, s28, v12"); E("v_lshlrev_b32 v12, 4, v12")
        E("v_and_b32 v8, 15, v0"); E("v_lshrrev_b32 v9, 5, v0"); E("v_lshl_add_u32 v9, v9, 4, v8"); E("v_cmp_gt_u32 vcc, 18, v9")
        E("v_bfe_u32 v10, v0, 4, 1"); E("v_mul_u32_u24 v11, 288, v10"); E("v_lshl_add_u32 v16, v9, 4, v11"); E(f"v_add_u32 v16, {ZBUF + 2304}, v16")
        E(f"v_mov_b32 v9, {ZERO}"); E("v_cndmask_b32 v16, v9, v16, vcc")
        E("v_and_b32 v8, 3, v0"); E("v_lshlrev_b32 v8, 2, v8"); E(f"ds_write_b32 v8, v1 offset:{ZERO}")
        E("v_lshlrev_b32 v7, 3, v0")
        E("s_mov_b32 @S4@, 0x3ae38e39"); E("s_mov_b32 @S5@, 0x3727c5ac")
    if reh:
        E("s_cmp_lg_u32 s3, 1"); E("s_cbranch_scc1 L_now_w")
        wsetup()
        E("s_mov_b32 s6, 3")
        walk("L_wt", "L_ret_w")
        E.label("L_now_w")
    else: E.label("L_ret_w")
    if 't' not in dbg:
        lds_wait(C_Q, 1, 1, 8, sleep=8)
        mktag()
        own_map()
        modgather(1728, 2304)
        for i in range(3):
            E(f"v_add_f32 v{30+2*i}, 1.0, v{30+2*i}"); E(f"v_add_f32 v{31+2*i}, 1.0, v{31+2*i}")
            E(f"v_cvt_pk_bf16_f32 v12, v{30+2*i}, v{31+2*i}"); E(f"v_cvt_pk_bf16_f32 v13, v{24+2*i}, v{25+2*i}")
            a_, o_ = ((10, 0), (10, 128), (11, 0))[i]
            E(f"ds_write_b32 v{a_}, v12 offset:{CBUF+o_}"); E(f"ds_write_b32 v{a_}, v13 offset:{SBUF+o_}")
    lds_wait(C_BAR, 1, 1, 8, sleep=4)
    E("s_mov_b32 s6, s28")
    wsetup()
    E("s_mov_b32 s20, 9216")
    dma_addrs(24, 25, 26)
    E("s_cmp_ge_u32 s5, 18"); E("s_cselect_b32 s8, s50, s48"); E("s_cselect_b32 s9, s51, s49"); E("s_cselect_b32 s28, 18, 9"); E("s_sub_u32 s28, s5, s28")
    E(f"s_mov_b32 s10, {576*9216}"); E("s_mov_b32 s11, 0x20000")
    E("s_mul_i32 s16, s4, 1152"); E("s_lshl_b32 s28, s28, 7"); E("s_add_u32 s16, s16, s28")
    E(f"s_mul_i32 s28, s3, {8*9216}"); E("s_add_u32 s16, s16, s28"); E(f"s_mov_b32 s17, {32*9216}")
    E("s_lshl_b32 s29, s3, 10"); E(f"s_add_u32 s29, s29, {SLOT_A}"); E("s_mov_b32 s19, 9")
    E("s_bitcmp1_b32 s3, 0"); E("s_cselect_b64 vcc, -1, 0"); E("v_cndmask_b32 v24, v24, v25, vcc")
    E("v_lshrrev_b32 v5, 1, v0"); tagbyte(5, 5)

    if tlb:
        E(f"v_mul_u32_u24 v26, {143*9216}, v0"); E("s_mov_b64 exec, 3"); E("buffer_load_dword v27, v26, s[8:11], s16 offen nt"); E("s_mov_b64 exec, -1")
    if NP or NP3:
        E("s_bfe_u32 s30, s16, 0x30007"); E("s_cmp_eq_u32 s30, 3"); E(f"s_cselect_b32 s19, {NP3}, {NP}"); E("s_sub_u32 s31, 9, s19")
        E("s_cmp_eq_u32 s19, 0"); E("s_cbranch_scc1 L_nol1")
        if NL: lds_wait(C_CNT, 8, 1, 8, sleep=4)
        else: lds_wait(C_VH, 1, 1, 8, sleep=4)
        dma_loop("L_dma_l1", DW1, 24, 24, 4096)
        E.label("L_nol1")
        E("s_mov_b32 s19, s31")
    if k1:
        lds_wait(C_OC, k1, 1, 8, sleep=1)
        E(f"s_sub_u32 s31, s19, {N1}"); E(f"s_mov_b32 s19, {N1}"); dma_loop("L_dma_l2", 0, 24, 24, 4096); E("s_mov_b32 s19, s31")
    if N2:
        assert not gate
        lds_wait(C_GT, k2, 1, 8, sleep=1)
        E(f"s_sub_u32 s31, s19, {N2}"); E(f"s_mov_b32 s19, {N2}"); dma_loop("L_dma_l3", 0, 24, 24, 4096); E("s_mov_b32 s19, s31")
    if gate:
        E("s_cmp_lg_u32 s3, 1"); E("s_cbranch_scc1 L_gt2")
        lds_wait(C_VH, 1, 1, 8, sleep=2)
        E(f"s_cmp_lg_u32 s5, {gj}"); E("s_cbranch_scc1 L_gt1")
        E("s_lshl_b32 s28, s4, 7"); E(f"s_add_u32 s28, s28, {PG_OFF}"); E("v_mov_b32 v8, s35")
        E("s_mov_b64 exec, 1"); E("buffer_store_dword v8, v1, s[24:27], s28 offen sc1"); E("s_mov_b64 exec, -1")
        E.label("L_gt1")
        lds_wait(C_OC, gk, 1, 8, sleep=1)
        E(f"s_mov_b32 s30, {PG_OFF}"); E("v_and_b32 v9, 7, v0"); E("v_lshlrev_b32 v9, 7, v9"); E("s_mov_b32 s7, 0")
        E.label("L_gtp")
        E("buffer_load_dword v8, v9, s[24:27], s30 offen sc1"); E("s_waitcnt vmcnt(0)")
        E("v_cmp_eq_u32 vcc, s35, v8"); E("s_bcnt1_i32_b64 s31, vcc")
        E(f"s_cmp_ge_u32 s31, {gate*8}"); E("s_cbranch_scc1 L_gtd")
        E(f"s_sleep {gsl}"); E("s_add_u32 s7, s7, 1"); E(f"s_cmp_lt_u32 s7, {plim}"); E("s_cbranch_scc1 L_gtp")
        E.label("L_gtd")
        lds_set(C_GT, 1, 8, 1)
        E.label("L_gt2")
        lds_wait(C_GT, 1, 1, 8, sleep=2)
    lds_wait(C_OC, ko, 1, 8, sleep=1)
    if prio: E(f"s_setprio {prio}")
    stamp(5)
    if 'w' not in dbg: dma_loop("L_dma_late", DW, 24, 24, 4096)
    if 't' in dbg:
        E("s_waitcnt vmcnt(0)"); stamp(6); E("s_branch L_svc_end")
    Rz = lambda t: 84 + 4 * t
    def zload(t): E(f"buffer_load_dwordx4 v[{Rz(t)}:{Rz(t)+3}], v12, s[24:27], @S1@ offen sc1")
    def zcheck(t):
        E(f"ds_write_b128 v12, v[{Rz(t)}:{Rz(t)+3}] offset:{ZBUF}")
        E(f"v_max3_u32 v8, v{Rz(t)}, v{Rz(t)+1}, v{Rz(t)+2}"); E(f"v_max_u32 v8, v8, v{Rz(t)+3}"); E("v_cmp_eq_u32 vcc, -1, v8")
    E(f"s_waitcnt vmcnt({18-KA})")
    E("s_barrier")
    E.label("L_wt")
    stage_b(SLOT_A, KA, wait=False, t=9)
    E(f"s_waitcnt vmcnt({ZL})")
    zload(0)
    E("s_cbranch_execz L_wt2")
    E("s_waitcnt vmcnt(1)")
    E("s_barrier")
    stamp(6)
    E.label("L_wt2")
    stage_b(SLOT_A, 18, wait=False, k0=KA, t=9)
    stamp(7)
    E("s_mov_b32 s7, 0"); E("s_branch L_zchk")
    E.label("L_zpl")
    zload(0)
    E.label("L_zchk")
    E("s_waitcnt vmcnt(0)")
    zcheck(0)
    E("s_cbranch_vccz L_zok")
    E("s_add_u32 s7, s7, 1"); E(f"s_cmp_lt_u32 s7, {plim}"); E("s_cbranch_scc1 L_zpl")
    E.label("L_zok")
    E("s_waitcnt lgkmcnt(0)")
    live("s_barrier")
    stamp(8)
    NSP = 2
    for k in range(NSP): E(f"ds_read_b128 v[{AT(k)}:{AT(k)+3}], v4 offset:{k*64}")
    E("ds_read_b128 v[20:23], v16")
    F = ["v_pk_add_f32 v[18:19], v[20:21], v[22:23]", "v_permlane32_swap_b32 v18, v19", "v_add_f32 v18, v18, v19"]
    F += [f"v_add_f32_dpp v18, v18, v18 row_ror:{k} row_mask:0xf bank_mask:0xf" for k in (1, 2, 4, 8)]
    F += ["v_mul_f32 v18, @S4@, v18", "v_mov_b32 v19, v18", "v_permlane32_swap_b32 v18, v19", "v_fma_f32 v19, -v18, v18, v19", "v_max_f32 v19, 0, v19"]
    R = lambda r: [f"v_cvt_pk_bf16_f32 v{r}, v{r}, v{r}", f"v_and_b32 v{r}, 0xffff0000, v{r}"]
    if mim: F += R(19) + ["v_add_f32 v19, @S5@, v19"] + R(19) + ["v_sqrt_f32 v19, v19"] + R(18) + R(19) + ["v_rcp_f32 v19, v19"]
    else: F += ["v_add_f32 v19, @S5@, v19", "v_rsq_f32 v19, v19"]
    gemv(4, 0, 18, 8, F, pre=NSP, extra=1)
    E("v_fma_f32 v8, -v18, v9, v8"); E("v_fma_f32 v8, v8, v19, v10")
    E("v_mov_b32 v9, v8"); E("v_permlane16_swap_b32 v8, v9")
    settag(8, 5)
    E(X(0xffff))
    intra_store(["buffer_store_dwordx2 v[8:9], v7, s[24:27], @S0@ offen"])
    E(X(-1))
    stamp(13)
    E(f"s_sub_u32 s28, s5, {JW2}"); E("s_cmp_ge_u32 s28, 9"); E("s_cbranch_scc1 L_wend")
    live("s_barrier")
    stage_b(SLOT_B, 18)
    tagbyte(5, 0)
    live("s_barrier")
    stamp(14)
    gemv(3, ACT1, 18, 8)
    settag(8, 5)
    E(X(0xffff))
    E("buffer_store_dwordx2 v[8:9], v7, s[24:27], @S2@ offen sc1")
    if numa: E("buffer_store_dwordx2 v[8:9], v7, s[24:27], @S6@ offen sc1")
    stamp(15)
    E.label("L_wend")
    E("s_cbranch_execz L_ret_w")
    E("s_branch L_svc_end")

    E.label("L_owner")
    if 't' in dbg: E("s_waitcnt vmcnt(0)"); E("s_branch L_svc_end")
    E("s_waitcnt vmcnt(0)")
    lds_inc(C_D1, 1, 8)
    mktag()
    op_addrs()
    E("s_lshl_b32 s22, s5, 2"); E("s_add_u32 s22, s22, s3")
    E("v_and_b32 v6, 15, v0"); E("v_bfe_u32 v7, v0, 4, 1"); E("v_lshrrev_b32 v20, 4, v0"); E("v_lshlrev_b32 v20, 14, v20"); E("v_lshl_add_u32 v20, v6, 3, v20")
    E("v_mul_u32_u24 v21, 1152, v7"); E("v_lshl_add_u32 v21, v6, 1, v21")
    E("v_mul_u32_u24 v22, 288, v7")
    E("v_lshlrev_b32 v23, 3, v6")
    E("v_cmp_eq_u32 vcc, 0, v7"); E("v_mov_b32 v19, 0x03020c0c"); E("v_mov_b32 v6, 0x01000c0c"); E("v_cndmask_b32 v19, v19, v6, vcc")
    E("s_lshl_b32 s23, s22, 5")
    srd(8, 36, 2304); srd(12, 58, 2304)
    E("s_lshl_b32 s28, s22, 7"); E(f"s_add_u32 s32, s28, {MOD_OFF + 1152*8}"); E(f"s_add_u32 s33, s32, {1152*8}"); E(f"s_add_u32 s19, s33, {576*8}")
    E("s_lshl_b32 s29, s4, 14"); E("s_add_u32 s29, s29, s28")
    E(f"s_add_u32 s18, s29, {X_OFF}"); E(f"s_add_u32 s{SO(4)}, s18, 8192")
    XS = SO
    for k in range(4): E(f"s_add_u32 s{XS(k)}, s28, {(X_OFF, X_OFF + 4*16384, Y_OFF, Y_OFF + 4*16384)[k]}")
    E(f"s_mul_i32 s20, s4, {ZS}"); E("s_add_u32 s20, s20, s23"); E(f"s_add_u32 s20, s20, {Z_OFF}")
    E(f"s_mul_i32 s21, s4, {ZS}"); E("s_lshl_b32 s28, s22, 3"); E("s_add_u32 s21, s21, s28"); E(f"s_add_u32 s21, s21, {ST_OFF}")
    E("s_lshl_b32 s28, s4, 5"); E("s_lshl_b32 s29, s3, 3"); E("s_add_u32 s28, s28, s29")
    E("s_lshl_b32 s16, s28, 10"); E("s_add_u32 s17, s16, 4096")
    E("v_lshlrev_b32 v7, 3, v0"); E("v_mov_b32 v6, 0")
    if reh:
        E("s_cmp_lg_u32 s3, 1"); E("s_cbranch_scc1 L_now_o")
        E("s_mov_b32 s6, 3")
        walk("L_ot", "L_ret_o")
        E.label("L_now_o")
    else: E.label("L_ret_o")
    if numa:
        E("s_cmp_lg_u32 s3, 2"); E("s_cbranch_scc1 L_nonuma")
        E("s_lshl_b32 s28, s4, 14"); E("s_lshl_b32 s29, s5, 8"); E("s_add_u32 s28, s28, s29"); E(f"s_add_u32 s28, s28, {X_OFF + 4608}")
        NPR = 4
        for k in range(NPR):
            E(f"s_add_u32 s{36+2*k}, s28, {(k & 1) * 0x20000 + (k >> 1) * 1152}"); E(f"s_add_u32 s{37+2*k}, s{36+2*k}, 8192")
        for k in range(2 * NPR): E(f"s_buffer_load_dword s{44+k}, s[24:27], s{36+k} glc")
        E("s_mov_b32 s30, 0"); E("s_mov_b32 s31, 0")
        E("s_waitcnt lgkmcnt(0)")
        E.label("L_numa")
        for k in range(NPR):
            order = (0, 1) if k & 1 else (1, 0)
            sec = order[1]
            E(f"s_not_b32 s{52+sec}, s{44+2*k+sec}")
            for c in order: E(f"s_buffer_load_dword s{52+c}, s[24:27], s{36+2*k+c} glc")
            E("s_waitcnt lgkmcnt(1)"); E("s_nop 7")
            E(f"s_cmp_{'eq' if sec else 'lg'}_u32 s{52+sec}, s{44+2*k+sec}"); E("s_addc_u32 s30, s30, 0")
            E("s_waitcnt lgkmcnt(0)")
        E("s_add_u32 s31, s31, 1"); E(f"s_cmp_lt_u32 s31, {NRR}"); E("s_cbranch_scc1 L_numa")
        if pool:
            E("s_lshl_b32 s31, s4, 7"); E(f"s_add_u32 s31, s31, {VT_OFF}"); E("s_lshl_b32 s29, s5, 3"); E("s_add_u32 s29, s29, s31")
            E("v_mov_b32 v24, s30"); E("v_mov_b32 v25, s35")
            E("s_mov_b64 exec, 1"); E("buffer_store_dwordx2 v[24:25], v1, s[24:27], s29 offen sc1"); E("s_mov_b64 exec, -1")
            lds_wait(C_CNT, 8, 1, 8, sleep=8)
            E("v_min_u32 v26, 64, v23")
            def vtbody():
                E("buffer_load_dwordx2 v[24:25], v26, s[24:27], s31 offen sc1"); E("s_waitcnt vmcnt(0)"); tagcheck(27, [25])
            poll(vtbody, 16)
            E("v_cmp_gt_u32 vcc, 72, v23"); E("v_cndmask_b32 v24, 0, v24, vcc")
            row_reduce("v_add_u32", 24, (1, 2, 4, 8))
            E("v_readfirstlane_b32 s30, v24")
        if stamps is True: E("s_mov_b32 s71, s30"); stamp(2)
        E(f"s_cmp_gt_u32 s30, {(9 if pool else 1)*NPR*NRR//2}"); E(f"s_cselect_b32 s30, {8193 if numa == 1 else 1}, {1 if numa == 1 else 8193}")
        lds_set(C_NR, 1, 8, "s30")
        E.label("L_nonuma")
    lds_wait(C_BAR, 1, 1, 8, sleep=8)
    E("s_mov_b32 s6, s28")
    lds_wait(C_D1, 4, 1, 8, sleep=4)
    stage_b(SLOT_A, 16)
    E("buffer_load_ushort v16, v21, s[8:11], s23 offen")
    E("v_lshrrev_b32 v28, 5, v0"); E("v_lshlrev_b32 v28, 6, v28"); E("v_and_b32 v29, 15, v0"); E("v_lshl_add_u32 v28, v29, 1, v28"); E("v_add_u32 v28, v28, v21")
    E("buffer_load_dword v2, v28, s[8:11], 0 offen")
    def gabody():
        for k in range(2): E(f"buffer_load_dwordx2 v[{24+2*k}:{25+2*k}], v23, s[24:27], s{32+k} offen sc1")
        E("s_waitcnt vmcnt(0)")
        tagcheck(6, [25, 27])
    poll(gabody, 8)
    for k in range(2): E(f"v_perm_b32 v{17+k}, v{24+2*k}, v{24+2*k}, v19")
    E("v_lshlrev_b32 v16, 16, v16"); E("v_add_f32 v18, 1.0, v18"); rnd(18, 18)
    E("v_lshlrev_b32 v28, 16, v2"); E("v_and_b32 v2, 0xffff0000, v2"); E("v_add_f32 v2, v2, v28")
    row_reduce("v_add_f32", 2, (1, 2, 4, 8)); swap_reduce("v_add_f32", 2, 28, 32); E("v_mul_f32 v2, 0x3c800000, v2")
    E("v_lshlrev_b32 v5, 4, v0")
    E("s_lshr_b32 s28, s3, 1"); E("s_mul_i32 s28, s28, 1152"); E("s_and_b32 s29, s3, 1"); E("s_lshl_b32 s29, s29, 9"); E("s_add_u32 s28, s28, s29")
    E("v_add_u32 v6, s28, v7")
    lds_wait(C_V2, 1, 1, 8, sleep=8)
    E("s_lshl_b32 s28, s4, 5"); E("s_lshl_b32 s29, s3, 3"); E("s_add_u32 s28, s28, s29")
    E("s_lshl_b32 s28, s28, 5"); E(f"s_add_u32 s28, s28, {ML_OFF}")
    E("v_and_b32 v28, 15, v0"); E("v_lshlrev_b32 v28, 4, v28")
    def mlbody():
        E("buffer_load_dwordx4 v[24:27], v28, s[24:27], s28 offen sc1"); E("s_waitcnt vmcnt(0)"); tagcheck(29, [26])
    tagbyte(4, 0)
    poll(mlbody, sl_ml)
    E(f"s_mov_b32 s31, {LOG2E}")
    E("v_mov_b32 v27, v24"); row_reduce("v_max_f32", 27, (2, 4, 8))
    E("v_sub_f32 v27, v24, v27"); E("v_mul_f32 v27, s31, v27"); E("v_exp_f32 v27, v27"); E("v_mul_f32 v28, v27, v25")
    row_reduce("v_add_f32", 28, (2, 4, 8))
    E("v_rcp_f32 v28, v28"); E("v_lshrrev_b32 v26, 5, v0"); E("v_lshlrev_b32 v26, 2, v26"); E("v_mul_f32 v27, v27, v28")
    for s_ in range(8): E(f"ds_bpermute_b32 v{8+s_}, v26, v27 offset:{8*s_}")
    E("s_waitcnt lgkmcnt(0)")
    if numa:
        lds_wait(C_NR, 1, 1, 24, sleep=4)
        E("s_sub_u32 s28, s28, 1"); E("v_add_u32 v20, s28, v20")
    stamp(6)
    lds_wait(C_OC, 8, 1, 24, sleep=1)
    stamp(7)
    E.label("L_ot")
    def obody():
        for s in range(8): E(f"buffer_load_dwordx4 v[{24+4*s}:{27+4*s}], v5, s[24:27], s{16 + s//4} offen offset:{(s%4)*1024} sc1")
        for s in range(8):
            E(f"s_waitcnt vmcnt({7-s})")
            E(f"v_xor_b32 v{24+4*s}, v4, v{24+4*s}")
            for k in (1, 2, 3, 0):
                if s == 0: E(f"v_mul_f32 v{56+k}, v8, v{24+k}")
                else: E(f"v_fmac_f32 v{56+k}, v{8+s}, v{24+4*s+k}")
            if s == 2: E("v_or3_b32 v60, v24, v28, v32")
            if s in (4, 6): E(f"v_or3_b32 v60, v60, v{20+4*s}, v{24+4*s}")
        E("v_cvt_pk_bf16_f32 v56, v56, v57"); E("v_cvt_pk_bf16_f32 v57, v58, v59")
        E(f"ds_write_b64 v6, v[56:57] offset:{ABUF}")
        E("v_or_b32 v60, v60, v52"); E("v_and_b32 v60, 0xfff, v60"); E("v_cmp_ne_u32 vcc, 0, v60")
    poll(obody, sl_o)
    stamp(8)
    E("s_waitcnt lgkmcnt(0)")
    live("s_barrier")
    gemv(3, ABUF, 16, 8)
    settag(8, 4)
    E(X(0xffff))
    E("buffer_store_dwordx2 v[8:9], v7, s[24:27], s18 offen sc1")
    if numa: E(f"buffer_store_dwordx2 v[8:9], v7, s[24:27], s{SO(4)} offen sc1")
    E(X(-1))
    stamp(9)
    def gather8(base):
        Rg = lambda t: 32 + 4 * t
        def loads(t):
            E(f"buffer_load_dwordx2 v[{Rg(t)}:{Rg(t)+1}], v20, s[24:27], s{XS(base)} offen sc1")
            E(f"buffer_load_dwordx2 v[{Rg(t)+2}:{Rg(t)+3}], v20, s[24:27], s{XS(base+1)} offen sc1")
        ppoll(PX, 2, loads, lambda t: lowcheck(28, [Rg(t), Rg(t)+2], 4),
              lambda t: E(f"v_pk_add_f32 v[24:25], v[{Rg(t)}:{Rg(t)+1}], v[{Rg(t)+2}:{Rg(t)+3}]"))
    def fold8():
        E("v_permlane16_swap_b32 v24, v25"); E("v_add_f32 v24, v24, v25"); swap_reduce("v_add_f32", 24, 25, 32)
    if xwait: E("s_waitcnt vmcnt(0)")
    gather8(0)
    stamp(10)
    fold8()
    rnd(24, 24); E("v_mul_f32 v24, v17, v24"); rnd(24, 24); E("v_add_f32 v16, v16, v24"); rnd(16, 16)
    E("v_sub_f32 v26, v16, v2")
    E("v_mul_f32 v24, v26, v18"); E("v_mul_f32 v27, v26, v26")
    E("v_add_f32_dpp v26, v26, v26 row_ror:1 row_mask:0xf bank_mask:0xf")
    E("v_mov_b32_dpp v25, v24 quad_perm:[1,1,3,3] row_mask:0xf bank_mask:0xf")
    E("v_add_f32_dpp v27, v27, v27 row_ror:1 row_mask:0xf bank_mask:0xf")
    E("v_cvt_pk_bf16_f32 v24, v24, v25")
    rest = []
    for k in (2, 4, 8):
        rest += [f"v_add_f32_dpp v{r}, v{r}, v{r} row_ror:{k} row_mask:0xf bank_mask:0xf" for r in (26, 27)]
    intra_store([X(0x55555555), "buffer_store_dword v24, v21, s[24:27], s20 offen", X(-1)] + rest +
                [X(0x10001), "buffer_store_dwordx2 v[26:27], v22, s[24:27], s21 offen"])
    E(X(-1))
    stamp(11)
    E("s_and_b32 s28, s5, 7"); E("s_cmp_lg_u32 s28, s4"); E("s_cbranch_scc1 L_oend")
    E("v_and_b32 v5, 15, v0"); E("v_lshlrev_b32 v5, 3, v5")
    def gbbody():
        E("buffer_load_dwordx2 v[24:25], v5, s[24:27], s19 offen sc1"); E("s_waitcnt vmcnt(0)"); tagcheck(6, [25])
    poll(gbbody, 1)
    E("v_perm_b32 v19, v24, v24, v19")
    gather8(2)
    stamp(14)
    fold8()
    rnd(24, 24); E("v_mul_f32 v24, v19, v24"); rnd(24, 24); E("v_add_f32 v24, v16, v24")
    E("v_mov_b32_dpp v25, v24 quad_perm:[1,1,3,3] row_mask:0xf bank_mask:0xf")
    E("v_cvt_pk_bf16_f32 v24, v24, v25")
    E(X(0x55555555))
    E("buffer_store_dword v24, v21, s[12:15], s23 offen")
    stamp(15)
    E.label("L_oend")
    E("s_cbranch_execz L_ret_o")
    E("s_or_b32 s28, s22, s4"); E("s_cbranch_scc1 L_svc_end")
    E(X(1)); E("v_mov_b32 v24, s35"); E(f"s_mov_b32 s28, {EP_OFF}")
    E("buffer_store_dword v24, v1, s[24:27], s28 offen")
    if probe is not None:
        if probe == 'amp':
            E("s_memrealtime s[92:93]"); E("s_waitcnt lgkmcnt(0)"); E("s_sub_u32 s29, s92, s86"); E("s_mul_i32 s29, s29, 10"); E("s_add_u32 s29, s29, s86")
        else: E(f"s_add_u32 s29, s{70+probe}, 6000")
        E.label("L_probe")
        E("s_sleep 1"); E("s_memrealtime s[92:93]"); E("s_waitcnt lgkmcnt(0)"); E("s_sub_u32 s28, s29, s92"); E("s_cmp_gt_i32 s28, 0"); E("s_cbranch_scc1 L_probe")
    E.label("L_svc_end")
    E("s_waitcnt lgkmcnt(0)")
    if stamps: E("s_add_u32 s3, s3, 8")
    stamp_flush()
    E("s_endpgm")
    for a_, b_, ins in cold:
        E.label(a_)
        for i in ins: E(i + (" sc1" if i.startswith("buffer_") else ""))
        E(f"s_branch {b_}")
    E.label("L_exit")
    E.lines = [re.sub(r'@S(\d)@', lambda m: 's%d' % SO(int(m.group(1))), l) for l in E.lines]
    body = E.finish()
    verify_stream(body)
    return HDR + f"""; @launch grid=(256,1,1) block=(768,1,1) lds=163840
.amdgcn_target "amdgcn-amd-amdhsa--gfx950"
.text
.globl {NAME}_kernel
.p2align 8
.type {NAME}_kernel,@function
{NAME}_kernel:
{body}
    s_endpgm
.section .rodata,"a"
.p2align 6
.amdhsa_kernel {NAME}_kernel
  .amdhsa_next_free_vgpr 168
  .amdhsa_next_free_sgpr 102
  .amdhsa_accum_offset 168
  .amdhsa_group_segment_fixed_size 0
  .amdhsa_kernarg_size 112
  .amdhsa_float_denorm_mode_32 3
  .amdhsa_user_sgpr_count 2
  .amdhsa_user_sgpr_kernarg_segment_ptr 1
  .amdhsa_system_sgpr_workgroup_id_x 1
.end_amdhsa_kernel
"""

def verify_stream(body):
    import re
    lines = [l.strip() for l in body.split('\n')]
    a = lines.index('L_k0:'); b = lines.index('L_service:'); c = lines.index('L_stream:'); d = lines.index('L_noreduce:')
    path = lines[a:b] + lines[c:d]
    issued = []; landed = 0; skip = None; last = {}
    for l in path:
        if skip:
            if l == skip + ':': skip = None
            continue
        m = re.match(r's_cbranch_scc1 (L_th_\d+)', l)
        if m: skip = m.group(1); continue
        m = re.match(r'buffer_load_dwordx4 v\[(\d+):', l)
        if m: issued.append(int(m.group(1))); last[int(m.group(1))] = len(issued); continue
        if re.match(r'buffer_load_dwordx4 v1, .* lds', l): issued.append(-1); nlds = len(issued); continue
        m = re.match(r'ds_read_b128 v\[(\d+):\d+\], v3 ', l)
        if m: assert landed >= nlds; last.pop(int(m.group(1)), None); continue
        m = re.search(r'vmcnt\((\d+)\)', l)
        if m: landed = max(landed, len(issued) - int(m.group(1))); continue
        m = re.match(r'v_mfma\S+ v\[(\d+):\d+\], v\[(\d+):\d+\], v\[(\d+):', l)
        if m:
            for r in (int(m.group(2)), int(m.group(3))):
                if r in last: assert last[r] <= landed, f"unwaited operand: {l}"
    assert len(issued) == 64 and landed == 64

HDR = """; adaLN-conditioned GQA decode attention + SwiGLU block, one persistent launch (generated by gen/gen10.py)
"""
if __name__ == '__main__':
    kw = eval('dict(' + (sys.argv[2] if len(sys.argv) > 2 else '') + ')')
    open(sys.argv[1], 'w').write(gen(**kw))
```

```python
import sys, re
from emit import Emit
NAME = 'adaLN_cond__gqa_block_cached__glu_gated_swiglu__decode'

O_OFF, G_OFF = 0x0, 0x40000
X_OFF, Y_OFF = 0x80000, 0xA0000
Z_OFF, ML_OFF = 0x64000, 0x6C000; ZS = 3072; ST_OFF = Z_OFF + 2304
EP_OFF = 0xC0000
FL_OFF = 0xC1000
PG_OFF = 0xC3000
VT_OFF = 0xC2000
Q_OFF, MOD_OFF = 0xC8000, 0xD0000
STAMP_OFF = 0x100000
WS_SIZE = 0x200000
C_BAR, C_Q, C_CNT, C_D1, C_D2, C_GT, C_GO, C_J1, C_J2, C_KH, C_VH, C_OC, C_FAC, C_V2, C_G, C_NR = range(0, 64, 4)
FAC, MLB, QBUF = 64, 128, 256
CBUF, SBUF = 1216, 3552
ABUF = 1216
ACT0, ACT1 = 15104, 64
ZERO = 5856
JBUF, ZBUF, OBUF = 5888, 5888, 8192
SLOT_A, SLOT_B = 16384, 90112
LOG2E = 0x3fb8aa3b
SCALE = 0x3db504f3
JW2, JQ0 = 15, 24

def gen(D=3, DV=3, DQ=3, stamps=False, force_slow=False, sl_long=2, sl_bar=16, gateq=0, kvf='nt', wf='nt',
        plim=0x20000, probe=None, cpf=0, sl_o=0, sl_z=0, dbg='', XW=(0,0,0,0,3,4), XD=1, sl_ml=32, kh=29, sl_q=4,
        XG=1, DE=5, NE=10, kv=12, DW=0, DEA=0, DJ=0, K0=3, DJQ=0, EB=0, QB=0, ko=9, omask=0, xwait=0, NP=0, DW1=2, NP3=4, XL=0, k1=0, N1=2, PX=1, PG=1, hg=1, reh=1, oack=0, tlb=0, warm='', NL=4, v2=20, qs=1, numa=1, NRR=2, pool=1, KA=14, ZL=1, gate=0, gj=20, gsl=2, gk=6, N2=2, k2=8, jreh=1, xe=1, fb=0, fbg=20, fbo=0, fbv=12, fbl=0, fbm=0, XN=(0,10,22,10,20,52,36,40), km=12, LE=(), prio=3, kms=1, of='', sf='', pf='', LX=1, pat=dict(G=[8,9],W=[12,13,14],T=[(10,15),11,15,16,17],J=[(),10,15,16,(10,17)],X=[15,16,(10,17)]), XM=0, XMN=0, AD=6, mim=0, lj=0, XJ=40):
    assert ko == 9
    E = Emit()
    uid = [0]
    def L(p):
        uid[0] += 1
        return f"L_{p}_{uid[0]}"
    def stamp(k):
        if stamps and (stamps not in ('lite', 'entry') or k in (0, 15)):
            E("s_memrealtime s[92:93]"); E("s_waitcnt lgkmcnt(0)"); E(f"s_mov_b32 s{70+k}, s92")
    def stamp_flush():
        if stamps:
            E("s_mov_b64 exec, -1")
            if stamps == 'entry': E("s_mov_b32 s71, s86")
            E("v_mov_b32 v4, 0")
            for k in range(16): E(f"v_writelane_b32 v4, s{70+k}, {k}")
            E("s_lshl_b32 s28, s4, 5"); E("s_add_u32 s28, s28, s5"); E("s_mul_i32 s28, s28, 12"); E("s_add_u32 s28, s28, s3")
            E("s_lshl_b32 s28, s28, 6"); E(f"s_add_u32 s28, s28, {STAMP_OFF}")
            E("v_mbcnt_lo_u32_b32 v5, -1, 0"); E("v_mbcnt_hi_u32_b32 v5, -1, v5"); E("v_lshlrev_b32 v5, 2, v5")
            E("s_mov_b64 exec, 0xffff")
            E(f"buffer_store_dword v4, v5, s[24:27], s28 offen {sf}")
    def srd(r, p, size):
        E(f"s_mov_b32 s{r}, s{p}"); E(f"s_mov_b32 s{r+1}, s{p+1}"); E(f"s_mov_b32 s{r+2}, {size}"); E(f"s_mov_b32 s{r+3}, 0x20000")
    def lds_wait(off, val, vz, vt, sleep=2):
        a, b = L("lw"), L("lwd")
        E("s_mov_b32 s7, 0"); E.label(a)
        E(f"ds_read_b32 v{vt}, v{vz} offset:{off}"); E("s_waitcnt lgkmcnt(0)")
        E(f"v_readfirstlane_b32 s28, v{vt}"); E(f"s_cmp_ge_u32 s28, {val}"); E(f"s_cbranch_scc1 {b}")
        if sleep: E(f"s_sleep {sleep}")
        E("s_add_u32 s7, s7, 1"); E(f"s_cmp_lt_u32 s7, {plim*8}"); E(f"s_cbranch_scc1 {a}")
        E.label(b)
    def lds_set(off, vz, vt, val):
        E(f"v_mov_b32 v{vt}, {val}"); E(f"ds_write_b32 v{vz}, v{vt} offset:{off}")
    def lds_inc(off, vz, vt):
        E(f"v_mov_b32 v{vt}, 1"); E("s_mov_b64 exec, 1"); E(f"ds_add_u32 v{vz}, v{vt} offset:{off}"); E("s_mov_b64 exec, -1")
    def soft_barrier(off, vz, vt, sleep=0, n=4):
        lds_inc(off, vz, vt); lds_wait(off, n, vz, vt, sleep)
    def poll(body, sleep=0):
        a, b = L("pl"), L("pld")
        E("s_mov_b32 s7, 0"); E.label(a)
        body()
        E(f"s_cbranch_vccz {b}")
        if sleep: E(f"s_sleep {sleep}")
        E("s_add_u32 s7, s7, 1"); E(f"s_cmp_lt_u32 s7, {plim}"); E(f"s_cbranch_scc1 {a}")
        E.label(b)
    def ppoll(nsets, nload, loads, check, finish):
        a, d = L("pp"), L("ppd"); ok = [L("ppk") for _ in range(nsets)]
        E("s_mov_b32 s7, 0")
        for t in range(nsets): loads(t)
        E.label(a)
        for t in range(nsets):
            E(f"s_waitcnt vmcnt({(nsets-1)*nload})"); check(t); E(f"s_cbranch_vccz {ok[t]}"); loads(t)
        E("s_add_u32 s7, s7, 1"); E(f"s_cmp_lt_u32 s7, {plim}"); E(f"s_cbranch_scc1 {a}")
        E("s_waitcnt vmcnt(0)")
        for t in range(nsets):
            E.label(ok[t]); finish(t)
            if t + 1 < nsets: E(f"s_branch {d}")
        E.label(d)
    cold = []
    def intra_store(ins):
        a, b = L("is"), L("isd")
        E("s_cmp_eq_u32 s6, 3"); E(f"s_cbranch_scc0 {a}")
        for i in ins: E(i + (" " + pf if i.startswith("buffer_") else ""))
        E.label(b)
        cold.append((a, b, ins))
    def X(m):
        return "s_mov_b64 exec, s[88:89]" if m == -1 else f"s_and_b64 exec, s[88:89], {m:#x}"
    def walk(target, ret):
        E("s_mov_b64 s[88:89], 0"); E("s_mov_b64 exec, 0"); E(f"s_branch {target}")
        E.label(ret)
        E("s_mov_b64 s[88:89], -1"); E("s_mov_b64 exec, -1")
    def live(ins):
        a = L("lv"); E(f"s_cbranch_execz {a}"); E(ins); E.label(a)
    def rnd(dst, src):
        E(f"v_cvt_pk_bf16_f32 v{dst}, v{src}, v{src}"); E(f"v_and_b32 v{dst}, 0xffff0000, v{dst}")
    def row_reduce(op, r, rors):
        for k in rors: E(f"{op}_dpp v{r}, v{r}, v{r} row_ror:{k} row_mask:0xf bank_mask:0xf")
    def swap_reduce(op, r, t, which):
        E(f"v_mov_b32 v{t}, v{r}"); E(f"v_permlane{which}_swap_b32 v{r}, v{t}"); E(f"{op} v{r}, v{r}, v{t}")
    def mktag():
        E("s_waitcnt lgkmcnt(0)")
        E("s_mul_i32 s35, s34, 0x9E3779B1"); E("s_add_u32 s35, s35, 0x7F4A7C15"); E("s_mov_b32 s90, 0xfffff000")
    def tagcheck(acc, regs):
        E(f"v_xor_b32 v{acc}, s35, v{regs[0]}")
        for r in regs[1:]: E(f"v_bitop3_b32 v{acc}, v{acc}, v{r}, s35 bitop3:0xf6")
        E(f"v_cmp_ne_u32 vcc, 0, v{acc}")
    def tagbyte(dst, idx):
        E(f"v_and_b32 v{dst}, 3, v{idx}"); E(f"v_mul_u32_u24 v{dst}, 7, v{dst}"); E(f"v_bfe_u32 v{dst}, s35, v{dst}, 12")
    def settag(r, tg): E(f"v_and_or_b32 v{r}, v{r}, s{SM}, v{tg}")
    def lowcheck(acc, regs, tg):
        for r in regs: E(f"v_xor_b32 v{r}, v{tg}, v{r}")
        ortree(acc, regs)
    def ortree(acc, regs):
        regs = list(regs)
        if len(regs) == 1: E(f"v_and_b32 v{acc}, 0xfff, v{regs[0]}")
        else:
            first = True
            while regs:
                if first:
                    t = regs[:3]; regs = regs[3:]; first = False
                    E(f"v_or3_b32 v{acc}, v{t[0]}, v{t[1]}, v{t[2]}") if len(t) == 3 else E(f"v_or_b32 v{acc}, v{t[0]}, v{t[1]}")
                else:
                    t = regs[:2]; regs = regs[2:]
                    E(f"v_or3_b32 v{acc}, v{acc}, v{t[0]}, v{t[1]}") if len(t) == 2 else E(f"v_or_b32 v{acc}, v{acc}, v{t[0]}")
            E(f"v_and_b32 v{acc}, 0xfff, v{acc}")
        E(f"v_cmp_ne_u32 vcc, 0, v{acc}")
    SM = 90
    BR = lambda k: 96 + 4 * k
    AT = lambda k: 24 + 4 * k
    def op_addrs():
        E("v_bfe_u32 v4, v0, 2, 2"); E("v_lshrrev_b32 v5, 4, v0"); E("v_lshl_add_u32 v4, v5, 3, v4"); E("v_lshlrev_b32 v4, 7, v4")
        E("v_and_b32 v6, 3, v0"); E("v_lshl_add_u32 v4, v6, 3, v4")
        E("v_bfe_u32 v7, v0, 3, 2"); E("v_xor_b32 v7, s3, v7"); E("v_lshl_add_u32 v2, v7, 5, v4")
        E("v_and_b32 v3, 1, v0"); E("v_mul_u32_u24 v3, 1152, v3"); E("v_lshl_add_u32 v3, v5, 4, v3")
    def stage_b(slot, nk, wait=True, k0=0, t=5):
        E(f"v_add_u32 v{t}, {slot}, v2"); E(f"v_add_u32 v{t+1}, {slot + 36864}, v2")
        for k in range(k0, nk):
            a = t if k < 9 else t + 1; o = (k % 9) * 4096
            E(f"ds_read_b64_tr_b16 v[{BR(k)}:{BR(k)+1}], v{a} offset:{o}"); E(f"ds_read_b64_tr_b16 v[{BR(k)+2}:{BR(k)+3}], v{a} offset:{o+512}")
        if wait: E("s_waitcnt lgkmcnt(0)")
    def gemv(areg, aoff, nk, d, fill=None, pre=0, extra=0):
        fill = list(fill or [])
        first = pre if extra else 0
        per = -(-len(fill) // (nk - first))
        depth = min(AD, 15 - extra)
        for k in range(pre, min(nk, depth)): E(f"ds_read_b128 v[{AT(k)}:{AT(k)+3}], v{areg} offset:{aoff + k*64}")
        issued = min(nk, depth)
        for k in range(nk):
            E(f"s_waitcnt lgkmcnt({issued - 1 - k + (extra if k < pre else 0)})")
            c = "0" if k == 0 else f"v[{d}:{d+3}]"
            E(f"v_mfma_f32_16x16x32_bf16 v[{d}:{d+3}], v[{AT(k)}:{AT(k)+3}], v[{BR(k)}:{BR(k)+3}], {c}")
            if issued < nk:
                E(f"ds_read_b128 v[{AT(issued)}:{AT(issued)+3}], v{areg} offset:{aoff + issued*64}"); issued += 1
            if k >= first:
                for _ in range(per):
                    if fill: E(fill.pop(0))
    def own_map():
        E("v_and_b32 v8, 31, v0"); E("v_min_u32 v9, 7, v8"); E("s_mul_i32 s28, s3, 72")
        E("v_add_u32 v8, s28, v8"); E("s_add_u32 s28, s28, 64"); E("v_add_u32 v9, s28, v9")
        E("v_lshrrev_b32 v11, 5, v0"); E("v_mul_u32_u24 v11, 1152, v11"); E("v_lshl_add_u32 v10, v8, 2, v11"); E("v_lshl_add_u32 v11, v9, 2, v11")
    def modgather(o1, o2, lab=None):
        E(f"s_mov_b32 s30, {MOD_OFF + o1*8}"); E(f"s_mov_b32 s31, {MOD_OFF + o2*8}")
        E("v_lshlrev_b32 v12, 4, v8"); E("v_lshlrev_b32 v13, 4, v9")
        def body():
            for h in range(2):
                E(f"buffer_load_dwordx4 v[{36+12*h}:{39+12*h}], v12, s[24:27], s{30+h} offen sc1")
                E(f"buffer_load_dwordx4 v[{40+12*h}:{43+12*h}], v12, s[24:27], s{30+h} offen offset:512 sc1")
                E(f"buffer_load_dwordx4 v[{44+12*h}:{47+12*h}], v13, s[24:27], s{30+h} offen sc1")
            E("s_waitcnt vmcnt(0)")
            tagcheck(14, list(range(37, 60, 2)))
        poll(body, sl_long)
        if lab: E.label(lab)
        E("v_cmp_gt_u32 vcc, 32, v0"); E("v_mov_b32 v12, 0x03020c0c"); E("v_mov_b32 v13, 0x01000c0c"); E("v_cndmask_b32 v12, v12, v13, vcc")
        for e in range(12): E(f"v_perm_b32 v{24+e}, v{36+2*e}, v{36+2*e}, v12")
    def dma_addrs(a=3, b=4, t=2):
        E(f"v_lshrrev_b32 v{t}, 3, v0"); E(f"v_mul_lo_u32 v{t}, v{t}, s20")
        E(f"v_and_b32 v{a}, 7, v0"); E(f"v_bfe_u32 v{b}, v0, 4, 1"); E(f"v_lshlrev_b32 v{b}, 1, v{b}"); E(f"v_xor_b32 v{a}, v{a}, v{b}")
        E(f"v_xor_b32 v{b}, 4, v{a}"); E(f"v_lshl_add_u32 v{a}, v{a}, 4, v{t}"); E(f"v_lshl_add_u32 v{b}, v{b}, 4, v{t}")
        E("s_lshl_b32 s17, s20, 3")
    def dma_loop(lab, depth, a=3, b=4, ls=1024):
        E.label(lab)
        E("s_mov_b32 m0, s29"); E(f"s_add_u32 s29, s29, {ls}")
        E(f"buffer_load_dwordx4 v{a}, s[8:11], s16 offen {wf} lds"); E("s_add_u32 s16, s16, s17")
        if depth: E(f"s_waitcnt vmcnt({depth-1})")
        E("s_mov_b32 m0, s29"); E(f"s_add_u32 s29, s29, {ls}")
        E(f"buffer_load_dwordx4 v{b}, s[8:11], s16 offen {wf} lds"); E("s_add_u32 s16, s16, s17")
        if depth: E(f"s_waitcnt vmcnt({depth-1})")
        E("s_sub_u32 s19, s19, 1"); E("s_cmp_lg_u32 s19, 0"); E(f"s_cbranch_scc1 {lab}")

    E.label("L_code0")
    if probe in (16, 'amp') or stamps == 'entry': E("s_memrealtime s[86:87]")
    E("s_load_dwordx16 s[36:51], s[0:1], 0")
    E("s_load_dwordx8 s[52:59], s[0:1], 64")
    E("s_load_dwordx4 s[60:63], s[0:1], 96")
    E("s_cmp_ge_u32 s2, 256"); E("s_cbranch_scc1 L_exit")
    if stamps == 'entry': E("s_mov_b32 s85, 0")
    elif stamps:
        for k in range(16): E(f"s_mov_b32 s{70+k}, 0")
    E("v_lshrrev_b32 v1, 6, v0"); E("v_and_b32 v0, 63, v0"); E("v_readfirstlane_b32 s3, v1")
    E("s_and_b32 s4, s2, 7"); E("s_lshr_b32 s5, s2, 3")
    E("s_sub_u32 s22, s2, 72"); E("s_cmp_lt_u32 s22, 48"); E("s_cselect_b32 s21, 2, 0")
    E(f"s_cmp_ge_u32 s5, {JQ0}"); E("s_cselect_b32 s21, 3, s21")
    if 'j' in dbg: E("s_mov_b32 s21, 0")
    E("s_cmp_ge_u32 s3, 8"); E("s_cbranch_scc1 L_service")

    SL = lambda i: 40 + 4 * i
    E("v_and_b32 v3, 3, v0"); E("v_lshrrev_b32 v4, 4, v0"); E("v_lshl_add_u32 v3, v4, 2, v3")
    LIN = isinstance(pat, dict) and 'T' in pat
    if not LIN: E("v_bfe_u32 v4, v0, 2, 2"); E("v_lshlrev_b32 v4, 8, v4"); E("v_lshl_add_u32 v2, v3, 4, v4")
    if 'l' in dbg: E("v_lshlrev_b32 v2, 4, v0")
    E("s_and_b32 s28, s5, 16"); E("s_lshl_b32 s29, s4, 1"); E("s_add_u32 s28, s28, s29")
    E("s_lshl_b32 s28, s28, 3"); E("s_and_b32 s29, s5, 15"); E("s_add_u32 s28, s28, s29")
    if LIN: E("s_lshl_b32 s33, s28, 18")
    else:
        E("s_lshl_b32 s28, s28, 6"); E("s_add_u32 s28, s28, s3"); E("s_lshl_b32 s33, s28, 12")
        E("s_add_u32 s32, s5, s3")
    def soff(u):
        E(f"s_add_u32 s30, s32, {u}"); E("s_and_b32 s30, s30, 7"); E("s_lshl_b32 s30, s30, 15"); E(f"s_add_u32 s{64+u if not stamps else 94+u}, s33, s30")
    SO = lambda u: (64 + u if not stamps else 94 + u)
    def soffB(k):
        if k < 4:
            E("s_lshr_b32 s30, s5, 3"); E("s_add_u32 s30, s30, s3"); E(f"s_add_u32 s30, s30, {k}"); E("s_and_b32 s30, s30, 3"); E("s_lshl_b32 s30, s30, 16"); E(f"s_add_u32 s{SO(k)}, s33, s30")
        else:
            E(f"s_add_u32 s30, s32, {k-4}"); E("s_and_b32 s30, s30, 3"); E(f"s_lshl_b32 s{SO(k)}, s30, 10")
    def addr(i):
        if pat == 'A': return f"s{SO(i//4)} offen offset:{(i%4)*1024}"
        if pat == 'A2':
            E(f"s_add_u32 s16, s{SO(i//4)}, s{17 + i%4}"); return "s16 offen"
        if i % 2 == 0: E(f"s_add_u32 s16, s{SO(i>>3)}, s{SO(4 + ((i>>1)&3))}")
        else: E("s_add_u32 s16, s16, 0x8000")
        return "s16 offen"
    LIN = isinstance(pat, dict) and 'T' in pat
    GEN = isinstance(pat, dict)
    if LIN:
        M = lambda bits: sum(1 << b for b in (bits if isinstance(bits, tuple) else (bits,)))
        Gm, Wm, Tm = [[M(b) for b in pat[k]] for k in 'GWT']
        Jm = [M(b) for b in pat.get('J', [])]; Xm = [M(b) for b in pat.get('X', [])]
        span = {0}
        for m in Gm + Wm + Tm: span |= {v ^ m for v in span}
        assert len(span) == 1024 and max(span) < (1 << 18) and all(v % 256 == 0 for v in span)
        first = True
        for reg, ms in (('s3', Wm), ('s5', Jm), ('s4', Xm)):
            k = 0
            while k < len(ms):
                if ms[k] == 0: k += 1; continue
                n = 1
                while k + n < len(ms) and ms[k + n] == ms[k] << n: n += 1
                while n > 1 and any((ms[k] << a) & (ms[k] << b) for a in range(n) for b in range(a)): n -= 1
                d = "s32" if first else "s30"
                E(f"s_bfe_u32 {d}, {reg}, {(n << 16) + k}"); E(f"s_mul_i32 {d}, {d}, {ms[k]}")
                if not first: E("s_xor_b32 s32, s32, s30")
                first = False; k += n
        def lanepart(dst, lo, tmp):
            if Gm[1] == Gm[0] << 1 and not Gm[0] & Gm[1]:
                E(f"v_bfe_u32 v{tmp}, v0, {lo}, 2"); E(f"v_mul_u32_u24 v{tmp}, {Gm[0]}, v{tmp}"); E(f"v_xor_b32 v{dst}, v{dst}, v{tmp}")
            else:
                for k in range(2): E(f"v_bfe_u32 v{tmp}, v0, {lo+k}, 1"); E(f"v_mul_u32_u24 v{tmp}, {Gm[k]}, v{tmp}"); E(f"v_xor_b32 v{dst}, v{dst}, v{tmp}")
            E(f"v_xor_b32 v{dst}, s32, v{dst}")
        E("v_lshlrev_b32 v2, 4, v3"); lanepart(2, 2, 4)
        def tmask(i):
            r = 0
            for k in range(5):
                if i >> k & 1: r ^= Tm[k]
            return r
        def addr(i): return "s33 offen"
    elif GEN:
        gb = pat.get('g', (8, 9)); wb = pat.get('w', (12, 13, 14)); tf = pat['t']
        sb = pat.get('s', (18, 19, 20))
        used = list(gb) + list(wb) + list(sb) + [sh + k for n, sh, rot in tf for k in range(n)]
        assert sorted(used) == list(range(8, 21)), used
        if tuple(gb) != (8, 9): E("v_bfe_u32 v4, v0, 2, 1"); E("v_bfe_u32 v5, v0, 3, 1"); E(f"v_lshlrev_b32 v4, {gb[0]}, v4"); E(f"v_lshl_add_u32 v4, v5, {gb[1]}, v4"); E("v_lshl_add_u32 v2, v3, 4, v4")
        if tuple(wb) != (12, 13, 14) or tuple(sb) != (18, 19, 20):
            E("s_andn2_b32 s33, s33, 0x1fffff")
            for k, bit in enumerate(wb): E(f"s_bfe_u32 s30, s3, {0x10000 + k}"); E(f"s_lshl_b32 s30, s30, {bit}"); E("s_add_u32 s33, s33, s30")
            for k, bit in enumerate(sb): E(f"s_bfe_u32 s30, s5, {0x10000 + k}"); E(f"s_lshl_b32 s30, s30, {bit}"); E("s_add_u32 s33, s33, s30")
        ROT = {'j': 's5', 'jw': 's32', 'w': 's3', 'x': 's4'}
        for name, sh, plus in (('j2', 2, None), ('j2w', 2, 's3'), ('j3', 3, None), ('j3w', 3, 's3'), ('j1', 1, None), ('j1w', 1, 's3'), ('jx', 0, 's4'), ('j2x', 2, 's4'), ('j3x', 3, 's4')):
            if any(rot == name for n, _, rot in tf):
                r = SO(len(ROT) - 4); ROT[name] = f"s{r}"
                E(f"s_lshr_b32 s{r}, s5, {sh}")
                if plus: E(f"s_add_u32 s{r}, s{r}, {plus}")
        prev = {}
        def addr(i):
            const = 0; pos = 0; regs = []
            for f, (n, sh, rot) in enumerate(tf):
                c = (i >> pos) & ((1 << n) - 1); pos += n
                if rot == '0': const += c << sh
                else:
                    if prev.get(f) != c:
                        E(f"s_add_u32 s{17+f}, {ROT[rot]}, {c}"); E(f"s_and_b32 s{17+f}, s{17+f}, {(1 << n) - 1}"); E(f"s_lshl_b32 s{17+f}, s{17+f}, {sh}"); prev[f] = c
                    regs.append(f"s{17+f}")
            E(f"s_add_u32 s16, s33, {const}")
            for r in regs: E(f"s_add_u32 s16, s16, {r}")
            return "s16 offen"
    elif pat == 'B2':
        for k in (0, 4, 5): soffB(k)
    else: soff(0)
    if pat == 'A2':
        for k in range(4): E(f"s_add_u32 s30, s5, {k}"); E("s_and_b32 s30, s30, 3"); E(f"s_lshl_b32 s{17+k}, s30, 10")
    assert K0 <= 4
    E("s_mov_b32 s10, 0x4000000"); E("s_mov_b32 s11, 0x20000")
    E("s_waitcnt lgkmcnt(0)")
    E("s_mov_b32 s8, s38"); E("s_mov_b32 s9, s39")
    stamp(0)
    def kload(i):
        E(f"buffer_load_dwordx4 v[{SL(i)}:{SL(i)+3}], v2, s[8:11], {addr(i)} {kvf}")
        if LIN and i < 31: E(f"v_xor_b32 v2, {tmask(i) ^ tmask(i+1)}, v2")
    VS = lambda i: SL((i - NL) % 32)
    def vload(i):
        if i < NL: E(f"buffer_load_dwordx4 v1, s[12:15], {addr(i)} {kvf} lds")
        else: E(f"buffer_load_dwordx4 v[{VS(i)}:{VS(i)+3}], v1, s[12:15], {addr(i)} {kvf}")
        if LIN and i < 31: E(f"v_xor_b32 v1, {tmask(i) ^ tmask(i+1)}, v1")
        if i == 31 and GEN: E("v_lshlrev_b32 v1, 4, v0")
    E.label("L_k0")
    for i in range(K0): kload(i)
    E("s_branch L_stream")

    E.label("L_service")
    E("v_mov_b32 v1, 0")
    E("s_sub_u32 s3, s3, 8")
    if cpf >= 3:
        E("s_getpc_b64 s[12:13]"); E.label("L_pc0")
        E("s_sub_u32 s12, s12, L_pc0-L_code0"); E("s_subb_u32 s13, s13, 0"); E("s_mov_b32 s14, L_exit-L_code0"); E("s_mov_b32 s15, 0x20000")
        E("s_lshl_b32 s28, s5, 2"); E("s_add_u32 s28, s28, s3"); E("s_lshl_b32 s28, s28, 8")
    E("v_lshlrev_b32 v2, 2, v0")
    if cpf >= 3: E("buffer_load_dword v95, v2, s[12:15], s28 offen" + (" nt" if cpf == 4 else ""))
    E("s_mov_b64 exec, 0xffff"); E("ds_write_b32 v2, v1"); E("s_mov_b64 exec, -1")
    E("s_mov_b32 s18, 4")
    E("s_cmp_lg_u32 s21, 0"); E("s_cbranch_scc1 L_job")
    E("s_mov_b32 s20, 1152")
    dma_addrs()
    E("s_lshl_b32 s28, s4, 2"); E("s_add_u32 s28, s28, s3"); E(f"s_sub_u32 s30, s5, {JW2}")
    E("s_cmp_lt_u32 s5, 9")
    E("s_cselect_b32 s19, 8, 9"); E("s_cselect_b32 s30, s5, s30"); E(f"s_mov_b32 s29, {SLOT_B}"); E(f"s_cselect_b32 s29, {SLOT_A}, s29")
    E("s_mul_i32 s16, s19, 18432"); E("s_lshl_b32 s10, s16, 5"); E("s_mul_i32 s16, s16, s28"); E("s_lshl_b32 s30, s30, 7"); E("s_add_u32 s16, s16, s30")
    E("s_lshl_b32 s30, s19, 11"); E("s_mul_i32 s30, s30, s3"); E("s_add_u32 s29, s29, s30"); E("s_mov_b32 s11, 0x20000")
    E("s_waitcnt lgkmcnt(0)")
    E("s_cmp_lt_u32 s5, 9"); E("s_cselect_b32 s8, s44, s52"); E("s_cselect_b32 s9, s45, s53")
    stamp(0)
    if EB: E("s_barrier")
    if 'e' not in dbg: dma_loop("L_dma_early", DEA)
    E(f"s_load_dword s34, s[62:63], {EP_OFF}")
    srd(24, 62, WS_SIZE)
    if not EB: E("s_barrier")
    E("s_branch L_roles")
    E.label("L_job")
    E("s_cmp_eq_u32 s21, 3")
    E("s_cselect_b32 s20, 8192, 6912") if False else (E("s_mov_b32 s20, 6912"), E("s_cselect_b32 s20, 8192, s20"))
    dma_addrs()
    own_map()
    E("s_lshl_b32 s28, s4, 3"); E(f"s_sub_u32 s29, s5, {JQ0}"); E("s_add_u32 s28, s28, s29")
    E("s_cmp_eq_u32 s21, 3"); E("s_cselect_b32 s22, s28, s22")
    E("s_mul_i32 s10, s20, 576"); E("s_mov_b32 s11, 0x20000")
    E("s_mul_i32 s16, s20, 144"); E("s_mul_i32 s16, s16, s3"); E("s_lshl_b32 s28, s22, 7"); E("s_add_u32 s16, s16, s28")
    E("s_mul_i32 s29, s3, 18432"); E(f"s_add_u32 s29, s29, {SLOT_B}"); E("s_mov_b32 s19, 9")
    E("s_mov_b32 s14, 2304"); E("s_mov_b32 s15, 0x20000")
    E("s_waitcnt lgkmcnt(0)")
    if stamps:
        E("s_cmp_eq_u32 s18, 8"); E("s_cbranch_scc1 L_nost0"); stamp(0); E.label("L_nost0")
    E("s_cmp_eq_u32 s21, 3")
    E("s_cselect_b32 s8, s42, s56"); E("s_cselect_b32 s9, s43, s57"); E("s_cselect_b32 s12, s36, s54"); E("s_cselect_b32 s13, s37, s55")
    E("buffer_load_dword v16, v10, s[12:15], 0 offen"); E("buffer_load_dword v17, v10, s[12:15], 0 offen offset:128"); E("buffer_load_dword v18, v11, s[12:15], 0 offen")
    srd(24, 62, WS_SIZE)
    if xe:
        E("s_cbranch_scc0 L_nox")
        E("v_lshrrev_b32 v12, 5, v0"); E("v_mul_u32_u24 v12, 1152, v12"); E("v_and_b32 v13, 31, v0"); E("v_lshl_add_u32 v12, v13, 2, v12")
        for i in range(9): E(f"buffer_load_dword v{60+i}, v12, s[12:15], 0 offen offset:{i*128}")
        E.label("L_nox")
    E("s_cmp_eq_u32 s18, 8"); E("s_cbranch_scc1 L_dma_jq")
    E(f"s_load_dword s34, s[62:63], {EP_OFF}")
    if QB: E(f"s_cmp_eq_u32 s5, 27"); E("s_cbranch_scc1 L_jq")
    dma_loop("L_dma_job", DJ)
    E("s_barrier")
    E("s_branch L_job2")
    if QB:
        E.label("L_jq")
        E("s_barrier")
        dma_loop("L_dma_j27", QB - 1)
        E("s_branch L_job2")
    dma_loop("L_dma_jq", DJQ)
    E.label("L_job2")
    stamp(9)
    op_addrs()
    E("s_waitcnt vmcnt(18)")
    for i in range(3):
        E(f"v_and_b32 v{71+2*i}, 0xffff0000, v{16+i}"); E(f"v_lshlrev_b32 v{70+2*i}, 16, v{16+i}")
    E("s_cmp_eq_u32 s21, 3"); E("s_cbranch_scc1 L_prep_q")
    E(f"s_mov_b32 s28, {LOG2E ^ 0x80000000}"); E("s_mov_b32 s29, 0xb2a57060"); E("s_mov_b32 s30, 0x3f317218")
    for e in range(6): E(f"v_mul_f32 v{24+e}, s28, v{70+e}")
    for e in range(6): E(f"v_fma_f32 v{30+e}, v{70+e}, s28, -v{24+e}")
    for e in range(6): E(f"v_fma_f32 v{30+e}, v{70+e}, s29, v{30+e}")
    for e in range(6): E(f"v_min_f32 v{24+e}, 0x42fc0000, v{24+e}")
    for e in range(6): E(f"v_exp_f32 v{24+e}, v{24+e}")
    for e in range(6): E(f"v_mul_f32 v{30+e}, s30, v{30+e}")
    for e in range(6): E(f"v_fma_f32 v{24+e}, v{24+e}, v{30+e}, v{24+e}")
    for e in range(6): E(f"v_add_f32 v{24+e}, 1.0, v{24+e}")
    for e in range(6): E(f"v_rcp_f32 v{30+e}, v{24+e}")
    for e in range(6): E(f"v_mul_f32 v{36+e}, v{70+e}, v{30+e}")
    for e in range(6): E(f"v_fma_f32 v{70+e}, -v{24+e}, v{36+e}, v{70+e}")
    for e in range(6): E(f"v_fma_f32 v{70+e}, v{70+e}, v{30+e}, v{36+e}")
    def write_a(buf):
        for i in range(3): E(f"v_cvt_pk_bf16_f32 v{16+i}, v{70+2*i}, v{71+2*i}")
        E(f"ds_write_b32 v10, v16 offset:{buf}"); E(f"ds_write_b32 v10, v17 offset:{buf+128}"); E(f"ds_write_b32 v11, v18 offset:{buf}")
    write_a(JBUF)
    if jreh: walk("L_mst", "L_ret_m")
    E("s_waitcnt vmcnt(0)")
    soft_barrier(C_J1, 1, 16, n="s18")
    stamp(10)
    E.label("L_mst")
    stage_b(SLOT_B, 18, wait=False)
    E("s_branch L_gemv")
    E.label("L_prep_q")
    if not xe:
        E("v_lshrrev_b32 v12, 5, v0"); E("v_mul_u32_u24 v12, 1152, v12"); E("v_and_b32 v13, 31, v0"); E("v_lshl_add_u32 v12, v13, 2, v12")
        for i in range(9): E(f"buffer_load_dword v{60+i}, v12, s[12:15], 0 offen offset:{i*128}")
        E("s_waitcnt vmcnt(0)")
    for i in range(9):
        E(f"v_lshlrev_b32 v{24+2*i}, 16, v{60+i}"); E(f"v_and_b32 v{25+2*i}, 0xffff0000, v{60+i}")
    E("v_add_f32 v16, v24, v25")
    for r in range(26, 42): E(f"v_add_f32 v16, v16, v{r}")
    row_reduce("v_add_f32", 16, (1, 2, 4, 8)); swap_reduce("v_add_f32", 16, 17, 16)
    E("s_mov_b32 s28, 0x3ae38e39"); E("s_mov_b32 s29, 0x3727c5ac")
    E("v_mul_f32 v16, s28, v16")
    E("v_mov_b32 v18, 0")
    for r in range(24, 42): E(f"v_sub_f32 v17, v{r}, v16"); E("v_fmac_f32 v18, v17, v17")
    row_reduce("v_add_f32", 18, (1, 2, 4, 8)); swap_reduce("v_add_f32", 18, 17, 16)
    E("v_mul_f32 v18, s28, v18"); rnd(18, 18); E("v_add_f32 v18, s29, v18"); rnd(18, 18)
    E("v_sqrt_f32 v18, v18"); rnd(18, 18); E("v_rcp_f32 v19, v18"); rnd(16, 16)
    for r in range(70, 76):
        E(f"v_sub_f32 v{r}, v{r}, v16"); rnd(r, r)
        E(f"v_mul_f32 v17, v{r}, v19"); E(f"v_fma_f32 v{r}, -v18, v17, v{r}"); E(f"v_fma_f32 v{r}, v{r}, v19, v17"); rnd(r, r)
    E("s_waitcnt vmcnt(0)")
    soft_barrier(C_J1, 1, 16)
    stamp(10)
    stage_b(SLOT_B, 18)
    mktag()
    if jreh: walk("L_qh", "L_ret_q")
    if km:
        if kms:
            E("s_cmp_eq_u32 s5, 27"); E("s_cbranch_scc1 L_kms"); E("s_cmp_eq_u32 s2, 255"); E("s_cbranch_scc1 L_kms")
        lds_wait(C_NR, 1, 1, 16, sleep=4)
        if kms: E.label("L_kms")
    modgather(0, 576, "L_qh")
    stamp(11)
    for e in range(6):
        E(f"v_add_f32 v{30+e}, 1.0, v{30+e}"); rnd(30+e, 30+e); E(f"v_mul_f32 v{70+e}, v{70+e}, v{30+e}"); rnd(70+e, 70+e)
        E(f"v_add_f32 v{70+e}, v{70+e}, v{24+e}")
    write_a(JBUF)
    E("s_cbranch_execz L_gemv")
    soft_barrier(C_J2, 1, 16)
    E.label("L_gemv")
    gemv(3, JBUF, 18, 20)
    mktag()
    E("s_lshl_b32 s28, s22, 2"); E("s_add_u32 s28, s28, s3"); E("s_lshl_b32 s28, s28, 7")
    E(f"s_mov_b32 s29, {MOD_OFF}"); E("s_cmp_eq_u32 s21, 3"); E(f"s_cselect_b32 s29, {Q_OFF}, s29"); E("s_add_u32 s28, s28, s29")
    E("v_lshlrev_b32 v2, 3, v0")
    E("v_cvt_pk_bf16_f32 v8, v20, v21"); E("v_mov_b32 v9, s35")
    if jreh:
        E("s_cbranch_execnz L_jpub")
        E("s_cmp_eq_u32 s21, 3"); E("s_cbranch_scc1 L_ret_q"); E("s_branch L_ret_m")
        E.label("L_jpub")
    E("s_mov_b64 exec, 0xffff")
    E("buffer_store_dwordx2 v[8:9], v2, s[24:27], s28 offen sc1")
    E("s_mov_b64 exec, -1")
    lds_inc(C_GO, 1, 16)
    stamp(12)
    E("s_cmp_eq_u32 s18, 8"); E("s_cbranch_scc1 L_svc_end")
    E.label("L_roles")
    for w in '0123':
        if w in dbg: E(f"s_cmp_eq_u32 s3, {w}"); E("s_cbranch_scc1 L_svc_end")
    if 'z' in dbg: E("s_branch L_tailprep")
    E("s_cmp_eq_u32 s3, 3"); E("s_cbranch_scc1 L_s3")
    E("s_cmp_eq_u32 s3, 0"); E("s_cbranch_scc1 L_s0")
    if cpf in (1, 2):
        E("s_cmp_lg_u32 s3, 1"); E("s_cbranch_scc1 L_tailprep")
        E("s_getpc_b64 s[8:9]"); E.label("L_pc")
        E("s_sub_u32 s8, s8, L_pc-L_code0"); E("s_subb_u32 s9, s9, 0"); E("s_mov_b32 s10, L_exit-L_code0"); E("s_mov_b32 s11, 0x20000")
        E("v_lshlrev_b32 v2, 4, v0"); E("s_lshl_b32 s16, s5, 10")
        if cpf == 2: lds_wait(C_KH, 1, 1, 8, sleep=8)
        E("buffer_load_dwordx4 v[8:11], v2, s[8:11], s16 offen"); E("s_waitcnt vmcnt(0)")
    E("s_branch L_tailprep")

    E.label("L_s0")
    mktag()
    E("v_lshlrev_b32 v2, 4, v0")
    if kh:
        if gateq: E("s_cmp_eq_u32 s21, 3"); E("s_cbranch_scc1 L_qgo")
        lds_wait(C_KH, 1, 1, 8, sleep=8)
        E.label("L_qgo")
    E("s_lshl_b32 s28, s4, 12"); E("s_bfe_u32 s29, s5, 0x10003"); E("s_lshl_b32 s29, s29, 11"); E("s_add_u32 s28, s28, s29"); E(f"s_add_u32 s28, s28, {Q_OFF}")
    def qbody():
        E("buffer_load_dwordx4 v[8:11], v2, s[24:27], s28 offen sc1"); E("buffer_load_dwordx4 v[12:15], v2, s[24:27], s28 offen offset:1024 sc1")
        E("s_waitcnt vmcnt(0)")
        tagcheck(16, [9, 11, 13, 15])
    poll(qbody, sl_q)
    E("s_mov_b32 s29, 0x05040100"); E("s_cmp_ge_u32 s5, 16"); E("s_cselect_b32 s29, 0x07060302, s29")
    E("v_perm_b32 v8, v10, v8, s29"); E("v_perm_b32 v9, v14, v12, s29"); E("v_lshlrev_b32 v3, 2, v0")
    E(f"ds_write_b32 v3, v8 offset:{QBUF}"); E(f"ds_write_b32 v3, v9 offset:{QBUF+256}")
    E("s_add_u32 s7, s7, 1"); lds_set(C_Q, 1, 10, "s7")
    if stamps is True: E("s_mov_b32 s71, s7")
    stamp(3)
    lds_wait(C_BAR, 1, 1, 8, sleep=4)
    E("s_mov_b32 s6, s28")
    lds_wait(C_CNT, 8, 1, 8, sleep=4)
    E("v_and_b32 v3, 15, v0"); E("v_lshlrev_b32 v4, 3, v3"); E(f"ds_read_b64 v[8:9], v4 offset:{MLB}")
    E(f"s_mov_b32 s31, {LOG2E}")
    E("s_waitcnt lgkmcnt(0)")
    E("v_mov_b32 v10, v8"); row_reduce("v_max_f32", 10, (2, 4, 8))
    E("v_sub_f32 v12, v8, v10"); E("v_mul_f32 v12, s31, v12"); E("v_exp_f32 v12, v12"); E("v_mul_f32 v11, v12, v9")
    row_reduce("v_add_f32", 11, (2, 4, 8))
    E("v_and_b32 v5, 1, v0"); E("v_lshlrev_b32 v5, 5, v5"); E("v_lshrrev_b32 v6, 1, v3"); E("v_lshl_add_u32 v5, v6, 2, v5")
    E(f"ds_write_b32 v5, v12 offset:{FAC}")
    E("s_lshl_b32 s28, s4, 5"); E("s_add_u32 s28, s28, s5"); E("s_lshl_b32 s28, s28, 5"); E(f"s_add_u32 s28, s28, {ML_OFF}")
    E("v_mov_b32 v12, s35"); E("v_mov_b32 v13, s35"); E("v_lshlrev_b32 v4, 4, v0")
    E("v_mov_b32 v6, s6"); E(f"ds_write_b32 v1, v6 offset:{C_FAC}")
    E("s_mov_b64 exec, 3")
    intra_store(["buffer_store_dwordx4 v[10:13], v4, s[24:27], s28 offen"])
    E("s_mov_b64 exec, -1")
    E("s_waitcnt lgkmcnt(0)")
    stamp(4)
    E("s_branch L_tailprep")

    E.label("L_s3")
    E("v_lshlrev_b32 v2, 4, v0")
    for k in range(4): E(f"v_mov_b32 v{4+k}, -1")
    E("s_cmp_ge_u32 s5, 9"); E("s_cbranch_scc1 L_noclr")
    E(f"s_mul_i32 s28, s4, {ZS}"); E("s_mul_i32 s29, s5, 320"); E("s_add_u32 s28, s28, s29"); E(f"s_add_u32 s28, s28, {Z_OFF}")
    E("s_mov_b64 exec, 0xfffff"); E("buffer_store_dwordx4 v[4:7], v2, s[24:27], s28 offen sc1"); E("s_mov_b64 exec, -1")
    E.label("L_noclr")
    E("s_getreg_b32 s29, hwreg(HW_REG_XCC_ID)"); E("s_and_b32 s29, s29, 15")
    mktag()
    if fb:
        lds_wait(C_VH, 1, 1, 8, sleep=4)
        E("s_lshl_b32 s28, s28, 4"); E("s_or_b32 s29, s29, s28")
    E("v_mov_b32 v8, s29"); E("v_mov_b32 v9, s35")
    E("s_lshl_b32 s28, s4, 5"); E("s_add_u32 s28, s28, s5"); E("s_lshl_b32 s28, s28, 3"); E(f"s_add_u32 s28, s28, {FL_OFF}")
    E("s_waitcnt vmcnt(0)")
    stamp(1)
    E("s_mov_b64 exec, 1"); E("buffer_store_dwordx2 v[8:9], v1, s[24:27], s28 offen sc1"); E("s_mov_b64 exec, -1")
    if 'q' in dbg: E("s_branch L_svc_end")
    lds_wait(C_Q if NL and not fbl else C_CNT, 1 if NL and not fbl else (fbl or 8), 1, 8, sleep=8)
    E(f"s_mov_b32 s30, {FL_OFF}")
    def barbody():
        E("buffer_load_dwordx4 v[8:11], v2, s[24:27], s30 offen sc1"); E("buffer_load_dwordx4 v[12:15], v2, s[24:27], s30 offen offset:1024 sc1")
        E("s_waitcnt vmcnt(0)")
        tagcheck(16, [9, 11, 13, 15])
    poll(barbody, sl_bar)
    if fb:
        for r in (8, 10, 12, 14): E(f"v_sub_u32 v{r+1}, s29, v{r}"); E(f"v_ashrrev_i32 v{r+1}, 4, v{r+1}")
        E("v_add3_u32 v9, v9, v11, v13"); E("v_add_u32 v9, v9, v15")
        row_reduce("v_add_u32", 9, (1, 2, 4, 8)); swap_reduce("v_add_u32", 9, 11, 16); swap_reduce("v_add_u32", 9, 11, 32)
        E("v_readfirstlane_b32 s30, v9")
        E("s_ashr_i32 s30, s30, 8"); E(f"s_sub_i32 s30, s30, {fbo}"); E(f"s_mul_i32 s30, s30, {fbg}"); E("s_ashr_i32 s30, s30, 8")
        E("s_max_i32 s30, s30, 0"); E("s_min_i32 s30, s30, 8")
        if stamps is True: E("s_mov_b32 s73, s30")
        if fbm: E("s_sub_u32 s30, 8, s30")
        E("s_lshl_b32 s30, s30, 1"); E("s_or_b32 s30, s30, 1"); lds_set(C_KH, 1, 9, "s30")
    E("s_cmp_ge_u32 s4, 4"); E("s_cselect_b64 vcc, -1, 0")
    E("v_cndmask_b32 v8, v8, v12, vcc"); E("v_cndmask_b32 v10, v10, v14, vcc")
    E("v_xor_b32 v8, s29, v8"); E("v_bitop3_b32 v8, v8, v10, s29 bitop3:0xf6"); E("v_and_b32 v8, 15, v8"); E("v_cmp_ne_u32 vcc, 0, v8")
    E("s_and_b32 s30, s4, 3"); E("s_lshl_b32 s30, s30, 4"); E("s_lshr_b64 s[30:31], vcc, s30"); E("s_and_b32 s30, s30, 0xffff")
    E(f"s_cselect_b32 s6, 1, {1 if force_slow else 3}")
    E("v_mov_b32 v8, s6"); E(f"ds_write_b32 v1, v8 offset:{C_BAR}")
    stamp(2)
    E("s_branch L_tailprep")

    E.label("L_stream")
    xd = XD if any(XW) or XN else 0
    if XN:
        E(f"s_mov_b32 s23, {XN[0]}")
        E("s_bitcmp1_b32 s4, 0"); E(f"s_cselect_b32 s28, {XN[2]}, {XN[1]}"); E("s_cmp_ge_u32 s5, 9"); E("s_cselect_b32 s23, s28, s23")
        for lo, n in zip((15, 24), XN[3:5]):
            E(f"s_cmp_ge_u32 s5, {lo}"); E(f"s_cselect_b32 s23, {n}, s23")
        E("s_cmp_eq_u32 s5, 27"); E(f"s_cselect_b32 s23, {XN[5]}, s23")
        E("s_cmp_eq_u32 s2, 255"); E(f"s_cselect_b32 s23, {XN[7]}, s23")
        if XJ: E("s_sub_u32 s28, s2, 224"); E("s_cmp_lt_u32 s28, 6"); E(f"s_cselect_b32 s23, {XJ}, s23")
        E("s_cmp_ge_u32 s5, 18"); E("s_cselect_b32 s28, 18, 9"); E("s_sub_u32 s28, s5, s28"); E("s_cmp_lt_u32 s28, 9"); E("s_cselect_b32 s29, 0, 8")
        E("s_add_u32 s28, s28, s4"); E("s_and_b32 s28, s28, 7"); E("s_add_u32 s28, s28, s29")
        E("s_cmp_eq_u32 s28, 3"); E(f"s_cselect_b32 s28, {XN[6]}, 0"); E("s_add_u32 s23, s23, s28")
        if XM:
            E("s_getreg_b32 s28, hwreg(HW_REG_XCC_ID)"); E("s_and_b32 s28, s28, 15"); E(f"s_lshr_b32 s28, {XM}, s28"); E("s_and_b32 s28, s28, 1"); E(f"s_mul_i32 s28, s28, {XMN}"); E("s_add_u32 s23, s23, s28")
    elif xd:
        E(f"s_mov_b32 s23, {XW[0]}")
        for lo, n in zip((9, 15, 24), XW[1:4]):
            E(f"s_cmp_ge_u32 s5, {lo}"); E(f"s_cselect_b32 s23, {n}, s23")
        E("s_cmp_eq_u32 s5, 27"); E(f"s_cselect_b32 s23, {XW[4]}, s23")
        if len(XW) > 5:
            E("s_cmp_ge_u32 s5, 18"); E("s_cselect_b32 s28, 18, 9"); E("s_sub_u32 s28, s5, s28"); E("s_cmp_lt_u32 s28, 9"); E("s_cselect_b32 s29, 0, 8")
            E("s_add_u32 s28, s28, s4"); E("s_and_b32 s28, s28, 7"); E("s_add_u32 s28, s28, s29")
            E("s_cmp_eq_u32 s28, 3"); E(f"s_cselect_b32 s23, {XW[5]}, s23")
    def setscc(): pass
    tp = [0]; XWV = [0]
    def throttle(d):
        lean = any(lo <= tp[0] < hi and (tp[0] - lo) % st_ == 0 for lo, hi, st_ in LE)
        lo_ = d - 1 - lean; hi_ = d - 1 + xd - (lean and not LX)
        thr = tp[0]; tp[0] += 1
        if thr < max(max(XN), XJ, max(XN[1:5]) + XN[6]) + XMN:
            a = L("th"); E(f"s_cmp_gt_u32 s23, {thr}"); E(f"s_waitcnt vmcnt({hi_})"); E(f"s_cbranch_scc1 {a}"); E(f"s_waitcnt vmcnt({lo_})"); E.label(a)
        else: E(f"s_waitcnt vmcnt({lo_})")
    if GEN: pass
    elif pat == 'B2':
        for k in (1, 2, 3, 6, 7): soffB(k)
    else:
        for u in range(1, 8): soff(u)
    srd(12, 40, 0x4000000); srd(24, 62, WS_SIZE)
    E(f"s_load_dword s34, s[62:63], {EP_OFF}")
    if LIN:
        E("v_and_b32 v1, 15, v0"); E("v_lshlrev_b32 v1, 4, v1"); lanepart(1, 4, 5)
    elif GEN:
        E("v_and_b32 v1, 15, v0"); E("v_lshlrev_b32 v1, 4, v1"); E("v_bfe_u32 v5, v0, 4, 1"); E(f"v_lshl_add_u32 v1, v5, {gb[0]}, v1"); E("v_lshrrev_b32 v5, 5, v0"); E(f"v_lshl_add_u32 v1, v5, {gb[1]}, v1")
    else: E("v_lshlrev_b32 v1, 4, v0")
    E("v_bfe_u32 v4, v0, 3, 1"); E("v_lshlrev_b32 v4, 8, v4"); E("v_lshl_add_u32 v36, v3, 4, v4")
    if warm:
        E("s_cmp_lg_u32 s3, 7"); E("s_cbranch_scc1 L_nowarm")
        E("s_mov_b64 exec, 1")
        if 'v' in warm: E(f"buffer_load_dword v5, v1, s[12:15], s{SO(0)} offen nt")
        if 's' in warm: E(f"s_mov_b32 s28, {EP_OFF}"); E("buffer_load_dword v5, v1, s[24:27], s28 offen nt")
        if 'w' in warm:
            E("s_cmp_ge_u32 s5, 18"); E("s_cselect_b32 s16, s50, s48"); E("s_cselect_b32 s17, s51, s49"); E(f"s_mov_b32 s18, {576*9216}"); E("s_mov_b32 s19, 0x20000")
            E("s_mov_b64 exec, 15"); E(f"v_mul_u32_u24 v6, {191*9216}, v0"); E("s_lshl_b32 s28, s2, 5")
            E("buffer_load_dword v5, v6, s[16:19], s28 offen nt")
        E("s_mov_b64 exec, -1")
        E.label("L_nowarm")
    stamp(8)
    E("s_barrier")
    stamp(9)
    for i in range(K0, D): kload(i)
    if gateq:
        E("s_cmp_lg_u32 s21, 3"); E("s_cbranch_scc1 L_kgo")
        E("v_mov_b32 v3, 0")
        lds_wait(C_GO, 4, 3, 4, sleep=4)
        E.label("L_kgo")
    setscc()
    for i in range(max(D, K0), 32):
        throttle(D); kload(i)
        if i in (4, 8): stamp(10 + (i == 8))
        if km and i == km:
            E("s_cmp_lg_u32 s21, 3"); E("s_cbranch_scc1 L_nokm"); E("v_mov_b32 v3, 0"); E("v_mov_b32 v4, 1"); E(f"ds_write_b32 v3, v4 offset:{C_NR}"); E.label("L_nokm")
        if fb and i == fb:
            E("s_cmp_lg_u32 s3, 3"); E("s_cbranch_scc1 L_nofb")
            E("s_memrealtime s[28:29]"); E("v_mov_b32 v3, 0"); E("s_waitcnt lgkmcnt(0)"); E("s_or_b32 s28, s28, 1"); E("v_mov_b32 v4, s28"); E(f"ds_write_b32 v3, v4 offset:{C_VH}")
            E.label("L_nofb")
        if kh and i == kh: E("v_mov_b32 v3, 0"); E("v_mov_b32 v4, 1"); E(f"ds_write_b32 v3, v4 offset:{C_KH}")
    stamp(1)
    if NL:
        E(f"s_mov_b32 s22, {SLOT_A}"); E("s_cmp_lt_u32 s5, 9"); E(f"s_cselect_b32 s22, {SLOT_B}, s22"); E(f"s_mul_i32 s28, s3, {NL*1024}"); E("s_add_u32 s22, s22, s28")
        for i in range(NL):
            if i % 4 == 0 or pat != 'A': E(f"s_add_u32 m0, s22, {i*1024}")
            throttle(D); vload(i)
            if kh == 32 + i: E("v_mov_b32 v3, 0"); E("v_mov_b32 v4, 1"); E(f"ds_write_b32 v3, v4 offset:{C_KH}")
    stamp(12)
    E("v_mov_b32 v2, 0")
    if 'q' not in dbg: lds_wait(C_Q, 1, 2, 3)
    if XL:
        E("s_cmp_eq_u32 s28, 1"); E(f"s_cselect_b32 s28, {XL}, 0"); E("s_add_u32 s23, s23, s28")
        XWV[0] = XL
    E(f"ds_read_b128 v[20:23], v36 offset:{QBUF}")
    E(f"s_mov_b32 s30, {SCALE}"); E(f"s_mov_b32 s31, {LOG2E}")
    E("v_mov_b32 v36, 0xff800000")
    mktag()
    stamp(2)
    setscc()
    st = dict(issued=NL)
    def qk_mfma(u):
        n = (28 - 4*u) + st['issued']
        if n < D + xd + st['issued'] and n < 63: E(f"s_waitcnt vmcnt({n})")
        for i in range(4*u, 4*u+4):
            E(f"v_mfma_f32_16x16x32_bf16 v[{SL(i)}:{SL(i)+3}], v[{SL(i)}:{SL(i)+3}], v[20:23], 0")
    def qk_post(u):
        if 'c' in dbg: return
        T = [24, 25, 26, 27]
        for k in range(4):
            for a in range(4):
                r = SL(4*u + a) + k
                if k == 0: E(f"v_mov_b32_dpp v{T[a]}, v{r} quad_perm:[0,0,0,0] row_mask:0xf bank_mask:0xf")
                else: E(f"v_add_f32_dpp v{T[a]}, v{r}, v{T[a]} quad_perm:[{k},{k},{k},{k}] row_mask:0xf bank_mask:0xf")
        E("v_cvt_pk_bf16_f32 v28, v24, v25"); E("v_cvt_pk_bf16_f32 v29, v26, v27")
        E("v_lshlrev_b32 v24, 16, v28"); E("v_and_b32 v25, 0xffff0000, v28")
        E("v_lshlrev_b32 v26, 16, v29"); E("v_and_b32 v27, 0xffff0000, v29")
        for a in range(4): E(f"v_mul_f32 v{T[a]}, s30, v{T[a]}")
        E(f"v_cvt_pk_bf16_f32 v{4+2*u}, v24, v25"); E(f"v_cvt_pk_bf16_f32 v{5+2*u}, v26, v27")
        E("v_max3_f32 v36, v24, v25, v36"); E("v_max3_f32 v36, v26, v27, v36")
    def vissue(d=None):
        i = st['issued']
        d = DV if d is None else d
        throttle(d); vload(i); st['issued'] += 1
        if i == v2:
            assert v2 >= NL + 8
            E("v_mov_b32 v2, 0"); E(f"ds_write_b32 v2, v24 offset:{C_V2}")
    def expo(k):
        if 'c' in dbg: return
        E(f"v_lshlrev_b32 v24, 16, v{4+k}"); E(f"v_and_b32 v25, 0xffff0000, v{4+k}")
        E("v_fma_f32 v24, v24, s31, -v37"); E("v_fma_f32 v25, v25, s31, -v37")
        E("v_exp_f32 v24, v24"); E("v_exp_f32 v25, v25")
        E("v_add_f32 v38, v38, v24"); E("v_add_f32 v39, v39, v25")
        E(f"v_cvt_pk_bf16_f32 v{4+k}, v24, v25")
    qk_mfma(0); qk_mfma(1); qk_post(0)
    if qs == 0:
        for _ in range(4): vissue(DQ)
        qk_mfma(2); qk_post(1)
        for _ in range(1 if DQ <= 4 else 4): vissue(DQ)
        for u in range(3, 8):
            qk_mfma(u); qk_post(u-1)
            if DQ > 4 or u % 2 == 0: vissue(DQ)
    else:
        vissue(DQ); vissue(DQ)
        for u in range(2, 8):
            qk_mfma(u); qk_post(u-1)
            if u % 2 == 1: vissue(DQ)
    qk_post(7)
    if NL:
        E(f"s_waitcnt vmcnt({st['issued'] - NL})"); E("v_lshl_add_u32 v3, v0, 4, s22")
        for i in range(NL): E(f"ds_read_b128 v[{VS(i)}:{VS(i)+3}], v3 offset:{i*1024}")
    swap_reduce("v_max_f32", 36, 24, 16); swap_reduce("v_max_f32", 36, 24, 32)
    rnd(36, 36)
    E("v_mul_f32 v37, s31, v36"); E("v_mov_b32 v38, 0"); E("v_mov_b32 v39, 0")
    for k in range(16):
        if k % (4 if qs == 0 else 6) == (0 if qs == 0 else 2): vissue(DQ)
        expo(k)
    E("v_add_f32 v37, v38, v39")
    swap_reduce("v_add_f32", 37, 24, 16); swap_reduce("v_add_f32", 37, 24, 32)
    E("s_lshl_b32 s28, s3, 4"); E("v_add_u32 v3, s28, v0"); E("v_mov_b32 v24, 1")
    E("s_mov_b64 exec, 0x101"); E(f"ds_write_b64 v3, v[36:37] offset:{MLB}")
    E("s_mov_b64 exec, 1"); E(f"ds_add_u32 v2, v24 offset:{C_CNT}")
    E("s_mov_b64 exec, -1")
    stamp(3)
    E("v_and_b32 v3, 1, v0"); E("v_cmp_eq_u32 vcc, 1, v3")
    E("v_mov_b32 v32, 0x0c0c0100"); E("v_mov_b32 v33, 0x01000c0c"); E("v_cndmask_b32 v32, v32, v33, vcc")
    E("v_mov_b32 v34, 0x0c0c0302"); E("v_mov_b32 v33, 0x03020c0c"); E("v_cndmask_b32 v33, v34, v33, vcc")
    E("v_bfe_u32 v3, v0, 1, 2"); E("v_mov_b32 v34, 0x0c0c0c0c")
    for r in range(4):
        E(f"v_cmp_eq_u32 vcc, {r}, v3"); E(f"v_cndmask_b32 v{24+r}, v34, v32, vcc"); E(f"v_cndmask_b32 v{28+r}, v34, v33, vcc")
    E("v_and_b32 v3, 15, v0"); E("v_lshlrev_b32 v3, 5, v3"); E("v_bfe_u32 v2, v0, 4, 1"); E("v_lshl_add_u32 v3, v2, 4, v3")
    E("v_lshrrev_b32 v2, 5, v0"); E("v_lshl_add_u32 v3, v2, 9, v3"); E("s_lshl_b32 s28, s3, 10"); E("v_add_u32 v3, s28, v3")
    setscc()
    if NL: E("s_waitcnt lgkmcnt(0)")
    pv = dict(done=0)
    def pv_prep(i):
        A0 = 32 + 4 * (i & 1)
        for r in range(4): E(f"v_perm_b32 v{A0+r}, v{4+i//2}, v{4+i//2}, v{24+4*(i&1)+r}")
    def pv_mfma(i):
        A0 = 32 + 4 * (i & 1)
        c = "0" if i == 0 else "v[20:23]"
        E(f"v_mfma_f32_16x16x32_bf16 v[20:23], v[{A0}:{A0+3}], v[{VS(i)}:{VS(i)+3}], {c}")
    while st['issued'] < 32:
        vissue(DV - (1 if fbm and st['issued'] > fbv else 0) + (DE if st['issued'] >= 32 - NE else 0))
        n = 0
        while pv['done'] <= st['issued'] - 1 - DV - xd - (DE if st['issued'] > 32 - NE else 0) and n < 4:
            pv_prep(pv['done']); pv_mfma(pv['done']); pv['done'] += 1; n += 1
    E("v_mov_b32 v2, 0")
    if N2: lds_inc(C_GT, 2, 4)
    lds_wait(C_FAC, 1, 2, 4, sleep=1)
    E("s_mov_b32 s6, s28"); E("s_lshl_b32 s28, s3, 2")
    E("v_and_b32 v4, 32, v0"); E("v_add_u32 v4, s28, v4"); E(f"ds_read_b32 v5, v4 offset:{FAC}")
    tagbyte(6, 0)
    E("v_mov_b32 v4, 1")
    E("s_lshl_b32 s29, s4, 5"); E("s_add_u32 s29, s29, s5"); E("s_lshl_b32 s29, s29, 10")
    assert pv['done'] >= 6
    while pv['done'] < 32:
        i = pv['done']
        pv_prep(i)
        if 31 - i < DV + xd + DE: E(f"s_waitcnt vmcnt({31-i})")
        pv_mfma(i); pv['done'] += 1
    E("s_waitcnt lgkmcnt(0)")
    for k in range(4): E(f"v_mul_f32 v{20+k}, v5, v{20+k}")
    E(f"ds_write_b128 v3, v[20:23] offset:{OBUF}")
    E("s_mov_b64 exec, 1"); E(f"ds_add_rtn_u32 v4, v2, v4 offset:{C_OC}"); E("s_mov_b64 exec, -1")
    for w in range(8): E(f"ds_read_b128 v[{40+4*w}:{43+4*w}], v1 offset:{OBUF + w*1024}")
    if stamps is True: stamp(4)
    E("s_waitcnt lgkmcnt(8)")
    E("v_readfirstlane_b32 s28, v4"); E("s_cmp_lg_u32 s28, 7"); E("s_cbranch_scc1 L_noreduce")
    E.label("L_reduce")
    PK = lambda d, x, y: (E(f"v_pk_add_f32 v[{d}:{d+1}], v[{x}:{x+1}], v[{y}:{y+1}]"), E(f"v_pk_add_f32 v[{d+2}:{d+3}], v[{x+2}:{x+3}], v[{y+2}:{y+3}]"))
    E("s_waitcnt lgkmcnt(6)"); PK(40, 40, 44)
    E("s_waitcnt lgkmcnt(4)"); PK(48, 48, 52); PK(40, 40, 48)
    E("s_waitcnt lgkmcnt(2)"); PK(56, 56, 60); PK(40, 40, 56)
    E("s_waitcnt lgkmcnt(0)"); PK(64, 64, 68); PK(40, 40, 64)
    settag(40, 6)
    intra_store(["buffer_store_dwordx4 v[40:43], v1, s[24:27], s29 offen"])
    if oack: live("s_waitcnt vmcnt(0)")
    lds_set(C_OC, 2, 4, 9)
    stamp(5)
    E.label("L_noreduce")
    if 't' in dbg: E("s_branch L_sdone")
    E(f"s_sub_u32 s28, s5, {JW2}"); E("s_cmp_ge_u32 s28, 9"); E("s_cbranch_scc1 L_sdone")
    E("s_cmp_ge_u32 s3, 5"); E("s_cbranch_scc1 L_sdone")
    E("s_lshl_b32 s28, s3, 6"); E("v_add_u32 v2, s28, v0"); E("v_min_u32 v2, 287, v2")
    tagbyte(22, 2)
    E("v_lshlrev_b32 v1, 4, v2")
    E("v_lshlrev_b32 v2, 2, v2")
    E("s_mul_i32 s18, s4, 9216"); E(f"s_add_u32 s18, s18, {G_OFF}"); E("s_add_u32 s19, s18, 4608")
    E(f"v_mov_b32 v8, {LOG2E ^ 0x80000000}"); E("v_mov_b32 v9, v8"); E("v_mov_b32 v10, 1.0"); E("v_mov_b32 v11, 1.0")
    E("v_mov_b32 v3, 0")
    Rh = lambda t: 40 + 8 * t
    def gloads(t):
        E(f"buffer_load_dwordx4 v[{Rh(t)}:{Rh(t)+3}], v1, s[24:27], s18 offen sc1"); E(f"buffer_load_dwordx4 v[{Rh(t)+4}:{Rh(t)+7}], v1, s[24:27], s19 offen sc1")
    E("s_cbranch_execz L_hgo")
    E("s_waitcnt lgkmcnt(0)")
    E("s_barrier"); E("s_barrier")
    gloads(0)
    E("s_barrier"); E("s_barrier")
    E("s_waitcnt vmcnt(0)")
    E.label("L_hgo")
    stamp(6)
    def gfin(t):
        g, u = Rh(t), Rh(t) + 4
        E(f"v_pk_mul_f32 v[4:5], v[{g}:{g+1}], v[8:9]"); E(f"v_pk_mul_f32 v[6:7], v[{g+2}:{g+3}], v[8:9]")
        E(f"v_pk_mul_f32 v[16:17], v[{u}:{u+1}], v[{g}:{g+1}]"); E(f"v_pk_mul_f32 v[18:19], v[{u+2}:{u+3}], v[{g+2}:{g+3}]")
    ppoll(PG, 2, gloads, lambda t: lowcheck(20, [Rh(t), Rh(t)+2, Rh(t)+4, Rh(t)+6], 22), gfin)
    for e in range(4): E(f"v_exp_f32 v{4+e}, v{4+e}")
    E("v_pk_add_f32 v[4:5], v[4:5], v[10:11]"); E("v_pk_add_f32 v[6:7], v[6:7], v[10:11]")
    for e in range(4): E(f"v_rcp_f32 v{4+e}, v{4+e}")
    E("v_pk_mul_f32 v[16:17], v[16:17], v[4:5]"); E("v_pk_mul_f32 v[18:19], v[18:19], v[6:7]")
    E("v_cvt_pk_bf16_f32 v12, v16, v18"); E("v_cvt_pk_bf16_f32 v13, v17, v19")
    E(f"ds_write_b32 v2, v12 offset:{ACT0}"); E(f"ds_write_b32 v2, v13 offset:{ACT1}")
    E("s_waitcnt lgkmcnt(0)")
    E("s_cbranch_execz L_ret_s")
    E("s_barrier")
    stamp(7)
    E.label("L_sdone")
    E("s_cbranch_execz L_ret_s")
    stamp_flush(); E("s_endpgm")

    E.label("L_tailprep")
    E("s_mov_b64 s[88:89], -1")
    if reh:
        E("s_cmp_lg_u32 s3, 2"); E("s_cbranch_scc1 L_tp2")
        E("s_mov_b32 s6, 3"); E("s_mov_b32 s29, 0"); E("v_mov_b32 v2, 0")
        walk("L_reduce", "L_ret_s")
        E.label("L_tp2")
    else:
        E.label("L_ret_s")
    E("s_cmp_lt_u32 s5, 27"); E("s_cbranch_scc1 L_tail1")
    E("s_sub_u32 s28, s2, 224"); E("s_cmp_ge_u32 s28, 6"); E("s_cbranch_scc1 L_svc_end")
    lds_wait(C_GO, 4, 1, 8, sleep=4)
    if lj == 0: lds_wait(C_OC, ko, 1, 8, sleep=2)
    elif lj == 1: lds_wait(C_CNT, 8, 1, 8, sleep=4)
    elif lj == 2: lds_wait(C_V2, 1, 1, 8, sleep=4)
    E("s_mov_b32 s21, 2"); E("s_add_u32 s22, s4, 48"); E("s_mov_b32 s18, 8"); E("s_branch L_job")
    E.label("L_tail1")
    E("s_cmp_lt_u32 s5, 9"); E("s_cbranch_scc1 L_owner")

    def wsetup():
        op_addrs()
        E(f"v_mov_b32 v8, {ZBUF}"); E(f"v_mov_b32 v9, {CBUF}"); E(f"v_mov_b32 v10, {SBUF}")
        E("v_cmp_eq_u32 vcc, 1, v6"); E("v_cndmask_b32 v4, v8, v9, vcc"); E("v_cmp_eq_u32 vcc, 2, v6"); E("v_cndmask_b32 v4, v4, v10, vcc")
        E("v_bfe_u32 v7, v0, 2, 1"); E("v_mul_u32_u24 v7, 1152, v7"); E("v_lshl_add_u32 v7, v5, 4, v7"); E("v_add_u32 v4, v4, v7")
        E("v_and_b32 v3, 1, v0"); E("v_xor_b32 v3, 1, v3"); E(f"v_mul_u32_u24 v3, {ACT0-ACT1}, v3"); E("v_lshl_add_u32 v3, v5, 4, v3")
        E("s_sub_u32 s30, s5, 9"); E("s_lshl_b32 s30, s30, 2"); E("s_add_u32 s30, s30, s3")
        E("s_lshl_b32 @S0@, s30, 7"); E("s_mul_i32 s29, s4, 9216"); E("s_add_u32 @S0@, @S0@, s29"); E(f"s_add_u32 @S0@, @S0@, {G_OFF}")
        E(f"s_mul_i32 @S1@, s4, {ZS}"); E(f"s_add_u32 @S1@, @S1@, {Z_OFF}")
        E(f"s_sub_u32 s30, s5, {JW2}"); E("s_lshl_b32 s30, s30, 2"); E("s_add_u32 s30, s30, s3"); E("s_lshl_b32 s30, s30, 7")
        E("s_lshl_b32 @S2@, s4, 14"); E("s_add_u32 @S2@, @S2@, s30"); E(f"s_add_u32 @S2@, @S2@, {Y_OFF}"); E("s_add_u32 @S6@, @S2@, 8192")
        E("s_mul_i32 s28, s3, 45"); E("v_min_u32 v12, 44, v0"); E("v_add_u32 v12, s28, v12"); E("v_lshlrev_b32 v12, 4, v12")
        E("v_and_b32 v8, 15, v0"); E("v_lshrrev_b32 v9, 5, v0"); E("v_lshl_add_u32 v9, v9, 4, v8"); E("v_cmp_gt_u32 vcc, 18, v9")
        E("v_bfe_u32 v10, v0, 4, 1"); E("v_mul_u32_u24 v11, 288, v10"); E("v_lshl_add_u32 v16, v9, 4, v11"); E(f"v_add_u32 v16, {ZBUF + 2304}, v16")
        E(f"v_mov_b32 v9, {ZERO}"); E("v_cndmask_b32 v16, v9, v16, vcc")
        E("v_and_b32 v8, 3, v0"); E("v_lshlrev_b32 v8, 2, v8"); E(f"ds_write_b32 v8, v1 offset:{ZERO}")
        E("v_lshlrev_b32 v7, 3, v0")
        E("s_mov_b32 @S4@, 0x3ae38e39"); E("s_mov_b32 @S5@, 0x3727c5ac")
    if reh:
        E("s_cmp_lg_u32 s3, 1"); E("s_cbranch_scc1 L_now_w")
        wsetup()
        E("s_mov_b32 s6, 3")
        walk("L_wt", "L_ret_w")
        E.label("L_now_w")
    else: E.label("L_ret_w")
    if 't' not in dbg:
        lds_wait(C_Q, 1, 1, 8, sleep=8)
        mktag()
        own_map()
        modgather(1728, 2304)
        for i in range(3):
            E(f"v_add_f32 v{30+2*i}, 1.0, v{30+2*i}"); E(f"v_add_f32 v{31+2*i}, 1.0, v{31+2*i}")
            E(f"v_cvt_pk_bf16_f32 v12, v{30+2*i}, v{31+2*i}"); E(f"v_cvt_pk_bf16_f32 v13, v{24+2*i}, v{25+2*i}")
            a_, o_ = ((10, 0), (10, 128), (11, 0))[i]
            E(f"ds_write_b32 v{a_}, v12 offset:{CBUF+o_}"); E(f"ds_write_b32 v{a_}, v13 offset:{SBUF+o_}")
    lds_wait(C_BAR, 1, 1, 8, sleep=4)
    E("s_mov_b32 s6, s28")
    wsetup()
    E("s_mov_b32 s20, 9216")
    dma_addrs(24, 25, 26)
    E("s_cmp_ge_u32 s5, 18"); E("s_cselect_b32 s8, s50, s48"); E("s_cselect_b32 s9, s51, s49"); E("s_cselect_b32 s28, 18, 9"); E("s_sub_u32 s28, s5, s28")
    E(f"s_mov_b32 s10, {576*9216}"); E("s_mov_b32 s11, 0x20000")
    E("s_mul_i32 s16, s4, 1152"); E("s_lshl_b32 s28, s28, 7"); E("s_add_u32 s16, s16, s28")
    E(f"s_mul_i32 s28, s3, {8*9216}"); E("s_add_u32 s16, s16, s28"); E(f"s_mov_b32 s17, {32*9216}")
    E("s_lshl_b32 s29, s3, 10"); E(f"s_add_u32 s29, s29, {SLOT_A}"); E("s_mov_b32 s19, 9")
    E("s_bitcmp1_b32 s3, 0"); E("s_cselect_b64 vcc, -1, 0"); E("v_cndmask_b32 v24, v24, v25, vcc")
    E("v_lshrrev_b32 v5, 1, v0"); tagbyte(5, 5)

    if tlb:
        E(f"v_mul_u32_u24 v26, {143*9216}, v0"); E("s_mov_b64 exec, 3"); E("buffer_load_dword v27, v26, s[8:11], s16 offen nt"); E("s_mov_b64 exec, -1")
    if NP or NP3:
        E("s_bfe_u32 s30, s16, 0x30007"); E("s_cmp_eq_u32 s30, 3"); E(f"s_cselect_b32 s19, {NP3}, {NP}"); E("s_sub_u32 s31, 9, s19")
        E("s_cmp_eq_u32 s19, 0"); E("s_cbranch_scc1 L_nol1")
        if NL: lds_wait(C_CNT, 8, 1, 8, sleep=4)
        else: lds_wait(C_VH, 1, 1, 8, sleep=4)
        dma_loop("L_dma_l1", DW1, 24, 24, 4096)
        E.label("L_nol1")
        E("s_mov_b32 s19, s31")
    if k1:
        lds_wait(C_OC, k1, 1, 8, sleep=1)
        E(f"s_sub_u32 s31, s19, {N1}"); E(f"s_mov_b32 s19, {N1}"); dma_loop("L_dma_l2", 0, 24, 24, 4096); E("s_mov_b32 s19, s31")
    if N2:
        assert not gate
        lds_wait(C_GT, k2, 1, 8, sleep=1)
        E(f"s_sub_u32 s31, s19, {N2}"); E(f"s_mov_b32 s19, {N2}"); dma_loop("L_dma_l3", 0, 24, 24, 4096); E("s_mov_b32 s19, s31")
    if gate:
        E("s_cmp_lg_u32 s3, 1"); E("s_cbranch_scc1 L_gt2")
        lds_wait(C_VH, 1, 1, 8, sleep=2)
        E(f"s_cmp_lg_u32 s5, {gj}"); E("s_cbranch_scc1 L_gt1")
        E("s_lshl_b32 s28, s4, 7"); E(f"s_add_u32 s28, s28, {PG_OFF}"); E("v_mov_b32 v8, s35")
        E("s_mov_b64 exec, 1"); E("buffer_store_dword v8, v1, s[24:27], s28 offen sc1"); E("s_mov_b64 exec, -1")
        E.label("L_gt1")
        lds_wait(C_OC, gk, 1, 8, sleep=1)
        E(f"s_mov_b32 s30, {PG_OFF}"); E("v_and_b32 v9, 7, v0"); E("v_lshlrev_b32 v9, 7, v9"); E("s_mov_b32 s7, 0")
        E.label("L_gtp")
        E("buffer_load_dword v8, v9, s[24:27], s30 offen sc1"); E("s_waitcnt vmcnt(0)")
        E("v_cmp_eq_u32 vcc, s35, v8"); E("s_bcnt1_i32_b64 s31, vcc")
        E(f"s_cmp_ge_u32 s31, {gate*8}"); E("s_cbranch_scc1 L_gtd")
        E(f"s_sleep {gsl}"); E("s_add_u32 s7, s7, 1"); E(f"s_cmp_lt_u32 s7, {plim}"); E("s_cbranch_scc1 L_gtp")
        E.label("L_gtd")
        lds_set(C_GT, 1, 8, 1)
        E.label("L_gt2")
        lds_wait(C_GT, 1, 1, 8, sleep=2)
    lds_wait(C_OC, ko, 1, 8, sleep=1)
    if prio: E(f"s_setprio {prio}")
    stamp(5)
    if 'w' not in dbg: dma_loop("L_dma_late", DW, 24, 24, 4096)
    if 't' in dbg:
        E("s_waitcnt vmcnt(0)"); stamp(6); E("s_branch L_svc_end")
    Rz = lambda t: 84 + 4 * t
    def zload(t): E(f"buffer_load_dwordx4 v[{Rz(t)}:{Rz(t)+3}], v12, s[24:27], @S1@ offen sc1")
    def zcheck(t):
        E(f"ds_write_b128 v12, v[{Rz(t)}:{Rz(t)+3}] offset:{ZBUF}")
        E(f"v_max3_u32 v8, v{Rz(t)}, v{Rz(t)+1}, v{Rz(t)+2}"); E(f"v_max_u32 v8, v8, v{Rz(t)+3}"); E("v_cmp_eq_u32 vcc, -1, v8")
    E(f"s_waitcnt vmcnt({18-KA})")
    E("s_barrier")
    E.label("L_wt")
    stage_b(SLOT_A, KA, wait=False, t=9)
    E(f"s_waitcnt vmcnt({ZL})")
    zload(0)
    E("s_cbranch_execz L_wt2")
    E("s_waitcnt vmcnt(1)")
    E("s_barrier")
    stamp(6)
    E.label("L_wt2")
    stage_b(SLOT_A, 18, wait=False, k0=KA, t=9)
    stamp(7)
    E("s_mov_b32 s7, 0"); E("s_branch L_zchk")
    E.label("L_zpl")
    zload(0)
    E.label("L_zchk")
    E("s_waitcnt vmcnt(0)")
    zcheck(0)
    E("s_cbranch_vccz L_zok")
    E("s_add_u32 s7, s7, 1"); E(f"s_cmp_lt_u32 s7, {plim}"); E("s_cbranch_scc1 L_zpl")
    E.label("L_zok")
    E("s_waitcnt lgkmcnt(0)")
    live("s_barrier")
    stamp(8)
    NSP = 2
    for k in range(NSP): E(f"ds_read_b128 v[{AT(k)}:{AT(k)+3}], v4 offset:{k*64}")
    E("ds_read_b128 v[20:23], v16")
    F = ["v_pk_add_f32 v[18:19], v[20:21], v[22:23]", "v_permlane32_swap_b32 v18, v19", "v_add_f32 v18, v18, v19"]
    F += [f"v_add_f32_dpp v18, v18, v18 row_ror:{k} row_mask:0xf bank_mask:0xf" for k in (1, 2, 4, 8)]
    F += ["v_mul_f32 v18, @S4@, v18", "v_mov_b32 v19, v18", "v_permlane32_swap_b32 v18, v19", "v_fma_f32 v19, -v18, v18, v19", "v_max_f32 v19, 0, v19"]
    R = lambda r: [f"v_cvt_pk_bf16_f32 v{r}, v{r}, v{r}", f"v_and_b32 v{r}, 0xffff0000, v{r}"]
    if mim: F += R(19) + ["v_add_f32 v19, @S5@, v19"] + R(19) + ["v_sqrt_f32 v19, v19"] + R(18) + R(19) + ["v_rcp_f32 v19, v19"]
    else: F += ["v_add_f32 v19, @S5@, v19", "v_rsq_f32 v19, v19"]
    gemv(4, 0, 18, 8, F, pre=NSP, extra=1)
    E("v_fma_f32 v8, -v18, v9, v8"); E("v_fma_f32 v8, v8, v19, v10")
    E("v_mov_b32 v9, v8"); E("v_permlane16_swap_b32 v8, v9")
    settag(8, 5)
    E(X(0xffff))
    intra_store(["buffer_store_dwordx2 v[8:9], v7, s[24:27], @S0@ offen"])
    E(X(-1))
    stamp(13)
    E(f"s_sub_u32 s28, s5, {JW2}"); E("s_cmp_ge_u32 s28, 9"); E("s_cbranch_scc1 L_wend")
    live("s_barrier")
    stage_b(SLOT_B, 18)
    tagbyte(5, 0)
    live("s_barrier")
    stamp(14)
    gemv(3, ACT1, 18, 8)
    settag(8, 5)
    E(X(0xffff))
    E("buffer_store_dwordx2 v[8:9], v7, s[24:27], @S2@ offen sc1")
    if numa: E("buffer_store_dwordx2 v[8:9], v7, s[24:27], @S6@ offen sc1")
    stamp(15)
    E.label("L_wend")
    E("s_cbranch_execz L_ret_w")
    E("s_branch L_svc_end")

    E.label("L_owner")
    if 't' in dbg: E("s_waitcnt vmcnt(0)"); E("s_branch L_svc_end")
    E("s_waitcnt vmcnt(0)")
    lds_inc(C_D1, 1, 8)
    mktag()
    op_addrs()
    E("s_lshl_b32 s22, s5, 2"); E("s_add_u32 s22, s22, s3")
    E("v_and_b32 v6, 15, v0"); E("v_bfe_u32 v7, v0, 4, 1"); E("v_lshrrev_b32 v20, 4, v0"); E("v_lshlrev_b32 v20, 14, v20"); E("v_lshl_add_u32 v20, v6, 3, v20")
    E("v_mul_u32_u24 v21, 1152, v7"); E("v_lshl_add_u32 v21, v6, 1, v21")
    E("v_mul_u32_u24 v22, 288, v7")
    E("v_lshlrev_b32 v23, 3, v6")
    E("v_cmp_eq_u32 vcc, 0, v7"); E("v_mov_b32 v19, 0x03020c0c"); E("v_mov_b32 v6, 0x01000c0c"); E("v_cndmask_b32 v19, v19, v6, vcc")
    E("s_lshl_b32 s23, s22, 5")
    srd(8, 36, 2304); srd(12, 58, 2304)
    E("s_lshl_b32 s28, s22, 7"); E(f"s_add_u32 s32, s28, {MOD_OFF + 1152*8}"); E(f"s_add_u32 s33, s32, {1152*8}"); E(f"s_add_u32 s19, s33, {576*8}")
    E("s_lshl_b32 s29, s4, 14"); E("s_add_u32 s29, s29, s28")
    E(f"s_add_u32 s18, s29, {X_OFF}"); E(f"s_add_u32 s{SO(4)}, s18, 8192")
    XS = SO
    for k in range(4): E(f"s_add_u32 s{XS(k)}, s28, {(X_OFF, X_OFF + 4*16384, Y_OFF, Y_OFF + 4*16384)[k]}")
    E(f"s_mul_i32 s20, s4, {ZS}"); E("s_add_u32 s20, s20, s23"); E(f"s_add_u32 s20, s20, {Z_OFF}")
    E(f"s_mul_i32 s21, s4, {ZS}"); E("s_lshl_b32 s28, s22, 3"); E("s_add_u32 s21, s21, s28"); E(f"s_add_u32 s21, s21, {ST_OFF}")
    E("s_lshl_b32 s28, s4, 5"); E("s_lshl_b32 s29, s3, 3"); E("s_add_u32 s28, s28, s29")
    E("s_lshl_b32 s16, s28, 10"); E("s_add_u32 s17, s16, 4096")
    E("v_lshlrev_b32 v7, 3, v0"); E("v_mov_b32 v6, 0")
    if reh:
        E("s_cmp_lg_u32 s3, 1"); E("s_cbranch_scc1 L_now_o")
        E("s_mov_b32 s6, 3")
        walk("L_ot", "L_ret_o")
        E.label("L_now_o")
    else: E.label("L_ret_o")
    if numa:
        E("s_cmp_lg_u32 s3, 2"); E("s_cbranch_scc1 L_nonuma")
        E("s_lshl_b32 s28, s4, 14"); E("s_lshl_b32 s29, s5, 8"); E("s_add_u32 s28, s28, s29"); E(f"s_add_u32 s28, s28, {X_OFF + 4608}")
        NPR = 4
        for k in range(NPR):
            E(f"s_add_u32 s{36+2*k}, s28, {(k & 1) * 0x20000 + (k >> 1) * 1152}"); E(f"s_add_u32 s{37+2*k}, s{36+2*k}, 8192")
        for k in range(2 * NPR): E(f"s_buffer_load_dword s{44+k}, s[24:27], s{36+k} glc")
        E("s_mov_b32 s30, 0"); E("s_mov_b32 s31, 0")
        E("s_waitcnt lgkmcnt(0)")
        E.label("L_numa")
        for k in range(NPR):
            order = (0, 1) if k & 1 else (1, 0)
            sec = order[1]
            E(f"s_not_b32 s{52+sec}, s{44+2*k+sec}")
            for c in order: E(f"s_buffer_load_dword s{52+c}, s[24:27], s{36+2*k+c} glc")
            E("s_waitcnt lgkmcnt(1)"); E("s_nop 7")
            E(f"s_cmp_{'eq' if sec else 'lg'}_u32 s{52+sec}, s{44+2*k+sec}"); E("s_addc_u32 s30, s30, 0")
            E("s_waitcnt lgkmcnt(0)")
        E("s_add_u32 s31, s31, 1"); E(f"s_cmp_lt_u32 s31, {NRR}"); E("s_cbranch_scc1 L_numa")
        if pool:
            E("s_lshl_b32 s31, s4, 7"); E(f"s_add_u32 s31, s31, {VT_OFF}"); E("s_lshl_b32 s29, s5, 3"); E("s_add_u32 s29, s29, s31")
            E("v_mov_b32 v24, s30"); E("v_mov_b32 v25, s35")
            E("s_mov_b64 exec, 1"); E("buffer_store_dwordx2 v[24:25], v1, s[24:27], s29 offen sc1"); E("s_mov_b64 exec, -1")
            lds_wait(C_CNT, 8, 1, 8, sleep=8)
            E("v_min_u32 v26, 64, v23")
            def vtbody():
                E("buffer_load_dwordx2 v[24:25], v26, s[24:27], s31 offen sc1"); E("s_waitcnt vmcnt(0)"); tagcheck(27, [25])
            poll(vtbody, 16)
            E("v_cmp_gt_u32 vcc, 72, v23"); E("v_cndmask_b32 v24, 0, v24, vcc")
            row_reduce("v_add_u32", 24, (1, 2, 4, 8))
            E("v_readfirstlane_b32 s30, v24")
        if stamps is True: E("s_mov_b32 s71, s30"); stamp(2)
        E(f"s_cmp_gt_u32 s30, {(9 if pool else 1)*NPR*NRR//2}"); E(f"s_cselect_b32 s30, {8193 if numa == 1 else 1}, {1 if numa == 1 else 8193}")
        lds_set(C_NR, 1, 8, "s30")
        E.label("L_nonuma")
    lds_wait(C_BAR, 1, 1, 8, sleep=8)
    E("s_mov_b32 s6, s28")
    lds_wait(C_D1, 4, 1, 8, sleep=4)
    stage_b(SLOT_A, 16)
    E("buffer_load_ushort v16, v21, s[8:11], s23 offen")
    E("v_lshrrev_b32 v28, 5, v0"); E("v_lshlrev_b32 v28, 6, v28"); E("v_and_b32 v29, 15, v0"); E("v_lshl_add_u32 v28, v29, 1, v28"); E("v_add_u32 v28, v28, v21")
    E("buffer_load_dword v2, v28, s[8:11], 0 offen")
    def gabody():
        for k in range(2): E(f"buffer_load_dwordx2 v[{24+2*k}:{25+2*k}], v23, s[24:27], s{32+k} offen sc1")
        E("s_waitcnt vmcnt(0)")
        tagcheck(6, [25, 27])
    poll(gabody, 8)
    for k in range(2): E(f"v_perm_b32 v{17+k}, v{24+2*k}, v{24+2*k}, v19")
    E("v_lshlrev_b32 v16, 16, v16"); E("v_add_f32 v18, 1.0, v18"); rnd(18, 18)
    E("v_lshlrev_b32 v28, 16, v2"); E("v_and_b32 v2, 0xffff0000, v2"); E("v_add_f32 v2, v2, v28")
    row_reduce("v_add_f32", 2, (1, 2, 4, 8)); swap_reduce("v_add_f32", 2, 28, 32); E("v_mul_f32 v2, 0x3c800000, v2")
    E("v_lshlrev_b32 v5, 4, v0")
    E("s_lshr_b32 s28, s3, 1"); E("s_mul_i32 s28, s28, 1152"); E("s_and_b32 s29, s3, 1"); E("s_lshl_b32 s29, s29, 9"); E("s_add_u32 s28, s28, s29")
    E("v_add_u32 v6, s28, v7")
    lds_wait(C_V2, 1, 1, 8, sleep=8)
    E("s_lshl_b32 s28, s4, 5"); E("s_lshl_b32 s29, s3, 3"); E("s_add_u32 s28, s28, s29")
    E("s_lshl_b32 s28, s28, 5"); E(f"s_add_u32 s28, s28, {ML_OFF}")
    E("v_and_b32 v28, 15, v0"); E("v_lshlrev_b32 v28, 4, v28")
    def mlbody():
        E("buffer_load_dwordx4 v[24:27], v28, s[24:27], s28 offen sc1"); E("s_waitcnt vmcnt(0)"); tagcheck(29, [26])
    tagbyte(4, 0)
    poll(mlbody, sl_ml)
    E(f"s_mov_b32 s31, {LOG2E}")
    E("v_mov_b32 v27, v24"); row_reduce("v_max_f32", 27, (2, 4, 8))
    E("v_sub_f32 v27, v24, v27"); E("v_mul_f32 v27, s31, v27"); E("v_exp_f32 v27, v27"); E("v_mul_f32 v28, v27, v25")
    row_reduce("v_add_f32", 28, (2, 4, 8))
    E("v_rcp_f32 v28, v28"); E("v_lshrrev_b32 v26, 5, v0"); E("v_lshlrev_b32 v26, 2, v26"); E("v_mul_f32 v27, v27, v28")
    for s_ in range(8): E(f"ds_bpermute_b32 v{8+s_}, v26, v27 offset:{8*s_}")
    E("s_waitcnt lgkmcnt(0)")
    if numa:
        lds_wait(C_NR, 1, 1, 24, sleep=4)
        E("s_sub_u32 s28, s28, 1"); E("v_add_u32 v20, s28, v20")
    stamp(6)
    lds_wait(C_OC, 8, 1, 24, sleep=1)
    stamp(7)
    E.label("L_ot")
    def obody():
        for s in range(8): E(f"buffer_load_dwordx4 v[{24+4*s}:{27+4*s}], v5, s[24:27], s{16 + s//4} offen offset:{(s%4)*1024} sc1")
        for s in range(8):
            E(f"s_waitcnt vmcnt({7-s})")
            E(f"v_xor_b32 v{24+4*s}, v4, v{24+4*s}")
            for k in (1, 2, 3, 0):
                if s == 0: E(f"v_mul_f32 v{56+k}, v8, v{24+k}")
                else: E(f"v_fmac_f32 v{56+k}, v{8+s}, v{24+4*s+k}")
            if s == 2: E("v_or3_b32 v60, v24, v28, v32")
            if s in (4, 6): E(f"v_or3_b32 v60, v60, v{20+4*s}, v{24+4*s}")
        E("v_cvt_pk_bf16_f32 v56, v56, v57"); E("v_cvt_pk_bf16_f32 v57, v58, v59")
        E(f"ds_write_b64 v6, v[56:57] offset:{ABUF}")
        E("v_or_b32 v60, v60, v52"); E("v_and_b32 v60, 0xfff, v60"); E("v_cmp_ne_u32 vcc, 0, v60")
    poll(obody, sl_o)
    stamp(8)
    E("s_waitcnt lgkmcnt(0)")
    live("s_barrier")
    gemv(3, ABUF, 16, 8)
    settag(8, 4)
    E(X(0xffff))
    E("buffer_store_dwordx2 v[8:9], v7, s[24:27], s18 offen sc1")
    if numa: E(f"buffer_store_dwordx2 v[8:9], v7, s[24:27], s{SO(4)} offen sc1")
    E(X(-1))
    stamp(9)
    def gather8(base):
        Rg = lambda t: 32 + 4 * t
        def loads(t):
            E(f"buffer_load_dwordx2 v[{Rg(t)}:{Rg(t)+1}], v20, s[24:27], s{XS(base)} offen sc1")
            E(f"buffer_load_dwordx2 v[{Rg(t)+2}:{Rg(t)+3}], v20, s[24:27], s{XS(base+1)} offen sc1")
        ppoll(PX, 2, loads, lambda t: lowcheck(28, [Rg(t), Rg(t)+2], 4),
              lambda t: E(f"v_pk_add_f32 v[24:25], v[{Rg(t)}:{Rg(t)+1}], v[{Rg(t)+2}:{Rg(t)+3}]"))
    def fold8():
        E("v_permlane16_swap_b32 v24, v25"); E("v_add_f32 v24, v24, v25"); swap_reduce("v_add_f32", 24, 25, 32)
    if xwait: E("s_waitcnt vmcnt(0)")
    gather8(0)
    stamp(10)
    fold8()
    rnd(24, 24); E("v_mul_f32 v24, v17, v24"); rnd(24, 24); E("v_add_f32 v16, v16, v24"); rnd(16, 16)
    E("v_sub_f32 v26, v16, v2")
    E("v_mul_f32 v24, v26, v18"); E("v_mul_f32 v27, v26, v26")
    E("v_add_f32_dpp v26, v26, v26 row_ror:1 row_mask:0xf bank_mask:0xf")
    E("v_mov_b32_dpp v25, v24 quad_perm:[1,1,3,3] row_mask:0xf bank_mask:0xf")
    E("v_add_f32_dpp v27, v27, v27 row_ror:1 row_mask:0xf bank_mask:0xf")
    E("v_cvt_pk_bf16_f32 v24, v24, v25")
    rest = []
    for k in (2, 4, 8):
        rest += [f"v_add_f32_dpp v{r}, v{r}, v{r} row_ror:{k} row_mask:0xf bank_mask:0xf" for r in (26, 27)]
    intra_store([X(0x55555555), "buffer_store_dword v24, v21, s[24:27], s20 offen", X(-1)] + rest +
                [X(0x10001), "buffer_store_dwordx2 v[26:27], v22, s[24:27], s21 offen"])
    E(X(-1))
    stamp(11)
    E("s_and_b32 s28, s5, 7"); E("s_cmp_lg_u32 s28, s4"); E("s_cbranch_scc1 L_oend")
    E("v_and_b32 v5, 15, v0"); E("v_lshlrev_b32 v5, 3, v5")
    def gbbody():
        E("buffer_load_dwordx2 v[24:25], v5, s[24:27], s19 offen sc1"); E("s_waitcnt vmcnt(0)"); tagcheck(6, [25])
    poll(gbbody, 1)
    E("v_perm_b32 v19, v24, v24, v19")
    gather8(2)
    stamp(14)
    fold8()
    rnd(24, 24); E("v_mul_f32 v24, v19, v24"); rnd(24, 24); E("v_add_f32 v24, v16, v24")
    E("v_mov_b32_dpp v25, v24 quad_perm:[1,1,3,3] row_mask:0xf bank_mask:0xf")
    E("v_cvt_pk_bf16_f32 v24, v24, v25")
    E(X(0x55555555))
    E(f"buffer_store_dword v24, v21, s[12:15], s23 offen {of}")
    stamp(15)
    E.label("L_oend")
    E("s_cbranch_execz L_ret_o")
    E("s_or_b32 s28, s22, s4"); E("s_cbranch_scc1 L_svc_end")
    E(X(1)); E("v_mov_b32 v24, s35"); E(f"s_mov_b32 s28, {EP_OFF}")
    E(f"buffer_store_dword v24, v1, s[24:27], s28 offen {of}")
    if probe is not None:
        if probe == 'amp':
            E("s_memrealtime s[92:93]"); E("s_waitcnt lgkmcnt(0)"); E("s_sub_u32 s29, s92, s86"); E("s_mul_i32 s29, s29, 10"); E("s_add_u32 s29, s29, s86")
        else: E(f"s_add_u32 s29, s{70+probe}, 6000")
        E.label("L_probe")
        E("s_sleep 1"); E("s_memrealtime s[92:93]"); E("s_waitcnt lgkmcnt(0)"); E("s_sub_u32 s28, s29, s92"); E("s_cmp_gt_i32 s28, 0"); E("s_cbranch_scc1 L_probe")
    E.label("L_svc_end")
    E("s_waitcnt lgkmcnt(0)")
    if stamps: E("s_add_u32 s3, s3, 8")
    stamp_flush()
    E("s_endpgm")
    for a_, b_, ins in cold:
        E.label(a_)
        for i in ins: E(i + (" sc1" if i.startswith("buffer_") else ""))
        E(f"s_branch {b_}")
    E.label("L_exit")
    E.lines = [re.sub(r'@S(\d)@', lambda m: 's%d' % SO(int(m.group(1))), l) for l in E.lines]
    body = E.finish()
    verify_stream(body)
    return HDR + f"""; @launch grid=(256,1,1) block=(768,1,1) lds=163840
.amdgcn_target "amdgcn-amd-amdhsa--gfx950"
.text
.globl {NAME}_kernel
.p2align 8
.type {NAME}_kernel,@function
{NAME}_kernel:
{body}
    s_endpgm
.section .rodata,"a"
.p2align 6
.amdhsa_kernel {NAME}_kernel
  .amdhsa_next_free_vgpr 168
  .amdhsa_next_free_sgpr 102
  .amdhsa_accum_offset 168
  .amdhsa_group_segment_fixed_size 0
  .amdhsa_kernarg_size 112
  .amdhsa_float_denorm_mode_32 3
  .amdhsa_user_sgpr_count 2
  .amdhsa_user_sgpr_kernarg_segment_ptr 1
  .amdhsa_system_sgpr_workgroup_id_x 1
.end_amdhsa_kernel
"""

def verify_stream(body):
    import re
    lines = [l.strip() for l in body.split('\n')]
    a = lines.index('L_k0:'); b = lines.index('L_service:'); c = lines.index('L_stream:'); d = lines.index('L_noreduce:')
    path = lines[a:b] + lines[c:d]
    issued = []; landed = 0; skip = None; last = {}
    for l in path:
        if skip:
            if l == skip + ':': skip = None
            continue
        m = re.match(r's_cbranch_scc1 (L_th_\d+)', l)
        if m: skip = m.group(1); continue
        m = re.match(r'buffer_load_dwordx4 v\[(\d+):', l)
        if m: issued.append(int(m.group(1))); last[int(m.group(1))] = len(issued); continue
        if re.match(r'buffer_load_dwordx4 v1, .* lds', l): issued.append(-1); nlds = len(issued); continue
        m = re.match(r'ds_read_b128 v\[(\d+):\d+\], v3 ', l)
        if m: assert landed >= nlds; last.pop(int(m.group(1)), None); continue
        m = re.search(r'vmcnt\((\d+)\)', l)
        if m: landed = max(landed, len(issued) - int(m.group(1))); continue
        m = re.match(r'v_mfma\S+ v\[(\d+):\d+\], v\[(\d+):\d+\], v\[(\d+):', l)
        if m:
            for r in (int(m.group(2)), int(m.group(3))):
                if r in last: assert last[r] <= landed, f"unwaited operand: {l}"
    assert len(issued) == 64 and landed == 64

HDR = """; adaLN-conditioned GQA decode attention + SwiGLU block in one persistent launch (written by a generator script).
;
"""
if __name__ == '__main__':
    kw = eval('dict(' + (sys.argv[2] if len(sys.argv) > 2 else '') + ')')
    open(sys.argv[1], 'w').write(gen(**kw))
```

```python
import sys, re
from emit import Emit
NAME = 'adaLN_cond__gqa_block_cached__glu_gated_swiglu__decode'

O_OFF, G_OFF = 0x0, 0x40000
X_OFF, Y_OFF = 0x80000, 0xA0000
Z_OFF, ML_OFF = 0x64000, 0x6C000; ZS = 3072; ST_OFF = Z_OFF + 2304
EP_OFF = 0xC0000
FL_OFF = 0xC1000
PG_OFF = 0xC3000
VT_OFF = 0xC2000
Q_OFF, MOD_OFF = 0xC8000, 0xD0000
STAMP_OFF = 0x100000
WS_SIZE = 0x200000
C_BAR, C_Q, C_CNT, C_D1, C_D2, C_GT, C_GO, C_J1, C_J2, C_KH, C_VH, C_OC, C_FAC, C_V2, C_G, C_NR = range(0, 64, 4)
FAC, MLB, QBUF = 64, 128, 256
CBUF, SBUF = 1216, 3552
WGT, AROW = 768, 1088
ABUF = 1216
ACT0, ACT1 = 15104, 64
ZERO = 5856
JBUF, ZBUF, OBUF = 5888, 5888, 8192
SLOT_A, SLOT_B = 16384, 90112
LOG2E = 0x3fb8aa3b
SCALE = 0x3db504f3
JW2, JQ0 = 15, 19

def gen(D=3, DV=3, DQ=3, stamps=False, force_slow=False, sl_long=2, sl_bar=16, gateq=0, kvf='nt', wf='nt',
        plim=0x20000, probe=None, cpf=3, sl_o=0, sl_z=0, dbg='', XW=(0,0,0,0,3,4), XD=1, sl_ml=32, kh=29, sl_q=16,
        XG=1, DE=5, NE=10, kv=12, DW=0, DEA=0, DJ=0, K0=3, DJQ=0, EB=0, QB=0, ko=9, omask=0, xwait=0, NP=0, DW1=2, NP3=2, XL=0, k1=0, N1=2, PX=2, PG=1, hg=1, reh=1, oack=0, tlb=0, warm='', NL=4, v2=20, qs=1, numa=1, NRR=2, pool=1, KA=14, ZL=1, gate=0, gj=20, gsl=2, gk=6, N2=2, k2=8, jreh=1, xe=1, fb=0, fbg=20, fbo=0, fbv=12, fbl=0, fbm=0, XN=(6,12,22,14,18,60,24,42), km=12, LE=(), prio=3, gw=9, gs=1, kms=1, of='', sf='', pf='', LX=1, pat=dict(G=[8,9],W=[12,13,14],T=[(10,15),11,15,16,17],J=[(),10,15,16,(10,17)],X=[15,16,(10,17)]), XM=0, XMN=0, AD=6, mim=0, wn=22, wsl=4, XL2=11, XL1=4, NP1=0):
    assert ko == 9
    E = Emit()
    uid = [0]
    def L(p):
        uid[0] += 1
        return f"L_{p}_{uid[0]}"
    def stamp(k):
        if stamps and (stamps not in ('lite', 'entry') or k in (0, 15)):
            E("s_memrealtime s[92:93]"); E("s_waitcnt lgkmcnt(0)"); E(f"s_mov_b32 s{70+k}, s92")
    def stamp_flush():
        if stamps:
            E("s_mov_b64 exec, -1")
            if stamps == 'entry': E("s_mov_b32 s71, s86")
            E("v_mov_b32 v4, 0")
            for k in range(16): E(f"v_writelane_b32 v4, s{70+k}, {k}")
            E("s_lshl_b32 s28, s4, 5"); E("s_add_u32 s28, s28, s5"); E("s_mul_i32 s28, s28, 12"); E("s_add_u32 s28, s28, s3")
            E("s_lshl_b32 s28, s28, 6"); E(f"s_add_u32 s28, s28, {STAMP_OFF}")
            E("v_mbcnt_lo_u32_b32 v5, -1, 0"); E("v_mbcnt_hi_u32_b32 v5, -1, v5"); E("v_lshlrev_b32 v5, 2, v5")
            E("s_mov_b64 exec, 0xffff")
            E(f"buffer_store_dword v4, v5, s[24:27], s28 offen {sf}")
    def srd(r, p, size):
        E(f"s_mov_b32 s{r}, s{p}"); E(f"s_mov_b32 s{r+1}, s{p+1}"); E(f"s_mov_b32 s{r+2}, {size}"); E(f"s_mov_b32 s{r+3}, 0x20000")
    def lds_wait(off, val, vz, vt, sleep=2):
        a, b = L("lw"), L("lwd")
        E("s_mov_b32 s7, 0"); E.label(a)
        E(f"ds_read_b32 v{vt}, v{vz} offset:{off}"); E("s_waitcnt lgkmcnt(0)")
        E(f"v_readfirstlane_b32 s28, v{vt}"); E(f"s_cmp_ge_u32 s28, {val}"); E(f"s_cbranch_scc1 {b}")
        if sleep: E(f"s_sleep {sleep}")
        E("s_add_u32 s7, s7, 1"); E(f"s_cmp_lt_u32 s7, {plim*8}"); E(f"s_cbranch_scc1 {a}")
        E.label(b)
    def lds_set(off, vz, vt, val):
        E(f"v_mov_b32 v{vt}, {val}"); E(f"ds_write_b32 v{vz}, v{vt} offset:{off}")
    def lds_inc(off, vz, vt):
        E(f"v_mov_b32 v{vt}, 1"); E("s_mov_b64 exec, 1"); E(f"ds_add_u32 v{vz}, v{vt} offset:{off}"); E("s_mov_b64 exec, -1")
    def soft_barrier(off, vz, vt, sleep=0, n=4):
        lds_inc(off, vz, vt); lds_wait(off, n, vz, vt, sleep)
    def poll(body, sleep=0):
        a, b = L("pl"), L("pld")
        E("s_mov_b32 s7, 0"); E.label(a)
        body()
        E(f"s_cbranch_vccz {b}")
        if sleep: E(f"s_sleep {sleep}")
        E("s_add_u32 s7, s7, 1"); E(f"s_cmp_lt_u32 s7, {plim}"); E(f"s_cbranch_scc1 {a}")
        E.label(b)
    def ppoll(nsets, nload, loads, check, finish):
        a, d = L("pp"), L("ppd"); ok = [L("ppk") for _ in range(nsets)]
        E("s_mov_b32 s7, 0")
        for t in range(nsets): loads(t)
        E.label(a)
        for t in range(nsets):
            E(f"s_waitcnt vmcnt({(nsets-1)*nload})"); check(t); E(f"s_cbranch_vccz {ok[t]}"); loads(t)
        E("s_add_u32 s7, s7, 1"); E(f"s_cmp_lt_u32 s7, {plim}"); E(f"s_cbranch_scc1 {a}")
        E("s_waitcnt vmcnt(0)")
        for t in range(nsets):
            E.label(ok[t]); finish(t)
            if t + 1 < nsets: E(f"s_branch {d}")
        E.label(d)
    cold = []
    def intra_store(ins):
        a, b = L("is"), L("isd")
        E("s_cmp_eq_u32 s6, 3"); E(f"s_cbranch_scc0 {a}")
        for i in ins: E(i + (" " + pf if i.startswith("buffer_") else ""))
        E.label(b)
        cold.append((a, b, ins))
    def X(m):
        return "s_mov_b64 exec, s[88:89]" if m == -1 else f"s_and_b64 exec, s[88:89], {m:#x}"
    def walk(target, ret):
        E("s_mov_b64 s[88:89], 0"); E("s_mov_b64 exec, 0"); E(f"s_branch {target}")
        E.label(ret)
        E("s_mov_b64 s[88:89], -1"); E("s_mov_b64 exec, -1")
    def live(ins):
        a = L("lv"); E(f"s_cbranch_execz {a}"); E(ins); E.label(a)
    def w13idx(d):
        E(f"s_sub_u32 s{d}, s5, 9"); E(f"s_lshr_b32 s{d}, s{d}, 1"); E("s_sub_u32 s7, 3, s4"); E("s_and_b32 s7, s7, 7"); E(f"s_add_u32 s{d}, s{d}, s7")
        E(f"s_cmp_ge_u32 s{d}, 9"); E("s_cselect_b32 s7, 9, 0"); E(f"s_sub_u32 s{d}, s{d}, s7")
    def w2idx(d):
        E(f"s_sub_u32 s{d}, s5, {JW2}"); E(f"s_cmp_lt_u32 s{d}, 4"); E(f"s_cselect_b32 s{d}, s{d}, 9")
        E("s_sub_u32 s7, s5, 23"); E("s_cmp_ge_u32 s5, 27"); E(f"s_cselect_b32 s{d}, s7, s{d}")
    def rnd(dst, src):
        E(f"v_cvt_pk_bf16_f32 v{dst}, v{src}, v{src}"); E(f"v_and_b32 v{dst}, 0xffff0000, v{dst}")
    def row_reduce(op, r, rors):
        for k in rors: E(f"{op}_dpp v{r}, v{r}, v{r} row_ror:{k} row_mask:0xf bank_mask:0xf")
    def swap_reduce(op, r, t, which):
        E(f"v_mov_b32 v{t}, v{r}"); E(f"v_permlane{which}_swap_b32 v{r}, v{t}"); E(f"{op} v{r}, v{r}, v{t}")
    def mktag():
        E("s_waitcnt lgkmcnt(0)")
        E("s_mul_i32 s35, s34, 0x9E3779B1"); E("s_add_u32 s35, s35, 0x7F4A7C15"); E("s_mov_b32 s90, 0xfffff000")
    def tagcheck(acc, regs):
        E(f"v_xor_b32 v{acc}, s35, v{regs[0]}")
        for r in regs[1:]: E(f"v_bitop3_b32 v{acc}, v{acc}, v{r}, s35 bitop3:0xf6")
        E(f"v_cmp_ne_u32 vcc, 0, v{acc}")
    def tagbyte(dst, idx):
        E(f"v_and_b32 v{dst}, 3, v{idx}"); E(f"v_mul_u32_u24 v{dst}, 7, v{dst}"); E(f"v_bfe_u32 v{dst}, s35, v{dst}, 12")
    def settag(r, tg): E(f"v_and_or_b32 v{r}, v{r}, s{SM}, v{tg}")
    def lowcheck(acc, regs, tg):
        for r in regs: E(f"v_xor_b32 v{r}, v{tg}, v{r}")
        ortree(acc, regs)
    def ortree(acc, regs):
        regs = list(regs)
        if len(regs) == 1: E(f"v_and_b32 v{acc}, 0xfff, v{regs[0]}")
        else:
            first = True
            while regs:
                if first:
                    t = regs[:3]; regs = regs[3:]; first = False
                    E(f"v_or3_b32 v{acc}, v{t[0]}, v{t[1]}, v{t[2]}") if len(t) == 3 else E(f"v_or_b32 v{acc}, v{t[0]}, v{t[1]}")
                else:
                    t = regs[:2]; regs = regs[2:]
                    E(f"v_or3_b32 v{acc}, v{acc}, v{t[0]}, v{t[1]}") if len(t) == 2 else E(f"v_or_b32 v{acc}, v{acc}, v{t[0]}")
            E(f"v_and_b32 v{acc}, 0xfff, v{acc}")
        E(f"v_cmp_ne_u32 vcc, 0, v{acc}")
    SM = 90
    BR = lambda k: 96 + 4 * k
    AT = lambda k: 24 + 4 * k
    def op_addrs():
        E("v_bfe_u32 v4, v0, 2, 2"); E("v_lshrrev_b32 v5, 4, v0"); E("v_lshl_add_u32 v4, v5, 3, v4"); E("v_lshlrev_b32 v4, 7, v4")
        E("v_and_b32 v6, 3, v0"); E("v_lshl_add_u32 v4, v6, 3, v4")
        E("v_bfe_u32 v7, v0, 3, 2"); E("v_xor_b32 v7, s3, v7"); E("v_lshl_add_u32 v2, v7, 5, v4")
        E("v_and_b32 v3, 1, v0"); E("v_mul_u32_u24 v3, 1152, v3"); E("v_lshl_add_u32 v3, v5, 4, v3")
    def stage_b(slot, nk, wait=True, k0=0, t=5):
        E(f"v_add_u32 v{t}, {slot}, v2"); E(f"v_add_u32 v{t+1}, {slot + 36864}, v2")
        for k in range(k0, nk):
            a = t if k < 9 else t + 1; o = (k % 9) * 4096
            E(f"ds_read_b64_tr_b16 v[{BR(k)}:{BR(k)+1}], v{a} offset:{o}"); E(f"ds_read_b64_tr_b16 v[{BR(k)+2}:{BR(k)+3}], v{a} offset:{o+512}")
        if wait: E("s_waitcnt lgkmcnt(0)")
    def gemv(areg, aoff, nk, d, fill=None, pre=0, extra=0):
        fill = list(fill or [])
        first = pre if extra else 0
        per = -(-len(fill) // (nk - first))
        depth = min(AD, 15 - extra)
        for k in range(pre, min(nk, depth)): E(f"ds_read_b128 v[{AT(k)}:{AT(k)+3}], v{areg} offset:{aoff + k*64}")
        issued = min(nk, depth)
        for k in range(nk):
            E(f"s_waitcnt lgkmcnt({issued - 1 - k + (extra if k < pre else 0)})")
            c = "0" if k == 0 else f"v[{d}:{d+3}]"
            E(f"v_mfma_f32_16x16x32_bf16 v[{d}:{d+3}], v[{AT(k)}:{AT(k)+3}], v[{BR(k)}:{BR(k)+3}], {c}")
            if issued < nk:
                E(f"ds_read_b128 v[{AT(issued)}:{AT(issued)+3}], v{areg} offset:{aoff + issued*64}"); issued += 1
            if k >= first:
                for _ in range(per):
                    if fill: E(fill.pop(0))
    def own_map():
        E("v_and_b32 v8, 31, v0"); E("v_min_u32 v9, 7, v8"); E("s_mul_i32 s28, s3, 72")
        E("v_add_u32 v8, s28, v8"); E("s_add_u32 s28, s28, 64"); E("v_add_u32 v9, s28, v9")
        E("v_lshrrev_b32 v11, 5, v0"); E("v_mul_u32_u24 v11, 1152, v11"); E("v_lshl_add_u32 v10, v8, 2, v11"); E("v_lshl_add_u32 v11, v9, 2, v11")
    def modgather(o1, o2, lab=None):
        E(f"s_mov_b32 s30, {MOD_OFF + o1*8}"); E(f"s_mov_b32 s31, {MOD_OFF + o2*8}")
        E("v_lshlrev_b32 v12, 4, v8"); E("v_lshlrev_b32 v13, 4, v9")
        def body():
            for h in range(2):
                E(f"buffer_load_dwordx4 v[{36+12*h}:{39+12*h}], v12, s[24:27], s{30+h} offen sc1")
                E(f"buffer_load_dwordx4 v[{40+12*h}:{43+12*h}], v12, s[24:27], s{30+h} offen offset:512 sc1")
                E(f"buffer_load_dwordx4 v[{44+12*h}:{47+12*h}], v13, s[24:27], s{30+h} offen sc1")
            E("s_waitcnt vmcnt(0)")
            tagcheck(14, list(range(37, 60, 2)))
        poll(body, sl_long)
        if lab: E.label(lab)
        E("v_cmp_gt_u32 vcc, 32, v0"); E("v_mov_b32 v12, 0x03020c0c"); E("v_mov_b32 v13, 0x01000c0c"); E("v_cndmask_b32 v12, v12, v13, vcc")
        for e in range(12): E(f"v_perm_b32 v{24+e}, v{36+2*e}, v{36+2*e}, v12")
    def dma_addrs(a=3, b=4, t=2):
        E(f"v_lshrrev_b32 v{t}, 3, v0"); E(f"v_mul_lo_u32 v{t}, v{t}, s20")
        E(f"v_and_b32 v{a}, 7, v0"); E(f"v_bfe_u32 v{b}, v0, 4, 1"); E(f"v_lshlrev_b32 v{b}, 1, v{b}"); E(f"v_xor_b32 v{a}, v{a}, v{b}")
        E(f"v_xor_b32 v{b}, 4, v{a}"); E(f"v_lshl_add_u32 v{a}, v{a}, 4, v{t}"); E(f"v_lshl_add_u32 v{b}, v{b}, 4, v{t}")
        E("s_lshl_b32 s17, s20, 3")
    def dma_loop(lab, depth, a=3, b=4, ls=1024):
        E.label(lab)
        E("s_mov_b32 m0, s29"); E(f"s_add_u32 s29, s29, {ls}")
        E(f"buffer_load_dwordx4 v{a}, s[8:11], s16 offen {wf} lds"); E("s_add_u32 s16, s16, s17")
        if depth: E(f"s_waitcnt vmcnt({depth-1})")
        E("s_mov_b32 m0, s29"); E(f"s_add_u32 s29, s29, {ls}")
        E(f"buffer_load_dwordx4 v{b}, s[8:11], s16 offen {wf} lds"); E("s_add_u32 s16, s16, s17")
        if depth: E(f"s_waitcnt vmcnt({depth-1})")
        E("s_sub_u32 s19, s19, 1"); E("s_cmp_lg_u32 s19, 0"); E(f"s_cbranch_scc1 {lab}")

    E.label("L_code0")
    if probe in (16, 'amp') or stamps == 'entry': E("s_memrealtime s[86:87]")
    E("s_load_dwordx16 s[36:51], s[0:1], 0")
    E("s_load_dwordx8 s[52:59], s[0:1], 64")
    E("s_load_dwordx4 s[60:63], s[0:1], 96")
    E("s_cmp_ge_u32 s2, 256"); E("s_cbranch_scc1 L_exit")
    if stamps == 'entry': E("s_mov_b32 s85, 0")
    elif stamps:
        for k in range(16): E(f"s_mov_b32 s{70+k}, 0")
    E("v_lshrrev_b32 v1, 6, v0"); E("v_and_b32 v0, 63, v0"); E("v_readfirstlane_b32 s3, v1")
    E("s_and_b32 s4, s2, 7"); E("s_lshr_b32 s5, s2, 3")
    E("s_sub_u32 s22, s2, 88"); E("s_cmp_lt_u32 s22, 32"); E("s_cselect_b32 s21, 2, 0")
    E(f"s_sub_u32 s28, s5, {JQ0}"); E("s_cmp_lt_u32 s28, 8"); E("s_cselect_b32 s21, 3, s21")
    if 'j' in dbg: E("s_mov_b32 s21, 0")
    E("s_cmp_ge_u32 s3, 8"); E("s_cbranch_scc1 L_service")

    SL = lambda i: 40 + 4 * i
    E("v_and_b32 v3, 3, v0"); E("v_lshrrev_b32 v4, 4, v0"); E("v_lshl_add_u32 v3, v4, 2, v3")
    LIN = isinstance(pat, dict) and 'T' in pat
    if not LIN: E("v_bfe_u32 v4, v0, 2, 2"); E("v_lshlrev_b32 v4, 8, v4"); E("v_lshl_add_u32 v2, v3, 4, v4")
    if 'l' in dbg: E("v_lshlrev_b32 v2, 4, v0")
    E("s_and_b32 s28, s5, 16"); E("s_lshl_b32 s29, s4, 1"); E("s_add_u32 s28, s28, s29")
    E("s_lshl_b32 s28, s28, 3"); E("s_and_b32 s29, s5, 15"); E("s_add_u32 s28, s28, s29")
    if LIN: E("s_lshl_b32 s33, s28, 18")
    else:
        E("s_lshl_b32 s28, s28, 6"); E("s_add_u32 s28, s28, s3"); E("s_lshl_b32 s33, s28, 12")
        E("s_add_u32 s32, s5, s3")
    def soff(u):
        E(f"s_add_u32 s30, s32, {u}"); E("s_and_b32 s30, s30, 7"); E("s_lshl_b32 s30, s30, 15"); E(f"s_add_u32 s{64+u if not stamps else 94+u}, s33, s30")
    SO = lambda u: (64 + u if not stamps else 94 + u)
    def soffB(k):
        if k < 4:
            E("s_lshr_b32 s30, s5, 3"); E("s_add_u32 s30, s30, s3"); E(f"s_add_u32 s30, s30, {k}"); E("s_and_b32 s30, s30, 3"); E("s_lshl_b32 s30, s30, 16"); E(f"s_add_u32 s{SO(k)}, s33, s30")
        else:
            E(f"s_add_u32 s30, s32, {k-4}"); E("s_and_b32 s30, s30, 3"); E(f"s_lshl_b32 s{SO(k)}, s30, 10")
    def addr(i):
        if pat == 'A': return f"s{SO(i//4)} offen offset:{(i%4)*1024}"
        if pat == 'A2':
            E(f"s_add_u32 s16, s{SO(i//4)}, s{17 + i%4}"); return "s16 offen"
        if i % 2 == 0: E(f"s_add_u32 s16, s{SO(i>>3)}, s{SO(4 + ((i>>1)&3))}")
        else: E("s_add_u32 s16, s16, 0x8000")
        return "s16 offen"
    LIN = isinstance(pat, dict) and 'T' in pat
    GEN = isinstance(pat, dict)
    if LIN:
        M = lambda bits: sum(1 << b for b in (bits if isinstance(bits, tuple) else (bits,)))
        Gm, Wm, Tm = [[M(b) for b in pat[k]] for k in 'GWT']
        Jm = [M(b) for b in pat.get('J', [])]; Xm = [M(b) for b in pat.get('X', [])]
        span = {0}
        for m in Gm + Wm + Tm: span |= {v ^ m for v in span}
        assert len(span) == 1024 and max(span) < (1 << 18) and all(v % 256 == 0 for v in span)
        first = True
        for reg, ms in (('s3', Wm), ('s5', Jm), ('s4', Xm)):
            k = 0
            while k < len(ms):
                if ms[k] == 0: k += 1; continue
                n = 1
                while k + n < len(ms) and ms[k + n] == ms[k] << n: n += 1
                while n > 1 and any((ms[k] << a) & (ms[k] << b) for a in range(n) for b in range(a)): n -= 1
                d = "s32" if first else "s30"
                E(f"s_bfe_u32 {d}, {reg}, {(n << 16) + k}"); E(f"s_mul_i32 {d}, {d}, {ms[k]}")
                if not first: E("s_xor_b32 s32, s32, s30")
                first = False; k += n
        def lanepart(dst, lo, tmp):
            if Gm[1] == Gm[0] << 1 and not Gm[0] & Gm[1]:
                E(f"v_bfe_u32 v{tmp}, v0, {lo}, 2"); E(f"v_mul_u32_u24 v{tmp}, {Gm[0]}, v{tmp}"); E(f"v_xor_b32 v{dst}, v{dst}, v{tmp}")
            else:
                for k in range(2): E(f"v_bfe_u32 v{tmp}, v0, {lo+k}, 1"); E(f"v_mul_u32_u24 v{tmp}, {Gm[k]}, v{tmp}"); E(f"v_xor_b32 v{dst}, v{dst}, v{tmp}")
            E(f"v_xor_b32 v{dst}, s32, v{dst}")
        E("v_lshlrev_b32 v2, 4, v3"); lanepart(2, 2, 4)
        def tmask(i):
            r = 0
            for k in range(5):
                if i >> k & 1: r ^= Tm[k]
            return r
        def addr(i): return "s33 offen"
    elif GEN:
        gb = pat.get('g', (8, 9)); wb = pat.get('w', (12, 13, 14)); tf = pat['t']
        sb = pat.get('s', (18, 19, 20))
        used = list(gb) + list(wb) + list(sb) + [sh + k for n, sh, rot in tf for k in range(n)]
        assert sorted(used) == list(range(8, 21)), used
        if tuple(gb) != (8, 9): E("v_bfe_u32 v4, v0, 2, 1"); E("v_bfe_u32 v5, v0, 3, 1"); E(f"v_lshlrev_b32 v4, {gb[0]}, v4"); E(f"v_lshl_add_u32 v4, v5, {gb[1]}, v4"); E("v_lshl_add_u32 v2, v3, 4, v4")
        if tuple(wb) != (12, 13, 14) or tuple(sb) != (18, 19, 20):
            E("s_andn2_b32 s33, s33, 0x1fffff")
            for k, bit in enumerate(wb): E(f"s_bfe_u32 s30, s3, {0x10000 + k}"); E(f"s_lshl_b32 s30, s30, {bit}"); E("s_add_u32 s33, s33, s30")
            for k, bit in enumerate(sb): E(f"s_bfe_u32 s30, s5, {0x10000 + k}"); E(f"s_lshl_b32 s30, s30, {bit}"); E("s_add_u32 s33, s33, s30")
        ROT = {'j': 's5', 'jw': 's32', 'w': 's3', 'x': 's4'}
        for name, sh, plus in (('j2', 2, None), ('j2w', 2, 's3'), ('j3', 3, None), ('j3w', 3, 's3'), ('j1', 1, None), ('j1w', 1, 's3'), ('jx', 0, 's4'), ('j2x', 2, 's4'), ('j3x', 3, 's4')):
            if any(rot == name for n, _, rot in tf):
                r = SO(len(ROT) - 4); ROT[name] = f"s{r}"
                E(f"s_lshr_b32 s{r}, s5, {sh}")
                if plus: E(f"s_add_u32 s{r}, s{r}, {plus}")
        prev = {}
        def addr(i):
            const = 0; pos = 0; regs = []
            for f, (n, sh, rot) in enumerate(tf):
                c = (i >> pos) & ((1 << n) - 1); pos += n
                if rot == '0': const += c << sh
                else:
                    if prev.get(f) != c:
                        E(f"s_add_u32 s{17+f}, {ROT[rot]}, {c}"); E(f"s_and_b32 s{17+f}, s{17+f}, {(1 << n) - 1}"); E(f"s_lshl_b32 s{17+f}, s{17+f}, {sh}"); prev[f] = c
                    regs.append(f"s{17+f}")
            E(f"s_add_u32 s16, s33, {const}")
            for r in regs: E(f"s_add_u32 s16, s16, {r}")
            return "s16 offen"
    elif pat == 'B2':
        for k in (0, 4, 5): soffB(k)
    else: soff(0)
    if pat == 'A2':
        for k in range(4): E(f"s_add_u32 s30, s5, {k}"); E("s_and_b32 s30, s30, 3"); E(f"s_lshl_b32 s{17+k}, s30, 10")
    assert K0 <= 4
    E("s_mov_b32 s10, 0x4000000"); E("s_mov_b32 s11, 0x20000")
    E("s_waitcnt lgkmcnt(0)")
    E("s_mov_b32 s8, s38"); E("s_mov_b32 s9, s39")
    stamp(0)
    def kload(i):
        E(f"buffer_load_dwordx4 v[{SL(i)}:{SL(i)+3}], v2, s[8:11], {addr(i)} {kvf}")
        if LIN and i < 31: E(f"v_xor_b32 v2, {tmask(i) ^ tmask(i+1)}, v2")
    VS = lambda i: SL((i - NL) % 32)
    def vload(i):
        if i < NL: E(f"buffer_load_dwordx4 v1, s[12:15], {addr(i)} {kvf} lds")
        else: E(f"buffer_load_dwordx4 v[{VS(i)}:{VS(i)+3}], v1, s[12:15], {addr(i)} {kvf}")
        if LIN and i < 31: E(f"v_xor_b32 v1, {tmask(i) ^ tmask(i+1)}, v1")
        if i == 31 and GEN: E("v_lshlrev_b32 v1, 4, v0")
    E.label("L_k0")
    for i in range(K0): kload(i)
    E("s_branch L_stream")

    E.label("L_service")
    E("v_mov_b32 v1, 0")
    E("s_sub_u32 s3, s3, 8")
    if cpf >= 3:
        E("s_getpc_b64 s[12:13]"); E.label("L_pc0")
        E("s_sub_u32 s12, s12, L_pc0-L_code0"); E("s_subb_u32 s13, s13, 0"); E("s_mov_b32 s14, L_exit-L_code0"); E("s_mov_b32 s15, 0x20000")
        E("s_lshl_b32 s28, s5, 2"); E("s_add_u32 s28, s28, s3"); E("s_lshl_b32 s28, s28, 8")
    E("v_lshlrev_b32 v2, 2, v0")
    if cpf >= 3: E("buffer_load_dword v95, v2, s[12:15], s28 offen" + (" nt" if cpf == 4 else ""))
    E("s_mov_b64 exec, 0xffff"); E("ds_write_b32 v2, v1"); E("s_mov_b64 exec, -1")
    E("s_sub_u32 s28, s2, 216"); E("s_add_u32 s29, s28, 32"); E("s_cmp_lt_u32 s28, 22"); E("s_cselect_b32 s21, 2, s21"); E("s_cselect_b32 s22, s29, s22")
    E("s_cmp_lg_u32 s21, 0"); E("s_cbranch_scc1 L_job")
    E("s_mov_b32 s20, 1152")
    dma_addrs()
    E("s_lshl_b32 s28, s4, 2"); E("s_add_u32 s28, s28, s3"); E(f"s_sub_u32 s30, s5, {JW2}")
    E("s_cmp_lt_u32 s5, 9")
    E("s_cselect_b32 s19, 8, 9"); E("s_cselect_b32 s30, s5, s30"); E(f"s_mov_b32 s29, {SLOT_B}"); E(f"s_cselect_b32 s29, {SLOT_A}, s29")
    E("s_mul_i32 s16, s19, 18432"); E("s_lshl_b32 s10, s16, 5"); E("s_mul_i32 s16, s16, s28"); E("s_lshl_b32 s30, s30, 7"); E("s_add_u32 s16, s16, s30")
    E("s_lshl_b32 s30, s19, 11"); E("s_mul_i32 s30, s30, s3"); E("s_add_u32 s29, s29, s30"); E("s_mov_b32 s11, 0x20000")
    E("s_waitcnt lgkmcnt(0)")
    E("s_cmp_lt_u32 s5, 9"); E("s_cselect_b32 s8, s44, s52"); E("s_cselect_b32 s9, s45, s53")
    stamp(0)
    E("s_cmp_ge_u32 s5, 27"); E("s_cbranch_scc1 L_noearly")
    E("s_sub_u32 s28, s5, 9"); E("s_cmp_lt_u32 s28, 2"); E("s_cbranch_scc1 L_noearly")
    if 'e' not in dbg: dma_loop("L_dma_early", DEA)
    E.label("L_noearly")
    E(f"s_load_dword s34, s[62:63], {EP_OFF}")
    srd(24, 62, WS_SIZE)
    E("s_barrier")
    E("s_branch L_roles")
    E.label("L_job")
    E("s_cmp_eq_u32 s21, 3")
    E("s_cselect_b32 s20, 8192, 6912") if False else (E("s_mov_b32 s20, 6912"), E("s_cselect_b32 s20, 8192, s20"))
    dma_addrs()
    own_map()
    E("s_lshl_b32 s28, s4, 3"); E(f"s_sub_u32 s29, s5, {JQ0}"); E("s_add_u32 s28, s28, s29")
    E("s_cmp_eq_u32 s21, 3"); E("s_cselect_b32 s22, s28, s22")
    E("s_mul_i32 s10, s20, 576"); E("s_mov_b32 s11, 0x20000")
    E("s_mul_i32 s16, s20, 144"); E("s_mul_i32 s16, s16, s3"); E("s_lshl_b32 s28, s22, 7"); E("s_add_u32 s16, s16, s28")
    E("s_mul_i32 s29, s3, 18432"); E(f"s_add_u32 s29, s29, {SLOT_B}"); E("s_mov_b32 s19, 9")
    E("s_mov_b32 s14, 2304"); E("s_mov_b32 s15, 0x20000")
    E("s_waitcnt lgkmcnt(0)")
    stamp(0)
    E("s_cmp_eq_u32 s21, 3")
    E("s_cselect_b32 s8, s42, s56"); E("s_cselect_b32 s9, s43, s57"); E("s_cselect_b32 s12, s36, s54"); E("s_cselect_b32 s13, s37, s55")
    E("buffer_load_dword v16, v10, s[12:15], 0 offen"); E("buffer_load_dword v17, v10, s[12:15], 0 offen offset:128"); E("buffer_load_dword v18, v11, s[12:15], 0 offen")
    srd(24, 62, WS_SIZE)
    if xe:
        E("s_cbranch_scc0 L_nox")
        E("v_lshrrev_b32 v12, 5, v0"); E("v_mul_u32_u24 v12, 1152, v12"); E("v_and_b32 v13, 31, v0"); E("v_lshl_add_u32 v12, v13, 2, v12")
        for i in range(9): E(f"buffer_load_dword v{60+i}, v12, s[12:15], 0 offen offset:{i*128}")
        E.label("L_nox")
    E(f"s_load_dword s34, s[62:63], {EP_OFF}")
    if QB:
        E("s_cmp_lg_u32 s5, 22"); E("s_cbranch_scc1 L_dma_job")
        E("s_barrier"); dma_loop("L_dma_jb", QB - 1); E("s_branch L_job2")
    dma_loop("L_dma_job", DJ)
    E("s_barrier")
    E.label("L_job2")
    stamp(9)
    op_addrs()
    E("s_waitcnt vmcnt(18)")
    for i in range(3):
        E(f"v_and_b32 v{71+2*i}, 0xffff0000, v{16+i}"); E(f"v_lshlrev_b32 v{70+2*i}, 16, v{16+i}")
    E("s_cmp_eq_u32 s21, 3"); E("s_cbranch_scc1 L_prep_q")
    E(f"s_mov_b32 s28, {LOG2E ^ 0x80000000}"); E("s_mov_b32 s29, 0xb2a57060"); E("s_mov_b32 s30, 0x3f317218")
    for e in range(6): E(f"v_mul_f32 v{24+e}, s28, v{70+e}")
    for e in range(6): E(f"v_fma_f32 v{30+e}, v{70+e}, s28, -v{24+e}")
    for e in range(6): E(f"v_fma_f32 v{30+e}, v{70+e}, s29, v{30+e}")
    for e in range(6): E(f"v_min_f32 v{24+e}, 0x42fc0000, v{24+e}")
    for e in range(6): E(f"v_exp_f32 v{24+e}, v{24+e}")
    for e in range(6): E(f"v_mul_f32 v{30+e}, s30, v{30+e}")
    for e in range(6): E(f"v_fma_f32 v{24+e}, v{24+e}, v{30+e}, v{24+e}")
    for e in range(6): E(f"v_add_f32 v{24+e}, 1.0, v{24+e}")
    for e in range(6): E(f"v_rcp_f32 v{30+e}, v{24+e}")
    for e in range(6): E(f"v_mul_f32 v{36+e}, v{70+e}, v{30+e}")
    for e in range(6): E(f"v_fma_f32 v{70+e}, -v{24+e}, v{36+e}, v{70+e}")
    for e in range(6): E(f"v_fma_f32 v{70+e}, v{70+e}, v{30+e}, v{36+e}")
    def write_a(buf):
        for i in range(3): E(f"v_cvt_pk_bf16_f32 v{16+i}, v{70+2*i}, v{71+2*i}")
        E(f"ds_write_b32 v10, v16 offset:{buf}"); E(f"ds_write_b32 v10, v17 offset:{buf+128}"); E(f"ds_write_b32 v11, v18 offset:{buf}")
    write_a(JBUF)
    if jreh: walk("L_mst", "L_ret_m")
    E("s_waitcnt vmcnt(0)")
    soft_barrier(C_J1, 1, 16)
    stamp(10)
    E.label("L_mst")
    stage_b(SLOT_B, 18, wait=False)
    E("s_branch L_gemv")
    E.label("L_prep_q")
    if not xe:
        E("v_lshrrev_b32 v12, 5, v0"); E("v_mul_u32_u24 v12, 1152, v12"); E("v_and_b32 v13, 31, v0"); E("v_lshl_add_u32 v12, v13, 2, v12")
        for i in range(9): E(f"buffer_load_dword v{60+i}, v12, s[12:15], 0 offen offset:{i*128}")
        E("s_waitcnt vmcnt(0)")
    for i in range(9):
        E(f"v_lshlrev_b32 v{24+2*i}, 16, v{60+i}"); E(f"v_and_b32 v{25+2*i}, 0xffff0000, v{60+i}")
    E("v_add_f32 v16, v24, v25")
    for r in range(26, 42): E(f"v_add_f32 v16, v16, v{r}")
    row_reduce("v_add_f32", 16, (1, 2, 4, 8)); swap_reduce("v_add_f32", 16, 17, 16)
    E("s_mov_b32 s28, 0x3ae38e39"); E("s_mov_b32 s29, 0x3727c5ac")
    E("v_mul_f32 v16, s28, v16")
    E("v_mov_b32 v18, 0")
    for r in range(24, 42): E(f"v_sub_f32 v17, v{r}, v16"); E("v_fmac_f32 v18, v17, v17")
    row_reduce("v_add_f32", 18, (1, 2, 4, 8)); swap_reduce("v_add_f32", 18, 17, 16)
    E("v_mul_f32 v18, s28, v18"); rnd(18, 18); E("v_add_f32 v18, s29, v18"); rnd(18, 18)
    E("v_sqrt_f32 v18, v18"); rnd(18, 18); E("v_rcp_f32 v19, v18"); rnd(16, 16)
    for r in range(70, 76):
        E(f"v_sub_f32 v{r}, v{r}, v16"); rnd(r, r)
        E(f"v_mul_f32 v17, v{r}, v19"); E(f"v_fma_f32 v{r}, -v18, v17, v{r}"); E(f"v_fma_f32 v{r}, v{r}, v19, v17"); rnd(r, r)
    E("s_waitcnt vmcnt(0)")
    soft_barrier(C_J1, 1, 16)
    stamp(10)
    stage_b(SLOT_B, 18)
    mktag()
    if jreh: walk("L_qh", "L_ret_q")
    if km:
        if kms:
            E("s_cmp_eq_u32 s5, 22"); E("s_cbranch_scc1 L_kms"); E("s_cmp_eq_u32 s2, 215"); E("s_cbranch_scc1 L_kms")
        lds_wait(C_NR, 1, 1, 16, sleep=4)
        if kms: E.label("L_kms")
    modgather(0, 576, "L_qh")
    stamp(11)
    for e in range(6):
        E(f"v_add_f32 v{30+e}, 1.0, v{30+e}"); rnd(30+e, 30+e); E(f"v_mul_f32 v{70+e}, v{70+e}, v{30+e}"); rnd(70+e, 70+e)
        E(f"v_add_f32 v{70+e}, v{70+e}, v{24+e}")
    write_a(JBUF)
    E("s_cbranch_execz L_gemv")
    soft_barrier(C_J2, 1, 16)
    E.label("L_gemv")
    gemv(3, JBUF, 18, 20)
    mktag()
    E("s_lshl_b32 s28, s22, 2"); E("s_add_u32 s28, s28, s3"); E("s_lshl_b32 s28, s28, 7")
    E(f"s_mov_b32 s29, {MOD_OFF}"); E("s_cmp_eq_u32 s21, 3"); E(f"s_cselect_b32 s29, {Q_OFF}, s29"); E("s_add_u32 s28, s28, s29")
    E("v_lshlrev_b32 v2, 3, v0")
    E("v_cvt_pk_bf16_f32 v8, v20, v21"); E("v_mov_b32 v9, s35")
    if jreh:
        E("s_cbranch_execnz L_jpub")
        E("s_cmp_eq_u32 s21, 3"); E("s_cbranch_scc1 L_ret_q"); E("s_branch L_ret_m")
        E.label("L_jpub")
    E("s_mov_b64 exec, 0xffff")
    E("buffer_store_dwordx2 v[8:9], v2, s[24:27], s28 offen sc1")
    E("s_mov_b64 exec, -1")
    lds_inc(C_GO, 1, 16)
    stamp(12)
    E.label("L_roles")
    for w in '0123':
        if w in dbg: E(f"s_cmp_eq_u32 s3, {w}"); E("s_cbranch_scc1 L_svc_end")
    if 'z' in dbg: E("s_branch L_tailprep")
    E("s_cmp_eq_u32 s3, 3"); E("s_cbranch_scc1 L_s3")
    E("s_cmp_eq_u32 s3, 0"); E("s_cbranch_scc1 L_s0")
    if cpf in (1, 2):
        E("s_cmp_lg_u32 s3, 1"); E("s_cbranch_scc1 L_tailprep")
        E("s_getpc_b64 s[8:9]"); E.label("L_pc")
        E("s_sub_u32 s8, s8, L_pc-L_code0"); E("s_subb_u32 s9, s9, 0"); E("s_mov_b32 s10, L_exit-L_code0"); E("s_mov_b32 s11, 0x20000")
        E("v_lshlrev_b32 v2, 4, v0"); E("s_lshl_b32 s16, s5, 10")
        if cpf == 2: lds_wait(C_KH, 1, 1, 8, sleep=8)
        E("buffer_load_dwordx4 v[8:11], v2, s[8:11], s16 offen"); E("s_waitcnt vmcnt(0)")
    E("s_branch L_tailprep")

    E.label("L_s0")
    mktag()
    E("v_lshlrev_b32 v2, 4, v0")
    if kh:
        if gateq: E("s_cmp_eq_u32 s21, 3"); E("s_cbranch_scc1 L_qgo")
        lds_wait(C_KH, 1, 1, 8, sleep=8)
        E.label("L_qgo")
    E("s_lshl_b32 s28, s4, 12"); E("s_bfe_u32 s29, s5, 0x10003"); E("s_lshl_b32 s29, s29, 11"); E("s_add_u32 s28, s28, s29"); E(f"s_add_u32 s28, s28, {Q_OFF}")
    def qbody():
        E("buffer_load_dwordx4 v[8:11], v2, s[24:27], s28 offen sc1"); E("buffer_load_dwordx4 v[12:15], v2, s[24:27], s28 offen offset:1024 sc1")
        E("s_waitcnt vmcnt(0)")
        tagcheck(16, [9, 11, 13, 15])
    poll(qbody, sl_q)
    E("s_mov_b32 s29, 0x05040100"); E("s_cmp_ge_u32 s5, 16"); E("s_cselect_b32 s29, 0x07060302, s29")
    E("v_perm_b32 v8, v10, v8, s29"); E("v_perm_b32 v9, v14, v12, s29"); E("v_lshlrev_b32 v3, 2, v0")
    E(f"ds_write_b32 v3, v8 offset:{QBUF}"); E(f"ds_write_b32 v3, v9 offset:{QBUF+256}")
    E("s_add_u32 s7, s7, 1"); lds_set(C_Q, 1, 10, "s7")
    if stamps is True: E("s_mov_b32 s71, s7")
    stamp(3)
    lds_wait(C_BAR, 1, 1, 8, sleep=4)
    E("s_mov_b32 s6, s28")
    lds_wait(C_CNT, 8, 1, 8, sleep=4)
    E("v_and_b32 v3, 15, v0"); E("v_lshlrev_b32 v4, 3, v3"); E(f"ds_read_b64 v[8:9], v4 offset:{MLB}")
    E(f"s_mov_b32 s31, {LOG2E}")
    E("s_waitcnt lgkmcnt(0)")
    E("v_mov_b32 v10, v8"); row_reduce("v_max_f32", 10, (2, 4, 8))
    E("v_sub_f32 v12, v8, v10"); E("v_mul_f32 v12, s31, v12"); E("v_exp_f32 v12, v12"); E("v_mul_f32 v11, v12, v9")
    row_reduce("v_add_f32", 11, (2, 4, 8))
    E("v_and_b32 v5, 1, v0"); E("v_lshlrev_b32 v5, 5, v5"); E("v_lshrrev_b32 v6, 1, v3"); E("v_lshl_add_u32 v5, v6, 2, v5")
    E(f"ds_write_b32 v5, v12 offset:{FAC}")
    E("s_lshl_b32 s28, s4, 5"); E("s_add_u32 s28, s28, s5"); E("s_lshl_b32 s28, s28, 5"); E(f"s_add_u32 s28, s28, {ML_OFF}")
    E("v_mov_b32 v12, s35"); E("v_mov_b32 v13, s35"); E("v_lshlrev_b32 v4, 4, v0")
    E("v_mov_b32 v6, s6"); E(f"ds_write_b32 v1, v6 offset:{C_FAC}")
    E("s_mov_b64 exec, 3")
    intra_store(["buffer_store_dwordx4 v[10:13], v4, s[24:27], s28 offen"])
    E("s_mov_b64 exec, -1")
    E("s_waitcnt lgkmcnt(0)")
    stamp(4)
    E("s_branch L_tailprep")

    E.label("L_s3")
    E("v_lshlrev_b32 v2, 4, v0")
    for k in range(4): E(f"v_mov_b32 v{4+k}, -1")
    E("s_cmp_ge_u32 s5, 9"); E("s_cbranch_scc1 L_noclr")
    E(f"s_mul_i32 s28, s4, {ZS}"); E("s_mul_i32 s29, s5, 320"); E("s_add_u32 s28, s28, s29"); E(f"s_add_u32 s28, s28, {Z_OFF}")
    E("s_mov_b64 exec, 0xfffff"); E("buffer_store_dwordx4 v[4:7], v2, s[24:27], s28 offen sc1"); E("s_mov_b64 exec, -1")
    E.label("L_noclr")
    E("s_getreg_b32 s29, hwreg(HW_REG_XCC_ID)"); E("s_and_b32 s29, s29, 15")
    mktag()
    if fb:
        lds_wait(C_VH, 1, 1, 8, sleep=4)
        E("s_lshl_b32 s28, s28, 4"); E("s_or_b32 s29, s29, s28")
    E("v_mov_b32 v8, s29"); E("v_mov_b32 v9, s35")
    E("s_lshl_b32 s28, s4, 5"); E("s_add_u32 s28, s28, s5"); E("s_lshl_b32 s28, s28, 3"); E(f"s_add_u32 s28, s28, {FL_OFF}")
    E("s_waitcnt vmcnt(0)")
    stamp(1)
    E("s_mov_b64 exec, 1"); E("buffer_store_dwordx2 v[8:9], v1, s[24:27], s28 offen sc1"); E("s_mov_b64 exec, -1")
    if 'q' in dbg: E("s_branch L_svc_end")
    lds_wait(C_Q if NL and not fbl else C_CNT, 1 if NL and not fbl else (fbl or 8), 1, 8, sleep=8)
    E(f"s_mov_b32 s30, {FL_OFF}")
    def barbody():
        E("buffer_load_dwordx4 v[8:11], v2, s[24:27], s30 offen sc1"); E("buffer_load_dwordx4 v[12:15], v2, s[24:27], s30 offen offset:1024 sc1")
        E("s_waitcnt vmcnt(0)")
        tagcheck(16, [9, 11, 13, 15])
    poll(barbody, sl_bar)
    if fb:
        for r in (8, 10, 12, 14): E(f"v_sub_u32 v{r+1}, s29, v{r}"); E(f"v_ashrrev_i32 v{r+1}, 4, v{r+1}")
        E("v_add3_u32 v9, v9, v11, v13"); E("v_add_u32 v9, v9, v15")
        row_reduce("v_add_u32", 9, (1, 2, 4, 8)); swap_reduce("v_add_u32", 9, 11, 16); swap_reduce("v_add_u32", 9, 11, 32)
        E("v_readfirstlane_b32 s30, v9")
        E("s_ashr_i32 s30, s30, 8"); E(f"s_sub_i32 s30, s30, {fbo}"); E(f"s_mul_i32 s30, s30, {fbg}"); E("s_ashr_i32 s30, s30, 8")
        E("s_max_i32 s30, s30, 0"); E("s_min_i32 s30, s30, 8")
        if stamps is True: E("s_mov_b32 s73, s30")
        if fbm: E("s_sub_u32 s30, 8, s30")
        E("s_lshl_b32 s30, s30, 1"); E("s_or_b32 s30, s30, 1"); lds_set(C_KH, 1, 9, "s30")
    E("s_cmp_ge_u32 s4, 4"); E("s_cselect_b64 vcc, -1, 0")
    E("v_cndmask_b32 v8, v8, v12, vcc"); E("v_cndmask_b32 v10, v10, v14, vcc")
    E("v_xor_b32 v8, s29, v8"); E("v_bitop3_b32 v8, v8, v10, s29 bitop3:0xf6"); E("v_and_b32 v8, 15, v8"); E("v_cmp_ne_u32 vcc, 0, v8")
    E("s_and_b32 s30, s4, 3"); E("s_lshl_b32 s30, s30, 4"); E("s_lshr_b64 s[30:31], vcc, s30"); E("s_and_b32 s30, s30, 0xffff")
    E(f"s_cselect_b32 s6, 1, {1 if force_slow else 3}")
    E("v_mov_b32 v8, s6"); E(f"ds_write_b32 v1, v8 offset:{C_BAR}")
    stamp(2)
    E("s_branch L_tailprep")

    E.label("L_stream")
    xd = XD if any(XW) or XN else 0
    if XN:
        E(f"s_mov_b32 s23, {XN[0]}")
        E("s_bitcmp1_b32 s4, 0"); E(f"s_cselect_b32 s28, {XN[2]}, {XN[1]}"); E("s_cmp_ge_u32 s5, 9"); E("s_cselect_b32 s23, s28, s23")
        for lo, n in zip((15, 19, 27), (XN[3], XN[4], 0)):
            E(f"s_cmp_ge_u32 s5, {lo}"); E(f"s_cselect_b32 s23, {n}, s23")
        E("s_sub_u32 s29, s2, 216"); E("s_cmp_lt_u32 s29, 22"); E("s_cselect_b32 s23, s28, s23")
        E("s_cmp_eq_u32 s5, 22"); E(f"s_cselect_b32 s23, {XN[5]}, s23")
        E("s_cmp_eq_u32 s2, 215"); E(f"s_cselect_b32 s23, {XN[7]}, s23")
        E("s_cmp_eq_u32 s2, 203"); E(f"s_cselect_b32 s23, {XN[4] + XN[6]}, s23"); E("s_cmp_eq_u32 s2, 211"); E(f"s_cselect_b32 s23, {XN[4] + XN[6]}, s23")
        E("s_sub_u32 s29, s5, 9"); E("s_cmp_lt_u32 s29, 2"); E("s_cselect_b32 s23, 0, s23"); E(f"s_cselect_b32 s20, {XL1}, 0")
        E("s_cmp_ge_u32 s2, 238"); E(f"s_cselect_b32 s20, {XL2}, s20")
        if XM:
            E("s_getreg_b32 s28, hwreg(HW_REG_XCC_ID)"); E("s_and_b32 s28, s28, 15"); E(f"s_lshr_b32 s28, {XM}, s28"); E("s_and_b32 s28, s28, 1"); E(f"s_mul_i32 s28, s28, {XMN}"); E("s_add_u32 s23, s23, s28")
    elif xd:
        E(f"s_mov_b32 s23, {XW[0]}")
        for lo, n in zip((9, 15, 24), XW[1:4]):
            E(f"s_cmp_ge_u32 s5, {lo}"); E(f"s_cselect_b32 s23, {n}, s23")
        E("s_cmp_eq_u32 s5, 27"); E(f"s_cselect_b32 s23, {XW[4]}, s23")
        if len(XW) > 5:
            E("s_cmp_ge_u32 s5, 18"); E("s_cselect_b32 s28, 18, 9"); E("s_sub_u32 s28, s5, s28"); E("s_cmp_lt_u32 s28, 9"); E("s_cselect_b32 s29, 0, 8")
            E("s_add_u32 s28, s28, s4"); E("s_and_b32 s28, s28, 7"); E("s_add_u32 s28, s28, s29")
            E("s_cmp_eq_u32 s28, 3"); E(f"s_cselect_b32 s23, {XW[5]}, s23")
    def setscc(): pass
    tp = [0]; XWV = [0]
    def throttle(d):
        lean = any(lo <= tp[0] < hi and (tp[0] - lo) % st_ == 0 for lo, hi, st_ in LE)
        lo_ = d - 1 - lean; hi_ = d - 1 + xd - (lean and not LX)
        thr = tp[0]; tp[0] += 1
        if thr < max(max(XN), XN[4] + XN[6]) + XMN:
            a = L("th"); E(f"s_cmp_gt_u32 s23, {thr}"); E(f"s_waitcnt vmcnt({hi_})"); E(f"s_cbranch_scc1 {a}"); E(f"s_waitcnt vmcnt({lo_})"); E.label(a)
        else: E(f"s_waitcnt vmcnt({lo_})")
        if thr < max(XL1, XL2):
            a = L("th"); E(f"s_cmp_le_u32 s20, {thr}"); E(f"s_cbranch_scc1 {a}"); E(f"s_waitcnt vmcnt({lo_-1})"); E.label(a)
    if GEN: pass
    elif pat == 'B2':
        for k in (1, 2, 3, 6, 7): soffB(k)
    else:
        for u in range(1, 8): soff(u)
    srd(12, 40, 0x4000000); srd(24, 62, WS_SIZE)
    E(f"s_load_dword s34, s[62:63], {EP_OFF}")
    if LIN:
        E("v_and_b32 v1, 15, v0"); E("v_lshlrev_b32 v1, 4, v1"); lanepart(1, 4, 5)
    elif GEN:
        E("v_and_b32 v1, 15, v0"); E("v_lshlrev_b32 v1, 4, v1"); E("v_bfe_u32 v5, v0, 4, 1"); E(f"v_lshl_add_u32 v1, v5, {gb[0]}, v1"); E("v_lshrrev_b32 v5, 5, v0"); E(f"v_lshl_add_u32 v1, v5, {gb[1]}, v1")
    else: E("v_lshlrev_b32 v1, 4, v0")
    E("v_bfe_u32 v4, v0, 3, 1"); E("v_lshlrev_b32 v4, 8, v4"); E("v_lshl_add_u32 v36, v3, 4, v4")
    if warm:
        E("s_cmp_lg_u32 s3, 7"); E("s_cbranch_scc1 L_nowarm")
        E("s_mov_b64 exec, 1")
        if 'v' in warm: E(f"buffer_load_dword v5, v1, s[12:15], s{SO(0)} offen nt")
        if 's' in warm: E(f"s_mov_b32 s28, {EP_OFF}"); E("buffer_load_dword v5, v1, s[24:27], s28 offen nt")
        if 'w' in warm:
            E("s_cmp_ge_u32 s5, 18"); E("s_cselect_b32 s16, s50, s48"); E("s_cselect_b32 s17, s51, s49"); E(f"s_mov_b32 s18, {576*9216}"); E("s_mov_b32 s19, 0x20000")
            E("s_mov_b64 exec, 15"); E(f"v_mul_u32_u24 v6, {191*9216}, v0"); E("s_lshl_b32 s28, s2, 5")
            E("buffer_load_dword v5, v6, s[16:19], s28 offen nt")
        E("s_mov_b64 exec, -1")
        E.label("L_nowarm")
    stamp(8)
    E("s_barrier")
    stamp(9)
    for i in range(K0, D): kload(i)
    if gateq:
        E("s_cmp_lg_u32 s21, 3"); E("s_cbranch_scc1 L_kgo")
        E("v_mov_b32 v3, 0")
        lds_wait(C_GO, 4, 3, 4, sleep=4)
        E.label("L_kgo")
    setscc()
    for i in range(max(D, K0), 32):
        throttle(D); kload(i)
        if i in (4, 8): stamp(10 + (i == 8))
        if km and i == km:
            E("s_cmp_lg_u32 s21, 3"); E("s_cbranch_scc1 L_nokm"); E("v_mov_b32 v3, 0"); E("v_mov_b32 v4, 1"); E(f"ds_write_b32 v3, v4 offset:{C_NR}"); E.label("L_nokm")
        if fb and i == fb:
            E("s_cmp_lg_u32 s3, 3"); E("s_cbranch_scc1 L_nofb")
            E("s_memrealtime s[28:29]"); E("v_mov_b32 v3, 0"); E("s_waitcnt lgkmcnt(0)"); E("s_or_b32 s28, s28, 1"); E("v_mov_b32 v4, s28"); E(f"ds_write_b32 v3, v4 offset:{C_VH}")
            E.label("L_nofb")
        if kh and i == kh: E("v_mov_b32 v3, 0"); E("v_mov_b32 v4, 1"); E(f"ds_write_b32 v3, v4 offset:{C_KH}")
    stamp(1)
    if NL:
        E(f"s_mov_b32 s22, {SLOT_A}"); E("s_cmp_lt_u32 s5, 9"); E(f"s_cselect_b32 s22, {SLOT_B}, s22"); E(f"s_mul_i32 s28, s3, {NL*1024}"); E("s_add_u32 s22, s22, s28")
        for i in range(NL):
            if i % 4 == 0 or pat != 'A': E(f"s_add_u32 m0, s22, {i*1024}")
            throttle(D); vload(i)
            if kh == 32 + i: E("v_mov_b32 v3, 0"); E("v_mov_b32 v4, 1"); E(f"ds_write_b32 v3, v4 offset:{C_KH}")
    stamp(12)
    E("v_mov_b32 v2, 0")
    if 'q' not in dbg: lds_wait(C_Q, 1, 2, 3)
    if XL:
        E("s_cmp_eq_u32 s28, 1"); E(f"s_cselect_b32 s28, {XL}, 0"); E("s_add_u32 s23, s23, s28")
        XWV[0] = XL
    E(f"ds_read_b128 v[20:23], v36 offset:{QBUF}")
    E(f"s_mov_b32 s30, {SCALE}"); E(f"s_mov_b32 s31, {LOG2E}")
    E("v_mov_b32 v36, 0xff800000")
    mktag()
    stamp(2)
    setscc()
    st = dict(issued=NL)
    def qk_mfma(u):
        n = (28 - 4*u) + st['issued']
        if n < D + xd + st['issued'] and n < 63: E(f"s_waitcnt vmcnt({n})")
        for i in range(4*u, 4*u+4):
            E(f"v_mfma_f32_16x16x32_bf16 v[{SL(i)}:{SL(i)+3}], v[{SL(i)}:{SL(i)+3}], v[20:23], 0")
    def qk_post(u):
        if 'c' in dbg: return
        T = [24, 25, 26, 27]
        for k in range(4):
            for a in range(4):
                r = SL(4*u + a) + k
                if k == 0: E(f"v_mov_b32_dpp v{T[a]}, v{r} quad_perm:[0,0,0,0] row_mask:0xf bank_mask:0xf")
                else: E(f"v_add_f32_dpp v{T[a]}, v{r}, v{T[a]} quad_perm:[{k},{k},{k},{k}] row_mask:0xf bank_mask:0xf")
        E("v_cvt_pk_bf16_f32 v28, v24, v25"); E("v_cvt_pk_bf16_f32 v29, v26, v27")
        E("v_lshlrev_b32 v24, 16, v28"); E("v_and_b32 v25, 0xffff0000, v28")
        E("v_lshlrev_b32 v26, 16, v29"); E("v_and_b32 v27, 0xffff0000, v29")
        for a in range(4): E(f"v_mul_f32 v{T[a]}, s30, v{T[a]}")
        E(f"v_cvt_pk_bf16_f32 v{4+2*u}, v24, v25"); E(f"v_cvt_pk_bf16_f32 v{5+2*u}, v26, v27")
        E("v_max3_f32 v36, v24, v25, v36"); E("v_max3_f32 v36, v26, v27, v36")
    def vissue(d=None):
        i = st['issued']
        d = DV if d is None else d
        throttle(d); vload(i); st['issued'] += 1
        if i == v2:
            assert v2 >= NL + 8
            E("v_mov_b32 v2, 0"); E(f"ds_write_b32 v2, v24 offset:{C_V2}")
    def expo(k):
        if 'c' in dbg: return
        E(f"v_lshlrev_b32 v24, 16, v{4+k}"); E(f"v_and_b32 v25, 0xffff0000, v{4+k}")
        E("v_fma_f32 v24, v24, s31, -v37"); E("v_fma_f32 v25, v25, s31, -v37")
        E("v_exp_f32 v24, v24"); E("v_exp_f32 v25, v25")
        E("v_add_f32 v38, v38, v24"); E("v_add_f32 v39, v39, v25")
        E(f"v_cvt_pk_bf16_f32 v{4+k}, v24, v25")
    qk_mfma(0); qk_mfma(1); qk_post(0)
    if qs == 0:
        for _ in range(4): vissue(DQ)
        qk_mfma(2); qk_post(1)
        for _ in range(1 if DQ <= 4 else 4): vissue(DQ)
        for u in range(3, 8):
            qk_mfma(u); qk_post(u-1)
            if DQ > 4 or u % 2 == 0: vissue(DQ)
    else:
        vissue(DQ); vissue(DQ)
        for u in range(2, 8):
            qk_mfma(u); qk_post(u-1)
            if u % 2 == 1: vissue(DQ)
    qk_post(7)
    if NL:
        E(f"s_waitcnt vmcnt({st['issued'] - NL})"); E("v_lshl_add_u32 v3, v0, 4, s22")
        for i in range(NL): E(f"ds_read_b128 v[{VS(i)}:{VS(i)+3}], v3 offset:{i*1024}")
    swap_reduce("v_max_f32", 36, 24, 16); swap_reduce("v_max_f32", 36, 24, 32)
    rnd(36, 36)
    E("v_mul_f32 v37, s31, v36"); E("v_mov_b32 v38, 0"); E("v_mov_b32 v39, 0")
    for k in range(16):
        if k % (4 if qs == 0 else 6) == (0 if qs == 0 else 2): vissue(DQ)
        expo(k)
    E("v_add_f32 v37, v38, v39")
    swap_reduce("v_add_f32", 37, 24, 16); swap_reduce("v_add_f32", 37, 24, 32)
    E("s_lshl_b32 s28, s3, 4"); E("v_add_u32 v3, s28, v0"); E("v_mov_b32 v24, 1")
    E("s_mov_b64 exec, 0x101"); E(f"ds_write_b64 v3, v[36:37] offset:{MLB}")
    E("s_mov_b64 exec, 1"); E(f"ds_add_u32 v2, v24 offset:{C_CNT}")
    E("s_mov_b64 exec, -1")
    stamp(3)
    E("v_and_b32 v3, 1, v0"); E("v_cmp_eq_u32 vcc, 1, v3")
    E("v_mov_b32 v32, 0x0c0c0100"); E("v_mov_b32 v33, 0x01000c0c"); E("v_cndmask_b32 v32, v32, v33, vcc")
    E("v_mov_b32 v34, 0x0c0c0302"); E("v_mov_b32 v33, 0x03020c0c"); E("v_cndmask_b32 v33, v34, v33, vcc")
    E("v_bfe_u32 v3, v0, 1, 2"); E("v_mov_b32 v34, 0x0c0c0c0c")
    for r in range(4):
        E(f"v_cmp_eq_u32 vcc, {r}, v3"); E(f"v_cndmask_b32 v{24+r}, v34, v32, vcc"); E(f"v_cndmask_b32 v{28+r}, v34, v33, vcc")
    E("v_and_b32 v3, 15, v0"); E("v_lshlrev_b32 v3, 5, v3"); E("v_bfe_u32 v2, v0, 4, 1"); E("v_lshl_add_u32 v3, v2, 4, v3")
    E("v_lshrrev_b32 v2, 5, v0"); E("v_lshl_add_u32 v3, v2, 9, v3"); E("s_lshl_b32 s28, s3, 10"); E("v_add_u32 v3, s28, v3")
    setscc()
    if NL: E("s_waitcnt lgkmcnt(0)")
    pv = dict(done=0)
    def pv_prep(i):
        A0 = 32 + 4 * (i & 1)
        for r in range(4): E(f"v_perm_b32 v{A0+r}, v{4+i//2}, v{4+i//2}, v{24+4*(i&1)+r}")
    def pv_mfma(i):
        A0 = 32 + 4 * (i & 1)
        c = "0" if i == 0 else "v[20:23]"
        E(f"v_mfma_f32_16x16x32_bf16 v[20:23], v[{A0}:{A0+3}], v[{VS(i)}:{VS(i)+3}], {c}")
    while st['issued'] < 32:
        vissue(DV - (1 if fbm and st['issued'] > fbv else 0) + (DE if st['issued'] >= 32 - NE else 0))
        n = 0
        while pv['done'] <= st['issued'] - 1 - DV - xd - (DE if st['issued'] > 32 - NE else 0) and n < 4:
            pv_prep(pv['done']); pv_mfma(pv['done']); pv['done'] += 1; n += 1
    E("v_mov_b32 v2, 0")
    if N2: lds_inc(C_GT, 2, 4)
    lds_wait(C_FAC, 1, 2, 4, sleep=1)
    E("s_mov_b32 s6, s28"); E("s_lshl_b32 s28, s3, 2")
    E("v_and_b32 v4, 32, v0"); E("v_add_u32 v4, s28, v4"); E(f"ds_read_b32 v5, v4 offset:{FAC}")
    tagbyte(6, 0)
    E("v_mov_b32 v4, 1")
    E("s_lshl_b32 s29, s4, 5"); E("s_add_u32 s29, s29, s5"); E("s_lshl_b32 s29, s29, 10")
    assert pv['done'] >= 6
    while pv['done'] < 32:
        i = pv['done']
        pv_prep(i)
        if 31 - i < DV + xd + DE: E(f"s_waitcnt vmcnt({31-i})")
        pv_mfma(i); pv['done'] += 1
    E("s_waitcnt lgkmcnt(0)")
    for k in range(4): E(f"v_mul_f32 v{20+k}, v5, v{20+k}")
    E(f"ds_write_b128 v3, v[20:23] offset:{OBUF}")
    E("s_mov_b64 exec, 1"); E(f"ds_add_rtn_u32 v4, v2, v4 offset:{C_OC}"); E("s_mov_b64 exec, -1")
    for w in range(8): E(f"ds_read_b128 v[{40+4*w}:{43+4*w}], v1 offset:{OBUF + w*1024}")
    if stamps is True: stamp(4)
    E("s_waitcnt lgkmcnt(8)")
    E("v_readfirstlane_b32 s28, v4"); E("s_cmp_lg_u32 s28, 7"); E("s_cbranch_scc1 L_noreduce")
    E.label("L_reduce")
    PK = lambda d, x, y: (E(f"v_pk_add_f32 v[{d}:{d+1}], v[{x}:{x+1}], v[{y}:{y+1}]"), E(f"v_pk_add_f32 v[{d+2}:{d+3}], v[{x+2}:{x+3}], v[{y+2}:{y+3}]"))
    E("s_waitcnt lgkmcnt(6)"); PK(40, 40, 44)
    E("s_waitcnt lgkmcnt(4)"); PK(48, 48, 52); PK(40, 40, 48)
    E("s_waitcnt lgkmcnt(2)"); PK(56, 56, 60); PK(40, 40, 56)
    E("s_waitcnt lgkmcnt(0)"); PK(64, 64, 68); PK(40, 40, 64)
    settag(40, 6)
    intra_store(["buffer_store_dwordx4 v[40:43], v1, s[24:27], s29 offen"])
    if oack: live("s_waitcnt vmcnt(0)")
    lds_set(C_OC, 2, 4, 9)
    stamp(5)
    E.label("L_noreduce")
    if 't' in dbg: E("s_branch L_sdone")
    E("s_cmp_ge_u32 s5, 9"); E("s_cbranch_scc1 L_nogather")
    E("s_lshl_b32 s16, s4, 3"); E("s_add_u32 s16, s16, s3"); E("s_lshl_b32 s16, s16, 12")
    E("s_lshr_b32 s28, s3, 1"); E("s_lshl_b32 s28, s28, 6"); E("s_and_b32 s29, s3, 1"); E("s_lshl_b32 s30, s29, 4"); E("s_add_u32 s28, s28, s30")
    E("v_and_b32 v3, 32, v0"); E("v_add_u32 v3, s28, v3")
    E("s_lshl_b32 s29, s29, 1"); E("s_lshr_b32 s30, s3, 2"); E("s_add_u32 s29, s29, s30"); E(f"s_mul_i32 s29, s29, {AROW}")
    E("s_bfe_u32 s30, s3, 0x10001"); E("s_lshl_b32 s30, s30, 9"); E("s_add_u32 s29, s29, s30")
    E("v_lshlrev_b32 v7, 3, v0"); E("v_add_u32 v7, s29, v7")
    E("s_cbranch_execz L_ggo")
    lds_wait(C_G, 4, 2, 4, sleep=1)
    E(f"ds_read_b128 v[8:11], v3 offset:{WGT}")
    lds_wait(C_OC, gw, 2, 4, sleep=gs)
    E.label("L_ggo")
    def obody():
        for s_ in range(4): E(f"buffer_load_dwordx4 v[{24+4*s_}:{27+4*s_}], v1, s[24:27], s16 offen offset:{s_*1024} sc1")
        for s_ in range(4):
            E(f"s_waitcnt vmcnt({3-s_})")
            E(f"v_xor_b32 v{24+4*s_}, v6, v{24+4*s_}")
            for k in (1, 2, 3, 0):
                if s_ == 0: E(f"v_mul_f32 v{12+k}, v8, v{24+k}")
                else: E(f"v_fmac_f32 v{12+k}, v{8+s_}, v{24+4*s_+k}")
            if s_ == 2: E("v_or3_b32 v16, v24, v28, v32")
        E("v_cvt_pk_bf16_f32 v12, v12, v13"); E("v_cvt_pk_bf16_f32 v13, v14, v15")
        E(f"ds_write_b64 v7, v[12:13] offset:{ABUF}")
        E("v_or_b32 v16, v16, v36"); E("v_and_b32 v16, 0xfff, v16"); E("v_cmp_ne_u32 vcc, 0, v16")
    poll(obody, sl_o)
    stamp(6)
    E("s_branch L_slast")
    E.label("L_nogather")
    w2idx(28); E("s_cmp_ge_u32 s28, 9"); E("s_cbranch_scc1 L_sdone")
    E("s_cmp_ge_u32 s3, 5"); E("s_cbranch_scc1 L_sdone")
    E("s_lshl_b32 s28, s3, 6"); E("v_add_u32 v2, s28, v0"); E("v_min_u32 v2, 287, v2")
    tagbyte(22, 2)
    E("v_lshlrev_b32 v1, 4, v2")
    E("v_lshlrev_b32 v2, 2, v2")
    E("s_mul_i32 s18, s4, 9216"); E(f"s_add_u32 s18, s18, {G_OFF}"); E("s_add_u32 s19, s18, 4608")
    E(f"v_mov_b32 v8, {LOG2E ^ 0x80000000}"); E("v_mov_b32 v9, v8"); E("v_mov_b32 v10, 1.0"); E("v_mov_b32 v11, 1.0")
    E("v_mov_b32 v3, 0")
    Rh = lambda t: 40 + 8 * t
    def gloads(t):
        E(f"buffer_load_dwordx4 v[{Rh(t)}:{Rh(t)+3}], v1, s[24:27], s18 offen sc1"); E(f"buffer_load_dwordx4 v[{Rh(t)+4}:{Rh(t)+7}], v1, s[24:27], s19 offen sc1")
    E("s_cbranch_execz L_hgo")
    E("s_waitcnt lgkmcnt(0)")
    E("s_barrier"); E("s_barrier")
    gloads(0)
    E("s_barrier"); E("s_barrier")
    E("s_waitcnt vmcnt(0)")
    E.label("L_hgo")
    stamp(6)
    def gfin(t):
        g, u = Rh(t), Rh(t) + 4
        E(f"v_pk_mul_f32 v[4:5], v[{g}:{g+1}], v[8:9]"); E(f"v_pk_mul_f32 v[6:7], v[{g+2}:{g+3}], v[8:9]")
        E(f"v_pk_mul_f32 v[16:17], v[{u}:{u+1}], v[{g}:{g+1}]"); E(f"v_pk_mul_f32 v[18:19], v[{u+2}:{u+3}], v[{g+2}:{g+3}]")
    ppoll(PG, 2, gloads, lambda t: lowcheck(20, [Rh(t), Rh(t)+2, Rh(t)+4, Rh(t)+6], 22), gfin)
    for e in range(4): E(f"v_exp_f32 v{4+e}, v{4+e}")
    E("v_pk_add_f32 v[4:5], v[4:5], v[10:11]"); E("v_pk_add_f32 v[6:7], v[6:7], v[10:11]")
    for e in range(4): E(f"v_rcp_f32 v{4+e}, v{4+e}")
    E("v_pk_mul_f32 v[16:17], v[16:17], v[4:5]"); E("v_pk_mul_f32 v[18:19], v[18:19], v[6:7]")
    E("v_cvt_pk_bf16_f32 v12, v16, v18"); E("v_cvt_pk_bf16_f32 v13, v17, v19")
    E(f"ds_write_b32 v2, v12 offset:{ACT0}"); E(f"ds_write_b32 v2, v13 offset:{ACT1}")
    E.label("L_slast")
    E("s_waitcnt lgkmcnt(0)")
    E("s_cbranch_execz L_ret_s")
    E("s_barrier")
    stamp(7)
    E.label("L_sdone")
    E("s_cbranch_execz L_ret_s")
    stamp_flush(); E("s_endpgm")

    E.label("L_tailprep")
    E("s_mov_b64 s[88:89], -1")
    if reh:
        E("s_cmp_lg_u32 s3, 2"); E("s_cbranch_scc1 L_tp2")
        E("s_mov_b32 s6, 3"); E("s_mov_b32 s29, 0"); E("v_mov_b32 v2, 0")
        walk("L_reduce", "L_ret_s")
        E.label("L_tp2")
    else:
        E.label("L_ret_s")
    E("s_cmp_ge_u32 s5, 27"); E("s_cbranch_scc1 L_w2late")
    E("s_cmp_lt_u32 s5, 9"); E("s_cbranch_scc1 L_owner")

    def wsetup():
        op_addrs()
        E(f"v_mov_b32 v8, {ZBUF}"); E(f"v_mov_b32 v9, {CBUF}"); E(f"v_mov_b32 v10, {SBUF}")
        E("v_cmp_eq_u32 vcc, 1, v6"); E("v_cndmask_b32 v4, v8, v9, vcc"); E("v_cmp_eq_u32 vcc, 2, v6"); E("v_cndmask_b32 v4, v4, v10, vcc")
        E("v_bfe_u32 v7, v0, 2, 1"); E("v_mul_u32_u24 v7, 1152, v7"); E("v_lshl_add_u32 v7, v5, 4, v7"); E("v_add_u32 v4, v4, v7")
        E("v_and_b32 v3, 1, v0"); E("v_xor_b32 v3, 1, v3"); E(f"v_mul_u32_u24 v3, {ACT0-ACT1}, v3"); E("v_lshl_add_u32 v3, v5, 4, v3")
        w13idx(30); E("s_bitcmp0_b32 s5, 0"); E("s_cselect_b32 s29, 9, 0"); E("s_add_u32 s30, s30, s29")
        E("s_lshl_b32 s30, s30, 2"); E("s_add_u32 s30, s30, s3")
        E("s_lshl_b32 @S0@, s30, 7"); E("s_mul_i32 s29, s4, 9216"); E("s_add_u32 @S0@, @S0@, s29"); E(f"s_add_u32 @S0@, @S0@, {G_OFF}")
        E(f"s_mul_i32 @S1@, s4, {ZS}"); E(f"s_add_u32 @S1@, @S1@, {Z_OFF}")
        w2idx(30); E("s_lshl_b32 s30, s30, 2"); E("s_add_u32 s30, s30, s3"); E("s_lshl_b32 s30, s30, 7")
        E("s_lshl_b32 @S2@, s4, 14"); E("s_add_u32 @S2@, @S2@, s30"); E(f"s_add_u32 @S2@, @S2@, {Y_OFF}"); E("s_add_u32 @S6@, @S2@, 8192")
        E("s_mul_i32 s28, s3, 45"); E("v_min_u32 v12, 44, v0"); E("v_add_u32 v12, s28, v12"); E("v_lshlrev_b32 v12, 4, v12")
        E("v_and_b32 v8, 15, v0"); E("v_lshrrev_b32 v9, 5, v0"); E("v_lshl_add_u32 v9, v9, 4, v8"); E("v_cmp_gt_u32 vcc, 18, v9")
        E("v_bfe_u32 v10, v0, 4, 1"); E("v_mul_u32_u24 v11, 288, v10"); E("v_lshl_add_u32 v16, v9, 4, v11"); E(f"v_add_u32 v16, {ZBUF + 2304}, v16")
        E(f"v_mov_b32 v9, {ZERO}"); E("v_cndmask_b32 v16, v9, v16, vcc")
        E("v_and_b32 v8, 3, v0"); E("v_lshlrev_b32 v8, 2, v8"); E(f"ds_write_b32 v8, v1 offset:{ZERO}")
        E("v_lshlrev_b32 v7, 3, v0")
        E("s_mov_b32 @S4@, 0x3ae38e39"); E("s_mov_b32 @S5@, 0x3727c5ac")
    if reh:
        E("s_cmp_lg_u32 s3, 1"); E("s_cbranch_scc1 L_now_w")
        wsetup()
        E("s_mov_b32 s6, 3")
        walk("L_wt", "L_ret_w")
        E.label("L_now_w")
    else: E.label("L_ret_w")
    if 't' not in dbg:
        lds_wait(C_Q, 1, 1, 8, sleep=8)
        mktag()
        own_map()
        modgather(1728, 2304)
        for i in range(3):
            E(f"v_add_f32 v{30+2*i}, 1.0, v{30+2*i}"); E(f"v_add_f32 v{31+2*i}, 1.0, v{31+2*i}")
            E(f"v_cvt_pk_bf16_f32 v12, v{30+2*i}, v{31+2*i}"); E(f"v_cvt_pk_bf16_f32 v13, v{24+2*i}, v{25+2*i}")
            a_, o_ = ((10, 0), (10, 128), (11, 0))[i]
            E(f"ds_write_b32 v{a_}, v12 offset:{CBUF+o_}"); E(f"ds_write_b32 v{a_}, v13 offset:{SBUF+o_}")
    lds_wait(C_BAR, 1, 1, 8, sleep=4)
    E("s_mov_b32 s6, s28")
    wsetup()
    E("s_mov_b32 s20, 9216")
    dma_addrs(24, 25, 26)
    w13idx(28); E("s_bitcmp0_b32 s5, 0"); E("s_cselect_b32 s8, s50, s48"); E("s_cselect_b32 s9, s51, s49")
    E(f"s_mov_b32 s10, {576*9216}"); E("s_mov_b32 s11, 0x20000")
    E("s_mul_i32 s16, s4, 1152"); E("s_lshl_b32 s28, s28, 7"); E("s_add_u32 s16, s16, s28")
    E(f"s_mul_i32 s28, s3, {8*9216}"); E("s_add_u32 s16, s16, s28"); E(f"s_mov_b32 s17, {32*9216}")
    E("s_lshl_b32 s29, s3, 10"); E(f"s_add_u32 s29, s29, {SLOT_A}"); E("s_mov_b32 s19, 9")
    E("s_bitcmp1_b32 s3, 0"); E("s_cselect_b64 vcc, -1, 0"); E("v_cndmask_b32 v24, v24, v25, vcc")
    E("v_lshrrev_b32 v5, 1, v0"); tagbyte(5, 5)

    if tlb:
        E(f"v_mul_u32_u24 v26, {143*9216}, v0"); E("s_mov_b64 exec, 3"); E("buffer_load_dword v27, v26, s[8:11], s16 offen nt"); E("s_mov_b64 exec, -1")
    if NP or NP3:
        E("s_bfe_u32 s30, s16, 0x30007"); E("s_cmp_eq_u32 s30, 3"); E(f"s_cselect_b32 s19, {NP3}, {NP}"); E("s_cmp_lt_u32 s5, 11"); E(f"s_cselect_b32 s19, {NP1}, s19"); E("s_sub_u32 s31, 9, s19")
        E("s_cmp_eq_u32 s19, 0"); E("s_cbranch_scc1 L_nol1")
        if NL: lds_wait(C_CNT, 8, 1, 8, sleep=4)
        else: lds_wait(C_VH, 1, 1, 8, sleep=4)
        dma_loop("L_dma_l1", DW1, 24, 24, 4096)
        E.label("L_nol1")
        E("s_mov_b32 s19, s31")
    if k1:
        lds_wait(C_OC, k1, 1, 8, sleep=1)
        E(f"s_sub_u32 s31, s19, {N1}"); E(f"s_mov_b32 s19, {N1}"); dma_loop("L_dma_l2", 0, 24, 24, 4096); E("s_mov_b32 s19, s31")
    if N2:
        assert not gate
        lds_wait(C_GT, k2, 1, 8, sleep=1)
        E(f"s_sub_u32 s31, s19, {N2}"); E(f"s_mov_b32 s19, {N2}"); dma_loop("L_dma_l3", 0, 24, 24, 4096); E("s_mov_b32 s19, s31")
    if gate:
        E("s_cmp_lg_u32 s3, 1"); E("s_cbranch_scc1 L_gt2")
        lds_wait(C_VH, 1, 1, 8, sleep=2)
        E(f"s_cmp_lg_u32 s5, {gj}"); E("s_cbranch_scc1 L_gt1")
        E("s_lshl_b32 s28, s4, 7"); E(f"s_add_u32 s28, s28, {PG_OFF}"); E("v_mov_b32 v8, s35")
        E("s_mov_b64 exec, 1"); E("buffer_store_dword v8, v1, s[24:27], s28 offen sc1"); E("s_mov_b64 exec, -1")
        E.label("L_gt1")
        lds_wait(C_OC, gk, 1, 8, sleep=1)
        E(f"s_mov_b32 s30, {PG_OFF}"); E("v_and_b32 v9, 7, v0"); E("v_lshlrev_b32 v9, 7, v9"); E("s_mov_b32 s7, 0")
        E.label("L_gtp")
        E("buffer_load_dword v8, v9, s[24:27], s30 offen sc1"); E("s_waitcnt vmcnt(0)")
        E("v_cmp_eq_u32 vcc, s35, v8"); E("s_bcnt1_i32_b64 s31, vcc")
        E(f"s_cmp_ge_u32 s31, {gate*8}"); E("s_cbranch_scc1 L_gtd")
        E(f"s_sleep {gsl}"); E("s_add_u32 s7, s7, 1"); E(f"s_cmp_lt_u32 s7, {plim}"); E("s_cbranch_scc1 L_gtp")
        E.label("L_gtd")
        lds_set(C_GT, 1, 8, 1)
        E.label("L_gt2")
        lds_wait(C_GT, 1, 1, 8, sleep=2)
    lds_wait(C_OC, ko, 1, 8, sleep=1)
    if prio: E(f"s_setprio {prio}")
    stamp(5)
    if 'w' not in dbg: dma_loop("L_dma_late", DW, 24, 24, 4096)
    if 't' in dbg:
        E("s_waitcnt vmcnt(0)"); stamp(6); E("s_branch L_svc_end")
    Rz = lambda t: 84 + 4 * t
    def zload(t): E(f"buffer_load_dwordx4 v[{Rz(t)}:{Rz(t)+3}], v12, s[24:27], @S1@ offen sc1")
    def zcheck(t):
        E(f"ds_write_b128 v12, v[{Rz(t)}:{Rz(t)+3}] offset:{ZBUF}")
        E(f"v_max3_u32 v8, v{Rz(t)}, v{Rz(t)+1}, v{Rz(t)+2}"); E(f"v_max_u32 v8, v8, v{Rz(t)+3}"); E("v_cmp_eq_u32 vcc, -1, v8")
    E(f"s_waitcnt vmcnt({18-KA})")
    E("s_barrier")
    E.label("L_wt")
    stage_b(SLOT_A, KA, wait=False, t=9)
    E(f"s_waitcnt vmcnt({ZL})")
    zload(0)
    E("s_cbranch_execz L_wt2")
    E("s_waitcnt vmcnt(1)")
    E("s_barrier")
    stamp(6)
    E.label("L_wt2")
    stage_b(SLOT_A, 18, wait=False, k0=KA, t=9)
    stamp(7)
    E("s_mov_b32 s7, 0"); E("s_branch L_zchk")
    E.label("L_zpl")
    zload(0)
    E.label("L_zchk")
    E("s_waitcnt vmcnt(0)")
    zcheck(0)
    E("s_cbranch_vccz L_zok")
    E("s_add_u32 s7, s7, 1"); E(f"s_cmp_lt_u32 s7, {plim}"); E("s_cbranch_scc1 L_zpl")
    E.label("L_zok")
    E("s_waitcnt lgkmcnt(0)")
    live("s_barrier")
    stamp(8)
    NSP = 2
    for k in range(NSP): E(f"ds_read_b128 v[{AT(k)}:{AT(k)+3}], v4 offset:{k*64}")
    E("ds_read_b128 v[20:23], v16")
    F = ["v_pk_add_f32 v[18:19], v[20:21], v[22:23]", "v_permlane32_swap_b32 v18, v19", "v_add_f32 v18, v18, v19"]
    F += [f"v_add_f32_dpp v18, v18, v18 row_ror:{k} row_mask:0xf bank_mask:0xf" for k in (1, 2, 4, 8)]
    F += ["v_mul_f32 v18, @S4@, v18", "v_mov_b32 v19, v18", "v_permlane32_swap_b32 v18, v19", "v_fma_f32 v19, -v18, v18, v19", "v_max_f32 v19, 0, v19"]
    R = lambda r: [f"v_cvt_pk_bf16_f32 v{r}, v{r}, v{r}", f"v_and_b32 v{r}, 0xffff0000, v{r}"]
    if mim: F += R(19) + ["v_add_f32 v19, @S5@, v19"] + R(19) + ["v_sqrt_f32 v19, v19"] + R(18) + R(19) + ["v_rcp_f32 v19, v19"]
    else: F += ["v_add_f32 v19, @S5@, v19", "v_rsq_f32 v19, v19"]
    gemv(4, 0, 18, 8, F, pre=NSP, extra=1)
    E("v_fma_f32 v8, -v18, v9, v8"); E("v_fma_f32 v8, v8, v19, v10")
    E("v_mov_b32 v9, v8"); E("v_permlane16_swap_b32 v8, v9")
    settag(8, 5)
    E(X(0xffff))
    intra_store(["buffer_store_dwordx2 v[8:9], v7, s[24:27], @S0@ offen"])
    E(X(-1))
    stamp(13)
    E(f"s_sub_u32 s28, s5, {JW2}"); E("s_cmp_ge_u32 s28, 4"); E("s_cbranch_scc1 L_wend")
    E.label("L_w2t")
    live("s_barrier")
    stage_b(SLOT_B, 18)
    tagbyte(5, 0)
    live("s_barrier")
    stamp(14)
    gemv(3, ACT1, 18, 8)
    settag(8, 5)
    E(X(0xffff))
    E("buffer_store_dwordx2 v[8:9], v7, s[24:27], @S2@ offen sc1")
    if numa: E("buffer_store_dwordx2 v[8:9], v7, s[24:27], @S6@ offen sc1")
    stamp(15)
    E.label("L_wend")
    E("s_cbranch_execnz L_svc_end")
    E("s_cmp_ge_u32 s5, 27"); E("s_cbranch_scc1 L_ret_l"); E("s_branch L_ret_w")

    E.label("L_w2late")
    mktag()
    wsetup()
    if reh:
        E("s_cmp_lg_u32 s3, 1"); E("s_cbranch_scc1 L_now_l")
        walk("L_w2t", "L_ret_l")
        E.label("L_now_l")
    else: E.label("L_ret_l")
    E("s_mov_b32 s20, 1152")
    dma_addrs(24, 25, 26)
    E("s_mov_b32 s8, s52"); E("s_mov_b32 s9, s53"); E(f"s_mov_b32 s10, {4608*1152}"); E("s_mov_b32 s11, 0x20000")
    E("s_lshl_b32 s28, s4, 2"); E("s_add_u32 s28, s28, s3"); E(f"s_mul_i32 s16, s28, {144*1152}"); E("s_sub_u32 s28, s5, 23"); E("s_lshl_b32 s28, s28, 7"); E("s_add_u32 s16, s16, s28")
    E("s_mul_i32 s29, s3, 18432"); E(f"s_add_u32 s29, s29, {SLOT_B}"); E("s_mov_b32 s19, 9")
    E("s_lshl_b32 s30, s21, 1"); lds_wait(C_GO, "s30", 1, 8, sleep=2)
    lds_wait(C_OC, 9, 1, 8, sleep=2)
    if wn:
        E("s_cmp_lg_u32 s3, 1"); E("s_cbranch_scc1 L_wl2")
        E("v_and_b32 v9, 31, v0"); E("v_lshlrev_b32 v9, 10, v9"); E("s_lshl_b32 s30, s4, 15"); E("s_and_b32 s31, s35, 0xfff"); E("s_mov_b32 s7, 0")
        E.label("L_wlp")
        E("buffer_load_dword v8, v9, s[24:27], s30 offen sc1"); E("s_waitcnt vmcnt(0)")
        E("v_and_b32 v8, 0xfff, v8"); E("v_cmp_eq_u32 vcc, s31, v8"); E("s_bcnt1_i32_b64 s28, vcc")
        E(f"s_cmp_ge_u32 s28, {2*wn}"); E("s_cbranch_scc1 L_wld")
        E(f"s_sleep {wsl}"); E("s_add_u32 s7, s7, 1"); E(f"s_cmp_lt_u32 s7, {plim}"); E("s_cbranch_scc1 L_wlp")
        E.label("L_wld")
        lds_set(C_D1, 1, 8, 1)
        E.label("L_wl2")
        lds_wait(C_D1, 1, 1, 8, sleep=1)
    if prio: E(f"s_setprio {prio}")
    stamp(5)
    dma_loop("L_dma_w2l", 0, 24, 25)
    E("s_waitcnt vmcnt(0)")
    E("s_barrier"); E("s_barrier"); E("s_barrier")
    stamp(6)
    E("s_branch L_w2t")

    E.label("L_owner")
    if 't' in dbg: E("s_waitcnt vmcnt(0)"); E("s_branch L_svc_end")
    E("s_waitcnt vmcnt(0)")
    lds_inc(C_D1, 1, 8)
    mktag()
    op_addrs()
    E("s_lshl_b32 s22, s5, 2"); E("s_add_u32 s22, s22, s3")
    E("v_and_b32 v6, 15, v0"); E("v_bfe_u32 v7, v0, 4, 1"); E("v_lshrrev_b32 v20, 4, v0"); E("v_lshlrev_b32 v20, 14, v20"); E("v_lshl_add_u32 v20, v6, 3, v20")
    E("v_mul_u32_u24 v21, 1152, v7"); E("v_lshl_add_u32 v21, v6, 1, v21")
    E("v_mul_u32_u24 v22, 288, v7")
    E("v_lshlrev_b32 v23, 3, v6")
    E("v_cmp_eq_u32 vcc, 0, v7"); E("v_mov_b32 v19, 0x03020c0c"); E("v_mov_b32 v6, 0x01000c0c"); E("v_cndmask_b32 v19, v19, v6, vcc")
    E("s_lshl_b32 s23, s22, 5")
    srd(8, 36, 2304); srd(12, 58, 2304)
    E("s_lshl_b32 s28, s22, 7"); E(f"s_add_u32 s32, s28, {MOD_OFF + 1152*8}"); E(f"s_add_u32 s33, s32, {1152*8}"); E(f"s_add_u32 s19, s33, {576*8}")
    E("s_lshl_b32 s29, s4, 14"); E("s_add_u32 s29, s29, s28")
    E(f"s_add_u32 s18, s29, {X_OFF}"); E(f"s_add_u32 s{SO(4)}, s18, 8192")
    XS = SO
    for k in range(4): E(f"s_add_u32 s{XS(k)}, s28, {(X_OFF, X_OFF + 4*16384, Y_OFF, Y_OFF + 4*16384)[k]}")
    E(f"s_mul_i32 s20, s4, {ZS}"); E("s_add_u32 s20, s20, s23"); E(f"s_add_u32 s20, s20, {Z_OFF}")
    E(f"s_mul_i32 s21, s4, {ZS}"); E("s_lshl_b32 s28, s22, 3"); E("s_add_u32 s21, s21, s28"); E(f"s_add_u32 s21, s21, {ST_OFF}")
    E("v_lshlrev_b32 v7, 3, v0")
    E("v_and_b32 v3, 3, v0"); E(f"v_mul_u32_u24 v3, {AROW}, v3"); E("v_lshl_add_u32 v3, v5, 4, v3")
    if reh:
        E("s_cmp_lg_u32 s3, 1"); E("s_cbranch_scc1 L_now_o")
        E("s_mov_b32 s6, 3")
        walk("L_ot", "L_ret_o")
        E.label("L_now_o")
    else: E.label("L_ret_o")
    if numa:
        E("s_cmp_lg_u32 s3, 2"); E("s_cbranch_scc1 L_nonuma")
        E("s_lshl_b32 s28, s4, 14"); E("s_lshl_b32 s29, s5, 8"); E("s_add_u32 s28, s28, s29"); E(f"s_add_u32 s28, s28, {X_OFF + 4608}")
        NPR = 4
        for k in range(NPR):
            E(f"s_add_u32 s{36+2*k}, s28, {(k & 1) * 0x20000 + (k >> 1) * 1152}"); E(f"s_add_u32 s{37+2*k}, s{36+2*k}, 8192")
        for k in range(2 * NPR): E(f"s_buffer_load_dword s{44+k}, s[24:27], s{36+k} glc")
        E("s_mov_b32 s30, 0"); E("s_mov_b32 s31, 0")
        E("s_waitcnt lgkmcnt(0)")
        E.label("L_numa")
        for k in range(NPR):
            order = (0, 1) if k & 1 else (1, 0)
            sec = order[1]
            E(f"s_not_b32 s{52+sec}, s{44+2*k+sec}")
            for c in order: E(f"s_buffer_load_dword s{52+c}, s[24:27], s{36+2*k+c} glc")
            E("s_waitcnt lgkmcnt(1)"); E("s_nop 7")
            E(f"s_cmp_{'eq' if sec else 'lg'}_u32 s{52+sec}, s{44+2*k+sec}"); E("s_addc_u32 s30, s30, 0")
            E("s_waitcnt lgkmcnt(0)")
        E("s_add_u32 s31, s31, 1"); E(f"s_cmp_lt_u32 s31, {NRR}"); E("s_cbranch_scc1 L_numa")
        if pool:
            E("s_lshl_b32 s31, s4, 7"); E(f"s_add_u32 s31, s31, {VT_OFF}"); E("s_lshl_b32 s29, s5, 3"); E("s_add_u32 s29, s29, s31")
            E("v_mov_b32 v24, s30"); E("v_mov_b32 v25, s35")
            E("s_mov_b64 exec, 1"); E("buffer_store_dwordx2 v[24:25], v1, s[24:27], s29 offen sc1"); E("s_mov_b64 exec, -1")
            lds_wait(C_CNT, 8, 1, 8, sleep=8)
            E("v_min_u32 v26, 64, v23")
            def vtbody():
                E("buffer_load_dwordx2 v[24:25], v26, s[24:27], s31 offen sc1"); E("s_waitcnt vmcnt(0)"); tagcheck(27, [25])
            poll(vtbody, 16)
            E("v_cmp_gt_u32 vcc, 72, v23"); E("v_cndmask_b32 v24, 0, v24, vcc")
            row_reduce("v_add_u32", 24, (1, 2, 4, 8))
            E("v_readfirstlane_b32 s30, v24")
        if stamps is True: E("s_mov_b32 s71, s30"); stamp(2)
        E(f"s_cmp_gt_u32 s30, {(9 if pool else 1)*NPR*NRR//2}"); E(f"s_cselect_b32 s30, {8193 if numa == 1 else 1}, {1 if numa == 1 else 8193}")
        lds_set(C_NR, 1, 8, "s30")
        E.label("L_nonuma")
    lds_wait(C_BAR, 1, 1, 8, sleep=8)
    E("s_mov_b32 s6, s28")
    lds_wait(C_D1, 4, 1, 8, sleep=4)
    stage_b(SLOT_A, 16)
    E("buffer_load_ushort v16, v21, s[8:11], s23 offen")
    E("v_lshrrev_b32 v28, 5, v0"); E("v_lshlrev_b32 v28, 6, v28"); E("v_and_b32 v29, 15, v0"); E("v_lshl_add_u32 v28, v29, 1, v28"); E("v_add_u32 v28, v28, v21")
    E("buffer_load_dword v2, v28, s[8:11], 0 offen")
    def gabody():
        for k in range(2): E(f"buffer_load_dwordx2 v[{24+2*k}:{25+2*k}], v23, s[24:27], s{32+k} offen sc1")
        E("s_waitcnt vmcnt(0)")
        tagcheck(6, [25, 27])
    poll(gabody, 8)
    for k in range(2): E(f"v_perm_b32 v{17+k}, v{24+2*k}, v{24+2*k}, v19")
    E("v_lshlrev_b32 v16, 16, v16"); E("v_add_f32 v18, 1.0, v18"); rnd(18, 18)
    E("v_lshlrev_b32 v28, 16, v2"); E("v_and_b32 v2, 0xffff0000, v2"); E("v_add_f32 v2, v2, v28")
    row_reduce("v_add_f32", 2, (1, 2, 4, 8)); swap_reduce("v_add_f32", 2, 28, 32); E("v_mul_f32 v2, 0x3c800000, v2")
    lds_wait(C_V2, 1, 1, 8, sleep=8)
    E("s_lshl_b32 s28, s4, 5"); E("s_lshl_b32 s29, s3, 3"); E("s_add_u32 s28, s28, s29")
    E("s_lshl_b32 s28, s28, 5"); E(f"s_add_u32 s28, s28, {ML_OFF}")
    E("v_and_b32 v28, 15, v0"); E("v_lshlrev_b32 v28, 4, v28")
    def mlbody():
        E("buffer_load_dwordx4 v[24:27], v28, s[24:27], s28 offen sc1"); E("s_waitcnt vmcnt(0)"); tagcheck(29, [26])
    tagbyte(4, 0)
    poll(mlbody, sl_ml)
    E(f"s_mov_b32 s31, {LOG2E}")
    E("v_mov_b32 v27, v24"); row_reduce("v_max_f32", 27, (2, 4, 8))
    E("v_sub_f32 v27, v24, v27"); E("v_mul_f32 v27, s31, v27"); E("v_exp_f32 v27, v27"); E("v_mul_f32 v28, v27, v25")
    row_reduce("v_add_f32", 28, (2, 4, 8))
    E("v_rcp_f32 v28, v28"); E("v_and_b32 v26, 1, v0"); E("v_lshlrev_b32 v26, 5, v26"); E("v_bfe_u32 v29, v0, 1, 3"); E("v_lshl_add_u32 v26, v29, 2, v26")
    E("s_lshl_b32 s28, s3, 6"); E("v_add_u32 v26, s28, v26"); E("v_mul_f32 v27, v27, v28")
    E(f"ds_write_b32 v26, v27 offset:{WGT}")
    lds_inc(C_G, 1, 24)
    if numa:
        lds_wait(C_NR, 1, 1, 24, sleep=4)
        E("s_sub_u32 s28, s28, 1"); E("v_add_u32 v20, s28, v20")
    if prio: E(f"s_setprio {prio}")
    stamp(6)
    E("s_waitcnt lgkmcnt(0)")
    E("s_barrier")
    stamp(8)
    E.label("L_ot")
    gemv(3, ABUF, 16, 8)
    E("v_pk_add_f32 v[8:9], v[8:9], v[10:11]")
    settag(8, 4)
    E(X(0xffff))
    E("buffer_store_dwordx2 v[8:9], v7, s[24:27], s18 offen sc1")
    if numa: E(f"buffer_store_dwordx2 v[8:9], v7, s[24:27], s{SO(4)} offen sc1")
    E(X(-1))
    stamp(9)
    def gather8(base):
        Rg = lambda t: 32 + 4 * t
        def loads(t):
            E(f"buffer_load_dwordx2 v[{Rg(t)}:{Rg(t)+1}], v20, s[24:27], s{XS(base)} offen sc1")
            E(f"buffer_load_dwordx2 v[{Rg(t)+2}:{Rg(t)+3}], v20, s[24:27], s{XS(base+1)} offen sc1")
        ppoll(PX, 2, loads, lambda t: lowcheck(28, [Rg(t), Rg(t)+2], 4),
              lambda t: E(f"v_pk_add_f32 v[24:25], v[{Rg(t)}:{Rg(t)+1}], v[{Rg(t)+2}:{Rg(t)+3}]"))
    def fold8():
        E("v_permlane16_swap_b32 v24, v25"); E("v_add_f32 v24, v24, v25"); swap_reduce("v_add_f32", 24, 25, 32)
    if xwait: E("s_waitcnt vmcnt(0)")
    gather8(0)
    stamp(10)
    fold8()
    rnd(24, 24); E("v_mul_f32 v24, v17, v24"); rnd(24, 24); E("v_add_f32 v16, v16, v24"); rnd(16, 16)
    E("v_sub_f32 v26, v16, v2")
    E("v_mul_f32 v24, v26, v18"); E("v_mul_f32 v27, v26, v26")
    E("v_add_f32_dpp v26, v26, v26 row_ror:1 row_mask:0xf bank_mask:0xf")
    E("v_mov_b32_dpp v25, v24 quad_perm:[1,1,3,3] row_mask:0xf bank_mask:0xf")
    E("v_add_f32_dpp v27, v27, v27 row_ror:1 row_mask:0xf bank_mask:0xf")
    E("v_cvt_pk_bf16_f32 v24, v24, v25")
    rest = []
    for k in (2, 4, 8):
        rest += [f"v_add_f32_dpp v{r}, v{r}, v{r} row_ror:{k} row_mask:0xf bank_mask:0xf" for r in (26, 27)]
    intra_store([X(0x55555555), "buffer_store_dword v24, v21, s[24:27], s20 offen", X(-1)] + rest +
                [X(0x10001), "buffer_store_dwordx2 v[26:27], v22, s[24:27], s21 offen"])
    E(X(-1))
    stamp(11)
    E("s_and_b32 s28, s5, 7"); E("s_cmp_lg_u32 s28, s4"); E("s_cbranch_scc1 L_oend")
    E("v_and_b32 v5, 15, v0"); E("v_lshlrev_b32 v5, 3, v5")
    def gbbody():
        E("buffer_load_dwordx2 v[24:25], v5, s[24:27], s19 offen sc1"); E("s_waitcnt vmcnt(0)"); tagcheck(6, [25])
    poll(gbbody, 1)
    E("v_perm_b32 v19, v24, v24, v19")
    gather8(2)
    stamp(14)
    fold8()
    rnd(24, 24); E("v_mul_f32 v24, v19, v24"); rnd(24, 24); E("v_add_f32 v24, v16, v24")
    E("v_mov_b32_dpp v25, v24 quad_perm:[1,1,3,3] row_mask:0xf bank_mask:0xf")
    E("v_cvt_pk_bf16_f32 v24, v24, v25")
    E(X(0x55555555))
    E(f"buffer_store_dword v24, v21, s[12:15], s23 offen {of}")
    stamp(15)
    E.label("L_oend")
    E("s_cbranch_execz L_ret_o")
    E("s_or_b32 s28, s22, s4"); E("s_cbranch_scc1 L_svc_end")
    E(X(1)); E("v_mov_b32 v24, s35"); E(f"s_mov_b32 s28, {EP_OFF}")
    E(f"buffer_store_dword v24, v1, s[24:27], s28 offen {of}")
    if probe is not None:
        if probe == 'amp':
            E("s_memrealtime s[92:93]"); E("s_waitcnt lgkmcnt(0)"); E("s_sub_u32 s29, s92, s86"); E("s_mul_i32 s29, s29, 10"); E("s_add_u32 s29, s29, s86")
        else: E(f"s_add_u32 s29, s{70+probe}, 6000")
        E.label("L_probe")
        E("s_sleep 1"); E("s_memrealtime s[92:93]"); E("s_waitcnt lgkmcnt(0)"); E("s_sub_u32 s28, s29, s92"); E("s_cmp_gt_i32 s28, 0"); E("s_cbranch_scc1 L_probe")
    E.label("L_svc_end")
    E("s_waitcnt lgkmcnt(0)")
    if stamps: E("s_add_u32 s3, s3, 8")
    stamp_flush()
    E("s_endpgm")
    for a_, b_, ins in cold:
        E.label(a_)
        for i in ins: E(i + (" sc1" if i.startswith("buffer_") else ""))
        E(f"s_branch {b_}")
    E.label("L_exit")
    E.lines = [re.sub(r'@S(\d)@', lambda m: 's%d' % SO(int(m.group(1))), l) for l in E.lines]
    body = E.finish()
    verify_stream(body)
    return HDR + f"""; @launch grid=(256,1,1) block=(768,1,1) lds=163840
.amdgcn_target "amdgcn-amd-amdhsa--gfx950"
.text
.globl {NAME}_kernel
.p2align 8
.type {NAME}_kernel,@function
{NAME}_kernel:
{body}
    s_endpgm
.section .rodata,"a"
.p2align 6
.amdhsa_kernel {NAME}_kernel
  .amdhsa_next_free_vgpr 168
  .amdhsa_next_free_sgpr 102
  .amdhsa_accum_offset 168
  .amdhsa_group_segment_fixed_size 0
  .amdhsa_kernarg_size 112
  .amdhsa_float_denorm_mode_32 3
  .amdhsa_user_sgpr_count 2
  .amdhsa_user_sgpr_kernarg_segment_ptr 1
  .amdhsa_system_sgpr_workgroup_id_x 1
.end_amdhsa_kernel
"""

def verify_stream(body):
    import re
    lines = [l.strip() for l in body.split('\n')]
    a = lines.index('L_k0:'); b = lines.index('L_service:'); c = lines.index('L_stream:'); d = lines.index('L_noreduce:')
    path = lines[a:b] + lines[c:d]
    issued = []; landed = 0; skip = None; last = {}
    for l in path:
        if skip:
            if l == skip + ':': skip = None
            continue
        m = re.match(r's_cbranch_scc1 (L_th_\d+)', l)
        if m: skip = m.group(1); continue
        m = re.match(r'buffer_load_dwordx4 v\[(\d+):', l)
        if m: issued.append(int(m.group(1))); last[int(m.group(1))] = len(issued); continue
        if re.match(r'buffer_load_dwordx4 v1, .* lds', l): issued.append(-1); nlds = len(issued); continue
        m = re.match(r'ds_read_b128 v\[(\d+):\d+\], v3 ', l)
        if m: assert landed >= nlds; last.pop(int(m.group(1)), None); continue
        m = re.search(r'vmcnt\((\d+)\)', l)
        if m: landed = max(landed, len(issued) - int(m.group(1))); continue
        m = re.match(r'v_mfma\S+ v\[(\d+):\d+\], v\[(\d+):\d+\], v\[(\d+):', l)
        if m:
            for r in (int(m.group(2)), int(m.group(3))):
                if r in last: assert last[r] <= landed, f"unwaited operand: {l}"
    assert len(issued) == 64 and landed == 64

HDR = """; adaLN-conditioned GQA decode attention + SwiGLU block in one persistent launch (written by a generator script).
;
"""
if __name__ == '__main__':
    kw = eval('dict(' + (sys.argv[2] if len(sys.argv) > 2 else '') + ')')
    open(sys.argv[1], 'w').write(gen(**kw))
```

```python
import sys, re
from emit import Emit
NAME = 'adaLN_cond__gqa_block_cached__glu_gated_swiglu__decode'

O_OFF, G_OFF = 0x0, 0x40000
X_OFF, Y_OFF = 0x80000, 0xA0000
Z_OFF, ML_OFF = 0x64000, 0x6C000; ZS = 3072; ST_OFF = Z_OFF + 2304
EP_OFF = 0xC0000
FL_OFF = 0xC1000
PG_OFF = 0xC3000
VT_OFF = 0xC2000
Q_OFF, MOD_OFF = 0xC8000, 0xD0000
STAMP_OFF = 0x100000
WS_SIZE = 0x200000
C_BAR, C_Q, C_CNT, C_D1, C_D2, C_GT, C_GO, C_J1, C_J2, C_KH, C_VH, C_OC, C_FAC, C_V2, C_G, C_NR = range(0, 64, 4)
FAC, MLB, QBUF = 64, 128, 256
CBUF, SBUF = 1216, 3552
WGT, AROW = 768, 1088
ABUF = 1216
ACT0, ACT1 = 15104, 64
ZERO = 5856
JBUF, ZBUF, OBUF = 5888, 5888, 8192
SLOT_A, SLOT_B = 16384, 90112
LOG2E = 0x3fb8aa3b
SCALE = 0x3db504f3
JW2, JQ0 = 15, 19

def gen(D=3, DV=3, DQ=3, stamps=False, force_slow=False, sl_long=2, sl_bar=4, gateq=0, kvf='nt', wf='nt',
        plim=0x20000, probe=None, cpf=3, sl_o=0, sl_z=0, dbg='', XW=(0,0,0,0,3,4), XD=1, sl_ml=8, kh=29, sl_q=16,
        XG=1, DE=5, NE=10, kv=12, DW=0, DEA=0, DJ=0, K0=4, DJQ=0, EB=0, QB=0, ko=9, omask=0, xwait=0, NP=0, DW1=2, NP3=2, XL=0, k1=0, N1=2, PX=2, PG=1, hg=1, reh=1, oack=0, tlb=0, warm='', NL=4, v2=20, qs=1, numa=1, NRR=2, pool=1, KA=14, ZL=1, gate=0, gj=20, gsl=2, gk=6, N2=2, k2=8, jreh=1, xe=1, fb=0, fbg=20, fbo=0, fbv=12, fbl=0, fbm=0, XN=(6,12,22,14,18,60,24,42), km=12, LE=(), prio=3, gw=9, gs=1, kms=1, of='', sf='', pf='', LX=1, pat=dict(G=[8,9],W=[12,13,14],T=[(10,15),11,15,16,17],J=[(),10,15,16,(10,17)],X=[15,16,(10,17)]), XM=0, XMN=0, AD=6, mim=0, wn=20, wsl=4, XL2=11, XL1=4, NP1=0, g13=0, g13a=0, rz=1):
    assert ko == 9
    E = Emit()
    uid = [0]
    def L(p):
        uid[0] += 1
        return f"L_{p}_{uid[0]}"
    def stamp(k):
        if stamps and (stamps not in ('lite', 'entry') or k in (0, 15)):
            E("s_memrealtime s[92:93]"); E("s_waitcnt lgkmcnt(0)"); E(f"s_mov_b32 s{70+k}, s92")
    def stamp_flush():
        if stamps:
            E("s_mov_b64 exec, -1")
            if stamps == 'entry': E("s_mov_b32 s71, s86")
            E("v_mov_b32 v4, 0")
            for k in range(16): E(f"v_writelane_b32 v4, s{70+k}, {k}")
            E("s_lshl_b32 s28, s4, 5"); E("s_add_u32 s28, s28, s5"); E("s_mul_i32 s28, s28, 12"); E("s_add_u32 s28, s28, s3")
            E("s_lshl_b32 s28, s28, 6"); E(f"s_add_u32 s28, s28, {STAMP_OFF}")
            E("v_mbcnt_lo_u32_b32 v5, -1, 0"); E("v_mbcnt_hi_u32_b32 v5, -1, v5"); E("v_lshlrev_b32 v5, 2, v5")
            E("s_mov_b64 exec, 0xffff")
            E(f"buffer_store_dword v4, v5, s[24:27], s28 offen {sf}")
    def srd(r, p, size):
        E(f"s_mov_b32 s{r}, s{p}"); E(f"s_mov_b32 s{r+1}, s{p+1}"); E(f"s_mov_b32 s{r+2}, {size}"); E(f"s_mov_b32 s{r+3}, 0x20000")
    def lds_wait(off, val, vz, vt, sleep=2):
        a, b = L("lw"), L("lwd")
        E("s_mov_b32 s7, 0"); E.label(a)
        E(f"ds_read_b32 v{vt}, v{vz} offset:{off}"); E("s_waitcnt lgkmcnt(0)")
        E(f"v_readfirstlane_b32 s28, v{vt}"); E(f"s_cmp_ge_u32 s28, {val}"); E(f"s_cbranch_scc1 {b}")
        if sleep: E(f"s_sleep {sleep}")
        E("s_add_u32 s7, s7, 1"); E(f"s_cmp_lt_u32 s7, {plim*8}"); E(f"s_cbranch_scc1 {a}")
        E.label(b)
    def lds_set(off, vz, vt, val):
        E(f"v_mov_b32 v{vt}, {val}"); E(f"ds_write_b32 v{vz}, v{vt} offset:{off}")
    def lds_inc(off, vz, vt):
        E(f"v_mov_b32 v{vt}, 1"); E("s_mov_b64 exec, 1"); E(f"ds_add_u32 v{vz}, v{vt} offset:{off}"); E("s_mov_b64 exec, -1")
    def soft_barrier(off, vz, vt, sleep=0, n=4):
        lds_inc(off, vz, vt); lds_wait(off, n, vz, vt, sleep)
    def poll(body, sleep=0):
        a, b = L("pl"), L("pld")
        E("s_mov_b32 s7, 0"); E.label(a)
        body()
        E(f"s_cbranch_vccz {b}")
        if sleep: E(f"s_sleep {sleep}")
        E("s_add_u32 s7, s7, 1"); E(f"s_cmp_lt_u32 s7, {plim}"); E(f"s_cbranch_scc1 {a}")
        E.label(b)
    def ppoll(nsets, nload, loads, check, finish):
        a, d = L("pp"), L("ppd"); ok = [L("ppk") for _ in range(nsets)]
        E("s_mov_b32 s7, 0")
        for t in range(nsets): loads(t)
        E.label(a)
        for t in range(nsets):
            E(f"s_waitcnt vmcnt({(nsets-1)*nload})"); check(t); E(f"s_cbranch_vccz {ok[t]}"); loads(t)
        E("s_add_u32 s7, s7, 1"); E(f"s_cmp_lt_u32 s7, {plim}"); E(f"s_cbranch_scc1 {a}")
        E("s_waitcnt vmcnt(0)")
        for t in range(nsets):
            E.label(ok[t]); finish(t)
            if t + 1 < nsets: E(f"s_branch {d}")
        E.label(d)
    cold = []
    def intra_store(ins):
        a, b = L("is"), L("isd")
        E("s_cmp_eq_u32 s6, 3"); E(f"s_cbranch_scc0 {a}")
        for i in ins: E(i + (" " + pf if i.startswith("buffer_") else ""))
        E.label(b)
        cold.append((a, b, ins))
    def X(m):
        return "s_mov_b64 exec, s[88:89]" if m == -1 else f"s_and_b64 exec, s[88:89], {m:#x}"
    def walk(target, ret):
        E("s_mov_b64 s[88:89], 0"); E("s_mov_b64 exec, 0"); E(f"s_branch {target}")
        E.label(ret)
        E("s_mov_b64 s[88:89], -1"); E("s_mov_b64 exec, -1")
    def live(ins):
        a = L("lv"); E(f"s_cbranch_execz {a}"); E(ins); E.label(a)
    def w13idx(d):
        E(f"s_sub_u32 s{d}, s5, 9"); E(f"s_lshr_b32 s{d}, s{d}, 1"); E("s_sub_u32 s7, 3, s4"); E("s_and_b32 s7, s7, 7"); E(f"s_add_u32 s{d}, s{d}, s7")
        E(f"s_cmp_ge_u32 s{d}, 9"); E("s_cselect_b32 s7, 9, 0"); E(f"s_sub_u32 s{d}, s{d}, s7")
    def w2idx(d):
        E(f"s_sub_u32 s{d}, s5, {JW2}"); E(f"s_cmp_lt_u32 s{d}, 4"); E(f"s_cselect_b32 s{d}, s{d}, 9")
        E("s_sub_u32 s7, s5, 23"); E("s_cmp_ge_u32 s5, 27"); E(f"s_cselect_b32 s{d}, s7, s{d}")
    def rnd(dst, src):
        E(f"v_cvt_pk_bf16_f32 v{dst}, v{src}, v{src}"); E(f"v_and_b32 v{dst}, 0xffff0000, v{dst}")
    def row_reduce(op, r, rors):
        for k in rors: E(f"{op}_dpp v{r}, v{r}, v{r} row_ror:{k} row_mask:0xf bank_mask:0xf")
    def swap_reduce(op, r, t, which):
        E(f"v_mov_b32 v{t}, v{r}"); E(f"v_permlane{which}_swap_b32 v{r}, v{t}"); E(f"{op} v{r}, v{r}, v{t}")
    def mktag():
        E("s_waitcnt lgkmcnt(0)")
        E("s_mul_i32 s35, s34, 0x9E3779B1"); E("s_add_u32 s35, s35, 0x7F4A7C15"); E("s_mov_b32 s90, 0xfffff000")
    def tagcheck(acc, regs):
        E(f"v_xor_b32 v{acc}, s35, v{regs[0]}")
        for r in regs[1:]: E(f"v_bitop3_b32 v{acc}, v{acc}, v{r}, s35 bitop3:0xf6")
        E(f"v_cmp_ne_u32 vcc, 0, v{acc}")
    def tagbyte(dst, idx):
        E(f"v_and_b32 v{dst}, 3, v{idx}"); E(f"v_mul_u32_u24 v{dst}, 7, v{dst}"); E(f"v_bfe_u32 v{dst}, s35, v{dst}, 12")
    def settag(r, tg): E(f"v_and_or_b32 v{r}, v{r}, s{SM}, v{tg}")
    def lowcheck(acc, regs, tg):
        for r in regs: E(f"v_xor_b32 v{r}, v{tg}, v{r}")
        ortree(acc, regs)
    def ortree(acc, regs):
        regs = list(regs)
        if len(regs) == 1: E(f"v_and_b32 v{acc}, 0xfff, v{regs[0]}")
        else:
            first = True
            while regs:
                if first:
                    t = regs[:3]; regs = regs[3:]; first = False
                    E(f"v_or3_b32 v{acc}, v{t[0]}, v{t[1]}, v{t[2]}") if len(t) == 3 else E(f"v_or_b32 v{acc}, v{t[0]}, v{t[1]}")
                else:
                    t = regs[:2]; regs = regs[2:]
                    E(f"v_or3_b32 v{acc}, v{acc}, v{t[0]}, v{t[1]}") if len(t) == 2 else E(f"v_or_b32 v{acc}, v{acc}, v{t[0]}")
            E(f"v_and_b32 v{acc}, 0xfff, v{acc}")
        E(f"v_cmp_ne_u32 vcc, 0, v{acc}")
    SM = 90
    BR = lambda k: 96 + 4 * k
    AT = lambda k: 24 + 4 * k
    def op_addrs():
        E("v_bfe_u32 v4, v0, 2, 2"); E("v_lshrrev_b32 v5, 4, v0"); E("v_lshl_add_u32 v4, v5, 3, v4"); E("v_lshlrev_b32 v4, 7, v4")
        E("v_and_b32 v6, 3, v0"); E("v_lshl_add_u32 v4, v6, 3, v4")
        E("v_bfe_u32 v7, v0, 3, 2"); E("v_xor_b32 v7, s3, v7"); E("v_lshl_add_u32 v2, v7, 5, v4")
        E("v_and_b32 v3, 1, v0"); E("v_mul_u32_u24 v3, 1152, v3"); E("v_lshl_add_u32 v3, v5, 4, v3")
    def stage_b(slot, nk, wait=True, k0=0, t=5):
        E(f"v_add_u32 v{t}, {slot}, v2"); E(f"v_add_u32 v{t+1}, {slot + 36864}, v2")
        for k in range(k0, nk):
            a = t if k < 9 else t + 1; o = (k % 9) * 4096
            E(f"ds_read_b64_tr_b16 v[{BR(k)}:{BR(k)+1}], v{a} offset:{o}"); E(f"ds_read_b64_tr_b16 v[{BR(k)+2}:{BR(k)+3}], v{a} offset:{o+512}")
        if wait: E("s_waitcnt lgkmcnt(0)")
    def gemv(areg, aoff, nk, d, fill=None, pre=0, extra=0):
        fill = list(fill or [])
        first = pre if extra else 0
        per = -(-len(fill) // (nk - first))
        depth = min(AD, 15 - extra)
        for k in range(pre, min(nk, depth)): E(f"ds_read_b128 v[{AT(k)}:{AT(k)+3}], v{areg} offset:{aoff + k*64}")
        issued = min(nk, depth)
        for k in range(nk):
            E(f"s_waitcnt lgkmcnt({issued - 1 - k + (extra if k < pre else 0)})")
            c = "0" if k == 0 else f"v[{d}:{d+3}]"
            E(f"v_mfma_f32_16x16x32_bf16 v[{d}:{d+3}], v[{AT(k)}:{AT(k)+3}], v[{BR(k)}:{BR(k)+3}], {c}")
            if issued < nk:
                E(f"ds_read_b128 v[{AT(issued)}:{AT(issued)+3}], v{areg} offset:{aoff + issued*64}"); issued += 1
            if k >= first:
                for _ in range(per):
                    if fill: E(fill.pop(0))
    def own_map():
        E("v_and_b32 v8, 31, v0"); E("v_min_u32 v9, 7, v8"); E("s_mul_i32 s28, s3, 72")
        E("v_add_u32 v8, s28, v8"); E("s_add_u32 s28, s28, 64"); E("v_add_u32 v9, s28, v9")
        E("v_lshrrev_b32 v11, 5, v0"); E("v_mul_u32_u24 v11, 1152, v11"); E("v_lshl_add_u32 v10, v8, 2, v11"); E("v_lshl_add_u32 v11, v9, 2, v11")
    def modgather(o1, o2, lab=None):
        E(f"s_mov_b32 s30, {MOD_OFF + o1*8}"); E(f"s_mov_b32 s31, {MOD_OFF + o2*8}")
        E("v_lshlrev_b32 v12, 4, v8"); E("v_lshlrev_b32 v13, 4, v9")
        def body():
            for h in range(2):
                E(f"buffer_load_dwordx4 v[{36+12*h}:{39+12*h}], v12, s[24:27], s{30+h} offen sc1")
                E(f"buffer_load_dwordx4 v[{40+12*h}:{43+12*h}], v12, s[24:27], s{30+h} offen offset:512 sc1")
                E(f"buffer_load_dwordx4 v[{44+12*h}:{47+12*h}], v13, s[24:27], s{30+h} offen sc1")
            E("s_waitcnt vmcnt(0)")
            tagcheck(14, list(range(37, 60, 2)))
        poll(body, sl_long)
        if lab: E.label(lab)
        E("v_cmp_gt_u32 vcc, 32, v0"); E("v_mov_b32 v12, 0x03020c0c"); E("v_mov_b32 v13, 0x01000c0c"); E("v_cndmask_b32 v12, v12, v13, vcc")
        for e in range(12): E(f"v_perm_b32 v{24+e}, v{36+2*e}, v{36+2*e}, v12")
    def dma_addrs(a=3, b=4, t=2):
        E(f"v_lshrrev_b32 v{t}, 3, v0"); E(f"v_mul_lo_u32 v{t}, v{t}, s20")
        E(f"v_and_b32 v{a}, 7, v0"); E(f"v_bfe_u32 v{b}, v0, 4, 1"); E(f"v_lshlrev_b32 v{b}, 1, v{b}"); E(f"v_xor_b32 v{a}, v{a}, v{b}")
        E(f"v_xor_b32 v{b}, 4, v{a}"); E(f"v_lshl_add_u32 v{a}, v{a}, 4, v{t}"); E(f"v_lshl_add_u32 v{b}, v{b}, 4, v{t}")
        E("s_lshl_b32 s17, s20, 3")
    def dma_loop(lab, depth, a=3, b=4, ls=1024):
        E.label(lab)
        E("s_mov_b32 m0, s29"); E(f"s_add_u32 s29, s29, {ls}")
        E(f"buffer_load_dwordx4 v{a}, s[8:11], s16 offen {wf} lds"); E("s_add_u32 s16, s16, s17")
        if depth: E(f"s_waitcnt vmcnt({depth-1})")
        E("s_mov_b32 m0, s29"); E(f"s_add_u32 s29, s29, {ls}")
        E(f"buffer_load_dwordx4 v{b}, s[8:11], s16 offen {wf} lds"); E("s_add_u32 s16, s16, s17")
        if depth: E(f"s_waitcnt vmcnt({depth-1})")
        E("s_sub_u32 s19, s19, 1"); E("s_cmp_lg_u32 s19, 0"); E(f"s_cbranch_scc1 {lab}")

    E.label("L_code0")
    if probe in (16, 'amp') or stamps == 'entry': E("s_memrealtime s[86:87]")
    E("s_load_dwordx16 s[36:51], s[0:1], 0")
    E("s_load_dwordx8 s[52:59], s[0:1], 64")
    E("s_load_dwordx4 s[60:63], s[0:1], 96")
    E("s_cmp_ge_u32 s2, 256"); E("s_cbranch_scc1 L_exit")
    if stamps == 'entry': E("s_mov_b32 s85, 0")
    elif stamps:
        for k in range(16): E(f"s_mov_b32 s{70+k}, 0")
    E("v_lshrrev_b32 v1, 6, v0"); E("v_and_b32 v0, 63, v0"); E("v_readfirstlane_b32 s3, v1")
    E("s_and_b32 s4, s2, 7"); E("s_lshr_b32 s5, s2, 3")
    E("s_sub_u32 s22, s2, 88"); E("s_cmp_lt_u32 s22, 32"); E("s_cselect_b32 s21, 2, 0")
    E(f"s_sub_u32 s28, s5, {JQ0}"); E("s_cmp_lt_u32 s28, 8"); E("s_cselect_b32 s21, 3, s21")
    if 'j' in dbg: E("s_mov_b32 s21, 0")
    E("s_cmp_ge_u32 s3, 8"); E("s_cbranch_scc1 L_service")

    SL = lambda i: 40 + 4 * i
    E("v_and_b32 v3, 3, v0"); E("v_lshrrev_b32 v4, 4, v0"); E("v_lshl_add_u32 v3, v4, 2, v3")
    LIN = isinstance(pat, dict) and 'T' in pat
    if not LIN: E("v_bfe_u32 v4, v0, 2, 2"); E("v_lshlrev_b32 v4, 8, v4"); E("v_lshl_add_u32 v2, v3, 4, v4")
    if 'l' in dbg: E("v_lshlrev_b32 v2, 4, v0")
    E("s_and_b32 s28, s5, 16"); E("s_lshl_b32 s29, s4, 1"); E("s_add_u32 s28, s28, s29")
    E("s_lshl_b32 s28, s28, 3"); E("s_and_b32 s29, s5, 15"); E("s_add_u32 s28, s28, s29")
    if LIN: E("s_lshl_b32 s33, s28, 18")
    else:
        E("s_lshl_b32 s28, s28, 6"); E("s_add_u32 s28, s28, s3"); E("s_lshl_b32 s33, s28, 12")
        E("s_add_u32 s32, s5, s3")
    def soff(u):
        E(f"s_add_u32 s30, s32, {u}"); E("s_and_b32 s30, s30, 7"); E("s_lshl_b32 s30, s30, 15"); E(f"s_add_u32 s{64+u if not stamps else 94+u}, s33, s30")
    SO = lambda u: (64 + u if not stamps else 94 + u)
    def soffB(k):
        if k < 4:
            E("s_lshr_b32 s30, s5, 3"); E("s_add_u32 s30, s30, s3"); E(f"s_add_u32 s30, s30, {k}"); E("s_and_b32 s30, s30, 3"); E("s_lshl_b32 s30, s30, 16"); E(f"s_add_u32 s{SO(k)}, s33, s30")
        else:
            E(f"s_add_u32 s30, s32, {k-4}"); E("s_and_b32 s30, s30, 3"); E(f"s_lshl_b32 s{SO(k)}, s30, 10")
    def addr(i):
        if pat == 'A': return f"s{SO(i//4)} offen offset:{(i%4)*1024}"
        if pat == 'A2':
            E(f"s_add_u32 s16, s{SO(i//4)}, s{17 + i%4}"); return "s16 offen"
        if i % 2 == 0: E(f"s_add_u32 s16, s{SO(i>>3)}, s{SO(4 + ((i>>1)&3))}")
        else: E("s_add_u32 s16, s16, 0x8000")
        return "s16 offen"
    LIN = isinstance(pat, dict) and 'T' in pat
    GEN = isinstance(pat, dict)
    if LIN:
        M = lambda bits: sum(1 << b for b in (bits if isinstance(bits, tuple) else (bits,)))
        Gm, Wm, Tm = [[M(b) for b in pat[k]] for k in 'GWT']
        Jm = [M(b) for b in pat.get('J', [])]; Xm = [M(b) for b in pat.get('X', [])]
        span = {0}
        for m in Gm + Wm + Tm: span |= {v ^ m for v in span}
        assert len(span) == 1024 and max(span) < (1 << 18) and all(v % 256 == 0 for v in span)
        first = True
        for reg, ms in (('s3', Wm), ('s5', Jm), ('s4', Xm)):
            k = 0
            while k < len(ms):
                if ms[k] == 0: k += 1; continue
                n = 1
                while k + n < len(ms) and ms[k + n] == ms[k] << n: n += 1
                while n > 1 and any((ms[k] << a) & (ms[k] << b) for a in range(n) for b in range(a)): n -= 1
                d = "s32" if first else "s30"
                E(f"s_bfe_u32 {d}, {reg}, {(n << 16) + k}"); E(f"s_mul_i32 {d}, {d}, {ms[k]}")
                if not first: E("s_xor_b32 s32, s32, s30")
                first = False; k += n
        def lanepart(dst, lo, tmp):
            if Gm[1] == Gm[0] << 1 and not Gm[0] & Gm[1]:
                E(f"v_bfe_u32 v{tmp}, v0, {lo}, 2"); E(f"v_mul_u32_u24 v{tmp}, {Gm[0]}, v{tmp}"); E(f"v_xor_b32 v{dst}, v{dst}, v{tmp}")
            else:
                for k in range(2): E(f"v_bfe_u32 v{tmp}, v0, {lo+k}, 1"); E(f"v_mul_u32_u24 v{tmp}, {Gm[k]}, v{tmp}"); E(f"v_xor_b32 v{dst}, v{dst}, v{tmp}")
            E(f"v_xor_b32 v{dst}, s32, v{dst}")
        E("v_lshlrev_b32 v2, 4, v3"); lanepart(2, 2, 4)
        def tmask(i):
            r = 0
            for k in range(5):
                if i >> k & 1: r ^= Tm[k]
            return r
        def addr(i): return "s33 offen"
    elif GEN:
        gb = pat.get('g', (8, 9)); wb = pat.get('w', (12, 13, 14)); tf = pat['t']
        sb = pat.get('s', (18, 19, 20))
        used = list(gb) + list(wb) + list(sb) + [sh + k for n, sh, rot in tf for k in range(n)]
        assert sorted(used) == list(range(8, 21)), used
        if tuple(gb) != (8, 9): E("v_bfe_u32 v4, v0, 2, 1"); E("v_bfe_u32 v5, v0, 3, 1"); E(f"v_lshlrev_b32 v4, {gb[0]}, v4"); E(f"v_lshl_add_u32 v4, v5, {gb[1]}, v4"); E("v_lshl_add_u32 v2, v3, 4, v4")
        if tuple(wb) != (12, 13, 14) or tuple(sb) != (18, 19, 20):
            E("s_andn2_b32 s33, s33, 0x1fffff")
            for k, bit in enumerate(wb): E(f"s_bfe_u32 s30, s3, {0x10000 + k}"); E(f"s_lshl_b32 s30, s30, {bit}"); E("s_add_u32 s33, s33, s30")
            for k, bit in enumerate(sb): E(f"s_bfe_u32 s30, s5, {0x10000 + k}"); E(f"s_lshl_b32 s30, s30, {bit}"); E("s_add_u32 s33, s33, s30")
        ROT = {'j': 's5', 'jw': 's32', 'w': 's3', 'x': 's4'}
        for name, sh, plus in (('j2', 2, None), ('j2w', 2, 's3'), ('j3', 3, None), ('j3w', 3, 's3'), ('j1', 1, None), ('j1w', 1, 's3'), ('jx', 0, 's4'), ('j2x', 2, 's4'), ('j3x', 3, 's4')):
            if any(rot == name for n, _, rot in tf):
                r = SO(len(ROT) - 4); ROT[name] = f"s{r}"
                E(f"s_lshr_b32 s{r}, s5, {sh}")
                if plus: E(f"s_add_u32 s{r}, s{r}, {plus}")
        prev = {}
        def addr(i):
            const = 0; pos = 0; regs = []
            for f, (n, sh, rot) in enumerate(tf):
                c = (i >> pos) & ((1 << n) - 1); pos += n
                if rot == '0': const += c << sh
                else:
                    if prev.get(f) != c:
                        E(f"s_add_u32 s{17+f}, {ROT[rot]}, {c}"); E(f"s_and_b32 s{17+f}, s{17+f}, {(1 << n) - 1}"); E(f"s_lshl_b32 s{17+f}, s{17+f}, {sh}"); prev[f] = c
                    regs.append(f"s{17+f}")
            E(f"s_add_u32 s16, s33, {const}")
            for r in regs: E(f"s_add_u32 s16, s16, {r}")
            return "s16 offen"
    elif pat == 'B2':
        for k in (0, 4, 5): soffB(k)
    else: soff(0)
    if pat == 'A2':
        for k in range(4): E(f"s_add_u32 s30, s5, {k}"); E("s_and_b32 s30, s30, 3"); E(f"s_lshl_b32 s{17+k}, s30, 10")
    assert K0 <= 4 or LIN
    E("s_mov_b32 s10, 0x4000000"); E("s_mov_b32 s11, 0x20000")
    E("s_waitcnt lgkmcnt(0)")
    E("s_mov_b32 s8, s38"); E("s_mov_b32 s9, s39")
    stamp(0)
    def kload(i):
        E(f"buffer_load_dwordx4 v[{SL(i)}:{SL(i)+3}], v2, s[8:11], {addr(i)} {kvf}")
        if LIN and i < 31: E(f"v_xor_b32 v2, {tmask(i) ^ tmask(i+1)}, v2")
    VS = lambda i: SL((i - NL) % 32)
    def vload(i):
        if i < NL: E(f"buffer_load_dwordx4 v1, s[12:15], {addr(i)} {kvf} lds")
        else: E(f"buffer_load_dwordx4 v[{VS(i)}:{VS(i)+3}], v1, s[12:15], {addr(i)} {kvf}")
        if LIN and i < 31: E(f"v_xor_b32 v1, {tmask(i) ^ tmask(i+1)}, v1")
        if i == 31 and GEN: E("v_lshlrev_b32 v1, 4, v0")
    E.label("L_k0")
    for i in range(K0): kload(i)
    E("s_branch L_stream")

    E.label("L_service")
    E("v_mov_b32 v1, 0")
    E("s_sub_u32 s3, s3, 8")
    if cpf >= 3:
        E("s_getpc_b64 s[12:13]"); E.label("L_pc0")
        E("s_sub_u32 s12, s12, L_pc0-L_code0"); E("s_subb_u32 s13, s13, 0"); E("s_mov_b32 s14, L_exit-L_code0"); E("s_mov_b32 s15, 0x20000")
        E("s_lshl_b32 s28, s5, 2"); E("s_add_u32 s28, s28, s3"); E("s_lshl_b32 s28, s28, 8")
    E("v_lshlrev_b32 v2, 2, v0")
    if cpf >= 3: E("buffer_load_dword v95, v2, s[12:15], s28 offen" + (" nt" if cpf == 4 else ""))
    E("s_mov_b64 exec, 0xffff"); E("ds_write_b32 v2, v1"); E("s_mov_b64 exec, -1")
    E("s_sub_u32 s28, s2, 216"); E("s_add_u32 s29, s28, 32"); E("s_cmp_lt_u32 s28, 22"); E("s_cselect_b32 s21, 2, s21"); E("s_cselect_b32 s22, s29, s22")
    E("s_cmp_lg_u32 s21, 0"); E("s_cbranch_scc1 L_job")
    E("s_mov_b32 s20, 1152")
    dma_addrs()
    E("s_lshl_b32 s28, s4, 2"); E("s_add_u32 s28, s28, s3"); E(f"s_sub_u32 s30, s5, {JW2}")
    E("s_cmp_lt_u32 s5, 9")
    E("s_cselect_b32 s19, 8, 9"); E("s_cselect_b32 s30, s5, s30"); E(f"s_mov_b32 s29, {SLOT_B}"); E(f"s_cselect_b32 s29, {SLOT_A}, s29")
    E("s_mul_i32 s16, s19, 18432"); E("s_lshl_b32 s10, s16, 5"); E("s_mul_i32 s16, s16, s28"); E("s_lshl_b32 s30, s30, 7"); E("s_add_u32 s16, s16, s30")
    E("s_lshl_b32 s30, s19, 11"); E("s_mul_i32 s30, s30, s3"); E("s_add_u32 s29, s29, s30"); E("s_mov_b32 s11, 0x20000")
    E("s_waitcnt lgkmcnt(0)")
    E("s_cmp_lt_u32 s5, 9"); E("s_cselect_b32 s8, s44, s52"); E("s_cselect_b32 s9, s45, s53")
    stamp(0)
    E("s_cmp_ge_u32 s5, 27"); E("s_cbranch_scc1 L_noearly")
    E("s_sub_u32 s28, s5, 9"); E("s_cmp_lt_u32 s28, 2"); E("s_cbranch_scc1 L_noearly")
    if 'e' not in dbg: dma_loop("L_dma_early", DEA)
    E.label("L_noearly")
    E(f"s_load_dword s34, s[62:63], {EP_OFF}")
    srd(24, 62, WS_SIZE)
    E("s_barrier")
    E("s_branch L_roles")
    E.label("L_job")
    E("s_cmp_eq_u32 s21, 3")
    E("s_cselect_b32 s20, 8192, 6912") if False else (E("s_mov_b32 s20, 6912"), E("s_cselect_b32 s20, 8192, s20"))
    dma_addrs()
    own_map()
    E("s_lshl_b32 s28, s4, 3"); E(f"s_sub_u32 s29, s5, {JQ0}"); E("s_add_u32 s28, s28, s29")
    E("s_cmp_eq_u32 s21, 3"); E("s_cselect_b32 s22, s28, s22")
    E("s_mul_i32 s10, s20, 576"); E("s_mov_b32 s11, 0x20000")
    E("s_mul_i32 s16, s20, 144"); E("s_mul_i32 s16, s16, s3"); E("s_lshl_b32 s28, s22, 7"); E("s_add_u32 s16, s16, s28")
    E("s_mul_i32 s29, s3, 18432"); E(f"s_add_u32 s29, s29, {SLOT_B}"); E("s_mov_b32 s19, 9")
    E("s_mov_b32 s14, 2304"); E("s_mov_b32 s15, 0x20000")
    E("s_waitcnt lgkmcnt(0)")
    stamp(0)
    E("s_cmp_eq_u32 s21, 3")
    E("s_cselect_b32 s8, s42, s56"); E("s_cselect_b32 s9, s43, s57"); E("s_cselect_b32 s12, s36, s54"); E("s_cselect_b32 s13, s37, s55")
    E("buffer_load_dword v16, v10, s[12:15], 0 offen"); E("buffer_load_dword v17, v10, s[12:15], 0 offen offset:128"); E("buffer_load_dword v18, v11, s[12:15], 0 offen")
    srd(24, 62, WS_SIZE)
    if xe:
        E("s_cbranch_scc0 L_nox")
        E("v_lshrrev_b32 v12, 5, v0"); E("v_mul_u32_u24 v12, 1152, v12"); E("v_and_b32 v13, 31, v0"); E("v_lshl_add_u32 v12, v13, 2, v12")
        for i in range(9): E(f"buffer_load_dword v{60+i}, v12, s[12:15], 0 offen offset:{i*128}")
        E.label("L_nox")
    E(f"s_load_dword s34, s[62:63], {EP_OFF}")
    if QB:
        E("s_cmp_lg_u32 s5, 22"); E("s_cbranch_scc1 L_dma_job")
        E("s_barrier"); dma_loop("L_dma_jb", QB - 1); E("s_branch L_job2")
    dma_loop("L_dma_job", DJ)
    E("s_barrier")
    E.label("L_job2")
    stamp(9)
    op_addrs()
    E("s_waitcnt vmcnt(18)")
    for i in range(3):
        E(f"v_and_b32 v{71+2*i}, 0xffff0000, v{16+i}"); E(f"v_lshlrev_b32 v{70+2*i}, 16, v{16+i}")
    E("s_cmp_eq_u32 s21, 3"); E("s_cbranch_scc1 L_prep_q")
    E(f"s_mov_b32 s28, {LOG2E ^ 0x80000000}"); E("s_mov_b32 s29, 0xb2a57060"); E("s_mov_b32 s30, 0x3f317218")
    for e in range(6): E(f"v_mul_f32 v{24+e}, s28, v{70+e}")
    for e in range(6): E(f"v_fma_f32 v{30+e}, v{70+e}, s28, -v{24+e}")
    for e in range(6): E(f"v_fma_f32 v{30+e}, v{70+e}, s29, v{30+e}")
    for e in range(6): E(f"v_min_f32 v{24+e}, 0x42fc0000, v{24+e}")
    for e in range(6): E(f"v_exp_f32 v{24+e}, v{24+e}")
    for e in range(6): E(f"v_mul_f32 v{30+e}, s30, v{30+e}")
    for e in range(6): E(f"v_fma_f32 v{24+e}, v{24+e}, v{30+e}, v{24+e}")
    for e in range(6): E(f"v_add_f32 v{24+e}, 1.0, v{24+e}")
    for e in range(6): E(f"v_rcp_f32 v{30+e}, v{24+e}")
    for e in range(6): E(f"v_mul_f32 v{36+e}, v{70+e}, v{30+e}")
    for e in range(6): E(f"v_fma_f32 v{70+e}, -v{24+e}, v{36+e}, v{70+e}")
    for e in range(6): E(f"v_fma_f32 v{70+e}, v{70+e}, v{30+e}, v{36+e}")
    def write_a(buf):
        for i in range(3): E(f"v_cvt_pk_bf16_f32 v{16+i}, v{70+2*i}, v{71+2*i}")
        E(f"ds_write_b32 v10, v16 offset:{buf}"); E(f"ds_write_b32 v10, v17 offset:{buf+128}"); E(f"ds_write_b32 v11, v18 offset:{buf}")
    write_a(JBUF)
    if jreh: walk("L_mst", "L_ret_m")
    E("s_waitcnt vmcnt(0)")
    soft_barrier(C_J1, 1, 16)
    stamp(10)
    E.label("L_mst")
    stage_b(SLOT_B, 18, wait=False)
    E("s_branch L_gemv")
    E.label("L_prep_q")
    if not xe:
        E("v_lshrrev_b32 v12, 5, v0"); E("v_mul_u32_u24 v12, 1152, v12"); E("v_and_b32 v13, 31, v0"); E("v_lshl_add_u32 v12, v13, 2, v12")
        for i in range(9): E(f"buffer_load_dword v{60+i}, v12, s[12:15], 0 offen offset:{i*128}")
        E("s_waitcnt vmcnt(0)")
    for i in range(9):
        E(f"v_lshlrev_b32 v{24+2*i}, 16, v{60+i}"); E(f"v_and_b32 v{25+2*i}, 0xffff0000, v{60+i}")
    E("v_add_f32 v16, v24, v25")
    for r in range(26, 42): E(f"v_add_f32 v16, v16, v{r}")
    row_reduce("v_add_f32", 16, (1, 2, 4, 8)); swap_reduce("v_add_f32", 16, 17, 16)
    E("s_mov_b32 s28, 0x3ae38e39"); E("s_mov_b32 s29, 0x3727c5ac")
    E("v_mul_f32 v16, s28, v16")
    E("v_mov_b32 v18, 0")
    for r in range(24, 42): E(f"v_sub_f32 v17, v{r}, v16"); E("v_fmac_f32 v18, v17, v17")
    row_reduce("v_add_f32", 18, (1, 2, 4, 8)); swap_reduce("v_add_f32", 18, 17, 16)
    E("v_mul_f32 v18, s28, v18"); rnd(18, 18); E("v_add_f32 v18, s29, v18"); rnd(18, 18)
    E("v_sqrt_f32 v18, v18"); rnd(18, 18); E("v_rcp_f32 v19, v18"); rnd(16, 16)
    for r in range(70, 76):
        E(f"v_sub_f32 v{r}, v{r}, v16"); rnd(r, r)
        E(f"v_mul_f32 v17, v{r}, v19"); E(f"v_fma_f32 v{r}, -v18, v17, v{r}"); E(f"v_fma_f32 v{r}, v{r}, v19, v17"); rnd(r, r)
    E("s_waitcnt vmcnt(0)")
    soft_barrier(C_J1, 1, 16)
    stamp(10)
    stage_b(SLOT_B, 18)
    mktag()
    if jreh: walk("L_qh", "L_ret_q")
    if km:
        if kms:
            E("s_cmp_eq_u32 s5, 22"); E("s_cbranch_scc1 L_kms"); E("s_cmp_eq_u32 s2, 215"); E("s_cbranch_scc1 L_kms")
        lds_wait(C_NR, 1, 1, 16, sleep=4)
        if kms: E.label("L_kms")
    modgather(0, 576, "L_qh")
    stamp(11)
    for e in range(6):
        E(f"v_add_f32 v{30+e}, 1.0, v{30+e}"); rnd(30+e, 30+e); E(f"v_mul_f32 v{70+e}, v{70+e}, v{30+e}"); rnd(70+e, 70+e)
        E(f"v_add_f32 v{70+e}, v{70+e}, v{24+e}")
    write_a(JBUF)
    E("s_cbranch_execz L_gemv")
    soft_barrier(C_J2, 1, 16)
    E.label("L_gemv")
    gemv(3, JBUF, 18, 20)
    mktag()
    E("s_lshl_b32 s28, s22, 2"); E("s_add_u32 s28, s28, s3"); E("s_lshl_b32 s28, s28, 7")
    E(f"s_mov_b32 s29, {MOD_OFF}"); E("s_cmp_eq_u32 s21, 3"); E(f"s_cselect_b32 s29, {Q_OFF}, s29"); E("s_add_u32 s28, s28, s29")
    E("v_lshlrev_b32 v2, 3, v0")
    E("v_cvt_pk_bf16_f32 v8, v20, v21"); E("v_mov_b32 v9, s35")
    if jreh:
        E("s_cbranch_execnz L_jpub")
        E("s_cmp_eq_u32 s21, 3"); E("s_cbranch_scc1 L_ret_q"); E("s_branch L_ret_m")
        E.label("L_jpub")
    E("s_mov_b64 exec, 0xffff")
    E("buffer_store_dwordx2 v[8:9], v2, s[24:27], s28 offen sc1")
    E("s_mov_b64 exec, -1")
    lds_inc(C_GO, 1, 16)
    stamp(12)
    E.label("L_roles")
    for w in '0123':
        if w in dbg: E(f"s_cmp_eq_u32 s3, {w}"); E("s_cbranch_scc1 L_svc_end")
    if 'z' in dbg: E("s_branch L_tailprep")
    E("s_cmp_eq_u32 s3, 3"); E("s_cbranch_scc1 L_s3")
    E("s_cmp_eq_u32 s3, 0"); E("s_cbranch_scc1 L_s0")
    if cpf in (1, 2):
        E("s_cmp_lg_u32 s3, 1"); E("s_cbranch_scc1 L_tailprep")
        E("s_getpc_b64 s[8:9]"); E.label("L_pc")
        E("s_sub_u32 s8, s8, L_pc-L_code0"); E("s_subb_u32 s9, s9, 0"); E("s_mov_b32 s10, L_exit-L_code0"); E("s_mov_b32 s11, 0x20000")
        E("v_lshlrev_b32 v2, 4, v0"); E("s_lshl_b32 s16, s5, 10")
        if cpf == 2: lds_wait(C_KH, 1, 1, 8, sleep=8)
        E("buffer_load_dwordx4 v[8:11], v2, s[8:11], s16 offen"); E("s_waitcnt vmcnt(0)")
    E("s_branch L_tailprep")

    E.label("L_s0")
    mktag()
    E("v_lshlrev_b32 v2, 4, v0")
    if kh:
        if gateq: E("s_cmp_eq_u32 s21, 3"); E("s_cbranch_scc1 L_qgo")
        lds_wait(C_KH, 1, 1, 8, sleep=8)
        E.label("L_qgo")
    E("s_lshl_b32 s28, s4, 12"); E("s_bfe_u32 s29, s5, 0x10003"); E("s_lshl_b32 s29, s29, 11"); E("s_add_u32 s28, s28, s29"); E(f"s_add_u32 s28, s28, {Q_OFF}")
    def qbody():
        E("buffer_load_dwordx4 v[8:11], v2, s[24:27], s28 offen sc1"); E("buffer_load_dwordx4 v[12:15], v2, s[24:27], s28 offen offset:1024 sc1")
        E("s_waitcnt vmcnt(0)")
        tagcheck(16, [9, 11, 13, 15])
    poll(qbody, sl_q)
    E("s_mov_b32 s29, 0x05040100"); E("s_cmp_ge_u32 s5, 16"); E("s_cselect_b32 s29, 0x07060302, s29")
    E("v_perm_b32 v8, v10, v8, s29"); E("v_perm_b32 v9, v14, v12, s29"); E("v_lshlrev_b32 v3, 2, v0")
    E(f"ds_write_b32 v3, v8 offset:{QBUF}"); E(f"ds_write_b32 v3, v9 offset:{QBUF+256}")
    E("s_add_u32 s7, s7, 1"); lds_set(C_Q, 1, 10, "s7")
    if stamps is True: E("s_mov_b32 s71, s7")
    stamp(3)
    lds_wait(C_BAR, 1, 1, 8, sleep=4)
    E("s_mov_b32 s6, s28")
    lds_wait(C_CNT, 8, 1, 8, sleep=4)
    E("v_and_b32 v3, 15, v0"); E("v_lshlrev_b32 v4, 3, v3"); E(f"ds_read_b64 v[8:9], v4 offset:{MLB}")
    E(f"s_mov_b32 s31, {LOG2E}")
    E("s_waitcnt lgkmcnt(0)")
    E("v_mov_b32 v10, v8"); row_reduce("v_max_f32", 10, (2, 4, 8))
    E("v_sub_f32 v12, v8, v10"); E("v_mul_f32 v12, s31, v12"); E("v_exp_f32 v12, v12"); E("v_mul_f32 v11, v12, v9")
    row_reduce("v_add_f32", 11, (2, 4, 8))
    E("v_and_b32 v5, 1, v0"); E("v_lshlrev_b32 v5, 5, v5"); E("v_lshrrev_b32 v6, 1, v3"); E("v_lshl_add_u32 v5, v6, 2, v5")
    E(f"ds_write_b32 v5, v12 offset:{FAC}")
    E("s_lshl_b32 s28, s4, 5"); E("s_add_u32 s28, s28, s5"); E("s_lshl_b32 s28, s28, 5"); E(f"s_add_u32 s28, s28, {ML_OFF}")
    E("v_mov_b32 v12, s35"); E("v_mov_b32 v13, s35"); E("v_lshlrev_b32 v4, 4, v0")
    E("v_mov_b32 v6, s6"); E(f"ds_write_b32 v1, v6 offset:{C_FAC}")
    E("s_mov_b64 exec, 3")
    intra_store(["buffer_store_dwordx4 v[10:13], v4, s[24:27], s28 offen"])
    E("s_mov_b64 exec, -1")
    E("s_waitcnt lgkmcnt(0)")
    stamp(4)
    E("s_branch L_tailprep")

    E.label("L_s3")
    E("v_lshlrev_b32 v2, 4, v0")
    for k in range(4): E(f"v_mov_b32 v{4+k}, -1")
    E("s_cmp_ge_u32 s5, 9"); E("s_cbranch_scc1 L_noclr")
    E(f"s_mul_i32 s28, s4, {ZS}"); E("s_mul_i32 s29, s5, 320"); E("s_add_u32 s28, s28, s29"); E(f"s_add_u32 s28, s28, {Z_OFF}")
    E("s_mov_b64 exec, 0xfffff"); E("buffer_store_dwordx4 v[4:7], v2, s[24:27], s28 offen sc1"); E("s_mov_b64 exec, -1")
    E.label("L_noclr")
    E("s_getreg_b32 s29, hwreg(HW_REG_XCC_ID)"); E("s_and_b32 s29, s29, 15")
    mktag()
    if fb:
        lds_wait(C_VH, 1, 1, 8, sleep=4)
        E("s_lshl_b32 s28, s28, 4"); E("s_or_b32 s29, s29, s28")
    E("v_mov_b32 v8, s29"); E("v_mov_b32 v9, s35")
    E("s_lshl_b32 s28, s4, 5"); E("s_add_u32 s28, s28, s5"); E("s_lshl_b32 s28, s28, 3"); E(f"s_add_u32 s28, s28, {FL_OFF}")
    E("s_waitcnt vmcnt(0)")
    stamp(1)
    E("s_mov_b64 exec, 1"); E("buffer_store_dwordx2 v[8:9], v1, s[24:27], s28 offen sc1"); E("s_mov_b64 exec, -1")
    if 'q' in dbg: E("s_branch L_svc_end")
    lds_wait(C_Q if NL and not fbl else C_CNT, 1 if NL and not fbl else (fbl or 8), 1, 8, sleep=8)
    E(f"s_mov_b32 s30, {FL_OFF}")
    def barbody():
        E("buffer_load_dwordx4 v[8:11], v2, s[24:27], s30 offen sc1"); E("buffer_load_dwordx4 v[12:15], v2, s[24:27], s30 offen offset:1024 sc1")
        E("s_waitcnt vmcnt(0)")
        tagcheck(16, [9, 11, 13, 15])
    poll(barbody, sl_bar)
    if fb:
        for r in (8, 10, 12, 14): E(f"v_sub_u32 v{r+1}, s29, v{r}"); E(f"v_ashrrev_i32 v{r+1}, 4, v{r+1}")
        E("v_add3_u32 v9, v9, v11, v13"); E("v_add_u32 v9, v9, v15")
        row_reduce("v_add_u32", 9, (1, 2, 4, 8)); swap_reduce("v_add_u32", 9, 11, 16); swap_reduce("v_add_u32", 9, 11, 32)
        E("v_readfirstlane_b32 s30, v9")
        E("s_ashr_i32 s30, s30, 8"); E(f"s_sub_i32 s30, s30, {fbo}"); E(f"s_mul_i32 s30, s30, {fbg}"); E("s_ashr_i32 s30, s30, 8")
        E("s_max_i32 s30, s30, 0"); E("s_min_i32 s30, s30, 8")
        if stamps is True: E("s_mov_b32 s73, s30")
        if fbm: E("s_sub_u32 s30, 8, s30")
        E("s_lshl_b32 s30, s30, 1"); E("s_or_b32 s30, s30, 1"); lds_set(C_KH, 1, 9, "s30")
    E("s_cmp_ge_u32 s4, 4"); E("s_cselect_b64 vcc, -1, 0")
    E("v_cndmask_b32 v8, v8, v12, vcc"); E("v_cndmask_b32 v10, v10, v14, vcc")
    E("v_xor_b32 v8, s29, v8"); E("v_bitop3_b32 v8, v8, v10, s29 bitop3:0xf6"); E("v_and_b32 v8, 15, v8"); E("v_cmp_ne_u32 vcc, 0, v8")
    E("s_and_b32 s30, s4, 3"); E("s_lshl_b32 s30, s30, 4"); E("s_lshr_b64 s[30:31], vcc, s30"); E("s_and_b32 s30, s30, 0xffff")
    E(f"s_cselect_b32 s6, 1, {1 if force_slow else 3}")
    E("v_mov_b32 v8, s6"); E(f"ds_write_b32 v1, v8 offset:{C_BAR}")
    stamp(2)
    E("s_branch L_tailprep")

    E.label("L_stream")
    xd = XD if any(XW) or XN else 0
    if XN:
        E(f"s_mov_b32 s23, {XN[0]}")
        E("s_bitcmp1_b32 s4, 0"); E(f"s_cselect_b32 s28, {XN[2]}, {XN[1]}"); E("s_cmp_ge_u32 s5, 9"); E("s_cselect_b32 s23, s28, s23")
        for lo, n in zip((15, 19, 27), (XN[3], XN[4], 0)):
            E(f"s_cmp_ge_u32 s5, {lo}"); E(f"s_cselect_b32 s23, {n}, s23")
        E("s_sub_u32 s29, s2, 216"); E("s_cmp_lt_u32 s29, 22"); E("s_cselect_b32 s23, s28, s23")
        E("s_cmp_eq_u32 s5, 22"); E(f"s_cselect_b32 s23, {XN[5]}, s23")
        E("s_cmp_eq_u32 s2, 215"); E(f"s_cselect_b32 s23, {XN[7]}, s23")
        E("s_cmp_eq_u32 s2, 203"); E(f"s_cselect_b32 s23, {XN[4] + XN[6]}, s23"); E("s_cmp_eq_u32 s2, 211"); E(f"s_cselect_b32 s23, {XN[4] + XN[6]}, s23")
        E("s_sub_u32 s29, s5, 9"); E("s_cmp_lt_u32 s29, 2"); E("s_cselect_b32 s23, 0, s23"); E(f"s_cselect_b32 s20, {XL1}, 0")
        E("s_cmp_ge_u32 s2, 238"); E(f"s_cselect_b32 s20, {XL2}, s20")
        if XM:
            E("s_getreg_b32 s28, hwreg(HW_REG_XCC_ID)"); E("s_and_b32 s28, s28, 15"); E(f"s_lshr_b32 s28, {XM}, s28"); E("s_and_b32 s28, s28, 1"); E(f"s_mul_i32 s28, s28, {XMN}"); E("s_add_u32 s23, s23, s28")
    elif xd:
        E(f"s_mov_b32 s23, {XW[0]}")
        for lo, n in zip((9, 15, 24), XW[1:4]):
            E(f"s_cmp_ge_u32 s5, {lo}"); E(f"s_cselect_b32 s23, {n}, s23")
        E("s_cmp_eq_u32 s5, 27"); E(f"s_cselect_b32 s23, {XW[4]}, s23")
        if len(XW) > 5:
            E("s_cmp_ge_u32 s5, 18"); E("s_cselect_b32 s28, 18, 9"); E("s_sub_u32 s28, s5, s28"); E("s_cmp_lt_u32 s28, 9"); E("s_cselect_b32 s29, 0, 8")
            E("s_add_u32 s28, s28, s4"); E("s_and_b32 s28, s28, 7"); E("s_add_u32 s28, s28, s29")
            E("s_cmp_eq_u32 s28, 3"); E(f"s_cselect_b32 s23, {XW[5]}, s23")
    def setscc(): pass
    tp = [0]; XWV = [0]
    def throttle(d):
        lean = any(lo <= tp[0] < hi and (tp[0] - lo) % st_ == 0 for lo, hi, st_ in LE)
        lo_ = d - 1 - lean; hi_ = d - 1 + xd - (lean and not LX)
        thr = tp[0]; tp[0] += 1
        if thr < max(max(XN), XN[4] + XN[6]) + XMN:
            a = L("th"); E(f"s_cmp_gt_u32 s23, {thr}"); E(f"s_waitcnt vmcnt({hi_})"); E(f"s_cbranch_scc1 {a}"); E(f"s_waitcnt vmcnt({lo_})"); E.label(a)
        else: E(f"s_waitcnt vmcnt({lo_})")
        if thr < max(XL1, XL2):
            a = L("th"); E(f"s_cmp_le_u32 s20, {thr}"); E(f"s_cbranch_scc1 {a}"); E(f"s_waitcnt vmcnt({lo_-1})"); E.label(a)
    if GEN: pass
    elif pat == 'B2':
        for k in (1, 2, 3, 6, 7): soffB(k)
    else:
        for u in range(1, 8): soff(u)
    srd(12, 40, 0x4000000); srd(24, 62, WS_SIZE)
    E(f"s_load_dword s34, s[62:63], {EP_OFF}")
    if LIN:
        E("v_and_b32 v1, 15, v0"); E("v_lshlrev_b32 v1, 4, v1"); lanepart(1, 4, 5)
    elif GEN:
        E("v_and_b32 v1, 15, v0"); E("v_lshlrev_b32 v1, 4, v1"); E("v_bfe_u32 v5, v0, 4, 1"); E(f"v_lshl_add_u32 v1, v5, {gb[0]}, v1"); E("v_lshrrev_b32 v5, 5, v0"); E(f"v_lshl_add_u32 v1, v5, {gb[1]}, v1")
    else: E("v_lshlrev_b32 v1, 4, v0")
    E("v_bfe_u32 v4, v0, 3, 1"); E("v_lshlrev_b32 v4, 8, v4"); E("v_lshl_add_u32 v36, v3, 4, v4")
    if warm:
        E("s_cmp_lg_u32 s3, 7"); E("s_cbranch_scc1 L_nowarm")
        E("s_mov_b64 exec, 1")
        if 'v' in warm: E("buffer_load_dword v5, v1, s[12:15], s33 offen nt")
        if 's' in warm: E(f"s_mov_b32 s28, {EP_OFF}"); E("v_mov_b32 v6, 0"); E("buffer_load_dword v5, v6, s[24:27], s28 offen nt")
        if 'w' in warm:
            E("s_bitcmp0_b32 s5, 0"); E("s_cselect_b32 s16, s50, s48"); E("s_cselect_b32 s17, s51, s49")
            E("s_cmp_ge_u32 s5, 27"); E("s_cselect_b32 s16, s52, s16"); E("s_cselect_b32 s17, s53, s17"); E(f"s_mov_b32 s18, {576*9216}"); E("s_mov_b32 s19, 0x20000")
            E("s_mov_b64 exec, 15"); E(f"v_mul_u32_u24 v6, {191*9216}, v0"); E("s_lshl_b32 s28, s2, 5")
            E("buffer_load_dword v5, v6, s[16:19], s28 offen nt")
        E("s_mov_b64 exec, -1")
        E.label("L_nowarm")
    stamp(8)
    E("s_barrier")
    stamp(9)
    for i in range(K0, D): kload(i)
    if gateq:
        E("s_cmp_lg_u32 s21, 3"); E("s_cbranch_scc1 L_kgo")
        E("v_mov_b32 v3, 0")
        lds_wait(C_GO, 4, 3, 4, sleep=4)
        E.label("L_kgo")
    setscc()
    for i in range(max(D, K0), 32):
        throttle(D); kload(i)
        if i in (4, 8): stamp(10 + (i == 8))
        if km and i == km:
            E("s_cmp_lg_u32 s21, 3"); E("s_cbranch_scc1 L_nokm"); E("v_mov_b32 v3, 0"); E("v_mov_b32 v4, 1"); E(f"ds_write_b32 v3, v4 offset:{C_NR}"); E.label("L_nokm")
        if fb and i == fb:
            E("s_cmp_lg_u32 s3, 3"); E("s_cbranch_scc1 L_nofb")
            E("s_memrealtime s[28:29]"); E("v_mov_b32 v3, 0"); E("s_waitcnt lgkmcnt(0)"); E("s_or_b32 s28, s28, 1"); E("v_mov_b32 v4, s28"); E(f"ds_write_b32 v3, v4 offset:{C_VH}")
            E.label("L_nofb")
        if kh and i == kh: E("v_mov_b32 v3, 0"); E("v_mov_b32 v4, 1"); E(f"ds_write_b32 v3, v4 offset:{C_KH}")
    stamp(1)
    if NL:
        E(f"s_mov_b32 s22, {SLOT_A}"); E("s_cmp_lt_u32 s5, 9"); E(f"s_cselect_b32 s22, {SLOT_B}, s22"); E(f"s_mul_i32 s28, s3, {NL*1024}"); E("s_add_u32 s22, s22, s28")
        for i in range(NL):
            if i % 4 == 0 or pat != 'A': E(f"s_add_u32 m0, s22, {i*1024}")
            throttle(D); vload(i)
            if kh == 32 + i: E("v_mov_b32 v3, 0"); E("v_mov_b32 v4, 1"); E(f"ds_write_b32 v3, v4 offset:{C_KH}")
    stamp(12)
    E("v_mov_b32 v2, 0")
    if 'q' not in dbg: lds_wait(C_Q, 1, 2, 3)
    if XL:
        E("s_cmp_eq_u32 s28, 1"); E(f"s_cselect_b32 s28, {XL}, 0"); E("s_add_u32 s23, s23, s28")
        XWV[0] = XL
    E(f"ds_read_b128 v[20:23], v36 offset:{QBUF}")
    E(f"s_mov_b32 s30, {SCALE}"); E(f"s_mov_b32 s31, {LOG2E}")
    E("v_mov_b32 v36, 0xff800000")
    mktag()
    stamp(2)
    setscc()
    st = dict(issued=NL)
    def qk_mfma(u):
        n = (28 - 4*u) + st['issued']
        if n < D + xd + st['issued'] and n < 63: E(f"s_waitcnt vmcnt({n})")
        for i in range(4*u, 4*u+4):
            E(f"v_mfma_f32_16x16x32_bf16 v[{SL(i)}:{SL(i)+3}], v[{SL(i)}:{SL(i)+3}], v[20:23], 0")
    def qk_post(u):
        if 'c' in dbg: return
        T = [24, 25, 26, 27]
        for k in range(4):
            for a in range(4):
                r = SL(4*u + a) + k
                if k == 0: E(f"v_mov_b32_dpp v{T[a]}, v{r} quad_perm:[0,0,0,0] row_mask:0xf bank_mask:0xf")
                else: E(f"v_add_f32_dpp v{T[a]}, v{r}, v{T[a]} quad_perm:[{k},{k},{k},{k}] row_mask:0xf bank_mask:0xf")
        E("v_cvt_pk_bf16_f32 v28, v24, v25"); E("v_cvt_pk_bf16_f32 v29, v26, v27")
        E("v_lshlrev_b32 v24, 16, v28"); E("v_and_b32 v25, 0xffff0000, v28")
        E("v_lshlrev_b32 v26, 16, v29"); E("v_and_b32 v27, 0xffff0000, v29")
        for a in range(4): E(f"v_mul_f32 v{T[a]}, s30, v{T[a]}")
        E(f"v_cvt_pk_bf16_f32 v{4+2*u}, v24, v25"); E(f"v_cvt_pk_bf16_f32 v{5+2*u}, v26, v27")
        E("v_max3_f32 v36, v24, v25, v36"); E("v_max3_f32 v36, v26, v27, v36")
    def vissue(d=None):
        i = st['issued']
        d = DV if d is None else d
        throttle(d); vload(i); st['issued'] += 1
        if i == v2:
            assert v2 >= NL + 8
            E("v_mov_b32 v2, 0"); E(f"ds_write_b32 v2, v24 offset:{C_V2}")
    def expo(k):
        if 'c' in dbg: return
        E(f"v_lshlrev_b32 v24, 16, v{4+k}"); E(f"v_and_b32 v25, 0xffff0000, v{4+k}")
        E("v_fma_f32 v24, v24, s31, -v37"); E("v_fma_f32 v25, v25, s31, -v37")
        E("v_exp_f32 v24, v24"); E("v_exp_f32 v25, v25")
        E("v_add_f32 v38, v38, v24"); E("v_add_f32 v39, v39, v25")
        E(f"v_cvt_pk_bf16_f32 v{4+k}, v24, v25")
    qk_mfma(0); qk_mfma(1); qk_post(0)
    if qs == 0:
        for _ in range(4): vissue(DQ)
        qk_mfma(2); qk_post(1)
        for _ in range(1 if DQ <= 4 else 4): vissue(DQ)
        for u in range(3, 8):
            qk_mfma(u); qk_post(u-1)
            if DQ > 4 or u % 2 == 0: vissue(DQ)
    else:
        vissue(DQ); vissue(DQ)
        for u in range(2, 8):
            qk_mfma(u); qk_post(u-1)
            if u % 2 == 1: vissue(DQ)
    qk_post(7)
    if NL:
        E(f"s_waitcnt vmcnt({st['issued'] - NL})"); E("v_lshl_add_u32 v3, v0, 4, s22")
        for i in range(NL): E(f"ds_read_b128 v[{VS(i)}:{VS(i)+3}], v3 offset:{i*1024}")
    swap_reduce("v_max_f32", 36, 24, 16); swap_reduce("v_max_f32", 36, 24, 32)
    rnd(36, 36)
    E("v_mul_f32 v37, s31, v36"); E("v_mov_b32 v38, 0"); E("v_mov_b32 v39, 0")
    for k in range(16):
        if k % (4 if qs == 0 else 6) == (0 if qs == 0 else 2): vissue(DQ)
        expo(k)
    E("v_add_f32 v37, v38, v39")
    swap_reduce("v_add_f32", 37, 24, 16); swap_reduce("v_add_f32", 37, 24, 32)
    E("s_lshl_b32 s28, s3, 4"); E("v_add_u32 v3, s28, v0"); E("v_mov_b32 v24, 1")
    E("s_mov_b64 exec, 0x101"); E(f"ds_write_b64 v3, v[36:37] offset:{MLB}")
    E("s_mov_b64 exec, 1"); E(f"ds_add_u32 v2, v24 offset:{C_CNT}")
    E("s_mov_b64 exec, -1")
    stamp(3)
    E("v_and_b32 v3, 1, v0"); E("v_cmp_eq_u32 vcc, 1, v3")
    E("v_mov_b32 v32, 0x0c0c0100"); E("v_mov_b32 v33, 0x01000c0c"); E("v_cndmask_b32 v32, v32, v33, vcc")
    E("v_mov_b32 v34, 0x0c0c0302"); E("v_mov_b32 v33, 0x03020c0c"); E("v_cndmask_b32 v33, v34, v33, vcc")
    E("v_bfe_u32 v3, v0, 1, 2"); E("v_mov_b32 v34, 0x0c0c0c0c")
    for r in range(4):
        E(f"v_cmp_eq_u32 vcc, {r}, v3"); E(f"v_cndmask_b32 v{24+r}, v34, v32, vcc"); E(f"v_cndmask_b32 v{28+r}, v34, v33, vcc")
    E("v_and_b32 v3, 15, v0"); E("v_lshlrev_b32 v3, 5, v3"); E("v_bfe_u32 v2, v0, 4, 1"); E("v_lshl_add_u32 v3, v2, 4, v3")
    E("v_lshrrev_b32 v2, 5, v0"); E("v_lshl_add_u32 v3, v2, 9, v3"); E("s_lshl_b32 s28, s3, 10"); E("v_add_u32 v3, s28, v3")
    setscc()
    if NL: E("s_waitcnt lgkmcnt(0)")
    pv = dict(done=0)
    def pv_prep(i):
        A0 = 32 + 4 * (i & 1)
        for r in range(4): E(f"v_perm_b32 v{A0+r}, v{4+i//2}, v{4+i//2}, v{24+4*(i&1)+r}")
    def pv_mfma(i):
        A0 = 32 + 4 * (i & 1)
        c = "0" if i == 0 else "v[20:23]"
        E(f"v_mfma_f32_16x16x32_bf16 v[20:23], v[{A0}:{A0+3}], v[{VS(i)}:{VS(i)+3}], {c}")
    while st['issued'] < 32:
        vissue(DV - (1 if fbm and st['issued'] > fbv else 0) + (DE if st['issued'] >= 32 - NE else 0))
        n = 0
        while pv['done'] <= st['issued'] - 1 - DV - xd - (DE if st['issued'] > 32 - NE else 0) and n < 4:
            pv_prep(pv['done']); pv_mfma(pv['done']); pv['done'] += 1; n += 1
    E("v_mov_b32 v2, 0")
    if N2: lds_inc(C_GT, 2, 4)
    lds_wait(C_FAC, 1, 2, 4, sleep=1)
    E("s_mov_b32 s6, s28"); E("s_lshl_b32 s28, s3, 2")
    E("v_and_b32 v4, 32, v0"); E("v_add_u32 v4, s28, v4"); E(f"ds_read_b32 v5, v4 offset:{FAC}")
    tagbyte(6, 0)
    E("v_mov_b32 v4, 1")
    E("s_lshl_b32 s29, s4, 5"); E("s_add_u32 s29, s29, s5"); E("s_lshl_b32 s29, s29, 10")
    assert pv['done'] >= 6
    while pv['done'] < 32:
        i = pv['done']
        pv_prep(i)
        if 31 - i < DV + xd + DE: E(f"s_waitcnt vmcnt({31-i})")
        pv_mfma(i); pv['done'] += 1
    E("s_waitcnt lgkmcnt(0)")
    for k in range(4): E(f"v_mul_f32 v{20+k}, v5, v{20+k}")
    E(f"ds_write_b128 v3, v[20:23] offset:{OBUF}")
    E("s_mov_b64 exec, 1"); E(f"ds_add_rtn_u32 v4, v2, v4 offset:{C_OC}"); E("s_mov_b64 exec, -1")
    for w in range(8): E(f"ds_read_b128 v[{40+4*w}:{43+4*w}], v1 offset:{OBUF + w*1024}")
    if stamps is True: stamp(4)
    E("s_waitcnt lgkmcnt(8)")
    E("v_readfirstlane_b32 s28, v4"); E("s_cmp_lg_u32 s28, 7"); E("s_cbranch_scc1 L_noreduce")
    E.label("L_reduce")
    PK = lambda d, x, y: (E(f"v_pk_add_f32 v[{d}:{d+1}], v[{x}:{x+1}], v[{y}:{y+1}]"), E(f"v_pk_add_f32 v[{d+2}:{d+3}], v[{x+2}:{x+3}], v[{y+2}:{y+3}]"))
    E("s_waitcnt lgkmcnt(6)"); PK(40, 40, 44)
    E("s_waitcnt lgkmcnt(4)"); PK(48, 48, 52); PK(40, 40, 48)
    E("s_waitcnt lgkmcnt(2)"); PK(56, 56, 60); PK(40, 40, 56)
    E("s_waitcnt lgkmcnt(0)"); PK(64, 64, 68); PK(40, 40, 64)
    settag(40, 6)
    intra_store(["buffer_store_dwordx4 v[40:43], v1, s[24:27], s29 offen"])
    if oack: live("s_waitcnt vmcnt(0)")
    lds_set(C_OC, 2, 4, 9)
    stamp(5)
    E.label("L_noreduce")
    if 't' in dbg: E("s_branch L_sdone")
    E("s_cmp_ge_u32 s5, 9"); E("s_cbranch_scc1 L_nogather")
    E("s_lshl_b32 s16, s4, 3"); E("s_add_u32 s16, s16, s3"); E("s_lshl_b32 s16, s16, 12")
    E("s_lshr_b32 s28, s3, 1"); E("s_lshl_b32 s28, s28, 6"); E("s_and_b32 s29, s3, 1"); E("s_lshl_b32 s30, s29, 4"); E("s_add_u32 s28, s28, s30")
    E("v_and_b32 v3, 32, v0"); E("v_add_u32 v3, s28, v3")
    E("s_lshl_b32 s29, s29, 1"); E("s_lshr_b32 s30, s3, 2"); E("s_add_u32 s29, s29, s30"); E(f"s_mul_i32 s29, s29, {AROW}")
    E("s_bfe_u32 s30, s3, 0x10001"); E("s_lshl_b32 s30, s30, 9"); E("s_add_u32 s29, s29, s30")
    E("v_lshlrev_b32 v7, 3, v0"); E("v_add_u32 v7, s29, v7")
    E("s_cbranch_execz L_ggo")
    lds_wait(C_G, 4, 2, 4, sleep=1)
    E(f"ds_read_b128 v[8:11], v3 offset:{WGT}")
    lds_wait(C_OC, gw, 2, 4, sleep=gs)
    E.label("L_ggo")
    def obody():
        for s_ in range(4): E(f"buffer_load_dwordx4 v[{24+4*s_}:{27+4*s_}], v1, s[24:27], s16 offen offset:{s_*1024} sc1")
        for s_ in range(4):
            E(f"s_waitcnt vmcnt({3-s_})")
            E(f"v_xor_b32 v{24+4*s_}, v6, v{24+4*s_}")
            for k in (1, 2, 3, 0):
                if s_ == 0: E(f"v_mul_f32 v{12+k}, v8, v{24+k}")
                else: E(f"v_fmac_f32 v{12+k}, v{8+s_}, v{24+4*s_+k}")
            if s_ == 2: E("v_or3_b32 v16, v24, v28, v32")
        E("v_cvt_pk_bf16_f32 v12, v12, v13"); E("v_cvt_pk_bf16_f32 v13, v14, v15")
        E(f"ds_write_b64 v7, v[12:13] offset:{ABUF}")
        E("v_or_b32 v16, v16, v36"); E("v_and_b32 v16, 0xfff, v16"); E("v_cmp_ne_u32 vcc, 0, v16")
    poll(obody, sl_o)
    stamp(6)
    E("s_branch L_slast")
    E.label("L_nogather")
    w2idx(28); E("s_cmp_ge_u32 s28, 9"); E("s_cbranch_scc1 L_sdone")
    E("s_cmp_ge_u32 s3, 5"); E("s_cbranch_scc1 L_sdone")
    E("s_lshl_b32 s28, s3, 6"); E("v_add_u32 v2, s28, v0"); E("v_min_u32 v2, 287, v2")
    tagbyte(22, 2)
    E("v_lshlrev_b32 v1, 4, v2")
    E("v_lshlrev_b32 v2, 2, v2")
    E("s_mul_i32 s18, s4, 9216"); E(f"s_add_u32 s18, s18, {G_OFF}"); E("s_add_u32 s19, s18, 4608")
    E(f"v_mov_b32 v8, {LOG2E ^ 0x80000000}"); E("v_mov_b32 v9, v8"); E("v_mov_b32 v10, 1.0"); E("v_mov_b32 v11, 1.0")
    E("v_mov_b32 v3, 0")
    Rh = lambda t: 40 + 8 * t
    def gloads(t):
        E(f"buffer_load_dwordx4 v[{Rh(t)}:{Rh(t)+3}], v1, s[24:27], s18 offen sc1"); E(f"buffer_load_dwordx4 v[{Rh(t)+4}:{Rh(t)+7}], v1, s[24:27], s19 offen sc1")
    E("s_cbranch_execz L_hgo")
    E("s_waitcnt lgkmcnt(0)")
    E("s_barrier"); E("s_barrier")
    E("s_cmp_ge_u32 s5, 27"); E("s_cbranch_scc1 L_hgo")
    gloads(0)
    E("s_barrier"); E("s_barrier")
    E("s_waitcnt vmcnt(0)")
    E.label("L_hgo")
    stamp(6)
    def gfin(t):
        g, u = Rh(t), Rh(t) + 4
        E(f"v_pk_mul_f32 v[4:5], v[{g}:{g+1}], v[8:9]"); E(f"v_pk_mul_f32 v[6:7], v[{g+2}:{g+3}], v[8:9]")
        E(f"v_pk_mul_f32 v[16:17], v[{u}:{u+1}], v[{g}:{g+1}]"); E(f"v_pk_mul_f32 v[18:19], v[{u+2}:{u+3}], v[{g+2}:{g+3}]")
    ppoll(PG, 2, gloads, lambda t: lowcheck(20, [Rh(t), Rh(t)+2, Rh(t)+4, Rh(t)+6], 22), gfin)
    for e in range(4): E(f"v_exp_f32 v{4+e}, v{4+e}")
    E("v_pk_add_f32 v[4:5], v[4:5], v[10:11]"); E("v_pk_add_f32 v[6:7], v[6:7], v[10:11]")
    for e in range(4): E(f"v_rcp_f32 v{4+e}, v{4+e}")
    E("v_pk_mul_f32 v[16:17], v[16:17], v[4:5]"); E("v_pk_mul_f32 v[18:19], v[18:19], v[6:7]")
    E("v_cvt_pk_bf16_f32 v12, v16, v18"); E("v_cvt_pk_bf16_f32 v13, v17, v19")
    E(f"ds_write_b32 v2, v12 offset:{ACT0}"); E(f"ds_write_b32 v2, v13 offset:{ACT1}")
    E.label("L_slast")
    E("s_waitcnt lgkmcnt(0)")
    E("s_cbranch_execz L_ret_s")
    E("s_barrier")
    stamp(7)
    E.label("L_sdone")
    E("s_cbranch_execz L_ret_s")
    stamp_flush(); E("s_endpgm")

    E.label("L_tailprep")
    E("s_mov_b64 s[88:89], -1")
    if reh:
        E("s_cmp_lg_u32 s3, 2"); E("s_cbranch_scc1 L_tp2")
        E("s_mov_b32 s6, 3"); E("s_mov_b32 s29, 0"); E("v_mov_b32 v2, 0")
        walk("L_reduce", "L_ret_s")
        E.label("L_tp2")
    else:
        E.label("L_ret_s")
    E("s_cmp_ge_u32 s5, 27"); E("s_cbranch_scc1 L_w2late")
    E("s_cmp_lt_u32 s5, 9"); E("s_cbranch_scc1 L_owner")

    def wsetup():
        op_addrs()
        E(f"v_mov_b32 v8, {ZBUF}"); E(f"v_mov_b32 v9, {CBUF}"); E(f"v_mov_b32 v10, {SBUF}")
        E("v_cmp_eq_u32 vcc, 1, v6"); E("v_cndmask_b32 v4, v8, v9, vcc"); E("v_cmp_eq_u32 vcc, 2, v6"); E("v_cndmask_b32 v4, v4, v10, vcc")
        E("v_bfe_u32 v7, v0, 2, 1"); E("v_mul_u32_u24 v7, 1152, v7"); E("v_lshl_add_u32 v7, v5, 4, v7"); E("v_add_u32 v4, v4, v7")
        E("v_and_b32 v3, 1, v0"); E("v_xor_b32 v3, 1, v3"); E(f"v_mul_u32_u24 v3, {ACT0-ACT1}, v3"); E("v_lshl_add_u32 v3, v5, 4, v3")
        w13idx(30); E("s_bitcmp0_b32 s5, 0"); E("s_cselect_b32 s29, 9, 0"); E("s_add_u32 s30, s30, s29")
        E("s_lshl_b32 s30, s30, 2"); E("s_add_u32 s30, s30, s3")
        E("s_lshl_b32 @S0@, s30, 7"); E("s_mul_i32 s29, s4, 9216"); E("s_add_u32 @S0@, @S0@, s29"); E(f"s_add_u32 @S0@, @S0@, {G_OFF}")
        E(f"s_mul_i32 @S1@, s4, {ZS}"); E(f"s_add_u32 @S1@, @S1@, {Z_OFF}")
        w2idx(30); E("s_lshl_b32 s30, s30, 2"); E("s_add_u32 s30, s30, s3"); E("s_lshl_b32 s30, s30, 7")
        E("s_lshl_b32 @S2@, s4, 14"); E("s_add_u32 @S2@, @S2@, s30"); E(f"s_add_u32 @S2@, @S2@, {Y_OFF}"); E("s_add_u32 @S6@, @S2@, 8192")
        E("s_mul_i32 s28, s3, 45"); E("v_min_u32 v12, 44, v0"); E("v_add_u32 v12, s28, v12"); E("v_lshlrev_b32 v12, 4, v12")
        E("v_and_b32 v8, 15, v0"); E("v_lshrrev_b32 v9, 5, v0"); E("v_lshl_add_u32 v9, v9, 4, v8"); E("v_cmp_gt_u32 vcc, 18, v9")
        E("v_bfe_u32 v10, v0, 4, 1"); E("v_mul_u32_u24 v11, 288, v10"); E("v_lshl_add_u32 v16, v9, 4, v11"); E(f"v_add_u32 v16, {ZBUF + 2304}, v16")
        E(f"v_mov_b32 v9, {ZERO}"); E("v_cndmask_b32 v16, v9, v16, vcc")
        E("v_and_b32 v8, 3, v0"); E("v_lshlrev_b32 v8, 2, v8"); E(f"ds_write_b32 v8, v1 offset:{ZERO}")
        E("v_lshlrev_b32 v7, 3, v0")
        E("s_mov_b32 @S4@, 0x3ae38e39"); E("s_mov_b32 @S5@, 0x3727c5ac")
    if reh:
        E("s_cmp_lg_u32 s3, 1"); E("s_cbranch_scc1 L_now_w")
        wsetup()
        E("s_mov_b32 s6, 3")
        walk("L_wt", "L_ret_w")
        E.label("L_now_w")
    else: E.label("L_ret_w")
    if 't' not in dbg:
        lds_wait(C_Q, 1, 1, 8, sleep=8)
        mktag()
        own_map()
        modgather(1728, 2304)
        for i in range(3):
            E(f"v_add_f32 v{30+2*i}, 1.0, v{30+2*i}"); E(f"v_add_f32 v{31+2*i}, 1.0, v{31+2*i}")
            E(f"v_cvt_pk_bf16_f32 v12, v{30+2*i}, v{31+2*i}"); E(f"v_cvt_pk_bf16_f32 v13, v{24+2*i}, v{25+2*i}")
            a_, o_ = ((10, 0), (10, 128), (11, 0))[i]
            E(f"ds_write_b32 v{a_}, v12 offset:{CBUF+o_}"); E(f"ds_write_b32 v{a_}, v13 offset:{SBUF+o_}")
    lds_wait(C_BAR, 1, 1, 8, sleep=4)
    E("s_mov_b32 s6, s28")
    wsetup()
    E("s_mov_b32 s20, 9216")
    dma_addrs(24, 25, 26)
    w13idx(28); E("s_bitcmp0_b32 s5, 0"); E("s_cselect_b32 s8, s50, s48"); E("s_cselect_b32 s9, s51, s49")
    E(f"s_mov_b32 s10, {576*9216}"); E("s_mov_b32 s11, 0x20000")
    E("s_mul_i32 s16, s4, 1152"); E("s_lshl_b32 s28, s28, 7"); E("s_add_u32 s16, s16, s28")
    E(f"s_mul_i32 s28, s3, {8*9216}"); E("s_add_u32 s16, s16, s28"); E(f"s_mov_b32 s17, {32*9216}")
    E("s_lshl_b32 s29, s3, 10"); E(f"s_add_u32 s29, s29, {SLOT_A}"); E("s_mov_b32 s19, 9")
    E("s_bitcmp1_b32 s3, 0"); E("s_cselect_b64 vcc, -1, 0"); E("v_cndmask_b32 v24, v24, v25, vcc")
    E("v_lshrrev_b32 v5, 1, v0"); tagbyte(5, 5)

    if tlb:
        E(f"v_mul_u32_u24 v26, {143*9216}, v0"); E("s_mov_b64 exec, 3"); E("buffer_load_dword v27, v26, s[8:11], s16 offen nt"); E("s_mov_b64 exec, -1")
    if NP or NP3:
        E("s_bfe_u32 s30, s16, 0x30007"); E("s_cmp_eq_u32 s30, 3"); E(f"s_cselect_b32 s19, {NP3}, {NP}"); E("s_cmp_lt_u32 s5, 11"); E(f"s_cselect_b32 s19, {NP1}, s19"); E("s_sub_u32 s31, 9, s19")
        E("s_cmp_eq_u32 s19, 0"); E("s_cbranch_scc1 L_nol1")
        if NL: lds_wait(C_CNT, 8, 1, 8, sleep=4)
        else: lds_wait(C_VH, 1, 1, 8, sleep=4)
        dma_loop("L_dma_l1", DW1, 24, 24, 4096)
        E.label("L_nol1")
        E("s_mov_b32 s19, s31")
    if k1:
        lds_wait(C_OC, k1, 1, 8, sleep=1)
        E(f"s_sub_u32 s31, s19, {N1}"); E(f"s_mov_b32 s19, {N1}"); dma_loop("L_dma_l2", 0, 24, 24, 4096); E("s_mov_b32 s19, s31")
    if N2:
        lds_wait(C_GT, k2, 1, 8, sleep=1)
        E(f"s_sub_u32 s31, s19, {N2}"); E(f"s_mov_b32 s19, {N2}"); dma_loop("L_dma_l3", 0, 24, 24, 4096); E("s_mov_b32 s19, s31")
    if g13:
        E("s_cmp_lg_u32 s3, 1"); E("s_cbranch_scc1 L_gt2")
        lds_wait(C_OC, gk, 1, 8, sleep=1)
        E("v_and_b32 v9, 31, v0"); E("v_lshlrev_b32 v9, 10, v9"); E("s_lshl_b32 s30, s4, 15"); E("s_and_b32 s31, s35, 0xfff"); E("s_mov_b32 s7, 0")
        E("s_cmp_lt_u32 s5, 11"); E(f"s_cselect_b32 s23, {2*g13a}, {2*g13}")
        E.label("L_gtp")
        E("buffer_load_dword v8, v9, s[24:27], s30 offen sc1"); E("s_waitcnt vmcnt(0)")
        E("v_and_b32 v8, 0xfff, v8"); E("v_cmp_eq_u32 vcc, s31, v8"); E("s_bcnt1_i32_b64 s28, vcc")
        E("s_cmp_ge_u32 s28, s23"); E("s_cbranch_scc1 L_gtd")
        E(f"s_sleep {gsl}"); E("s_add_u32 s7, s7, 1"); E(f"s_cmp_lt_u32 s7, {plim}"); E("s_cbranch_scc1 L_gtp")
        E.label("L_gtd")
        lds_set(C_D1, 1, 8, 1)
        E.label("L_gt2")
        lds_wait(C_D1, 1, 1, 8, sleep=1)
    lds_wait(C_OC, ko, 1, 8, sleep=1)
    if prio: E(f"s_setprio {prio}")
    stamp(5)
    if 'w' not in dbg: dma_loop("L_dma_late", DW, 24, 24, 4096)
    if 't' in dbg:
        E("s_waitcnt vmcnt(0)"); stamp(6); E("s_branch L_svc_end")
    Rz = lambda t: 84 + 4 * t
    def zload(t): E(f"buffer_load_dwordx4 v[{Rz(t)}:{Rz(t)+3}], v12, s[24:27], @S1@ offen sc1")
    def zcheck(t):
        E(f"ds_write_b128 v12, v[{Rz(t)}:{Rz(t)+3}] offset:{ZBUF}")
        E(f"v_max3_u32 v8, v{Rz(t)}, v{Rz(t)+1}, v{Rz(t)+2}"); E(f"v_max_u32 v8, v8, v{Rz(t)+3}"); E("v_cmp_eq_u32 vcc, -1, v8")
    E(f"s_waitcnt vmcnt({18-KA})")
    E("s_barrier")
    E.label("L_wt")
    stage_b(SLOT_A, KA, wait=False, t=9)
    E(f"s_waitcnt vmcnt({ZL})")
    zload(0)
    E("s_cbranch_execz L_wt2")
    E("s_waitcnt vmcnt(1)")
    E("s_barrier")
    stamp(6)
    E.label("L_wt2")
    stage_b(SLOT_A, 18, wait=False, k0=KA, t=9)
    stamp(7)
    E("s_mov_b32 s7, 0"); E("s_branch L_zchk")
    E.label("L_zpl")
    zload(0)
    E.label("L_zchk")
    E("s_waitcnt vmcnt(0)")
    zcheck(0)
    E("s_cbranch_vccz L_zok")
    E("s_add_u32 s7, s7, 1"); E(f"s_cmp_lt_u32 s7, {plim}"); E("s_cbranch_scc1 L_zpl")
    E.label("L_zok")
    E("s_waitcnt lgkmcnt(0)")
    live("s_barrier")
    stamp(8)
    NSP = 2
    for k in range(NSP): E(f"ds_read_b128 v[{AT(k)}:{AT(k)+3}], v4 offset:{k*64}")
    E("ds_read_b128 v[20:23], v16")
    F = ["v_pk_add_f32 v[18:19], v[20:21], v[22:23]", "v_permlane32_swap_b32 v18, v19", "v_add_f32 v18, v18, v19"]
    F += [f"v_add_f32_dpp v18, v18, v18 row_ror:{k} row_mask:0xf bank_mask:0xf" for k in (1, 2, 4, 8)]
    F += ["v_mul_f32 v18, @S4@, v18", "v_mov_b32 v19, v18", "v_permlane32_swap_b32 v18, v19", "v_fma_f32 v19, -v18, v18, v19", "v_max_f32 v19, 0, v19"]
    R = lambda r: [f"v_cvt_pk_bf16_f32 v{r}, v{r}, v{r}", f"v_and_b32 v{r}, 0xffff0000, v{r}"]
    if mim: F += R(19) + ["v_add_f32 v19, @S5@, v19"] + R(19) + ["v_sqrt_f32 v19, v19"] + R(18) + R(19) + ["v_rcp_f32 v19, v19"]
    else: F += ["v_add_f32 v19, @S5@, v19", "v_rsq_f32 v19, v19"]
    gemv(4, 0, 18, 8, F, pre=NSP, extra=1)
    E("v_fma_f32 v8, -v18, v9, v8"); E("v_fma_f32 v8, v8, v19, v10")
    E("v_mov_b32 v9, v8"); E("v_permlane16_swap_b32 v8, v9")
    settag(8, 5)
    E(X(0xffff))
    intra_store(["buffer_store_dwordx2 v[8:9], v7, s[24:27], @S0@ offen"])
    E(X(-1))
    stamp(13)
    E(f"s_sub_u32 s28, s5, {JW2}"); E("s_cmp_ge_u32 s28, 4"); E("s_cbranch_scc1 L_wend")
    E.label("L_w2t")
    live("s_barrier")
    stage_b(SLOT_B, 18)
    tagbyte(5, 0)
    live("s_barrier")
    stamp(14)
    gemv(3, ACT1, 18, 8)
    settag(8, 5)
    E(X(0xffff))
    E("buffer_store_dwordx2 v[8:9], v7, s[24:27], @S2@ offen sc1")
    if numa: E("buffer_store_dwordx2 v[8:9], v7, s[24:27], @S6@ offen sc1")
    stamp(15)
    E.label("L_wend")
    E("s_cbranch_execnz L_svc_end")
    E("s_cmp_ge_u32 s5, 27"); E("s_cbranch_scc1 L_ret_l"); E("s_branch L_ret_w")

    E.label("L_w2late")
    mktag()
    wsetup()
    if reh:
        E("s_cmp_lg_u32 s3, 1"); E("s_cbranch_scc1 L_now_l")
        walk("L_w2t", "L_ret_l")
        E.label("L_now_l")
    else: E.label("L_ret_l")
    E("s_mov_b32 s20, 1152")
    dma_addrs(24, 25, 26)
    E("s_mov_b32 s8, s52"); E("s_mov_b32 s9, s53"); E(f"s_mov_b32 s10, {4608*1152}"); E("s_mov_b32 s11, 0x20000")
    E("s_lshl_b32 s28, s4, 2"); E("s_add_u32 s28, s28, s3"); E(f"s_mul_i32 s16, s28, {144*1152}"); E("s_sub_u32 s28, s5, 23"); E("s_lshl_b32 s28, s28, 7"); E("s_add_u32 s16, s16, s28")
    E("s_mul_i32 s29, s3, 18432"); E(f"s_add_u32 s29, s29, {SLOT_B}"); E("s_mov_b32 s19, 9")
    E("s_lshl_b32 s30, s21, 1"); lds_wait(C_GO, "s30", 1, 8, sleep=2)
    lds_wait(C_OC, 9, 1, 8, sleep=2)
    if wn:
        E("s_cmp_lg_u32 s3, 1"); E("s_cbranch_scc1 L_wl2")
        E("v_and_b32 v9, 31, v0"); E("v_lshlrev_b32 v9, 10, v9"); E("s_lshl_b32 s30, s4, 15"); E("s_and_b32 s31, s35, 0xfff"); E("s_mov_b32 s7, 0")
        E.label("L_wlp")
        E("buffer_load_dword v8, v9, s[24:27], s30 offen sc1"); E("s_waitcnt vmcnt(0)")
        E("v_and_b32 v8, 0xfff, v8"); E("v_cmp_eq_u32 vcc, s31, v8"); E("s_bcnt1_i32_b64 s28, vcc")
        E(f"s_cmp_ge_u32 s28, {2*wn}"); E("s_cbranch_scc1 L_wld")
        E(f"s_sleep {wsl}"); E("s_add_u32 s7, s7, 1"); E(f"s_cmp_lt_u32 s7, {plim}"); E("s_cbranch_scc1 L_wlp")
        E.label("L_wld")
        lds_set(C_D1, 1, 8, 1)
        E.label("L_wl2")
        lds_wait(C_D1, 1, 1, 8, sleep=1)
    if prio: E(f"s_setprio {prio}")
    stamp(5)
    dma_loop("L_dma_w2l", 0, 24, 25)
    E("s_waitcnt vmcnt(0)")
    E("s_barrier")
    stamp(6)
    E("s_branch L_w2t")

    E.label("L_owner")
    if 't' in dbg: E("s_waitcnt vmcnt(0)"); E("s_branch L_svc_end")
    E("s_waitcnt vmcnt(0)")
    lds_inc(C_D1, 1, 8)
    mktag()
    op_addrs()
    E("s_lshl_b32 s22, s5, 2"); E("s_add_u32 s22, s22, s3")
    E("v_and_b32 v6, 15, v0"); E("v_bfe_u32 v7, v0, 4, 1"); E("v_lshrrev_b32 v20, 4, v0"); E("v_lshlrev_b32 v20, 14, v20"); E("v_lshl_add_u32 v20, v6, 3, v20")
    E("v_mul_u32_u24 v21, 1152, v7"); E("v_lshl_add_u32 v21, v6, 1, v21")
    E("v_mul_u32_u24 v22, 288, v7")
    E("v_lshlrev_b32 v23, 3, v6")
    E("v_cmp_eq_u32 vcc, 0, v7"); E("v_mov_b32 v19, 0x03020c0c"); E("v_mov_b32 v6, 0x01000c0c"); E("v_cndmask_b32 v19, v19, v6, vcc")
    E("s_lshl_b32 s23, s22, 5")
    srd(8, 36, 2304); srd(12, 58, 2304)
    E("s_lshl_b32 s28, s22, 7"); E(f"s_add_u32 s32, s28, {MOD_OFF + 1152*8}"); E(f"s_add_u32 s33, s32, {1152*8}"); E(f"s_add_u32 s19, s33, {576*8}")
    E("s_lshl_b32 s29, s4, 14"); E("s_add_u32 s29, s29, s28")
    E(f"s_add_u32 s18, s29, {X_OFF}"); E(f"s_add_u32 s{SO(4)}, s18, 8192")
    XS = SO
    for k in range(4): E(f"s_add_u32 s{XS(k)}, s28, {(X_OFF, X_OFF + 4*16384, Y_OFF, Y_OFF + 4*16384)[k]}")
    E(f"s_mul_i32 s20, s4, {ZS}"); E("s_add_u32 s20, s20, s23"); E(f"s_add_u32 s20, s20, {Z_OFF}")
    E(f"s_mul_i32 s21, s4, {ZS}"); E("s_lshl_b32 s28, s22, 3"); E("s_add_u32 s21, s21, s28"); E(f"s_add_u32 s21, s21, {ST_OFF}")
    E("v_lshlrev_b32 v7, 3, v0")
    E("v_and_b32 v3, 3, v0"); E(f"v_mul_u32_u24 v3, {AROW}, v3"); E("v_lshl_add_u32 v3, v5, 4, v3")
    if reh:
        E("s_cmp_lg_u32 s3, 1"); E("s_cbranch_scc1 L_now_o")
        E("s_mov_b32 s6, 3")
        walk("L_ot", "L_ret_o")
        E.label("L_now_o")
    else: E.label("L_ret_o")
    if numa:
        E("s_cmp_lg_u32 s3, 2"); E("s_cbranch_scc1 L_nonuma")
        E("s_lshl_b32 s28, s4, 14"); E("s_lshl_b32 s29, s5, 8"); E("s_add_u32 s28, s28, s29"); E(f"s_add_u32 s28, s28, {X_OFF + 4608}")
        NPR = 4
        for k in range(NPR):
            E(f"s_add_u32 s{36+2*k}, s28, {(k & 1) * 0x20000 + (k >> 1) * 1152}"); E(f"s_add_u32 s{37+2*k}, s{36+2*k}, 8192")
        for k in range(2 * NPR): E(f"s_buffer_load_dword s{44+k}, s[24:27], s{36+k} glc")
        E("s_mov_b32 s30, 0"); E("s_mov_b32 s31, 0")
        E("s_waitcnt lgkmcnt(0)")
        E.label("L_numa")
        for k in range(NPR):
            order = (0, 1) if k & 1 else (1, 0)
            sec = order[1]
            E(f"s_not_b32 s{52+sec}, s{44+2*k+sec}")
            for c in order: E(f"s_buffer_load_dword s{52+c}, s[24:27], s{36+2*k+c} glc")
            E("s_waitcnt lgkmcnt(1)"); E("s_nop 7")
            E(f"s_cmp_{'eq' if sec else 'lg'}_u32 s{52+sec}, s{44+2*k+sec}"); E("s_addc_u32 s30, s30, 0")
            E("s_waitcnt lgkmcnt(0)")
        E("s_add_u32 s31, s31, 1"); E(f"s_cmp_lt_u32 s31, {NRR}"); E("s_cbranch_scc1 L_numa")
        if pool:
            E("s_lshl_b32 s31, s4, 7"); E(f"s_add_u32 s31, s31, {VT_OFF}"); E("s_lshl_b32 s29, s5, 3"); E("s_add_u32 s29, s29, s31")
            E("v_mov_b32 v24, s30"); E("v_mov_b32 v25, s35")
            E("s_mov_b64 exec, 1"); E("buffer_store_dwordx2 v[24:25], v1, s[24:27], s29 offen sc1"); E("s_mov_b64 exec, -1")
            lds_wait(C_CNT, 8, 1, 8, sleep=8)
            E("v_min_u32 v26, 64, v23")
            def vtbody():
                E("buffer_load_dwordx2 v[24:25], v26, s[24:27], s31 offen sc1"); E("s_waitcnt vmcnt(0)"); tagcheck(27, [25])
            poll(vtbody, 16)
            E("v_cmp_gt_u32 vcc, 72, v23"); E("v_cndmask_b32 v24, 0, v24, vcc")
            row_reduce("v_add_u32", 24, (1, 2, 4, 8))
            E("v_readfirstlane_b32 s30, v24")
        if stamps is True: E("s_mov_b32 s71, s30"); stamp(2)
        E(f"s_cmp_gt_u32 s30, {(9 if pool else 1)*NPR*NRR//2}"); E(f"s_cselect_b32 s30, {8193 if numa == 1 else 1}, {1 if numa == 1 else 8193}")
        lds_set(C_NR, 1, 8, "s30")
        E.label("L_nonuma")
    lds_wait(C_BAR, 1, 1, 8, sleep=8)
    E("s_mov_b32 s6, s28")
    lds_wait(C_D1, 4, 1, 8, sleep=4)
    stage_b(SLOT_A, 16)
    E("buffer_load_ushort v16, v21, s[8:11], s23 offen")
    E("v_lshrrev_b32 v28, 5, v0"); E("v_lshlrev_b32 v28, 6, v28"); E("v_and_b32 v29, 15, v0"); E("v_lshl_add_u32 v28, v29, 1, v28"); E("v_add_u32 v28, v28, v21")
    E("buffer_load_dword v2, v28, s[8:11], 0 offen")
    def gabody():
        for k in range(2): E(f"buffer_load_dwordx2 v[{24+2*k}:{25+2*k}], v23, s[24:27], s{32+k} offen sc1")
        E("s_waitcnt vmcnt(0)")
        tagcheck(6, [25, 27])
    poll(gabody, 8)
    for k in range(2): E(f"v_perm_b32 v{17+k}, v{24+2*k}, v{24+2*k}, v19")
    E("v_lshlrev_b32 v16, 16, v16"); E("v_add_f32 v18, 1.0, v18"); rnd(18, 18)
    E("v_lshlrev_b32 v28, 16, v2"); E("v_and_b32 v2, 0xffff0000, v2"); E("v_add_f32 v2, v2, v28")
    row_reduce("v_add_f32", 2, (1, 2, 4, 8)); swap_reduce("v_add_f32", 2, 28, 32); E("v_mul_f32 v2, 0x3c800000, v2")
    lds_wait(C_V2, 1, 1, 8, sleep=8)
    E("s_lshl_b32 s28, s4, 5"); E("s_lshl_b32 s29, s3, 3"); E("s_add_u32 s28, s28, s29")
    E("s_lshl_b32 s28, s28, 5"); E(f"s_add_u32 s28, s28, {ML_OFF}")
    E("v_and_b32 v28, 15, v0"); E("v_lshlrev_b32 v28, 4, v28")
    def mlbody():
        E("buffer_load_dwordx4 v[24:27], v28, s[24:27], s28 offen sc1"); E("s_waitcnt vmcnt(0)"); tagcheck(29, [26])
    tagbyte(4, 0)
    poll(mlbody, sl_ml)
    E(f"s_mov_b32 s31, {LOG2E}")
    E("v_mov_b32 v27, v24"); row_reduce("v_max_f32", 27, (2, 4, 8))
    E("v_sub_f32 v27, v24, v27"); E("v_mul_f32 v27, s31, v27"); E("v_exp_f32 v27, v27"); E("v_mul_f32 v28, v27, v25")
    row_reduce("v_add_f32", 28, (2, 4, 8))
    E("v_rcp_f32 v28, v28"); E("v_and_b32 v26, 1, v0"); E("v_lshlrev_b32 v26, 5, v26"); E("v_bfe_u32 v29, v0, 1, 3"); E("v_lshl_add_u32 v26, v29, 2, v26")
    E("s_lshl_b32 s28, s3, 6"); E("v_add_u32 v26, s28, v26"); E("v_mul_f32 v27, v27, v28")
    E(f"ds_write_b32 v26, v27 offset:{WGT}")
    lds_inc(C_G, 1, 24)
    if numa:
        lds_wait(C_NR, 1, 1, 24, sleep=4)
        E("s_sub_u32 s28, s28, 1"); E("v_add_u32 v20, s28, v20")
    if prio: E(f"s_setprio {prio}")
    stamp(6)
    E("s_waitcnt lgkmcnt(0)")
    E("s_barrier")
    stamp(8)
    E.label("L_ot")
    gemv(3, ABUF, 16, 8)
    E("v_pk_add_f32 v[8:9], v[8:9], v[10:11]")
    settag(8, 4)
    E(X(0xffff))
    E("buffer_store_dwordx2 v[8:9], v7, s[24:27], s18 offen sc1")
    if numa: E(f"buffer_store_dwordx2 v[8:9], v7, s[24:27], s{SO(4)} offen sc1")
    E(X(-1))
    stamp(9)
    def gather8(base):
        Rg = lambda t: 32 + 4 * t
        def loads(t):
            E(f"buffer_load_dwordx2 v[{Rg(t)}:{Rg(t)+1}], v20, s[24:27], s{XS(base)} offen sc1")
            E(f"buffer_load_dwordx2 v[{Rg(t)+2}:{Rg(t)+3}], v20, s[24:27], s{XS(base+1)} offen sc1")
        ppoll(PX, 2, loads, lambda t: lowcheck(28, [Rg(t), Rg(t)+2], 4),
              lambda t: E(f"v_pk_add_f32 v[24:25], v[{Rg(t)}:{Rg(t)+1}], v[{Rg(t)+2}:{Rg(t)+3}]"))
    def fold8():
        E("v_permlane16_swap_b32 v24, v25"); E("v_add_f32 v24, v24, v25"); swap_reduce("v_add_f32", 24, 25, 32)
    if xwait: E("s_waitcnt vmcnt(0)")
    gather8(0)
    stamp(10)
    fold8()
    if rz: rnd(24, 24); E("v_mul_f32 v24, v17, v24"); rnd(24, 24); E("v_add_f32 v16, v16, v24"); rnd(16, 16)
    else: E("v_fma_f32 v16, v17, v24, v16"); rnd(16, 16)
    E("v_sub_f32 v26, v16, v2")
    E("v_mul_f32 v24, v26, v18"); E("v_mul_f32 v27, v26, v26")
    E("v_add_f32_dpp v26, v26, v26 row_ror:1 row_mask:0xf bank_mask:0xf")
    E("v_mov_b32_dpp v25, v24 quad_perm:[1,1,3,3] row_mask:0xf bank_mask:0xf")
    E("v_add_f32_dpp v27, v27, v27 row_ror:1 row_mask:0xf bank_mask:0xf")
    E("v_cvt_pk_bf16_f32 v24, v24, v25")
    rest = []
    for k in (2, 4, 8):
        rest += [f"v_add_f32_dpp v{r}, v{r}, v{r} row_ror:{k} row_mask:0xf bank_mask:0xf" for r in (26, 27)]
    intra_store([X(0x55555555), "buffer_store_dword v24, v21, s[24:27], s20 offen", X(-1)] + rest +
                [X(0x10001), "buffer_store_dwordx2 v[26:27], v22, s[24:27], s21 offen"])
    E(X(-1))
    stamp(11)
    E("s_and_b32 s28, s5, 7"); E("s_cmp_lg_u32 s28, s4"); E("s_cbranch_scc1 L_oend")
    E("v_and_b32 v5, 15, v0"); E("v_lshlrev_b32 v5, 3, v5")
    def gbbody():
        E("buffer_load_dwordx2 v[24:25], v5, s[24:27], s19 offen sc1"); E("s_waitcnt vmcnt(0)"); tagcheck(6, [25])
    poll(gbbody, 1)
    E("v_perm_b32 v19, v24, v24, v19")
    gather8(2)
    stamp(14)
    fold8()
    if rz: rnd(24, 24); E("v_mul_f32 v24, v19, v24"); rnd(24, 24); E("v_add_f32 v24, v16, v24")
    else: E("v_fma_f32 v24, v19, v24, v16")
    E("v_mov_b32_dpp v25, v24 quad_perm:[1,1,3,3] row_mask:0xf bank_mask:0xf")
    E("v_cvt_pk_bf16_f32 v24, v24, v25")
    E(X(0x55555555))
    E(f"buffer_store_dword v24, v21, s[12:15], s23 offen {of}")
    stamp(15)
    E.label("L_oend")
    E("s_cbranch_execz L_ret_o")
    E("s_or_b32 s28, s22, s4"); E("s_cbranch_scc1 L_svc_end")
    E(X(1)); E("v_mov_b32 v24, s35"); E(f"s_mov_b32 s28, {EP_OFF}")
    E(f"buffer_store_dword v24, v1, s[24:27], s28 offen {of}")
    if probe is not None:
        if probe == 'amp':
            E("s_memrealtime s[92:93]"); E("s_waitcnt lgkmcnt(0)"); E("s_sub_u32 s29, s92, s86"); E("s_mul_i32 s29, s29, 10"); E("s_add_u32 s29, s29, s86")
        else: E(f"s_add_u32 s29, s{70+probe}, 6000")
        E.label("L_probe")
        E("s_sleep 1"); E("s_memrealtime s[92:93]"); E("s_waitcnt lgkmcnt(0)"); E("s_sub_u32 s28, s29, s92"); E("s_cmp_gt_i32 s28, 0"); E("s_cbranch_scc1 L_probe")
    E.label("L_svc_end")
    E("s_waitcnt lgkmcnt(0)")
    if stamps: E("s_add_u32 s3, s3, 8")
    stamp_flush()
    E("s_endpgm")
    for a_, b_, ins in cold:
        E.label(a_)
        for i in ins: E(i + (" sc1" if i.startswith("buffer_") else ""))
        E(f"s_branch {b_}")
    E.label("L_exit")
    E.lines = [re.sub(r'@S(\d)@', lambda m: 's%d' % SO(int(m.group(1))), l) for l in E.lines]
    body = E.finish()
    verify_stream(body)
    return HDR + f"""; @launch grid=(256,1,1) block=(768,1,1) lds=163840
.amdgcn_target "amdgcn-amd-amdhsa--gfx950"
.text
.globl {NAME}_kernel
.p2align 8
.type {NAME}_kernel,@function
{NAME}_kernel:
{body}
    s_endpgm
.section .rodata,"a"
.p2align 6
.amdhsa_kernel {NAME}_kernel
  .amdhsa_next_free_vgpr 168
  .amdhsa_next_free_sgpr 102
  .amdhsa_accum_offset 168
  .amdhsa_group_segment_fixed_size 0
  .amdhsa_kernarg_size 112
  .amdhsa_float_denorm_mode_32 3
  .amdhsa_user_sgpr_count 2
  .amdhsa_user_sgpr_kernarg_segment_ptr 1
  .amdhsa_system_sgpr_workgroup_id_x 1
.end_amdhsa_kernel
"""

def verify_stream(body):
    import re
    lines = [l.strip() for l in body.split('\n')]
    a = lines.index('L_k0:'); b = lines.index('L_service:'); c = lines.index('L_stream:'); d = lines.index('L_noreduce:')
    path = lines[a:b] + lines[c:d]
    issued = []; landed = 0; skip = None; last = {}
    for l in path:
        if skip:
            if l == skip + ':': skip = None
            continue
        m = re.match(r's_cbranch_scc1 (L_th_\d+)', l)
        if m: skip = m.group(1); continue
        m = re.match(r'buffer_load_dwordx4 v\[(\d+):', l)
        if m: issued.append(int(m.group(1))); last[int(m.group(1))] = len(issued); continue
        if re.match(r'buffer_load_dwordx4 v1, .* lds', l): issued.append(-1); nlds = len(issued); continue
        m = re.match(r'ds_read_b128 v\[(\d+):\d+\], v3 ', l)
        if m: assert landed >= nlds; last.pop(int(m.group(1)), None); continue
        m = re.search(r'vmcnt\((\d+)\)', l)
        if m: landed = max(landed, len(issued) - int(m.group(1))); continue
        m = re.match(r'v_mfma\S+ v\[(\d+):\d+\], v\[(\d+):\d+\], v\[(\d+):', l)
        if m:
            for r in (int(m.group(2)), int(m.group(3))):
                if r in last: assert last[r] <= landed, f"unwaited operand: {l}"
    assert len(issued) == 64 and landed == 64

HDR = """; adaLN-conditioned GQA decode attention + SwiGLU block in one persistent launch (written by a generator script).
;
"""
if __name__ == '__main__':
    kw = eval('dict(' + (sys.argv[2] if len(sys.argv) > 2 else '') + ')')
    open(sys.argv[1], 'w').write(gen(**kw))
```

```python
import sys, re
from emit import Emit
NAME = 'adaLN_cond__gqa_block_cached__glu_gated_swiglu__decode'

O_OFF, G_OFF = 0x0, 0x40000
X_OFF, Y_OFF = 0x80000, 0xA0000
Z_OFF, ML_OFF = 0x64000, 0x6C000; ZS = 3072; ST_OFF = Z_OFF + 2304
EP_OFF = 0xC0000
FL_OFF = 0xC1000
PG_OFF = 0xC3000
VT_OFF = 0xC2000
Q_OFF, MOD_OFF = 0xC8000, 0xD0000
STAMP_OFF = 0x100000
WS_SIZE = 0x200000
C_BAR, C_Q, C_CNT, C_D1, C_D2, C_GT, C_GO, C_J1, C_J2, C_KH, C_VH, C_OC, C_FAC, C_V2, C_G, C_NR = range(0, 64, 4)
FAC, MLB, QBUF = 64, 128, 256
CBUF, SBUF = 1216, 3552
WGT, AROW = 768, 1088
ABUF = 1216
ACT0, ACT1 = 15104, 64
ZERO = 5856
JBUF, ZBUF, OBUF = 5888, 5888, 8192
SLOT_A, SLOT_B = 16384, 90112
LOG2E = 0x3fb8aa3b
SCALE = 0x3db504f3
JW2, JQ0 = 15, 19

def gen(D=3, DV=3, DQ=3, stamps=False, force_slow=False, sl_long=2, sl_bar=4, gateq=0, kvf='nt', wf='nt',
        plim=0x20000, probe=None, cpf=3, sl_o=0, sl_z=0, dbg='', XW=(0,0,0,0,3,4), XD=1, sl_ml=8, kh=29, sl_q=16,
        XG=1, DE=5, NE=10, kv=12, DW=0, DEA=0, DJ=0, K0=4, DJQ=0, EB=0, QB=0, ko=9, omask=0, xwait=0, NP=0, DW1=2, NP3=2, XL=0, k1=0, N1=2, PX=2, PG=1, hg=1, reh=1, oack=0, tlb=0, warm='', NL=4, v2=20, qs=1, numa=1, NRR=2, pool=1, KA=14, ZL=1, gate=0, gj=20, gsl=2, gk=6, N2=2, k2=8, jreh=1, xe=1, fb=0, fbg=20, fbo=0, fbv=12, fbl=0, fbm=0, XN=(6,12,22,14,18,60,24,42), km=12, LE=(), prio=3, gw=9, gs=1, kms=1, of='', sf='', pf='', LX=1, pat=dict(G=[8,9],W=[12,13,14],T=[(10,15),11,15,16,17],J=[(),10,15,16,(10,17)],X=[15,16,(10,17)]), XM=0, XMN=0, AD=6, mim=0, wn=20, wsl=4, XL2=11, XL1=4, NP1=0, g13=0, g13a=0, rz=1, PZ=1, PO=1, oc=0, pt='', fo=0):
    assert ko == 9
    E = Emit()
    uid = [0]
    def L(p):
        uid[0] += 1
        return f"L_{p}_{uid[0]}"
    def stamp(k):
        if stamps and (stamps not in ('lite', 'entry') or k in (0, 15)):
            E("s_memrealtime s[92:93]"); E("s_waitcnt lgkmcnt(0)"); E(f"s_mov_b32 s{70+k}, s92")
    def stamp_flush():
        if stamps:
            E("s_mov_b64 exec, -1")
            if stamps == 'entry': E("s_mov_b32 s71, s86")
            E("v_mov_b32 v4, 0")
            for k in range(16): E(f"v_writelane_b32 v4, s{70+k}, {k}")
            E("s_lshl_b32 s28, s4, 5"); E("s_add_u32 s28, s28, s5"); E("s_mul_i32 s28, s28, 12"); E("s_add_u32 s28, s28, s3")
            E("s_lshl_b32 s28, s28, 6"); E(f"s_add_u32 s28, s28, {STAMP_OFF}")
            E("v_mbcnt_lo_u32_b32 v5, -1, 0"); E("v_mbcnt_hi_u32_b32 v5, -1, v5"); E("v_lshlrev_b32 v5, 2, v5")
            E("s_mov_b64 exec, 0xffff")
            E(f"buffer_store_dword v4, v5, s[24:27], s28 offen {sf}")
    def srd(r, p, size):
        E(f"s_mov_b32 s{r}, s{p}"); E(f"s_mov_b32 s{r+1}, s{p+1}"); E(f"s_mov_b32 s{r+2}, {size}"); E(f"s_mov_b32 s{r+3}, 0x20000")
    def lds_wait(off, val, vz, vt, sleep=2):
        a, b = L("lw"), L("lwd")
        E("s_mov_b32 s7, 0"); E.label(a)
        E(f"ds_read_b32 v{vt}, v{vz} offset:{off}"); E("s_waitcnt lgkmcnt(0)")
        E(f"v_readfirstlane_b32 s28, v{vt}"); E(f"s_cmp_ge_u32 s28, {val}"); E(f"s_cbranch_scc1 {b}")
        if sleep: E(f"s_sleep {sleep}")
        E("s_add_u32 s7, s7, 1"); E(f"s_cmp_lt_u32 s7, {plim*8}"); E(f"s_cbranch_scc1 {a}")
        E.label(b)
    def lds_set(off, vz, vt, val):
        E(f"v_mov_b32 v{vt}, {val}"); E(f"ds_write_b32 v{vz}, v{vt} offset:{off}")
    def lds_inc(off, vz, vt):
        E(f"v_mov_b32 v{vt}, 1"); E("s_mov_b64 exec, 1"); E(f"ds_add_u32 v{vz}, v{vt} offset:{off}"); E("s_mov_b64 exec, -1")
    def soft_barrier(off, vz, vt, sleep=0, n=4):
        lds_inc(off, vz, vt); lds_wait(off, n, vz, vt, sleep)
    def poll(body, sleep=0):
        a, b = L("pl"), L("pld")
        E("s_mov_b32 s7, 0"); E.label(a)
        body()
        E(f"s_cbranch_vccz {b}")
        if sleep: E(f"s_sleep {sleep}")
        E("s_add_u32 s7, s7, 1"); E(f"s_cmp_lt_u32 s7, {plim}"); E(f"s_cbranch_scc1 {a}")
        E.label(b)
    def ppoll(nsets, nload, loads, check, finish):
        a, d = L("pp"), L("ppd"); ok = [L("ppk") for _ in range(nsets)]
        E("s_mov_b32 s7, 0")
        for t in range(nsets): loads(t)
        E.label(a)
        for t in range(nsets):
            E(f"s_waitcnt vmcnt({(nsets-1)*nload})"); check(t); E(f"s_cbranch_vccz {ok[t]}"); loads(t)
        E("s_add_u32 s7, s7, 1"); E(f"s_cmp_lt_u32 s7, {plim}"); E(f"s_cbranch_scc1 {a}")
        E("s_waitcnt vmcnt(0)")
        for t in range(nsets):
            E.label(ok[t]); finish(t)
            if t + 1 < nsets: E(f"s_branch {d}")
        E.label(d)
    cold = []
    def intra_store(ins):
        a, b = L("is"), L("isd")
        E("s_cmp_eq_u32 s6, 3"); E(f"s_cbranch_scc0 {a}")
        for i in ins: E(i + (" " + pf if i.startswith("buffer_") else ""))
        E.label(b)
        cold.append((a, b, ins))
    def X(m):
        return "s_mov_b64 exec, s[88:89]" if m == -1 else f"s_and_b64 exec, s[88:89], {m:#x}"
    def walk(target, ret):
        E("s_mov_b64 s[88:89], 0"); E("s_mov_b64 exec, 0"); E(f"s_branch {target}")
        E.label(ret)
        E("s_mov_b64 s[88:89], -1"); E("s_mov_b64 exec, -1")
    def live(ins):
        a = L("lv"); E(f"s_cbranch_execz {a}"); E(ins); E.label(a)
    def w13idx(d):
        E(f"s_sub_u32 s{d}, s5, 9"); E(f"s_lshr_b32 s{d}, s{d}, 1"); E("s_sub_u32 s7, 3, s4"); E("s_and_b32 s7, s7, 7"); E(f"s_add_u32 s{d}, s{d}, s7")
        E(f"s_cmp_ge_u32 s{d}, 9"); E("s_cselect_b32 s7, 9, 0"); E(f"s_sub_u32 s{d}, s{d}, s7")
    def w2idx(d):
        E(f"s_sub_u32 s{d}, s5, {JW2}"); E(f"s_cmp_lt_u32 s{d}, 4"); E(f"s_cselect_b32 s{d}, s{d}, 9")
        E("s_sub_u32 s7, s5, 23"); E("s_cmp_ge_u32 s5, 27"); E(f"s_cselect_b32 s{d}, s7, s{d}")
    def rnd(dst, src):
        E(f"v_cvt_pk_bf16_f32 v{dst}, v{src}, v{src}"); E(f"v_and_b32 v{dst}, 0xffff0000, v{dst}")
    def row_reduce(op, r, rors):
        for k in rors: E(f"{op}_dpp v{r}, v{r}, v{r} row_ror:{k} row_mask:0xf bank_mask:0xf")
    def swap_reduce(op, r, t, which):
        E(f"v_mov_b32 v{t}, v{r}"); E(f"v_permlane{which}_swap_b32 v{r}, v{t}"); E(f"{op} v{r}, v{r}, v{t}")
    def mktag():
        E("s_waitcnt lgkmcnt(0)")
        E("s_mul_i32 s35, s34, 0x9E3779B1"); E("s_add_u32 s35, s35, 0x7F4A7C15"); E("s_mov_b32 s90, 0xfffff000")
    def tagcheck(acc, regs):
        E(f"v_xor_b32 v{acc}, s35, v{regs[0]}")
        for r in regs[1:]: E(f"v_bitop3_b32 v{acc}, v{acc}, v{r}, s35 bitop3:0xf6")
        E(f"v_cmp_ne_u32 vcc, 0, v{acc}")
    def tagbyte(dst, idx):
        E(f"v_and_b32 v{dst}, 3, v{idx}"); E(f"v_mul_u32_u24 v{dst}, 7, v{dst}"); E(f"v_bfe_u32 v{dst}, s35, v{dst}, 12")
    def settag(r, tg): E(f"v_and_or_b32 v{r}, v{r}, s{SM}, v{tg}")
    def lowcheck(acc, regs, tg):
        for r in regs: E(f"v_xor_b32 v{r}, v{tg}, v{r}")
        ortree(acc, regs)
    def ortree(acc, regs):
        regs = list(regs)
        if len(regs) == 1: E(f"v_and_b32 v{acc}, 0xfff, v{regs[0]}")
        else:
            first = True
            while regs:
                if first:
                    t = regs[:3]; regs = regs[3:]; first = False
                    E(f"v_or3_b32 v{acc}, v{t[0]}, v{t[1]}, v{t[2]}") if len(t) == 3 else E(f"v_or_b32 v{acc}, v{t[0]}, v{t[1]}")
                else:
                    t = regs[:2]; regs = regs[2:]
                    E(f"v_or3_b32 v{acc}, v{acc}, v{t[0]}, v{t[1]}") if len(t) == 2 else E(f"v_or_b32 v{acc}, v{acc}, v{t[0]}")
            E(f"v_and_b32 v{acc}, 0xfff, v{acc}")
        E(f"v_cmp_ne_u32 vcc, 0, v{acc}")
    SM = 90
    BR = lambda k: 96 + 4 * k
    AT = lambda k: 24 + 4 * k
    def op_addrs():
        E("v_bfe_u32 v4, v0, 2, 2"); E("v_lshrrev_b32 v5, 4, v0"); E("v_lshl_add_u32 v4, v5, 3, v4"); E("v_lshlrev_b32 v4, 7, v4")
        E("v_and_b32 v6, 3, v0"); E("v_lshl_add_u32 v4, v6, 3, v4")
        E("v_bfe_u32 v7, v0, 3, 2"); E("v_xor_b32 v7, s3, v7"); E("v_lshl_add_u32 v2, v7, 5, v4")
        E("v_and_b32 v3, 1, v0"); E("v_mul_u32_u24 v3, 1152, v3"); E("v_lshl_add_u32 v3, v5, 4, v3")
    def stage_b(slot, nk, wait=True, k0=0, t=5):
        E(f"v_add_u32 v{t}, {slot}, v2"); E(f"v_add_u32 v{t+1}, {slot + 36864}, v2")
        for k in range(k0, nk):
            a = t if k < 9 else t + 1; o = (k % 9) * 4096
            E(f"ds_read_b64_tr_b16 v[{BR(k)}:{BR(k)+1}], v{a} offset:{o}"); E(f"ds_read_b64_tr_b16 v[{BR(k)+2}:{BR(k)+3}], v{a} offset:{o+512}")
        if wait: E("s_waitcnt lgkmcnt(0)")
    def gemv(areg, aoff, nk, d, fill=None, pre=0, extra=0):
        fill = list(fill or [])
        first = pre if extra else 0
        per = -(-len(fill) // (nk - first))
        depth = min(AD, 15 - extra)
        for k in range(pre, min(nk, depth)): E(f"ds_read_b128 v[{AT(k)}:{AT(k)+3}], v{areg} offset:{aoff + k*64}")
        issued = min(nk, depth)
        for k in range(nk):
            E(f"s_waitcnt lgkmcnt({issued - 1 - k + (extra if k < pre else 0)})")
            c = "0" if k == 0 else f"v[{d}:{d+3}]"
            E(f"v_mfma_f32_16x16x32_bf16 v[{d}:{d+3}], v[{AT(k)}:{AT(k)+3}], v[{BR(k)}:{BR(k)+3}], {c}")
            if issued < nk:
                E(f"ds_read_b128 v[{AT(issued)}:{AT(issued)+3}], v{areg} offset:{aoff + issued*64}"); issued += 1
            if k >= first:
                for _ in range(per):
                    if fill: E(fill.pop(0))
    def own_map():
        E("v_and_b32 v8, 31, v0"); E("v_min_u32 v9, 7, v8"); E("s_mul_i32 s28, s3, 72")
        E("v_add_u32 v8, s28, v8"); E("s_add_u32 s28, s28, 64"); E("v_add_u32 v9, s28, v9")
        E("v_lshrrev_b32 v11, 5, v0"); E("v_mul_u32_u24 v11, 1152, v11"); E("v_lshl_add_u32 v10, v8, 2, v11"); E("v_lshl_add_u32 v11, v9, 2, v11")
    def modgather(o1, o2, lab=None):
        E(f"s_mov_b32 s30, {MOD_OFF + o1*8}"); E(f"s_mov_b32 s31, {MOD_OFF + o2*8}")
        E("v_lshlrev_b32 v12, 4, v8"); E("v_lshlrev_b32 v13, 4, v9")
        def body():
            for h in range(2):
                E(f"buffer_load_dwordx4 v[{36+12*h}:{39+12*h}], v12, s[24:27], s{30+h} offen sc1")
                E(f"buffer_load_dwordx4 v[{40+12*h}:{43+12*h}], v12, s[24:27], s{30+h} offen offset:512 sc1")
                E(f"buffer_load_dwordx4 v[{44+12*h}:{47+12*h}], v13, s[24:27], s{30+h} offen sc1")
            E("s_waitcnt vmcnt(0)")
            tagcheck(14, list(range(37, 60, 2)))
        poll(body, sl_long)
        if lab: E.label(lab)
        E("v_cmp_gt_u32 vcc, 32, v0"); E("v_mov_b32 v12, 0x03020c0c"); E("v_mov_b32 v13, 0x01000c0c"); E("v_cndmask_b32 v12, v12, v13, vcc")
        for e in range(12): E(f"v_perm_b32 v{24+e}, v{36+2*e}, v{36+2*e}, v12")
    def dma_addrs(a=3, b=4, t=2):
        E(f"v_lshrrev_b32 v{t}, 3, v0"); E(f"v_mul_lo_u32 v{t}, v{t}, s20")
        E(f"v_and_b32 v{a}, 7, v0"); E(f"v_bfe_u32 v{b}, v0, 4, 1"); E(f"v_lshlrev_b32 v{b}, 1, v{b}"); E(f"v_xor_b32 v{a}, v{a}, v{b}")
        E(f"v_xor_b32 v{b}, 4, v{a}"); E(f"v_lshl_add_u32 v{a}, v{a}, 4, v{t}"); E(f"v_lshl_add_u32 v{b}, v{b}, 4, v{t}")
        E("s_lshl_b32 s17, s20, 3")
    def dma_loop(lab, depth, a=3, b=4, ls=1024):
        E.label(lab)
        E("s_mov_b32 m0, s29"); E(f"s_add_u32 s29, s29, {ls}")
        E(f"buffer_load_dwordx4 v{a}, s[8:11], s16 offen {wf} lds"); E("s_add_u32 s16, s16, s17")
        if depth: E(f"s_waitcnt vmcnt({depth-1})")
        E("s_mov_b32 m0, s29"); E(f"s_add_u32 s29, s29, {ls}")
        E(f"buffer_load_dwordx4 v{b}, s[8:11], s16 offen {wf} lds"); E("s_add_u32 s16, s16, s17")
        if depth: E(f"s_waitcnt vmcnt({depth-1})")
        E("s_sub_u32 s19, s19, 1"); E("s_cmp_lg_u32 s19, 0"); E(f"s_cbranch_scc1 {lab}")

    E.label("L_code0")
    if probe in (16, 'amp') or stamps == 'entry': E("s_memrealtime s[86:87]")
    E("s_load_dwordx16 s[36:51], s[0:1], 0")
    E("s_load_dwordx8 s[52:59], s[0:1], 64")
    E("s_load_dwordx4 s[60:63], s[0:1], 96")
    E("s_cmp_ge_u32 s2, 256"); E("s_cbranch_scc1 L_exit")
    if stamps == 'entry': E("s_mov_b32 s85, 0")
    elif stamps:
        for k in range(16): E(f"s_mov_b32 s{70+k}, 0")
    E("v_lshrrev_b32 v1, 6, v0"); E("v_and_b32 v0, 63, v0"); E("v_readfirstlane_b32 s3, v1")
    E("s_and_b32 s4, s2, 7"); E("s_lshr_b32 s5, s2, 3")
    E("s_sub_u32 s22, s2, 88"); E("s_cmp_lt_u32 s22, 32"); E("s_cselect_b32 s21, 2, 0")
    E(f"s_sub_u32 s28, s5, {JQ0}"); E("s_cmp_lt_u32 s28, 8"); E("s_cselect_b32 s21, 3, s21")
    if 'j' in dbg: E("s_mov_b32 s21, 0")
    E("s_cmp_ge_u32 s3, 8"); E("s_cbranch_scc1 L_service")

    SL = lambda i: 40 + 4 * i
    E("v_and_b32 v3, 3, v0"); E("v_lshrrev_b32 v4, 4, v0"); E("v_lshl_add_u32 v3, v4, 2, v3")
    LIN = isinstance(pat, dict) and 'T' in pat
    if not LIN: E("v_bfe_u32 v4, v0, 2, 2"); E("v_lshlrev_b32 v4, 8, v4"); E("v_lshl_add_u32 v2, v3, 4, v4")
    if 'l' in dbg: E("v_lshlrev_b32 v2, 4, v0")
    E("s_and_b32 s28, s5, 16"); E("s_lshl_b32 s29, s4, 1"); E("s_add_u32 s28, s28, s29")
    E("s_lshl_b32 s28, s28, 3"); E("s_and_b32 s29, s5, 15"); E("s_add_u32 s28, s28, s29")
    if LIN: E("s_lshl_b32 s33, s28, 18")
    else:
        E("s_lshl_b32 s28, s28, 6"); E("s_add_u32 s28, s28, s3"); E("s_lshl_b32 s33, s28, 12")
        E("s_add_u32 s32, s5, s3")
    def soff(u):
        E(f"s_add_u32 s30, s32, {u}"); E("s_and_b32 s30, s30, 7"); E("s_lshl_b32 s30, s30, 15"); E(f"s_add_u32 s{64+u if not stamps else 94+u}, s33, s30")
    SO = lambda u: (64 + u if not stamps else 94 + u)
    def soffB(k):
        if k < 4:
            E("s_lshr_b32 s30, s5, 3"); E("s_add_u32 s30, s30, s3"); E(f"s_add_u32 s30, s30, {k}"); E("s_and_b32 s30, s30, 3"); E("s_lshl_b32 s30, s30, 16"); E(f"s_add_u32 s{SO(k)}, s33, s30")
        else:
            E(f"s_add_u32 s30, s32, {k-4}"); E("s_and_b32 s30, s30, 3"); E(f"s_lshl_b32 s{SO(k)}, s30, 10")
    def addr(i):
        if pat == 'A': return f"s{SO(i//4)} offen offset:{(i%4)*1024}"
        if pat == 'A2':
            E(f"s_add_u32 s16, s{SO(i//4)}, s{17 + i%4}"); return "s16 offen"
        if i % 2 == 0: E(f"s_add_u32 s16, s{SO(i>>3)}, s{SO(4 + ((i>>1)&3))}")
        else: E("s_add_u32 s16, s16, 0x8000")
        return "s16 offen"
    LIN = isinstance(pat, dict) and 'T' in pat
    GEN = isinstance(pat, dict)
    if LIN:
        M = lambda bits: sum(1 << b for b in (bits if isinstance(bits, tuple) else (bits,)))
        Gm, Wm, Tm = [[M(b) for b in pat[k]] for k in 'GWT']
        Jm = [M(b) for b in pat.get('J', [])]; Xm = [M(b) for b in pat.get('X', [])]
        span = {0}
        for m in Gm + Wm + Tm: span |= {v ^ m for v in span}
        assert len(span) == 1024 and max(span) < (1 << 18) and all(v % 256 == 0 for v in span)
        first = True
        for reg, ms in (('s3', Wm), ('s5', Jm), ('s4', Xm)):
            k = 0
            while k < len(ms):
                if ms[k] == 0: k += 1; continue
                n = 1
                while k + n < len(ms) and ms[k + n] == ms[k] << n: n += 1
                while n > 1 and any((ms[k] << a) & (ms[k] << b) for a in range(n) for b in range(a)): n -= 1
                d = "s32" if first else "s30"
                E(f"s_bfe_u32 {d}, {reg}, {(n << 16) + k}"); E(f"s_mul_i32 {d}, {d}, {ms[k]}")
                if not first: E("s_xor_b32 s32, s32, s30")
                first = False; k += n
        def lanepart(dst, lo, tmp):
            if Gm[1] == Gm[0] << 1 and not Gm[0] & Gm[1]:
                E(f"v_bfe_u32 v{tmp}, v0, {lo}, 2"); E(f"v_mul_u32_u24 v{tmp}, {Gm[0]}, v{tmp}"); E(f"v_xor_b32 v{dst}, v{dst}, v{tmp}")
            else:
                for k in range(2): E(f"v_bfe_u32 v{tmp}, v0, {lo+k}, 1"); E(f"v_mul_u32_u24 v{tmp}, {Gm[k]}, v{tmp}"); E(f"v_xor_b32 v{dst}, v{dst}, v{tmp}")
            E(f"v_xor_b32 v{dst}, s32, v{dst}")
        E("v_lshlrev_b32 v2, 4, v3"); lanepart(2, 2, 4)
        def tmask(i):
            r = 0
            for k in range(5):
                if i >> k & 1: r ^= Tm[k]
            return r
        def addr(i): return "s33 offen"
    elif GEN:
        gb = pat.get('g', (8, 9)); wb = pat.get('w', (12, 13, 14)); tf = pat['t']
        sb = pat.get('s', (18, 19, 20))
        used = list(gb) + list(wb) + list(sb) + [sh + k for n, sh, rot in tf for k in range(n)]
        assert sorted(used) == list(range(8, 21)), used
        if tuple(gb) != (8, 9): E("v_bfe_u32 v4, v0, 2, 1"); E("v_bfe_u32 v5, v0, 3, 1"); E(f"v_lshlrev_b32 v4, {gb[0]}, v4"); E(f"v_lshl_add_u32 v4, v5, {gb[1]}, v4"); E("v_lshl_add_u32 v2, v3, 4, v4")
        if tuple(wb) != (12, 13, 14) or tuple(sb) != (18, 19, 20):
            E("s_andn2_b32 s33, s33, 0x1fffff")
            for k, bit in enumerate(wb): E(f"s_bfe_u32 s30, s3, {0x10000 + k}"); E(f"s_lshl_b32 s30, s30, {bit}"); E("s_add_u32 s33, s33, s30")
            for k, bit in enumerate(sb): E(f"s_bfe_u32 s30, s5, {0x10000 + k}"); E(f"s_lshl_b32 s30, s30, {bit}"); E("s_add_u32 s33, s33, s30")
        ROT = {'j': 's5', 'jw': 's32', 'w': 's3', 'x': 's4'}
        for name, sh, plus in (('j2', 2, None), ('j2w', 2, 's3'), ('j3', 3, None), ('j3w', 3, 's3'), ('j1', 1, None), ('j1w', 1, 's3'), ('jx', 0, 's4'), ('j2x', 2, 's4'), ('j3x', 3, 's4')):
            if any(rot == name for n, _, rot in tf):
                r = SO(len(ROT) - 4); ROT[name] = f"s{r}"
                E(f"s_lshr_b32 s{r}, s5, {sh}")
                if plus: E(f"s_add_u32 s{r}, s{r}, {plus}")
        prev = {}
        def addr(i):
            const = 0; pos = 0; regs = []
            for f, (n, sh, rot) in enumerate(tf):
                c = (i >> pos) & ((1 << n) - 1); pos += n
                if rot == '0': const += c << sh
                else:
                    if prev.get(f) != c:
                        E(f"s_add_u32 s{17+f}, {ROT[rot]}, {c}"); E(f"s_and_b32 s{17+f}, s{17+f}, {(1 << n) - 1}"); E(f"s_lshl_b32 s{17+f}, s{17+f}, {sh}"); prev[f] = c
                    regs.append(f"s{17+f}")
            E(f"s_add_u32 s16, s33, {const}")
            for r in regs: E(f"s_add_u32 s16, s16, {r}")
            return "s16 offen"
    elif pat == 'B2':
        for k in (0, 4, 5): soffB(k)
    else: soff(0)
    if pat == 'A2':
        for k in range(4): E(f"s_add_u32 s30, s5, {k}"); E("s_and_b32 s30, s30, 3"); E(f"s_lshl_b32 s{17+k}, s30, 10")
    assert K0 <= 4 or LIN
    E("s_mov_b32 s10, 0x4000000"); E("s_mov_b32 s11, 0x20000")
    E("s_waitcnt lgkmcnt(0)")
    E("s_mov_b32 s8, s38"); E("s_mov_b32 s9, s39")
    stamp(0)
    def kload(i):
        E(f"buffer_load_dwordx4 v[{SL(i)}:{SL(i)+3}], v2, s[8:11], {addr(i)} {kvf}")
        if LIN and i < 31: E(f"v_xor_b32 v2, {tmask(i) ^ tmask(i+1)}, v2")
    VS = lambda i: SL((i - NL) % 32)
    def vload(i):
        if i < NL: E(f"buffer_load_dwordx4 v1, s[12:15], {addr(i)} {kvf} lds")
        else: E(f"buffer_load_dwordx4 v[{VS(i)}:{VS(i)+3}], v1, s[12:15], {addr(i)} {kvf}")
        if LIN and i < 31: E(f"v_xor_b32 v1, {tmask(i) ^ tmask(i+1)}, v1")
        if i == 31 and GEN: E("v_lshlrev_b32 v1, 4, v0")
    E.label("L_k0")
    for i in range(K0): kload(i)
    E("s_branch L_stream")

    E.label("L_service")
    E("v_mov_b32 v1, 0")
    E("s_sub_u32 s3, s3, 8")
    if cpf >= 3:
        E("s_getpc_b64 s[12:13]"); E.label("L_pc0")
        E("s_sub_u32 s12, s12, L_pc0-L_code0"); E("s_subb_u32 s13, s13, 0"); E("s_mov_b32 s14, L_exit-L_code0"); E("s_mov_b32 s15, 0x20000")
        E("s_lshl_b32 s28, s5, 2"); E("s_add_u32 s28, s28, s3"); E("s_lshl_b32 s28, s28, 8")
    E("v_lshlrev_b32 v2, 2, v0")
    if cpf >= 3: E("buffer_load_dword v95, v2, s[12:15], s28 offen" + (" nt" if cpf == 4 else ""))
    E("s_mov_b64 exec, 0xffff"); E("ds_write_b32 v2, v1"); E("s_mov_b64 exec, -1")
    E("s_sub_u32 s28, s2, 216"); E("s_add_u32 s29, s28, 32"); E("s_cmp_lt_u32 s28, 22"); E("s_cselect_b32 s21, 2, s21"); E("s_cselect_b32 s22, s29, s22")
    E("s_cmp_lg_u32 s21, 0"); E("s_cbranch_scc1 L_job")
    E("s_mov_b32 s20, 1152")
    dma_addrs()
    E("s_lshl_b32 s28, s4, 2"); E("s_add_u32 s28, s28, s3"); E(f"s_sub_u32 s30, s5, {JW2}")
    E("s_cmp_lt_u32 s5, 9")
    E("s_cselect_b32 s19, 8, 9"); E("s_cselect_b32 s30, s5, s30"); E(f"s_mov_b32 s29, {SLOT_B}"); E(f"s_cselect_b32 s29, {SLOT_A}, s29")
    E("s_mul_i32 s16, s19, 18432"); E("s_lshl_b32 s10, s16, 5"); E("s_mul_i32 s16, s16, s28"); E("s_lshl_b32 s30, s30, 7"); E("s_add_u32 s16, s16, s30")
    E("s_lshl_b32 s30, s19, 11"); E("s_mul_i32 s30, s30, s3"); E("s_add_u32 s29, s29, s30"); E("s_mov_b32 s11, 0x20000")
    E("s_waitcnt lgkmcnt(0)")
    E("s_cmp_lt_u32 s5, 9"); E("s_cselect_b32 s8, s44, s52"); E("s_cselect_b32 s9, s45, s53")
    stamp(0)
    E("s_cmp_ge_u32 s5, 27"); E("s_cbranch_scc1 L_noearly")
    E("s_sub_u32 s28, s5, 9"); E("s_cmp_lt_u32 s28, 2"); E("s_cbranch_scc1 L_noearly")
    if 'e' not in dbg: dma_loop("L_dma_early", DEA)
    E.label("L_noearly")
    E(f"s_load_dword s34, s[62:63], {EP_OFF}")
    srd(24, 62, WS_SIZE)
    E("s_barrier")
    E("s_branch L_roles")
    E.label("L_job")
    E("s_cmp_eq_u32 s21, 3")
    E("s_cselect_b32 s20, 8192, 6912") if False else (E("s_mov_b32 s20, 6912"), E("s_cselect_b32 s20, 8192, s20"))
    dma_addrs()
    own_map()
    E("s_lshl_b32 s28, s4, 3"); E(f"s_sub_u32 s29, s5, {JQ0}"); E("s_add_u32 s28, s28, s29")
    E("s_cmp_eq_u32 s21, 3"); E("s_cselect_b32 s22, s28, s22")
    E("s_mul_i32 s10, s20, 576"); E("s_mov_b32 s11, 0x20000")
    E("s_mul_i32 s16, s20, 144"); E("s_mul_i32 s16, s16, s3"); E("s_lshl_b32 s28, s22, 7"); E("s_add_u32 s16, s16, s28")
    E("s_mul_i32 s29, s3, 18432"); E(f"s_add_u32 s29, s29, {SLOT_B}"); E("s_mov_b32 s19, 9")
    E("s_mov_b32 s14, 2304"); E("s_mov_b32 s15, 0x20000")
    E("s_waitcnt lgkmcnt(0)")
    stamp(0)
    E("s_cmp_eq_u32 s21, 3")
    E("s_cselect_b32 s8, s42, s56"); E("s_cselect_b32 s9, s43, s57"); E("s_cselect_b32 s12, s36, s54"); E("s_cselect_b32 s13, s37, s55")
    E("buffer_load_dword v16, v10, s[12:15], 0 offen"); E("buffer_load_dword v17, v10, s[12:15], 0 offen offset:128"); E("buffer_load_dword v18, v11, s[12:15], 0 offen")
    srd(24, 62, WS_SIZE)
    if xe:
        E("s_cbranch_scc0 L_nox")
        E("v_lshrrev_b32 v12, 5, v0"); E("v_mul_u32_u24 v12, 1152, v12"); E("v_and_b32 v13, 31, v0"); E("v_lshl_add_u32 v12, v13, 2, v12")
        for i in range(9): E(f"buffer_load_dword v{60+i}, v12, s[12:15], 0 offen offset:{i*128}")
        E.label("L_nox")
    E(f"s_load_dword s34, s[62:63], {EP_OFF}")
    if QB:
        E("s_cmp_lg_u32 s5, 22"); E("s_cbranch_scc1 L_dma_job")
        E("s_barrier"); dma_loop("L_dma_jb", QB - 1); E("s_branch L_job2")
    dma_loop("L_dma_job", DJ)
    E("s_barrier")
    E.label("L_job2")
    stamp(9)
    op_addrs()
    E("s_waitcnt vmcnt(18)")
    for i in range(3):
        E(f"v_and_b32 v{71+2*i}, 0xffff0000, v{16+i}"); E(f"v_lshlrev_b32 v{70+2*i}, 16, v{16+i}")
    E("s_cmp_eq_u32 s21, 3"); E("s_cbranch_scc1 L_prep_q")
    E(f"s_mov_b32 s28, {LOG2E ^ 0x80000000}"); E("s_mov_b32 s29, 0xb2a57060"); E("s_mov_b32 s30, 0x3f317218")
    for e in range(6): E(f"v_mul_f32 v{24+e}, s28, v{70+e}")
    for e in range(6): E(f"v_fma_f32 v{30+e}, v{70+e}, s28, -v{24+e}")
    for e in range(6): E(f"v_fma_f32 v{30+e}, v{70+e}, s29, v{30+e}")
    for e in range(6): E(f"v_min_f32 v{24+e}, 0x42fc0000, v{24+e}")
    for e in range(6): E(f"v_exp_f32 v{24+e}, v{24+e}")
    for e in range(6): E(f"v_mul_f32 v{30+e}, s30, v{30+e}")
    for e in range(6): E(f"v_fma_f32 v{24+e}, v{24+e}, v{30+e}, v{24+e}")
    for e in range(6): E(f"v_add_f32 v{24+e}, 1.0, v{24+e}")
    for e in range(6): E(f"v_rcp_f32 v{30+e}, v{24+e}")
    for e in range(6): E(f"v_mul_f32 v{36+e}, v{70+e}, v{30+e}")
    for e in range(6): E(f"v_fma_f32 v{70+e}, -v{24+e}, v{36+e}, v{70+e}")
    for e in range(6): E(f"v_fma_f32 v{70+e}, v{70+e}, v{30+e}, v{36+e}")
    def write_a(buf):
        for i in range(3): E(f"v_cvt_pk_bf16_f32 v{16+i}, v{70+2*i}, v{71+2*i}")
        E(f"ds_write_b32 v10, v16 offset:{buf}"); E(f"ds_write_b32 v10, v17 offset:{buf+128}"); E(f"ds_write_b32 v11, v18 offset:{buf}")
    write_a(JBUF)
    if jreh: walk("L_mst", "L_ret_m")
    E("s_waitcnt vmcnt(0)")
    soft_barrier(C_J1, 1, 16)
    stamp(10)
    E.label("L_mst")
    stage_b(SLOT_B, 18, wait=False)
    E("s_branch L_gemv")
    E.label("L_prep_q")
    if not xe:
        E("v_lshrrev_b32 v12, 5, v0"); E("v_mul_u32_u24 v12, 1152, v12"); E("v_and_b32 v13, 31, v0"); E("v_lshl_add_u32 v12, v13, 2, v12")
        for i in range(9): E(f"buffer_load_dword v{60+i}, v12, s[12:15], 0 offen offset:{i*128}")
        E("s_waitcnt vmcnt(0)")
    for i in range(9):
        E(f"v_lshlrev_b32 v{24+2*i}, 16, v{60+i}"); E(f"v_and_b32 v{25+2*i}, 0xffff0000, v{60+i}")
    E("v_add_f32 v16, v24, v25")
    for r in range(26, 42): E(f"v_add_f32 v16, v16, v{r}")
    row_reduce("v_add_f32", 16, (1, 2, 4, 8)); swap_reduce("v_add_f32", 16, 17, 16)
    E("s_mov_b32 s28, 0x3ae38e39"); E("s_mov_b32 s29, 0x3727c5ac")
    E("v_mul_f32 v16, s28, v16")
    E("v_mov_b32 v18, 0")
    for r in range(24, 42): E(f"v_sub_f32 v17, v{r}, v16"); E("v_fmac_f32 v18, v17, v17")
    row_reduce("v_add_f32", 18, (1, 2, 4, 8)); swap_reduce("v_add_f32", 18, 17, 16)
    E("v_mul_f32 v18, s28, v18"); rnd(18, 18); E("v_add_f32 v18, s29, v18"); rnd(18, 18)
    E("v_sqrt_f32 v18, v18"); rnd(18, 18); E("v_rcp_f32 v19, v18"); rnd(16, 16)
    for r in range(70, 76):
        E(f"v_sub_f32 v{r}, v{r}, v16"); rnd(r, r)
        E(f"v_mul_f32 v17, v{r}, v19"); E(f"v_fma_f32 v{r}, -v18, v17, v{r}"); E(f"v_fma_f32 v{r}, v{r}, v19, v17"); rnd(r, r)
    E("s_waitcnt vmcnt(0)")
    soft_barrier(C_J1, 1, 16)
    stamp(10)
    stage_b(SLOT_B, 18)
    mktag()
    if jreh: walk("L_qh", "L_ret_q")
    if km:
        if kms:
            E("s_cmp_eq_u32 s5, 22"); E("s_cbranch_scc1 L_kms"); E("s_cmp_eq_u32 s2, 215"); E("s_cbranch_scc1 L_kms")
        lds_wait(C_NR, 1, 1, 16, sleep=4)
        if kms: E.label("L_kms")
    modgather(0, 576, "L_qh")
    stamp(11)
    for e in range(6):
        E(f"v_add_f32 v{30+e}, 1.0, v{30+e}"); rnd(30+e, 30+e); E(f"v_mul_f32 v{70+e}, v{70+e}, v{30+e}"); rnd(70+e, 70+e)
        E(f"v_add_f32 v{70+e}, v{70+e}, v{24+e}")
    write_a(JBUF)
    E("s_cbranch_execz L_gemv")
    soft_barrier(C_J2, 1, 16)
    E.label("L_gemv")
    gemv(3, JBUF, 18, 20)
    mktag()
    E("s_lshl_b32 s28, s22, 2"); E("s_add_u32 s28, s28, s3"); E("s_lshl_b32 s28, s28, 7")
    E(f"s_mov_b32 s29, {MOD_OFF}"); E("s_cmp_eq_u32 s21, 3"); E(f"s_cselect_b32 s29, {Q_OFF}, s29"); E("s_add_u32 s28, s28, s29")
    E("v_lshlrev_b32 v2, 3, v0")
    E("v_cvt_pk_bf16_f32 v8, v20, v21"); E("v_mov_b32 v9, s35")
    if jreh:
        E("s_cbranch_execnz L_jpub")
        E("s_cmp_eq_u32 s21, 3"); E("s_cbranch_scc1 L_ret_q"); E("s_branch L_ret_m")
        E.label("L_jpub")
    E("s_mov_b64 exec, 0xffff")
    E("buffer_store_dwordx2 v[8:9], v2, s[24:27], s28 offen sc1")
    E("s_mov_b64 exec, -1")
    lds_inc(C_GO, 1, 16)
    stamp(12)
    E.label("L_roles")
    for w in '0123':
        if w in dbg: E(f"s_cmp_eq_u32 s3, {w}"); E("s_cbranch_scc1 L_svc_end")
    if 'z' in dbg: E("s_branch L_tailprep")
    E("s_cmp_eq_u32 s3, 3"); E("s_cbranch_scc1 L_s3")
    E("s_cmp_eq_u32 s3, 0"); E("s_cbranch_scc1 L_s0")
    if cpf in (1, 2):
        E("s_cmp_lg_u32 s3, 1"); E("s_cbranch_scc1 L_tailprep")
        E("s_getpc_b64 s[8:9]"); E.label("L_pc")
        E("s_sub_u32 s8, s8, L_pc-L_code0"); E("s_subb_u32 s9, s9, 0"); E("s_mov_b32 s10, L_exit-L_code0"); E("s_mov_b32 s11, 0x20000")
        E("v_lshlrev_b32 v2, 4, v0"); E("s_lshl_b32 s16, s5, 10")
        if cpf == 2: lds_wait(C_KH, 1, 1, 8, sleep=8)
        E("buffer_load_dwordx4 v[8:11], v2, s[8:11], s16 offen"); E("s_waitcnt vmcnt(0)")
    E("s_branch L_tailprep")

    E.label("L_s0")
    mktag()
    E("v_lshlrev_b32 v2, 4, v0")
    if kh:
        if gateq: E("s_cmp_eq_u32 s21, 3"); E("s_cbranch_scc1 L_qgo")
        lds_wait(C_KH, 1, 1, 8, sleep=8)
        E.label("L_qgo")
    E("s_lshl_b32 s28, s4, 12"); E("s_bfe_u32 s29, s5, 0x10003"); E("s_lshl_b32 s29, s29, 11"); E("s_add_u32 s28, s28, s29"); E(f"s_add_u32 s28, s28, {Q_OFF}")
    def qbody():
        E("buffer_load_dwordx4 v[8:11], v2, s[24:27], s28 offen sc1"); E("buffer_load_dwordx4 v[12:15], v2, s[24:27], s28 offen offset:1024 sc1")
        E("s_waitcnt vmcnt(0)")
        tagcheck(16, [9, 11, 13, 15])
    poll(qbody, sl_q)
    E("s_mov_b32 s29, 0x05040100"); E("s_cmp_ge_u32 s5, 16"); E("s_cselect_b32 s29, 0x07060302, s29")
    E("v_perm_b32 v8, v10, v8, s29"); E("v_perm_b32 v9, v14, v12, s29"); E("v_lshlrev_b32 v3, 2, v0")
    E(f"ds_write_b32 v3, v8 offset:{QBUF}"); E(f"ds_write_b32 v3, v9 offset:{QBUF+256}")
    E("s_add_u32 s7, s7, 1"); lds_set(C_Q, 1, 10, "s7")
    if stamps is True: E("s_mov_b32 s71, s7")
    stamp(3)
    lds_wait(C_BAR, 1, 1, 8, sleep=4)
    E("s_mov_b32 s6, s28")
    lds_wait(C_CNT, 8, 1, 8, sleep=4)
    E("v_and_b32 v3, 15, v0"); E("v_lshlrev_b32 v4, 3, v3"); E(f"ds_read_b64 v[8:9], v4 offset:{MLB}")
    E(f"s_mov_b32 s31, {LOG2E}")
    E("s_waitcnt lgkmcnt(0)")
    E("v_mov_b32 v10, v8"); row_reduce("v_max_f32", 10, (2, 4, 8))
    E("v_sub_f32 v12, v8, v10"); E("v_mul_f32 v12, s31, v12"); E("v_exp_f32 v12, v12"); E("v_mul_f32 v11, v12, v9")
    row_reduce("v_add_f32", 11, (2, 4, 8))
    E("v_and_b32 v5, 1, v0"); E("v_lshlrev_b32 v5, 5, v5"); E("v_lshrrev_b32 v6, 1, v3"); E("v_lshl_add_u32 v5, v6, 2, v5")
    E(f"ds_write_b32 v5, v12 offset:{FAC}")
    E("s_lshl_b32 s28, s4, 5"); E("s_add_u32 s28, s28, s5"); E("s_lshl_b32 s28, s28, 5"); E(f"s_add_u32 s28, s28, {ML_OFF}")
    E("v_mov_b32 v12, s35"); E("v_mov_b32 v13, s35"); E("v_lshlrev_b32 v4, 4, v0")
    E("v_mov_b32 v6, s6"); E(f"ds_write_b32 v1, v6 offset:{C_FAC}")
    E("s_mov_b64 exec, 3")
    intra_store(["buffer_store_dwordx4 v[10:13], v4, s[24:27], s28 offen"])
    E("s_mov_b64 exec, -1")
    if 'o' in pt:
        E("s_lshl_b32 s28, s4, 5"); E("s_add_u32 s28, s28, s5"); E("s_lshl_b32 s28, s28, 10")
        E("buffer_load_dwordx4 v[92:95], v4, s[24:27], s28 offen sc1")
    E("s_waitcnt lgkmcnt(0)")
    stamp(4)
    E("s_branch L_tailprep")

    E.label("L_s3")
    E("v_lshlrev_b32 v2, 4, v0")
    for k in range(4): E(f"v_mov_b32 v{4+k}, -1")
    E("s_cmp_ge_u32 s5, 9"); E("s_cbranch_scc1 L_noclr")
    E(f"s_mul_i32 s28, s4, {ZS}"); E("s_mul_i32 s29, s5, 320"); E("s_add_u32 s28, s28, s29"); E(f"s_add_u32 s28, s28, {Z_OFF}")
    E("s_mov_b64 exec, 0xfffff"); E("buffer_store_dwordx4 v[4:7], v2, s[24:27], s28 offen sc1"); E("s_mov_b64 exec, -1")
    E.label("L_noclr")
    E("s_getreg_b32 s29, hwreg(HW_REG_XCC_ID)"); E("s_and_b32 s29, s29, 15")
    mktag()
    if fb:
        lds_wait(C_VH, 1, 1, 8, sleep=4)
        E("s_lshl_b32 s28, s28, 4"); E("s_or_b32 s29, s29, s28")
    E("v_mov_b32 v8, s29"); E("v_mov_b32 v9, s35")
    E("s_lshl_b32 s28, s4, 5"); E("s_add_u32 s28, s28, s5"); E("s_lshl_b32 s28, s28, 3"); E(f"s_add_u32 s28, s28, {FL_OFF}")
    E("s_waitcnt vmcnt(0)")
    stamp(1)
    E("s_mov_b64 exec, 1"); E("buffer_store_dwordx2 v[8:9], v1, s[24:27], s28 offen sc1"); E("s_mov_b64 exec, -1")
    if 'q' in dbg: E("s_branch L_svc_end")
    lds_wait(C_Q if NL and not fbl else C_CNT, 1 if NL and not fbl else (fbl or 8), 1, 8, sleep=8)
    if fo:
        E("s_lshl_b32 s30, s4, 8"); E(f"s_add_u32 s30, s30, {FL_OFF}"); E("v_and_b32 v3, 31, v0"); E("v_lshlrev_b32 v3, 3, v3")
        def barbody():
            E("buffer_load_dwordx2 v[8:9], v3, s[24:27], s30 offen sc1"); E("s_waitcnt vmcnt(0)"); tagcheck(16, [9])
        poll(barbody, sl_bar)
        E("v_cmp_ne_u32 vcc, s29, v8"); E("s_cmp_lg_u64 vcc, 0")
    else:
        E(f"s_mov_b32 s30, {FL_OFF}")
        def barbody():
            E("buffer_load_dwordx4 v[8:11], v2, s[24:27], s30 offen sc1"); E("buffer_load_dwordx4 v[12:15], v2, s[24:27], s30 offen offset:1024 sc1")
            E("s_waitcnt vmcnt(0)")
            tagcheck(16, [9, 11, 13, 15])
        poll(barbody, sl_bar)
        if fb:
            for r in (8, 10, 12, 14): E(f"v_sub_u32 v{r+1}, s29, v{r}"); E(f"v_ashrrev_i32 v{r+1}, 4, v{r+1}")
            E("v_add3_u32 v9, v9, v11, v13"); E("v_add_u32 v9, v9, v15")
            row_reduce("v_add_u32", 9, (1, 2, 4, 8)); swap_reduce("v_add_u32", 9, 11, 16); swap_reduce("v_add_u32", 9, 11, 32)
            E("v_readfirstlane_b32 s30, v9")
            E("s_ashr_i32 s30, s30, 8"); E(f"s_sub_i32 s30, s30, {fbo}"); E(f"s_mul_i32 s30, s30, {fbg}"); E("s_ashr_i32 s30, s30, 8")
            E("s_max_i32 s30, s30, 0"); E("s_min_i32 s30, s30, 8")
            if stamps is True: E("s_mov_b32 s73, s30")
            if fbm: E("s_sub_u32 s30, 8, s30")
            E("s_lshl_b32 s30, s30, 1"); E("s_or_b32 s30, s30, 1"); lds_set(C_KH, 1, 9, "s30")
        E("s_cmp_ge_u32 s4, 4"); E("s_cselect_b64 vcc, -1, 0")
        E("v_cndmask_b32 v8, v8, v12, vcc"); E("v_cndmask_b32 v10, v10, v14, vcc")
        E("v_xor_b32 v8, s29, v8"); E("v_bitop3_b32 v8, v8, v10, s29 bitop3:0xf6"); E("v_and_b32 v8, 15, v8"); E("v_cmp_ne_u32 vcc, 0, v8")
        E("s_and_b32 s30, s4, 3"); E("s_lshl_b32 s30, s30, 4"); E("s_lshr_b64 s[30:31], vcc, s30"); E("s_and_b32 s30, s30, 0xffff")
    E(f"s_cselect_b32 s6, 1, {1 if force_slow else 3}")
    E("v_mov_b32 v8, s6"); E(f"ds_write_b32 v1, v8 offset:{C_BAR}")
    stamp(2)
    E("s_branch L_tailprep")

    E.label("L_stream")
    xd = XD if any(XW) or XN else 0
    if XN:
        E(f"s_mov_b32 s23, {XN[0]}")
        E("s_bitcmp1_b32 s4, 0"); E(f"s_cselect_b32 s28, {XN[2]}, {XN[1]}"); E("s_cmp_ge_u32 s5, 9"); E("s_cselect_b32 s23, s28, s23")
        for lo, n in zip((15, 19, 27), (XN[3], XN[4], 0)):
            E(f"s_cmp_ge_u32 s5, {lo}"); E(f"s_cselect_b32 s23, {n}, s23")
        E("s_sub_u32 s29, s2, 216"); E("s_cmp_lt_u32 s29, 22"); E("s_cselect_b32 s23, s28, s23")
        E("s_cmp_eq_u32 s5, 22"); E(f"s_cselect_b32 s23, {XN[5]}, s23")
        E("s_cmp_eq_u32 s2, 215"); E(f"s_cselect_b32 s23, {XN[7]}, s23")
        E("s_cmp_eq_u32 s2, 203"); E(f"s_cselect_b32 s23, {XN[4] + XN[6]}, s23"); E("s_cmp_eq_u32 s2, 211"); E(f"s_cselect_b32 s23, {XN[4] + XN[6]}, s23")
        E("s_sub_u32 s29, s5, 9"); E("s_cmp_lt_u32 s29, 2"); E("s_cselect_b32 s23, 0, s23"); E(f"s_cselect_b32 s20, {XL1}, 0")
        E("s_cmp_ge_u32 s2, 238"); E(f"s_cselect_b32 s20, {XL2}, s20")
        if XM:
            E("s_getreg_b32 s28, hwreg(HW_REG_XCC_ID)"); E("s_and_b32 s28, s28, 15"); E(f"s_lshr_b32 s28, {XM}, s28"); E("s_and_b32 s28, s28, 1"); E(f"s_mul_i32 s28, s28, {XMN}"); E("s_add_u32 s23, s23, s28")
    elif xd:
        E(f"s_mov_b32 s23, {XW[0]}")
        for lo, n in zip((9, 15, 24), XW[1:4]):
            E(f"s_cmp_ge_u32 s5, {lo}"); E(f"s_cselect_b32 s23, {n}, s23")
        E("s_cmp_eq_u32 s5, 27"); E(f"s_cselect_b32 s23, {XW[4]}, s23")
        if len(XW) > 5:
            E("s_cmp_ge_u32 s5, 18"); E("s_cselect_b32 s28, 18, 9"); E("s_sub_u32 s28, s5, s28"); E("s_cmp_lt_u32 s28, 9"); E("s_cselect_b32 s29, 0, 8")
            E("s_add_u32 s28, s28, s4"); E("s_and_b32 s28, s28, 7"); E("s_add_u32 s28, s28, s29")
            E("s_cmp_eq_u32 s28, 3"); E(f"s_cselect_b32 s23, {XW[5]}, s23")
    def setscc(): pass
    tp = [0]; XWV = [0]
    def throttle(d):
        lean = any(lo <= tp[0] < hi and (tp[0] - lo) % st_ == 0 for lo, hi, st_ in LE)
        lo_ = d - 1 - lean; hi_ = d - 1 + xd - (lean and not LX)
        thr = tp[0]; tp[0] += 1
        if thr < max(max(XN), XN[4] + XN[6]) + XMN:
            a = L("th"); E(f"s_cmp_gt_u32 s23, {thr}"); E(f"s_waitcnt vmcnt({hi_})"); E(f"s_cbranch_scc1 {a}"); E(f"s_waitcnt vmcnt({lo_})"); E.label(a)
        else: E(f"s_waitcnt vmcnt({lo_})")
        if thr < max(XL1, XL2):
            a = L("th"); E(f"s_cmp_le_u32 s20, {thr}"); E(f"s_cbranch_scc1 {a}"); E(f"s_waitcnt vmcnt({lo_-1})"); E.label(a)
    if GEN: pass
    elif pat == 'B2':
        for k in (1, 2, 3, 6, 7): soffB(k)
    else:
        for u in range(1, 8): soff(u)
    srd(12, 40, 0x4000000); srd(24, 62, WS_SIZE)
    E(f"s_load_dword s34, s[62:63], {EP_OFF}")
    if LIN:
        E("v_and_b32 v1, 15, v0"); E("v_lshlrev_b32 v1, 4, v1"); lanepart(1, 4, 5)
    elif GEN:
        E("v_and_b32 v1, 15, v0"); E("v_lshlrev_b32 v1, 4, v1"); E("v_bfe_u32 v5, v0, 4, 1"); E(f"v_lshl_add_u32 v1, v5, {gb[0]}, v1"); E("v_lshrrev_b32 v5, 5, v0"); E(f"v_lshl_add_u32 v1, v5, {gb[1]}, v1")
    else: E("v_lshlrev_b32 v1, 4, v0")
    E("v_bfe_u32 v4, v0, 3, 1"); E("v_lshlrev_b32 v4, 8, v4"); E("v_lshl_add_u32 v36, v3, 4, v4")
    if warm:
        E("s_cmp_lg_u32 s3, 7"); E("s_cbranch_scc1 L_nowarm")
        E("s_mov_b64 exec, 1")
        if 'v' in warm: E("buffer_load_dword v5, v1, s[12:15], s33 offen nt")
        if 's' in warm: E(f"s_mov_b32 s28, {EP_OFF}"); E("v_mov_b32 v6, 0"); E("buffer_load_dword v5, v6, s[24:27], s28 offen nt")
        if 'w' in warm:
            E("s_bitcmp0_b32 s5, 0"); E("s_cselect_b32 s16, s50, s48"); E("s_cselect_b32 s17, s51, s49")
            E("s_cmp_ge_u32 s5, 27"); E("s_cselect_b32 s16, s52, s16"); E("s_cselect_b32 s17, s53, s17"); E(f"s_mov_b32 s18, {576*9216}"); E("s_mov_b32 s19, 0x20000")
            E("s_mov_b64 exec, 15"); E(f"v_mul_u32_u24 v6, {191*9216}, v0"); E("s_lshl_b32 s28, s2, 5")
            E("buffer_load_dword v5, v6, s[16:19], s28 offen nt")
        E("s_mov_b64 exec, -1")
        E.label("L_nowarm")
    stamp(8)
    E("s_barrier")
    stamp(9)
    for i in range(K0, D): kload(i)
    if gateq:
        E("s_cmp_lg_u32 s21, 3"); E("s_cbranch_scc1 L_kgo")
        E("v_mov_b32 v3, 0")
        lds_wait(C_GO, 4, 3, 4, sleep=4)
        E.label("L_kgo")
    setscc()
    for i in range(max(D, K0), 32):
        throttle(D); kload(i)
        if i in (4, 8): stamp(10 + (i == 8))
        if km and i == km:
            E("s_cmp_lg_u32 s21, 3"); E("s_cbranch_scc1 L_nokm"); E("v_mov_b32 v3, 0"); E("v_mov_b32 v4, 1"); E(f"ds_write_b32 v3, v4 offset:{C_NR}"); E.label("L_nokm")
        if fb and i == fb:
            E("s_cmp_lg_u32 s3, 3"); E("s_cbranch_scc1 L_nofb")
            E("s_memrealtime s[28:29]"); E("v_mov_b32 v3, 0"); E("s_waitcnt lgkmcnt(0)"); E("s_or_b32 s28, s28, 1"); E("v_mov_b32 v4, s28"); E(f"ds_write_b32 v3, v4 offset:{C_VH}")
            E.label("L_nofb")
        if kh and i == kh: E("v_mov_b32 v3, 0"); E("v_mov_b32 v4, 1"); E(f"ds_write_b32 v3, v4 offset:{C_KH}")
    stamp(1)
    if NL:
        E(f"s_mov_b32 s22, {SLOT_A}"); E("s_cmp_lt_u32 s5, 9"); E(f"s_cselect_b32 s22, {SLOT_B}, s22"); E(f"s_mul_i32 s28, s3, {NL*1024}"); E("s_add_u32 s22, s22, s28")
        for i in range(NL):
            if i % 4 == 0 or pat != 'A': E(f"s_add_u32 m0, s22, {i*1024}")
            throttle(D); vload(i)
            if kh == 32 + i: E("v_mov_b32 v3, 0"); E("v_mov_b32 v4, 1"); E(f"ds_write_b32 v3, v4 offset:{C_KH}")
    stamp(12)
    E("v_mov_b32 v2, 0")
    if 'q' not in dbg: lds_wait(C_Q, 1, 2, 3)
    if XL:
        E("s_cmp_eq_u32 s28, 1"); E(f"s_cselect_b32 s28, {XL}, 0"); E("s_add_u32 s23, s23, s28")
        XWV[0] = XL
    E(f"ds_read_b128 v[20:23], v36 offset:{QBUF}")
    E(f"s_mov_b32 s30, {SCALE}"); E(f"s_mov_b32 s31, {LOG2E}")
    E("v_mov_b32 v36, 0xff800000")
    mktag()
    stamp(2)
    setscc()
    st = dict(issued=NL)
    def qk_mfma(u):
        n = (28 - 4*u) + st['issued']
        if n < D + xd + st['issued'] and n < 63: E(f"s_waitcnt vmcnt({n})")
        for i in range(4*u, 4*u+4):
            E(f"v_mfma_f32_16x16x32_bf16 v[{SL(i)}:{SL(i)+3}], v[{SL(i)}:{SL(i)+3}], v[20:23], 0")
    def qk_post(u):
        if 'c' in dbg: return
        T = [24, 25, 26, 27]
        for k in range(4):
            for a in range(4):
                r = SL(4*u + a) + k
                if k == 0: E(f"v_mov_b32_dpp v{T[a]}, v{r} quad_perm:[0,0,0,0] row_mask:0xf bank_mask:0xf")
                else: E(f"v_add_f32_dpp v{T[a]}, v{r}, v{T[a]} quad_perm:[{k},{k},{k},{k}] row_mask:0xf bank_mask:0xf")
        E("v_cvt_pk_bf16_f32 v28, v24, v25"); E("v_cvt_pk_bf16_f32 v29, v26, v27")
        E("v_lshlrev_b32 v24, 16, v28"); E("v_and_b32 v25, 0xffff0000, v28")
        E("v_lshlrev_b32 v26, 16, v29"); E("v_and_b32 v27, 0xffff0000, v29")
        for a in range(4): E(f"v_mul_f32 v{T[a]}, s30, v{T[a]}")
        E(f"v_cvt_pk_bf16_f32 v{4+2*u}, v24, v25"); E(f"v_cvt_pk_bf16_f32 v{5+2*u}, v26, v27")
        E("v_max3_f32 v36, v24, v25, v36"); E("v_max3_f32 v36, v26, v27, v36")
    def vissue(d=None):
        i = st['issued']
        d = DV if d is None else d
        throttle(d); vload(i); st['issued'] += 1
        if i == v2:
            assert v2 >= NL + 8
            E("v_mov_b32 v2, 0"); E(f"ds_write_b32 v2, v24 offset:{C_V2}")
    def expo(k):
        if 'c' in dbg: return
        E(f"v_lshlrev_b32 v24, 16, v{4+k}"); E(f"v_and_b32 v25, 0xffff0000, v{4+k}")
        E("v_fma_f32 v24, v24, s31, -v37"); E("v_fma_f32 v25, v25, s31, -v37")
        E("v_exp_f32 v24, v24"); E("v_exp_f32 v25, v25")
        E("v_add_f32 v38, v38, v24"); E("v_add_f32 v39, v39, v25")
        E(f"v_cvt_pk_bf16_f32 v{4+k}, v24, v25")
    qk_mfma(0); qk_mfma(1); qk_post(0)
    if qs == 0:
        for _ in range(4): vissue(DQ)
        qk_mfma(2); qk_post(1)
        for _ in range(1 if DQ <= 4 else 4): vissue(DQ)
        for u in range(3, 8):
            qk_mfma(u); qk_post(u-1)
            if DQ > 4 or u % 2 == 0: vissue(DQ)
    else:
        vissue(DQ); vissue(DQ)
        for u in range(2, 8):
            qk_mfma(u); qk_post(u-1)
            if u % 2 == 1: vissue(DQ)
    qk_post(7)
    if NL:
        E(f"s_waitcnt vmcnt({st['issued'] - NL})"); E("v_lshl_add_u32 v3, v0, 4, s22")
        for i in range(NL): E(f"ds_read_b128 v[{VS(i)}:{VS(i)+3}], v3 offset:{i*1024}")
    swap_reduce("v_max_f32", 36, 24, 16); swap_reduce("v_max_f32", 36, 24, 32)
    rnd(36, 36)
    E("v_mul_f32 v37, s31, v36"); E("v_mov_b32 v38, 0"); E("v_mov_b32 v39, 0")
    for k in range(16):
        if k % (4 if qs == 0 else 6) == (0 if qs == 0 else 2): vissue(DQ)
        expo(k)
    E("v_add_f32 v37, v38, v39")
    swap_reduce("v_add_f32", 37, 24, 16); swap_reduce("v_add_f32", 37, 24, 32)
    E("s_lshl_b32 s28, s3, 4"); E("v_add_u32 v3, s28, v0"); E("v_mov_b32 v24, 1")
    E("s_mov_b64 exec, 0x101"); E(f"ds_write_b64 v3, v[36:37] offset:{MLB}")
    E("s_mov_b64 exec, 1"); E(f"ds_add_u32 v2, v24 offset:{C_CNT}")
    E("s_mov_b64 exec, -1")
    stamp(3)
    E("v_and_b32 v3, 1, v0"); E("v_cmp_eq_u32 vcc, 1, v3")
    E("v_mov_b32 v32, 0x0c0c0100"); E("v_mov_b32 v33, 0x01000c0c"); E("v_cndmask_b32 v32, v32, v33, vcc")
    E("v_mov_b32 v34, 0x0c0c0302"); E("v_mov_b32 v33, 0x03020c0c"); E("v_cndmask_b32 v33, v34, v33, vcc")
    E("v_bfe_u32 v3, v0, 1, 2"); E("v_mov_b32 v34, 0x0c0c0c0c")
    for r in range(4):
        E(f"v_cmp_eq_u32 vcc, {r}, v3"); E(f"v_cndmask_b32 v{24+r}, v34, v32, vcc"); E(f"v_cndmask_b32 v{28+r}, v34, v33, vcc")
    E("v_and_b32 v3, 15, v0"); E("v_lshlrev_b32 v3, 5, v3"); E("v_bfe_u32 v2, v0, 4, 1"); E("v_lshl_add_u32 v3, v2, 4, v3")
    E("v_lshrrev_b32 v2, 5, v0"); E("v_lshl_add_u32 v3, v2, 9, v3"); E("s_lshl_b32 s28, s3, 10"); E("v_add_u32 v3, s28, v3")
    setscc()
    if NL: E("s_waitcnt lgkmcnt(0)")
    pv = dict(done=0)
    def pv_prep(i):
        A0 = 32 + 4 * (i & 1)
        for r in range(4): E(f"v_perm_b32 v{A0+r}, v{4+i//2}, v{4+i//2}, v{24+4*(i&1)+r}")
    def pv_mfma(i):
        A0 = 32 + 4 * (i & 1)
        c = "0" if i == 0 else "v[20:23]"
        E(f"v_mfma_f32_16x16x32_bf16 v[20:23], v[{A0}:{A0+3}], v[{VS(i)}:{VS(i)+3}], {c}")
    while st['issued'] < 32:
        vissue(DV - (1 if fbm and st['issued'] > fbv else 0) + (DE if st['issued'] >= 32 - NE else 0))
        n = 0
        while pv['done'] <= st['issued'] - 1 - DV - xd - (DE if st['issued'] > 32 - NE else 0) and n < 4:
            pv_prep(pv['done']); pv_mfma(pv['done']); pv['done'] += 1; n += 1
    E("v_mov_b32 v2, 0")
    if N2: lds_inc(C_GT, 2, 4)
    lds_wait(C_FAC, 1, 2, 4, sleep=1)
    E("s_mov_b32 s6, s28"); E("s_lshl_b32 s28, s3, 2")
    E("v_and_b32 v4, 32, v0"); E("v_add_u32 v4, s28, v4"); E(f"ds_read_b32 v5, v4 offset:{FAC}")
    tagbyte(6, 0)
    E("v_mov_b32 v4, 1")
    E("s_lshl_b32 s29, s4, 5"); E("s_add_u32 s29, s29, s5"); E("s_lshl_b32 s29, s29, 10")
    assert pv['done'] >= 6
    while pv['done'] < 32:
        i = pv['done']
        pv_prep(i)
        if 31 - i < DV + xd + DE: E(f"s_waitcnt vmcnt({31-i})")
        pv_mfma(i); pv['done'] += 1
    E("s_waitcnt lgkmcnt(0)")
    for k in range(4): E(f"v_mul_f32 v{20+k}, v5, v{20+k}")
    E(f"ds_write_b128 v3, v[20:23] offset:{OBUF}")
    E("s_mov_b64 exec, 1"); E(f"ds_add_rtn_u32 v4, v2, v4 offset:{C_OC}"); E("s_mov_b64 exec, -1")
    for w in range(8): E(f"ds_read_b128 v[{40+4*w}:{43+4*w}], v1 offset:{OBUF + w*1024}")
    if stamps is True: stamp(4)
    E("s_waitcnt lgkmcnt(8)")
    E("v_readfirstlane_b32 s28, v4"); E("s_cmp_lg_u32 s28, 7"); E("s_cbranch_scc1 L_noreduce")
    E.label("L_reduce")
    PK = lambda d, x, y: (E(f"v_pk_add_f32 v[{d}:{d+1}], v[{x}:{x+1}], v[{y}:{y+1}]"), E(f"v_pk_add_f32 v[{d+2}:{d+3}], v[{x+2}:{x+3}], v[{y+2}:{y+3}]"))
    E("s_waitcnt lgkmcnt(6)"); PK(40, 40, 44)
    E("s_waitcnt lgkmcnt(4)"); PK(48, 48, 52); PK(40, 40, 48)
    E("s_waitcnt lgkmcnt(2)"); PK(56, 56, 60); PK(40, 40, 56)
    E("s_waitcnt lgkmcnt(0)"); PK(64, 64, 68); PK(40, 40, 64)
    settag(40, 6)
    intra_store(["buffer_store_dwordx4 v[40:43], v1, s[24:27], s29 offen"])
    if oack: live("s_waitcnt vmcnt(0)")
    lds_set(C_OC, 2, 4, 9)
    stamp(5)
    E.label("L_noreduce")
    if 't' in dbg: E("s_branch L_sdone")
    E("s_cmp_ge_u32 s5, 9"); E("s_cbranch_scc1 L_nogather")
    E("s_lshl_b32 s16, s4, 3"); E("s_add_u32 s16, s16, s3"); E("s_lshl_b32 s16, s16, 12")
    E("s_lshr_b32 s28, s3, 1"); E("s_lshl_b32 s28, s28, 6"); E("s_and_b32 s29, s3, 1"); E("s_lshl_b32 s30, s29, 4"); E("s_add_u32 s28, s28, s30")
    E("v_and_b32 v3, 32, v0"); E("v_add_u32 v3, s28, v3")
    E("s_lshl_b32 s29, s29, 1"); E("s_lshr_b32 s30, s3, 2"); E("s_add_u32 s29, s29, s30"); E(f"s_mul_i32 s29, s29, {AROW}")
    E("s_bfe_u32 s30, s3, 0x10001"); E("s_lshl_b32 s30, s30, 9"); E("s_add_u32 s29, s29, s30")
    E("v_lshlrev_b32 v7, 3, v0"); E("v_add_u32 v7, s29, v7")
    E("s_cbranch_execz L_ggo")
    lds_wait(C_G, 4, 2, 4, sleep=1)
    E(f"ds_read_b128 v[8:11], v3 offset:{WGT}")
    lds_wait(C_OC, gw, 2, 4, sleep=gs)
    E.label("L_ggo")
    Ro = lambda t: 72 + 16 * t
    def oloads(t):
        for s_ in range(4): E(f"buffer_load_dwordx4 v[{Ro(t)+4*s_}:{Ro(t)+3+4*s_}], v1, s[24:27], s16 offen offset:{s_*1024} sc1")
    if oc:
        E("v_and_b32 v17, 3, v0"); E("v_lshlrev_b32 v17, 10, v17"); E("s_and_b32 s31, s35, 0xfff"); E("s_mov_b32 s7, 0")
        E("s_cbranch_execz L_ocd")
        E.label("L_ocp")
        E("buffer_load_dword v18, v17, s[24:27], s16 offen sc1"); E("s_waitcnt vmcnt(0)")
        E("v_and_b32 v18, 0xfff, v18"); E("v_cmp_eq_u32 vcc, s31, v18"); E("s_bcnt1_i32_b64 s28, vcc")
        E(f"s_cmp_ge_u32 s28, {16*oc}"); E("s_cbranch_scc1 L_ocd")
        E("s_add_u32 s7, s7, 1"); E(f"s_cmp_lt_u32 s7, {plim}"); E("s_cbranch_scc1 L_ocp")
        E.label("L_ocd")
    E("s_mov_b32 s7, 0")
    for t in range(PO): oloads(t)
    E.label("L_opl")
    for t in range(PO):
        r = Ro(t)
        for s_ in range(4):
            E(f"s_waitcnt vmcnt({4*(PO-1) + 3 - s_})")
            E(f"v_xor_b32 v{r+4*s_}, v6, v{r+4*s_}")
            for k in (1, 2, 3, 0):
                if s_ == 0: E(f"v_mul_f32 v{12+k}, v8, v{r+k}")
                else: E(f"v_fmac_f32 v{12+k}, v{8+s_}, v{r+4*s_+k}")
            if s_ == 2: E(f"v_or3_b32 v16, v{r}, v{r+4}, v{r+8}")
        E("v_cvt_pk_bf16_f32 v12, v12, v13"); E("v_cvt_pk_bf16_f32 v13, v14, v15")
        E(f"ds_write_b64 v7, v[12:13] offset:{ABUF}")
        E(f"v_or_b32 v16, v16, v{r+12}"); E("v_and_b32 v16, 0xfff, v16"); E("v_cmp_ne_u32 vcc, 0, v16")
        E("s_cbranch_vccz L_ook")
        if sl_o: E(f"s_sleep {sl_o}")
        oloads(t)
    E("s_add_u32 s7, s7, 1"); E(f"s_cmp_lt_u32 s7, {plim}"); E("s_cbranch_scc1 L_opl")
    E.label("L_ook")
    stamp(6)
    E("s_branch L_slast")
    E.label("L_nogather")
    w2idx(28); E("s_cmp_ge_u32 s28, 9"); E("s_cbranch_scc1 L_sdone")
    E("s_cmp_ge_u32 s3, 5"); E("s_cbranch_scc1 L_sdone")
    E("s_lshl_b32 s28, s3, 6"); E("v_add_u32 v2, s28, v0"); E("v_min_u32 v2, 287, v2")
    tagbyte(22, 2)
    E("v_lshlrev_b32 v1, 4, v2")
    E("v_lshlrev_b32 v2, 2, v2")
    E("s_mul_i32 s18, s4, 9216"); E(f"s_add_u32 s18, s18, {G_OFF}"); E("s_add_u32 s19, s18, 4608")
    E(f"v_mov_b32 v8, {LOG2E ^ 0x80000000}"); E("v_mov_b32 v9, v8"); E("v_mov_b32 v10, 1.0"); E("v_mov_b32 v11, 1.0")
    E("v_mov_b32 v3, 0")
    Rh = lambda t: 40 + 8 * t
    def gloads(t):
        E(f"buffer_load_dwordx4 v[{Rh(t)}:{Rh(t)+3}], v1, s[24:27], s18 offen sc1"); E(f"buffer_load_dwordx4 v[{Rh(t)+4}:{Rh(t)+7}], v1, s[24:27], s19 offen sc1")
    E("s_cbranch_execz L_hgo")
    E("s_waitcnt lgkmcnt(0)")
    E("s_barrier"); E("s_barrier")
    E("s_cmp_ge_u32 s5, 27"); E("s_cbranch_scc1 L_hgo")
    gloads(0)
    E("s_barrier"); E("s_barrier")
    E("s_waitcnt vmcnt(0)")
    E.label("L_hgo")
    stamp(6)
    def gfin(t):
        g, u = Rh(t), Rh(t) + 4
        E(f"v_pk_mul_f32 v[4:5], v[{g}:{g+1}], v[8:9]"); E(f"v_pk_mul_f32 v[6:7], v[{g+2}:{g+3}], v[8:9]")
        E(f"v_pk_mul_f32 v[16:17], v[{u}:{u+1}], v[{g}:{g+1}]"); E(f"v_pk_mul_f32 v[18:19], v[{u+2}:{u+3}], v[{g+2}:{g+3}]")
    ppoll(PG, 2, gloads, lambda t: lowcheck(20, [Rh(t), Rh(t)+2, Rh(t)+4, Rh(t)+6], 22), gfin)
    for e in range(4): E(f"v_exp_f32 v{4+e}, v{4+e}")
    E("v_pk_add_f32 v[4:5], v[4:5], v[10:11]"); E("v_pk_add_f32 v[6:7], v[6:7], v[10:11]")
    for e in range(4): E(f"v_rcp_f32 v{4+e}, v{4+e}")
    E("v_pk_mul_f32 v[16:17], v[16:17], v[4:5]"); E("v_pk_mul_f32 v[18:19], v[18:19], v[6:7]")
    E("v_cvt_pk_bf16_f32 v12, v16, v18"); E("v_cvt_pk_bf16_f32 v13, v17, v19")
    E(f"ds_write_b32 v2, v12 offset:{ACT0}"); E(f"ds_write_b32 v2, v13 offset:{ACT1}")
    E.label("L_slast")
    E("s_waitcnt lgkmcnt(0)")
    E("s_cbranch_execz L_ret_s")
    E("s_barrier")
    stamp(7)
    E.label("L_sdone")
    E("s_cbranch_execz L_ret_s")
    stamp_flush(); E("s_endpgm")

    E.label("L_tailprep")
    E("s_mov_b64 s[88:89], -1")
    if reh:
        E("s_cmp_lg_u32 s3, 2"); E("s_cbranch_scc1 L_tp2")
        E("s_mov_b32 s6, 3"); E("s_mov_b32 s29, 0"); E("v_mov_b32 v2, 0")
        walk("L_reduce", "L_ret_s")
        E.label("L_tp2")
    else:
        E.label("L_ret_s")
    E("s_cmp_ge_u32 s5, 27"); E("s_cbranch_scc1 L_w2late")
    E("s_cmp_lt_u32 s5, 9"); E("s_cbranch_scc1 L_owner")

    def wsetup():
        op_addrs()
        E(f"v_mov_b32 v8, {ZBUF}"); E(f"v_mov_b32 v9, {CBUF}"); E(f"v_mov_b32 v10, {SBUF}")
        E("v_cmp_eq_u32 vcc, 1, v6"); E("v_cndmask_b32 v4, v8, v9, vcc"); E("v_cmp_eq_u32 vcc, 2, v6"); E("v_cndmask_b32 v4, v4, v10, vcc")
        E("v_bfe_u32 v7, v0, 2, 1"); E("v_mul_u32_u24 v7, 1152, v7"); E("v_lshl_add_u32 v7, v5, 4, v7"); E("v_add_u32 v4, v4, v7")
        E("v_and_b32 v3, 1, v0"); E("v_xor_b32 v3, 1, v3"); E(f"v_mul_u32_u24 v3, {ACT0-ACT1}, v3"); E("v_lshl_add_u32 v3, v5, 4, v3")
        w13idx(30); E("s_bitcmp0_b32 s5, 0"); E("s_cselect_b32 s29, 9, 0"); E("s_add_u32 s30, s30, s29")
        E("s_lshl_b32 s30, s30, 2"); E("s_add_u32 s30, s30, s3")
        E("s_lshl_b32 @S0@, s30, 7"); E("s_mul_i32 s29, s4, 9216"); E("s_add_u32 @S0@, @S0@, s29"); E(f"s_add_u32 @S0@, @S0@, {G_OFF}")
        E(f"s_mul_i32 @S1@, s4, {ZS}"); E(f"s_add_u32 @S1@, @S1@, {Z_OFF}")
        w2idx(30); E("s_lshl_b32 s30, s30, 2"); E("s_add_u32 s30, s30, s3"); E("s_lshl_b32 s30, s30, 7")
        E("s_lshl_b32 @S2@, s4, 14"); E("s_add_u32 @S2@, @S2@, s30"); E(f"s_add_u32 @S2@, @S2@, {Y_OFF}"); E("s_add_u32 @S6@, @S2@, 8192")
        E("s_mul_i32 s28, s3, 45"); E("v_min_u32 v12, 44, v0"); E("v_add_u32 v12, s28, v12"); E("v_lshlrev_b32 v12, 4, v12")
        E("v_and_b32 v8, 15, v0"); E("v_lshrrev_b32 v9, 5, v0"); E("v_lshl_add_u32 v9, v9, 4, v8"); E("v_cmp_gt_u32 vcc, 18, v9")
        E("v_bfe_u32 v10, v0, 4, 1"); E("v_mul_u32_u24 v11, 288, v10"); E("v_lshl_add_u32 v16, v9, 4, v11"); E(f"v_add_u32 v16, {ZBUF + 2304}, v16")
        E(f"v_mov_b32 v9, {ZERO}"); E("v_cndmask_b32 v16, v9, v16, vcc")
        E("v_and_b32 v8, 3, v0"); E("v_lshlrev_b32 v8, 2, v8"); E(f"ds_write_b32 v8, v1 offset:{ZERO}")
        E("v_lshlrev_b32 v7, 3, v0")
        E("s_mov_b32 @S4@, 0x3ae38e39"); E("s_mov_b32 @S5@, 0x3727c5ac")
    if reh:
        E("s_cmp_lg_u32 s3, 1"); E("s_cbranch_scc1 L_now_w")
        wsetup()
        E("s_mov_b32 s6, 3")
        walk("L_wt", "L_ret_w")
        E.label("L_now_w")
    else: E.label("L_ret_w")
    if 'm' in dbg: mktag()
    if 't' not in dbg and 'm' not in dbg:
        lds_wait(C_Q, 1, 1, 8, sleep=8)
        mktag()
        own_map()
        modgather(1728, 2304)
        for i in range(3):
            E(f"v_add_f32 v{30+2*i}, 1.0, v{30+2*i}"); E(f"v_add_f32 v{31+2*i}, 1.0, v{31+2*i}")
            E(f"v_cvt_pk_bf16_f32 v12, v{30+2*i}, v{31+2*i}"); E(f"v_cvt_pk_bf16_f32 v13, v{24+2*i}, v{25+2*i}")
            a_, o_ = ((10, 0), (10, 128), (11, 0))[i]
            E(f"ds_write_b32 v{a_}, v12 offset:{CBUF+o_}"); E(f"ds_write_b32 v{a_}, v13 offset:{SBUF+o_}")
    lds_wait(C_BAR, 1, 1, 8, sleep=4)
    E("s_mov_b32 s6, s28")
    wsetup()
    if 'g' in pt: E("s_mov_b64 exec, 0xffff"); E("buffer_load_dwordx2 v[90:91], v7, s[24:27], @S0@ offen sc1"); E("s_mov_b64 exec, -1")
    if 'z' in pt: E("buffer_load_dwordx4 v[84:87], v12, s[24:27], @S1@ offen sc1")
    E("s_mov_b32 s20, 9216")
    dma_addrs(24, 25, 26)
    w13idx(28); E("s_bitcmp0_b32 s5, 0"); E("s_cselect_b32 s8, s50, s48"); E("s_cselect_b32 s9, s51, s49")
    E(f"s_mov_b32 s10, {576*9216}"); E("s_mov_b32 s11, 0x20000")
    E("s_mul_i32 s16, s4, 1152"); E("s_lshl_b32 s28, s28, 7"); E("s_add_u32 s16, s16, s28")
    E(f"s_mul_i32 s28, s3, {8*9216}"); E("s_add_u32 s16, s16, s28"); E(f"s_mov_b32 s17, {32*9216}")
    E("s_lshl_b32 s29, s3, 10"); E(f"s_add_u32 s29, s29, {SLOT_A}"); E("s_mov_b32 s19, 9")
    E("s_bitcmp1_b32 s3, 0"); E("s_cselect_b64 vcc, -1, 0"); E("v_cndmask_b32 v24, v24, v25, vcc")
    E("v_lshrrev_b32 v5, 1, v0"); tagbyte(5, 5)

    if tlb:
        E(f"v_mul_u32_u24 v26, {143*9216}, v0"); E("s_mov_b64 exec, 3"); E("buffer_load_dword v27, v26, s[8:11], s16 offen nt"); E("s_mov_b64 exec, -1")
    if NP or NP3:
        E("s_bfe_u32 s30, s16, 0x30007"); E("s_cmp_eq_u32 s30, 3"); E(f"s_cselect_b32 s19, {NP3}, {NP}"); E("s_cmp_lt_u32 s5, 11"); E(f"s_cselect_b32 s19, {NP1}, s19"); E("s_sub_u32 s31, 9, s19")
        E("s_cmp_eq_u32 s19, 0"); E("s_cbranch_scc1 L_nol1")
        if NL: lds_wait(C_CNT, 8, 1, 8, sleep=4)
        else: lds_wait(C_VH, 1, 1, 8, sleep=4)
        dma_loop("L_dma_l1", DW1, 24, 24, 4096)
        E.label("L_nol1")
        E("s_mov_b32 s19, s31")
    if k1:
        lds_wait(C_OC, k1, 1, 8, sleep=1)
        E(f"s_sub_u32 s31, s19, {N1}"); E(f"s_mov_b32 s19, {N1}"); dma_loop("L_dma_l2", 0, 24, 24, 4096); E("s_mov_b32 s19, s31")
    if N2:
        lds_wait(C_GT, k2, 1, 8, sleep=1)
        E(f"s_sub_u32 s31, s19, {N2}"); E(f"s_mov_b32 s19, {N2}"); dma_loop("L_dma_l3", 0, 24, 24, 4096); E("s_mov_b32 s19, s31")
    if g13:
        E("s_cmp_lg_u32 s3, 1"); E("s_cbranch_scc1 L_gt2")
        lds_wait(C_OC, gk, 1, 8, sleep=1)
        E("v_and_b32 v9, 31, v0"); E("v_lshlrev_b32 v9, 10, v9"); E("s_lshl_b32 s30, s4, 15"); E("s_and_b32 s31, s35, 0xfff"); E("s_mov_b32 s7, 0")
        E("s_cmp_lt_u32 s5, 11"); E(f"s_cselect_b32 s23, {2*g13a}, {2*g13}")
        E.label("L_gtp")
        E("buffer_load_dword v8, v9, s[24:27], s30 offen sc1"); E("s_waitcnt vmcnt(0)")
        E("v_and_b32 v8, 0xfff, v8"); E("v_cmp_eq_u32 vcc, s31, v8"); E("s_bcnt1_i32_b64 s28, vcc")
        E("s_cmp_ge_u32 s28, s23"); E("s_cbranch_scc1 L_gtd")
        E(f"s_sleep {gsl}"); E("s_add_u32 s7, s7, 1"); E(f"s_cmp_lt_u32 s7, {plim}"); E("s_cbranch_scc1 L_gtp")
        E.label("L_gtd")
        lds_set(C_D1, 1, 8, 1)
        E.label("L_gt2")
        lds_wait(C_D1, 1, 1, 8, sleep=1)
    lds_wait(C_OC, ko, 1, 8, sleep=1)
    if prio: E(f"s_setprio {prio}")
    stamp(5)
    if 'w' not in dbg: dma_loop("L_dma_late", DW, 24, 24, 4096)
    if 't' in dbg:
        E("s_waitcnt vmcnt(0)"); stamp(6); E("s_branch L_svc_end")
    Rz = lambda t: 84 + 4 * t
    def zload(t): E(f"buffer_load_dwordx4 v[{Rz(t)}:{Rz(t)+3}], v12, s[24:27], @S1@ offen sc1")
    def zcheck(t):
        E(f"ds_write_b128 v12, v[{Rz(t)}:{Rz(t)+3}] offset:{ZBUF}")
        E(f"v_max3_u32 v8, v{Rz(t)}, v{Rz(t)+1}, v{Rz(t)+2}"); E(f"v_max_u32 v8, v8, v{Rz(t)+3}"); E("v_cmp_eq_u32 vcc, -1, v8")
    E(f"s_waitcnt vmcnt({18-KA})")
    E("s_barrier")
    E.label("L_wt")
    stage_b(SLOT_A, KA, wait=False, t=9)
    E(f"s_waitcnt vmcnt({ZL})")
    zload(0)
    E("s_cbranch_execz L_wt2")
    E("s_waitcnt vmcnt(1)")
    E("s_barrier")
    stamp(6)
    E.label("L_wt2")
    stage_b(SLOT_A, 18, wait=False, k0=KA, t=9)
    stamp(7)
    E("s_mov_b32 s7, 0")
    for t in range(1, PZ): zload(t)
    E.label("L_zpl")
    for t in range(PZ):
        E(f"s_waitcnt vmcnt({PZ-1})"); zcheck(t); E("s_cbranch_vccz L_zok"); zload(t)
    E("s_add_u32 s7, s7, 1"); E(f"s_cmp_lt_u32 s7, {plim}"); E("s_cbranch_scc1 L_zpl")
    E.label("L_zok")
    E("s_waitcnt lgkmcnt(0)")
    live("s_barrier")
    stamp(8)
    NSP = 2
    for k in range(NSP): E(f"ds_read_b128 v[{AT(k)}:{AT(k)+3}], v4 offset:{k*64}")
    E("ds_read_b128 v[20:23], v16")
    F = ["v_pk_add_f32 v[18:19], v[20:21], v[22:23]", "s_waitcnt vmcnt(0)", "v_permlane32_swap_b32 v18, v19", "v_add_f32 v18, v18, v19"]
    F += [f"v_add_f32_dpp v18, v18, v18 row_ror:{k} row_mask:0xf bank_mask:0xf" for k in (1, 2, 4, 8)]
    F += ["v_mul_f32 v18, @S4@, v18", "v_mov_b32 v19, v18", "v_permlane32_swap_b32 v18, v19", "v_fma_f32 v19, -v18, v18, v19", "v_max_f32 v19, 0, v19"]
    R = lambda r: [f"v_cvt_pk_bf16_f32 v{r}, v{r}, v{r}", f"v_and_b32 v{r}, 0xffff0000, v{r}"]
    if mim: F += R(19) + ["v_add_f32 v19, @S5@, v19"] + R(19) + ["v_sqrt_f32 v19, v19"] + R(18) + R(19) + ["v_rcp_f32 v19, v19"]
    else: F += ["v_add_f32 v19, @S5@, v19", "v_rsq_f32 v19, v19"]
    gemv(4, 0, 18, 8, F, pre=NSP, extra=1)
    E("v_fma_f32 v8, -v18, v9, v8"); E("v_fma_f32 v8, v8, v19, v10")
    E("v_mov_b32 v9, v8"); E("v_permlane16_swap_b32 v8, v9")
    settag(8, 5)
    E(X(0xffff))
    intra_store(["buffer_store_dwordx2 v[8:9], v7, s[24:27], @S0@ offen"])
    E(X(-1))
    stamp(13)
    E(f"s_sub_u32 s28, s5, {JW2}"); E("s_cmp_ge_u32 s28, 4"); E("s_cbranch_scc1 L_wend")
    E.label("L_w2t")
    live("s_barrier")
    stage_b(SLOT_B, 18)
    tagbyte(5, 0)
    live("s_barrier")
    stamp(14)
    gemv(3, ACT1, 18, 8)
    settag(8, 5)
    E(X(0xffff))
    E("buffer_store_dwordx2 v[8:9], v7, s[24:27], @S2@ offen sc1")
    if numa: E("buffer_store_dwordx2 v[8:9], v7, s[24:27], @S6@ offen sc1")
    stamp(15)
    E.label("L_wend")
    E("s_cbranch_execnz L_svc_end")
    E("s_cmp_ge_u32 s5, 27"); E("s_cbranch_scc1 L_ret_l"); E("s_branch L_ret_w")

    E.label("L_w2late")
    mktag()
    wsetup()
    if reh:
        E("s_cmp_lg_u32 s3, 1"); E("s_cbranch_scc1 L_now_l")
        walk("L_w2t", "L_ret_l")
        E.label("L_now_l")
    else: E.label("L_ret_l")
    E("s_mov_b32 s20, 1152")
    dma_addrs(24, 25, 26)
    E("s_mov_b32 s8, s52"); E("s_mov_b32 s9, s53"); E(f"s_mov_b32 s10, {4608*1152}"); E("s_mov_b32 s11, 0x20000")
    E("s_lshl_b32 s28, s4, 2"); E("s_add_u32 s28, s28, s3"); E(f"s_mul_i32 s16, s28, {144*1152}"); E("s_sub_u32 s28, s5, 23"); E("s_lshl_b32 s28, s28, 7"); E("s_add_u32 s16, s16, s28")
    E("s_mul_i32 s29, s3, 18432"); E(f"s_add_u32 s29, s29, {SLOT_B}"); E("s_mov_b32 s19, 9")
    E("s_lshl_b32 s30, s21, 1"); lds_wait(C_GO, "s30", 1, 8, sleep=2)
    lds_wait(C_OC, 9, 1, 8, sleep=2)
    if wn:
        E("s_cmp_lg_u32 s3, 1"); E("s_cbranch_scc1 L_wl2")
        E("v_and_b32 v9, 31, v0"); E("v_lshlrev_b32 v9, 10, v9"); E("s_lshl_b32 s30, s4, 15"); E("s_and_b32 s31, s35, 0xfff"); E("s_mov_b32 s7, 0")
        E.label("L_wlp")
        E("buffer_load_dword v8, v9, s[24:27], s30 offen sc1"); E("s_waitcnt vmcnt(0)")
        E("v_and_b32 v8, 0xfff, v8"); E("v_cmp_eq_u32 vcc, s31, v8"); E("s_bcnt1_i32_b64 s28, vcc")
        E(f"s_cmp_ge_u32 s28, {2*wn}"); E("s_cbranch_scc1 L_wld")
        E(f"s_sleep {wsl}"); E("s_add_u32 s7, s7, 1"); E(f"s_cmp_lt_u32 s7, {plim}"); E("s_cbranch_scc1 L_wlp")
        E.label("L_wld")
        lds_set(C_D1, 1, 8, 1)
        E.label("L_wl2")
        lds_wait(C_D1, 1, 1, 8, sleep=1)
    if prio: E(f"s_setprio {prio}")
    stamp(5)
    dma_loop("L_dma_w2l", 0, 24, 25)
    E("s_waitcnt vmcnt(0)")
    E("s_barrier")
    stamp(6)
    E("s_branch L_w2t")

    E.label("L_owner")
    if 't' in dbg: E("s_waitcnt vmcnt(0)"); E("s_branch L_svc_end")
    E("s_waitcnt vmcnt(0)")
    lds_inc(C_D1, 1, 8)
    mktag()
    op_addrs()
    E("s_lshl_b32 s22, s5, 2"); E("s_add_u32 s22, s22, s3")
    E("v_and_b32 v6, 15, v0"); E("v_bfe_u32 v7, v0, 4, 1"); E("v_lshrrev_b32 v20, 4, v0"); E("v_lshlrev_b32 v20, 14, v20"); E("v_lshl_add_u32 v20, v6, 3, v20")
    E("v_mul_u32_u24 v21, 1152, v7"); E("v_lshl_add_u32 v21, v6, 1, v21")
    E("v_mul_u32_u24 v22, 288, v7")
    E("v_lshlrev_b32 v23, 3, v6")
    E("v_cmp_eq_u32 vcc, 0, v7"); E("v_mov_b32 v19, 0x03020c0c"); E("v_mov_b32 v6, 0x01000c0c"); E("v_cndmask_b32 v19, v19, v6, vcc")
    E("s_lshl_b32 s23, s22, 5")
    srd(8, 36, 2304); srd(12, 58, 2304)
    E("s_lshl_b32 s28, s22, 7"); E(f"s_add_u32 s32, s28, {MOD_OFF + 1152*8}"); E(f"s_add_u32 s33, s32, {1152*8}"); E(f"s_add_u32 s19, s33, {576*8}")
    E("s_lshl_b32 s29, s4, 14"); E("s_add_u32 s29, s29, s28")
    E(f"s_add_u32 s18, s29, {X_OFF}"); E(f"s_add_u32 s{SO(4)}, s18, 8192")
    XS = SO
    for k in range(4): E(f"s_add_u32 s{XS(k)}, s28, {(X_OFF, X_OFF + 4*16384, Y_OFF, Y_OFF + 4*16384)[k]}")
    E(f"s_mul_i32 s20, s4, {ZS}"); E("s_add_u32 s20, s20, s23"); E(f"s_add_u32 s20, s20, {Z_OFF}")
    E(f"s_mul_i32 s21, s4, {ZS}"); E("s_lshl_b32 s28, s22, 3"); E("s_add_u32 s21, s21, s28"); E(f"s_add_u32 s21, s21, {ST_OFF}")
    E("v_lshlrev_b32 v7, 3, v0")
    E("v_and_b32 v3, 3, v0"); E(f"v_mul_u32_u24 v3, {AROW}, v3"); E("v_lshl_add_u32 v3, v5, 4, v3")
    if reh:
        E("s_cmp_lg_u32 s3, 1"); E("s_cbranch_scc1 L_now_o")
        E("s_mov_b32 s6, 3")
        walk("L_ot", "L_ret_o")
        E.label("L_now_o")
    else: E.label("L_ret_o")
    if numa:
        E("s_cmp_lg_u32 s3, 2"); E("s_cbranch_scc1 L_nonuma")
        E("s_lshl_b32 s28, s4, 14"); E("s_lshl_b32 s29, s5, 8"); E("s_add_u32 s28, s28, s29"); E(f"s_add_u32 s28, s28, {X_OFF + 4608}")
        NPR = 4
        for k in range(NPR):
            E(f"s_add_u32 s{36+2*k}, s28, {(k & 1) * 0x20000 + (k >> 1) * 1152}"); E(f"s_add_u32 s{37+2*k}, s{36+2*k}, 8192")
        for k in range(2 * NPR): E(f"s_buffer_load_dword s{44+k}, s[24:27], s{36+k} glc")
        E("s_mov_b32 s30, 0"); E("s_mov_b32 s31, 0")
        E("s_waitcnt lgkmcnt(0)")
        E.label("L_numa")
        for k in range(NPR):
            order = (0, 1) if k & 1 else (1, 0)
            sec = order[1]
            E(f"s_not_b32 s{52+sec}, s{44+2*k+sec}")
            for c in order: E(f"s_buffer_load_dword s{52+c}, s[24:27], s{36+2*k+c} glc")
            E("s_waitcnt lgkmcnt(1)"); E("s_nop 7")
            E(f"s_cmp_{'eq' if sec else 'lg'}_u32 s{52+sec}, s{44+2*k+sec}"); E("s_addc_u32 s30, s30, 0")
            E("s_waitcnt lgkmcnt(0)")
        E("s_add_u32 s31, s31, 1"); E(f"s_cmp_lt_u32 s31, {NRR}"); E("s_cbranch_scc1 L_numa")
        if pool:
            E("s_lshl_b32 s31, s4, 7"); E(f"s_add_u32 s31, s31, {VT_OFF}"); E("s_lshl_b32 s29, s5, 3"); E("s_add_u32 s29, s29, s31")
            E("v_mov_b32 v24, s30"); E("v_mov_b32 v25, s35")
            E("s_mov_b64 exec, 1"); E("buffer_store_dwordx2 v[24:25], v1, s[24:27], s29 offen sc1"); E("s_mov_b64 exec, -1")
            lds_wait(C_CNT, 8, 1, 8, sleep=8)
            E("v_min_u32 v26, 64, v23")
            def vtbody():
                E("buffer_load_dwordx2 v[24:25], v26, s[24:27], s31 offen sc1"); E("s_waitcnt vmcnt(0)"); tagcheck(27, [25])
            poll(vtbody, 16)
            E("v_cmp_gt_u32 vcc, 72, v23"); E("v_cndmask_b32 v24, 0, v24, vcc")
            row_reduce("v_add_u32", 24, (1, 2, 4, 8))
            E("v_readfirstlane_b32 s30, v24")
        if stamps is True: E("s_mov_b32 s71, s30"); stamp(2)
        E(f"s_cmp_gt_u32 s30, {(9 if pool else 1)*NPR*NRR//2}"); E(f"s_cselect_b32 s30, {8193 if numa == 1 else 1}, {1 if numa == 1 else 8193}")
        lds_set(C_NR, 1, 8, "s30")
        E.label("L_nonuma")
    lds_wait(C_BAR, 1, 1, 8, sleep=8)
    E("s_mov_b32 s6, s28")
    lds_wait(C_D1, 4, 1, 8, sleep=4)
    stage_b(SLOT_A, 16)
    E("buffer_load_ushort v16, v21, s[8:11], s23 offen")
    E("v_lshrrev_b32 v28, 5, v0"); E("v_lshlrev_b32 v28, 6, v28"); E("v_and_b32 v29, 15, v0"); E("v_lshl_add_u32 v28, v29, 1, v28"); E("v_add_u32 v28, v28, v21")
    E("buffer_load_dword v2, v28, s[8:11], 0 offen")
    def gabody():
        for k in range(2): E(f"buffer_load_dwordx2 v[{24+2*k}:{25+2*k}], v23, s[24:27], s{32+k} offen sc1")
        E("s_waitcnt vmcnt(0)")
        tagcheck(6, [25, 27])
    poll(gabody, 8)
    for k in range(2): E(f"v_perm_b32 v{17+k}, v{24+2*k}, v{24+2*k}, v19")
    E("v_lshlrev_b32 v16, 16, v16"); E("v_add_f32 v18, 1.0, v18"); rnd(18, 18)
    E("v_lshlrev_b32 v28, 16, v2"); E("v_and_b32 v2, 0xffff0000, v2"); E("v_add_f32 v2, v2, v28")
    row_reduce("v_add_f32", 2, (1, 2, 4, 8)); swap_reduce("v_add_f32", 2, 28, 32); E("v_mul_f32 v2, 0x3c800000, v2")
    lds_wait(C_V2, 1, 1, 8, sleep=8)
    E("s_lshl_b32 s28, s4, 5"); E("s_lshl_b32 s29, s3, 3"); E("s_add_u32 s28, s28, s29")
    E("s_lshl_b32 s28, s28, 5"); E(f"s_add_u32 s28, s28, {ML_OFF}")
    E("v_and_b32 v28, 15, v0"); E("v_lshlrev_b32 v28, 4, v28")
    def mlbody():
        E("buffer_load_dwordx4 v[24:27], v28, s[24:27], s28 offen sc1"); E("s_waitcnt vmcnt(0)"); tagcheck(29, [26])
    tagbyte(4, 0)
    poll(mlbody, sl_ml)
    E(f"s_mov_b32 s31, {LOG2E}")
    E("v_mov_b32 v27, v24"); row_reduce("v_max_f32", 27, (2, 4, 8))
    E("v_sub_f32 v27, v24, v27"); E("v_mul_f32 v27, s31, v27"); E("v_exp_f32 v27, v27"); E("v_mul_f32 v28, v27, v25")
    row_reduce("v_add_f32", 28, (2, 4, 8))
    E("v_rcp_f32 v28, v28"); E("v_and_b32 v26, 1, v0"); E("v_lshlrev_b32 v26, 5, v26"); E("v_bfe_u32 v29, v0, 1, 3"); E("v_lshl_add_u32 v26, v29, 2, v26")
    E("s_lshl_b32 s28, s3, 6"); E("v_add_u32 v26, s28, v26"); E("v_mul_f32 v27, v27, v28")
    E(f"ds_write_b32 v26, v27 offset:{WGT}")
    lds_inc(C_G, 1, 24)
    if numa:
        lds_wait(C_NR, 1, 1, 24, sleep=4)
        E("s_sub_u32 s28, s28, 1"); E("v_add_u32 v20, s28, v20")
    if 'x' in pt:
        for k in range(2): E(f"buffer_load_dwordx2 v[{92+2*k}:{93+2*k}], v20, s[24:27], s{XS(k)} offen sc1")
    if prio: E(f"s_setprio {prio}")
    stamp(6)
    E("s_waitcnt lgkmcnt(0)")
    E("s_barrier")
    stamp(8)
    E.label("L_ot")
    gemv(3, ABUF, 16, 8)
    E("v_pk_add_f32 v[8:9], v[8:9], v[10:11]")
    settag(8, 4)
    E(X(0xffff))
    E("buffer_store_dwordx2 v[8:9], v7, s[24:27], s18 offen sc1")
    if numa: E(f"buffer_store_dwordx2 v[8:9], v7, s[24:27], s{SO(4)} offen sc1")
    E(X(-1))
    stamp(9)
    def gather8(base):
        Rg = lambda t: 32 + 4 * t
        def loads(t):
            E(f"buffer_load_dwordx2 v[{Rg(t)}:{Rg(t)+1}], v20, s[24:27], s{XS(base)} offen sc1")
            E(f"buffer_load_dwordx2 v[{Rg(t)+2}:{Rg(t)+3}], v20, s[24:27], s{XS(base+1)} offen sc1")
        ppoll(PX, 2, loads, lambda t: lowcheck(28, [Rg(t), Rg(t)+2], 4),
              lambda t: E(f"v_pk_add_f32 v[24:25], v[{Rg(t)}:{Rg(t)+1}], v[{Rg(t)+2}:{Rg(t)+3}]"))
    def fold8():
        E("v_permlane16_swap_b32 v24, v25"); E("v_add_f32 v24, v24, v25"); swap_reduce("v_add_f32", 24, 25, 32)
    if xwait: E("s_waitcnt vmcnt(0)")
    gather8(0)
    stamp(10)
    fold8()
    if rz: rnd(24, 24); E("v_mul_f32 v24, v17, v24"); rnd(24, 24); E("v_add_f32 v16, v16, v24"); rnd(16, 16)
    else: E("v_fma_f32 v16, v17, v24, v16"); rnd(16, 16)
    E("v_sub_f32 v26, v16, v2")
    E("v_mul_f32 v24, v26, v18"); E("v_mul_f32 v27, v26, v26")
    E("v_add_f32_dpp v26, v26, v26 row_ror:1 row_mask:0xf bank_mask:0xf")
    E("v_mov_b32_dpp v25, v24 quad_perm:[1,1,3,3] row_mask:0xf bank_mask:0xf")
    E("v_add_f32_dpp v27, v27, v27 row_ror:1 row_mask:0xf bank_mask:0xf")
    E("v_cvt_pk_bf16_f32 v24, v24, v25")
    rest = []
    for k in (2, 4, 8):
        rest += [f"v_add_f32_dpp v{r}, v{r}, v{r} row_ror:{k} row_mask:0xf bank_mask:0xf" for r in (26, 27)]
    intra_store([X(0x55555555), "buffer_store_dword v24, v21, s[24:27], s20 offen", X(-1)] + rest +
                [X(0x10001), "buffer_store_dwordx2 v[26:27], v22, s[24:27], s21 offen"])
    E(X(-1))
    stamp(11)
    E("s_and_b32 s28, s5, 7"); E("s_cmp_lg_u32 s28, s4"); E("s_cbranch_scc1 L_oend")
    E("v_and_b32 v5, 15, v0"); E("v_lshlrev_b32 v5, 3, v5")
    def gbbody():
        E("buffer_load_dwordx2 v[24:25], v5, s[24:27], s19 offen sc1"); E("s_waitcnt vmcnt(0)"); tagcheck(6, [25])
    poll(gbbody, 1)
    E("v_perm_b32 v19, v24, v24, v19")
    gather8(2)
    stamp(14)
    fold8()
    if rz: rnd(24, 24); E("v_mul_f32 v24, v19, v24"); rnd(24, 24); E("v_add_f32 v24, v16, v24")
    else: E("v_fma_f32 v24, v19, v24, v16")
    E("v_mov_b32_dpp v25, v24 quad_perm:[1,1,3,3] row_mask:0xf bank_mask:0xf")
    E("v_cvt_pk_bf16_f32 v24, v24, v25")
    E(X(0x55555555))
    E(f"buffer_store_dword v24, v21, s[12:15], s23 offen {of}")
    stamp(15)
    E.label("L_oend")
    E("s_cbranch_execz L_ret_o")
    E("s_or_b32 s28, s22, s4"); E("s_cbranch_scc1 L_svc_end")
    E(X(1)); E("v_mov_b32 v24, s35"); E(f"s_mov_b32 s28, {EP_OFF}")
    E(f"buffer_store_dword v24, v1, s[24:27], s28 offen {of}")
    if probe is not None:
        if probe == 'amp':
            E("s_memrealtime s[92:93]"); E("s_waitcnt lgkmcnt(0)"); E("s_sub_u32 s29, s92, s86"); E("s_mul_i32 s29, s29, 10"); E("s_add_u32 s29, s29, s86")
        else: E(f"s_add_u32 s29, s{70+probe}, 6000")
        E.label("L_probe")
        E("s_sleep 1"); E("s_memrealtime s[92:93]"); E("s_waitcnt lgkmcnt(0)"); E("s_sub_u32 s28, s29, s92"); E("s_cmp_gt_i32 s28, 0"); E("s_cbranch_scc1 L_probe")
    E.label("L_svc_end")
    E("s_waitcnt lgkmcnt(0)")
    if stamps: E("s_add_u32 s3, s3, 8")
    stamp_flush()
    E("s_endpgm")
    for a_, b_, ins in cold:
        E.label(a_)
        for i in ins: E(i + (" sc1" if i.startswith("buffer_") else ""))
        E(f"s_branch {b_}")
    E.label("L_exit")
    E.lines = [re.sub(r'@S(\d)@', lambda m: 's%d' % SO(int(m.group(1))), l) for l in E.lines]
    body = E.finish()
    verify_stream(body)
    return HDR + f"""; @launch grid=(256,1,1) block=(768,1,1) lds=163840
.amdgcn_target "amdgcn-amd-amdhsa--gfx950"
.text
.globl {NAME}_kernel
.p2align 8
.type {NAME}_kernel,@function
{NAME}_kernel:
{body}
    s_endpgm
.section .rodata,"a"
.p2align 6
.amdhsa_kernel {NAME}_kernel
  .amdhsa_next_free_vgpr 168
  .amdhsa_next_free_sgpr 102
  .amdhsa_accum_offset 168
  .amdhsa_group_segment_fixed_size 0
  .amdhsa_kernarg_size 112
  .amdhsa_float_denorm_mode_32 3
  .amdhsa_user_sgpr_count 2
  .amdhsa_user_sgpr_kernarg_segment_ptr 1
  .amdhsa_system_sgpr_workgroup_id_x 1
.end_amdhsa_kernel
"""

def verify_stream(body):
    import re
    lines = [l.strip() for l in body.split('\n')]
    a = lines.index('L_k0:'); b = lines.index('L_service:'); c = lines.index('L_stream:'); d = lines.index('L_noreduce:')
    path = lines[a:b] + lines[c:d]
    issued = []; landed = 0; skip = None; last = {}
    for l in path:
        if skip:
            if l == skip + ':': skip = None
            continue
        m = re.match(r's_cbranch_scc1 (L_th_\d+)', l)
        if m: skip = m.group(1); continue
        m = re.match(r'buffer_load_dwordx4 v\[(\d+):', l)
        if m: issued.append(int(m.group(1))); last[int(m.group(1))] = len(issued); continue
        if re.match(r'buffer_load_dwordx4 v1, .* lds', l): issued.append(-1); nlds = len(issued); continue
        m = re.match(r'ds_read_b128 v\[(\d+):\d+\], v3 ', l)
        if m: assert landed >= nlds; last.pop(int(m.group(1)), None); continue
        m = re.search(r'vmcnt\((\d+)\)', l)
        if m: landed = max(landed, len(issued) - int(m.group(1))); continue
        m = re.match(r'v_mfma\S+ v\[(\d+):\d+\], v\[(\d+):\d+\], v\[(\d+):', l)
        if m:
            for r in (int(m.group(2)), int(m.group(3))):
                if r in last: assert last[r] <= landed, f"unwaited operand: {l}"
    assert len(issued) == 64 and landed == 64

HDR = """; adaLN-conditioned GQA decode attention + SwiGLU block in one persistent launch (written by a generator script).
;
"""
if __name__ == '__main__':
    kw = eval('dict(' + (sys.argv[2] if len(sys.argv) > 2 else '') + ')')
    open(sys.argv[1], 'w').write(gen(**kw))
```
